```python
import torch

def _softmax(x, axis=-1):
    return torch.softmax(x, dim=axis)
def _gelu(x):
    return torch.nn.functional.gelu(x, approximate="tanh")
def _silu(x):
    return torch.nn.functional.silu(x)
def _sigmoid(x):
    return torch.sigmoid(x)
def _layernorm(x, axis=-1, eps=1e-5):
    m = x.mean(dim=axis, keepdim=True)
    v = x.var(dim=axis, keepdim=True, unbiased=False)
    return (x - m) / torch.sqrt(v + eps)
def _scatter_add(tgt, idx, src, axis=0):
    return tgt.clone().index_add_(axis, idx, src)
def _segment_sum(src, seg, n):
    out = torch.zeros((n,) + src.shape[1:], dtype=src.dtype)
    return out.index_add_(0, seg, src)
def _pad(x, pw):
    flat = tuple(v for pair in reversed(pw) for v in pair)
    return torch.nn.functional.pad(x, flat)

kernel_name = 'sequential_preLN__gqa_block_cached__glu_gated_swiglu__decode'

def setup_inputs():

    _w = (lambda a: (lambda t: t.to(torch.bfloat16) if t.is_floating_point() else t)(torch.as_tensor(a)))
    def _A_setup():
        B, Sq, D = 1, 1, 512
        Hq, Hkv, Sk, Dh = 32, 8, 65536, 128
        assert Hq % Hkv == 0, (Hq, Hkv)
        return {
            "x": _w((lambda *s: torch.randn(*s, dtype=torch.bfloat16) * 0.05)(B, Sq, D)),
            "k_cache": _w((lambda *s: torch.randn(*s, dtype=torch.bfloat16) * 3.2)(B, Hkv, Sk, Dh)),
            "v_cache": _w((lambda *s: torch.randn(*s, dtype=torch.bfloat16) * 1.6)(B, Hkv, Sk, Dh)),
            "wq": _w((lambda *s: torch.randn(*s, dtype=torch.bfloat16) * 3.2)(D, Hq * Dh) * (D ** -0.5)),
            "wo": _w((lambda *s: torch.randn(*s, dtype=torch.bfloat16) * 1.6)(Hq * Dh, D) * ((Hq * Dh) ** -0.5)),
        }
    _A_in = _A_setup()

    def _B_setup():
        B, S, D, F = 1, 1, 512, 1792
        return {
            "x": _w((lambda *s: torch.randn(*s, dtype=torch.bfloat16) * 0.05)(B, S, D)),
            "w1": _w((lambda *s: torch.randn(*s, dtype=torch.bfloat16) * 1.6)(D, F) * (2.0 / D) ** 0.5),
            "w3": _w((lambda *s: torch.randn(*s, dtype=torch.bfloat16) * 1.6)(D, F) * (2.0 / D) ** 0.5),
            "w2": _w((lambda *s: torch.randn(*s, dtype=torch.bfloat16) * 1.6)(F, D) * (2.0 / F) ** 0.5),
        }
    _B_in = _B_setup()

    return {
        "A_x": _A_in["x"],
        "A_k_cache": _A_in["k_cache"],
        "A_v_cache": _A_in["v_cache"],
        "A_wq": _A_in["wq"],
        "A_wo": _A_in["wo"],
        "B_x": _B_in["x"],
        "B_w1": _B_in["w1"],
        "B_w3": _B_in["w3"],
        "B_w2": _B_in["w2"],
    }

def reference(A_x, A_k_cache, A_v_cache, A_wq, A_wo, B_x, B_w1, B_w3, B_w2):
    def _A_ref(x, k_cache, v_cache, wq, wo):
        B, Sq, D = x.shape
        Hq, Dh = 32, 128
        Hkv = k_cache.shape[1]
        rep = Hq // Hkv
        q = (lambda x, *d: x.permute(*d))((x @ wq).reshape(B, Sq, Hq, Dh), 0, 2, 1, 3)
        k = (lambda x, n, axis: torch.repeat_interleave(x, n, dim=axis))(k_cache, rep, axis=1)
        v = (lambda x, n, axis: torch.repeat_interleave(x, n, dim=axis))(v_cache, rep, axis=1)
        scores = torch.einsum("bhqd,bhkd->bhqk", q, k) * (Dh ** -0.5)
        p = _softmax(scores, axis=-1)
        o = torch.einsum("bhqk,bhkd->bhqd", p, v)
        return (lambda x, *d: x.permute(*d))(o, 0, 2, 1, 3).reshape(B, Sq, Hq * Dh) @ wo

    def _B_ref(x, w1, w3, w2):
        gate = torch.einsum("bsd,df->bsf", x, w1)
        up = torch.einsum("bsd,df->bsf", x, w3)
        h = _silu(gate) * up
        out = torch.einsum("bsf,fd->bsd", h, w2)
        return out

    x = A_x
    h = x + _A_ref(_layernorm(x, axis=-1), A_k_cache, A_v_cache, A_wq, A_wo)
    h2 = h + _B_ref(_layernorm(h, axis=-1), B_w1, B_w3, B_w2)
    return h2
```

```python
import sys
NAME = "sequential_preLN__gqa_block_cached__glu_gated_swiglu__decode"

WQL = 0x20000; SP = 0x20000
XN = 0x24000; QL = 0x24400; SML = 0x24800; CNT = 0x24880; GATE = 0x24884
WB = 0x25000; OB = 0x25200; RED = 0x25800; HB = 0x26000; HM = 0x26400; HN = 0x26800
LDS_BYTES = 163840
EPOCH = 0; QBUF = 0x1000; ML = 0x6000; H2 = 0x8000; PART = 0x10000; H3 = 0x90000; DUMMY = 0xB0000; TSB = 0x100000
TAGC = 0x9E3779B9
L2E = 0x3FB8AA3B; NL2E = 0xBFB8AA3B; SCALE = 0x3DB504F3
SPIN_MAX = 1 << 16

def gen(PACE=15, GATE_N=24, ts=False, dry=True, wq_flags="nt", w_flags="nt", kv_flags="nt"):
    L = []
    def A(s): L.append("  " + s)
    def LB(s): L.append(s + ":")
    def C(s): L.append("  ; " + s)
    def vr(a, n): return f"v[{a}:{a+n-1}]"
    def TS(k):
        if ts:
            A("s_memrealtime s[60:61]"); A("s_waitcnt lgkmcnt(0)"); A(f"s_mov_b32 s{64+k}, s60")
    def TS_flush():
        if ts:
            A("s_mov_b64 exec, -1")
            A("v_mov_b32 v250, 0")
            for k in range(16): A(f"v_writelane_b32 v250, s{64+k}, {k}")
            A("v_mbcnt_lo_u32_b32 v251, -1, 0"); A("v_mbcnt_hi_u32_b32 v251, -1, v251")
            A("s_lshl_b32 s62, s2, 3"); A("s_add_u32 s62, s62, s3"); A("s_lshl_b32 s62, s62, 6"); A(f"s_add_u32 s62, s62, {TSB}")
            A("v_lshl_add_u32 v251, v251, 2, s62")
            A("s_mov_b64 exec, 0xffff")
            A("global_store_dword v251, v250, s[26:27]")
    def dpp_red(op, xs):
        for rot in (8, 4, 2, 1):
            if len(xs) < 3: A(f"s_nop {2 - len(xs)}" if len(xs) < 2 else "s_nop 0")
            for x in xs: A(f"v_{op}_dpp v{x}, v{x}, v{x} row_ror:{rot} row_mask:0xf bank_mask:0xf")
    def swap_red(op, xs, ts_, which):
        for x, t in zip(xs, ts_): A(f"v_mov_b32 v{t}, v{x}")
        A("s_nop 1")
        for x, t in zip(xs, ts_): A(f"v_permlane{which}_swap_b32 v{x}, v{t}")
        for x, t in zip(xs, ts_): A(f"v_{op} v{x}, v{x}, v{t}")
    def unpack(dst, src):
        A(f"v_lshlrev_b32 v{dst}, 16, v{src}"); A(f"v_and_b32 v{dst+1}, 0xffff0000, v{src}")
    def bf16r(x):
        A(f"v_cvt_pk_bf16_f32 v{x}, v{x}, v{x}"); A(f"v_and_b32 v{x}, 0xffff0000, v{x}")
    def layernorm(src, f, t):
        for k in range(4): unpack(f + 2 * k, src + k)
        A(f"v_add_f32 v{t}, v{f}, v{f+1}"); A(f"v_add_f32 v{t+1}, v{f+2}, v{f+3}")
        A(f"v_add_f32 v{t+2}, v{f+4}, v{f+5}"); A(f"v_add_f32 v{t+3}, v{f+6}, v{f+7}")
        A(f"v_add_f32 v{t}, v{t}, v{t+1}"); A(f"v_add_f32 v{t+2}, v{t+2}, v{t+3}"); A(f"v_add_f32 v{t}, v{t}, v{t+2}")
        dpp_red("add_f32", [t]); swap_red("add_f32", [t], [t+1], 16); swap_red("add_f32", [t], [t+1], 32)
        A(f"v_mul_f32 v{t}, 0x3b000000, v{t}")
        A(f"v_sub_f32 v{t+2}, v{f}, v{t}"); A(f"v_mul_f32 v{t+1}, v{t+2}, v{t+2}")
        for k in range(1, 8):
            A(f"v_sub_f32 v{t+2}, v{f+k}, v{t}"); A(f"v_fmac_f32 v{t+1}, v{t+2}, v{t+2}")
        bf16r(t)
        dpp_red("add_f32", [t+1]); swap_red("add_f32", [t+1], [t+2], 16); swap_red("add_f32", [t+1], [t+2], 32)
        A(f"v_mul_f32 v{t+1}, 0x3b000000, v{t+1}")
        bf16r(t+1)
        A(f"v_add_f32 v{t+1}, 0x3727c5ac, v{t+1}")
        bf16r(t+1)
        A(f"v_sqrt_f32 v{t+1}, v{t+1}")
        for k in range(8): A(f"v_sub_f32 v{f+k}, v{f+k}, v{t}")
        bf16r(t+1)
        A(f"v_rcp_f32 v{t+1}, v{t+1}")
        for k in range(4): A(f"v_cvt_pk_bf16_f32 v{src+k}, v{f+2*k}, v{f+2*k+1}")
        for k in range(4): unpack(f + 2 * k, src + k)
        for k in range(8): A(f"v_mul_f32 v{f+k}, v{f+k}, v{t+1}")
        for k in range(4): A(f"v_cvt_pk_bf16_f32 v{src+k}, v{f+2*k}, v{f+2*k+1}")
    def transpose8(dst, src):
        for e in range(8):
            for j in range(4):
                a = src + 4 * (2 * j) + (e >> 1); b = src + 4 * (2 * j + 1) + (e >> 1)
                A(f"v_perm_b32 v{dst+4*e+j}, v{b}, v{a}, s{45 if e & 1 else 44}")
    def any_poison(regs, t):
        regs = list(regs)
        A(f"v_max3_u32 v{t}, v{regs[0]}, v{regs[1]}, v{regs[2]}" if len(regs) >= 3 else f"v_max_u32 v{t}, v{regs[0]}, v{regs[1]}")
        rest = regs[3:] if len(regs) >= 3 else []
        while len(rest) >= 2:
            A(f"v_max3_u32 v{t}, v{t}, v{rest[0]}, v{rest[1]}"); rest = rest[2:]
        if rest: A(f"v_max_u32 v{t}, v{t}, v{rest[0]}")
        A(f"v_cmp_eq_u32 vcc, -1, v{t}")
    def barrier_real(lbl):
        A("s_waitcnt lgkmcnt(0)")
        A("s_cmp_eq_u32 s46, 0"); A(f"s_cbranch_scc1 {lbl}"); A("s_barrier"); LB(lbl)
    def gate_wait(lbl):
        A(f"v_mov_b32 v1, {GATE}")
        LB(lbl)
        A("s_sleep 4"); A("ds_read_b32 v2, v1"); A("s_waitcnt lgkmcnt(0)"); A("v_readfirstlane_b32 s40, v2")
        A("s_cmp_eq_u32 s40, 0"); A(f"s_cbranch_scc1 {lbl}")

    L.append(f"; @launch grid=(256,1,1) block=(512,1,1) lds={LDS_BYTES}")
    L.append('.amdgcn_target "amdgcn-amd-amdhsa--gfx950"')
    L.append(".text"); L.append(f".globl {NAME}_kernel"); L.append(".p2align 8"); L.append(f".type {NAME}_kernel,@function")
    LB(f"{NAME}_kernel")
    A("s_cmp_ge_u32 s2, 256"); A("s_cbranch_scc1 L_end")
    A("s_load_dwordx16 s[4:19], s[0:1], 0")
    A("s_load_dwordx8 s[20:27], s[0:1], 64")
    if ts:
        for k in range(16): A(f"s_mov_b32 s{64+k}, 0")
        A("s_memrealtime s[60:61]")
    A("v_lshrrev_b32 v1, 6, v0")
    A("v_and_b32 v0, 63, v0")
    A("v_readfirstlane_b32 s3, v1")
    A("s_lshr_b32 s36, s2, 5")
    A("s_and_b32 s37, s2, 31")
    A("s_and_b32 s38, s2, 7"); A("s_lshl_b32 s38, s38, 2"); A("s_lshr_b32 s39, s37, 3"); A("s_add_u32 s38, s38, s39")
    A("s_cmp_ge_u32 s3, 4"); A("s_cbranch_scc1 L_helper")

    C("streaming waves: K/V tiles of 16 keys through a 4-slot LDS ring per wave")
    A("v_lshrrev_b32 v20, 4, v0")
    A("v_and_b32 v21, 15, v0")
    A("v_lshlrev_b32 v22, 1, v20")
    A("v_xor_b32 v22, v22, v21")
    A("v_lshlrev_b32 v22, 4, v22")
    A("v_lshl_add_u32 v2, v20, 8, v22")
    A("v_xor_b32 v3, 0x80, v2"); A("v_xor_b32 v4, 16, v2"); A("v_xor_b32 v5, 0x90, v2")
    A("s_lshl_b32 s40, s2, 19"); A("s_lshl_b32 s41, s3, 12"); A("s_add_u32 s40, s40, s41")
    A("s_lshl_b32 s41, s3, 15")
    A("s_mov_b32 s30, 0x8000000"); A("s_mov_b32 s31, 0x20000"); A("s_mov_b32 s34, 0x8000000"); A("s_mov_b32 s35, 0x20000")
    A("s_mov_b32 s42, 0x2000")
    A("s_mov_b32 s43, 0")
    A("s_waitcnt lgkmcnt(0)")
    if ts: A("s_mov_b32 s64, s60")
    A("s_mov_b32 s28, s6"); A("s_and_b32 s29, s7, 0xffff"); A("s_mov_b32 s32, s8"); A("s_and_b32 s33, s9, 0xffff")
    def issue_tile():
        A("s_mov_b32 m0, s41")
        for i in range(4):
            A(f"s_waitcnt vmcnt({PACE})"); A(f"buffer_load_dwordx4 v{2+i}, s[28:31], s40 offen offset:{i*1024} {kv_flags} lds")
        A("s_add_u32 m0, s41, 4096")
        for i in range(4):
            A(f"s_waitcnt vmcnt({PACE})"); A(f"buffer_load_dwordx4 v{2+i}, s[32:35], s40 offen offset:{i*1024} {kv_flags} lds")
        A("s_add_u32 s40, s40, 16384")
    LB("L_fill")
    issue_tile()
    A("s_xor_b32 s41, s41, s42"); A("s_xor_b32 s42, s42, 0x4000")
    A("s_add_u32 s43, s43, 1"); A("s_cmp_lt_u32 s43, 4"); A("s_cbranch_scc1 L_fill")
    TS(1)
    A("v_lshlrev_b32 v23, 1, v21"); A("v_and_b32 v23, 15, v23"); A("v_lshrrev_b32 v24, 3, v21"); A("v_or_b32 v23, v23, v24")
    A("v_and_b32 v24, 1, v20"); A("v_lshlrev_b32 v24, 1, v24"); A("v_lshrrev_b32 v25, 1, v20"); A("v_or_b32 v24, v24, v25")
    A("v_xor_b32 v23, v23, v24"); A("v_lshlrev_b32 v23, 4, v23"); A("v_lshl_add_u32 v23, v21, 8, v23")
    A("v_add_u32 v6, s41, v23")
    for s in range(1, 4): A(f"v_xor_b32 v{6+s}, {s << 6}, v6")
    A("v_lshrrev_b32 v25, 2, v0")
    A("v_lshlrev_b32 v26, 1, v25"); A("v_and_b32 v26, 15, v26"); A("v_lshrrev_b32 v27, 3, v25"); A("v_or_b32 v26, v26, v27")
    A("v_bfe_u32 v27, v0, 1, 1"); A("v_xor_b32 v26, v26, v27"); A("v_lshlrev_b32 v26, 4, v26")
    A("v_lshl_add_u32 v26, v25, 8, v26")
    A("v_and_b32 v27, 1, v0"); A("v_lshl_add_u32 v26, v27, 3, v26")
    A("s_add_u32 s44, s41, 4096")
    A("v_add_u32 v10, s44, v26")
    for t in range(1, 8): A(f"v_xor_b32 v{10+t}, {t << 5}, v10")
    A("v_and_b32 v25, 3, v21"); A("v_lshlrev_b32 v25, 8, v25"); A("v_lshl_add_u32 v25, v24, 4, v25"); A(f"v_add_u32 v108, {QL}, v25")
    A("v_mov_b32 v18, 0xff7fffff"); A("v_mov_b32 v19, 0x7f7fffff"); A("v_mov_b32 v109, 0")
    for k in range(32): A(f"v_mov_b32 v{76+k}, 0")
    A(f"s_mov_b32 s45, {L2E}")
    A("s_mov_b32 s43, 0")
    A("s_barrier")
    TS(2)
    for s in range(4): A(f"ds_read_b128 {vr(24+4*s,4)}, v108 offset:{64*s}")
    LB("L_tile")
    A("s_waitcnt vmcnt(24)")
    A("s_cmp_lt_u32 s43, 29"); A("s_cbranch_scc1 L_go")
    A("s_waitcnt vmcnt(16)"); A("s_cmp_lt_u32 s43, 30"); A("s_cbranch_scc1 L_go")
    A("s_waitcnt vmcnt(8)"); A("s_cmp_lt_u32 s43, 31"); A("s_cbranch_scc1 L_go")
    A("s_waitcnt vmcnt(0)")
    TS(3)
    LB("L_go")
    for s in range(4): A(f"ds_read_b128 {vr(40+4*s,4)}, v{6+s}")
    for t in range(8): A(f"ds_read_b64_tr_b16 {vr(56+2*t,2)}, v{10+t}")
    for s in range(4):
        A(f"s_waitcnt lgkmcnt({11-s})")
        A(f"v_mfma_f32_16x16x32_bf16 v[72:75], {vr(40+4*s,4)}, {vr(24+4*s,4)}, {'0' if s == 0 else 'v[72:75]'}")
    for k in range(12): A(f"v_xor_b32 v{6+k}, s42, v{6+k}")
    A("v_cvt_pk_bf16_f32 v110, v72, v73"); A("v_cvt_pk_bf16_f32 v111, v74, v75")
    unpack(112, 110); unpack(114, 111)
    for k in range(4): A(f"v_mul_f32 v{112+k}, {SCALE:#x}, v{112+k}")
    A("v_cvt_pk_bf16_f32 v110, v112, v113"); A("v_cvt_pk_bf16_f32 v111, v114, v115")
    unpack(112, 110); unpack(114, 111)
    A("v_max3_f32 v116, v112, v113, v114"); A("v_max3_f32 v116, v116, v115, v18")
    swap_red("max_f32", [116], [117], 16); swap_red("max_f32", [116], [117], 32)
    A("v_cmp_gt_f32 vcc, v116, v18")
    A(f"v_mul_f32 v117, {NL2E:#x}, v116")
    A("v_sub_f32 v118, v117, v19")
    for k in range(4): A(f"v_fma_f32 v{112+k}, v{112+k}, s45, v117")
    A("v_exp_f32 v118, v118")
    for k in range(4): A(f"v_exp_f32 v{112+k}, v{112+k}")
    A("v_mov_b32 v18, v116"); A("v_mov_b32 v19, v117")
    A("s_cbranch_vccz L_nors")
    for k in range(16): A(f"v_pk_mul_f32 {vr(76+2*k,2)}, {vr(76+2*k,2)}, v[118:119] op_sel_hi:[1,0]")
    LB("L_nors")
    A("v_add_f32 v116, v112, v113"); A("v_add_f32 v117, v114, v115")
    A("v_cvt_pk_bf16_f32 v120, v112, v113"); A("v_cvt_pk_bf16_f32 v121, v114, v115")
    A("v_add_f32 v116, v116, v117"); A("v_fma_f32 v109, v109, v118, v116")
    A("s_waitcnt lgkmcnt(0)")
    for t in range(8): A(f"v_mfma_f32_16x16x16_bf16 {vr(76+4*t,4)}, {vr(56+2*t,2)}, v[120:121], {vr(76+4*t,4)}")
    A("s_cmp_ge_u32 s43, 28"); A("s_cbranch_scc1 L_noissue")
    issue_tile()
    LB("L_noissue")
    A("s_xor_b32 s41, s41, s42"); A("s_xor_b32 s42, s42, 0x4000")
    A(f"s_cmp_eq_u32 s43, {GATE_N}"); A("s_cbranch_scc0 L_nogate")
    A(f"v_mov_b32 v116, {GATE}"); A("v_mov_b32 v117, 1"); A("ds_write_b32 v116, v117")
    LB("L_nogate")
    A("s_add_u32 s43, s43, 1"); A("s_cmp_lt_u32 s43, 32"); A("s_cbranch_scc1 L_tile")
    TS(4)
    C("epilogue: merge the four waves' partial results, publish")
    swap_red("add_f32", [109], [116], 16); swap_red("add_f32", [109], [116], 32)
    A("s_lshl_b32 s44, s3, 11"); A(f"s_add_u32 s44, s44, {SP}")
    A("v_lshlrev_b32 v116, 9, v21"); A("v_lshl_add_u32 v116, v20, 4, v116"); A("v_add_u32 v116, s44, v116")
    A("s_lshl_b32 s44, s3, 5"); A(f"s_add_u32 s44, s44, {SML}")
    A("v_lshl_add_u32 v117, v21, 3, s44")
    A("v_mov_b32 v108, v19")
    A("s_mov_b32 exec_lo, 0x000f000f"); A("s_mov_b32 exec_hi, 0x000f000f")
    for t in range(8): A(f"ds_write_b128 v116, {vr(76+4*t,4)} offset:{64*t}")
    A("ds_write_b64 v117, v[108:109]")
    A("s_mov_b64 exec, 1")
    A(f"v_mov_b32 v110, {CNT}"); A("v_mov_b32 v111, 1")
    A("s_waitcnt lgkmcnt(0)")
    A("ds_add_rtn_u32 v111, v110, v111")
    A("s_mov_b64 exec, -1")
    A(f"v_lshlrev_b32 v116, 5, v0"); A(f"v_add_u32 v116, {SP}, v116")
    A(f"v_lshlrev_b32 v118, 3, v20"); A(f"v_add_u32 v118, {SML}, v118")
    A("s_waitcnt lgkmcnt(0)")
    A("v_readfirstlane_b32 s44, v111")
    A("s_cmp_eq_u32 s44, 3"); A("s_cbranch_scc0 L_sdone")
    for w in range(4): A(f"ds_read_b64 {vr(24+2*w,2)}, v118 offset:{32*w}")
    for w in range(4):
        A(f"ds_read_b128 {vr(40+8*w,4)}, v116 offset:{2048*w}"); A(f"ds_read_b128 {vr(44+8*w,4)}, v116 offset:{2048*w+16}")
    A("s_lshl_b32 s44, s36, 16"); A("s_lshl_b32 s47, s38, 9"); A("s_add_u32 s44, s44, s47"); A(f"s_add_u32 s44, s44, {PART}")
    A("v_lshlrev_b32 v112, 14, v20"); A("v_lshl_add_u32 v112, v21, 5, v112"); A("v_add_u32 v112, s44, v112")
    A("s_lshl_b32 s44, s36, 10"); A("s_lshl_b32 s47, s38, 3"); A("s_add_u32 s44, s44, s47"); A(f"s_add_u32 s44, s44, {ML}")
    A("v_lshl_add_u32 v113, v20, 8, s44")
    A("s_waitcnt lgkmcnt(8)")
    A("v_min3_f32 v32, v24, v26, v28"); A("v_min_f32 v32, v32, v30")
    for w in range(4): A(f"v_sub_f32 v{24+2*w}, v32, v{24+2*w}")
    for w in range(4): A(f"v_exp_f32 v{24+2*w}, v{24+2*w}")
    A("s_nop 0")
    A("v_mul_f32 v33, v24, v25")
    for w in range(1, 4): A(f"v_fmac_f32 v33, v{24+2*w}, v{25+2*w}")
    A("s_waitcnt lgkmcnt(0)")
    for k in range(4): A(f"v_pk_mul_f32 {vr(40+2*k,2)}, {vr(40+2*k,2)}, v[24:25] op_sel_hi:[1,0]")
    for w in range(1, 4):
        for k in range(4): A(f"v_pk_fma_f32 {vr(40+2*k,2)}, {vr(40+8*w+2*k,2)}, {vr(24+2*w,2)}, {vr(40+2*k,2)} op_sel_hi:[1,0,1]")
    A("global_store_dwordx4 v112, v[40:43], s[26:27] sc1"); A("global_store_dwordx4 v112, v[44:47], s[26:27] offset:16 sc1")
    A("s_mov_b32 exec_lo, 0x00010001"); A("s_mov_b32 exec_hi, 0x00010001")
    A("global_store_dwordx2 v113, v[32:33], s[26:27] sc1")
    LB("L_sdone")
    TS(5)
    TS_flush()
    A("s_endpgm")

    LB("L_helper")
    A("s_sub_u32 s39, s3, 4")
    A("s_lshr_b32 s47, s37, 3")
    A("s_cmp_eq_u32 s36, 7"); A("s_cselect_b32 s48, 2, 1"); A("s_cmp_eq_u32 s47, 1"); A("s_cselect_b32 s47, s48, s47")
    A("s_and_b32 s48, s37, 7")
    A("s_lshl_b32 s49, s36, 3"); A("s_add_u32 s49, s49, s48")
    A("v_lshrrev_b32 v20, 4, v0"); A("v_and_b32 v21, 15, v0")
    A("s_cmp_eq_u32 s39, 0"); A("s_cbranch_scc1 L_qphase")
    A("s_cmp_ge_u32 s47, 2"); A("s_cbranch_scc1 L_end")
    A("v_mov_b32 v1, 0")
    A("s_waitcnt lgkmcnt(0)")
    if ts: A("s_mov_b32 s64, s60")
    A("global_load_dword v3, v1, s[26:27] sc1")
    A("s_waitcnt vmcnt(0)")
    A(f"v_add_u32 v3, {TAGC:#x}, v3")
    A("s_branch L_bar1")

    LB("L_qphase")
    C("q = LN(x) @ wq for 16 columns, publish, gather the group's 512 values")
    A("s_setprio 3")
    A("v_lshlrev_b32 v1, 4, v0")
    A("v_lshrrev_b32 v2, 1, v0"); A("v_lshlrev_b32 v2, 13, v2"); A("v_and_b32 v8, 1, v0"); A("v_lshl_add_u32 v2, v8, 4, v2")
    A("s_lshl_b32 s40, s36, 10"); A("s_lshl_b32 s41, s38, 5"); A("s_add_u32 s40, s40, s41")
    A("s_mov_b32 s30, 0x400000"); A("s_mov_b32 s31, 0x20000")
    A(f"s_mov_b32 m0, {WQL}")
    A("s_waitcnt lgkmcnt(0)")
    if ts: A("s_mov_b32 s64, s60")
    A("global_load_dwordx4 v[4:7], v1, s[4:5]")
    A("s_mov_b32 s28, s10"); A("s_and_b32 s29, s11, 0xffff")
    for k in range(16):
        A(f"buffer_load_dwordx4 v2, s[28:31], s40 offen {wq_flags} lds")
        if k < 15:
            A("s_add_u32 m0, m0, 1024"); A("s_add_u32 s40, s40, 0x40000")
    A("v_mov_b32 v12, 0")
    A("global_load_dword v3, v12, s[26:27] sc1")
    for k in range(4): A(f"v_mov_b32 v{8+k}, -1")
    A("s_lshl_b32 s40, s36, 16"); A("s_lshl_b32 s41, s38, 9"); A("s_add_u32 s40, s40, s41"); A(f"s_add_u32 s40, s40, {PART}")
    A("v_lshlrev_b32 v12, 14, v20"); A("v_lshl_add_u32 v12, v21, 5, v12"); A("v_add_u32 v12, s40, v12")
    A("global_store_dwordx4 v12, v[8:11], s[26:27] sc1"); A("global_store_dwordx4 v12, v[8:11], s[26:27] offset:16 sc1")
    A("s_lshl_b32 s40, s36, 10"); A("s_lshl_b32 s41, s38, 3"); A("s_add_u32 s40, s40, s41"); A(f"s_add_u32 s40, s40, {ML}")
    A("v_lshl_add_u32 v13, v20, 8, s40")
    A("global_store_dwordx2 v13, v[8:9], s[26:27] sc1")
    A("s_lshl_b32 s40, s36, 11"); A("s_lshl_b32 s41, s48, 8"); A("s_add_u32 s40, s40, s41"); A(f"s_add_u32 s40, s40, {H2}")
    A("s_lshl_b32 s41, s49, 11"); A(f"s_add_u32 s41, s41, {H3}")
    A("s_cmp_eq_u32 s47, 1"); A(f"s_cselect_b32 s41, s41, {DUMMY}")
    A("s_cmp_eq_u32 s47, 0"); A("s_cselect_b32 s40, s40, s41"); A("s_cselect_b32 s41, 15, 63"); A("s_cselect_b32 s42, 0, 1024")
    A("v_and_b32 v14, s41, v0"); A("v_lshl_add_u32 v14, v14, 4, s40"); A("v_add_u32 v15, s42, v14")
    A("global_store_dwordx4 v14, v[8:11], s[26:27] sc1"); A("global_store_dwordx4 v15, v[8:11], s[26:27] sc1")
    A("s_waitcnt vmcnt(22)")
    TS(1)
    layernorm(4, 24, 32)
    A(f"v_add_u32 v1, {XN}, v1")
    A("ds_write_b128 v1, v[4:7]")
    A("v_bfe_u32 v22, v0, 2, 2"); A("v_lshl_add_u32 v22, v20, 3, v22"); A("v_lshlrev_b32 v22, 5, v22")
    A("v_and_b32 v23, 3, v0"); A("v_lshl_add_u32 v22, v23, 3, v22"); A(f"v_add_u32 v22, {WQL}, v22")
    A(f"v_lshlrev_b32 v23, 4, v20"); A(f"v_add_u32 v23, {XN}, v23")
    for j in range(16): A(f"ds_read_b128 {vr(128+4*j,4)}, v23 offset:{64*j}")
    A("s_waitcnt vmcnt(6)")
    TS(2)
    for j in range(16):
        A(f"ds_read_b64_tr_b16 {vr(64+4*j,2)}, v22 offset:{1024*j}"); A(f"ds_read_b64_tr_b16 {vr(66+4*j,2)}, v22 offset:{1024*j+128}")
    for j in range(16):
        A(f"s_waitcnt lgkmcnt({min(15, 2*(15-j))})")
        A(f"v_mfma_f32_16x16x32_bf16 v[12:15], {vr(128+4*j,4)}, {vr(64+4*j,4)}, {'0' if j == 0 else 'v[12:15]'}")
    A("s_lshl_b32 s40, s36, 5"); A("s_add_u32 s40, s40, s38"); A("s_lshl_b32 s40, s40, 6"); A(f"s_add_u32 s40, s40, {QBUF}")
    A("v_lshl_add_u32 v16, v0, 2, s40")
    A("s_lshl_b32 s40, s36, 11"); A(f"s_add_u32 s40, s40, {QBUF}")
    A("v_lshl_add_u32 v17, v0, 4, s40")
    A(f"v_lshlrev_b32 v18, 3, v0"); A(f"v_add_u32 v18, {QL}, v18")
    A("s_waitcnt vmcnt(0)")
    A(f"v_add_u32 v3, {TAGC:#x}, v3")
    A("v_mov_b32_dpp v13, v12 quad_perm:[1,0,3,2] row_mask:0xf bank_mask:0xf")
    A("v_readfirstlane_b32 s50, v3")
    A("v_cvt_pk_bf16_f32 v14, v12, v13"); A("v_mov_b32 v15, v3")
    A("s_mov_b64 exec, 0x5555")
    A("global_store_dwordx2 v16, v[14:15], s[26:27] sc1")
    A("s_mov_b64 exec, -1")
    TS(3)
    A(f"s_mov_b32 s51, {SPIN_MAX}")
    LB("L_qpoll")
    A("global_load_dwordx4 v[24:27], v17, s[26:27] sc1"); A("global_load_dwordx4 v[28:31], v17, s[26:27] offset:1024 sc1")
    A("s_sub_u32 s51, s51, 1"); A("s_cbranch_scc1 L_qgot")
    A("s_waitcnt vmcnt(0)")
    A("v_xor_b32 v25, v25, v3"); A("v_xor_b32 v27, v27, v3"); A("v_xor_b32 v29, v29, v3"); A("v_xor_b32 v31, v31, v3")
    A("v_or3_b32 v25, v25, v27, v29"); A("v_or_b32 v25, v25, v31")
    A("v_cmp_ne_u32 vcc, 0, v25"); A("s_cbranch_vccnz L_qpoll")
    LB("L_qgot")
    A("s_waitcnt vmcnt(0)")
    A("ds_write2_b32 v18, v24, v26 offset0:0 offset1:1"); A("ds_write2_b32 v18, v28, v30 offset0:128 offset1:129")
    A(f"v_mov_b32 v18, {CNT}"); A("v_mov_b32 v24, 0"); A("v_mov_b32 v25, 0"); A("ds_write_b64 v18, v[24:25]")
    A("s_waitcnt lgkmcnt(0)")
    A("s_setprio 0")
    TS(4)
    LB("L_bar1")
    A("s_barrier")
    A("s_mov_b32 s44, 0x05040100"); A("s_mov_b32 s45, 0x07060302")
    A(f"s_mov_b32 s46, {0 if dry else 1}")
    A("s_cmp_eq_u32 s47, 1"); A("s_cbranch_scc1 L_ffn")
    A("s_cmp_eq_u32 s47, 0"); A("s_cbranch_scc0 L_hdone")

    C("wo role: merge 32 splits of one kv group, multiply by a 512x64 block of wo")
    A("s_lshl_b32 s40, s36, 2"); A("s_add_u32 s40, s40, s39")
    A("s_lshl_b32 s41, s40, 17"); A("s_lshl_b32 s42, s48, 7"); A("s_add_u32 s41, s41, s42"); A("s_add_u32 s41, s41, 4096")
    A("s_add_u32 s52, s12, s41"); A("s_addc_u32 s53, s13, 0")
    A("v_lshrrev_b32 v22, 3, v21"); A("v_lshlrev_b32 v4, 16, v22"); A("v_lshl_add_u32 v4, v20, 13, v4")
    A("v_and_b32 v23, 7, v21"); A("v_lshl_add_u32 v4, v23, 4, v4")
    for s in range(2):
        for i in range(8): A(f"global_load_dwordx4 {vr(160+4*i,4)}, v4, s[52:53] offset:{1024*i-4096} {w_flags}")
        A("v_add_u32 v4, 0x8000, v4")
        A("s_waitcnt vmcnt(0)")
        transpose8(96 + 32 * s, 160)
    TS(5)
    A("s_lshl_b32 s41, s40, 14"); A(f"s_add_u32 s41, s41, {PART + 4096}")
    A("v_lshl_add_u32 v4, v0, 4, s41"); A("v_add_u32 v5, 0x2000, v4")
    A("s_lshl_b32 s41, s40, 8"); A(f"s_add_u32 s41, s41, {ML}")
    A("v_and_b32 v8, 31, v0"); A("v_lshl_add_u32 v6, v8, 3, s41")
    A("s_lshl_b32 s41, s39, 7"); A(f"s_add_u32 s41, s41, {WB}")
    A("v_and_b32 v9, 1, v0"); A("v_lshlrev_b32 v9, 6, v9"); A("v_lshrrev_b32 v10, 1, v8"); A("v_lshl_add_u32 v9, v10, 2, v9"); A("v_add_u32 v9, s41, v9")
    A("v_lshrrev_b32 v10, 5, v0"); A("v_lshl_add_u32 v10, v10, 6, s41")
    A("s_lshl_b32 s41, s39, 8"); A(f"s_add_u32 s41, s41, {OB}")
    A("v_lshl_add_u32 v11, v8, 3, s41")
    A("v_lshlrev_b32 v12, 7, v22"); A("v_lshl_add_u32 v12, v20, 4, v12"); A("v_add_u32 v12, s41, v12")
    A("s_lshl_b32 s41, s39, 9"); A(f"s_add_u32 s41, s41, {RED}")
    A("v_lshlrev_b32 v13, 8, v22"); A("v_lshl_add_u32 v13, v23, 5, v13"); A("v_add_u32 v13, s41, v13")
    A(f"v_lshlrev_b32 v14, 4, v21"); A(f"v_add_u32 v15, {RED}, v14")
    A("s_lshl_b32 s41, s36, 11"); A("s_lshl_b32 s42, s48, 8"); A("s_add_u32 s54, s41, s42")
    if not dry: gate_wait("L_wo_gate0")
    LB("L_wo_pass")
    A(f"s_mov_b32 s41, {H2}"); A("s_cmp_eq_u32 s46, 0"); A(f"s_cmov_b32 s41, {DUMMY}"); A("s_add_u32 s41, s41, s54")
    A("v_add_u32 v7, s41, v14")
    A("s_mov_b32 s55, 15"); A(f"s_mov_b32 s51, {SPIN_MAX}")
    LB("L_wo_poll")
    A("global_load_dwordx2 v[80:81], v6, s[26:27] sc1")
    for g in range(4):
        A(f"s_bitcmp1_b32 s55, {g}"); A(f"s_cbranch_scc0 L_wo_sk{g}")
        for i in range(4 * g, 4 * g + 4):
            A(f"global_load_dwordx4 {vr(16+4*i,4)}, v{4 + i // 8}, s[26:27] offset:{(i % 8) * 1024 - 4096} sc1")
        LB(f"L_wo_sk{g}")
    A("s_waitcnt vmcnt(0)")
    for g in range(4):
        A(f"s_bitcmp1_b32 s55, {g}"); A(f"s_cbranch_scc0 L_wo_ck{g}")
        any_poison(range(16 + 16 * g, 32 + 16 * g), 82)
        A(f"s_cbranch_vccnz L_wo_ck{g}"); A(f"s_bitset0_b32 s55, {g}")
        LB(f"L_wo_ck{g}")
    any_poison([80, 81], 82)
    A("s_cmp_eq_u32 s46, 0"); A("s_cbranch_scc1 L_wo_got")
    A("s_sub_u32 s51, s51, 1"); A("s_cbranch_scc1 L_wo_got")
    A("s_cbranch_vccnz L_wo_poll")
    A("s_cmp_lg_u32 s55, 0"); A("s_cbranch_scc1 L_wo_poll")
    LB("L_wo_got")
    TS(6)
    A("v_mov_b32 v82, v80")
    dpp_red("min_f32", [82]); swap_red("min_f32", [82], [83], 16)
    A("v_sub_f32 v82, v82, v80"); A("v_exp_f32 v82, v82"); A("s_nop 0")
    A("ds_write_b32 v9, v82")
    for k in range(4): A(f"ds_read_b128 {vr(160+4*k,4)}, v10 offset:{16*k}")
    A("v_mul_f32 v83, v82, v81")
    dpp_red("add_f32", [83]); swap_red("add_f32", [83], [84], 16)
    A("v_rcp_f32 v83, v83")
    A("s_waitcnt lgkmcnt(0)")
    for i in range(16):
        acc = 84 + 4 * (i & 1); sel = "op_sel_hi:[1,0,1]" if i % 2 == 0 else "op_sel:[0,1,0] op_sel_hi:[1,1,1]"
        selm = "op_sel_hi:[1,0]" if i % 2 == 0 else "op_sel:[0,1] op_sel_hi:[1,1]"
        wp = vr(160 + (i & ~1), 2)
        for h in range(2):
            if i < 2: A(f"v_pk_mul_f32 {vr(acc+2*h,2)}, {vr(16+4*i+2*h,2)}, {wp} {selm}")
            else: A(f"v_pk_fma_f32 {vr(acc+2*h,2)}, {vr(16+4*i+2*h,2)}, {wp}, {vr(acc+2*h,2)} {sel}")
    A("v_pk_add_f32 v[84:85], v[84:85], v[88:89]"); A("v_pk_add_f32 v[86:87], v[86:87], v[90:91]")
    swap_red("add_f32", [84, 85, 86, 87], [88, 89, 90, 91], 32)
    for k in range(4): A(f"v_mul_f32 v{84+k}, v{84+k}, v83")
    A("v_cvt_pk_bf16_f32 v84, v84, v85"); A("v_cvt_pk_bf16_f32 v85, v86, v87")
    A("ds_write_b64 v11, v[84:85]")
    A("ds_read_b128 v[88:91], v12"); A("ds_read_b128 v[92:95], v12 offset:64")
    A("s_waitcnt lgkmcnt(1)")
    for e in range(8): A(f"v_mfma_f32_16x16x32_bf16 {vr(16+4*e,4)}, v[88:91], {vr(96+4*e,4)}, 0")
    A("s_waitcnt lgkmcnt(0)")
    for e in range(8): A(f"v_mfma_f32_16x16x32_bf16 {vr(16+4*e,4)}, v[92:95], {vr(128+4*e,4)}, {vr(16+4*e,4)}")
    A("s_mov_b32 exec_lo, 0xff"); A("s_mov_b32 exec_hi, 0xff00")
    A("s_nop 5")
    for e in range(0, 8, 2): A(f"ds_write2_b32 v13, v{16+4*e}, v{20+4*e} offset0:{e} offset1:{e+1}")
    A("s_mov_b64 exec, -1")
    barrier_real("L_wo_nb")
    A("s_cmp_lg_u32 s39, 0"); A("s_cbranch_scc1 L_wo_next")
    for p in range(8): A(f"ds_read_b128 {vr(16+4*p,4)}, v15 offset:{256*p}")
    for st, wcnt in ((0, 6), (8, 4), (16, 2), (24, 0)):
        A(f"s_waitcnt lgkmcnt({wcnt})")
        for h in range(2): A(f"v_pk_add_f32 {vr(16+st+2*h,2)}, {vr(16+st+2*h,2)}, {vr(20+st+2*h,2)}")
    for h in range(2): A(f"v_pk_add_f32 {vr(16+2*h,2)}, {vr(16+2*h,2)}, {vr(24+2*h,2)}")
    for h in range(2): A(f"v_pk_add_f32 {vr(32+2*h,2)}, {vr(32+2*h,2)}, {vr(40+2*h,2)}")
    for h in range(2): A(f"v_pk_add_f32 {vr(16+2*h,2)}, {vr(16+2*h,2)}, {vr(32+2*h,2)}")
    A("s_mov_b64 exec, 0xffff")
    A("global_store_dwordx4 v7, v[16:19], s[26:27] sc1")
    A("s_mov_b64 exec, -1")
    LB("L_wo_next")
    TS(7)
    A("s_cmp_eq_u32 s46, 1"); A("s_cbranch_scc1 L_hdone")
    A("s_mov_b32 s46, 1")
    gate_wait("L_wo_gate")
    TS(8)
    A("s_branch L_wo_pass")

    LB("L_ffn")
    C("ffn role: h, LN(h), 32 gate/up columns, 32 rows of w2; first 16 also finish 32 output columns")
    A("v_lshrrev_b32 v22, 3, v21"); A("v_and_b32 v23, 7, v21")
    A("v_lshlrev_b32 v4, 6, v22"); A("v_lshl_add_u32 v4, v20, 3, v4"); A("s_lshl_b32 s40, s39, 7"); A("v_add_u32 v4, s40, v4")
    A("s_movk_i32 s40, 3584"); A("v_mul_u32_u24 v4, s40, v4")
    A("v_and_b32 v5, 3, v21"); A("v_lshl_add_u32 v4, v5, 4, v4"); A("s_lshl_b32 s40, s49, 6"); A("v_add_u32 v4, s40, v4")
    A("v_bfe_u32 v5, v21, 2, 1"); A("v_cmp_eq_u32 vcc, 1, v5")
    A("v_mov_b32 v6, s16"); A("v_mov_b32 v7, s18"); A("v_cndmask_b32 v6, v6, v7, vcc")
    A("v_mov_b32 v7, s17"); A("v_mov_b32 v8, s19"); A("v_cndmask_b32 v7, v7, v8, vcc")
    A("v_mov_b32 v5, 0"); A("v_lshl_add_u64 v[6:7], v[4:5], 0, v[6:7]")
    A("s_mov_b64 s[40:41], 7168"); A(f"s_mov_b64 s[42:43], {7168 + 24 * 3584}")
    for s in range(2):
        for i in range(8):
            A(f"global_load_dwordx4 {vr(160+4*i,4)}, v[6:7], off{' offset:3584' if i & 1 else ''} {w_flags}")
            if i & 1 and not (s == 1 and i == 7): A(f"v_lshl_add_u64 v[6:7], v[6:7], 0, {'s[42:43]' if i == 7 else 's[40:41]'}")
        A("s_waitcnt vmcnt(0)")
        transpose8(64 + 32 * s, 160)
    A("s_lshl_b32 s40, s49, 15"); A("s_lshl_b32 s41, s39, 8"); A("s_add_u32 s40, s40, s41"); A("s_add_u32 s40, s40, 4096")
    A("s_add_u32 s52, s20, s40"); A("s_addc_u32 s53, s21, 0")
    A("v_lshlrev_b32 v4, 13, v20"); A("v_lshl_add_u32 v4, v21, 4, v4")
    for i in range(8): A(f"global_load_dwordx4 {vr(160+4*i,4)}, v4, s[52:53] offset:{1024*i-4096} {w_flags}")
    A("v_and_b32 v8, 31, v0")
    A("s_lshl_b32 s40, s39, 8"); A("v_lshl_add_u32 v5, v8, 3, s40")
    A("global_load_dwordx2 v[48:49], v5, s[4:5]")
    A("s_waitcnt vmcnt(1)")
    transpose8(128, 160)
    A("s_waitcnt vmcnt(0)")
    unpack(50, 49)
    A("v_and_b32 v49, 0xffff0000, v48"); A("v_lshlrev_b32 v48, 16, v48")
    TS(5)
    C("every workgroup's hand-off slots were reset before it published its q values")
    A(f"v_lshlrev_b32 v4, 8, v0"); A(f"v_add_u32 v4, {QBUF + 4}, v4")
    A(f"s_mov_b32 s51, {SPIN_MAX}")
    LB("L_alive")
    for k in range(4): A(f"global_load_dword v{24+k}, v4, s[26:27] offset:{64*k} sc1")
    A("s_sub_u32 s51, s51, 1"); A("s_cbranch_scc1 L_alive_ok")
    A("s_waitcnt vmcnt(0)")
    for k in range(4): A(f"v_xor_b32 v{24+k}, v{24+k}, v3")
    A("v_or3_b32 v24, v24, v25, v26"); A("v_or_b32 v24, v24, v27")
    A("v_cmp_ne_u32 vcc, 0, v24"); A("s_cbranch_vccnz L_alive")
    LB("L_alive_ok")
    A("s_waitcnt vmcnt(0)")
    A("v_lshrrev_b32 v9, 5, v0"); A("v_lshlrev_b32 v4, 11, v9"); A("v_lshl_add_u32 v4, v8, 4, v4")
    A("s_lshl_b32 s40, s39, 9"); A(f"s_add_u32 s40, s40, {H2 + 4096}"); A("v_add_u32 v4, s40, v4"); A("v_add_u32 v6, 0x2000, v4")
    A(f"v_add_u32 v5, {HB}, v5")
    A(f"v_lshlrev_b32 v7, 4, v0"); A(f"v_add_u32 v9, {HB}, v7")
    A("s_lshl_b32 s40, s39, 10"); A(f"s_add_u32 s40, s40, {HN}"); A("v_add_u32 v10, s40, v7")
    A("s_lshl_b32 s41, s39, 8"); A("s_add_u32 s40, s40, s41")
    A("v_lshlrev_b32 v11, 7, v22"); A("v_lshl_add_u32 v11, v20, 4, v11"); A("v_add_u32 v11, s40, v11")
    A("s_lshl_b32 s41, s39, 9"); A(f"s_add_u32 s41, s41, {RED}")
    A("v_lshlrev_b32 v13, 8, v22"); A("v_lshl_add_u32 v13, v23, 5, v13"); A("v_add_u32 v13, s41, v13")
    A(f"v_lshlrev_b32 v14, 2, v0"); A(f"v_add_u32 v14, {RED}, v14")
    A("s_lshl_b32 s41, s39, 6"); A(f"s_add_u32 s41, s41, {HM}")
    A("v_lshl_add_u32 v15, v8, 1, s41"); A("v_lshl_add_u32 v12, v20, 4, s41")
    A("v_lshlrev_b32 v52, 5, v21"); A("v_lshl_add_u32 v52, v20, 4, v52")
    A("s_lshl_b32 s54, s49, 11"); A("s_lshl_b32 s41, s39, 9"); A("s_add_u32 s54, s54, s41")
    A("v_cmp_eq_u32 s[56:57], 1, v20")
    A("v_lshrrev_b32 v53, 3, v0"); A("v_lshlrev_b32 v53, 11, v53"); A("v_and_b32 v54, 7, v0"); A("v_lshl_add_u32 v53, v54, 4, v53")
    A("s_lshl_b32 s41, s49, 7"); A(f"s_add_u32 s41, s41, {H3}"); A("v_add_u32 v53, s41, v53")
    A("s_lshl_b32 s41, s49, 6"); A("v_lshl_add_u32 v54, v54, 3, s41"); A(f"v_add_u32 v55, {HB}, v54")
    if not dry: gate_wait("L_f_gate0")
    LB("L_f_pass")
    A(f"s_mov_b32 s41, {H3}"); A("s_cmp_eq_u32 s46, 0"); A(f"s_cmov_b32 s41, {DUMMY}"); A("s_add_u32 s41, s41, s54")
    A("v_add_u32 v56, s41, v52")
    A(f"s_mov_b32 s51, {SPIN_MAX}")
    LB("L_f_poll")
    for i in range(4): A(f"global_load_dwordx4 {vr(24+4*i,4)}, v{4 if i < 2 else 6}, s[26:27] offset:{(i % 2) * 4096 - 4096} sc1")
    A("s_waitcnt vmcnt(0)")
    any_poison(range(24, 40), 40)
    A("s_cmp_eq_u32 s46, 0"); A("s_cbranch_scc1 L_f_got")
    A("s_sub_u32 s51, s51, 1"); A("s_cbranch_scc1 L_f_got")
    A("s_cbranch_vccnz L_f_poll")
    LB("L_f_got")
    TS(6)
    for h in range(2): A(f"v_pk_add_f32 {vr(24+2*h,2)}, {vr(24+2*h,2)}, {vr(28+2*h,2)}")
    for h in range(2): A(f"v_pk_add_f32 {vr(32+2*h,2)}, {vr(32+2*h,2)}, {vr(36+2*h,2)}")
    for h in range(2): A(f"v_pk_add_f32 {vr(24+2*h,2)}, {vr(24+2*h,2)}, {vr(32+2*h,2)}")
    swap_red("add_f32", [24, 25, 26, 27], [28, 29, 30, 31], 32)
    A("v_cvt_pk_bf16_f32 v28, v24, v25"); A("v_cvt_pk_bf16_f32 v29, v26, v27")
    unpack(24, 28); unpack(26, 29)
    A("v_pk_add_f32 v[24:25], v[24:25], v[48:49]"); A("v_pk_add_f32 v[26:27], v[26:27], v[50:51]")
    A("v_cvt_pk_bf16_f32 v28, v24, v25"); A("v_cvt_pk_bf16_f32 v29, v26, v27")
    A("ds_write_b64 v5, v[28:29]")
    barrier_real("L_f_nb1")
    A("ds_read_b128 v[24:27], v9")
    A("s_waitcnt lgkmcnt(0)")
    layernorm(24, 28, 36)
    A("ds_write_b128 v10, v[24:27]")
    A("ds_read_b128 v[40:43], v11"); A("ds_read_b128 v[44:47], v11 offset:64")
    A("s_waitcnt lgkmcnt(1)")
    for e in range(8): A(f"v_mfma_f32_16x16x32_bf16 {vr(160+4*e,4)}, v[40:43], {vr(64+4*e,4)}, 0")
    A("s_waitcnt lgkmcnt(0)")
    for e in range(8): A(f"v_mfma_f32_16x16x32_bf16 {vr(160+4*e,4)}, v[44:47], {vr(96+4*e,4)}, {vr(160+4*e,4)}")
    A("s_mov_b32 exec_lo, 0xff"); A("s_mov_b32 exec_hi, 0xff00")
    A("s_nop 5")
    for e in range(0, 8, 2): A(f"ds_write2_b32 v13, v{160+4*e}, v{164+4*e} offset0:{e} offset1:{e+1}")
    A("s_mov_b64 exec, -1")
    barrier_real("L_f_nb2")
    TS(7)
    for p in range(8): A(f"ds_read_b32 v{24+p}, v14 offset:{256*p}")
    A("s_waitcnt lgkmcnt(4)")
    A("v_add_f32 v24, v24, v25"); A("v_add_f32 v26, v26, v27")
    A("s_waitcnt lgkmcnt(0)")
    A("v_add_f32 v28, v28, v29"); A("v_add_f32 v30, v30, v31")
    A("v_add_f32 v24, v24, v26"); A("v_add_f32 v28, v28, v30"); A("v_add_f32 v24, v24, v28")
    bf16r(24)
    A("v_mov_b32 v25, v24"); A("s_nop 1"); A("v_permlane32_swap_b32 v24, v25")
    A(f"v_mul_f32 v26, {NL2E:#x}, v24"); A("v_exp_f32 v26, v26"); A("s_nop 0")
    A("v_add_f32 v26, 1.0, v26"); A("v_rcp_f32 v26, v26"); A("s_nop 0")
    A("v_mul_f32 v26, v24, v26")
    bf16r(26)
    A("v_mul_f32 v26, v26, v25"); A("v_cvt_pk_bf16_f32 v26, v26, v26")
    A("ds_write_b16 v15, v26")
    A("ds_read_b128 v[40:43], v12")
    A("s_waitcnt lgkmcnt(0)")
    for e in range(8): A(f"v_mfma_f32_16x16x32_bf16 {vr(160+4*e,4)}, v[40:43], {vr(128+4*e,4)}, 0")
    A("s_nop 4")
    for e in range(4): A(f"v_cndmask_b32 v{24+e}, v{160+4*e}, v{176+4*e}, s[56:57]")
    A("s_mov_b32 exec_hi, 0")
    A("global_store_dwordx4 v56, v[24:27], s[26:27] sc1")
    A("s_mov_b64 exec, -1")
    TS(8)
    A("s_cmp_lg_u32 s39, 0"); A("s_cbranch_scc1 L_f_next")
    A("s_cmp_ge_u32 s49, 16"); A("s_cbranch_scc1 L_f_next")
    C("final stage: 32 output columns")
    A(f"s_add_u32 s58, s26, {DUMMY}"); A("s_addc_u32 s59, s27, 0")
    A("s_cmp_eq_u32 s46, 0"); A("s_cselect_b32 s58, s58, s22"); A("s_cselect_b32 s59, s59, s23")
    A("ds_read_b64 v[44:45], v55")
    A(f"s_mov_b32 s51, {SPIN_MAX}")
    LB("L_o_poll")
    A("v_mov_b32 v57, v53")
    for i in range(7):
        A(f"global_load_dwordx4 {vr(160+4*i,4)}, v57, s[26:27] sc1")
        if i < 6: A("v_add_u32 v57, 0x4000, v57")
    A("s_waitcnt vmcnt(0)")
    any_poison(range(160, 188), 40)
    A("s_cmp_eq_u32 s46, 0"); A("s_cbranch_scc1 L_o_got")
    A("s_sub_u32 s51, s51, 1"); A("s_cbranch_scc1 L_o_got")
    A("s_cbranch_vccnz L_o_poll")
    LB("L_o_got")
    TS(9)
    for a, b in ((160, 164), (168, 172), (176, 180), (160, 184), (168, 176), (160, 168)):
        for h in range(2): A(f"v_pk_add_f32 {vr(a+2*h,2)}, {vr(a+2*h,2)}, {vr(b+2*h,2)}")
    A("s_nop 0")
    for k in range(4): A(f"v_add_f32_dpp v{160+k}, v{160+k}, v{160+k} row_ror:8 row_mask:0xf bank_mask:0xf")
    swap_red("add_f32", [160, 161, 162, 163], [164, 165, 166, 167], 16)
    swap_red("add_f32", [160, 161, 162, 163], [164, 165, 166, 167], 32)
    A("v_cvt_pk_bf16_f32 v164, v160, v161"); A("v_cvt_pk_bf16_f32 v165, v162, v163")
    unpack(160, 164); unpack(162, 165)
    A("s_waitcnt lgkmcnt(0)")
    unpack(164, 44); unpack(166, 45)
    A("v_pk_add_f32 v[160:161], v[160:161], v[164:165]"); A("v_pk_add_f32 v[162:163], v[162:163], v[166:167]")
    A("v_cvt_pk_bf16_f32 v160, v160, v161"); A("v_cvt_pk_bf16_f32 v161, v162, v163")
    A("s_mov_b64 exec, 0xff")
    A("global_store_dwordx2 v54, v[160:161], s[58:59]")
    A("s_mov_b64 exec, -1")
    A("s_cmp_eq_u32 s46, 0"); A("s_cbranch_scc1 L_f_next")
    A("s_cmp_lg_u32 s49, 0"); A("s_cbranch_scc1 L_f_next")
    A("v_mov_b32 v57, 0"); A("s_mov_b64 exec, 1")
    A("global_store_dword v57, v3, s[26:27] sc1")
    A("s_mov_b64 exec, -1")
    LB("L_f_next")
    TS(10)
    A("s_cmp_eq_u32 s46, 1"); A("s_cbranch_scc1 L_hdone")
    A("s_mov_b32 s46, 1")
    gate_wait("L_f_gate")
    A("s_branch L_f_pass")
    LB("L_hdone")
    TS_flush()
    LB("L_end")
    A("s_endpgm")
    L.append('.section .rodata,"a"'); L.append(".p2align 6"); L.append(f".amdhsa_kernel {NAME}_kernel")
    for s in ("next_free_vgpr 256", "next_free_sgpr 96", "accum_offset 256", "group_segment_fixed_size 0", "kernarg_size 96",
              "user_sgpr_count 2", "user_sgpr_kernarg_segment_ptr 1", "system_sgpr_workgroup_id_x 1", "float_denorm_mode_32 3"):
        L.append("  .amdhsa_" + s)
    L.append(".end_amdhsa_kernel")
    return "\n".join(L) + "\n"

if __name__ == "__main__":
    kw = eval("dict(" + (sys.argv[2] if len(sys.argv) > 2 else "") + ")")
    open(sys.argv[1], "w").write(gen(**kw))
```

```python
import sys
NAME = "sequential_preLN__gqa_block_cached__glu_gated_swiglu__decode"

WQL = 0x20000; SP = 0x20000
QL = 0x24400; SML = 0x24800; CNT = 0x24880; GATE = 0x24884; QRDY = 0x24888; PUBD = 0x2488C
WB = 0x25000; OB = 0x25200; RED = 0x25800; HB = 0x26000; HM = 0x26400; HN = 0x26800
LDS_BYTES = 163840
EPOCH = 0; ALIVE = 0x400; POOL = 0xC000; QBUF = 0xD0000; ML = 0x6000; H2 = 0x8000; PART = 0x10000; H3 = 0x90000; DUMMY = 0xB0000; TSB = 0x100000
TAGC = 0x9E3779B9
L2E = 0x3FB8AA3B; NL2E = 0xBFB8AA3B; SCALE = 0x3DB504F3
SPIN_MAX = 1 << 16

def gen(PACE=7, PACE0=7, S=25, NG=8, touch=False, qsleep=8, early=False, hold=True, gsleep=4, wend=False, rr=True, noswz=False, nocomp=False, noh=False, NV=4, VSTART=2, VSTEP=2, QTH=28, MLTH=26, noroles=False, prog=False, ts=False, dry=True, wq_flags="nt", w_flags="nt", kv_flags="nt"):
    PR = 128 - 4 * S; D = 8 * PR; PRM = -(-(1 << 16) // PR)
    assert all((t * PRM) >> 16 == t // PR for t in range(D))
    L = []
    def A(s): L.append("  " + s)
    def LB(s): L.append(s + ":")
    def C(s): L.append("  ; " + s)
    def vr(a, n): return f"v[{a}:{a+n-1}]"
    def TS(k):
        if ts:
            A("s_memrealtime s[60:61]"); A("s_waitcnt lgkmcnt(0)"); A(f"s_mov_b32 s{64+k}, s60")
    def TS_flush():
        if ts:
            A("s_mov_b64 exec, -1")
            A("v_mov_b32 v250, 0")
            for k in range(16): A(f"v_writelane_b32 v250, s{64+k}, {k}")
            A("v_mbcnt_lo_u32_b32 v251, -1, 0"); A("v_mbcnt_hi_u32_b32 v251, -1, v251")
            A("s_lshl_b32 s62, s2, 3"); A("s_add_u32 s62, s62, s3"); A("s_lshl_b32 s62, s62, 6"); A(f"s_add_u32 s62, s62, {TSB}")
            A("v_lshl_add_u32 v251, v251, 2, s62")
            A("s_mov_b64 exec, 0xffff")
            A("global_store_dword v251, v250, s[26:27]")
    def dpp_red(op, xs):
        for rot in (8, 4, 2, 1):
            if len(xs) < 3: A(f"s_nop {2 - len(xs)}" if len(xs) < 2 else "s_nop 0")
            for x in xs: A(f"v_{op}_dpp v{x}, v{x}, v{x} row_ror:{rot} row_mask:0xf bank_mask:0xf")
    def swap_red(op, xs, ts_, which):
        for x, t in zip(xs, ts_): A(f"v_mov_b32 v{t}, v{x}")
        A("s_nop 1")
        for x, t in zip(xs, ts_): A(f"v_permlane{which}_swap_b32 v{x}, v{t}")
        for x, t in zip(xs, ts_): A(f"v_{op} v{x}, v{x}, v{t}")
    def unpack(dst, src):
        A(f"v_lshlrev_b32 v{dst}, 16, v{src}"); A(f"v_and_b32 v{dst+1}, 0xffff0000, v{src}")
    def bf16r(x):
        A(f"v_cvt_pk_bf16_f32 v{x}, v{x}, v{x}"); A(f"v_and_b32 v{x}, 0xffff0000, v{x}")
    def layernorm(src, f, t):
        for k in range(4): unpack(f + 2 * k, src + k)
        A(f"v_add_f32 v{t}, v{f}, v{f+1}"); A(f"v_add_f32 v{t+1}, v{f+2}, v{f+3}")
        A(f"v_add_f32 v{t+2}, v{f+4}, v{f+5}"); A(f"v_add_f32 v{t+3}, v{f+6}, v{f+7}")
        A(f"v_add_f32 v{t}, v{t}, v{t+1}"); A(f"v_add_f32 v{t+2}, v{t+2}, v{t+3}"); A(f"v_add_f32 v{t}, v{t}, v{t+2}")
        dpp_red("add_f32", [t]); swap_red("add_f32", [t], [t+1], 16); swap_red("add_f32", [t], [t+1], 32)
        A(f"v_mul_f32 v{t}, 0x3b000000, v{t}")
        A(f"v_sub_f32 v{t+2}, v{f}, v{t}"); A(f"v_mul_f32 v{t+1}, v{t+2}, v{t+2}")
        for k in range(1, 8):
            A(f"v_sub_f32 v{t+2}, v{f+k}, v{t}"); A(f"v_fmac_f32 v{t+1}, v{t+2}, v{t+2}")
        bf16r(t)
        dpp_red("add_f32", [t+1]); swap_red("add_f32", [t+1], [t+2], 16); swap_red("add_f32", [t+1], [t+2], 32)
        A(f"v_mul_f32 v{t+1}, 0x3b000000, v{t+1}")
        bf16r(t+1)
        A(f"v_add_f32 v{t+1}, 0x3727c5ac, v{t+1}")
        bf16r(t+1)
        A(f"v_sqrt_f32 v{t+1}, v{t+1}")
        for k in range(8): A(f"v_sub_f32 v{f+k}, v{f+k}, v{t}")
        bf16r(t+1)
        A(f"v_rcp_f32 v{t+1}, v{t+1}")
        for k in range(4): A(f"v_cvt_pk_bf16_f32 v{src+k}, v{f+2*k}, v{f+2*k+1}")
        for k in range(4): unpack(f + 2 * k, src + k)
        for k in range(8): A(f"v_mul_f32 v{f+k}, v{f+k}, v{t+1}")
        for k in range(4): A(f"v_cvt_pk_bf16_f32 v{src+k}, v{f+2*k}, v{f+2*k+1}")
    def transpose8(dst, src):
        for e in range(8):
            for j in range(4):
                a = src + 4 * (2 * j) + (e >> 1); b = src + 4 * (2 * j + 1) + (e >> 1)
                A(f"v_perm_b32 v{dst+4*e+j}, v{b}, v{a}, s{45 if e & 1 else 44}")
    def any_poison(regs, t):
        regs = list(regs)
        A(f"v_max3_u32 v{t}, v{regs[0]}, v{regs[1]}, v{regs[2]}" if len(regs) >= 3 else f"v_max_u32 v{t}, v{regs[0]}, v{regs[1]}")
        rest = regs[3:] if len(regs) >= 3 else []
        while len(rest) >= 2:
            A(f"v_max3_u32 v{t}, v{t}, v{rest[0]}, v{rest[1]}"); rest = rest[2:]
        if rest: A(f"v_max_u32 v{t}, v{t}, v{rest[0]}")
        A(f"v_cmp_eq_u32 vcc, -1, v{t}")
    def barrier_real(lbl):
        A("s_waitcnt lgkmcnt(0)")
        A("s_cmp_eq_u32 s46, 0"); A(f"s_cbranch_scc1 {lbl}"); A("s_barrier"); LB(lbl)
    def alive(tag):
        if wend: A("s_branch L_hdone")
        C("every workgroup reset its hand-off slots before it wrote its word here")
        A(f"v_lshlrev_b32 v4, 4, v0"); A(f"v_add_u32 v4, {ALIVE}, v4")
        A(f"s_mov_b32 s51, {SPIN_MAX}")
        LB(f"L_alive_{tag}")
        A("global_load_dwordx4 v[24:27], v4, s[26:27] sc1")
        A("s_sub_u32 s51, s51, 1"); A(f"s_cbranch_scc1 L_alive_ok_{tag}")
        A("s_waitcnt vmcnt(0)")
        for k in range(4): A(f"v_xor_b32 v{24+k}, v{24+k}, v3")
        A("v_or3_b32 v24, v24, v25, v26"); A("v_or_b32 v24, v24, v27")
        A("v_cmp_ne_u32 vcc, 0, v24"); A(f"s_cbranch_vccnz L_alive_{tag}")
        LB(f"L_alive_ok_{tag}")
        A("s_waitcnt vmcnt(0)")
    def gate_wait(lbl):
        A(f"v_mov_b32 v1, {GATE}")
        LB(lbl)
        A(f"s_sleep {gsleep}"); A("ds_read_b32 v2, v1"); A("s_waitcnt lgkmcnt(0)"); A("v_readfirstlane_b32 s40, v2")
        A("s_cmp_eq_u32 s40, 0"); A(f"s_cbranch_scc1 {lbl}")

    L.append(f"; @launch grid=(256,1,1) block=(512,1,1) lds={LDS_BYTES}")
    L.append('.amdgcn_target "amdgcn-amd-amdhsa--gfx950"')
    L.append(".text"); L.append(f".globl {NAME}_kernel"); L.append(".p2align 8"); L.append(f".type {NAME}_kernel,@function")
    LB(f"{NAME}_kernel")
    A("s_cmp_ge_u32 s2, 256"); A("s_cbranch_scc1 L_end")
    A("s_load_dwordx16 s[4:19], s[0:1], 0")
    A("s_load_dwordx8 s[20:27], s[0:1], 64")
    if ts:
        for k in range(16): A(f"s_mov_b32 s{64+k}, 0")
        A("s_memrealtime s[60:61]")
    A("v_lshrrev_b32 v1, 6, v0")
    A("v_and_b32 v0, 63, v0")
    A("v_readfirstlane_b32 s3, v1")
    A("s_lshr_b32 s36, s2, 5")
    A("s_and_b32 s37, s2, 31")
    A("s_and_b32 s38, s2, 7"); A("s_lshl_b32 s38, s38, 2"); A("s_lshr_b32 s39, s37, 3"); A("s_add_u32 s38, s38, s39")
    A("s_cmp_ge_u32 s3, 4"); A("s_cbranch_scc1 L_helper")

    C("streaming waves: K/V tiles of 16 keys through a 4-slot LDS ring per wave")
    A("v_lshrrev_b32 v20, 4, v0")
    A("v_and_b32 v21, 15, v0")
    A("v_lshlrev_b32 v22, 1, v20")
    A("v_xor_b32 v22, v22, v21")
    A("v_lshlrev_b32 v22, 4, v22")
    A("v_lshl_add_u32 v2, v20, 8, v22")
    A("v_xor_b32 v3, 0x80, v2"); A("v_xor_b32 v4, 16, v2"); A("v_xor_b32 v5, 0x90, v2")
    if noswz:
        for i in range(4): A(f"v_lshlrev_b32 v{2+i}, 4, v0")
    C("four workgroups share a 2 MiB page of K and V (rows of 4 tiles interleaved); the last rows of all pages form a ticket pool")
    A("s_and_b32 s40, s2, 7"); A("s_lshl_b32 s41, s36, 3"); A("s_add_u32 s40, s40, s41"); A("s_lshl_b32 s40, s40, 21")
    A("s_lshl_b32 s41, s39, 14"); A("s_add_u32 s40, s40, s41")
    A("s_lshl_b32 s41, s3, 12"); A("s_add_u32 s40, s40, s41")
    A("s_lshl_b32 s46, s36, 24"); A("s_add_u32 s46, s46, s41"); A(f"s_add_u32 s46, s46, {4*S*16384}")
    A("s_lshl_b32 s47, s36, 2"); A("s_add_u32 s47, s47, s3"); A("s_lshl_b32 s47, s47, 8"); A(f"s_add_u32 s47, s47, {POOL}")
    A("v_mov_b32 v122, s47"); A("v_mov_b32 v123, 1"); A("v_mov_b32 v124, 0")
    A(f"s_mov_b32 s43, {S - 4}")
    A("s_lshl_b32 s41, s3, 15")
    A("s_mov_b32 s30, 0x8000000"); A("s_mov_b32 s31, 0x20000"); A("s_mov_b32 s34, 0x8000000"); A("s_mov_b32 s35, 0x20000")
    A("s_mov_b32 s42, 0x2000")
    A("v_lshlrev_b32 v23, 1, v21"); A("v_and_b32 v23, 15, v23"); A("v_lshrrev_b32 v24, 3, v21"); A("v_or_b32 v23, v23, v24")
    A("v_and_b32 v24, 1, v20"); A("v_lshlrev_b32 v24, 1, v24"); A("v_lshrrev_b32 v25, 1, v20"); A("v_or_b32 v24, v24, v25")
    A("v_xor_b32 v23, v23, v24"); A("v_lshlrev_b32 v23, 4, v23"); A("v_lshl_add_u32 v23, v21, 8, v23")
    A("v_add_u32 v6, s41, v23")
    for s in range(1, 4): A(f"v_xor_b32 v{6+s}, {s << 6}, v6")
    A("v_lshrrev_b32 v25, 2, v0")
    A("v_lshlrev_b32 v26, 1, v25"); A("v_and_b32 v26, 15, v26"); A("v_lshrrev_b32 v27, 3, v25"); A("v_or_b32 v26, v26, v27")
    A("v_bfe_u32 v27, v0, 1, 1"); A("v_xor_b32 v26, v26, v27"); A("v_lshlrev_b32 v26, 4, v26")
    A("v_lshl_add_u32 v26, v25, 8, v26")
    A("v_and_b32 v27, 1, v0"); A("v_lshl_add_u32 v26, v27, 3, v26")
    A("s_add_u32 s44, s41, 4096")
    A("v_add_u32 v10, s44, v26")
    for t in range(1, 8): A(f"v_xor_b32 v{10+t}, {t << 5}, v10")
    A("v_and_b32 v25, 3, v21"); A("v_lshlrev_b32 v25, 8, v25"); A("v_lshl_add_u32 v25, v24, 4, v25"); A(f"v_add_u32 v108, {QL}, v25")
    A("s_mov_b32 s44, 4")
    A("s_waitcnt lgkmcnt(0)")
    if ts: A("s_mov_b32 s64, s60")
    A("s_mov_b32 s28, s6"); A("s_and_b32 s29, s7, 0xffff"); A("s_mov_b32 s32, s8"); A("s_and_b32 s33, s9, 0xffff")
    A("s_barrier")
    TS(6)
    def issue_tile(pace):
        A("s_mov_b32 m0, s41")
        for i in range(4):
            A(f"s_waitcnt vmcnt({pace})"); A(f"buffer_load_dwordx4 v{2+i}, s[28:31], s40 offen offset:{i*1024} {kv_flags} lds")
        A("s_add_u32 m0, s41, 4096")
        for i in range(4):
            A(f"s_waitcnt vmcnt({pace})"); A(f"buffer_load_dwordx4 v{2+i}, s[32:35], s40 offen offset:{i*1024} {kv_flags} lds")
        A("s_add_u32 s40, s40, 65536")
    LB("L_fill")
    issue_tile(PACE0)
    A("s_xor_b32 s41, s41, s42"); A("s_xor_b32 s42, s42, 0x4000")
    if hold and not noh:
        A("s_cmp_lg_u32 s44, 4"); A("s_cbranch_scc1 L_nohold")
        A(f"v_mov_b32 v116, {PUBD}")
        LB("L_hold")
        A("ds_read_b32 v117, v116"); A("s_waitcnt lgkmcnt(0)"); A("v_readfirstlane_b32 s48, v117")
        A("s_cmp_lg_u32 s48, 0"); A("s_cbranch_scc1 L_nohold"); A("s_sleep 1"); A("s_branch L_hold")
        LB("L_nohold")
    A("s_sub_u32 s44, s44, 1"); A("s_cmp_lg_u32 s44, 0"); A("s_cbranch_scc1 L_fill")
    TS(1)
    A("v_mov_b32 v18, 0xff7fffff"); A("v_mov_b32 v19, 0x7f7fffff"); A("v_mov_b32 v109, 0")
    for k in range(32): A(f"v_mov_b32 v{76+k}, 0")
    A(f"s_mov_b32 s45, {L2E}"); A("s_mov_b32 s44, 4")
    if ts: A("s_mov_b32 s51, 0")
    A(f"v_mov_b32 v116, {QRDY}")
    A("s_mov_b32 s52, 0"); A(f"s_mov_b32 s53, {VSTART}")
    if noh: A("s_branch L_qok")
    C("while q is not there yet, keep streaming: park up to NV more tiles in registers")
    for k in range(NV):
        A("ds_read_b32 v117, v116"); A("s_waitcnt lgkmcnt(0)"); A("v_readfirstlane_b32 s48, v117")
        A("s_cmp_lg_u32 s48, 0"); A("s_cbranch_scc1 L_qok")
        for i in range(8):
            A(f"s_waitcnt vmcnt({PACE0})"); A(f"buffer_load_dwordx4 {vr(128+32*k+4*i,4)}, v{2+(i&3)}, s[{28 if i < 4 else 32}:{31 if i < 4 else 35}], s40 offen offset:{(i&3)*1024} {kv_flags}")
        A("s_add_u32 s40, s40, 65536"); A("s_add_u32 s52, s52, 1"); A("s_sub_u32 s43, s43, 1")
    LB("L_qwait")
    A("ds_read_b32 v117, v116"); A("s_waitcnt lgkmcnt(0)"); A("v_readfirstlane_b32 s48, v117")
    A("s_cmp_lg_u32 s48, 0"); A("s_cbranch_scc1 L_qok"); A("s_sleep 1"); A("s_branch L_qwait")
    LB("L_qok")
    if ts: A("s_add_u32 s51, s51, s52"); A("s_mov_b32 s77, s52")
    TS(2)
    for s in range(4): A(f"ds_read_b128 {vr(24+4*s,4)}, v108 offset:{64*s}")
    LB("L_tile")
    A("s_waitcnt vmcnt(24)")
    A("s_cmp_gt_u32 s44, 3"); A("s_cbranch_scc1 L_go")
    A("s_waitcnt vmcnt(16)"); A("s_cmp_gt_u32 s44, 2"); A("s_cbranch_scc1 L_go")
    A("s_waitcnt vmcnt(8)"); A("s_cmp_gt_u32 s44, 1"); A("s_cbranch_scc1 L_go")
    A("s_waitcnt vmcnt(0)")
    TS(3)
    LB("L_go")
    if nocomp: A("s_branch L_skipc")
    for s in range(4): A(f"ds_read_b128 {vr(40+4*s,4)}, v{6+s}")
    for t in range(8): A(f"ds_read_b64_tr_b16 {vr(56+2*t,2)}, v{10+t}")
    for s in range(4):
        A(f"s_waitcnt lgkmcnt({11-s})")
        A(f"v_mfma_f32_16x16x32_bf16 v[72:75], {vr(40+4*s,4)}, {vr(24+4*s,4)}, {'0' if s == 0 else 'v[72:75]'}")
    for k in range(12): A(f"v_xor_b32 v{6+k}, s42, v{6+k}")
    A("v_cvt_pk_bf16_f32 v110, v72, v73"); A("v_cvt_pk_bf16_f32 v111, v74, v75")
    unpack(112, 110); unpack(114, 111)
    for k in range(4): A(f"v_mul_f32 v{112+k}, {SCALE:#x}, v{112+k}")
    A("v_cvt_pk_bf16_f32 v110, v112, v113"); A("v_cvt_pk_bf16_f32 v111, v114, v115")
    unpack(112, 110); unpack(114, 111)
    A("v_max3_f32 v116, v112, v113, v114"); A("v_max3_f32 v116, v116, v115, v18")
    swap_red("max_f32", [116], [117], 16); swap_red("max_f32", [116], [117], 32)
    A(f"v_mul_f32 v117, {NL2E:#x}, v116"); A("v_floor_f32 v117, v117")
    A("v_cmp_lt_f32 vcc, v117, v19")
    A("v_sub_f32 v118, v117, v19")
    for k in range(4): A(f"v_fma_f32 v{112+k}, v{112+k}, s45, v117")
    A("v_exp_f32 v118, v118")
    for k in range(4): A(f"v_exp_f32 v{112+k}, v{112+k}")
    A("v_mov_b32 v18, v116"); A("v_mov_b32 v19, v117")
    A("s_cbranch_vccz L_nors")
    for k in range(16): A(f"v_pk_mul_f32 {vr(76+2*k,2)}, {vr(76+2*k,2)}, v[118:119] op_sel_hi:[1,0]")
    LB("L_nors")
    A("v_add_f32 v116, v112, v113"); A("v_add_f32 v117, v114, v115")
    A("v_cvt_pk_bf16_f32 v120, v112, v113"); A("v_cvt_pk_bf16_f32 v121, v114, v115")
    A("v_add_f32 v116, v116, v117"); A("v_fma_f32 v109, v109, v118, v116")
    A("s_waitcnt lgkmcnt(0)")
    for t in range(8): A(f"v_mfma_f32_16x16x16_bf16 {vr(76+4*t,4)}, {vr(56+2*t,2)}, v[120:121], {vr(76+4*t,4)}")
    LB("L_skipc")
    if NV:
        A("s_cmp_eq_u32 s52, 0"); A("s_cbranch_scc1 L_nopark")
        A("s_sub_u32 s53, s53, 1"); A("s_cmp_lg_u32 s53, 0"); A("s_cbranch_scc1 L_nopark")
        C("move a parked tile into the slot that just became free and run it")
        A(f"s_mov_b32 s53, {VSTEP + 1}"); A("s_sub_u32 s52, s52, 1")
        A("v_lshl_add_u32 v116, v0, 4, s41")
        A("s_waitcnt vmcnt(8)")
        for k in range(NV):
            if k < NV - 1: A(f"s_cmp_lg_u32 s52, {k}"); A(f"s_cbranch_scc1 L_pk{k}")
            for i in range(8): A(f"ds_write_b128 v116, {vr(128+32*k+4*i,4)} offset:{1024*i}")
            if k < NV - 1: A("s_branch L_pkd"); LB(f"L_pk{k}")
        LB("L_pkd")
        for k in range(12): A(f"v_xor_b32 v{6+k}, s42, v{6+k}")
        A("s_branch L_go")
        LB("L_nopark")
    A("s_cmp_lt_u32 s44, 4"); A("s_cbranch_scc1 L_drain")
    A("s_cmp_eq_u32 s43, 0"); A("s_cbranch_scc1 L_dyn")
    A("s_sub_u32 s43, s43, 1"); A("s_cmp_eq_u32 s43, 0"); A("s_cbranch_scc0 L_issue")
    A("s_branch L_ticket")
    LB("L_dyn")
    A("s_waitcnt vmcnt(8)")
    A("v_readfirstlane_b32 s48, v124")
    A(f"s_cmp_ge_u32 s48, {D}"); A("s_cbranch_scc1 L_empty")
    if rr: A("s_and_b32 s49, s48, 7"); A("s_lshr_b32 s50, s48, 3")
    else: A(f"s_mul_i32 s49, s48, {PRM}"); A("s_lshr_b32 s49, s49, 16"); A(f"s_mul_i32 s50, s49, {PR}"); A("s_sub_u32 s50, s48, s50")
    A("s_lshl_b32 s49, s49, 21"); A("s_lshl_b32 s50, s50, 14"); A("s_add_u32 s40, s46, s49"); A("s_add_u32 s40, s40, s50")
    LB("L_ticket")
    A("s_mov_b64 exec, 1")
    A("global_atomic_add v124, v122, v123, s[26:27] sc0 sc1")
    A("s_mov_b64 exec, -1")
    LB("L_issue")
    issue_tile(PACE)
    A("s_xor_b32 s41, s41, s42"); A("s_xor_b32 s42, s42, 0x4000")
    if prog:
        A("s_add_u32 s51, s51, 1")
        for k, r in enumerate((4, 8, 12, 16, 20, 24, 28)):
            A(f"s_cmp_eq_u32 s51, {r}"); A(f"s_cbranch_scc0 L_pg{k}"); TS(7 + k); LB(f"L_pg{k}")
    A("s_branch L_tile")
    LB("L_empty")
    A(f"v_mov_b32 v116, {GATE}"); A("ds_write_b32 v116, v123")
    if ts: A("s_add_u32 s79, s51, 4"); TS(14)
    LB("L_drain")
    A("s_xor_b32 s42, s42, 0x4000")
    A("s_sub_u32 s44, s44, 1"); A("s_cmp_lg_u32 s44, 0"); A("s_cbranch_scc1 L_tile")
    TS(4)
    C("epilogue: merge the four waves' partial results, publish")
    swap_red("add_f32", [109], [116], 16); swap_red("add_f32", [109], [116], 32)
    A("s_lshl_b32 s44, s3, 11"); A(f"s_add_u32 s44, s44, {SP}")
    A("v_lshlrev_b32 v116, 9, v21"); A("v_lshl_add_u32 v116, v20, 4, v116"); A("v_add_u32 v116, s44, v116")
    A("s_lshl_b32 s44, s3, 5"); A(f"s_add_u32 s44, s44, {SML}")
    A("v_lshl_add_u32 v117, v21, 3, s44")
    A("v_mov_b32 v108, v19")
    A("s_mov_b32 exec_lo, 0x000f000f"); A("s_mov_b32 exec_hi, 0x000f000f")
    for t in range(8): A(f"ds_write_b128 v116, {vr(76+4*t,4)} offset:{64*t}")
    A("ds_write_b64 v117, v[108:109]")
    A("s_mov_b64 exec, 1")
    A(f"v_mov_b32 v110, {CNT}"); A("v_mov_b32 v111, 1")
    A("s_waitcnt lgkmcnt(0)")
    A("ds_add_rtn_u32 v111, v110, v111")
    A("s_mov_b64 exec, -1")
    A(f"v_lshlrev_b32 v116, 4, v0"); A(f"v_add_u32 v116, {SP}, v116")
    A("v_lshrrev_b32 v119, 5, v0"); A(f"v_lshlrev_b32 v118, 3, v119"); A(f"v_add_u32 v118, {SML}, v118")
    A("s_waitcnt lgkmcnt(0)")
    A("v_readfirstlane_b32 s44, v111")
    A("s_cmp_eq_u32 s44, 3"); A("s_cbranch_scc0 L_sdone")
    for k in range(2):
        for w in range(4): A(f"ds_read_b64 {vr(24+8*k+2*w,2)}, v118 offset:{32*w+16*k}")
    for k in range(2):
        for w in range(4): A(f"ds_read_b128 {vr(44+16*k+4*w,4)}, v116 offset:{2048*w+1024*k}")
    A("s_lshl_b32 s44, s36, 16"); A("s_lshl_b32 s47, s38, 9"); A("s_add_u32 s44, s44, s47"); A(f"s_add_u32 s44, s44, {PART}")
    A("v_and_b32 v113, 31, v0"); A("v_lshlrev_b32 v112, 14, v119"); A("v_lshl_add_u32 v112, v113, 4, v112"); A("v_add_u32 v112, s44, v112"); A("v_add_u32 v114, 0x8000, v112")
    A("s_lshl_b32 s44, s36, 10"); A("s_lshl_b32 s47, s38, 3"); A("s_add_u32 s44, s44, s47"); A(f"s_add_u32 s44, s44, {ML}")
    A("v_lshl_add_u32 v113, v119, 8, s44")
    A("s_waitcnt lgkmcnt(8)")
    for k in range(2):
        A(f"v_min3_f32 v{40+2*k}, v{24+8*k}, v{26+8*k}, v{28+8*k}"); A(f"v_min_f32 v{40+2*k}, v{40+2*k}, v{30+8*k}")
    for k in range(2):
        for w in range(4): A(f"v_sub_f32 v{24+8*k+2*w}, v{40+2*k}, v{24+8*k+2*w}")
    for k in range(2):
        for w in range(4): A(f"v_exp_f32 v{24+8*k+2*w}, v{24+8*k+2*w}")
    for k in range(2): A(f"v_mul_f32 v{41+2*k}, v{24+8*k}, v{25+8*k}")
    for w in range(1, 4):
        for k in range(2): A(f"v_fmac_f32 v{41+2*k}, v{24+8*k+2*w}, v{25+8*k+2*w}")
    for k in range(2):
        A(f"s_waitcnt lgkmcnt({4 - 4*k})")
        for h in range(2): A(f"v_pk_mul_f32 {vr(44+16*k+2*h,2)}, {vr(44+16*k+2*h,2)}, {vr(24+8*k,2)} op_sel_hi:[1,0]")
        for w in range(1, 4):
            for h in range(2): A(f"v_pk_fma_f32 {vr(44+16*k+2*h,2)}, {vr(44+16*k+4*w+2*h,2)}, {vr(24+8*k+2*w,2)}, {vr(44+16*k+2*h,2)} op_sel_hi:[1,0,1]")
        A(f"global_store_dwordx4 v{112+2*k}, {vr(44+16*k,4)}, s[26:27] sc1")
    A("s_mov_b32 exec_lo, 1"); A("s_mov_b32 exec_hi, 1")
    A("global_store_dwordx2 v113, v[40:41], s[26:27] sc1"); A("global_store_dwordx2 v113, v[42:43], s[26:27] offset:512 sc1")
    LB("L_sdone")
    TS(5)
    TS_flush()
    A("s_endpgm")

    LB("L_helper")
    if noh: A("s_endpgm")
    A("s_mov_b32 s47, s39")
    A("s_mov_b32 s50, s39")
    A("s_cmp_eq_u32 s37, 15"); A("s_cselect_b32 s47, 3, s47")
    A("s_sub_u32 s39, s3, 4")
    A("s_and_b32 s48, s37, 7")
    A("s_mul_i32 s49, s36, 7"); A("s_add_u32 s49, s49, s48")
    A("v_lshrrev_b32 v20, 4, v0"); A("v_and_b32 v21, 15, v0")
    A("v_lshrrev_b32 v22, 3, v21"); A("v_and_b32 v23, 7, v21")
    A("v_mov_b32 v16, 0")
    A("s_mov_b32 s44, 0x05040100"); A("s_mov_b32 s45, 0x07060302")
    A(f"s_mov_b32 s46, {0 if dry else 1}")
    A("s_cmp_eq_u32 s39, 0"); A("s_cbranch_scc1 L_w4")
    A("s_cmp_ge_u32 s47, 2"); A("s_cbranch_scc1 L_end")
    A("s_waitcnt lgkmcnt(0)")
    if ts: A("s_mov_b32 s64, s60")
    A("s_barrier")
    A("global_load_dword v3, v16, s[26:27] sc1")
    if not early:
        A(f"v_mov_b32 v1, {QRDY}")
        LB("L_hq")
        A("s_sleep 4"); A("ds_read_b32 v2, v1"); A("s_waitcnt lgkmcnt(0)"); A("v_readfirstlane_b32 s40, v2")
        A("s_cmp_eq_u32 s40, 0"); A("s_cbranch_scc1 L_hq")
    A("s_waitcnt vmcnt(0)")
    A(f"v_add_u32 v3, {TAGC:#x}, v3")
    A("s_branch L_roles")

    LB("L_w4")
    C("first helper wave: 128 rows x 64 columns of LN(x) @ wq; reset this workgroup's hand-off slots; gather q")
    A("s_setprio 3")
    A("v_lshlrev_b32 v1, 4, v0")
    A("v_lshlrev_b32 v2, 19, v22"); A("v_lshl_add_u32 v2, v20, 16, v2"); A("v_lshl_add_u32 v2, v23, 4, v2")
    A("s_lshl_b32 s52, s50, 20"); A("s_lshl_b32 s41, s36, 10"); A("s_add_u32 s52, s52, s41"); A("s_lshl_b32 s41, s48, 7"); A("s_add_u32 s52, s52, s41")
    A("s_mov_b32 s30, 0x400000"); A("s_mov_b32 s31, 0x20000")
    for k in range(4): A(f"v_mov_b32 v{8+k}, -1")
    A("s_lshl_b32 s40, s36, 16"); A("s_lshl_b32 s41, s38, 9"); A("s_add_u32 s40, s40, s41"); A(f"s_add_u32 s40, s40, {PART}")
    A("v_lshrrev_b32 v13, 5, v0"); A("v_and_b32 v14, 31, v0")
    A("v_lshlrev_b32 v12, 14, v13"); A("v_lshl_add_u32 v12, v14, 4, v12"); A("v_add_u32 v12, s40, v12"); A("v_add_u32 v17, 0x8000, v12")
    A("s_lshl_b32 s40, s36, 10"); A("s_lshl_b32 s41, s38, 3"); A("s_add_u32 s40, s40, s41"); A(f"s_add_u32 s40, s40, {ML}")
    A("v_lshl_add_u32 v13, v20, 8, s40")
    A("s_lshl_b32 s40, s48, 11"); A("s_lshl_b32 s41, s36, 8"); A("s_add_u32 s40, s40, s41"); A(f"s_add_u32 s40, s40, {H2}")
    A("s_lshl_b32 s41, s49, 11"); A(f"s_add_u32 s41, s41, {H3}")
    A("s_cmp_eq_u32 s47, 0"); A("s_cselect_b32 s40, s40, s41"); A("s_cselect_b32 s41, 15, 63"); A("s_cselect_b32 s42, 0, 1024")
    A("v_and_b32 v14, s41, v0"); A("v_lshl_add_u32 v14, v14, 4, s40"); A("v_add_u32 v15, s42, v14")
    A("s_lshl_b32 s40, s36, 10"); A(f"s_add_u32 s40, s40, {POOL}"); A("v_and_b32 v19, 3, v0"); A("v_lshl_add_u32 v19, v19, 8, s40")
    A(f"v_mov_b32 v18, {CNT}"); A("v_mov_b32 v24, 0"); A("v_mov_b32 v25, 0"); A("v_mov_b32 v26, 0"); A("v_mov_b32 v27, 0")
    A("ds_write_b128 v18, v[24:27]")
    A("s_waitcnt lgkmcnt(0)")
    if ts: A("s_mov_b32 s64, s60")
    A("global_load_dwordx4 v[4:7], v1, s[4:5]")
    A("s_mov_b32 s28, s10"); A("s_and_b32 s29, s11, 0xffff")
    for k in range(16):
        A(f"buffer_load_dwordx4 {vr(160+4*k,4)}, v2, s[28:31], s52 offen {wq_flags}")
        if k < 15: A(f"s_add_u32 s52, s52, {8192 if k != 7 else 25 * 8192}")
    A("global_load_dword v3, v16, s[26:27] sc1")
    A("global_store_dwordx4 v12, v[8:11], s[26:27] sc1"); A("global_store_dwordx4 v17, v[8:11], s[26:27] sc1")
    A("s_mov_b32 exec_lo, 0x00010001"); A("s_mov_b32 exec_hi, 0x00010001")
    A("global_store_dwordx2 v13, v[8:9], s[26:27] sc1")
    A("s_mov_b64 exec, -1")
    A("s_cmp_ge_u32 s47, 2"); A("s_cbranch_scc1 L_w4a")
    A("global_store_dwordx4 v14, v[8:11], s[26:27] sc1"); A("global_store_dwordx4 v15, v[8:11], s[26:27] sc1")
    LB("L_w4a")
    A("s_cmp_lg_u32 s37, 31"); A("s_cbranch_scc1 L_w4b")
    A("s_mov_b64 exec, 15")
    A("global_store_dword v19, v16, s[26:27] sc1")
    A("s_mov_b64 exec, -1")
    LB("L_w4b")
    A("s_barrier")
    TS(11)
    A(f"v_add_u32 v10, {HN}, v1")
    A("s_lshl_b32 s40, s50, 8"); A(f"s_add_u32 s40, s40, {HN}")
    A("v_lshlrev_b32 v11, 7, v22"); A("v_lshl_add_u32 v11, v20, 4, v11"); A("v_add_u32 v11, s40, v11")
    A("v_lshlrev_b32 v13, 8, v22"); A("v_lshl_add_u32 v13, v23, 5, v13"); A(f"v_add_u32 v13, {SP}, v13")
    A(f"v_lshlrev_b32 v14, 2, v0"); A(f"v_add_u32 v18, {QL}, v14"); A(f"v_add_u32 v14, {SP}, v14")
    A("s_lshl_b32 s40, s36, 14"); A(f"s_add_u32 s40, s40, {QBUF + 4096}")
    A("v_add_u32 v17, s40, v1"); A("v_add_u32 v19, 0x2000, v17")
    A("s_lshl_b32 s41, s50, 12"); A("s_add_u32 s40, s40, s41"); A("s_lshl_b32 s41, s48, 9"); A("s_add_u32 s40, s40, s41"); A("s_sub_u32 s40, s40, 4096")
    A("v_lshl_add_u32 v15, v0, 3, s40")
    A("s_lshl_b32 s40, s2, 2"); A(f"s_add_u32 s40, s40, {ALIVE}"); A("v_mov_b32 v12, s40")
    A("s_waitcnt vmcnt(20)")
    TS(1)
    layernorm(4, 24, 32)
    A("ds_write_b128 v10, v[4:7]")
    A("ds_read_b128 v[40:43], v11"); A("ds_read_b128 v[44:47], v11 offset:64")
    A("s_waitcnt vmcnt(12)")
    transpose8(96, 160)
    A("s_waitcnt lgkmcnt(0)")
    for e in range(8): A(f"v_mfma_f32_16x16x32_bf16 {vr(48+4*e,4)}, v[40:43], {vr(96+4*e,4)}, 0")
    A("s_waitcnt vmcnt(4)")
    TS(2)
    transpose8(128, 192)
    A("s_nop 1")
    for e in range(8): A(f"v_mfma_f32_16x16x32_bf16 {vr(48+4*e,4)}, v[44:47], {vr(128+4*e,4)}, {vr(48+4*e,4)}")
    A("s_mov_b32 exec_lo, 0xff"); A("s_mov_b32 exec_hi, 0xff00")
    A("s_nop 5")
    for e in range(0, 8, 2): A(f"ds_write2_b32 v13, v{48+4*e}, v{52+4*e} offset0:{e} offset1:{e+1}")
    A("s_mov_b64 exec, -1")
    A("ds_read2_b32 v[24:25], v14 offset0:0 offset1:64")
    A("s_waitcnt vmcnt(0)")
    A(f"v_add_u32 v3, {TAGC:#x}, v3")
    A("s_waitcnt lgkmcnt(0)")
    A("v_add_f32 v2, v24, v25")
    A("global_store_dwordx2 v15, v[2:3], s[26:27] sc1")
    A("s_mov_b64 exec, 1")
    A("global_store_dword v12, v3, s[26:27] sc1")
    A(f"v_mov_b32 v12, {PUBD}"); A("ds_write_b32 v12, v12")
    A("s_mov_b64 exec, -1")
    TS(3)
    A(f"s_mov_b32 s51, {SPIN_MAX}")
    def qload(r):
        for i in range(16): A(f"global_load_dwordx4 {vr(r+4*i,4)}, v{17 if i < 8 else 19}, s[26:27] offset:{(i % 8) * 1024 - 4096} sc1")
    def qcheck(r):
        A(f"v_xor_b32 v24, v{r+1}, v3"); A(f"v_xor_b32 v25, v{r+3}, v3")
        ws = [r + 4 * i + k for i in range(1, 16) for k in (1, 3)]
        for n, w in enumerate(ws):
            A(f"v_xor_b32 v26, v{w}, v3"); A(f"v_or_b32 v{24 + (n & 1)}, v{24 + (n & 1)}, v26")
        A("v_or_b32 v24, v24, v25"); A("v_cmp_ne_u32 vcc, 0, v24")
    def qsum(r):
        for k in range(4):
            for h in (0, 2):
                A(f"v_add_f32 v{r+4*k+h}, v{r+4*k+h}, v{r+16+4*k+h}"); A(f"v_add_f32 v{r+32+4*k+h}, v{r+32+4*k+h}, v{r+48+4*k+h}")
        for k in range(4):
            for h in (0, 2): A(f"v_add_f32 v{r+4*k+h}, v{r+4*k+h}, v{r+32+4*k+h}")
        for k in range(4): A(f"v_cvt_pk_bf16_f32 v{24+k}, v{r+4*k}, v{r+4*k+2}")
    C("the group's 32 words announce the partial q stores; the tags inside the data are what is trusted")
    A("s_lshl_b32 s40, s36, 7"); A(f"s_add_u32 s40, s40, {ALIVE}"); A("v_and_b32 v12, 31, v0"); A("v_lshl_add_u32 v12, v12, 2, s40")
    A("global_load_dword v28, v12, s[26:27] sc1")
    A(f"s_sleep {qsleep}")
    LB("L_qhint")
    A("global_load_dword v29, v12, s[26:27] sc1")
    A("s_waitcnt vmcnt(1)")
    A("v_cmp_eq_u32 vcc, v28, v3"); A("s_bcnt1_i32_b32 s40, vcc_lo"); A(f"s_cmp_ge_u32 s40, {QTH}"); A("s_cbranch_scc1 L_qgo")
    A("global_load_dword v28, v12, s[26:27] sc1")
    A("s_waitcnt vmcnt(1)")
    A("v_cmp_eq_u32 vcc, v29, v3"); A("s_bcnt1_i32_b32 s40, vcc_lo")
    A("s_sub_u32 s51, s51, 1"); A("s_cbranch_scc1 L_qgo")
    A(f"s_cmp_lt_u32 s40, {QTH}"); A("s_cbranch_scc1 L_qhint")
    LB("L_qgo")
    TS(12)
    A("s_mov_b32 s55, 0xffff")
    LB("L_qpoll")
    for i in range(16):
        A(f"s_bitcmp1_b32 s55, {i}"); A(f"s_cbranch_scc0 L_qs{i}")
        A(f"global_load_dwordx4 {vr(96+4*i,4)}, v{17 if i < 8 else 19}, s[26:27] offset:{(i % 8) * 1024 - 4096} sc1")
        LB(f"L_qs{i}")
    A("s_waitcnt vmcnt(0)")
    for i in range(16):
        A(f"v_cmp_ne_u32 vcc, v{97+4*i}, v3"); A(f"v_cmp_ne_u32 s[40:41], v{99+4*i}, v3"); A("s_or_b64 vcc, vcc, s[40:41]")
        A(f"s_cbranch_scc1 L_qc{i}"); A(f"s_bitset0_b32 s55, {i}"); LB(f"L_qc{i}")
    A("s_sub_u32 s51, s51, 1"); A("s_cbranch_scc1 L_qgot")
    A("s_cmp_lg_u32 s55, 0"); A("s_cbranch_scc1 L_qpoll")
    LB("L_qgot")
    qsum(96)
    A("ds_write2_b32 v18, v24, v25 offset0:0 offset1:64"); A("ds_write2_b32 v18, v26, v27 offset0:128 offset1:192")
    A(f"v_mov_b32 v18, {QRDY}"); A("v_mov_b32 v19, 1")
    A("ds_write_b32 v18, v19")
    A("s_waitcnt lgkmcnt(0)")
    A("s_setprio 0")
    TS(4)
    if touch:
        A("v_lshlrev_b32 v4, 21, v0"); A("s_lshl_b32 s40, s36, 24"); A(f"s_add_u32 s40, s40, {0x200000 - 128}"); A("v_add_u32 v4, s40, v4")
        A("s_mov_b64 exec, 0xff")
        A("global_load_dword v240, v4, s[6:7] nt"); A("global_load_dword v240, v4, s[8:9] nt")
        A("s_mov_b64 exec, -1")
    A("s_waitcnt vmcnt(0)")
    LB("L_roles")
    if noroles: A("s_branch L_hdone")
    A("s_cmp_eq_u32 s47, 1"); A("s_cbranch_scc1 L_ffn")
    A("s_cmp_eq_u32 s47, 0"); A("s_cbranch_scc0 L_hdone")
    A("s_mov_b32 s40, s36"); A("s_mov_b32 s36, s48"); A("s_mov_b32 s48, s40")

    C("wo role: merge 32 splits of one kv group, multiply by a 512x64 block of wo")
    A("s_lshl_b32 s40, s36, 2"); A("s_add_u32 s40, s40, s39")
    A("s_lshl_b32 s41, s40, 17"); A("s_lshl_b32 s42, s48, 7"); A("s_add_u32 s41, s41, s42"); A("s_add_u32 s41, s41, 4096")
    A("s_add_u32 s52, s12, s41"); A("s_addc_u32 s53, s13, 0")
    A("v_lshlrev_b32 v4, 16, v22"); A("v_lshl_add_u32 v4, v20, 13, v4"); A("v_lshl_add_u32 v4, v23, 4, v4")
    for s in range(2):
        for i in range(8): A(f"global_load_dwordx4 {vr(160+4*i,4)}, v4, s[52:53] offset:{1024*i-4096} {w_flags}")
        A("v_add_u32 v4, 0x8000, v4")
        A("s_waitcnt vmcnt(0)")
        transpose8(96 + 32 * s, 160)
    TS(5)
    alive("w")
    A("s_lshl_b32 s41, s40, 14"); A(f"s_add_u32 s41, s41, {PART + 4096}")
    A("v_lshl_add_u32 v4, v0, 4, s41"); A("v_add_u32 v5, 0x2000, v4")
    A("s_lshl_b32 s41, s40, 8"); A(f"s_add_u32 s41, s41, {ML}")
    A("v_and_b32 v8, 31, v0"); A("v_lshl_add_u32 v6, v8, 3, s41")
    A("s_lshl_b32 s41, s39, 7"); A(f"s_add_u32 s41, s41, {WB}")
    A("v_and_b32 v9, 1, v0"); A("v_lshlrev_b32 v9, 6, v9"); A("v_lshrrev_b32 v10, 1, v8"); A("v_lshl_add_u32 v9, v10, 2, v9"); A("v_add_u32 v9, s41, v9")
    A("v_lshrrev_b32 v10, 5, v0"); A("v_lshl_add_u32 v10, v10, 6, s41")
    A("s_lshl_b32 s41, s39, 8"); A(f"s_add_u32 s41, s41, {OB}")
    A("v_lshl_add_u32 v11, v8, 3, s41")
    A("v_lshlrev_b32 v12, 7, v22"); A("v_lshl_add_u32 v12, v20, 4, v12"); A("v_add_u32 v12, s41, v12")
    A("s_lshl_b32 s41, s39, 9"); A(f"s_add_u32 s41, s41, {RED}")
    A("v_lshlrev_b32 v13, 8, v22"); A("v_lshl_add_u32 v13, v23, 5, v13"); A("v_add_u32 v13, s41, v13")
    A(f"v_lshlrev_b32 v14, 4, v21"); A(f"v_add_u32 v15, {RED}, v14")
    A("s_lshl_b32 s41, s36, 11"); A("s_lshl_b32 s42, s48, 8"); A("s_add_u32 s54, s41, s42")
    if not dry: gate_wait("L_wo_gate0")
    LB("L_wo_pass")
    A(f"s_mov_b32 s41, {H2}"); A("s_cmp_eq_u32 s46, 0"); A(f"s_cmov_b32 s41, {DUMMY}"); A("s_add_u32 s41, s41, s54")
    A("v_add_u32 v7, s41, v14")
    GS = 16 // NG; SPG = 32 // NG
    allb = sum(1 << (SPG * g) for g in range(NG))
    A(f"s_mov_b32 s55, {allb:#x}"); A(f"s_mov_b32 s51, {SPIN_MAX}")
    A("s_cmp_eq_u32 s46, 0"); A("s_cselect_b32 s56, s55, 0")
    LB("L_wo_poll")
    A("global_load_dwordx2 v[80:81], v6, s[26:27] sc1")
    A("s_cmp_eq_u32 s56, 0"); A("s_cbranch_scc1 L_wo_ml")
    for g in range(NG):
        A(f"s_bitcmp1_b32 s56, {SPG*g}"); A(f"s_cbranch_scc0 L_wo_sk{g}")
        for i in range(GS * g, GS * g + GS):
            A(f"global_load_dwordx4 {vr(16+4*i,4)}, v{4 + i // 8}, s[26:27] offset:{(i % 8) * 1024 - 4096} sc1")
        LB(f"L_wo_sk{g}")
    A("s_waitcnt vmcnt(0)")
    for g in range(NG):
        A(f"s_bitcmp1_b32 s56, {SPG*g}"); A(f"s_cbranch_scc0 L_wo_ck{g}")
        any_poison(range(16 + 4 * GS * g, 16 + 4 * GS * (g + 1)), 82)
        A(f"s_cbranch_vccnz L_wo_ck{g}"); A(f"s_bitset0_b32 s55, {SPG*g}")
        LB(f"L_wo_ck{g}")
    LB("L_wo_ml")
    A("s_waitcnt vmcnt(0)")
    any_poison([80, 81], 82)
    if ts and prog:
        A("s_mov_b32 s73, s74"); A("s_mov_b32 s74, s77"); A("s_mov_b32 s77, s78"); TS(14); A("s_add_u32 s79, s79, 1")
    A("s_cmp_eq_u32 s46, 0"); A("s_cbranch_scc1 L_wo_got")
    A("s_sub_u32 s51, s51, 1"); A("s_cbranch_scc1 L_wo_got")
    A("s_or_b32 s57, s55, vcc_lo"); A("s_cbranch_scc0 L_wo_got")
    A("s_not_b32 s56, vcc_lo"); A("s_bcnt1_i32_b32 s57, s56")
    sh = 1
    while sh < SPG:
        A(f"s_lshr_b32 s58, s56, {sh}"); A("s_and_b32 s56, s56, s58"); sh *= 2
    A(f"s_cmp_ge_u32 s57, {MLTH}"); A("s_cselect_b32 s56, -1, s56"); A("s_and_b32 s56, s56, s55")
    A("s_branch L_wo_poll")
    LB("L_wo_got")
    TS(6)
    A("v_mov_b32 v82, v80")
    dpp_red("min_f32", [82]); swap_red("min_f32", [82], [83], 16)
    A("v_sub_f32 v82, v82, v80"); A("v_exp_f32 v82, v82"); A("s_nop 0")
    A("ds_write_b32 v9, v82")
    for k in range(4): A(f"ds_read_b128 {vr(160+4*k,4)}, v10 offset:{16*k}")
    A("v_mul_f32 v83, v82, v81")
    dpp_red("add_f32", [83]); swap_red("add_f32", [83], [84], 16)
    A("v_rcp_f32 v83, v83")
    A("s_waitcnt lgkmcnt(0)")
    for i in range(16):
        acc = 84 + 4 * (i & 1); sel = "op_sel_hi:[1,0,1]" if i % 2 == 0 else "op_sel:[0,1,0] op_sel_hi:[1,1,1]"
        selm = "op_sel_hi:[1,0]" if i % 2 == 0 else "op_sel:[0,1] op_sel_hi:[1,1]"
        wp = vr(160 + (i & ~1), 2)
        for h in range(2):
            if i < 2: A(f"v_pk_mul_f32 {vr(acc+2*h,2)}, {vr(16+4*i+2*h,2)}, {wp} {selm}")
            else: A(f"v_pk_fma_f32 {vr(acc+2*h,2)}, {vr(16+4*i+2*h,2)}, {wp}, {vr(acc+2*h,2)} {sel}")
    A("v_pk_add_f32 v[84:85], v[84:85], v[88:89]"); A("v_pk_add_f32 v[86:87], v[86:87], v[90:91]")
    swap_red("add_f32", [84, 85, 86, 87], [88, 89, 90, 91], 32)
    for k in range(4): A(f"v_mul_f32 v{84+k}, v{84+k}, v83")
    A("v_cvt_pk_bf16_f32 v84, v84, v85"); A("v_cvt_pk_bf16_f32 v85, v86, v87")
    A("ds_write_b64 v11, v[84:85]")
    A("ds_read_b128 v[88:91], v12"); A("ds_read_b128 v[92:95], v12 offset:64")
    A("s_waitcnt lgkmcnt(1)")
    for e in range(8): A(f"v_mfma_f32_16x16x32_bf16 {vr(16+4*e,4)}, v[88:91], {vr(96+4*e,4)}, 0")
    A("s_waitcnt lgkmcnt(0)")
    for e in range(8): A(f"v_mfma_f32_16x16x32_bf16 {vr(16+4*e,4)}, v[92:95], {vr(128+4*e,4)}, {vr(16+4*e,4)}")
    A("s_mov_b32 exec_lo, 0xff"); A("s_mov_b32 exec_hi, 0xff00")
    A("s_nop 5")
    for e in range(0, 8, 2): A(f"ds_write2_b32 v13, v{16+4*e}, v{20+4*e} offset0:{e} offset1:{e+1}")
    A("s_mov_b64 exec, -1")
    barrier_real("L_wo_nb")
    A("s_cmp_lg_u32 s39, 0"); A("s_cbranch_scc1 L_wo_next")
    for p in range(8): A(f"ds_read_b128 {vr(16+4*p,4)}, v15 offset:{256*p}")
    for st, wcnt in ((0, 6), (8, 4), (16, 2), (24, 0)):
        A(f"s_waitcnt lgkmcnt({wcnt})")
        for h in range(2): A(f"v_pk_add_f32 {vr(16+st+2*h,2)}, {vr(16+st+2*h,2)}, {vr(20+st+2*h,2)}")
    for h in range(2): A(f"v_pk_add_f32 {vr(16+2*h,2)}, {vr(16+2*h,2)}, {vr(24+2*h,2)}")
    for h in range(2): A(f"v_pk_add_f32 {vr(32+2*h,2)}, {vr(32+2*h,2)}, {vr(40+2*h,2)}")
    for h in range(2): A(f"v_pk_add_f32 {vr(16+2*h,2)}, {vr(16+2*h,2)}, {vr(32+2*h,2)}")
    A("s_mov_b64 exec, 0xffff")
    A("global_store_dwordx4 v7, v[16:19], s[26:27] sc1")
    A("s_mov_b64 exec, -1")
    LB("L_wo_next")
    TS(7)
    A("s_cmp_eq_u32 s46, 1"); A("s_cbranch_scc1 L_hdone")
    A("s_mov_b32 s46, 1")
    gate_wait("L_wo_gate")
    TS(8)
    A("s_branch L_wo_pass")

    LB("L_ffn")
    C("ffn role: h, LN(h), 32 gate/up columns, 32 rows of w2; first 16 also finish 32 output columns")
    A("v_lshlrev_b32 v4, 6, v22"); A("v_lshl_add_u32 v4, v20, 3, v4"); A("s_lshl_b32 s40, s39, 7"); A("v_add_u32 v4, s40, v4")
    A("s_movk_i32 s40, 3584"); A("v_mul_u32_u24 v4, s40, v4")
    A("v_and_b32 v5, 3, v21"); A("v_lshl_add_u32 v4, v5, 4, v4"); A("s_lshl_b32 s40, s49, 6"); A("v_add_u32 v4, s40, v4")
    A("v_bfe_u32 v5, v21, 2, 1"); A("v_cmp_eq_u32 vcc, 1, v5")
    A("v_mov_b32 v6, s16"); A("v_mov_b32 v7, s18"); A("v_cndmask_b32 v6, v6, v7, vcc")
    A("v_mov_b32 v7, s17"); A("v_mov_b32 v8, s19"); A("v_cndmask_b32 v7, v7, v8, vcc")
    A("v_mov_b32 v5, 0"); A("v_lshl_add_u64 v[6:7], v[4:5], 0, v[6:7]")
    A("s_mov_b64 s[40:41], 7168"); A(f"s_mov_b64 s[42:43], {7168 + 24 * 3584}")
    for s in range(2):
        for i in range(8):
            A(f"global_load_dwordx4 {vr(160+4*i,4)}, v[6:7], off{' offset:3584' if i & 1 else ''} {w_flags}")
            if i & 1 and not (s == 1 and i == 7): A(f"v_lshl_add_u64 v[6:7], v[6:7], 0, {'s[42:43]' if i == 7 else 's[40:41]'}")
        A("s_waitcnt vmcnt(0)")
        transpose8(64 + 32 * s, 160)
    A("s_lshl_b32 s40, s49, 15"); A("s_lshl_b32 s41, s39, 8"); A("s_add_u32 s40, s40, s41"); A("s_add_u32 s40, s40, 4096")
    A("s_add_u32 s52, s20, s40"); A("s_addc_u32 s53, s21, 0")
    A("v_lshlrev_b32 v4, 13, v20"); A("v_lshl_add_u32 v4, v21, 4, v4")
    for i in range(8): A(f"global_load_dwordx4 {vr(160+4*i,4)}, v4, s[52:53] offset:{1024*i-4096} {w_flags}")
    A("v_and_b32 v8, 31, v0")
    A("s_lshl_b32 s40, s39, 8"); A("v_lshl_add_u32 v5, v8, 3, s40")
    A("global_load_dwordx2 v[48:49], v5, s[4:5]")
    A("s_waitcnt vmcnt(1)")
    transpose8(128, 160)
    A("s_waitcnt vmcnt(0)")
    unpack(50, 49)
    A("v_and_b32 v49, 0xffff0000, v48"); A("v_lshlrev_b32 v48, 16, v48")
    TS(5)
    alive("f")
    A("v_lshrrev_b32 v9, 5, v0"); A("v_lshlrev_b32 v4, 11, v9"); A("v_lshl_add_u32 v4, v8, 4, v4")
    A("s_lshl_b32 s40, s39, 9"); A(f"s_add_u32 s40, s40, {H2 + 4096}"); A("v_add_u32 v4, s40, v4"); A("v_add_u32 v6, 0x2000, v4")
    A(f"v_add_u32 v5, {HB}, v5")
    A(f"v_lshlrev_b32 v7, 4, v0"); A(f"v_add_u32 v9, {HB}, v7")
    A("s_lshl_b32 s40, s39, 10"); A(f"s_add_u32 s40, s40, {HN}"); A("v_add_u32 v10, s40, v7")
    A("s_lshl_b32 s41, s39, 8"); A("s_add_u32 s40, s40, s41")
    A("v_lshlrev_b32 v11, 7, v22"); A("v_lshl_add_u32 v11, v20, 4, v11"); A("v_add_u32 v11, s40, v11")
    A("s_lshl_b32 s41, s39, 9"); A(f"s_add_u32 s41, s41, {RED}")
    A("v_lshlrev_b32 v13, 8, v22"); A("v_lshl_add_u32 v13, v23, 5, v13"); A("v_add_u32 v13, s41, v13")
    A(f"v_lshlrev_b32 v14, 2, v0"); A(f"v_add_u32 v14, {RED}, v14")
    A("s_lshl_b32 s41, s39, 6"); A(f"s_add_u32 s41, s41, {HM}")
    A("v_lshl_add_u32 v15, v8, 1, s41"); A("v_lshl_add_u32 v12, v20, 4, s41")
    A("v_lshlrev_b32 v52, 5, v21"); A("v_lshl_add_u32 v52, v20, 4, v52")
    A("s_lshl_b32 s54, s49, 11"); A("s_lshl_b32 s41, s39, 9"); A("s_add_u32 s54, s54, s41")
    A("v_cmp_eq_u32 s[56:57], 1, v20")
    A("v_lshrrev_b32 v53, 3, v0"); A("v_lshlrev_b32 v53, 11, v53"); A("v_and_b32 v54, 7, v0"); A("v_lshl_add_u32 v53, v54, 4, v53")
    A("s_lshl_b32 s41, s49, 7"); A(f"s_add_u32 s41, s41, {H3}"); A("v_add_u32 v53, s41, v53")
    A("s_lshl_b32 s41, s49, 6"); A("v_lshl_add_u32 v54, v54, 3, s41"); A(f"v_add_u32 v55, {HB}, v54")
    if not dry: gate_wait("L_f_gate0")
    LB("L_f_pass")
    A(f"s_mov_b32 s41, {H3}"); A("s_cmp_eq_u32 s46, 0"); A(f"s_cmov_b32 s41, {DUMMY}"); A("s_add_u32 s41, s41, s54")
    A("v_add_u32 v56, s41, v52")
    A(f"s_mov_b32 s51, {SPIN_MAX}")
    LB("L_f_poll")
    for i in range(4): A(f"global_load_dwordx4 {vr(24+4*i,4)}, v{4 if i < 2 else 6}, s[26:27] offset:{(i % 2) * 4096 - 4096} sc1")
    A("s_waitcnt vmcnt(0)")
    any_poison(range(24, 40), 40)
    A("s_cmp_eq_u32 s46, 0"); A("s_cbranch_scc1 L_f_got")
    A("s_sub_u32 s51, s51, 1"); A("s_cbranch_scc1 L_f_got")
    A("s_cbranch_vccnz L_f_poll")
    LB("L_f_got")
    TS(6)
    for h in range(2): A(f"v_pk_add_f32 {vr(24+2*h,2)}, {vr(24+2*h,2)}, {vr(28+2*h,2)}")
    for h in range(2): A(f"v_pk_add_f32 {vr(32+2*h,2)}, {vr(32+2*h,2)}, {vr(36+2*h,2)}")
    for h in range(2): A(f"v_pk_add_f32 {vr(24+2*h,2)}, {vr(24+2*h,2)}, {vr(32+2*h,2)}")
    swap_red("add_f32", [24, 25, 26, 27], [28, 29, 30, 31], 32)
    A("v_cvt_pk_bf16_f32 v28, v24, v25"); A("v_cvt_pk_bf16_f32 v29, v26, v27")
    unpack(24, 28); unpack(26, 29)
    A("v_pk_add_f32 v[24:25], v[24:25], v[48:49]"); A("v_pk_add_f32 v[26:27], v[26:27], v[50:51]")
    A("v_cvt_pk_bf16_f32 v28, v24, v25"); A("v_cvt_pk_bf16_f32 v29, v26, v27")
    A("ds_write_b64 v5, v[28:29]")
    barrier_real("L_f_nb1")
    A("ds_read_b128 v[24:27], v9")
    A("s_waitcnt lgkmcnt(0)")
    layernorm(24, 28, 36)
    A("ds_write_b128 v10, v[24:27]")
    A("ds_read_b128 v[40:43], v11"); A("ds_read_b128 v[44:47], v11 offset:64")
    A("s_waitcnt lgkmcnt(1)")
    for e in range(8): A(f"v_mfma_f32_16x16x32_bf16 {vr(160+4*e,4)}, v[40:43], {vr(64+4*e,4)}, 0")
    A("s_waitcnt lgkmcnt(0)")
    for e in range(8): A(f"v_mfma_f32_16x16x32_bf16 {vr(160+4*e,4)}, v[44:47], {vr(96+4*e,4)}, {vr(160+4*e,4)}")
    A("s_mov_b32 exec_lo, 0xff"); A("s_mov_b32 exec_hi, 0xff00")
    A("s_nop 5")
    for e in range(0, 8, 2): A(f"ds_write2_b32 v13, v{160+4*e}, v{164+4*e} offset0:{e} offset1:{e+1}")
    A("s_mov_b64 exec, -1")
    barrier_real("L_f_nb2")
    TS(7)
    for p in range(8): A(f"ds_read_b32 v{24+p}, v14 offset:{256*p}")
    A("s_waitcnt lgkmcnt(4)")
    A("v_add_f32 v24, v24, v25"); A("v_add_f32 v26, v26, v27")
    A("s_waitcnt lgkmcnt(0)")
    A("v_add_f32 v28, v28, v29"); A("v_add_f32 v30, v30, v31")
    A("v_add_f32 v24, v24, v26"); A("v_add_f32 v28, v28, v30"); A("v_add_f32 v24, v24, v28")
    bf16r(24)
    A("v_mov_b32 v25, v24"); A("s_nop 1"); A("v_permlane32_swap_b32 v24, v25")
    A(f"v_mul_f32 v26, {NL2E:#x}, v24"); A("v_exp_f32 v26, v26"); A("s_nop 0")
    A("v_add_f32 v26, 1.0, v26"); A("v_rcp_f32 v26, v26"); A("s_nop 0")
    A("v_mul_f32 v26, v24, v26")
    bf16r(26)
    A("v_mul_f32 v26, v26, v25"); A("v_cvt_pk_bf16_f32 v26, v26, v26")
    A("ds_write_b16 v15, v26")
    A("ds_read_b128 v[40:43], v12")
    A("s_waitcnt lgkmcnt(0)")
    for e in range(8): A(f"v_mfma_f32_16x16x32_bf16 {vr(160+4*e,4)}, v[40:43], {vr(128+4*e,4)}, 0")
    A("s_nop 4")
    for e in range(4): A(f"v_cndmask_b32 v{24+e}, v{160+4*e}, v{176+4*e}, s[56:57]")
    A("s_mov_b32 exec_hi, 0")
    A("global_store_dwordx4 v56, v[24:27], s[26:27] sc1")
    A("s_mov_b64 exec, -1")
    TS(8)
    A("s_cmp_lg_u32 s39, 0"); A("s_cbranch_scc1 L_f_next")
    A("s_cmp_ge_u32 s49, 16"); A("s_cbranch_scc1 L_f_next")
    C("final stage: 32 output columns")
    A(f"s_add_u32 s58, s26, {DUMMY}"); A("s_addc_u32 s59, s27, 0")
    A("s_cmp_eq_u32 s46, 0"); A("s_cselect_b32 s58, s58, s22"); A("s_cselect_b32 s59, s59, s23")
    A("ds_read_b64 v[44:45], v55")
    A(f"s_mov_b32 s51, {SPIN_MAX}")
    LB("L_o_poll")
    A("v_mov_b32 v57, v53")
    for i in range(7):
        A(f"global_load_dwordx4 {vr(160+4*i,4)}, v57, s[26:27] sc1")
        if i < 6: A("v_add_u32 v57, 0x4000, v57")
    A("s_waitcnt vmcnt(0)")
    any_poison(range(160, 188), 40)
    A("s_cmp_eq_u32 s46, 0"); A("s_cbranch_scc1 L_o_got")
    A("s_sub_u32 s51, s51, 1"); A("s_cbranch_scc1 L_o_got")
    A("s_cbranch_vccnz L_o_poll")
    LB("L_o_got")
    TS(9)
    for a, b in ((160, 164), (168, 172), (176, 180), (160, 184), (168, 176), (160, 168)):
        for h in range(2): A(f"v_pk_add_f32 {vr(a+2*h,2)}, {vr(a+2*h,2)}, {vr(b+2*h,2)}")
    A("s_nop 0")
    for k in range(4): A(f"v_add_f32_dpp v{160+k}, v{160+k}, v{160+k} row_ror:8 row_mask:0xf bank_mask:0xf")
    swap_red("add_f32", [160, 161, 162, 163], [164, 165, 166, 167], 16)
    swap_red("add_f32", [160, 161, 162, 163], [164, 165, 166, 167], 32)
    A("v_cvt_pk_bf16_f32 v164, v160, v161"); A("v_cvt_pk_bf16_f32 v165, v162, v163")
    unpack(160, 164); unpack(162, 165)
    A("s_waitcnt lgkmcnt(0)")
    unpack(164, 44); unpack(166, 45)
    A("v_pk_add_f32 v[160:161], v[160:161], v[164:165]"); A("v_pk_add_f32 v[162:163], v[162:163], v[166:167]")
    A("v_cvt_pk_bf16_f32 v160, v160, v161"); A("v_cvt_pk_bf16_f32 v161, v162, v163")
    A("s_mov_b64 exec, 0xff")
    A("global_store_dwordx2 v54, v[160:161], s[58:59]")
    A("s_mov_b64 exec, -1")
    A("s_cmp_eq_u32 s46, 0"); A("s_cbranch_scc1 L_f_next")
    A("s_cmp_lg_u32 s49, 0"); A("s_cbranch_scc1 L_f_next")
    A("v_mov_b32 v57, 0"); A("s_mov_b64 exec, 1")
    A("global_store_dword v57, v3, s[26:27] sc1")
    A("s_mov_b64 exec, -1")
    LB("L_f_next")
    TS(10)
    A("s_cmp_eq_u32 s46, 1"); A("s_cbranch_scc1 L_hdone")
    A("s_mov_b32 s46, 1")
    gate_wait("L_f_gate")
    A("s_branch L_f_pass")
    LB("L_hdone")
    TS_flush()
    LB("L_end")
    A("s_endpgm")
    L.append('.section .rodata,"a"'); L.append(".p2align 6"); L.append(f".amdhsa_kernel {NAME}_kernel")
    for s in ("next_free_vgpr 256", "next_free_sgpr 96", "accum_offset 256", "group_segment_fixed_size 0", "kernarg_size 96",
              "user_sgpr_count 2", "user_sgpr_kernarg_segment_ptr 1", "system_sgpr_workgroup_id_x 1", "float_denorm_mode_32 3"):
        L.append("  .amdhsa_" + s)
    L.append(".end_amdhsa_kernel")
    return "\n".join(L) + "\n"

if __name__ == "__main__":
    kw = eval("dict(" + (sys.argv[2] if len(sys.argv) > 2 else "") + ")")
    open(sys.argv[1], "w").write(gen(**kw))
```

```python
import sys
NAME = "sequential_preLN__gqa_block_cached__glu_gated_swiglu__decode"

WQL = 0x20000; SP = 0x20000
QL = 0x24400; SML = 0x24800; CNT = 0x24880; GATE = 0x24884; QRDY = 0x24888; PUBD = 0x2488C
WB = 0x25000; OB = 0x25200; RED = 0x25800; HB = 0x26000; HM = 0x26400; ST = 0x26600; HN = 0x26800
LDS_BYTES = 163840
EPOCH = 0; ALIVE = 0x400; POOL = 0xC000; QBUF = 0xD0000; ML = 0x6000; H2 = 0x8000; PART = 0x10000; H3 = 0x90000; DUMMY = 0xB0000; TSB = 0x100000
TAGC = 0x9E3779B9
L2E = 0x3FB8AA3B; NL2E = 0xBFB8AA3B; SCALE = 0x3DB504F3
SPIN_MAX = 1 << 16

def gen(PACE=5, PACE0=5, S=25, NG=8, touch=False, qsleep=8, early=False, hold=False, gsleep=2, XW=0, XF=0, XG=0, jitf=False, jitw=False, wqmap=False, g2=True, R1=8, R2=5, barmode="late2", pf=True, stag=3, wend=False, rr=True, noswz=False, nocomp=False, noh=False, NV=4, VSTART=2, VSTEP=2, QTH=20, MLTH=26, noroles=False, prog=False, ts=False, dry=False, wq_flags="nt", w_flags="nt", kv_flags="nt"):
    PR = 128 - 4 * S; D = 8 * PR; PRM = -(-(1 << 16) // PR)
    assert all((t * PRM) >> 16 == t // PR for t in range(D))
    L = []
    def A(s): L.append("  " + s)
    def LB(s): L.append(s + ":")
    def C(s): L.append("  ; " + s)
    def vr(a, n): return f"v[{a}:{a+n-1}]"
    def TS(k):
        if ts:
            A("s_memrealtime s[60:61]"); A("s_waitcnt lgkmcnt(0)"); A(f"s_mov_b32 s{64+k}, s60")
    def TS_flush():
        if ts:
            A("s_mov_b64 exec, -1")
            A("v_mov_b32 v250, 0")
            for k in range(16): A(f"v_writelane_b32 v250, s{64+k}, {k}")
            A("v_mbcnt_lo_u32_b32 v251, -1, 0"); A("v_mbcnt_hi_u32_b32 v251, -1, v251")
            A("s_lshl_b32 s62, s2, 3"); A("s_add_u32 s62, s62, s3"); A("s_lshl_b32 s62, s62, 6"); A(f"s_add_u32 s62, s62, {TSB}")
            A("v_lshl_add_u32 v251, v251, 2, s62")
            A("s_mov_b64 exec, 0xffff")
            A("global_store_dword v251, v250, s[26:27]")
    def dpp_red(op, xs):
        for rot in (8, 4, 2, 1):
            if len(xs) < 3: A(f"s_nop {2 - len(xs)}" if len(xs) < 2 else "s_nop 0")
            for x in xs: A(f"v_{op}_dpp v{x}, v{x}, v{x} row_ror:{rot} row_mask:0xf bank_mask:0xf")
    def swap_red(op, xs, ts_, which):
        for x, t in zip(xs, ts_): A(f"v_mov_b32 v{t}, v{x}")
        A("s_nop 1")
        for x, t in zip(xs, ts_): A(f"v_permlane{which}_swap_b32 v{x}, v{t}")
        for x, t in zip(xs, ts_): A(f"v_{op} v{x}, v{x}, v{t}")
    def unpack(dst, src):
        A(f"v_lshlrev_b32 v{dst}, 16, v{src}"); A(f"v_and_b32 v{dst+1}, 0xffff0000, v{src}")
    def bf16r(x):
        A(f"v_cvt_pk_bf16_f32 v{x}, v{x}, v{x}"); A(f"v_and_b32 v{x}, 0xffff0000, v{x}")
    def layernorm(src, f, t):
        for k in range(4): unpack(f + 2 * k, src + k)
        A(f"v_add_f32 v{t}, v{f}, v{f+1}"); A(f"v_add_f32 v{t+1}, v{f+2}, v{f+3}")
        A(f"v_add_f32 v{t+2}, v{f+4}, v{f+5}"); A(f"v_add_f32 v{t+3}, v{f+6}, v{f+7}")
        A(f"v_add_f32 v{t}, v{t}, v{t+1}"); A(f"v_add_f32 v{t+2}, v{t+2}, v{t+3}"); A(f"v_add_f32 v{t}, v{t}, v{t+2}")
        dpp_red("add_f32", [t]); swap_red("add_f32", [t], [t+1], 16); swap_red("add_f32", [t], [t+1], 32)
        A(f"v_mul_f32 v{t}, 0x3b000000, v{t}")
        A(f"v_sub_f32 v{t+2}, v{f}, v{t}"); A(f"v_mul_f32 v{t+1}, v{t+2}, v{t+2}")
        for k in range(1, 8):
            A(f"v_sub_f32 v{t+2}, v{f+k}, v{t}"); A(f"v_fmac_f32 v{t+1}, v{t+2}, v{t+2}")
        bf16r(t)
        dpp_red("add_f32", [t+1]); swap_red("add_f32", [t+1], [t+2], 16); swap_red("add_f32", [t+1], [t+2], 32)
        A(f"v_mul_f32 v{t+1}, 0x3b000000, v{t+1}")
        bf16r(t+1)
        A(f"v_add_f32 v{t+1}, 0x3727c5ac, v{t+1}")
        bf16r(t+1)
        A(f"v_sqrt_f32 v{t+1}, v{t+1}")
        for k in range(8): A(f"v_sub_f32 v{f+k}, v{f+k}, v{t}")
        bf16r(t+1)
        A(f"v_rcp_f32 v{t+1}, v{t+1}")
        for k in range(4): A(f"v_cvt_pk_bf16_f32 v{src+k}, v{f+2*k}, v{f+2*k+1}")
        for k in range(4): unpack(f + 2 * k, src + k)
        for k in range(8): A(f"v_mul_f32 v{f+k}, v{f+k}, v{t+1}")
        for k in range(4): A(f"v_cvt_pk_bf16_f32 v{src+k}, v{f+2*k}, v{f+2*k+1}")
    def transpose8(dst, src):
        for e in range(8):
            for j in range(4):
                a = src + 4 * (2 * j) + (e >> 1); b = src + 4 * (2 * j + 1) + (e >> 1)
                A(f"v_perm_b32 v{dst+4*e+j}, v{b}, v{a}, s{45 if e & 1 else 44}")
    def any_poison(regs, t):
        regs = list(regs)
        A(f"v_max3_u32 v{t}, v{regs[0]}, v{regs[1]}, v{regs[2]}" if len(regs) >= 3 else f"v_max_u32 v{t}, v{regs[0]}, v{regs[1]}")
        rest = regs[3:] if len(regs) >= 3 else []
        while len(rest) >= 2:
            A(f"v_max3_u32 v{t}, v{t}, v{rest[0]}, v{rest[1]}"); rest = rest[2:]
        if rest: A(f"v_max_u32 v{t}, v{t}, v{rest[0]}")
        A(f"v_cmp_eq_u32 vcc, -1, v{t}")
    def barrier_real(lbl):
        A("s_waitcnt lgkmcnt(0)")
        A("s_cmp_eq_u32 s46, 0"); A(f"s_cbranch_scc1 {lbl}"); A("s_barrier"); LB(lbl)
    def alive(tag):
        if wend: A("s_branch L_hdone")
        C("every workgroup reset its hand-off slots before it wrote its word here")
        A(f"v_lshlrev_b32 v4, 4, v0"); A(f"v_add_u32 v4, {ALIVE}, v4")
        A(f"s_mov_b32 s51, {SPIN_MAX}")
        LB(f"L_alive_{tag}")
        A("global_load_dwordx4 v[24:27], v4, s[26:27] sc1")
        A("s_sub_u32 s51, s51, 1"); A(f"s_cbranch_scc1 L_alive_ok_{tag}")
        A("s_waitcnt vmcnt(0)")
        for k in range(4): A(f"v_xor_b32 v{24+k}, v{24+k}, v3")
        A("v_or3_b32 v24, v24, v25, v26"); A("v_or_b32 v24, v24, v27")
        A("v_cmp_ne_u32 vcc, 0, v24"); A(f"s_cbranch_vccnz L_alive_{tag}")
        LB(f"L_alive_ok_{tag}")
        A("s_waitcnt vmcnt(0)")
    def gate_wait(lbl, lvl=1):
        A(f"v_mov_b32 v1, {GATE}")
        LB(lbl)
        A(f"s_sleep {gsleep}"); A("ds_read_b32 v2, v1"); A("s_waitcnt lgkmcnt(0)"); A("v_readfirstlane_b32 s40, v2")
        A(f"s_cmp_lt_u32 s40, {lvl}"); A(f"s_cbranch_scc1 {lbl}")

    L.append(f"; @launch grid=(256,1,1) block=(512,1,1) lds={LDS_BYTES}")
    L.append('.amdgcn_target "amdgcn-amd-amdhsa--gfx950"')
    L.append(".text"); L.append(f".globl {NAME}_kernel"); L.append(".p2align 8"); L.append(f".type {NAME}_kernel,@function")
    LB(f"{NAME}_kernel")
    A("s_cmp_ge_u32 s2, 256"); A("s_cbranch_scc1 L_end")
    A("s_load_dwordx16 s[4:19], s[0:1], 0")
    A("s_load_dwordx8 s[20:27], s[0:1], 64")
    if ts:
        for k in range(16): A(f"s_mov_b32 s{64+k}, 0")
        A("s_memrealtime s[60:61]")
    A("v_lshrrev_b32 v1, 6, v0")
    A("v_and_b32 v0, 63, v0")
    A("v_readfirstlane_b32 s3, v1")
    if pf:
        C("one idle wave pulls this kernel's code towards the L2 while the others start")
        A("s_cmp_lg_u32 s3, 5"); A("s_cbranch_scc1 L_nopf")
        A("s_getpc_b64 s[40:41]"); LB("L_pc")
        A(f"s_sub_u32 s40, s40, L_pc-{NAME}_kernel"); A("s_subb_u32 s41, s41, 0")
        A("v_lshlrev_b32 v8, 7, v0"); A(f"v_min_u32 v9, L_end-{NAME}_kernel-8192, v8")
        A("global_load_dword v10, v8, s[40:41]"); A("s_add_u32 s40, s40, 8192"); A("s_addc_u32 s41, s41, 0"); A("global_load_dword v10, v9, s[40:41]")
        LB("L_nopf")
    A("s_lshr_b32 s36, s2, 5")
    A("s_and_b32 s37, s2, 31")
    A("s_and_b32 s38, s2, 7"); A("s_lshl_b32 s38, s38, 2"); A("s_lshr_b32 s39, s37, 3"); A("s_add_u32 s38, s38, s39")
    A(f"v_mov_b32 v1, {CNT}")
    for k in range(4): A(f"v_mov_b32 v{4+k}, 0")
    A("ds_write_b128 v1, v[4:7]")
    if barmode == "entry":
        A("s_waitcnt lgkmcnt(0)"); A("s_barrier")
    A("s_cmp_ge_u32 s3, 4"); A("s_cbranch_scc1 L_helper")

    C("streaming waves: K/V tiles of 16 keys through a 4-slot LDS ring per wave")
    A("v_lshrrev_b32 v20, 4, v0")
    A("v_and_b32 v21, 15, v0")
    A("v_lshlrev_b32 v22, 1, v20")
    A("v_xor_b32 v22, v22, v21")
    A("v_lshlrev_b32 v22, 4, v22")
    A("v_lshl_add_u32 v2, v20, 8, v22")
    A("v_xor_b32 v3, 0x80, v2"); A("v_xor_b32 v4, 16, v2"); A("v_xor_b32 v5, 0x90, v2")
    if noswz:
        for i in range(4): A(f"v_lshlrev_b32 v{2+i}, 4, v0")
    C("four workgroups share a 2 MiB page of K and V (rows of 4 tiles interleaved); the last rows of all pages form a ticket pool")
    A("s_and_b32 s40, s2, 7"); A("s_lshl_b32 s41, s36, 3"); A("s_add_u32 s40, s40, s41"); A("s_lshl_b32 s40, s40, 21")
    A("s_lshl_b32 s41, s39, 14"); A("s_add_u32 s40, s40, s41")
    A("s_lshl_b32 s41, s3, 12"); A("s_add_u32 s40, s40, s41")
    A("s_lshl_b32 s41, s3, 15")
    A("s_mov_b32 s30, 0x8000000"); A("s_mov_b32 s31, 0x20000"); A("s_mov_b32 s34, 0x8000000"); A("s_mov_b32 s35, 0x20000")
    A("s_mov_b32 s42, 0x2000")
    A("s_mov_b32 s44, 4")
    A("s_waitcnt lgkmcnt(0)")
    if ts: A("s_mov_b32 s64, s60")
    A("s_mov_b32 s28, s6"); A("s_and_b32 s29, s7, 0xffff"); A("s_mov_b32 s32, s8"); A("s_and_b32 s33, s9, 0xffff")
    if barmode != "entry": A("s_barrier")
    TS(6)
    def issue_tile(pace):
        A("s_mov_b32 m0, s41")
        for i in range(4):
            A(f"s_waitcnt vmcnt({pace})"); A(f"buffer_load_dwordx4 v{2+i}, s[28:31], s40 offen offset:{i*1024} {kv_flags} lds")
        A("s_add_u32 m0, s41, 4096")
        for i in range(4):
            A(f"s_waitcnt vmcnt({pace})"); A(f"buffer_load_dwordx4 v{2+i}, s[32:35], s40 offen offset:{i*1024} {kv_flags} lds")
        A("s_add_u32 s40, s40, 65536")
    LB("L_fill")
    issue_tile(PACE0)
    A("s_xor_b32 s41, s41, s42"); A("s_xor_b32 s42, s42, 0x4000")
    if hold and not noh:
        A("s_cmp_lg_u32 s44, 4"); A("s_cbranch_scc1 L_nohold")
        A(f"v_mov_b32 v116, {PUBD}")
        LB("L_hold")
        A("ds_read_b32 v117, v116"); A("s_waitcnt lgkmcnt(0)"); A("v_readfirstlane_b32 s48, v117")
        A("s_cmp_lg_u32 s48, 0"); A("s_cbranch_scc1 L_nohold"); A("s_sleep 1"); A("s_branch L_hold")
        LB("L_nohold")
    A("s_sub_u32 s44, s44, 1"); A("s_cmp_lg_u32 s44, 0"); A("s_cbranch_scc1 L_fill")
    TS(1)
    A("s_lshl_b32 s46, s36, 24"); A("s_lshl_b32 s47, s3, 12"); A("s_add_u32 s46, s46, s47"); A(f"s_add_u32 s46, s46, {4*S*16384}")
    A("s_lshl_b32 s47, s36, 2"); A("s_add_u32 s47, s47, s3"); A("s_lshl_b32 s47, s47, 8"); A(f"s_add_u32 s47, s47, {POOL}")
    A("v_mov_b32 v122, s47"); A("v_mov_b32 v123, 1"); A("v_mov_b32 v124, 0")
    A(f"s_mov_b32 s43, {S - 4}")
    A(f"s_mov_b32 s56, {D}"); A("s_cmp_lt_u32 s37, 15"); A(f"s_cselect_b32 s56, {D - XF}, s56"); A("s_cmp_lt_u32 s37, 8"); A(f"s_cselect_b32 s56, {D - XW}, s56")
    A("v_lshlrev_b32 v23, 1, v21"); A("v_and_b32 v23, 15, v23"); A("v_lshrrev_b32 v24, 3, v21"); A("v_or_b32 v23, v23, v24")
    A("v_and_b32 v24, 1, v20"); A("v_lshlrev_b32 v24, 1, v24"); A("v_lshrrev_b32 v25, 1, v20"); A("v_or_b32 v24, v24, v25")
    A("v_xor_b32 v23, v23, v24"); A("v_lshlrev_b32 v23, 4, v23"); A("v_lshl_add_u32 v23, v21, 8, v23")
    A("v_add_u32 v6, s41, v23")
    for s in range(1, 4): A(f"v_xor_b32 v{6+s}, {s << 6}, v6")
    A("v_lshrrev_b32 v25, 2, v0")
    A("v_lshlrev_b32 v26, 1, v25"); A("v_and_b32 v26, 15, v26"); A("v_lshrrev_b32 v27, 3, v25"); A("v_or_b32 v26, v26, v27")
    A("v_bfe_u32 v27, v0, 1, 1"); A("v_xor_b32 v26, v26, v27"); A("v_lshlrev_b32 v26, 4, v26")
    A("v_lshl_add_u32 v26, v25, 8, v26")
    A("v_and_b32 v27, 1, v0"); A("v_lshl_add_u32 v26, v27, 3, v26")
    A("s_add_u32 s44, s41, 4096")
    A("v_add_u32 v10, s44, v26")
    for t in range(1, 8): A(f"v_xor_b32 v{10+t}, {t << 5}, v10")
    A("v_and_b32 v25, 3, v21"); A("v_lshlrev_b32 v25, 8, v25"); A("v_lshl_add_u32 v25, v24, 4, v25"); A(f"v_add_u32 v108, {QL}, v25")
    A("v_mov_b32 v18, 0xff7fffff"); A("v_mov_b32 v19, 0x7f7fffff"); A("v_mov_b32 v109, 0")
    for k in range(32): A(f"v_mov_b32 v{76+k}, 0")
    A(f"s_mov_b32 s45, {L2E}"); A("s_mov_b32 s44, 4"); A("s_mov_b32 s54, 0x2000"); A("s_mov_b32 s55, 4")
    if ts: A("s_mov_b32 s51, 0")
    A(f"v_mov_b32 v116, {QRDY}")
    A("s_mov_b32 s52, 0"); A(f"s_mov_b32 s53, {VSTART}")
    if noh: A("s_branch L_qok")
    C("while q is not there yet, keep streaming: park up to NV more tiles in registers")
    for k in range(NV):
        A("ds_read_b32 v117, v116"); A("s_waitcnt lgkmcnt(0)"); A("v_readfirstlane_b32 s48, v117")
        A("s_cmp_lg_u32 s48, 0"); A("s_cbranch_scc1 L_qok")
        for i in range(8):
            A(f"s_waitcnt vmcnt({PACE0})"); A(f"buffer_load_dwordx4 {vr(128+32*k+4*i,4)}, v{2+(i&3)}, s[{28 if i < 4 else 32}:{31 if i < 4 else 35}], s40 offen offset:{(i&3)*1024} {kv_flags}")
        A("s_add_u32 s40, s40, 65536"); A("s_add_u32 s52, s52, 1"); A("s_sub_u32 s43, s43, 1")
    LB("L_qwait")
    A("ds_read_b32 v117, v116"); A("s_waitcnt lgkmcnt(0)"); A("v_readfirstlane_b32 s48, v117")
    A("s_cmp_lg_u32 s48, 0"); A("s_cbranch_scc1 L_qok"); A("s_sleep 1"); A("s_branch L_qwait")
    LB("L_qok")
    if ts: A("s_add_u32 s51, s51, s52"); A("s_mov_b32 s77, s52")
    TS(2)
    for s in range(4): A(f"ds_read_b128 {vr(24+4*s,4)}, v108 offset:{64*s}")
    LB("L_tile")
    A("s_waitcnt vmcnt(24)")
    A("s_cmp_gt_u32 s44, 3"); A("s_cbranch_scc1 L_go")
    A("s_waitcnt vmcnt(16)"); A("s_cmp_gt_u32 s44, 2"); A("s_cbranch_scc1 L_go")
    A("s_waitcnt vmcnt(8)"); A("s_cmp_gt_u32 s44, 1"); A("s_cbranch_scc1 L_go")
    A("s_waitcnt vmcnt(0)")
    TS(3)
    LB("L_go")
    if nocomp: A("s_branch L_skipc")
    for s in range(4): A(f"ds_read_b128 {vr(40+4*s,4)}, v{6+s}")
    for t in range(8): A(f"ds_read_b64_tr_b16 {vr(56+2*t,2)}, v{10+t}")
    for s in range(4):
        A(f"s_waitcnt lgkmcnt({11-s})")
        A(f"v_mfma_f32_16x16x32_bf16 v[72:75], {vr(40+4*s,4)}, {vr(24+4*s,4)}, {'0' if s == 0 else 'v[72:75]'}")
    for k in range(12): A(f"v_xor_b32 v{6+k}, s54, v{6+k}")
    A("v_cvt_pk_bf16_f32 v110, v72, v73"); A("v_cvt_pk_bf16_f32 v111, v74, v75")
    unpack(112, 110); unpack(114, 111)
    for k in range(4): A(f"v_mul_f32 v{112+k}, {SCALE:#x}, v{112+k}")
    A("v_cvt_pk_bf16_f32 v110, v112, v113"); A("v_cvt_pk_bf16_f32 v111, v114, v115")
    unpack(112, 110); unpack(114, 111)
    A("v_max3_f32 v116, v112, v113, v114"); A("v_max3_f32 v116, v116, v115, v18")
    swap_red("max_f32", [116], [117], 16); swap_red("max_f32", [116], [117], 32)
    A(f"v_mul_f32 v117, {NL2E:#x}, v116"); A("v_floor_f32 v117, v117")
    A("v_cmp_lt_f32 vcc, v117, v19")
    A("v_sub_f32 v118, v117, v19")
    for k in range(4): A(f"v_fma_f32 v{112+k}, v{112+k}, s45, v117")
    A("v_exp_f32 v118, v118")
    for k in range(4): A(f"v_exp_f32 v{112+k}, v{112+k}")
    A("v_mov_b32 v18, v116"); A("v_mov_b32 v19, v117")
    A("s_cbranch_vccz L_nors")
    for k in range(16): A(f"v_pk_mul_f32 {vr(76+2*k,2)}, {vr(76+2*k,2)}, v[118:119] op_sel_hi:[1,0]")
    LB("L_nors")
    A("v_add_f32 v116, v112, v113"); A("v_add_f32 v117, v114, v115")
    A("v_cvt_pk_bf16_f32 v120, v112, v113"); A("v_cvt_pk_bf16_f32 v121, v114, v115")
    A("v_add_f32 v116, v116, v117"); A("v_fma_f32 v109, v109, v118, v116")
    A("s_waitcnt lgkmcnt(0)")
    for t in range(8): A(f"v_mfma_f32_16x16x16_bf16 {vr(76+4*t,4)}, {vr(56+2*t,2)}, v[120:121], {vr(76+4*t,4)}")
    LB("L_skipc")
    if NV:
        A("s_cmp_eq_u32 s52, 0"); A("s_cbranch_scc1 L_nopark")
        A("s_sub_u32 s53, s53, 1"); A("s_cmp_lg_u32 s53, 0"); A("s_cbranch_scc1 L_nopark")
        C("move a parked tile into the slot that just became free and run it")
        A(f"s_mov_b32 s53, {VSTEP + 1}"); A("s_sub_u32 s52, s52, 1")
        A("v_lshl_add_u32 v116, v0, 4, s41")
        A("s_waitcnt vmcnt(8)")
        for k in range(NV):
            if k < NV - 1: A(f"s_cmp_lg_u32 s52, {k}"); A(f"s_cbranch_scc1 L_pk{k}")
            for i in range(8): A(f"ds_write_b128 v116, {vr(128+32*k+4*i,4)} offset:{1024*i}")
            if k < NV - 1: A("s_branch L_pkd"); LB(f"L_pk{k}")
        LB("L_pkd")
        for k in range(12): A(f"v_xor_b32 v{6+k}, s54, v{6+k}")
        A("s_branch L_go")
        LB("L_nopark")
    A("s_xor_b32 s54, s54, 0x4000")
    C("s55: wanted number of tiles in the ring (4 at first, 2 later so that nothing waits unprocessed at the end, 0 when the pool is empty)")
    A(f"s_cmp_gt_u32 s43, {R1}"); A("s_cbranch_scc1 L_keep")
    A("s_cmp_lg_u32 s52, 0"); A("s_cbranch_scc1 L_keep")
    A(f"s_cmp_gt_u32 s43, {R2}"); A("s_cselect_b32 s48, 3, 2"); A("s_min_u32 s55, s55, s48")
    A("s_cmp_gt_u32 s44, s55"); A("s_cbranch_scc1 L_drain")
    LB("L_keep")
    A("s_cmp_eq_u32 s43, 0"); A("s_cbranch_scc1 L_dyn")
    A("s_sub_u32 s43, s43, 1"); A("s_cmp_eq_u32 s43, 0"); A("s_cbranch_scc0 L_issue")
    A("s_branch L_ticket")
    LB("L_dyn")
    A("s_waitcnt vmcnt(8)")
    A("v_readfirstlane_b32 s48, v124")
    A(f"s_cmp_ge_u32 s48, {D}"); A("s_cbranch_scc1 L_empty")
    if rr: A("s_and_b32 s49, s48, 7"); A("s_lshr_b32 s50, s48, 3")
    else: A(f"s_mul_i32 s49, s48, {PRM}"); A("s_lshr_b32 s49, s49, 16"); A(f"s_mul_i32 s50, s49, {PR}"); A("s_sub_u32 s50, s48, s50")
    A("s_lshl_b32 s49, s49, 21"); A("s_lshl_b32 s50, s50, 14"); A("s_add_u32 s40, s46, s49"); A("s_add_u32 s40, s40, s50")
    if XG:
        A(f"s_cmp_lt_u32 s48, {D - XG}"); A("s_cbranch_scc1 L_nog")
        A(f"v_mov_b32 v116, {GATE}"); A("ds_write_b32 v116, v123")
        LB("L_nog")
    if XW or XF:
        A("s_cmp_lt_u32 s48, s56"); A("s_cbranch_scc1 L_ticket")
        A(f"v_mov_b32 v124, {D}"); A("s_branch L_issue")
    LB("L_ticket")
    A("s_mov_b64 exec, 1")
    A("global_atomic_add v124, v122, v123, s[26:27] sc0 sc1")
    A("s_mov_b64 exec, -1")
    LB("L_issue")
    issue_tile(PACE)
    A("s_xor_b32 s41, s41, s42"); A("s_xor_b32 s42, s42, 0x4000")
    if prog:
        A("s_add_u32 s51, s51, 1")
        for k, r in enumerate((4, 8, 12, 16, 20, 24, 28)):
            A(f"s_cmp_eq_u32 s51, {r}"); A(f"s_cbranch_scc0 L_pg{k}"); TS(7 + k); LB(f"L_pg{k}")
    A("s_branch L_tile")
    LB("L_empty")
    A(f"v_mov_b32 v116, {GATE}"); A("ds_write_b32 v116, v123"); A("s_mov_b32 s55, 0")
    if ts: A("s_add_u32 s79, s51, 4"); TS(14)
    LB("L_drain")
    A("s_sub_u32 s44, s44, 1"); A("s_cmp_lg_u32 s44, 0"); A("s_cbranch_scc1 L_tile")
    TS(4)
    C("epilogue: merge the four waves' partial results, publish")
    swap_red("add_f32", [109], [116], 16); swap_red("add_f32", [109], [116], 32)
    A("s_lshl_b32 s44, s3, 11"); A(f"s_add_u32 s44, s44, {SP}")
    A("v_lshlrev_b32 v116, 9, v21"); A("v_lshl_add_u32 v116, v20, 4, v116"); A("v_add_u32 v116, s44, v116")
    A("s_lshl_b32 s44, s3, 5"); A(f"s_add_u32 s44, s44, {SML}")
    A("v_lshl_add_u32 v117, v21, 3, s44")
    A("v_mov_b32 v108, v19")
    A("s_mov_b32 exec_lo, 0x000f000f"); A("s_mov_b32 exec_hi, 0x000f000f")
    for t in range(8): A(f"ds_write_b128 v116, {vr(76+4*t,4)} offset:{64*t}")
    A("ds_write_b64 v117, v[108:109]")
    A("s_mov_b64 exec, 1")
    A(f"v_mov_b32 v110, {CNT}"); A("v_mov_b32 v111, 1")
    A("s_waitcnt lgkmcnt(0)")
    A("ds_add_rtn_u32 v111, v110, v111")
    A("s_mov_b64 exec, -1")
    A(f"v_lshlrev_b32 v116, 5, v0"); A(f"v_add_u32 v116, {SP}, v116")
    A(f"v_lshlrev_b32 v118, 3, v20"); A(f"v_add_u32 v118, {SML}, v118")
    A("s_lshl_b32 s44, s36, 15"); A("s_lshl_b32 s47, s38, 8"); A("s_add_u32 s44, s44, s47"); A(f"s_add_u32 s44, s44, {PART}")
    A("v_lshlrev_b32 v112, 13, v20"); A("v_lshl_add_u32 v112, v21, 4, v112"); A("v_add_u32 v112, s44, v112")
    A("s_lshl_b32 s44, s36, 10"); A("s_lshl_b32 s47, s38, 3"); A("s_add_u32 s44, s44, s47"); A(f"s_add_u32 s44, s44, {ML}")
    A("v_lshl_add_u32 v113, v20, 8, s44")
    A("s_waitcnt lgkmcnt(0)")
    A("v_readfirstlane_b32 s44, v111")
    A("s_cmp_eq_u32 s44, 3"); A("s_cbranch_scc0 L_sdone")
    for w in range(4): A(f"ds_read_b64 {vr(24+2*w,2)}, v118 offset:{32*w}")
    for w in range(4):
        A(f"ds_read_b128 {vr(40+8*w,4)}, v116 offset:{2048*w}"); A(f"ds_read_b128 {vr(44+8*w,4)}, v116 offset:{2048*w+16}")
    A("s_waitcnt lgkmcnt(8)")
    A("v_min3_f32 v32, v24, v26, v28"); A("v_min_f32 v32, v32, v30")
    for w in range(4): A(f"v_sub_f32 v{24+2*w}, v32, v{24+2*w}")
    for w in range(4): A(f"v_exp_f32 v{24+2*w}, v{24+2*w}")
    A("s_waitcnt lgkmcnt(6)")
    for k in range(4): A(f"v_pk_mul_f32 {vr(40+2*k,2)}, {vr(40+2*k,2)}, v[24:25] op_sel_hi:[1,0]")
    for w in range(1, 4):
        A(f"s_waitcnt lgkmcnt({6 - 2*w})")
        for k in range(4): A(f"v_pk_fma_f32 {vr(40+2*k,2)}, {vr(40+8*w+2*k,2)}, {vr(24+2*w,2)}, {vr(40+2*k,2)} op_sel_hi:[1,0,1]")
    for k in range(4): A(f"v_cvt_pk_bf16_f32 v{40+k}, v{40+2*k}, v{41+2*k}")
    A("global_store_dwordx4 v112, v[40:43], s[26:27] sc1")
    A("v_mul_f32 v33, v24, v25")
    for w in range(1, 4): A(f"v_fmac_f32 v33, v{24+2*w}, v{25+2*w}")
    A("s_mov_b32 exec_lo, 0x00010001"); A("s_mov_b32 exec_hi, 0x00010001")
    A("global_store_dwordx2 v113, v[32:33], s[26:27] sc1")
    A(f"v_mov_b32 v116, {GATE}"); A("v_mov_b32 v117, 2"); A("ds_write_b32 v116, v117")
    LB("L_sdone")
    TS(5)
    TS_flush()
    A("s_endpgm")

    LB("L_helper")
    if noh: A("s_endpgm")
    A("s_mov_b32 s47, s39")
    A("s_mov_b32 s50, s39")
    A("s_cmp_eq_u32 s37, 15"); A("s_cselect_b32 s47, 3, s47")
    A("s_sub_u32 s39, s3, 4")
    A("s_and_b32 s48, s37, 7")
    A("s_mul_i32 s59, s36, 7"); A("s_add_u32 s59, s59, s48")
    A("s_lshl_b32 s49, s48, 3"); A("s_add_u32 s49, s49, s36")
    A("v_lshrrev_b32 v20, 4, v0"); A("v_and_b32 v21, 15, v0")
    A("v_lshrrev_b32 v22, 3, v21"); A("v_and_b32 v23, 7, v21")
    A("v_mov_b32 v16, 0")
    A("s_mov_b32 s44, 0x05040100"); A("s_mov_b32 s45, 0x07060302")
    A(f"s_mov_b32 s46, {0 if dry else 1}")
    A("s_cmp_eq_u32 s39, 0"); A("s_cbranch_scc1 L_w4")
    A("s_cmp_ge_u32 s47, 2"); A("s_cbranch_scc1 L_end")
    A("s_waitcnt lgkmcnt(0)")
    if ts: A("s_mov_b32 s64, s60")
    if barmode != "entry": A("s_barrier")
    A("global_load_dword v3, v16, s[26:27] sc1")
    if not early:
        A(f"v_mov_b32 v1, {QRDY}")
        LB("L_hq")
        A("s_sleep 4"); A("ds_read_b32 v2, v1"); A("s_waitcnt lgkmcnt(0)"); A("v_readfirstlane_b32 s40, v2")
        A("s_cmp_eq_u32 s40, 0"); A("s_cbranch_scc1 L_hq")
    A("s_waitcnt vmcnt(0)")
    A(f"v_add_u32 v3, {TAGC:#x}, v3")
    A("s_branch L_roles")

    LB("L_w4")
    C("first helper wave: 128 rows x 64 columns of LN(x) @ wq; reset this workgroup's hand-off slots; gather q")
    A("s_setprio 3")
    A("v_lshlrev_b32 v1, 4, v0")
    A("v_lshlrev_b32 v2, 19, v22"); A("v_lshl_add_u32 v2, v20, 16, v2"); A("v_lshl_add_u32 v2, v23, 4, v2")
    if wqmap:
        A("s_and_b32 s58, s48, 1"); A("s_lshl_b32 s58, s58, 2"); A("s_add_u32 s58, s58, s50"); A("s_lshr_b32 s50, s48, 1")
    else: A("s_mov_b32 s58, s48")
    A("s_lshl_b32 s52, s50, 20"); A("s_lshl_b32 s41, s36, 10"); A("s_add_u32 s52, s52, s41"); A("s_lshl_b32 s41, s58, 7"); A("s_add_u32 s52, s52, s41")
    A("s_mov_b32 s30, 0x400000"); A("s_mov_b32 s31, 0x20000")
    A("s_waitcnt lgkmcnt(0)")
    if ts: A("s_mov_b32 s64, s60")
    A("global_load_dwordx4 v[4:7], v1, s[4:5]")
    A("s_mov_b32 s28, s10"); A("s_and_b32 s29, s11, 0xffff")
    for k in range(16):
        A(f"buffer_load_dwordx4 {vr(160+4*k,4)}, v2, s[28:31], s52 offen {wq_flags}")
        if k < 15: A(f"s_add_u32 s52, s52, {8192 if k != 7 else 25 * 8192}")
    A("global_load_dword v3, v16, s[26:27] sc1")
    if barmode == "late": A("s_barrier")
    for k in range(4): A(f"v_mov_b32 v{8+k}, -1")
    A("s_lshl_b32 s40, s36, 15"); A("s_lshl_b32 s41, s38, 8"); A("s_add_u32 s40, s40, s41"); A(f"s_add_u32 s40, s40, {PART}")
    A("v_lshlrev_b32 v12, 13, v20"); A("v_lshl_add_u32 v12, v21, 4, v12"); A("v_add_u32 v12, s40, v12")
    A("s_lshl_b32 s40, s36, 10"); A("s_lshl_b32 s41, s38, 3"); A("s_add_u32 s40, s40, s41"); A(f"s_add_u32 s40, s40, {ML}")
    A("v_lshl_add_u32 v13, v20, 8, s40")
    A("s_lshl_b32 s40, s48, 11"); A("s_lshl_b32 s41, s36, 8"); A("s_add_u32 s40, s40, s41"); A(f"s_add_u32 s40, s40, {H2}")
    A("v_lshl_add_u32 v14, v21, 4, s40")
    A("s_lshl_b32 s41, s49, 7"); A(f"s_add_u32 s41, s41, {H3}")
    A("v_lshrrev_b32 v15, 3, v0"); A("v_mul_u32_u24 v15, 7168, v15"); A("v_and_b32 v17, 7, v0"); A("v_lshl_add_u32 v15, v17, 4, v15"); A("v_add_u32 v15, s41, v15")
    A(f"v_add_u32 v17, {8*7168}, v15")
    A("s_lshl_b32 s40, s36, 10"); A(f"s_add_u32 s40, s40, {POOL}"); A("v_and_b32 v19, 3, v0"); A("v_lshl_add_u32 v19, v19, 8, s40")
    A("global_store_dwordx4 v12, v[8:11], s[26:27] sc1")
    A("s_mov_b32 exec_lo, 0x00010001"); A("s_mov_b32 exec_hi, 0x00010001")
    A("global_store_dwordx2 v13, v[8:9], s[26:27] sc1")
    A("s_mov_b64 exec, 0xffff")
    A("s_cmp_lg_u32 s47, 0"); A("s_cbranch_scc1 L_w4n")
    A("global_store_dwordx4 v14, v[8:11], s[26:27] sc1")
    LB("L_w4n")
    A("s_mov_b64 exec, -1")
    A("s_cmp_lg_u32 s47, 1"); A("s_cbranch_scc1 L_w4a")
    A("global_store_dwordx4 v15, v[8:11], s[26:27] sc1"); A("global_store_dwordx4 v17, v[8:11], s[26:27] sc1")
    LB("L_w4a")
    A("s_cmp_lg_u32 s37, 31"); A("s_cbranch_scc1 L_w4b")
    A("s_mov_b64 exec, 15")
    A("global_store_dword v19, v16, s[26:27] sc1")
    A("s_mov_b64 exec, -1")
    LB("L_w4b")
    if barmode == "late2": A("s_barrier")
    TS(11)
    A(f"v_add_u32 v10, {HN}, v1")
    A("s_lshl_b32 s40, s50, 8"); A(f"s_add_u32 s40, s40, {HN}")
    A("v_lshlrev_b32 v11, 7, v22"); A("v_lshl_add_u32 v11, v20, 4, v11"); A("v_add_u32 v11, s40, v11")
    A("v_lshlrev_b32 v13, 8, v22"); A("v_lshl_add_u32 v13, v23, 5, v13"); A(f"v_add_u32 v13, {SP}, v13")
    A(f"v_lshlrev_b32 v14, 2, v0"); A(f"v_add_u32 v18, {QL}, v14"); A(f"v_add_u32 v14, {SP}, v14")
    A("s_lshl_b32 s40, s36, 14"); A(f"s_add_u32 s40, s40, {QBUF + 4096}")
    A("v_add_u32 v17, s40, v1"); A("v_add_u32 v19, 0x2000, v17")
    A("s_lshl_b32 s41, s50, 12"); A("s_add_u32 s40, s40, s41"); A("s_lshl_b32 s41, s58, 9"); A("s_add_u32 s40, s40, s41"); A("s_sub_u32 s40, s40, 4096")
    A("v_lshl_add_u32 v15, v0, 3, s40")
    A("s_lshl_b32 s40, s2, 2"); A(f"s_add_u32 s40, s40, {ALIVE}"); A("v_mov_b32 v12, s40")
    A("s_waitcnt vmcnt(19)")
    TS(1)
    layernorm(4, 24, 32)
    A("ds_write_b128 v10, v[4:7]")
    A("ds_read_b128 v[40:43], v11"); A("ds_read_b128 v[44:47], v11 offset:64")
    A("s_waitcnt vmcnt(11)")
    transpose8(96, 160)
    A("s_waitcnt lgkmcnt(0)")
    for e in range(8): A(f"v_mfma_f32_16x16x32_bf16 {vr(48+4*e,4)}, v[40:43], {vr(96+4*e,4)}, 0")
    A("s_waitcnt vmcnt(3)")
    TS(2)
    transpose8(128, 192)
    A("s_nop 1")
    for e in range(8): A(f"v_mfma_f32_16x16x32_bf16 {vr(48+4*e,4)}, v[44:47], {vr(128+4*e,4)}, {vr(48+4*e,4)}")
    A("s_mov_b32 exec_lo, 0xff"); A("s_mov_b32 exec_hi, 0xff00")
    A("s_nop 5")
    for e in range(0, 8, 2): A(f"ds_write2_b32 v13, v{48+4*e}, v{52+4*e} offset0:{e} offset1:{e+1}")
    A("s_mov_b64 exec, -1")
    A("ds_read2_b32 v[24:25], v14 offset0:0 offset1:64")
    A("s_waitcnt vmcnt(0)")
    A(f"v_add_u32 v3, {TAGC:#x}, v3")
    A("s_waitcnt lgkmcnt(0)")
    A("v_add_f32 v2, v24, v25")
    A("global_store_dwordx2 v15, v[2:3], s[26:27] sc1")
    A("s_mov_b64 exec, 1")
    A("global_store_dword v12, v3, s[26:27] sc1")
    A(f"v_mov_b32 v12, {PUBD}"); A("ds_write_b32 v12, v12")
    A("s_mov_b64 exec, -1")
    TS(3)
    A(f"s_mov_b32 s51, {SPIN_MAX}")
    def qload(r):
        for i in range(16): A(f"global_load_dwordx4 {vr(r+4*i,4)}, v{17 if i < 8 else 19}, s[26:27] offset:{(i % 8) * 1024 - 4096} sc1")
    def qcheck(r):
        A(f"v_xor_b32 v24, v{r+1}, v3"); A(f"v_xor_b32 v25, v{r+3}, v3")
        ws = [r + 4 * i + k for i in range(1, 16) for k in (1, 3)]
        for n, w in enumerate(ws):
            A(f"v_xor_b32 v26, v{w}, v3"); A(f"v_or_b32 v{24 + (n & 1)}, v{24 + (n & 1)}, v26")
        A("v_or_b32 v24, v24, v25"); A("v_cmp_ne_u32 vcc, 0, v24")
    def qsum(r):
        for k in range(4):
            for h in (0, 2):
                A(f"v_add_f32 v{r+4*k+h}, v{r+4*k+h}, v{r+16+4*k+h}"); A(f"v_add_f32 v{r+32+4*k+h}, v{r+32+4*k+h}, v{r+48+4*k+h}")
        for k in range(4):
            for h in (0, 2): A(f"v_add_f32 v{r+4*k+h}, v{r+4*k+h}, v{r+32+4*k+h}")
        for k in range(4): A(f"v_cvt_pk_bf16_f32 v{24+k}, v{r+4*k}, v{r+4*k+2}")
    C("the group's 32 words announce the partial q stores; the tags inside the data are what is trusted")
    A("s_lshl_b32 s40, s36, 7"); A(f"s_add_u32 s40, s40, {ALIVE}"); A("v_and_b32 v12, 31, v0"); A("v_lshl_add_u32 v12, v12, 2, s40")
    A("global_load_dword v28, v12, s[26:27] sc1")
    A(f"s_sleep {qsleep}")
    LB("L_qhint")
    A("global_load_dword v29, v12, s[26:27] sc1")
    A("s_waitcnt vmcnt(1)")
    A("v_cmp_eq_u32 vcc, v28, v3"); A("s_bcnt1_i32_b32 s40, vcc_lo"); A(f"s_cmp_ge_u32 s40, {QTH}"); A("s_cbranch_scc1 L_qgo")
    A("global_load_dword v28, v12, s[26:27] sc1")
    A("s_waitcnt vmcnt(1)")
    A("v_cmp_eq_u32 vcc, v29, v3"); A("s_bcnt1_i32_b32 s40, vcc_lo")
    A("s_sub_u32 s51, s51, 1"); A("s_cbranch_scc1 L_qgo")
    A(f"s_cmp_lt_u32 s40, {QTH}"); A("s_cbranch_scc1 L_qhint")
    LB("L_qgo")
    TS(12)
    A("s_mov_b32 s55, 0xffff")
    LB("L_qpoll")
    for i in range(16):
        A(f"s_bitcmp1_b32 s55, {i}"); A(f"s_cbranch_scc0 L_qs{i}")
        A(f"global_load_dwordx4 {vr(96+4*i,4)}, v{17 if i < 8 else 19}, s[26:27] offset:{(i % 8) * 1024 - 4096} sc1")
        LB(f"L_qs{i}")
    A("s_waitcnt vmcnt(0)")
    for i in range(16):
        A(f"v_cmp_ne_u32 vcc, v{97+4*i}, v3"); A(f"v_cmp_ne_u32 s[40:41], v{99+4*i}, v3"); A("s_or_b64 vcc, vcc, s[40:41]")
        A(f"s_cbranch_scc1 L_qc{i}"); A(f"s_bitset0_b32 s55, {i}"); LB(f"L_qc{i}")
    A("s_sub_u32 s51, s51, 1"); A("s_cbranch_scc1 L_qgot")
    A("s_cmp_lg_u32 s55, 0"); A("s_cbranch_scc1 L_qpoll")
    LB("L_qgot")
    qsum(96)
    A("ds_write2_b32 v18, v24, v25 offset0:0 offset1:64"); A("ds_write2_b32 v18, v26, v27 offset0:128 offset1:192")
    A(f"v_mov_b32 v18, {QRDY}"); A("v_mov_b32 v19, 1")
    A("ds_write_b32 v18, v19")
    A("s_waitcnt lgkmcnt(0)")
    A("s_setprio 0")
    TS(4)
    if touch:
        A("v_lshlrev_b32 v4, 21, v0"); A("s_lshl_b32 s40, s36, 24"); A(f"s_add_u32 s40, s40, {0x200000 - 128}"); A("v_add_u32 v4, s40, v4")
        A("s_mov_b64 exec, 0xff")
        A("global_load_dword v240, v4, s[6:7] nt"); A("global_load_dword v240, v4, s[8:9] nt")
        A("s_mov_b64 exec, -1")
    A("s_waitcnt vmcnt(0)")
    LB("L_roles")
    if noroles: A("s_branch L_hdone")
    A("s_cmp_eq_u32 s47, 1"); A("s_cbranch_scc1 L_ffn")
    A("s_cmp_eq_u32 s47, 0"); A("s_cbranch_scc0 L_hdone")
    A("s_mov_b32 s40, s36"); A("s_mov_b32 s36, s48"); A("s_mov_b32 s48, s40")

    C("wo role: merge 32 splits of one kv group, multiply by a 512x64 block of wo")
    A("s_lshl_b32 s40, s36, 2"); A("s_add_u32 s40, s40, s39")
    A("s_lshl_b32 s41, s40, 17"); A("s_lshl_b32 s42, s48, 7"); A("s_add_u32 s41, s41, s42"); A("s_add_u32 s41, s41, 4096")
    A("s_add_u32 s52, s12, s41"); A("s_addc_u32 s53, s13, 0")
    A("v_lshlrev_b32 v58, 16, v22"); A("v_lshl_add_u32 v58, v20, 13, v58"); A("v_lshl_add_u32 v58, v23, 4, v58"); A("v_add_u32 v59, 0x8000, v58")
    def wo_weights():
        if jitw: gate_wait("L_w_jit", 1); TS(11)
        for s in range(2):
            for i in range(8): A(f"global_load_dwordx4 {vr(160+32*s+4*i,4)}, v{58+s}, s[52:53] offset:{1024*i-4096} {w_flags}")
            if not jitw: A("s_waitcnt vmcnt(0)")
        for s in range(2):
            A(f"s_waitcnt vmcnt({8 - 8*s})")
            transpose8(96 + 32 * s, 160 + 32 * s)
        TS(5)
    if not jitw: wo_weights()
    alive("w")
    A("s_lshl_b32 s41, s40, 13"); A(f"s_add_u32 s41, s41, {PART}")
    A("v_lshlrev_b32 v14, 4, v21"); A("v_lshl_add_u32 v4, v20, 11, v14"); A("v_add_u32 v4, s41, v4")
    A("s_lshl_b32 s41, s40, 8"); A(f"s_add_u32 s41, s41, {ML}")
    A("v_and_b32 v8, 31, v0"); A("v_lshl_add_u32 v6, v8, 3, s41")
    A("s_lshl_b32 s41, s39, 6"); A(f"s_add_u32 s41, s41, {WB}")
    A("v_lshl_add_u32 v9, v8, 1, s41"); A("v_lshl_add_u32 v10, v20, 4, s41")
    A("s_lshl_b32 s41, s39, 8"); A(f"s_add_u32 s41, s41, {OB}")
    A("v_add_u32 v11, s41, v14")
    A("v_lshlrev_b32 v12, 7, v22"); A("v_lshl_add_u32 v12, v20, 4, v12"); A("v_add_u32 v12, s41, v12")
    A("s_lshl_b32 s41, s39, 9"); A(f"s_add_u32 s41, s41, {RED}")
    A("v_lshlrev_b32 v13, 8, v22"); A("v_lshl_add_u32 v13, v23, 5, v13"); A("v_add_u32 v13, s41, v13")
    A(f"v_add_u32 v15, {RED}, v14")
    A("s_lshl_b32 s41, s36, 11"); A("s_lshl_b32 s42, s48, 8"); A("s_add_u32 s54, s41, s42")
    if jitw: wo_weights()
    if not dry: gate_wait("L_wo_gate0", 2 if g2 else 1); TS(8)
    LB("L_wo_pass")
    A(f"s_mov_b32 s41, {H2}"); A("s_cmp_eq_u32 s46, 0"); A(f"s_cmov_b32 s41, {DUMMY}"); A("s_add_u32 s41, s41, s54")
    A("v_add_u32 v7, s41, v14")
    A(f"s_mov_b32 s51, {SPIN_MAX}")
    LB("L_wo_ml")
    A("global_load_dwordx2 v[80:81], v6, s[26:27] sc1")
    A("s_waitcnt vmcnt(0)")
    any_poison([80, 81], 84)
    A("s_bcnt1_i32_b32 s57, vcc_lo")
    A("s_cmp_eq_u32 s46, 0"); A("s_cbranch_scc1 L_wo_go")
    A("s_sub_u32 s51, s51, 1"); A("s_cbranch_scc1 L_wo_go")
    A(f"s_cmp_gt_u32 s57, {32 - MLTH}"); A("s_cbranch_scc1 L_wo_ml")
    LB("L_wo_go")
    TS(9)
    def wload(r, m):
        A(f"global_load_dwordx2 {vr(m,2)}, v6, s[26:27] sc1")
        for i in range(8): A(f"global_load_dwordx4 {vr(r+4*i,4)}, v4, s[26:27] offset:{256*i} sc1")
    def wcheck(r, m): any_poison([m, m+1] + list(range(r, r + 32)), 84)
    wload(16, 80)
    if stag: A(f"s_sleep {stag}")
    LB("L_wo_poll")
    if ts: A("s_add_u32 s79, s79, 1")
    wload(48, 82)
    A("s_waitcnt vmcnt(9)")
    wcheck(16, 80)
    A("s_cbranch_vccz L_wo_gotA")
    wload(16, 80)
    A("s_waitcnt vmcnt(9)")
    wcheck(48, 82)
    A("s_cmp_eq_u32 s46, 0"); A("s_cbranch_scc1 L_wo_gotB")
    A("s_sub_u32 s51, s51, 1"); A("s_cbranch_scc1 L_wo_gotB")
    A("s_cbranch_vccnz L_wo_poll")
    def wcomb(r, m):
        TS(6)
        A(f"v_mov_b32 v84, v{m}")
        P = []
        for e in range(8):
            for j in range(4):
                x = r + 4 * (2 * j) + (e >> 1); y = r + 4 * (2 * j + 1) + (e >> 1)
                P.append(f"v_perm_b32 v{160+4*e+j}, v{y}, v{x}, s{45 if e & 1 else 44}")
        def fill(n):
            for _ in range(n): A(P.pop(0))
        for rot in (8, 4, 2, 1):
            fill(2); A(f"v_min_f32_dpp v84, v84, v84 row_ror:{rot} row_mask:0xf bank_mask:0xf")
        A("v_mov_b32 v85, v84"); fill(2); A("v_permlane16_swap_b32 v84, v85"); A("v_min_f32 v84, v84, v85")
        A(f"v_sub_f32 v84, v84, v{m}"); A("v_exp_f32 v84, v84"); fill(1)
        A("v_cvt_pk_bf16_f32 v86, v84, v84")
        A("ds_write_b16 v9, v86"); A("ds_read_b128 v[88:91], v10")
        A(f"v_mul_f32 v85, v84, v{m+1}")
        for rot in (8, 4, 2, 1):
            fill(2); A(f"v_add_f32_dpp v85, v85, v85 row_ror:{rot} row_mask:0xf bank_mask:0xf")
        A("v_mov_b32 v86, v85"); fill(2); A("v_permlane16_swap_b32 v85, v86"); A("v_add_f32 v85, v85, v86")
        A("v_rcp_f32 v85, v85")
        fill(len(P))
    LB("L_wo_gotB")
    wcomb(48, 82)
    A("s_cmp_eq_u32 s46, 0"); A("s_cbranch_scc0 L_wo_got")
    LB("L_wo_gotA")
    wcomb(16, 80)
    LB("L_wo_got")
    A("s_waitcnt lgkmcnt(0)")
    for e in range(8): A(f"v_mfma_f32_16x16x32_bf16 {vr(192+4*e,4)}, v[88:91], {vr(160+4*e,4)}, 0")
    A("s_nop 0")
    for e in range(8): A(f"v_mul_f32 v{192+4*e}, v{192+4*e}, v85")
    for k in range(4): A(f"v_cvt_pk_bf16_f32 v{88+k}, v{192+8*k}, v{196+8*k}")
    A("ds_write_b128 v11, v[88:91]")
    A("ds_read_b128 v[160:163], v12"); A("ds_read_b128 v[164:167], v12 offset:64")
    A("s_waitcnt lgkmcnt(1)")
    for e in range(8): A(f"v_mfma_f32_16x16x32_bf16 {vr(192+4*e,4)}, v[160:163], {vr(96+4*e,4)}, 0")
    A("s_waitcnt lgkmcnt(0)")
    for e in range(8): A(f"v_mfma_f32_16x16x32_bf16 {vr(192+4*e,4)}, v[164:167], {vr(128+4*e,4)}, {vr(192+4*e,4)}")
    A("s_mov_b32 exec_lo, 0xff"); A("s_mov_b32 exec_hi, 0xff00")
    A("s_nop 5")
    for e in range(0, 8, 2): A(f"ds_write2_b32 v13, v{192+4*e}, v{196+4*e} offset0:{e} offset1:{e+1}")
    A("s_mov_b64 exec, -1")
    barrier_real("L_wo_nb")
    A("s_cmp_lg_u32 s39, 0"); A("s_cbranch_scc1 L_wo_next")
    for p in range(8): A(f"ds_read_b128 {vr(160+4*p,4)}, v15 offset:{256*p}")
    for st, wcnt in ((0, 6), (8, 4), (16, 2), (24, 0)):
        A(f"s_waitcnt lgkmcnt({wcnt})")
        for h in range(2): A(f"v_pk_add_f32 {vr(160+st+2*h,2)}, {vr(160+st+2*h,2)}, {vr(164+st+2*h,2)}")
    for h in range(2): A(f"v_pk_add_f32 {vr(160+2*h,2)}, {vr(160+2*h,2)}, {vr(168+2*h,2)}")
    for h in range(2): A(f"v_pk_add_f32 {vr(176+2*h,2)}, {vr(176+2*h,2)}, {vr(184+2*h,2)}")
    for h in range(2): A(f"v_pk_add_f32 {vr(160+2*h,2)}, {vr(160+2*h,2)}, {vr(176+2*h,2)}")
    A("s_mov_b64 exec, 0xffff")
    A("global_store_dwordx4 v7, v[160:163], s[26:27] sc1")
    A("s_mov_b64 exec, -1")
    LB("L_wo_next")
    TS(7)
    A("s_cmp_eq_u32 s46, 1"); A("s_cbranch_scc1 L_hdone")
    A("s_mov_b32 s46, 1")
    gate_wait("L_wo_gate", 2 if g2 else 1)
    TS(8)
    A("s_branch L_wo_pass")

    LB("L_ffn")
    C("ffn role: h, LN(h), 32 gate/up columns, 32 rows of w2; first 16 also finish 32 output columns")
    def ffn_weights():
        A("v_lshlrev_b32 v58, 6, v22"); A("v_lshl_add_u32 v58, v20, 3, v58"); A("s_lshl_b32 s40, s39, 7"); A("v_add_u32 v58, s40, v58")
        A("s_movk_i32 s40, 3584"); A("v_mul_u32_u24 v58, s40, v58")
        A("v_and_b32 v59, 3, v21"); A("v_lshl_add_u32 v58, v59, 4, v58"); A("s_lshl_b32 s40, s49, 6"); A("v_add_u32 v58, s40, v58")
        A("v_bfe_u32 v59, v21, 2, 1"); A("v_cmp_eq_u32 vcc, 1, v59")
        A("v_mov_b32 v60, s16"); A("v_mov_b32 v61, s18"); A("v_cndmask_b32 v60, v60, v61, vcc")
        A("v_mov_b32 v61, s17"); A("v_mov_b32 v62, s19"); A("v_cndmask_b32 v61, v61, v62, vcc")
        A("v_mov_b32 v59, 0"); A("v_lshl_add_u64 v[60:61], v[58:59], 0, v[60:61]")
        A("s_lshl_b32 s40, s49, 15"); A("s_lshl_b32 s41, s39, 8"); A("s_add_u32 s40, s40, s41"); A("s_add_u32 s40, s40, 4096")
        A("s_add_u32 s52, s20, s40"); A("s_addc_u32 s53, s21, 0")
        A("v_lshlrev_b32 v58, 13, v20"); A("v_lshl_add_u32 v58, v21, 4, v58")
        if jitf: gate_wait("L_f_jit", 1); TS(11)
        A("s_mov_b64 s[40:41], 7168"); A(f"s_mov_b64 s[42:43], {7168 + 24 * 3584}")
        for s in range(2):
            for i in range(8):
                A(f"global_load_dwordx4 {vr(160+32*s+4*i,4)}, v[60:61], off{' offset:3584' if i & 1 else ''} {w_flags}")
                if i & 1 and not (s == 1 and i == 7): A(f"v_lshl_add_u64 v[60:61], v[60:61], 0, {'s[42:43]' if i == 7 else 's[40:41]'}")
            if not jitf: A("s_waitcnt vmcnt(0)")
        for i in range(8): A(f"global_load_dwordx4 {vr(224+4*i,4)}, v58, s[52:53] offset:{1024*i-4096} {w_flags}")
        for s in range(3):
            A(f"s_waitcnt vmcnt({16 - 8*s})")
            transpose8(64 + 32 * s, 160 + 32 * s)
        TS(5)
    if not jitf: ffn_weights()
    A("v_and_b32 v8, 31, v0")
    A("s_lshl_b32 s40, s39, 8"); A("v_lshl_add_u32 v5, v8, 3, s40")
    A("global_load_dwordx2 v[48:49], v5, s[4:5]")
    A("s_waitcnt vmcnt(0)")
    unpack(50, 49)
    A("v_and_b32 v49, 0xffff0000, v48"); A("v_lshlrev_b32 v48, 16, v48")
    alive("f")
    A("v_lshrrev_b32 v9, 5, v0"); A("v_lshlrev_b32 v4, 11, v9"); A("v_lshl_add_u32 v4, v8, 4, v4")
    A("s_lshl_b32 s40, s39, 9"); A(f"s_add_u32 s40, s40, {H2 + 4096}"); A("v_add_u32 v4, s40, v4"); A("v_add_u32 v6, 0x2000, v4")
    A(f"v_add_u32 v5, {HB}, v5")
    A("s_lshl_b32 s40, s39, 3"); A(f"s_add_u32 s40, s40, {ST}"); A("v_mov_b32 v7, s40"); A(f"v_mov_b32 v9, {ST}")
    A("s_lshl_b32 s40, s39, 8"); A(f"s_add_u32 s40, s40, {HN}"); A("v_lshl_add_u32 v10, v8, 3, s40")
    A("v_lshlrev_b32 v11, 7, v22"); A("v_lshl_add_u32 v11, v20, 4, v11"); A("v_add_u32 v11, s40, v11")
    A("s_lshl_b32 s41, s39, 9"); A(f"s_add_u32 s41, s41, {RED}")
    A("v_lshlrev_b32 v13, 8, v22"); A("v_lshl_add_u32 v13, v23, 5, v13"); A("v_add_u32 v13, s41, v13")
    A(f"v_lshlrev_b32 v14, 2, v0"); A(f"v_add_u32 v14, {RED}, v14")
    A("s_lshl_b32 s41, s39, 6"); A(f"s_add_u32 s41, s41, {HM}")
    A("v_lshl_add_u32 v15, v8, 1, s41"); A("v_lshl_add_u32 v12, v20, 4, s41")
    A("v_lshrrev_b32 v52, 2, v21"); A("v_mul_u32_u24 v52, 7168, v52"); A("v_and_b32 v53, 3, v21"); A("v_lshl_add_u32 v52, v53, 5, v52"); A("v_lshl_add_u32 v52, v20, 4, v52")
    A("s_lshl_b32 s54, s49, 7"); A(f"s_mul_i32 s41, s39, {4*7168}"); A("s_add_u32 s54, s54, s41")
    A("v_cmp_eq_u32 s[56:57], 1, v20")
    A("s_mul_i32 s41, s59, 7168"); A(f"s_add_u32 s41, s41, {H3 + 3072}"); A("v_lshl_add_u32 v53, v0, 4, s41")
    A("v_and_b32 v54, 7, v0"); A("s_lshl_b32 s41, s59, 6"); A("v_lshl_add_u32 v54, v54, 3, s41"); A(f"v_add_u32 v55, {HB}, v54")
    if jitf: ffn_weights()
    if not dry: gate_wait("L_f_gate0", 2 if g2 else 1)
    LB("L_f_pass")
    A(f"s_mov_b32 s41, {H3}"); A("s_cmp_eq_u32 s46, 0"); A(f"s_cmov_b32 s41, {DUMMY}"); A("s_add_u32 s41, s41, s54")
    A("v_add_u32 v56, s41, v52")
    A(f"s_mov_b32 s51, {SPIN_MAX}")
    def hload(r):
        for i in range(4): A(f"global_load_dwordx4 {vr(r+4*i,4)}, v{4 if i < 2 else 6}, s[26:27] offset:{(i % 2) * 4096 - 4096} sc1")
    def hsum(r):
        TS(6)
        for h in range(2): A(f"v_pk_add_f32 {vr(40+2*h,2)}, {vr(r+2*h,2)}, {vr(r+4+2*h,2)}")
        for h in range(2): A(f"v_pk_add_f32 {vr(44+2*h,2)}, {vr(r+8+2*h,2)}, {vr(r+12+2*h,2)}")
    hload(192)
    if stag: A(f"s_sleep {stag}")
    LB("L_f_poll")
    hload(208)
    A("s_waitcnt vmcnt(4)")
    any_poison(range(192, 208), 40)
    A("s_cbranch_vccz L_f_gotA")
    hload(192)
    A("s_waitcnt vmcnt(4)")
    any_poison(range(208, 224), 40)
    A("s_cmp_eq_u32 s46, 0"); A("s_cbranch_scc1 L_f_gotB")
    A("s_sub_u32 s51, s51, 1"); A("s_cbranch_scc1 L_f_gotB")
    A("s_cbranch_vccnz L_f_poll")
    LB("L_f_gotB")
    hsum(208)
    A("s_cmp_eq_u32 s46, 0"); A("s_cbranch_scc0 L_f_got")
    LB("L_f_gotA")
    hsum(192)
    LB("L_f_got")
    for h in range(2): A(f"v_pk_add_f32 {vr(24+2*h,2)}, {vr(40+2*h,2)}, {vr(44+2*h,2)}")
    swap_red("add_f32", [24, 25, 26, 27], [28, 29, 30, 31], 32)
    A("v_cvt_pk_bf16_f32 v28, v24, v25"); A("v_cvt_pk_bf16_f32 v29, v26, v27")
    unpack(24, 28); unpack(26, 29)
    A("v_pk_add_f32 v[24:25], v[24:25], v[48:49]"); A("v_pk_add_f32 v[26:27], v[26:27], v[50:51]")
    A("v_cvt_pk_bf16_f32 v28, v24, v25"); A("v_cvt_pk_bf16_f32 v29, v26, v27")
    unpack(24, 28); unpack(26, 29)
    C("mean and centred sum of squares of this wave's 128 values; merged across waves after the barrier")
    A("v_add_f32 v30, v24, v25"); A("v_add_f32 v31, v26, v27"); A("v_add_f32 v30, v30, v31")
    A("ds_write_b64 v5, v[28:29]")
    dpp_red("add_f32", [30]); swap_red("add_f32", [30], [31], 16)
    A("v_mul_f32 v30, 0x3c000000, v30")
    for k in range(4): A(f"v_sub_f32 v{32+k}, v{24+k}, v30")
    A("v_mul_f32 v31, v32, v32"); A("v_mul_f32 v36, v33, v33"); A("v_fmac_f32 v31, v34, v34"); A("v_fmac_f32 v36, v35, v35"); A("v_add_f32 v31, v31, v36")
    dpp_red("add_f32", [31]); swap_red("add_f32", [31], [32], 16)
    A("ds_write_b64 v7, v[30:31]")
    barrier_real("L_f_nb1")
    A("ds_read_b128 v[32:35], v9"); A("ds_read_b128 v[36:39], v9 offset:16")
    A("s_waitcnt lgkmcnt(0)")
    A("v_add_f32 v30, v32, v34"); A("v_add_f32 v31, v36, v38"); A("v_add_f32 v33, v33, v35"); A("v_add_f32 v30, v30, v31"); A("v_add_f32 v37, v37, v39")
    A("v_mul_f32 v30, 0x3e800000, v30"); A("v_add_f32 v33, v33, v37")
    for k in (32, 34, 36, 38): A(f"v_sub_f32 v{k}, v{k}, v30")
    A("v_mul_f32 v32, v32, v32"); A("v_mul_f32 v36, v36, v36"); A("v_fmac_f32 v32, v34, v34"); A("v_fmac_f32 v36, v38, v38")
    bf16r(30)
    A("v_add_f32 v32, v32, v36"); A("v_mul_f32 v33, 0x3b000000, v33"); A("v_fmac_f32 v33, 0x3e800000, v32")
    for k in range(4): A(f"v_sub_f32 v{24+k}, v{24+k}, v30")
    bf16r(33)
    A("v_add_f32 v33, 0x3727c5ac, v33")
    bf16r(33)
    A("v_sqrt_f32 v33, v33")
    A("v_cvt_pk_bf16_f32 v28, v24, v25"); A("v_cvt_pk_bf16_f32 v29, v26, v27")
    bf16r(33)
    A("v_rcp_f32 v33, v33")
    unpack(24, 28); unpack(26, 29)
    for k in range(4): A(f"v_mul_f32 v{24+k}, v{24+k}, v33")
    A("v_cvt_pk_bf16_f32 v28, v24, v25"); A("v_cvt_pk_bf16_f32 v29, v26, v27")
    A("ds_write_b64 v10, v[28:29]")
    A("ds_read_b128 v[40:43], v11"); A("ds_read_b128 v[44:47], v11 offset:64")
    A("s_waitcnt lgkmcnt(1)")
    for e in range(8): A(f"v_mfma_f32_16x16x32_bf16 {vr(160+4*e,4)}, v[40:43], {vr(64+4*e,4)}, 0")
    A("s_waitcnt lgkmcnt(0)")
    for e in range(8): A(f"v_mfma_f32_16x16x32_bf16 {vr(160+4*e,4)}, v[44:47], {vr(96+4*e,4)}, {vr(160+4*e,4)}")
    A("s_mov_b32 exec_lo, 0xff"); A("s_mov_b32 exec_hi, 0xff00")
    A("s_nop 5")
    for e in range(0, 8, 2): A(f"ds_write2_b32 v13, v{160+4*e}, v{164+4*e} offset0:{e} offset1:{e+1}")
    A("s_mov_b64 exec, -1")
    barrier_real("L_f_nb2")
    TS(7)
    for p in range(8): A(f"ds_read_b32 v{24+p}, v14 offset:{256*p}")
    A("s_waitcnt lgkmcnt(4)")
    A("v_add_f32 v24, v24, v25"); A("v_add_f32 v26, v26, v27")
    A("s_waitcnt lgkmcnt(0)")
    A("v_add_f32 v28, v28, v29"); A("v_add_f32 v30, v30, v31")
    A("v_add_f32 v24, v24, v26"); A("v_add_f32 v28, v28, v30"); A("v_add_f32 v24, v24, v28")
    bf16r(24)
    A("v_mov_b32 v25, v24"); A("s_nop 1"); A("v_permlane32_swap_b32 v24, v25")
    A(f"v_mul_f32 v26, {NL2E:#x}, v24"); A("v_exp_f32 v26, v26"); A("s_nop 0")
    A("v_add_f32 v26, 1.0, v26"); A("v_rcp_f32 v26, v26"); A("s_nop 0")
    A("v_mul_f32 v26, v24, v26")
    bf16r(26)
    A("v_mul_f32 v26, v26, v25"); A("v_cvt_pk_bf16_f32 v26, v26, v26")
    A("ds_write_b16 v15, v26")
    A("ds_read_b128 v[40:43], v12")
    A("s_waitcnt lgkmcnt(0)")
    for e in range(8): A(f"v_mfma_f32_16x16x32_bf16 {vr(160+4*e,4)}, v[40:43], {vr(128+4*e,4)}, 0")
    A("s_nop 4")
    for e in range(4): A(f"v_cndmask_b32 v{24+e}, v{160+4*e}, v{176+4*e}, s[56:57]")
    A("s_mov_b32 exec_hi, 0")
    A("global_store_dwordx4 v56, v[24:27], s[26:27] sc1")
    A("s_mov_b64 exec, -1")
    TS(8)
    A("s_cmp_lg_u32 s39, 0"); A("s_cbranch_scc1 L_f_next")
    A("s_cmp_ge_u32 s59, 16"); A("s_cbranch_scc1 L_f_next")
    C("final stage: 32 output columns")
    def oload(r):
        for i in range(7): A(f"global_load_dwordx4 {vr(r+4*i,4)}, v53, s[26:27] offset:{1024*i-3072} sc1")
    def osum(r):
        TS(9)
        for d, x, y in ((160, r, r+4), (164, r+8, r+12), (168, r+16, r+20), (160, 160, r+24)):
            for h in range(2): A(f"v_pk_add_f32 {vr(d+2*h,2)}, {vr(x+2*h,2)}, {vr(y+2*h,2)}")
    A("s_waitcnt vmcnt(1)")
    oload(192)
    A(f"s_add_u32 s42, s26, {DUMMY}"); A("s_addc_u32 s43, s27, 0")
    A("s_cmp_eq_u32 s46, 0"); A("s_cselect_b32 s42, s42, s22"); A("s_cselect_b32 s43, s43, s23")
    A("ds_read_b64 v[44:45], v55")
    A(f"s_mov_b32 s51, {SPIN_MAX}")
    if stag: A(f"s_sleep {stag}")
    LB("L_o_poll")
    oload(220)
    A("s_waitcnt vmcnt(7)")
    any_poison(range(192, 220), 40)
    A("s_cbranch_vccz L_o_gotA")
    oload(192)
    A("s_waitcnt vmcnt(7)")
    any_poison(range(220, 248), 40)
    A("s_cmp_eq_u32 s46, 0"); A("s_cbranch_scc1 L_o_gotB")
    A("s_sub_u32 s51, s51, 1"); A("s_cbranch_scc1 L_o_gotB")
    A("s_cbranch_vccnz L_o_poll")
    LB("L_o_gotB")
    osum(220)
    A("s_cmp_eq_u32 s46, 0"); A("s_cbranch_scc0 L_o_got")
    LB("L_o_gotA")
    osum(192)
    LB("L_o_got")
    for d, y in ((164, 168), (160, 164)):
        for h in range(2): A(f"v_pk_add_f32 {vr(d+2*h,2)}, {vr(d+2*h,2)}, {vr(y+2*h,2)}")
    A("s_nop 0")
    for k in range(4): A(f"v_add_f32_dpp v{160+k}, v{160+k}, v{160+k} row_ror:8 row_mask:0xf bank_mask:0xf")
    swap_red("add_f32", [160, 161, 162, 163], [164, 165, 166, 167], 16)
    swap_red("add_f32", [160, 161, 162, 163], [164, 165, 166, 167], 32)
    A("v_cvt_pk_bf16_f32 v164, v160, v161"); A("v_cvt_pk_bf16_f32 v165, v162, v163")
    unpack(160, 164); unpack(162, 165)
    A("s_waitcnt lgkmcnt(0)")
    unpack(164, 44); unpack(166, 45)
    A("v_pk_add_f32 v[160:161], v[160:161], v[164:165]"); A("v_pk_add_f32 v[162:163], v[162:163], v[166:167]")
    A("v_cvt_pk_bf16_f32 v160, v160, v161"); A("v_cvt_pk_bf16_f32 v161, v162, v163")
    A("s_mov_b64 exec, 0xff")
    A("global_store_dwordx2 v54, v[160:161], s[42:43]")
    A("s_mov_b64 exec, -1")
    A("s_cmp_eq_u32 s46, 0"); A("s_cbranch_scc1 L_f_next")
    A("s_cmp_lg_u32 s59, 0"); A("s_cbranch_scc1 L_f_next")
    A("v_mov_b32 v57, 0"); A("s_mov_b64 exec, 1")
    A("global_store_dword v57, v3, s[26:27] sc1")
    A("s_mov_b64 exec, -1")
    LB("L_f_next")
    TS(10)
    A("s_cmp_eq_u32 s46, 1"); A("s_cbranch_scc1 L_hdone")
    A("s_mov_b32 s46, 1")
    gate_wait("L_f_gate", 2 if g2 else 1)
    A("s_branch L_f_pass")
    LB("L_hdone")
    TS_flush()
    LB("L_end")
    A("s_endpgm")
    L.append('.section .rodata,"a"'); L.append(".p2align 6"); L.append(f".amdhsa_kernel {NAME}_kernel")
    for s in ("next_free_vgpr 256", "next_free_sgpr 96", "accum_offset 256", "group_segment_fixed_size 0", "kernarg_size 96",
              "user_sgpr_count 2", "user_sgpr_kernarg_segment_ptr 1", "system_sgpr_workgroup_id_x 1", "float_denorm_mode_32 3"):
        L.append("  .amdhsa_" + s)
    L.append(".end_amdhsa_kernel")
    return "\n".join(L) + "\n"

if __name__ == "__main__":
    kw = eval("dict(" + (sys.argv[2] if len(sys.argv) > 2 else "") + ")")
    open(sys.argv[1], "w").write(gen(**kw))
```

```python
import sys
NAME = "sequential_preLN__gqa_block_cached__glu_gated_swiglu__decode"

WQL = 0x20000; SP = 0x20000
QL = 0x24400; SML = 0x24800; CNT = 0x24880; GATE = 0x24884; QRDY = 0x24888; PUBD = 0x2488C
WB = 0x25000; OB = 0x25200; RED = 0x25800; HB = 0x26000; HM = 0x26400; ST = 0x26600; HN = 0x26800
LDS_BYTES = 163840
EPOCH = 0; ALIVE = 0x400; POOL = 0xC000; QBUF = 0xD0000; ML = 0x6000; H2 = 0x8000; PART = 0x10000; H3 = 0x90000; DUMMY = 0xB0000; TSB = 0x100000
TAGC = 0x9E3779B9
L2E = 0x3FB8AA3B; NL2E = 0xBFB8AA3B; SCALE = 0x3DB504F3
SPIN_MAX = 1 << 16

def gen(PACE=5, PACE0=5, S=25, NG=8, touch=False, qsleep=8, early=False, hold=False, gsleep=2, XW=0, XF=0, XG=0, jitf=False, jitw=False, wqmap=False, g2=True, R1=8, R2=5, barmode="late2", pf=True, stag=3, wend=False, rr=True, noswz=False, nocomp=False, noh=False, NV=4, VSTART=2, VSTEP=2, QTH=20, MLTH=26, noroles=False, dbgts=False, prog=False, ts=False, dry=False, wq_flags="nt", w_flags="nt", kv_flags="nt"):
    PR = 128 - 4 * S; D = 8 * PR; PRM = -(-(1 << 16) // PR)
    assert all((t * PRM) >> 16 == t // PR for t in range(D))
    L = []
    def A(s): L.append("  " + s)
    def LB(s): L.append(s + ":")
    def C(s): L.append("  ; " + s)
    def vr(a, n): return f"v[{a}:{a+n-1}]"
    def TS(k):
        if ts:
            A("s_memrealtime s[60:61]"); A("s_waitcnt lgkmcnt(0)"); A(f"s_mov_b32 s{64+k}, s60")
    def TS_flush(kind="S"):
        if ts and dbgts:
            A("s_mov_b64 exec, -1"); A("v_mov_b32 v250, 0")
            if kind == "S":
                A("s_not_b32 s62, s64"); A("v_writelane_b32 v250, s62, 0"); A("s_not_b32 s62, s70"); A("v_writelane_b32 v250, s62, 13")
                for lane, k in ((1, 6), (2, 1), (3, 2), (4, 5)): A(f"v_writelane_b32 v250, s{64+k}, {lane}")
            else:
                for lane, k in ((5, 1), (6, 3), (7, 4)): A(f"v_writelane_b32 v250, s{64+k}, {lane}")
                A("s_not_b32 s62, s68"); A("s_cmp_eq_u32 s68, 0"); A("s_cselect_b32 s62, 0, s62"); A("v_writelane_b32 v250, s62, 14")
                A("s_cmp_eq_u32 s47, 0"); A("s_cbranch_scc0 L_dbgf")
                A("v_writelane_b32 v250, s70, 8"); A("v_writelane_b32 v250, s71, 9"); A("s_branch L_dbge")
                LB("L_dbgf")
                A("v_writelane_b32 v250, s70, 10"); A("v_writelane_b32 v250, s72, 11"); A("v_writelane_b32 v250, s74, 12")
                LB("L_dbge")
            A("v_mbcnt_lo_u32_b32 v251, -1, 0"); A("v_mbcnt_hi_u32_b32 v251, -1, v251"); A("v_lshlrev_b32 v251, 2, v251")
            A("s_mov_b64 exec, 0xffff")
            A("global_atomic_umax v251, v250, s[24:25] sc1")
        elif ts:
            A("s_mov_b64 exec, -1")
            A("v_mov_b32 v250, 0")
            for k in range(16): A(f"v_writelane_b32 v250, s{64+k}, {k}")
            A("v_mbcnt_lo_u32_b32 v251, -1, 0"); A("v_mbcnt_hi_u32_b32 v251, -1, v251")
            A("s_lshl_b32 s62, s2, 3"); A("s_add_u32 s62, s62, s3"); A("s_lshl_b32 s62, s62, 6"); A(f"s_add_u32 s62, s62, {TSB}")
            A("v_lshl_add_u32 v251, v251, 2, s62")
            A("s_mov_b64 exec, 0xffff")
            A("global_store_dword v251, v250, s[26:27]")
    def dpp_red(op, xs):
        for rot in (8, 4, 2, 1):
            if len(xs) < 3: A(f"s_nop {2 - len(xs)}" if len(xs) < 2 else "s_nop 0")
            for x in xs: A(f"v_{op}_dpp v{x}, v{x}, v{x} row_ror:{rot} row_mask:0xf bank_mask:0xf")
    def swap_red(op, xs, ts_, which):
        for x, t in zip(xs, ts_): A(f"v_mov_b32 v{t}, v{x}")
        A("s_nop 1")
        for x, t in zip(xs, ts_): A(f"v_permlane{which}_swap_b32 v{x}, v{t}")
        for x, t in zip(xs, ts_): A(f"v_{op} v{x}, v{x}, v{t}")
    def unpack(dst, src):
        A(f"v_lshlrev_b32 v{dst}, 16, v{src}"); A(f"v_and_b32 v{dst+1}, 0xffff0000, v{src}")
    def bf16r(x):
        A(f"v_cvt_pk_bf16_f32 v{x}, v{x}, v{x}"); A(f"v_and_b32 v{x}, 0xffff0000, v{x}")
    def layernorm(src, f, t):
        for k in range(4): unpack(f + 2 * k, src + k)
        A(f"v_add_f32 v{t}, v{f}, v{f+1}"); A(f"v_add_f32 v{t+1}, v{f+2}, v{f+3}")
        A(f"v_add_f32 v{t+2}, v{f+4}, v{f+5}"); A(f"v_add_f32 v{t+3}, v{f+6}, v{f+7}")
        A(f"v_add_f32 v{t}, v{t}, v{t+1}"); A(f"v_add_f32 v{t+2}, v{t+2}, v{t+3}"); A(f"v_add_f32 v{t}, v{t}, v{t+2}")
        dpp_red("add_f32", [t]); swap_red("add_f32", [t], [t+1], 16); swap_red("add_f32", [t], [t+1], 32)
        A(f"v_mul_f32 v{t}, 0x3b000000, v{t}")
        A(f"v_sub_f32 v{t+2}, v{f}, v{t}"); A(f"v_mul_f32 v{t+1}, v{t+2}, v{t+2}")
        for k in range(1, 8):
            A(f"v_sub_f32 v{t+2}, v{f+k}, v{t}"); A(f"v_fmac_f32 v{t+1}, v{t+2}, v{t+2}")
        bf16r(t)
        dpp_red("add_f32", [t+1]); swap_red("add_f32", [t+1], [t+2], 16); swap_red("add_f32", [t+1], [t+2], 32)
        A(f"v_mul_f32 v{t+1}, 0x3b000000, v{t+1}")
        bf16r(t+1)
        A(f"v_add_f32 v{t+1}, 0x3727c5ac, v{t+1}")
        bf16r(t+1)
        A(f"v_sqrt_f32 v{t+1}, v{t+1}")
        for k in range(8): A(f"v_sub_f32 v{f+k}, v{f+k}, v{t}")
        bf16r(t+1)
        A(f"v_rcp_f32 v{t+1}, v{t+1}")
        for k in range(4): A(f"v_cvt_pk_bf16_f32 v{src+k}, v{f+2*k}, v{f+2*k+1}")
        for k in range(4): unpack(f + 2 * k, src + k)
        for k in range(8): A(f"v_mul_f32 v{f+k}, v{f+k}, v{t+1}")
        for k in range(4): A(f"v_cvt_pk_bf16_f32 v{src+k}, v{f+2*k}, v{f+2*k+1}")
    def transpose8(dst, src):
        for e in range(8):
            for j in range(4):
                a = src + 4 * (2 * j) + (e >> 1); b = src + 4 * (2 * j + 1) + (e >> 1)
                A(f"v_perm_b32 v{dst+4*e+j}, v{b}, v{a}, s{45 if e & 1 else 44}")
    def any_poison(regs, t):
        regs = list(regs)
        A(f"v_max3_u32 v{t}, v{regs[0]}, v{regs[1]}, v{regs[2]}" if len(regs) >= 3 else f"v_max_u32 v{t}, v{regs[0]}, v{regs[1]}")
        rest = regs[3:] if len(regs) >= 3 else []
        while len(rest) >= 2:
            A(f"v_max3_u32 v{t}, v{t}, v{rest[0]}, v{rest[1]}"); rest = rest[2:]
        if rest: A(f"v_max_u32 v{t}, v{t}, v{rest[0]}")
        A(f"v_cmp_eq_u32 vcc, -1, v{t}")
    def barrier_real(lbl):
        A("s_waitcnt lgkmcnt(0)")
        A("s_cmp_eq_u32 s46, 0"); A(f"s_cbranch_scc1 {lbl}"); A("s_barrier"); LB(lbl)
    def alive(tag):
        if wend: A("s_branch L_hdone")
        C("every workgroup reset its hand-off slots before it wrote its word here")
        A(f"v_lshlrev_b32 v4, 4, v0"); A(f"v_add_u32 v4, {ALIVE}, v4")
        A(f"s_mov_b32 s51, {SPIN_MAX}")
        LB(f"L_alive_{tag}")
        A("global_load_dwordx4 v[24:27], v4, s[26:27] sc1")
        A("s_sub_u32 s51, s51, 1"); A(f"s_cbranch_scc1 L_alive_ok_{tag}")
        A("s_waitcnt vmcnt(0)")
        for k in range(4): A(f"v_xor_b32 v{24+k}, v{24+k}, v3")
        A("v_or3_b32 v24, v24, v25, v26"); A("v_or_b32 v24, v24, v27")
        A("v_cmp_ne_u32 vcc, 0, v24"); A(f"s_cbranch_vccnz L_alive_{tag}")
        LB(f"L_alive_ok_{tag}")
        A("s_waitcnt vmcnt(0)")
    def gate_wait(lbl, lvl=1):
        A(f"v_mov_b32 v1, {GATE}")
        LB(lbl)
        A(f"s_sleep {gsleep}"); A("ds_read_b32 v2, v1"); A("s_waitcnt lgkmcnt(0)"); A("v_readfirstlane_b32 s40, v2")
        A(f"s_cmp_lt_u32 s40, {lvl}"); A(f"s_cbranch_scc1 {lbl}")

    L.append(f"; @launch grid=(256,1,1) block=(512,1,1) lds={LDS_BYTES}")
    L.append('.amdgcn_target "amdgcn-amd-amdhsa--gfx950"')
    L.append(".text"); L.append(f".globl {NAME}_kernel"); L.append(".p2align 8"); L.append(f".type {NAME}_kernel,@function")
    LB(f"{NAME}_kernel")
    A("s_cmp_ge_u32 s2, 256"); A("s_cbranch_scc1 L_end")
    A("s_load_dwordx16 s[4:19], s[0:1], 0")
    A("s_load_dwordx8 s[20:27], s[0:1], 64")
    if ts:
        for k in range(16): A(f"s_mov_b32 s{64+k}, 0")
        A("s_memrealtime s[60:61]")
    A("v_lshrrev_b32 v1, 6, v0")
    A("v_and_b32 v0, 63, v0")
    A("v_readfirstlane_b32 s3, v1")
    if pf:
        C("one idle wave pulls this kernel's code towards the L2 while the others start")
        A("s_cmp_lg_u32 s3, 5"); A("s_cbranch_scc1 L_nopf")
        A("s_getpc_b64 s[40:41]"); LB("L_pc")
        A(f"s_sub_u32 s40, s40, L_pc-{NAME}_kernel"); A("s_subb_u32 s41, s41, 0")
        A("v_lshlrev_b32 v8, 7, v0"); A(f"v_min_u32 v9, L_end-{NAME}_kernel-8192, v8")
        A("global_load_dword v10, v8, s[40:41]"); A("s_add_u32 s40, s40, 8192"); A("s_addc_u32 s41, s41, 0"); A("global_load_dword v10, v9, s[40:41]")
        LB("L_nopf")
    A("s_lshr_b32 s36, s2, 5")
    A("s_and_b32 s37, s2, 31")
    A("s_and_b32 s38, s2, 7"); A("s_lshl_b32 s38, s38, 2"); A("s_lshr_b32 s39, s37, 3"); A("s_add_u32 s38, s38, s39")
    A(f"v_mov_b32 v1, {CNT}")
    for k in range(4): A(f"v_mov_b32 v{4+k}, 0")
    A("ds_write_b128 v1, v[4:7]")
    if barmode == "entry":
        A("s_waitcnt lgkmcnt(0)"); A("s_barrier")
    A("s_cmp_ge_u32 s3, 4"); A("s_cbranch_scc1 L_helper")

    C("streaming waves: K/V tiles of 16 keys through a 4-slot LDS ring per wave")
    A("v_lshrrev_b32 v20, 4, v0")
    A("v_and_b32 v21, 15, v0")
    A("v_lshlrev_b32 v22, 1, v20")
    A("v_xor_b32 v22, v22, v21")
    A("v_lshlrev_b32 v22, 4, v22")
    A("v_lshl_add_u32 v2, v20, 8, v22")
    A("v_xor_b32 v3, 0x80, v2"); A("v_xor_b32 v4, 16, v2"); A("v_xor_b32 v5, 0x90, v2")
    if noswz:
        for i in range(4): A(f"v_lshlrev_b32 v{2+i}, 4, v0")
    C("four workgroups share a 2 MiB page of K and V (rows of 4 tiles interleaved); the last rows of all pages form a ticket pool")
    A("s_and_b32 s40, s2, 7"); A("s_lshl_b32 s41, s36, 3"); A("s_add_u32 s40, s40, s41"); A("s_lshl_b32 s40, s40, 21")
    A("s_lshl_b32 s41, s39, 14"); A("s_add_u32 s40, s40, s41")
    A("s_lshl_b32 s41, s3, 12"); A("s_add_u32 s40, s40, s41")
    A("s_lshl_b32 s41, s3, 15")
    A("s_mov_b32 s30, 0x8000000"); A("s_mov_b32 s31, 0x20000"); A("s_mov_b32 s34, 0x8000000"); A("s_mov_b32 s35, 0x20000")
    A("s_mov_b32 s42, 0x2000")
    A("s_mov_b32 s44, 4")
    A("s_waitcnt lgkmcnt(0)")
    if ts: A("s_mov_b32 s64, s60")
    A("s_mov_b32 s28, s6"); A("s_and_b32 s29, s7, 0xffff"); A("s_mov_b32 s32, s8"); A("s_and_b32 s33, s9, 0xffff")
    if barmode != "entry": A("s_barrier")
    TS(6)
    def issue_tile(pace):
        A("s_mov_b32 m0, s41")
        for i in range(4):
            A(f"s_waitcnt vmcnt({pace})"); A(f"buffer_load_dwordx4 v{2+i}, s[28:31], s40 offen offset:{i*1024} {kv_flags} lds")
        A("s_add_u32 m0, s41, 4096")
        for i in range(4):
            A(f"s_waitcnt vmcnt({pace})"); A(f"buffer_load_dwordx4 v{2+i}, s[32:35], s40 offen offset:{i*1024} {kv_flags} lds")
        A("s_add_u32 s40, s40, 65536")
    LB("L_fill")
    issue_tile(PACE0)
    A("s_xor_b32 s41, s41, s42"); A("s_xor_b32 s42, s42, 0x4000")
    if hold and not noh:
        A("s_cmp_lg_u32 s44, 4"); A("s_cbranch_scc1 L_nohold")
        A(f"v_mov_b32 v116, {PUBD}")
        LB("L_hold")
        A("ds_read_b32 v117, v116"); A("s_waitcnt lgkmcnt(0)"); A("v_readfirstlane_b32 s48, v117")
        A("s_cmp_lg_u32 s48, 0"); A("s_cbranch_scc1 L_nohold"); A("s_sleep 1"); A("s_branch L_hold")
        LB("L_nohold")
    A("s_sub_u32 s44, s44, 1"); A("s_cmp_lg_u32 s44, 0"); A("s_cbranch_scc1 L_fill")
    TS(1)
    A("s_lshl_b32 s46, s36, 24"); A("s_lshl_b32 s47, s3, 12"); A("s_add_u32 s46, s46, s47"); A(f"s_add_u32 s46, s46, {4*S*16384}")
    A("s_lshl_b32 s47, s36, 2"); A("s_add_u32 s47, s47, s3"); A("s_lshl_b32 s47, s47, 8"); A(f"s_add_u32 s47, s47, {POOL}")
    A("v_mov_b32 v122, s47"); A("v_mov_b32 v123, 1"); A("v_mov_b32 v124, 0")
    A(f"s_mov_b32 s43, {S - 4}")
    A(f"s_mov_b32 s56, {D}"); A("s_cmp_lt_u32 s37, 15"); A(f"s_cselect_b32 s56, {D - XF}, s56"); A("s_cmp_lt_u32 s37, 8"); A(f"s_cselect_b32 s56, {D - XW}, s56")
    A("v_lshlrev_b32 v23, 1, v21"); A("v_and_b32 v23, 15, v23"); A("v_lshrrev_b32 v24, 3, v21"); A("v_or_b32 v23, v23, v24")
    A("v_and_b32 v24, 1, v20"); A("v_lshlrev_b32 v24, 1, v24"); A("v_lshrrev_b32 v25, 1, v20"); A("v_or_b32 v24, v24, v25")
    A("v_xor_b32 v23, v23, v24"); A("v_lshlrev_b32 v23, 4, v23"); A("v_lshl_add_u32 v23, v21, 8, v23")
    A("v_add_u32 v6, s41, v23")
    for s in range(1, 4): A(f"v_xor_b32 v{6+s}, {s << 6}, v6")
    A("v_lshrrev_b32 v25, 2, v0")
    A("v_lshlrev_b32 v26, 1, v25"); A("v_and_b32 v26, 15, v26"); A("v_lshrrev_b32 v27, 3, v25"); A("v_or_b32 v26, v26, v27")
    A("v_bfe_u32 v27, v0, 1, 1"); A("v_xor_b32 v26, v26, v27"); A("v_lshlrev_b32 v26, 4, v26")
    A("v_lshl_add_u32 v26, v25, 8, v26")
    A("v_and_b32 v27, 1, v0"); A("v_lshl_add_u32 v26, v27, 3, v26")
    A("s_add_u32 s44, s41, 4096")
    A("v_add_u32 v10, s44, v26")
    for t in range(1, 8): A(f"v_xor_b32 v{10+t}, {t << 5}, v10")
    A("v_and_b32 v25, 3, v21"); A("v_lshlrev_b32 v25, 8, v25"); A("v_lshl_add_u32 v25, v24, 4, v25"); A(f"v_add_u32 v108, {QL}, v25")
    A("v_mov_b32 v18, 0xff7fffff"); A("v_mov_b32 v19, 0x7f7fffff"); A("v_mov_b32 v109, 0")
    for k in range(32): A(f"v_mov_b32 v{76+k}, 0")
    A(f"s_mov_b32 s45, {L2E}"); A("s_mov_b32 s44, 4"); A("s_mov_b32 s54, 0x2000"); A("s_mov_b32 s55, 4")
    if ts: A("s_mov_b32 s51, 0")
    A(f"v_mov_b32 v116, {QRDY}")
    A("s_mov_b32 s52, 0"); A(f"s_mov_b32 s53, {VSTART}")
    if noh: A("s_branch L_qok")
    C("while q is not there yet, keep streaming: park up to NV more tiles in registers")
    for k in range(NV):
        A("ds_read_b32 v117, v116"); A("s_waitcnt lgkmcnt(0)"); A("v_readfirstlane_b32 s48, v117")
        A("s_cmp_lg_u32 s48, 0"); A("s_cbranch_scc1 L_qok")
        for i in range(8):
            A(f"s_waitcnt vmcnt({PACE0})"); A(f"buffer_load_dwordx4 {vr(128+32*k+4*i,4)}, v{2+(i&3)}, s[{28 if i < 4 else 32}:{31 if i < 4 else 35}], s40 offen offset:{(i&3)*1024} {kv_flags}")
        A("s_add_u32 s40, s40, 65536"); A("s_add_u32 s52, s52, 1"); A("s_sub_u32 s43, s43, 1")
    LB("L_qwait")
    A("ds_read_b32 v117, v116"); A("s_waitcnt lgkmcnt(0)"); A("v_readfirstlane_b32 s48, v117")
    A("s_cmp_lg_u32 s48, 0"); A("s_cbranch_scc1 L_qok"); A("s_sleep 1"); A("s_branch L_qwait")
    LB("L_qok")
    if ts: A("s_add_u32 s51, s51, s52"); A("s_mov_b32 s77, s52")
    TS(2)
    for s in range(4): A(f"ds_read_b128 {vr(24+4*s,4)}, v108 offset:{64*s}")
    LB("L_tile")
    A("s_waitcnt vmcnt(24)")
    A("s_cmp_gt_u32 s44, 3"); A("s_cbranch_scc1 L_go")
    A("s_waitcnt vmcnt(16)"); A("s_cmp_gt_u32 s44, 2"); A("s_cbranch_scc1 L_go")
    A("s_waitcnt vmcnt(8)"); A("s_cmp_gt_u32 s44, 1"); A("s_cbranch_scc1 L_go")
    A("s_waitcnt vmcnt(0)")
    TS(3)
    LB("L_go")
    if nocomp: A("s_branch L_skipc")
    for s in range(4): A(f"ds_read_b128 {vr(40+4*s,4)}, v{6+s}")
    for t in range(8): A(f"ds_read_b64_tr_b16 {vr(56+2*t,2)}, v{10+t}")
    for s in range(4):
        A(f"s_waitcnt lgkmcnt({11-s})")
        A(f"v_mfma_f32_16x16x32_bf16 v[72:75], {vr(40+4*s,4)}, {vr(24+4*s,4)}, {'0' if s == 0 else 'v[72:75]'}")
    for k in range(12): A(f"v_xor_b32 v{6+k}, s54, v{6+k}")
    A("v_cvt_pk_bf16_f32 v110, v72, v73"); A("v_cvt_pk_bf16_f32 v111, v74, v75")
    unpack(112, 110); unpack(114, 111)
    for k in range(4): A(f"v_mul_f32 v{112+k}, {SCALE:#x}, v{112+k}")
    A("v_cvt_pk_bf16_f32 v110, v112, v113"); A("v_cvt_pk_bf16_f32 v111, v114, v115")
    unpack(112, 110); unpack(114, 111)
    A("v_max3_f32 v116, v112, v113, v114"); A("v_max3_f32 v116, v116, v115, v18")
    swap_red("max_f32", [116], [117], 16); swap_red("max_f32", [116], [117], 32)
    A(f"v_mul_f32 v117, {NL2E:#x}, v116"); A("v_floor_f32 v117, v117")
    A("v_cmp_lt_f32 vcc, v117, v19")
    A("v_sub_f32 v118, v117, v19")
    for k in range(4): A(f"v_fma_f32 v{112+k}, v{112+k}, s45, v117")
    A("v_exp_f32 v118, v118")
    for k in range(4): A(f"v_exp_f32 v{112+k}, v{112+k}")
    A("v_mov_b32 v18, v116"); A("v_mov_b32 v19, v117")
    A("s_cbranch_vccz L_nors")
    for k in range(16): A(f"v_pk_mul_f32 {vr(76+2*k,2)}, {vr(76+2*k,2)}, v[118:119] op_sel_hi:[1,0]")
    LB("L_nors")
    A("v_add_f32 v116, v112, v113"); A("v_add_f32 v117, v114, v115")
    A("v_cvt_pk_bf16_f32 v120, v112, v113"); A("v_cvt_pk_bf16_f32 v121, v114, v115")
    A("v_add_f32 v116, v116, v117"); A("v_fma_f32 v109, v109, v118, v116")
    A("s_waitcnt lgkmcnt(0)")
    for t in range(8): A(f"v_mfma_f32_16x16x16_bf16 {vr(76+4*t,4)}, {vr(56+2*t,2)}, v[120:121], {vr(76+4*t,4)}")
    LB("L_skipc")
    if NV:
        A("s_cmp_eq_u32 s52, 0"); A("s_cbranch_scc1 L_nopark")
        A("s_sub_u32 s53, s53, 1"); A("s_cmp_lg_u32 s53, 0"); A("s_cbranch_scc1 L_nopark")
        C("move a parked tile into the slot that just became free and run it")
        A(f"s_mov_b32 s53, {VSTEP + 1}"); A("s_sub_u32 s52, s52, 1")
        A("v_lshl_add_u32 v116, v0, 4, s41")
        A("s_waitcnt vmcnt(8)")
        for k in range(NV):
            if k < NV - 1: A(f"s_cmp_lg_u32 s52, {k}"); A(f"s_cbranch_scc1 L_pk{k}")
            for i in range(8): A(f"ds_write_b128 v116, {vr(128+32*k+4*i,4)} offset:{1024*i}")
            if k < NV - 1: A("s_branch L_pkd"); LB(f"L_pk{k}")
        LB("L_pkd")
        for k in range(12): A(f"v_xor_b32 v{6+k}, s54, v{6+k}")
        A("s_branch L_go")
        LB("L_nopark")
    A("s_xor_b32 s54, s54, 0x4000")
    C("s55: wanted number of tiles in the ring (4 at first, 2 later so that nothing waits unprocessed at the end, 0 when the pool is empty)")
    A(f"s_cmp_gt_u32 s43, {R1}"); A("s_cbranch_scc1 L_keep")
    A("s_cmp_lg_u32 s52, 0"); A("s_cbranch_scc1 L_keep")
    A(f"s_cmp_gt_u32 s43, {R2}"); A("s_cselect_b32 s48, 3, 2"); A("s_min_u32 s55, s55, s48")
    A("s_cmp_gt_u32 s44, s55"); A("s_cbranch_scc1 L_drain")
    LB("L_keep")
    A("s_cmp_eq_u32 s43, 0"); A("s_cbranch_scc1 L_dyn")
    A("s_sub_u32 s43, s43, 1"); A("s_cmp_eq_u32 s43, 0"); A("s_cbranch_scc0 L_issue")
    A("s_branch L_ticket")
    LB("L_dyn")
    A("s_waitcnt vmcnt(8)")
    A("v_readfirstlane_b32 s48, v124")
    A(f"s_cmp_ge_u32 s48, {D}"); A("s_cbranch_scc1 L_empty")
    if rr: A("s_and_b32 s49, s48, 7"); A("s_lshr_b32 s50, s48, 3")
    else: A(f"s_mul_i32 s49, s48, {PRM}"); A("s_lshr_b32 s49, s49, 16"); A(f"s_mul_i32 s50, s49, {PR}"); A("s_sub_u32 s50, s48, s50")
    A("s_lshl_b32 s49, s49, 21"); A("s_lshl_b32 s50, s50, 14"); A("s_add_u32 s40, s46, s49"); A("s_add_u32 s40, s40, s50")
    if XG:
        A(f"s_cmp_lt_u32 s48, {D - XG}"); A("s_cbranch_scc1 L_nog")
        A(f"v_mov_b32 v116, {GATE}"); A("ds_write_b32 v116, v123")
        LB("L_nog")
    if XW or XF:
        A("s_cmp_lt_u32 s48, s56"); A("s_cbranch_scc1 L_ticket")
        A(f"v_mov_b32 v124, {D}"); A("s_branch L_issue")
    LB("L_ticket")
    A("s_mov_b64 exec, 1")
    A("global_atomic_add v124, v122, v123, s[26:27] sc0 sc1")
    A("s_mov_b64 exec, -1")
    LB("L_issue")
    issue_tile(PACE)
    A("s_xor_b32 s41, s41, s42"); A("s_xor_b32 s42, s42, 0x4000")
    if prog:
        A("s_add_u32 s51, s51, 1")
        for k, r in enumerate((4, 8, 12, 16, 20, 24, 28)):
            A(f"s_cmp_eq_u32 s51, {r}"); A(f"s_cbranch_scc0 L_pg{k}"); TS(7 + k); LB(f"L_pg{k}")
    A("s_branch L_tile")
    LB("L_empty")
    A(f"v_mov_b32 v116, {GATE}"); A("ds_write_b32 v116, v123"); A("s_mov_b32 s55, 0")
    if ts: A("s_add_u32 s79, s51, 4"); TS(14)
    LB("L_drain")
    A("s_sub_u32 s44, s44, 1"); A("s_cmp_lg_u32 s44, 0"); A("s_cbranch_scc1 L_tile")
    TS(4)
    C("epilogue: merge the four waves' partial results, publish")
    swap_red("add_f32", [109], [116], 16); swap_red("add_f32", [109], [116], 32)
    A("s_lshl_b32 s44, s3, 11"); A(f"s_add_u32 s44, s44, {SP}")
    A("v_lshlrev_b32 v116, 9, v21"); A("v_lshl_add_u32 v116, v20, 4, v116"); A("v_add_u32 v116, s44, v116")
    A("s_lshl_b32 s44, s3, 5"); A(f"s_add_u32 s44, s44, {SML}")
    A("v_lshl_add_u32 v117, v21, 3, s44")
    A("v_mov_b32 v108, v19")
    A("s_mov_b32 exec_lo, 0x000f000f"); A("s_mov_b32 exec_hi, 0x000f000f")
    for t in range(8): A(f"ds_write_b128 v116, {vr(76+4*t,4)} offset:{64*t}")
    A("ds_write_b64 v117, v[108:109]")
    A("s_mov_b64 exec, 1")
    A(f"v_mov_b32 v110, {CNT}"); A("v_mov_b32 v111, 1")
    A("s_waitcnt lgkmcnt(0)")
    A("ds_add_rtn_u32 v111, v110, v111")
    A("s_mov_b64 exec, -1")
    A(f"v_lshlrev_b32 v116, 5, v0"); A(f"v_add_u32 v116, {SP}, v116")
    A(f"v_lshlrev_b32 v118, 3, v20"); A(f"v_add_u32 v118, {SML}, v118")
    A("s_lshl_b32 s44, s36, 15"); A("s_lshl_b32 s47, s38, 8"); A("s_add_u32 s44, s44, s47"); A(f"s_add_u32 s44, s44, {PART}")
    A("v_lshlrev_b32 v112, 13, v20"); A("v_lshl_add_u32 v112, v21, 4, v112"); A("v_add_u32 v112, s44, v112")
    A("s_lshl_b32 s44, s36, 10"); A("s_lshl_b32 s47, s38, 3"); A("s_add_u32 s44, s44, s47"); A(f"s_add_u32 s44, s44, {ML}")
    A("v_lshl_add_u32 v113, v20, 8, s44")
    A("s_waitcnt lgkmcnt(0)")
    A("v_readfirstlane_b32 s44, v111")
    A("s_cmp_eq_u32 s44, 3"); A("s_cbranch_scc0 L_sdone")
    for w in range(4): A(f"ds_read_b64 {vr(24+2*w,2)}, v118 offset:{32*w}")
    for w in range(4):
        A(f"ds_read_b128 {vr(40+8*w,4)}, v116 offset:{2048*w}"); A(f"ds_read_b128 {vr(44+8*w,4)}, v116 offset:{2048*w+16}")
    A("s_waitcnt lgkmcnt(8)")
    A("v_min3_f32 v32, v24, v26, v28"); A("v_min_f32 v32, v32, v30")
    for w in range(4): A(f"v_sub_f32 v{24+2*w}, v32, v{24+2*w}")
    for w in range(4): A(f"v_exp_f32 v{24+2*w}, v{24+2*w}")
    A("s_waitcnt lgkmcnt(6)")
    for k in range(4): A(f"v_pk_mul_f32 {vr(40+2*k,2)}, {vr(40+2*k,2)}, v[24:25] op_sel_hi:[1,0]")
    for w in range(1, 4):
        A(f"s_waitcnt lgkmcnt({6 - 2*w})")
        for k in range(4): A(f"v_pk_fma_f32 {vr(40+2*k,2)}, {vr(40+8*w+2*k,2)}, {vr(24+2*w,2)}, {vr(40+2*k,2)} op_sel_hi:[1,0,1]")
    for k in range(4): A(f"v_cvt_pk_bf16_f32 v{40+k}, v{40+2*k}, v{41+2*k}")
    A("global_store_dwordx4 v112, v[40:43], s[26:27] sc1")
    A("v_mul_f32 v33, v24, v25")
    for w in range(1, 4): A(f"v_fmac_f32 v33, v{24+2*w}, v{25+2*w}")
    A("s_mov_b32 exec_lo, 0x00010001"); A("s_mov_b32 exec_hi, 0x00010001")
    A("global_store_dwordx2 v113, v[32:33], s[26:27] sc1")
    A(f"v_mov_b32 v116, {GATE}"); A("v_mov_b32 v117, 2"); A("ds_write_b32 v116, v117")
    LB("L_sdone")
    TS(5)
    TS_flush()
    A("s_endpgm")

    LB("L_helper")
    if noh: A("s_endpgm")
    A("s_mov_b32 s47, s39")
    A("s_mov_b32 s50, s39")
    A("s_cmp_eq_u32 s37, 15"); A("s_cselect_b32 s47, 3, s47")
    A("s_sub_u32 s39, s3, 4")
    A("s_and_b32 s48, s37, 7")
    A("s_mul_i32 s59, s36, 7"); A("s_add_u32 s59, s59, s48")
    A("s_lshl_b32 s49, s48, 3"); A("s_add_u32 s49, s49, s36")
    A("v_lshrrev_b32 v20, 4, v0"); A("v_and_b32 v21, 15, v0")
    A("v_lshrrev_b32 v22, 3, v21"); A("v_and_b32 v23, 7, v21")
    A("v_mov_b32 v16, 0")
    A("s_mov_b32 s44, 0x05040100"); A("s_mov_b32 s45, 0x07060302")
    A(f"s_mov_b32 s46, {0 if dry else 1}")
    A("s_cmp_eq_u32 s39, 0"); A("s_cbranch_scc1 L_w4")
    A("s_cmp_ge_u32 s47, 2"); A("s_cbranch_scc1 L_end")
    A("s_waitcnt lgkmcnt(0)")
    if ts: A("s_mov_b32 s64, s60")
    if barmode != "entry": A("s_barrier")
    A("global_load_dword v3, v16, s[26:27] sc1")
    if not early:
        A(f"v_mov_b32 v1, {QRDY}")
        LB("L_hq")
        A("s_sleep 4"); A("ds_read_b32 v2, v1"); A("s_waitcnt lgkmcnt(0)"); A("v_readfirstlane_b32 s40, v2")
        A("s_cmp_eq_u32 s40, 0"); A("s_cbranch_scc1 L_hq")
    A("s_waitcnt vmcnt(0)")
    A(f"v_add_u32 v3, {TAGC:#x}, v3")
    A("s_branch L_roles")

    LB("L_w4")
    C("first helper wave: 128 rows x 64 columns of LN(x) @ wq; reset this workgroup's hand-off slots; gather q")
    A("s_setprio 3")
    A("v_lshlrev_b32 v1, 4, v0")
    A("v_lshlrev_b32 v2, 19, v22"); A("v_lshl_add_u32 v2, v20, 16, v2"); A("v_lshl_add_u32 v2, v23, 4, v2")
    if wqmap:
        A("s_and_b32 s58, s48, 1"); A("s_lshl_b32 s58, s58, 2"); A("s_add_u32 s58, s58, s50"); A("s_lshr_b32 s50, s48, 1")
    else: A("s_mov_b32 s58, s48")
    A("s_lshl_b32 s52, s50, 20"); A("s_lshl_b32 s41, s36, 10"); A("s_add_u32 s52, s52, s41"); A("s_lshl_b32 s41, s58, 7"); A("s_add_u32 s52, s52, s41")
    A("s_mov_b32 s30, 0x400000"); A("s_mov_b32 s31, 0x20000")
    A("s_waitcnt lgkmcnt(0)")
    if ts: A("s_mov_b32 s64, s60")
    A("global_load_dwordx4 v[4:7], v1, s[4:5]")
    A("s_mov_b32 s28, s10"); A("s_and_b32 s29, s11, 0xffff")
    for k in range(16):
        A(f"buffer_load_dwordx4 {vr(160+4*k,4)}, v2, s[28:31], s52 offen {wq_flags}")
        if k < 15: A(f"s_add_u32 s52, s52, {8192 if k != 7 else 25 * 8192}")
    A("global_load_dword v3, v16, s[26:27] sc1")
    if barmode == "late": A("s_barrier")
    for k in range(4): A(f"v_mov_b32 v{8+k}, -1")
    A("s_lshl_b32 s40, s36, 15"); A("s_lshl_b32 s41, s38, 8"); A("s_add_u32 s40, s40, s41"); A(f"s_add_u32 s40, s40, {PART}")
    A("v_lshlrev_b32 v12, 13, v20"); A("v_lshl_add_u32 v12, v21, 4, v12"); A("v_add_u32 v12, s40, v12")
    A("s_lshl_b32 s40, s36, 10"); A("s_lshl_b32 s41, s38, 3"); A("s_add_u32 s40, s40, s41"); A(f"s_add_u32 s40, s40, {ML}")
    A("v_lshl_add_u32 v13, v20, 8, s40")
    A("s_lshl_b32 s40, s48, 11"); A("s_lshl_b32 s41, s36, 8"); A("s_add_u32 s40, s40, s41"); A(f"s_add_u32 s40, s40, {H2}")
    A("v_lshl_add_u32 v14, v21, 4, s40")
    A("s_lshl_b32 s41, s49, 7"); A(f"s_add_u32 s41, s41, {H3}")
    A("v_lshrrev_b32 v15, 3, v0"); A("v_mul_u32_u24 v15, 7168, v15"); A("v_and_b32 v17, 7, v0"); A("v_lshl_add_u32 v15, v17, 4, v15"); A("v_add_u32 v15, s41, v15")
    A(f"v_add_u32 v17, {8*7168}, v15")
    A("s_lshl_b32 s40, s36, 10"); A(f"s_add_u32 s40, s40, {POOL}"); A("v_and_b32 v19, 3, v0"); A("v_lshl_add_u32 v19, v19, 8, s40")
    A("global_store_dwordx4 v12, v[8:11], s[26:27] sc1")
    A("s_mov_b32 exec_lo, 0x00010001"); A("s_mov_b32 exec_hi, 0x00010001")
    A("global_store_dwordx2 v13, v[8:9], s[26:27] sc1")
    A("s_mov_b64 exec, 0xffff")
    A("s_cmp_lg_u32 s47, 0"); A("s_cbranch_scc1 L_w4n")
    A("global_store_dwordx4 v14, v[8:11], s[26:27] sc1")
    LB("L_w4n")
    A("s_mov_b64 exec, -1")
    A("s_cmp_lg_u32 s47, 1"); A("s_cbranch_scc1 L_w4a")
    A("global_store_dwordx4 v15, v[8:11], s[26:27] sc1"); A("global_store_dwordx4 v17, v[8:11], s[26:27] sc1")
    LB("L_w4a")
    A("s_cmp_lg_u32 s37, 31"); A("s_cbranch_scc1 L_w4b")
    A("s_mov_b64 exec, 15")
    A("global_store_dword v19, v16, s[26:27] sc1")
    A("s_mov_b64 exec, -1")
    LB("L_w4b")
    if barmode == "late2": A("s_barrier")
    TS(11)
    A(f"v_add_u32 v10, {HN}, v1")
    A("s_lshl_b32 s40, s50, 8"); A(f"s_add_u32 s40, s40, {HN}")
    A("v_lshlrev_b32 v11, 7, v22"); A("v_lshl_add_u32 v11, v20, 4, v11"); A("v_add_u32 v11, s40, v11")
    A("v_lshlrev_b32 v13, 8, v22"); A("v_lshl_add_u32 v13, v23, 5, v13"); A(f"v_add_u32 v13, {SP}, v13")
    A(f"v_lshlrev_b32 v14, 2, v0"); A(f"v_add_u32 v18, {QL}, v14"); A(f"v_add_u32 v14, {SP}, v14")
    A("s_lshl_b32 s40, s36, 14"); A(f"s_add_u32 s40, s40, {QBUF + 4096}")
    A("v_add_u32 v17, s40, v1"); A("v_add_u32 v19, 0x2000, v17")
    A("s_lshl_b32 s41, s50, 12"); A("s_add_u32 s40, s40, s41"); A("s_lshl_b32 s41, s58, 9"); A("s_add_u32 s40, s40, s41"); A("s_sub_u32 s40, s40, 4096")
    A("v_lshl_add_u32 v15, v0, 3, s40")
    A("s_lshl_b32 s40, s2, 2"); A(f"s_add_u32 s40, s40, {ALIVE}"); A("v_mov_b32 v12, s40")
    A("s_waitcnt vmcnt(19)")
    TS(1)
    layernorm(4, 24, 32)
    A("ds_write_b128 v10, v[4:7]")
    A("ds_read_b128 v[40:43], v11"); A("ds_read_b128 v[44:47], v11 offset:64")
    A("s_waitcnt vmcnt(11)")
    transpose8(96, 160)
    A("s_waitcnt lgkmcnt(0)")
    for e in range(8): A(f"v_mfma_f32_16x16x32_bf16 {vr(48+4*e,4)}, v[40:43], {vr(96+4*e,4)}, 0")
    A("s_waitcnt vmcnt(3)")
    TS(2)
    transpose8(128, 192)
    A("s_nop 1")
    for e in range(8): A(f"v_mfma_f32_16x16x32_bf16 {vr(48+4*e,4)}, v[44:47], {vr(128+4*e,4)}, {vr(48+4*e,4)}")
    A("s_mov_b32 exec_lo, 0xff"); A("s_mov_b32 exec_hi, 0xff00")
    A("s_nop 5")
    for e in range(0, 8, 2): A(f"ds_write2_b32 v13, v{48+4*e}, v{52+4*e} offset0:{e} offset1:{e+1}")
    A("s_mov_b64 exec, -1")
    A("ds_read2_b32 v[24:25], v14 offset0:0 offset1:64")
    A("s_waitcnt vmcnt(0)")
    A(f"v_add_u32 v3, {TAGC:#x}, v3")
    A("s_waitcnt lgkmcnt(0)")
    A("v_add_f32 v2, v24, v25")
    A("global_store_dwordx2 v15, v[2:3], s[26:27] sc1")
    A("s_mov_b64 exec, 1")
    A("global_store_dword v12, v3, s[26:27] sc1")
    A(f"v_mov_b32 v12, {PUBD}"); A("ds_write_b32 v12, v12")
    A("s_mov_b64 exec, -1")
    TS(3)
    A(f"s_mov_b32 s51, {SPIN_MAX}")
    def qload(r):
        for i in range(16): A(f"global_load_dwordx4 {vr(r+4*i,4)}, v{17 if i < 8 else 19}, s[26:27] offset:{(i % 8) * 1024 - 4096} sc1")
    def qcheck(r):
        A(f"v_xor_b32 v24, v{r+1}, v3"); A(f"v_xor_b32 v25, v{r+3}, v3")
        ws = [r + 4 * i + k for i in range(1, 16) for k in (1, 3)]
        for n, w in enumerate(ws):
            A(f"v_xor_b32 v26, v{w}, v3"); A(f"v_or_b32 v{24 + (n & 1)}, v{24 + (n & 1)}, v26")
        A("v_or_b32 v24, v24, v25"); A("v_cmp_ne_u32 vcc, 0, v24")
    def qsum(r):
        for k in range(4):
            for h in (0, 2):
                A(f"v_add_f32 v{r+4*k+h}, v{r+4*k+h}, v{r+16+4*k+h}"); A(f"v_add_f32 v{r+32+4*k+h}, v{r+32+4*k+h}, v{r+48+4*k+h}")
        for k in range(4):
            for h in (0, 2): A(f"v_add_f32 v{r+4*k+h}, v{r+4*k+h}, v{r+32+4*k+h}")
        for k in range(4): A(f"v_cvt_pk_bf16_f32 v{24+k}, v{r+4*k}, v{r+4*k+2}")
    C("the group's 32 words announce the partial q stores; the tags inside the data are what is trusted")
    A("s_lshl_b32 s40, s36, 7"); A(f"s_add_u32 s40, s40, {ALIVE}"); A("v_and_b32 v12, 31, v0"); A("v_lshl_add_u32 v12, v12, 2, s40")
    A("global_load_dword v28, v12, s[26:27] sc1")
    A(f"s_sleep {qsleep}")
    LB("L_qhint")
    A("global_load_dword v29, v12, s[26:27] sc1")
    A("s_waitcnt vmcnt(1)")
    A("v_cmp_eq_u32 vcc, v28, v3"); A("s_bcnt1_i32_b32 s40, vcc_lo"); A(f"s_cmp_ge_u32 s40, {QTH}"); A("s_cbranch_scc1 L_qgo")
    A("global_load_dword v28, v12, s[26:27] sc1")
    A("s_waitcnt vmcnt(1)")
    A("v_cmp_eq_u32 vcc, v29, v3"); A("s_bcnt1_i32_b32 s40, vcc_lo")
    A("s_sub_u32 s51, s51, 1"); A("s_cbranch_scc1 L_qgo")
    A(f"s_cmp_lt_u32 s40, {QTH}"); A("s_cbranch_scc1 L_qhint")
    LB("L_qgo")
    TS(12)
    A("s_mov_b32 s55, 0xffff")
    LB("L_qpoll")
    for i in range(16):
        A(f"s_bitcmp1_b32 s55, {i}"); A(f"s_cbranch_scc0 L_qs{i}")
        A(f"global_load_dwordx4 {vr(96+4*i,4)}, v{17 if i < 8 else 19}, s[26:27] offset:{(i % 8) * 1024 - 4096} sc1")
        LB(f"L_qs{i}")
    A("s_waitcnt vmcnt(0)")
    for i in range(16):
        A(f"v_cmp_ne_u32 vcc, v{97+4*i}, v3"); A(f"v_cmp_ne_u32 s[40:41], v{99+4*i}, v3"); A("s_or_b64 vcc, vcc, s[40:41]")
        A(f"s_cbranch_scc1 L_qc{i}"); A(f"s_bitset0_b32 s55, {i}"); LB(f"L_qc{i}")
    A("s_sub_u32 s51, s51, 1"); A("s_cbranch_scc1 L_qgot")
    A("s_cmp_lg_u32 s55, 0"); A("s_cbranch_scc1 L_qpoll")
    LB("L_qgot")
    qsum(96)
    A("ds_write2_b32 v18, v24, v25 offset0:0 offset1:64"); A("ds_write2_b32 v18, v26, v27 offset0:128 offset1:192")
    A(f"v_mov_b32 v18, {QRDY}"); A("v_mov_b32 v19, 1")
    A("ds_write_b32 v18, v19")
    A("s_waitcnt lgkmcnt(0)")
    A("s_setprio 0")
    TS(4)
    if touch:
        A("v_lshlrev_b32 v4, 21, v0"); A("s_lshl_b32 s40, s36, 24"); A(f"s_add_u32 s40, s40, {0x200000 - 128}"); A("v_add_u32 v4, s40, v4")
        A("s_mov_b64 exec, 0xff")
        A("global_load_dword v240, v4, s[6:7] nt"); A("global_load_dword v240, v4, s[8:9] nt")
        A("s_mov_b64 exec, -1")
    A("s_waitcnt vmcnt(0)")
    LB("L_roles")
    if noroles: A("s_branch L_hdone")
    A("s_cmp_eq_u32 s47, 1"); A("s_cbranch_scc1 L_ffn")
    A("s_cmp_eq_u32 s47, 0"); A("s_cbranch_scc0 L_hdone")
    A("s_mov_b32 s40, s36"); A("s_mov_b32 s36, s48"); A("s_mov_b32 s48, s40")

    C("wo role: merge 32 splits of one kv group, multiply by a 512x64 block of wo")
    A("s_lshl_b32 s40, s36, 2"); A("s_add_u32 s40, s40, s39")
    A("s_lshl_b32 s41, s40, 17"); A("s_lshl_b32 s42, s48, 7"); A("s_add_u32 s41, s41, s42"); A("s_add_u32 s41, s41, 4096")
    A("s_add_u32 s52, s12, s41"); A("s_addc_u32 s53, s13, 0")
    A("v_lshlrev_b32 v58, 16, v22"); A("v_lshl_add_u32 v58, v20, 13, v58"); A("v_lshl_add_u32 v58, v23, 4, v58"); A("v_add_u32 v59, 0x8000, v58")
    def wo_weights():
        if jitw: gate_wait("L_w_jit", 1); TS(11)
        for s in range(2):
            for i in range(8): A(f"global_load_dwordx4 {vr(160+32*s+4*i,4)}, v{58+s}, s[52:53] offset:{1024*i-4096} {w_flags}")
            if not jitw: A("s_waitcnt vmcnt(0)")
        for s in range(2):
            A(f"s_waitcnt vmcnt({8 - 8*s})")
            transpose8(96 + 32 * s, 160 + 32 * s)
        TS(5)
    if not jitw: wo_weights()
    alive("w")
    A("s_lshl_b32 s41, s40, 13"); A(f"s_add_u32 s41, s41, {PART}")
    A("v_lshlrev_b32 v14, 4, v21"); A("v_lshl_add_u32 v4, v20, 11, v14"); A("v_add_u32 v4, s41, v4")
    A("s_lshl_b32 s41, s40, 8"); A(f"s_add_u32 s41, s41, {ML}")
    A("v_and_b32 v8, 31, v0"); A("v_lshl_add_u32 v6, v8, 3, s41")
    A("s_lshl_b32 s41, s39, 6"); A(f"s_add_u32 s41, s41, {WB}")
    A("v_lshl_add_u32 v9, v8, 1, s41"); A("v_lshl_add_u32 v10, v20, 4, s41")
    A("s_lshl_b32 s41, s39, 8"); A(f"s_add_u32 s41, s41, {OB}")
    A("v_add_u32 v11, s41, v14")
    A("v_lshlrev_b32 v12, 7, v22"); A("v_lshl_add_u32 v12, v20, 4, v12"); A("v_add_u32 v12, s41, v12")
    A("s_lshl_b32 s41, s39, 9"); A(f"s_add_u32 s41, s41, {RED}")
    A("v_lshlrev_b32 v13, 8, v22"); A("v_lshl_add_u32 v13, v23, 5, v13"); A("v_add_u32 v13, s41, v13")
    A(f"v_add_u32 v15, {RED}, v14")
    A("s_lshl_b32 s41, s36, 11"); A("s_lshl_b32 s42, s48, 8"); A("s_add_u32 s54, s41, s42")
    if jitw: wo_weights()
    if not dry: gate_wait("L_wo_gate0", 2 if g2 else 1); TS(8)
    LB("L_wo_pass")
    A(f"s_mov_b32 s41, {H2}"); A("s_cmp_eq_u32 s46, 0"); A(f"s_cmov_b32 s41, {DUMMY}"); A("s_add_u32 s41, s41, s54")
    A("v_add_u32 v7, s41, v14")
    A(f"s_mov_b32 s51, {SPIN_MAX}")
    LB("L_wo_ml")
    A("global_load_dwordx2 v[80:81], v6, s[26:27] sc1")
    A("s_waitcnt vmcnt(0)")
    any_poison([80, 81], 84)
    A("s_bcnt1_i32_b32 s57, vcc_lo")
    A("s_cmp_eq_u32 s46, 0"); A("s_cbranch_scc1 L_wo_go")
    A("s_sub_u32 s51, s51, 1"); A("s_cbranch_scc1 L_wo_go")
    A(f"s_cmp_gt_u32 s57, {32 - MLTH}"); A("s_cbranch_scc1 L_wo_ml")
    LB("L_wo_go")
    TS(9)
    def wload(r, m):
        A(f"global_load_dwordx2 {vr(m,2)}, v6, s[26:27] sc1")
        for i in range(8): A(f"global_load_dwordx4 {vr(r+4*i,4)}, v4, s[26:27] offset:{256*i} sc1")
    def wcheck(r, m): any_poison([m, m+1] + list(range(r, r + 32)), 84)
    wload(16, 80)
    if stag: A(f"s_sleep {stag}")
    LB("L_wo_poll")
    if ts: A("s_add_u32 s79, s79, 1")
    wload(48, 82)
    A("s_waitcnt vmcnt(9)")
    wcheck(16, 80)
    A("s_cbranch_vccz L_wo_gotA")
    wload(16, 80)
    A("s_waitcnt vmcnt(9)")
    wcheck(48, 82)
    A("s_cmp_eq_u32 s46, 0"); A("s_cbranch_scc1 L_wo_gotB")
    A("s_sub_u32 s51, s51, 1"); A("s_cbranch_scc1 L_wo_gotB")
    A("s_cbranch_vccnz L_wo_poll")
    def wcomb(r, m):
        TS(6)
        A(f"v_mov_b32 v84, v{m}")
        P = []
        for e in range(8):
            for j in range(4):
                x = r + 4 * (2 * j) + (e >> 1); y = r + 4 * (2 * j + 1) + (e >> 1)
                P.append(f"v_perm_b32 v{160+4*e+j}, v{y}, v{x}, s{45 if e & 1 else 44}")
        def fill(n):
            for _ in range(n): A(P.pop(0))
        for rot in (8, 4, 2, 1):
            fill(2); A(f"v_min_f32_dpp v84, v84, v84 row_ror:{rot} row_mask:0xf bank_mask:0xf")
        A("v_mov_b32 v85, v84"); fill(2); A("v_permlane16_swap_b32 v84, v85"); A("v_min_f32 v84, v84, v85")
        A(f"v_sub_f32 v84, v84, v{m}"); A("v_exp_f32 v84, v84"); fill(1)
        A("v_cvt_pk_bf16_f32 v86, v84, v84")
        A("ds_write_b16 v9, v86"); A("ds_read_b128 v[88:91], v10")
        A(f"v_mul_f32 v85, v84, v{m+1}")
        for rot in (8, 4, 2, 1):
            fill(2); A(f"v_add_f32_dpp v85, v85, v85 row_ror:{rot} row_mask:0xf bank_mask:0xf")
        A("v_mov_b32 v86, v85"); fill(2); A("v_permlane16_swap_b32 v85, v86"); A("v_add_f32 v85, v85, v86")
        A("v_rcp_f32 v85, v85")
        fill(len(P))
    LB("L_wo_gotB")
    wcomb(48, 82)
    A("s_cmp_eq_u32 s46, 0"); A("s_cbranch_scc0 L_wo_got")
    LB("L_wo_gotA")
    wcomb(16, 80)
    LB("L_wo_got")
    A("s_waitcnt lgkmcnt(0)")
    for e in range(8): A(f"v_mfma_f32_16x16x32_bf16 {vr(192+4*e,4)}, v[88:91], {vr(160+4*e,4)}, 0")
    A("s_nop 0")
    for e in range(8): A(f"v_mul_f32 v{192+4*e}, v{192+4*e}, v85")
    for k in range(4): A(f"v_cvt_pk_bf16_f32 v{88+k}, v{192+8*k}, v{196+8*k}")
    A("ds_write_b128 v11, v[88:91]")
    A("ds_read_b128 v[160:163], v12"); A("ds_read_b128 v[164:167], v12 offset:64")
    A("s_waitcnt lgkmcnt(1)")
    for e in range(8): A(f"v_mfma_f32_16x16x32_bf16 {vr(192+4*e,4)}, v[160:163], {vr(96+4*e,4)}, 0")
    A("s_waitcnt lgkmcnt(0)")
    for e in range(8): A(f"v_mfma_f32_16x16x32_bf16 {vr(192+4*e,4)}, v[164:167], {vr(128+4*e,4)}, {vr(192+4*e,4)}")
    A("s_mov_b32 exec_lo, 0xff"); A("s_mov_b32 exec_hi, 0xff00")
    A("s_nop 5")
    for e in range(0, 8, 2): A(f"ds_write2_b32 v13, v{192+4*e}, v{196+4*e} offset0:{e} offset1:{e+1}")
    A("s_mov_b64 exec, -1")
    barrier_real("L_wo_nb")
    A("s_cmp_lg_u32 s39, 0"); A("s_cbranch_scc1 L_wo_next")
    for p in range(8): A(f"ds_read_b128 {vr(160+4*p,4)}, v15 offset:{256*p}")
    for st, wcnt in ((0, 6), (8, 4), (16, 2), (24, 0)):
        A(f"s_waitcnt lgkmcnt({wcnt})")
        for h in range(2): A(f"v_pk_add_f32 {vr(160+st+2*h,2)}, {vr(160+st+2*h,2)}, {vr(164+st+2*h,2)}")
    for h in range(2): A(f"v_pk_add_f32 {vr(160+2*h,2)}, {vr(160+2*h,2)}, {vr(168+2*h,2)}")
    for h in range(2): A(f"v_pk_add_f32 {vr(176+2*h,2)}, {vr(176+2*h,2)}, {vr(184+2*h,2)}")
    for h in range(2): A(f"v_pk_add_f32 {vr(160+2*h,2)}, {vr(160+2*h,2)}, {vr(176+2*h,2)}")
    A("s_mov_b64 exec, 0xffff")
    A("global_store_dwordx4 v7, v[160:163], s[26:27] sc1")
    A("s_mov_b64 exec, -1")
    LB("L_wo_next")
    TS(7)
    A("s_cmp_eq_u32 s46, 1"); A("s_cbranch_scc1 L_hdone")
    A("s_mov_b32 s46, 1")
    gate_wait("L_wo_gate", 2 if g2 else 1)
    TS(8)
    A("s_branch L_wo_pass")

    LB("L_ffn")
    C("ffn role: h, LN(h), 32 gate/up columns, 32 rows of w2; first 16 also finish 32 output columns")
    def ffn_weights():
        A("v_lshlrev_b32 v58, 6, v22"); A("v_lshl_add_u32 v58, v20, 3, v58"); A("s_lshl_b32 s40, s39, 7"); A("v_add_u32 v58, s40, v58")
        A("s_movk_i32 s40, 3584"); A("v_mul_u32_u24 v58, s40, v58")
        A("v_and_b32 v59, 3, v21"); A("v_lshl_add_u32 v58, v59, 4, v58"); A("s_lshl_b32 s40, s49, 6"); A("v_add_u32 v58, s40, v58")
        A("v_bfe_u32 v59, v21, 2, 1"); A("v_cmp_eq_u32 vcc, 1, v59")
        A("v_mov_b32 v60, s16"); A("v_mov_b32 v61, s18"); A("v_cndmask_b32 v60, v60, v61, vcc")
        A("v_mov_b32 v61, s17"); A("v_mov_b32 v62, s19"); A("v_cndmask_b32 v61, v61, v62, vcc")
        A("v_mov_b32 v59, 0"); A("v_lshl_add_u64 v[60:61], v[58:59], 0, v[60:61]")
        A("s_lshl_b32 s40, s49, 15"); A("s_lshl_b32 s41, s39, 8"); A("s_add_u32 s40, s40, s41"); A("s_add_u32 s40, s40, 4096")
        A("s_add_u32 s52, s20, s40"); A("s_addc_u32 s53, s21, 0")
        A("v_lshlrev_b32 v58, 13, v20"); A("v_lshl_add_u32 v58, v21, 4, v58")
        if jitf: gate_wait("L_f_jit", 1); TS(11)
        A("s_mov_b64 s[40:41], 7168"); A(f"s_mov_b64 s[42:43], {7168 + 24 * 3584}")
        for s in range(2):
            for i in range(8):
                A(f"global_load_dwordx4 {vr(160+32*s+4*i,4)}, v[60:61], off{' offset:3584' if i & 1 else ''} {w_flags}")
                if i & 1 and not (s == 1 and i == 7): A(f"v_lshl_add_u64 v[60:61], v[60:61], 0, {'s[42:43]' if i == 7 else 's[40:41]'}")
            if not jitf: A("s_waitcnt vmcnt(0)")
        for i in range(8): A(f"global_load_dwordx4 {vr(224+4*i,4)}, v58, s[52:53] offset:{1024*i-4096} {w_flags}")
        for s in range(3):
            A(f"s_waitcnt vmcnt({16 - 8*s})")
            transpose8(64 + 32 * s, 160 + 32 * s)
        TS(5)
    if not jitf: ffn_weights()
    A("v_and_b32 v8, 31, v0")
    A("s_lshl_b32 s40, s39, 8"); A("v_lshl_add_u32 v5, v8, 3, s40")
    A("global_load_dwordx2 v[48:49], v5, s[4:5]")
    A("s_waitcnt vmcnt(0)")
    unpack(50, 49)
    A("v_and_b32 v49, 0xffff0000, v48"); A("v_lshlrev_b32 v48, 16, v48")
    alive("f")
    A("v_lshrrev_b32 v9, 5, v0"); A("v_lshlrev_b32 v4, 11, v9"); A("v_lshl_add_u32 v4, v8, 4, v4")
    A("s_lshl_b32 s40, s39, 9"); A(f"s_add_u32 s40, s40, {H2 + 4096}"); A("v_add_u32 v4, s40, v4"); A("v_add_u32 v6, 0x2000, v4")
    A(f"v_add_u32 v5, {HB}, v5")
    A("s_lshl_b32 s40, s39, 3"); A(f"s_add_u32 s40, s40, {ST}"); A("v_mov_b32 v7, s40"); A(f"v_mov_b32 v9, {ST}")
    A("s_lshl_b32 s40, s39, 8"); A(f"s_add_u32 s40, s40, {HN}"); A("v_lshl_add_u32 v10, v8, 3, s40")
    A("v_lshlrev_b32 v11, 7, v22"); A("v_lshl_add_u32 v11, v20, 4, v11"); A("v_add_u32 v11, s40, v11")
    A("s_lshl_b32 s41, s39, 9"); A(f"s_add_u32 s41, s41, {RED}")
    A("v_lshlrev_b32 v13, 8, v22"); A("v_lshl_add_u32 v13, v23, 5, v13"); A("v_add_u32 v13, s41, v13")
    A(f"v_lshlrev_b32 v14, 2, v0"); A(f"v_add_u32 v14, {RED}, v14")
    A("s_lshl_b32 s41, s39, 6"); A(f"s_add_u32 s41, s41, {HM}")
    A("v_lshl_add_u32 v15, v8, 1, s41"); A("v_lshl_add_u32 v12, v20, 4, s41")
    A("v_lshrrev_b32 v52, 2, v21"); A("v_mul_u32_u24 v52, 7168, v52"); A("v_and_b32 v53, 3, v21"); A("v_lshl_add_u32 v52, v53, 5, v52"); A("v_lshl_add_u32 v52, v20, 4, v52")
    A("s_lshl_b32 s54, s49, 7"); A(f"s_mul_i32 s41, s39, {4*7168}"); A("s_add_u32 s54, s54, s41")
    A("v_cmp_eq_u32 s[56:57], 1, v20")
    A("s_mul_i32 s41, s59, 7168"); A(f"s_add_u32 s41, s41, {H3 + 3072}"); A("v_lshl_add_u32 v53, v0, 4, s41")
    A("v_and_b32 v54, 7, v0"); A("s_lshl_b32 s41, s59, 6"); A("v_lshl_add_u32 v54, v54, 3, s41"); A(f"v_add_u32 v55, {HB}, v54")
    if jitf: ffn_weights()
    if not dry: gate_wait("L_f_gate0", 2 if g2 else 1)
    LB("L_f_pass")
    A(f"s_mov_b32 s41, {H3}"); A("s_cmp_eq_u32 s46, 0"); A(f"s_cmov_b32 s41, {DUMMY}"); A("s_add_u32 s41, s41, s54")
    A("v_add_u32 v56, s41, v52")
    A(f"s_mov_b32 s51, {SPIN_MAX}")
    def hload(r):
        for i in range(4): A(f"global_load_dwordx4 {vr(r+4*i,4)}, v{4 if i < 2 else 6}, s[26:27] offset:{(i % 2) * 4096 - 4096} sc1")
    def hsum(r):
        TS(6)
        for h in range(2): A(f"v_pk_add_f32 {vr(40+2*h,2)}, {vr(r+2*h,2)}, {vr(r+4+2*h,2)}")
        for h in range(2): A(f"v_pk_add_f32 {vr(44+2*h,2)}, {vr(r+8+2*h,2)}, {vr(r+12+2*h,2)}")
    hload(192)
    if stag: A(f"s_sleep {stag}")
    LB("L_f_poll")
    hload(208)
    A("s_waitcnt vmcnt(4)")
    any_poison(range(192, 208), 40)
    A("s_cbranch_vccz L_f_gotA")
    hload(192)
    A("s_waitcnt vmcnt(4)")
    any_poison(range(208, 224), 40)
    A("s_cmp_eq_u32 s46, 0"); A("s_cbranch_scc1 L_f_gotB")
    A("s_sub_u32 s51, s51, 1"); A("s_cbranch_scc1 L_f_gotB")
    A("s_cbranch_vccnz L_f_poll")
    LB("L_f_gotB")
    hsum(208)
    A("s_cmp_eq_u32 s46, 0"); A("s_cbranch_scc0 L_f_got")
    LB("L_f_gotA")
    hsum(192)
    LB("L_f_got")
    for h in range(2): A(f"v_pk_add_f32 {vr(24+2*h,2)}, {vr(40+2*h,2)}, {vr(44+2*h,2)}")
    swap_red("add_f32", [24, 25, 26, 27], [28, 29, 30, 31], 32)
    A("v_cvt_pk_bf16_f32 v28, v24, v25"); A("v_cvt_pk_bf16_f32 v29, v26, v27")
    unpack(24, 28); unpack(26, 29)
    A("v_pk_add_f32 v[24:25], v[24:25], v[48:49]"); A("v_pk_add_f32 v[26:27], v[26:27], v[50:51]")
    A("v_cvt_pk_bf16_f32 v28, v24, v25"); A("v_cvt_pk_bf16_f32 v29, v26, v27")
    unpack(24, 28); unpack(26, 29)
    C("mean and centred sum of squares of this wave's 128 values; merged across waves after the barrier")
    A("v_add_f32 v30, v24, v25"); A("v_add_f32 v31, v26, v27"); A("v_add_f32 v30, v30, v31")
    A("ds_write_b64 v5, v[28:29]")
    dpp_red("add_f32", [30]); swap_red("add_f32", [30], [31], 16)
    A("v_mul_f32 v30, 0x3c000000, v30")
    for k in range(4): A(f"v_sub_f32 v{32+k}, v{24+k}, v30")
    A("v_mul_f32 v31, v32, v32"); A("v_mul_f32 v36, v33, v33"); A("v_fmac_f32 v31, v34, v34"); A("v_fmac_f32 v36, v35, v35"); A("v_add_f32 v31, v31, v36")
    dpp_red("add_f32", [31]); swap_red("add_f32", [31], [32], 16)
    A("ds_write_b64 v7, v[30:31]")
    barrier_real("L_f_nb1")
    A("ds_read_b128 v[32:35], v9"); A("ds_read_b128 v[36:39], v9 offset:16")
    A("s_waitcnt lgkmcnt(0)")
    A("v_add_f32 v30, v32, v34"); A("v_add_f32 v31, v36, v38"); A("v_add_f32 v33, v33, v35"); A("v_add_f32 v30, v30, v31"); A("v_add_f32 v37, v37, v39")
    A("v_mul_f32 v30, 0x3e800000, v30"); A("v_add_f32 v33, v33, v37")
    for k in (32, 34, 36, 38): A(f"v_sub_f32 v{k}, v{k}, v30")
    A("v_mul_f32 v32, v32, v32"); A("v_mul_f32 v36, v36, v36"); A("v_fmac_f32 v32, v34, v34"); A("v_fmac_f32 v36, v38, v38")
    bf16r(30)
    A("v_add_f32 v32, v32, v36"); A("v_mul_f32 v33, 0x3b000000, v33"); A("v_fmac_f32 v33, 0x3e800000, v32")
    for k in range(4): A(f"v_sub_f32 v{24+k}, v{24+k}, v30")
    bf16r(33)
    A("v_add_f32 v33, 0x3727c5ac, v33")
    bf16r(33)
    A("v_sqrt_f32 v33, v33")
    A("v_cvt_pk_bf16_f32 v28, v24, v25"); A("v_cvt_pk_bf16_f32 v29, v26, v27")
    bf16r(33)
    A("v_rcp_f32 v33, v33")
    unpack(24, 28); unpack(26, 29)
    for k in range(4): A(f"v_mul_f32 v{24+k}, v{24+k}, v33")
    A("v_cvt_pk_bf16_f32 v28, v24, v25"); A("v_cvt_pk_bf16_f32 v29, v26, v27")
    A("ds_write_b64 v10, v[28:29]")
    A("ds_read_b128 v[40:43], v11"); A("ds_read_b128 v[44:47], v11 offset:64")
    A("s_waitcnt lgkmcnt(1)")
    for e in range(8): A(f"v_mfma_f32_16x16x32_bf16 {vr(160+4*e,4)}, v[40:43], {vr(64+4*e,4)}, 0")
    A("s_waitcnt lgkmcnt(0)")
    for e in range(8): A(f"v_mfma_f32_16x16x32_bf16 {vr(160+4*e,4)}, v[44:47], {vr(96+4*e,4)}, {vr(160+4*e,4)}")
    A("s_mov_b32 exec_lo, 0xff"); A("s_mov_b32 exec_hi, 0xff00")
    A("s_nop 5")
    for e in range(0, 8, 2): A(f"ds_write2_b32 v13, v{160+4*e}, v{164+4*e} offset0:{e} offset1:{e+1}")
    A("s_mov_b64 exec, -1")
    barrier_real("L_f_nb2")
    TS(7)
    for p in range(8): A(f"ds_read_b32 v{24+p}, v14 offset:{256*p}")
    A("s_waitcnt lgkmcnt(4)")
    A("v_add_f32 v24, v24, v25"); A("v_add_f32 v26, v26, v27")
    A("s_waitcnt lgkmcnt(0)")
    A("v_add_f32 v28, v28, v29"); A("v_add_f32 v30, v30, v31")
    A("v_add_f32 v24, v24, v26"); A("v_add_f32 v28, v28, v30"); A("v_add_f32 v24, v24, v28")
    bf16r(24)
    A("v_mov_b32 v25, v24"); A("s_nop 1"); A("v_permlane32_swap_b32 v24, v25")
    A(f"v_mul_f32 v26, {NL2E:#x}, v24"); A("v_exp_f32 v26, v26"); A("s_nop 0")
    A("v_add_f32 v26, 1.0, v26"); A("v_rcp_f32 v26, v26"); A("s_nop 0")
    A("v_mul_f32 v26, v24, v26")
    bf16r(26)
    A("v_mul_f32 v26, v26, v25"); A("v_cvt_pk_bf16_f32 v26, v26, v26")
    A("ds_write_b16 v15, v26")
    A("ds_read_b128 v[40:43], v12")
    A("s_waitcnt lgkmcnt(0)")
    for e in range(8): A(f"v_mfma_f32_16x16x32_bf16 {vr(160+4*e,4)}, v[40:43], {vr(128+4*e,4)}, 0")
    A("s_nop 4")
    for e in range(4): A(f"v_cndmask_b32 v{24+e}, v{160+4*e}, v{176+4*e}, s[56:57]")
    A("s_mov_b32 exec_hi, 0")
    A("global_store_dwordx4 v56, v[24:27], s[26:27] sc1")
    A("s_mov_b64 exec, -1")
    TS(8)
    A("s_cmp_lg_u32 s39, 0"); A("s_cbranch_scc1 L_f_next")
    A("s_cmp_ge_u32 s59, 16"); A("s_cbranch_scc1 L_f_next")
    C("final stage: 32 output columns")
    def oload(r):
        for i in range(7): A(f"global_load_dwordx4 {vr(r+4*i,4)}, v53, s[26:27] offset:{1024*i-3072} sc1")
    def osum(r):
        TS(9)
        for d, x, y in ((160, r, r+4), (164, r+8, r+12), (168, r+16, r+20), (160, 160, r+24)):
            for h in range(2): A(f"v_pk_add_f32 {vr(d+2*h,2)}, {vr(x+2*h,2)}, {vr(y+2*h,2)}")
    A("s_waitcnt vmcnt(1)")
    oload(192)
    A(f"s_add_u32 s42, s26, {DUMMY}"); A("s_addc_u32 s43, s27, 0")
    A("s_cmp_eq_u32 s46, 0"); A("s_cselect_b32 s42, s42, s22"); A("s_cselect_b32 s43, s43, s23")
    A("ds_read_b64 v[44:45], v55")
    A(f"s_mov_b32 s51, {SPIN_MAX}")
    if stag: A(f"s_sleep {stag}")
    LB("L_o_poll")
    oload(220)
    A("s_waitcnt vmcnt(7)")
    any_poison(range(192, 220), 40)
    A("s_cbranch_vccz L_o_gotA")
    oload(192)
    A("s_waitcnt vmcnt(7)")
    any_poison(range(220, 248), 40)
    A("s_cmp_eq_u32 s46, 0"); A("s_cbranch_scc1 L_o_gotB")
    A("s_sub_u32 s51, s51, 1"); A("s_cbranch_scc1 L_o_gotB")
    A("s_cbranch_vccnz L_o_poll")
    LB("L_o_gotB")
    osum(220)
    A("s_cmp_eq_u32 s46, 0"); A("s_cbranch_scc0 L_o_got")
    LB("L_o_gotA")
    osum(192)
    LB("L_o_got")
    for d, y in ((164, 168), (160, 164)):
        for h in range(2): A(f"v_pk_add_f32 {vr(d+2*h,2)}, {vr(d+2*h,2)}, {vr(y+2*h,2)}")
    A("s_nop 0")
    for k in range(4): A(f"v_add_f32_dpp v{160+k}, v{160+k}, v{160+k} row_ror:8 row_mask:0xf bank_mask:0xf")
    swap_red("add_f32", [160, 161, 162, 163], [164, 165, 166, 167], 16)
    swap_red("add_f32", [160, 161, 162, 163], [164, 165, 166, 167], 32)
    A("v_cvt_pk_bf16_f32 v164, v160, v161"); A("v_cvt_pk_bf16_f32 v165, v162, v163")
    unpack(160, 164); unpack(162, 165)
    A("s_waitcnt lgkmcnt(0)")
    unpack(164, 44); unpack(166, 45)
    A("v_pk_add_f32 v[160:161], v[160:161], v[164:165]"); A("v_pk_add_f32 v[162:163], v[162:163], v[166:167]")
    A("v_cvt_pk_bf16_f32 v160, v160, v161"); A("v_cvt_pk_bf16_f32 v161, v162, v163")
    A("s_mov_b64 exec, 0xff")
    A("global_store_dwordx2 v54, v[160:161], s[42:43]")
    A("s_mov_b64 exec, -1")
    A("s_cmp_eq_u32 s46, 0"); A("s_cbranch_scc1 L_f_next")
    A("s_cmp_lg_u32 s59, 0"); A("s_cbranch_scc1 L_f_next")
    A("v_mov_b32 v57, 0"); A("s_mov_b64 exec, 1")
    A("global_store_dword v57, v3, s[26:27] sc1")
    A("s_mov_b64 exec, -1")
    LB("L_f_next")
    TS(10)
    A("s_cmp_eq_u32 s46, 1"); A("s_cbranch_scc1 L_hdone")
    A("s_mov_b32 s46, 1")
    gate_wait("L_f_gate", 2 if g2 else 1)
    A("s_branch L_f_pass")
    LB("L_hdone")
    TS_flush("H")
    LB("L_end")
    A("s_endpgm")
    L.append('.section .rodata,"a"'); L.append(".p2align 6"); L.append(f".amdhsa_kernel {NAME}_kernel")
    for s in ("next_free_vgpr 256", "next_free_sgpr 96", "accum_offset 256", "group_segment_fixed_size 0", "kernarg_size 96",
              "user_sgpr_count 2", "user_sgpr_kernarg_segment_ptr 1", "system_sgpr_workgroup_id_x 1", "float_denorm_mode_32 3"):
        L.append("  .amdhsa_" + s)
    L.append(".end_amdhsa_kernel")
    return "\n".join(L) + "\n"

if __name__ == "__main__":
    kw = eval("dict(" + (sys.argv[2] if len(sys.argv) > 2 else "") + ")")
    open(sys.argv[1], "w").write(gen(**kw))
```

```python
import sys
NAME = "sequential_preLN__gqa_block_cached__glu_gated_swiglu__decode"

WQL = 0x20000; SP = 0x20000
QL = 0x24400; SML = 0x24800; CNT = 0x24880; GATE = 0x24884; QRDY = 0x24888; PUBD = 0x2488C
WB = 0x25000; OB = 0x25200; RED = 0x25800; HB = 0x26000; HM = 0x26400; ST = 0x26600; HN = 0x26800
LDS_BYTES = 163840
EPOCH = 0; ALIVE = 0x400; POOL = 0xC000; QBUF = 0xD0000; ML = 0x6000; H2 = 0x8000; PART = 0x10000; H3 = 0x90000; DUMMY = 0xB0000; TSB = 0x100000
TAGC = 0x9E3779B9
L2E = 0x3FB8AA3B; NL2E = 0xBFB8AA3B; SCALE = 0x3DB504F3
SPIN_MAX = 1 << 16

def gen(PACE=5, PACE0=5, S=27, NG=8, touch=False, qsleep=8, early=False, hold=False, gsleep=2, jitf=False, jitw=False, wqmap=False, ksplit=True, TPOS=4, g2=True, R1=8, R2=5, barmode="late2", pf=True, stag=3, wend=False, rr=True, noswz=False, nocomp=False, noh=False, NV=4, VSTART=2, VSTEP=2, VW=0, align=0, fake='', QTH=20, MLTH=26, noroles=False, dbgts=False, prog=False, ts=False, dry=False, wq_flags="nt", w_flags="nt", kv_flags="nt"):
    PR = 128 - 4 * S; D = 8 * PR; PRM = -(-(1 << 16) // PR)
    assert all((t * PRM) >> 16 == t // PR for t in range(D))
    L = []
    def A(s): L.append("  " + s)
    def LB(s): L.append(s + ":")
    def C(s): L.append("  ; " + s)
    def vr(a, n): return f"v[{a}:{a+n-1}]"
    def TS(k):
        if ts:
            A("s_memrealtime s[60:61]"); A("s_waitcnt lgkmcnt(0)"); A(f"s_mov_b32 s{64+k}, s60")
    def TS_flush(kind="S"):
        if ts and dbgts:
            A("s_mov_b64 exec, -1"); A("v_mov_b32 v250, 0")
            if kind == "S":
                A("s_not_b32 s62, s64"); A("v_writelane_b32 v250, s62, 0"); A("s_not_b32 s62, s70"); A("v_writelane_b32 v250, s62, 13")
                for lane, k in ((1, 6), (2, 1), (3, 2), (4, 5)): A(f"v_writelane_b32 v250, s{64+k}, {lane}")
            else:
                for lane, k in ((5, 1), (6, 3), (7, 4)): A(f"v_writelane_b32 v250, s{64+k}, {lane}")
                A("s_not_b32 s62, s68"); A("s_cmp_eq_u32 s68, 0"); A("s_cselect_b32 s62, 0, s62"); A("v_writelane_b32 v250, s62, 14")
                A("s_cmp_eq_u32 s47, 0"); A("s_cbranch_scc0 L_dbgf")
                A("v_writelane_b32 v250, s70, 8"); A("v_writelane_b32 v250, s71, 9"); A("s_branch L_dbge")
                LB("L_dbgf")
                A("v_writelane_b32 v250, s70, 10"); A("v_writelane_b32 v250, s72, 11"); A("v_writelane_b32 v250, s74, 12")
                LB("L_dbge")
            A("v_mbcnt_lo_u32_b32 v251, -1, 0"); A("v_mbcnt_hi_u32_b32 v251, -1, v251"); A("v_lshlrev_b32 v251, 2, v251")
            A("s_mov_b64 exec, 0xffff")
            A("global_atomic_umax v251, v250, s[24:25] sc1")
        elif ts:
            A("s_mov_b64 exec, -1")
            A("v_mov_b32 v250, 0")
            for k in range(16): A(f"v_writelane_b32 v250, s{64+k}, {k}")
            A("v_mbcnt_lo_u32_b32 v251, -1, 0"); A("v_mbcnt_hi_u32_b32 v251, -1, v251")
            A("s_lshl_b32 s62, s2, 3"); A("s_add_u32 s62, s62, s3"); A("s_lshl_b32 s62, s62, 6"); A(f"s_add_u32 s62, s62, {TSB}")
            A("v_lshl_add_u32 v251, v251, 2, s62")
            A("s_mov_b64 exec, 0xffff")
            A("global_store_dword v251, v250, s[26:27]")
    def dpp_red(op, xs):
        for rot in (8, 4, 2, 1):
            if len(xs) < 3: A(f"s_nop {2 - len(xs)}" if len(xs) < 2 else "s_nop 0")
            for x in xs: A(f"v_{op}_dpp v{x}, v{x}, v{x} row_ror:{rot} row_mask:0xf bank_mask:0xf")
    def swap_red(op, xs, ts_, which):
        for x, t in zip(xs, ts_): A(f"v_mov_b32 v{t}, v{x}")
        A("s_nop 1")
        for x, t in zip(xs, ts_): A(f"v_permlane{which}_swap_b32 v{x}, v{t}")
        for x, t in zip(xs, ts_): A(f"v_{op} v{x}, v{x}, v{t}")
    def unpack(dst, src):
        A(f"v_lshlrev_b32 v{dst}, 16, v{src}"); A(f"v_and_b32 v{dst+1}, 0xffff0000, v{src}")
    def bf16r(x):
        A(f"v_cvt_pk_bf16_f32 v{x}, v{x}, v{x}"); A(f"v_and_b32 v{x}, 0xffff0000, v{x}")
    def layernorm(src, f, t):
        for k in range(4): unpack(f + 2 * k, src + k)
        A(f"v_add_f32 v{t}, v{f}, v{f+1}"); A(f"v_add_f32 v{t+1}, v{f+2}, v{f+3}")
        A(f"v_add_f32 v{t+2}, v{f+4}, v{f+5}"); A(f"v_add_f32 v{t+3}, v{f+6}, v{f+7}")
        A(f"v_add_f32 v{t}, v{t}, v{t+1}"); A(f"v_add_f32 v{t+2}, v{t+2}, v{t+3}"); A(f"v_add_f32 v{t}, v{t}, v{t+2}")
        dpp_red("add_f32", [t]); swap_red("add_f32", [t], [t+1], 16); swap_red("add_f32", [t], [t+1], 32)
        A(f"v_mul_f32 v{t}, 0x3b000000, v{t}")
        A(f"v_sub_f32 v{t+2}, v{f}, v{t}"); A(f"v_mul_f32 v{t+1}, v{t+2}, v{t+2}")
        for k in range(1, 8):
            A(f"v_sub_f32 v{t+2}, v{f+k}, v{t}"); A(f"v_fmac_f32 v{t+1}, v{t+2}, v{t+2}")
        bf16r(t)
        dpp_red("add_f32", [t+1]); swap_red("add_f32", [t+1], [t+2], 16); swap_red("add_f32", [t+1], [t+2], 32)
        A(f"v_mul_f32 v{t+1}, 0x3b000000, v{t+1}")
        bf16r(t+1)
        A(f"v_add_f32 v{t+1}, 0x3727c5ac, v{t+1}")
        bf16r(t+1)
        A(f"v_sqrt_f32 v{t+1}, v{t+1}")
        for k in range(8): A(f"v_sub_f32 v{f+k}, v{f+k}, v{t}")
        bf16r(t+1)
        A(f"v_rcp_f32 v{t+1}, v{t+1}")
        for k in range(4): A(f"v_cvt_pk_bf16_f32 v{src+k}, v{f+2*k}, v{f+2*k+1}")
        for k in range(4): unpack(f + 2 * k, src + k)
        for k in range(8): A(f"v_mul_f32 v{f+k}, v{f+k}, v{t+1}")
        for k in range(4): A(f"v_cvt_pk_bf16_f32 v{src+k}, v{f+2*k}, v{f+2*k+1}")
    def transpose8(dst, src):
        for e in range(8):
            for j in range(4):
                a = src + 4 * (2 * j) + (e >> 1); b = src + 4 * (2 * j + 1) + (e >> 1)
                A(f"v_perm_b32 v{dst+4*e+j}, v{b}, v{a}, s{45 if e & 1 else 44}")
    def any_poison(regs, t):
        regs = list(regs)
        A(f"v_max3_u32 v{t}, v{regs[0]}, v{regs[1]}, v{regs[2]}" if len(regs) >= 3 else f"v_max_u32 v{t}, v{regs[0]}, v{regs[1]}")
        rest = regs[3:] if len(regs) >= 3 else []
        while len(rest) >= 2:
            A(f"v_max3_u32 v{t}, v{t}, v{rest[0]}, v{rest[1]}"); rest = rest[2:]
        if rest: A(f"v_max_u32 v{t}, v{t}, v{rest[0]}")
        A(f"v_cmp_eq_u32 vcc, -1, v{t}")
    def barrier_real(lbl):
        A("s_waitcnt lgkmcnt(0)")
        A("s_cmp_eq_u32 s46, 0"); A(f"s_cbranch_scc1 {lbl}"); A("s_barrier"); LB(lbl)
    def alive(tag):
        if wend: A("s_branch L_hdone")
        C("every workgroup reset its hand-off slots before it wrote its word here")
        A(f"v_lshlrev_b32 v4, 4, v0"); A(f"v_add_u32 v4, {ALIVE}, v4")
        A(f"s_mov_b32 s51, {SPIN_MAX}")
        LB(f"L_alive_{tag}")
        A("global_load_dwordx4 v[24:27], v4, s[26:27] sc1")
        A("s_sub_u32 s51, s51, 1"); A(f"s_cbranch_scc1 L_alive_ok_{tag}")
        A("s_waitcnt vmcnt(0)")
        for k in range(4): A(f"v_xor_b32 v{24+k}, v{24+k}, v3")
        A("v_or3_b32 v24, v24, v25, v26"); A("v_or_b32 v24, v24, v27")
        A("v_cmp_ne_u32 vcc, 0, v24"); A(f"s_cbranch_vccnz L_alive_{tag}")
        LB(f"L_alive_ok_{tag}")
        A("s_waitcnt vmcnt(0)")
    def gate_wait(lbl, lvl=1):
        A(f"v_mov_b32 v1, {GATE}")
        LB(lbl)
        A(f"s_sleep {gsleep}"); A("ds_read_b32 v2, v1"); A("s_waitcnt lgkmcnt(0)"); A("v_readfirstlane_b32 s40, v2")
        A(f"s_cmp_lt_u32 s40, {lvl}"); A(f"s_cbranch_scc1 {lbl}")

    L.append(f"; @launch grid=(256,1,1) block=(512,1,1) lds={LDS_BYTES}")
    L.append('.amdgcn_target "amdgcn-amd-amdhsa--gfx950"')
    L.append(".text"); L.append(f".globl {NAME}_kernel"); L.append(".p2align 8"); L.append(f".type {NAME}_kernel,@function")
    LB(f"{NAME}_kernel")
    A("s_cmp_ge_u32 s2, 256"); A("s_cbranch_scc1 L_end")
    A("s_load_dwordx16 s[4:19], s[0:1], 0")
    A("s_load_dwordx8 s[20:27], s[0:1], 64")
    if ts:
        for k in range(16): A(f"s_mov_b32 s{64+k}, 0")
        A("s_memrealtime s[60:61]")
    A("v_lshrrev_b32 v1, 6, v0")
    A("v_and_b32 v0, 63, v0")
    A("v_readfirstlane_b32 s3, v1")
    if pf:
        C("one idle wave pulls this kernel's code towards the L2 while the others start")
        A("s_cmp_lg_u32 s3, 5"); A("s_cbranch_scc1 L_nopf")
        A("s_getpc_b64 s[40:41]"); LB("L_pc")
        A(f"s_sub_u32 s40, s40, L_pc-{NAME}_kernel"); A("s_subb_u32 s41, s41, 0")
        A("v_lshlrev_b32 v8, 7, v0"); A(f"v_min_u32 v9, L_end-{NAME}_kernel-8192, v8")
        A("global_load_dword v10, v8, s[40:41]"); A("s_add_u32 s40, s40, 8192"); A("s_addc_u32 s41, s41, 0"); A("global_load_dword v10, v9, s[40:41]")
        LB("L_nopf")
    A("s_lshr_b32 s36, s2, 5")
    A("s_and_b32 s37, s2, 31")
    A("s_and_b32 s38, s2, 7"); A("s_lshl_b32 s38, s38, 2"); A("s_lshr_b32 s39, s37, 3"); A("s_add_u32 s38, s38, s39")
    A(f"v_mov_b32 v1, {CNT}")
    for k in range(4): A(f"v_mov_b32 v{4+k}, 0")
    A("ds_write_b128 v1, v[4:7]")
    if barmode == "entry":
        A("s_waitcnt lgkmcnt(0)"); A("s_barrier")
    A("s_cmp_ge_u32 s3, 4"); A("s_cbranch_scc1 L_helper")

    C("streaming waves: K/V tiles of 16 keys through a 4-slot LDS ring per wave")
    A("v_lshrrev_b32 v20, 4, v0")
    A("v_and_b32 v21, 15, v0")
    A("v_lshlrev_b32 v22, 1, v20")
    A("v_xor_b32 v22, v22, v21")
    A("v_lshlrev_b32 v22, 4, v22")
    A("v_lshl_add_u32 v2, v20, 8, v22")
    A("v_xor_b32 v3, 0x80, v2"); A("v_xor_b32 v4, 16, v2"); A("v_xor_b32 v5, 0x90, v2")
    if noswz:
        for i in range(4): A(f"v_lshlrev_b32 v{2+i}, 4, v0")
    C("four workgroups share a 2 MiB page of K and V (rows of 4 tiles interleaved); the last rows of all pages form a ticket pool")
    A("s_and_b32 s40, s2, 7"); A("s_lshl_b32 s41, s36, 3"); A("s_add_u32 s40, s40, s41"); A("s_lshl_b32 s40, s40, 21")
    A("s_lshl_b32 s41, s39, 14"); A("s_add_u32 s40, s40, s41")
    A("s_lshl_b32 s41, s3, 12"); A("s_add_u32 s40, s40, s41")
    A("s_lshl_b32 s41, s3, 15")
    A("s_mov_b32 s30, 0x8000000"); A("s_mov_b32 s31, 0x20000"); A("s_mov_b32 s34, 0x8000000"); A("s_mov_b32 s35, 0x20000")
    A("s_mov_b32 s42, 0x2000")
    A("s_mov_b32 s44, 4")
    A("s_waitcnt lgkmcnt(0)")
    if ts: A("s_mov_b32 s64, s60")
    A("s_mov_b32 s28, s6"); A("s_and_b32 s29, s7, 0xffff"); A("s_mov_b32 s32, s8"); A("s_and_b32 s33, s9, 0xffff")
    if barmode != "entry": A("s_barrier")
    TS(6)
    def issue_tile(pace, tk=False):
        def ticket(i):
            if tk and i == TPOS:
                A("s_cmp_lg_u32 s43, 0"); A("s_cbranch_scc1 L_notk")
                A("s_mov_b32 s58, 1"); A("s_atomic_add s58, s[26:27], s57 glc")
                LB("L_notk")
        A("s_mov_b32 m0, s41")
        for i in range(4):
            ticket(i); A(f"s_waitcnt vmcnt({pace})"); A(f"buffer_load_dwordx4 v{2+i}, s[28:31], s40 offen offset:{i*1024} {kv_flags} lds")
        A("s_add_u32 m0, s41, 4096")
        for i in range(4):
            ticket(4 + i); A(f"s_waitcnt vmcnt({pace})"); A(f"buffer_load_dwordx4 v{2+i}, s[32:35], s40 offen offset:{i*1024} {kv_flags} lds")
        ticket(8)
        A("s_add_u32 s40, s40, 65536")
    LB("L_fill")
    issue_tile(PACE0)
    A("s_xor_b32 s41, s41, s42"); A("s_xor_b32 s42, s42, 0x4000")
    if hold and not noh:
        A("s_cmp_lg_u32 s44, 4"); A("s_cbranch_scc1 L_nohold")
        A(f"v_mov_b32 v116, {PUBD}")
        LB("L_hold")
        A("ds_read_b32 v117, v116"); A("s_waitcnt lgkmcnt(0)"); A("v_readfirstlane_b32 s48, v117")
        A("s_cmp_lg_u32 s48, 0"); A("s_cbranch_scc1 L_nohold"); A("s_sleep 1"); A("s_branch L_hold")
        LB("L_nohold")
    A("s_sub_u32 s44, s44, 1"); A("s_cmp_lg_u32 s44, 0"); A("s_cbranch_scc1 L_fill")
    TS(1)
    A("s_lshl_b32 s46, s36, 24"); A("s_lshl_b32 s47, s3, 12"); A("s_add_u32 s46, s46, s47"); A(f"s_add_u32 s46, s46, {4*S*16384}")
    A("s_lshl_b32 s57, s36, 2"); A("s_add_u32 s57, s57, s3"); A("s_lshl_b32 s57, s57, 8"); A(f"s_add_u32 s57, s57, {POOL}")
    A("s_mov_b32 s58, 0")
    C("addresses of the final merge")
    A("s_lshl_b32 s47, s3, 11"); A(f"s_add_u32 s47, s47, {SP}")
    A("v_lshlrev_b32 v122, 9, v21"); A("v_lshl_add_u32 v122, v20, 4, v122"); A("v_add_u32 v122, s47, v122")
    A("s_lshl_b32 s47, s3, 5"); A(f"s_add_u32 s47, s47, {SML}")
    A("v_lshl_add_u32 v123, v21, 3, s47")
    A(f"v_lshlrev_b32 v124, 5, v0"); A(f"v_add_u32 v124, {SP}, v124")
    A(f"v_lshlrev_b32 v125, 3, v20"); A(f"v_add_u32 v125, {SML}, v125")
    A("s_lshl_b32 s47, s36, 15"); A("s_lshl_b32 s48, s38, 8"); A("s_add_u32 s47, s47, s48"); A(f"s_add_u32 s47, s47, {PART}")
    A("v_lshlrev_b32 v126, 13, v20"); A("v_lshl_add_u32 v126, v21, 4, v126"); A("v_add_u32 v126, s47, v126")
    A("s_lshl_b32 s47, s36, 10"); A("s_lshl_b32 s48, s38, 3"); A("s_add_u32 s47, s47, s48"); A(f"s_add_u32 s47, s47, {ML}")
    A("v_lshl_add_u32 v127, v20, 8, s47")
    A(f"v_mov_b32 v1, {CNT}"); A("v_mov_b32 v119, 1")
    A(f"s_mov_b32 s43, {S - 4}")
    A("v_lshlrev_b32 v23, 1, v21"); A("v_and_b32 v23, 15, v23"); A("v_lshrrev_b32 v24, 3, v21"); A("v_or_b32 v23, v23, v24")
    A("v_and_b32 v24, 1, v20"); A("v_lshlrev_b32 v24, 1, v24"); A("v_lshrrev_b32 v25, 1, v20"); A("v_or_b32 v24, v24, v25")
    A("v_xor_b32 v23, v23, v24"); A("v_lshlrev_b32 v23, 4, v23"); A("v_lshl_add_u32 v23, v21, 8, v23")
    A("v_add_u32 v6, s41, v23")
    for s in range(1, 4): A(f"v_xor_b32 v{6+s}, {s << 6}, v6")
    A("v_lshrrev_b32 v25, 2, v0")
    A("v_lshlrev_b32 v26, 1, v25"); A("v_and_b32 v26, 15, v26"); A("v_lshrrev_b32 v27, 3, v25"); A("v_or_b32 v26, v26, v27")
    A("v_bfe_u32 v27, v0, 1, 1"); A("v_xor_b32 v26, v26, v27"); A("v_lshlrev_b32 v26, 4, v26")
    A("v_lshl_add_u32 v26, v25, 8, v26")
    A("v_and_b32 v27, 1, v0"); A("v_lshl_add_u32 v26, v27, 3, v26")
    A("s_add_u32 s44, s41, 4096")
    A("v_add_u32 v10, s44, v26")
    for t in range(1, 8): A(f"v_xor_b32 v{10+t}, {t << 5}, v10")
    A("v_and_b32 v25, 3, v21"); A("v_lshlrev_b32 v25, 8, v25"); A("v_lshl_add_u32 v25, v24, 4, v25"); A(f"v_add_u32 v108, {QL}, v25")
    A("v_mov_b32 v18, 0xff7fffff"); A("v_mov_b32 v19, 0x7f7fffff"); A("v_mov_b32 v109, 0")
    for k in range(32): A(f"v_mov_b32 v{76+k}, 0")
    A(f"s_mov_b32 s45, {L2E}"); A("s_mov_b32 s44, 4"); A("s_mov_b32 s54, 0x2000"); A("s_mov_b32 s55, 4")
    if ts: A("s_mov_b32 s51, 0")
    A(f"v_mov_b32 v116, {QRDY}")
    A("s_mov_b32 s52, 0"); A(f"s_mul_i32 s53, s3, {VW}"); A(f"s_add_u32 s53, s53, {VSTART}")
    if noh: A("s_branch L_qok")
    C("while q is not there yet, keep streaming: park up to NV more tiles in registers")
    for k in range(NV):
        A("ds_read_b32 v117, v116"); A("s_waitcnt lgkmcnt(0)"); A("v_readfirstlane_b32 s48, v117")
        A("s_cmp_lg_u32 s48, 0"); A("s_cbranch_scc1 L_qok")
        for i in range(8):
            A(f"s_waitcnt vmcnt({PACE0})"); A(f"buffer_load_dwordx4 {vr(128+32*k+4*i,4)}, v{2+(i&3)}, s[{28 if i < 4 else 32}:{31 if i < 4 else 35}], s40 offen offset:{(i&3)*1024} {kv_flags}")
        A("s_add_u32 s40, s40, 65536"); A("s_add_u32 s52, s52, 1"); A("s_sub_u32 s43, s43, 1")
    LB("L_qwait")
    A("ds_read_b32 v117, v116"); A("s_waitcnt lgkmcnt(0)"); A("v_readfirstlane_b32 s48, v117")
    A("s_cmp_lg_u32 s48, 0"); A("s_cbranch_scc1 L_qok"); A("s_sleep 1"); A("s_branch L_qwait")
    LB("L_qok")
    if ts: A("s_add_u32 s51, s51, s52"); A("s_mov_b32 s77, s52")
    TS(2)
    for s in range(4): A(f"ds_read_b128 {vr(24+4*s,4)}, v108 offset:{64*s}")
    if align: L.append(f".p2align {align}")
    LB("L_tile")
    A("s_waitcnt vmcnt(24)")
    A("s_cmp_gt_u32 s44, 3"); A("s_cbranch_scc1 L_go")
    A("s_waitcnt vmcnt(16)"); A("s_cmp_gt_u32 s44, 2"); A("s_cbranch_scc1 L_go")
    A("s_waitcnt vmcnt(8)"); A("s_cmp_gt_u32 s44, 1"); A("s_cbranch_scc1 L_go")
    if ksplit:
        C("last tile: start on K while V is still arriving")
        A("s_waitcnt vmcnt(4)")
        TS(3)
        for s in range(4): A(f"ds_read_b128 {vr(40+4*s,4)}, v{6+s}")
        for s in range(4):
            A(f"s_waitcnt lgkmcnt({3-s})")
            A(f"v_mfma_f32_16x16x32_bf16 v[72:75], {vr(40+4*s,4)}, {vr(24+4*s,4)}, {'0' if s == 0 else 'v[72:75]'}")
        A("s_branch L_sm")
    else:
        A("s_waitcnt vmcnt(0)")
        TS(3)
    LB("L_go")
    if nocomp: A("s_waitcnt lgkmcnt(0)"); A("s_branch L_skipc")
    for s in range(4): A(f"ds_read_b128 {vr(40+4*s,4)}, v{6+s}")
    for t in range(8): A(f"ds_read_b64_tr_b16 {vr(56+2*t,2)}, v{10+t}")
    for s in range(4):
        A(f"s_waitcnt lgkmcnt({11-s})")
        A(f"v_mfma_f32_16x16x32_bf16 v[72:75], {vr(40+4*s,4)}, {vr(24+4*s,4)}, {'0' if s == 0 else 'v[72:75]'}")
    LB("L_sm")
    for k in range(12): A(f"v_xor_b32 v{6+k}, s54, v{6+k}")
    A("v_cvt_pk_bf16_f32 v110, v72, v73"); A("v_cvt_pk_bf16_f32 v111, v74, v75")
    unpack(112, 110); unpack(114, 111)
    for k in range(4): A(f"v_mul_f32 v{112+k}, {SCALE:#x}, v{112+k}")
    A("v_cvt_pk_bf16_f32 v110, v112, v113"); A("v_cvt_pk_bf16_f32 v111, v114, v115")
    unpack(112, 110); unpack(114, 111)
    A("v_max3_f32 v116, v112, v113, v114"); A("v_max3_f32 v116, v116, v115, v18")
    swap_red("max_f32", [116], [117], 16); swap_red("max_f32", [116], [117], 32)
    A(f"v_mul_f32 v117, {NL2E:#x}, v116"); A("v_floor_f32 v117, v117")
    A("v_cmp_lt_f32 vcc, v117, v19")
    A("v_sub_f32 v118, v117, v19")
    for k in range(4): A(f"v_fma_f32 v{112+k}, v{112+k}, s45, v117")
    A("v_exp_f32 v118, v118")
    for k in range(4): A(f"v_exp_f32 v{112+k}, v{112+k}")
    A("v_mov_b32 v18, v116"); A("v_mov_b32 v19, v117")
    A("s_cbranch_vccz L_nors")
    for k in range(16): A(f"v_pk_mul_f32 {vr(76+2*k,2)}, {vr(76+2*k,2)}, v[118:119] op_sel_hi:[1,0]")
    LB("L_nors")
    A("v_add_f32 v116, v112, v113"); A("v_add_f32 v117, v114, v115")
    A("v_cvt_pk_bf16_f32 v120, v112, v113"); A("v_cvt_pk_bf16_f32 v121, v114, v115")
    A("v_add_f32 v116, v116, v117"); A("v_fma_f32 v109, v109, v118, v116")
    if ksplit:
        A("s_cmp_gt_u32 s44, 1"); A("s_cbranch_scc1 L_pv")
        for k in range(8): A(f"v_xor_b32 v{10+k}, s54, v{10+k}")
        A("s_waitcnt vmcnt(0)")
        for t in range(8): A(f"ds_read_b64_tr_b16 {vr(56+2*t,2)}, v{10+t}")
        for t in range(8):
            A(f"s_waitcnt lgkmcnt({7-t})"); A(f"v_mfma_f32_16x16x16_bf16 {vr(76+4*t,4)}, {vr(56+2*t,2)}, v[120:121], {vr(76+4*t,4)}")
        A("s_branch L_fin")
        LB("L_pv")
    A("s_waitcnt lgkmcnt(0)")
    for t in range(8): A(f"v_mfma_f32_16x16x16_bf16 {vr(76+4*t,4)}, {vr(56+2*t,2)}, v[120:121], {vr(76+4*t,4)}")
    LB("L_skipc")
    if NV:
        A("s_cmp_eq_u32 s52, 0"); A("s_cbranch_scc1 L_nopark")
        A("s_sub_u32 s53, s53, 1"); A("s_cmp_lg_u32 s53, 0"); A("s_cbranch_scc1 L_nopark")
        C("move a parked tile into the slot that just became free and run it")
        A(f"s_mov_b32 s53, {VSTEP + 1}"); A("s_sub_u32 s52, s52, 1")
        A("v_lshl_add_u32 v116, v0, 4, s41")
        A("s_waitcnt vmcnt(8)")
        for k in range(NV):
            if k < NV - 1: A(f"s_cmp_lg_u32 s52, {k}"); A(f"s_cbranch_scc1 L_pk{k}")
            for i in range(8): A(f"ds_write_b128 v116, {vr(128+32*k+4*i,4)} offset:{1024*i}")
            if k < NV - 1: A("s_branch L_pkd"); LB(f"L_pk{k}")
        LB("L_pkd")
        for k in range(12): A(f"v_xor_b32 v{6+k}, s54, v{6+k}")
        A("s_branch L_go")
        LB("L_nopark")
    A("s_xor_b32 s54, s54, 0x4000")
    C("s55: wanted number of tiles in the ring (4 at first, 2 later so that nothing waits unprocessed at the end, 0 when the pool is empty)")
    A(f"s_cmp_gt_u32 s43, {R1}"); A("s_cbranch_scc1 L_keep")
    A("s_cmp_lg_u32 s52, 0"); A("s_cbranch_scc1 L_keep")
    A(f"s_cmp_gt_u32 s43, {R2}"); A("s_cselect_b32 s48, 3, 2"); A("s_min_u32 s55, s55, s48")
    A("s_cmp_gt_u32 s44, s55"); A("s_cbranch_scc1 L_drain")
    LB("L_keep")
    A("s_cmp_eq_u32 s43, 0"); A("s_cbranch_scc1 L_dyn")
    A("s_sub_u32 s43, s43, 1"); A("s_branch L_issue")
    LB("L_dyn")
    A(f"s_cmp_ge_u32 s58, {D}"); A("s_cbranch_scc1 L_empty")
    A("s_and_b32 s49, s58, 7"); A("s_lshr_b32 s50, s58, 3")
    A("s_lshl_b32 s49, s49, 21"); A("s_lshl_b32 s50, s50, 14"); A("s_add_u32 s40, s46, s49"); A("s_add_u32 s40, s40, s50")
    LB("L_issue")
    issue_tile(PACE, True)
    A("s_xor_b32 s41, s41, s42"); A("s_xor_b32 s42, s42, 0x4000")
    if prog:
        A("s_add_u32 s51, s51, 1")
        for k, r in enumerate((4, 8, 12, 16, 20, 24, 28)):
            A(f"s_cmp_eq_u32 s51, {r}"); A(f"s_cbranch_scc0 L_pg{k}"); TS(7 + k); LB(f"L_pg{k}")
    A("s_branch L_tile")
    LB("L_empty")
    A(f"ds_write_b32 v1, v119 offset:{GATE - CNT}"); A("s_mov_b32 s55, 0")
    if ts: A("s_add_u32 s79, s51, 4"); TS(14)
    LB("L_drain")
    A("s_sub_u32 s44, s44, 1"); A("s_cmp_lg_u32 s44, 0"); A("s_cbranch_scc1 L_tile")
    LB("L_fin")
    TS(4)
    C("epilogue: merge the four waves' partial results, publish")
    A("v_mov_b32 v108, v19")
    swap_red("add_f32", [109], [116], 16); swap_red("add_f32", [109], [116], 32)
    A("s_mov_b32 exec_lo, 0x000f000f"); A("s_mov_b32 exec_hi, 0x000f000f")
    for t in range(8): A(f"ds_write_b128 v122, {vr(76+4*t,4)} offset:{64*t}")
    A("ds_write_b64 v123, v[108:109]")
    A("s_mov_b64 exec, 1")
    A("ds_add_rtn_u32 v111, v1, v119")
    A("s_mov_b64 exec, -1")
    A("s_waitcnt lgkmcnt(0)")
    A("v_readfirstlane_b32 s44, v111")
    A("s_cmp_eq_u32 s44, 3"); A("s_cbranch_scc0 L_sdone")
    for w in range(4): A(f"ds_read_b64 {vr(24+2*w,2)}, v125 offset:{32*w}")
    for w in range(4):
        A(f"ds_read_b128 {vr(40+8*w,4)}, v124 offset:{2048*w}"); A(f"ds_read_b128 {vr(44+8*w,4)}, v124 offset:{2048*w+16}")
    A("s_waitcnt lgkmcnt(8)")
    A("v_min3_f32 v32, v24, v26, v28"); A("v_min_f32 v32, v32, v30")
    for w in range(4): A(f"v_sub_f32 v{24+2*w}, v32, v{24+2*w}")
    for w in range(4): A(f"v_exp_f32 v{24+2*w}, v{24+2*w}")
    A("s_waitcnt lgkmcnt(6)")
    for k in range(4): A(f"v_pk_mul_f32 {vr(40+2*k,2)}, {vr(40+2*k,2)}, v[24:25] op_sel_hi:[1,0]")
    for w in range(1, 4):
        A(f"s_waitcnt lgkmcnt({6 - 2*w})")
        for k in range(4): A(f"v_pk_fma_f32 {vr(40+2*k,2)}, {vr(40+8*w+2*k,2)}, {vr(24+2*w,2)}, {vr(40+2*k,2)} op_sel_hi:[1,0,1]")
    for k in range(4): A(f"v_cvt_pk_bf16_f32 v{40+k}, v{40+2*k}, v{41+2*k}")
    A("global_store_dwordx4 v126, v[40:43], s[26:27] sc1")
    A("v_mul_f32 v33, v24, v25")
    for w in range(1, 4): A(f"v_fmac_f32 v33, v{24+2*w}, v{25+2*w}")
    A("s_mov_b32 exec_lo, 0x00010001"); A("s_mov_b32 exec_hi, 0x00010001")
    A("global_store_dwordx2 v127, v[32:33], s[26:27] sc1")
    A("v_mov_b32 v117, 2"); A(f"ds_write_b32 v1, v117 offset:{GATE - CNT}")
    LB("L_sdone")
    TS(5)
    TS_flush()
    A("s_endpgm")

    LB("L_helper")
    if noh: A("s_endpgm")
    A("s_mov_b32 s47, s39")
    A("s_mov_b32 s50, s39")
    A("s_cmp_eq_u32 s37, 15"); A("s_cselect_b32 s47, 3, s47")
    A("s_sub_u32 s39, s3, 4")
    A("s_and_b32 s48, s37, 7")
    A("s_mul_i32 s59, s36, 7"); A("s_add_u32 s59, s59, s48")
    A("s_lshl_b32 s49, s48, 3"); A("s_add_u32 s49, s49, s36")
    A("v_lshrrev_b32 v20, 4, v0"); A("v_and_b32 v21, 15, v0")
    A("v_lshrrev_b32 v22, 3, v21"); A("v_and_b32 v23, 7, v21")
    A("v_mov_b32 v16, 0")
    A("s_mov_b32 s44, 0x05040100"); A("s_mov_b32 s45, 0x07060302")
    A(f"s_mov_b32 s46, {0 if dry else 1}")
    A("s_cmp_eq_u32 s39, 0"); A("s_cbranch_scc1 L_w4")
    A("s_cmp_ge_u32 s47, 2"); A("s_cbranch_scc1 L_end")
    A("s_waitcnt lgkmcnt(0)")
    if ts: A("s_mov_b32 s64, s60")
    if barmode != "entry": A("s_barrier")
    A("global_load_dword v3, v16, s[26:27] sc1")
    if not early:
        A(f"v_mov_b32 v1, {QRDY}")
        LB("L_hq")
        A("s_sleep 4"); A("ds_read_b32 v2, v1"); A("s_waitcnt lgkmcnt(0)"); A("v_readfirstlane_b32 s40, v2")
        A("s_cmp_eq_u32 s40, 0"); A("s_cbranch_scc1 L_hq")
    A("s_waitcnt vmcnt(0)")
    A(f"v_add_u32 v3, {TAGC:#x}, v3")
    A("s_branch L_roles")

    LB("L_w4")
    C("first helper wave: 128 rows x 64 columns of LN(x) @ wq; reset this workgroup's hand-off slots; gather q")
    A("s_setprio 3")
    A("v_lshlrev_b32 v1, 4, v0")
    A("v_lshlrev_b32 v2, 19, v22"); A("v_lshl_add_u32 v2, v20, 16, v2"); A("v_lshl_add_u32 v2, v23, 4, v2")
    if wqmap:
        A("s_and_b32 s58, s48, 1"); A("s_lshl_b32 s58, s58, 2"); A("s_add_u32 s58, s58, s50"); A("s_lshr_b32 s50, s48, 1")
    else: A("s_mov_b32 s58, s48")
    A("s_lshl_b32 s52, s50, 20"); A("s_lshl_b32 s41, s36, 10"); A("s_add_u32 s52, s52, s41"); A("s_lshl_b32 s41, s58, 7"); A("s_add_u32 s52, s52, s41")
    A("s_mov_b32 s30, 0x400000"); A("s_mov_b32 s31, 0x20000")
    if 'q' in fake: A("v_lshlrev_b32 v2, 4, v0"); A("s_lshl_b32 s52, s2, 14")
    A("s_waitcnt lgkmcnt(0)")
    if ts: A("s_mov_b32 s64, s60")
    A("global_load_dwordx4 v[4:7], v1, s[4:5]")
    A("s_mov_b32 s28, s10"); A("s_and_b32 s29, s11, 0xffff")
    for k in range(16):
        A(f"buffer_load_dwordx4 {vr(160+4*k,4)}, v2, s[28:31], s52 offen {wq_flags}" if 'w' not in fake else f"global_load_dword v{160+4*k}, v16, s[26:27]")
        if k < 15: A(f"s_add_u32 s52, s52, {1024 if 'q' in fake else 8192 if k != 7 else 25 * 8192}")
    A("global_load_dword v3, v16, s[26:27] sc1")
    if barmode == "late": A("s_barrier")
    for k in range(4): A(f"v_mov_b32 v{8+k}, -1")
    A("s_lshl_b32 s40, s36, 15"); A("s_lshl_b32 s41, s38, 8"); A("s_add_u32 s40, s40, s41"); A(f"s_add_u32 s40, s40, {PART}")
    A("v_lshlrev_b32 v12, 13, v20"); A("v_lshl_add_u32 v12, v21, 4, v12"); A("v_add_u32 v12, s40, v12")
    A("s_lshl_b32 s40, s36, 10"); A("s_lshl_b32 s41, s38, 3"); A("s_add_u32 s40, s40, s41"); A(f"s_add_u32 s40, s40, {ML}")
    A("v_lshl_add_u32 v13, v20, 8, s40")
    A("s_lshl_b32 s40, s48, 11"); A("s_lshl_b32 s41, s36, 8"); A("s_add_u32 s40, s40, s41"); A(f"s_add_u32 s40, s40, {H2}")
    A("v_lshl_add_u32 v14, v21, 4, s40")
    A("s_lshl_b32 s41, s49, 7"); A(f"s_add_u32 s41, s41, {H3}")
    A("v_lshrrev_b32 v15, 3, v0"); A("v_mul_u32_u24 v15, 7168, v15"); A("v_and_b32 v17, 7, v0"); A("v_lshl_add_u32 v15, v17, 4, v15"); A("v_add_u32 v15, s41, v15")
    A(f"v_add_u32 v17, {8*7168}, v15")
    A("s_lshl_b32 s40, s36, 10"); A(f"s_add_u32 s40, s40, {POOL}"); A("v_and_b32 v19, 3, v0"); A("v_lshl_add_u32 v19, v19, 8, s40")
    if 'p' not in fake: A("global_store_dwordx4 v12, v[8:11], s[26:27] sc1")
    else: A("global_load_dword v9, v16, s[26:27]")
    A("s_mov_b32 exec_lo, 0x00010001"); A("s_mov_b32 exec_hi, 0x00010001")
    A("global_store_dwordx2 v13, v[8:9], s[26:27] sc1")
    A("s_mov_b64 exec, 0xffff")
    A("s_cmp_lg_u32 s47, 0"); A("s_cbranch_scc1 L_w4n")
    A("global_store_dwordx4 v14, v[8:11], s[26:27] sc1")
    LB("L_w4n")
    A("s_mov_b64 exec, -1")
    A("s_cmp_lg_u32 s47, 1"); A("s_cbranch_scc1 L_w4a")
    A("global_store_dwordx4 v15, v[8:11], s[26:27] sc1"); A("global_store_dwordx4 v17, v[8:11], s[26:27] sc1")
    LB("L_w4a")
    A("s_cmp_lg_u32 s37, 31"); A("s_cbranch_scc1 L_w4b")
    A("s_mov_b64 exec, 15")
    A("global_store_dword v19, v16, s[26:27] sc1")
    A("s_mov_b64 exec, -1")
    LB("L_w4b")
    if barmode == "late2": A("s_barrier")
    TS(11)
    A(f"v_add_u32 v10, {HN}, v1")
    A("s_lshl_b32 s40, s50, 8"); A(f"s_add_u32 s40, s40, {HN}")
    A("v_lshlrev_b32 v11, 7, v22"); A("v_lshl_add_u32 v11, v20, 4, v11"); A("v_add_u32 v11, s40, v11")
    A("v_lshlrev_b32 v13, 8, v22"); A("v_lshl_add_u32 v13, v23, 5, v13"); A(f"v_add_u32 v13, {SP}, v13")
    A(f"v_lshlrev_b32 v14, 2, v0"); A(f"v_add_u32 v18, {QL}, v14"); A(f"v_add_u32 v14, {SP}, v14")
    A("s_lshl_b32 s40, s36, 14"); A(f"s_add_u32 s40, s40, {QBUF + 4096}")
    A("v_add_u32 v17, s40, v1"); A("v_add_u32 v19, 0x2000, v17")
    A("s_lshl_b32 s41, s50, 12"); A("s_add_u32 s40, s40, s41"); A("s_lshl_b32 s41, s58, 9"); A("s_add_u32 s40, s40, s41"); A("s_sub_u32 s40, s40, 4096")
    A("v_lshl_add_u32 v15, v0, 3, s40")
    A("s_lshl_b32 s40, s2, 2"); A(f"s_add_u32 s40, s40, {ALIVE}"); A("v_mov_b32 v12, s40")
    A("s_waitcnt vmcnt(19)")
    TS(1)
    layernorm(4, 24, 32)
    A("ds_write_b128 v10, v[4:7]")
    A("ds_read_b128 v[40:43], v11"); A("ds_read_b128 v[44:47], v11 offset:64")
    A("s_waitcnt vmcnt(11)")
    transpose8(96, 160)
    A("s_waitcnt lgkmcnt(0)")
    for e in range(8): A(f"v_mfma_f32_16x16x32_bf16 {vr(48+4*e,4)}, v[40:43], {vr(96+4*e,4)}, 0")
    A("s_waitcnt vmcnt(3)")
    TS(2)
    transpose8(128, 192)
    A("s_nop 1")
    for e in range(8): A(f"v_mfma_f32_16x16x32_bf16 {vr(48+4*e,4)}, v[44:47], {vr(128+4*e,4)}, {vr(48+4*e,4)}")
    A("s_mov_b32 exec_lo, 0xff"); A("s_mov_b32 exec_hi, 0xff00")
    A("s_nop 5")
    for e in range(0, 8, 2): A(f"ds_write2_b32 v13, v{48+4*e}, v{52+4*e} offset0:{e} offset1:{e+1}")
    A("s_mov_b64 exec, -1")
    A("ds_read2_b32 v[24:25], v14 offset0:0 offset1:64")
    A("s_waitcnt vmcnt(0)")
    A(f"v_add_u32 v3, {TAGC:#x}, v3")
    A("s_waitcnt lgkmcnt(0)")
    A("v_add_f32 v2, v24, v25")
    A("global_store_dwordx2 v15, v[2:3], s[26:27] sc1")
    A("s_mov_b64 exec, 1")
    A("global_store_dword v12, v3, s[26:27] sc1")
    A(f"v_mov_b32 v12, {PUBD}"); A("ds_write_b32 v12, v12")
    A("s_mov_b64 exec, -1")
    TS(3)
    A(f"s_mov_b32 s51, {SPIN_MAX}")
    def qload(r):
        for i in range(16): A(f"global_load_dwordx4 {vr(r+4*i,4)}, v{17 if i < 8 else 19}, s[26:27] offset:{(i % 8) * 1024 - 4096} sc1")
    def qcheck(r):
        A(f"v_xor_b32 v24, v{r+1}, v3"); A(f"v_xor_b32 v25, v{r+3}, v3")
        ws = [r + 4 * i + k for i in range(1, 16) for k in (1, 3)]
        for n, w in enumerate(ws):
            A(f"v_xor_b32 v26, v{w}, v3"); A(f"v_or_b32 v{24 + (n & 1)}, v{24 + (n & 1)}, v26")
        A("v_or_b32 v24, v24, v25"); A("v_cmp_ne_u32 vcc, 0, v24")
    def qsum(r):
        for k in range(4):
            for h in (0, 2):
                A(f"v_add_f32 v{r+4*k+h}, v{r+4*k+h}, v{r+16+4*k+h}"); A(f"v_add_f32 v{r+32+4*k+h}, v{r+32+4*k+h}, v{r+48+4*k+h}")
        for k in range(4):
            for h in (0, 2): A(f"v_add_f32 v{r+4*k+h}, v{r+4*k+h}, v{r+32+4*k+h}")
        for k in range(4): A(f"v_cvt_pk_bf16_f32 v{24+k}, v{r+4*k}, v{r+4*k+2}")
    C("the group's 32 words announce the partial q stores; the tags inside the data are what is trusted")
    A("s_lshl_b32 s40, s36, 7"); A(f"s_add_u32 s40, s40, {ALIVE}"); A("v_and_b32 v12, 31, v0"); A("v_lshl_add_u32 v12, v12, 2, s40")
    A("global_load_dword v28, v12, s[26:27] sc1")
    A(f"s_sleep {qsleep}")
    LB("L_qhint")
    A("global_load_dword v29, v12, s[26:27] sc1")
    A("s_waitcnt vmcnt(1)")
    A("v_cmp_eq_u32 vcc, v28, v3"); A("s_bcnt1_i32_b32 s40, vcc_lo"); A(f"s_cmp_ge_u32 s40, {QTH}"); A("s_cbranch_scc1 L_qgo")
    A("global_load_dword v28, v12, s[26:27] sc1")
    A("s_waitcnt vmcnt(1)")
    A("v_cmp_eq_u32 vcc, v29, v3"); A("s_bcnt1_i32_b32 s40, vcc_lo")
    A("s_sub_u32 s51, s51, 1"); A("s_cbranch_scc1 L_qgo")
    A(f"s_cmp_lt_u32 s40, {QTH}"); A("s_cbranch_scc1 L_qhint")
    LB("L_qgo")
    TS(12)
    A(f"s_mov_b32 s55, {0x1111 if 'g' in fake else 0xffff}")
    LB("L_qpoll")
    for i in range(16):
        A(f"s_bitcmp1_b32 s55, {i}"); A(f"s_cbranch_scc0 L_qs{i}")
        A(f"global_load_dwordx4 {vr(96+4*i,4)}, v{17 if i < 8 else 19}, s[26:27] offset:{(i % 8) * 1024 - 4096} sc1")
        LB(f"L_qs{i}")
    A("s_waitcnt vmcnt(0)")
    for i in range(16):
        A(f"v_cmp_ne_u32 vcc, v{97+4*i}, v3"); A(f"v_cmp_ne_u32 s[40:41], v{99+4*i}, v3"); A("s_or_b64 vcc, vcc, s[40:41]")
        A(f"s_cbranch_scc1 L_qc{i}"); A(f"s_bitset0_b32 s55, {i}"); LB(f"L_qc{i}")
    A("s_sub_u32 s51, s51, 1"); A("s_cbranch_scc1 L_qgot")
    A("s_cmp_lg_u32 s55, 0"); A("s_cbranch_scc1 L_qpoll")
    LB("L_qgot")
    qsum(96)
    A("ds_write2_b32 v18, v24, v25 offset0:0 offset1:64"); A("ds_write2_b32 v18, v26, v27 offset0:128 offset1:192")
    A(f"v_mov_b32 v18, {QRDY}"); A("v_mov_b32 v19, 1")
    A("ds_write_b32 v18, v19")
    A("s_waitcnt lgkmcnt(0)")
    A("s_setprio 0")
    TS(4)
    if touch:
        A("v_lshlrev_b32 v4, 21, v0"); A("s_lshl_b32 s40, s36, 24"); A(f"s_add_u32 s40, s40, {0x200000 - 128}"); A("v_add_u32 v4, s40, v4")
        A("s_mov_b64 exec, 0xff")
        A("global_load_dword v240, v4, s[6:7] nt"); A("global_load_dword v240, v4, s[8:9] nt")
        A("s_mov_b64 exec, -1")
    A("s_waitcnt vmcnt(0)")
    LB("L_roles")
    if noroles: A("s_branch L_hdone")
    A("s_cmp_eq_u32 s47, 1"); A("s_cbranch_scc1 L_ffn")
    A("s_cmp_eq_u32 s47, 0"); A("s_cbranch_scc0 L_hdone")
    A("s_mov_b32 s40, s36"); A("s_mov_b32 s36, s48"); A("s_mov_b32 s48, s40")

    C("wo role: merge 32 splits of one kv group, multiply by a 512x64 block of wo")
    A("s_lshl_b32 s40, s36, 2"); A("s_add_u32 s40, s40, s39")
    A("s_lshl_b32 s41, s40, 17"); A("s_lshl_b32 s42, s48, 7"); A("s_add_u32 s41, s41, s42"); A("s_add_u32 s41, s41, 4096")
    A("s_add_u32 s52, s12, s41"); A("s_addc_u32 s53, s13, 0")
    A("v_lshlrev_b32 v58, 16, v22"); A("v_lshl_add_u32 v58, v20, 13, v58"); A("v_lshl_add_u32 v58, v23, 4, v58"); A("v_add_u32 v59, 0x8000, v58")
    if 'o' in fake:
        A("s_lshl_b32 s41, s36, 3"); A("s_add_u32 s41, s41, s48"); A("s_lshl_b32 s41, s41, 2"); A("s_add_u32 s41, s41, s39"); A("s_lshl_b32 s41, s41, 14"); A("s_add_u32 s41, s41, 4096")
        A("s_add_u32 s52, s12, s41"); A("s_addc_u32 s53, s13, 0"); A("v_lshlrev_b32 v58, 4, v0"); A("v_add_u32 v59, 0x2000, v58")
    def wo_weights():
        if jitw: gate_wait("L_w_jit", 1); TS(11)
        for s in range(2):
            for i in range(8): A(f"global_load_dwordx4 {vr(160+32*s+4*i,4)}, v{58+s}, s[52:53] offset:{1024*i-4096} {w_flags}")
            if not jitw: A("s_waitcnt vmcnt(0)")
        for s in range(2):
            A(f"s_waitcnt vmcnt({8 - 8*s})")
            transpose8(96 + 32 * s, 160 + 32 * s)
        TS(5)
    if not jitw: wo_weights()
    alive("w")
    A("s_lshl_b32 s41, s40, 13"); A(f"s_add_u32 s41, s41, {PART}")
    A("v_lshlrev_b32 v14, 4, v21"); A("v_lshl_add_u32 v4, v20, 11, v14"); A("v_add_u32 v4, s41, v4")
    A("s_lshl_b32 s41, s40, 8"); A(f"s_add_u32 s41, s41, {ML}")
    A("v_and_b32 v8, 31, v0"); A("v_lshl_add_u32 v6, v8, 3, s41")
    A("s_lshl_b32 s41, s39, 6"); A(f"s_add_u32 s41, s41, {WB}")
    A("v_lshl_add_u32 v9, v8, 1, s41"); A("v_lshl_add_u32 v10, v20, 4, s41")
    A("s_lshl_b32 s41, s39, 8"); A(f"s_add_u32 s41, s41, {OB}")
    A("v_add_u32 v11, s41, v14")
    A("v_lshlrev_b32 v12, 7, v22"); A("v_lshl_add_u32 v12, v20, 4, v12"); A("v_add_u32 v12, s41, v12")
    A("s_lshl_b32 s41, s39, 9"); A(f"s_add_u32 s41, s41, {RED}")
    A("v_lshlrev_b32 v13, 8, v22"); A("v_lshl_add_u32 v13, v23, 5, v13"); A("v_add_u32 v13, s41, v13")
    A(f"v_add_u32 v15, {RED}, v14")
    A("s_lshl_b32 s41, s36, 11"); A("s_lshl_b32 s42, s48, 8"); A("s_add_u32 s54, s41, s42")
    if jitw: wo_weights()
    if not dry: gate_wait("L_wo_gate0", 2 if g2 else 1); TS(8)
    LB("L_wo_pass")
    A(f"s_mov_b32 s41, {H2}"); A("s_cmp_eq_u32 s46, 0"); A(f"s_cmov_b32 s41, {DUMMY}"); A("s_add_u32 s41, s41, s54")
    A("v_add_u32 v7, s41, v14")
    A(f"s_mov_b32 s51, {SPIN_MAX}")
    LB("L_wo_ml")
    A("global_load_dwordx2 v[80:81], v6, s[26:27] sc1")
    A("s_waitcnt vmcnt(0)")
    any_poison([80, 81], 84)
    A("s_bcnt1_i32_b32 s57, vcc_lo")
    A("s_cmp_eq_u32 s46, 0"); A("s_cbranch_scc1 L_wo_go")
    A("s_sub_u32 s51, s51, 1"); A("s_cbranch_scc1 L_wo_go")
    A(f"s_cmp_gt_u32 s57, {32 - MLTH}"); A("s_cbranch_scc1 L_wo_ml")
    LB("L_wo_go")
    TS(9)
    def wload(r, m):
        A(f"global_load_dwordx2 {vr(m,2)}, v6, s[26:27] sc1")
        for i in range(8): A(f"global_load_dwordx4 {vr(r+4*i,4)}, v4, s[26:27] offset:{256*i} sc1")
    def wcheck(r, m): any_poison([m, m+1] + list(range(r, r + 32)), 84)
    wload(16, 80)
    if stag: A(f"s_sleep {stag}")
    LB("L_wo_poll")
    if ts: A("s_add_u32 s79, s79, 1")
    wload(48, 82)
    A("s_waitcnt vmcnt(9)")
    wcheck(16, 80)
    A("s_cbranch_vccz L_wo_gotA")
    wload(16, 80)
    A("s_waitcnt vmcnt(9)")
    wcheck(48, 82)
    A("s_cmp_eq_u32 s46, 0"); A("s_cbranch_scc1 L_wo_gotB")
    A("s_sub_u32 s51, s51, 1"); A("s_cbranch_scc1 L_wo_gotB")
    A("s_cbranch_vccnz L_wo_poll")
    def wcomb(r, m):
        TS(6)
        A(f"v_mov_b32 v84, v{m}")
        P = []
        for e in range(8):
            for j in range(4):
                x = r + 4 * (2 * j) + (e >> 1); y = r + 4 * (2 * j + 1) + (e >> 1)
                P.append(f"v_perm_b32 v{160+4*e+j}, v{y}, v{x}, s{45 if e & 1 else 44}")
        def fill(n):
            for _ in range(n): A(P.pop(0))
        for rot in (8, 4, 2, 1):
            fill(2); A(f"v_min_f32_dpp v84, v84, v84 row_ror:{rot} row_mask:0xf bank_mask:0xf")
        A("v_mov_b32 v85, v84"); fill(2); A("v_permlane16_swap_b32 v84, v85"); A("v_min_f32 v84, v84, v85")
        A(f"v_sub_f32 v84, v84, v{m}"); A("v_exp_f32 v84, v84"); fill(1)
        A("v_cvt_pk_bf16_f32 v86, v84, v84")
        A("ds_write_b16 v9, v86"); A("ds_read_b128 v[88:91], v10")
        A(f"v_mul_f32 v85, v84, v{m+1}")
        for rot in (8, 4, 2, 1):
            fill(2); A(f"v_add_f32_dpp v85, v85, v85 row_ror:{rot} row_mask:0xf bank_mask:0xf")
        A("v_mov_b32 v86, v85"); fill(2); A("v_permlane16_swap_b32 v85, v86"); A("v_add_f32 v85, v85, v86")
        A("v_rcp_f32 v85, v85")
        fill(len(P))
    LB("L_wo_gotB")
    wcomb(48, 82)
    A("s_cmp_eq_u32 s46, 0"); A("s_cbranch_scc0 L_wo_got")
    LB("L_wo_gotA")
    wcomb(16, 80)
    LB("L_wo_got")
    A("s_waitcnt lgkmcnt(0)")
    for e in range(8): A(f"v_mfma_f32_16x16x32_bf16 {vr(192+4*e,4)}, v[88:91], {vr(160+4*e,4)}, 0")
    A("s_nop 0")
    for e in range(8): A(f"v_mul_f32 v{192+4*e}, v{192+4*e}, v85")
    for k in range(4): A(f"v_cvt_pk_bf16_f32 v{88+k}, v{192+8*k}, v{196+8*k}")
    A("ds_write_b128 v11, v[88:91]")
    A("ds_read_b128 v[160:163], v12"); A("ds_read_b128 v[164:167], v12 offset:64")
    A("s_waitcnt lgkmcnt(1)")
    for e in range(8): A(f"v_mfma_f32_16x16x32_bf16 {vr(192+4*e,4)}, v[160:163], {vr(96+4*e,4)}, 0")
    A("s_waitcnt lgkmcnt(0)")
    for e in range(8): A(f"v_mfma_f32_16x16x32_bf16 {vr(192+4*e,4)}, v[164:167], {vr(128+4*e,4)}, {vr(192+4*e,4)}")
    A("s_mov_b32 exec_lo, 0xff"); A("s_mov_b32 exec_hi, 0xff00")
    A("s_nop 5")
    for e in range(0, 8, 2): A(f"ds_write2_b32 v13, v{192+4*e}, v{196+4*e} offset0:{e} offset1:{e+1}")
    A("s_mov_b64 exec, -1")
    barrier_real("L_wo_nb")
    A("s_cmp_lg_u32 s39, 0"); A("s_cbranch_scc1 L_wo_next")
    for p in range(8): A(f"ds_read_b128 {vr(160+4*p,4)}, v15 offset:{256*p}")
    for st, wcnt in ((0, 6), (8, 4), (16, 2), (24, 0)):
        A(f"s_waitcnt lgkmcnt({wcnt})")
        for h in range(2): A(f"v_pk_add_f32 {vr(160+st+2*h,2)}, {vr(160+st+2*h,2)}, {vr(164+st+2*h,2)}")
    for h in range(2): A(f"v_pk_add_f32 {vr(160+2*h,2)}, {vr(160+2*h,2)}, {vr(168+2*h,2)}")
    for h in range(2): A(f"v_pk_add_f32 {vr(176+2*h,2)}, {vr(176+2*h,2)}, {vr(184+2*h,2)}")
    for h in range(2): A(f"v_pk_add_f32 {vr(160+2*h,2)}, {vr(160+2*h,2)}, {vr(176+2*h,2)}")
    A("s_mov_b64 exec, 0xffff")
    A("global_store_dwordx4 v7, v[160:163], s[26:27] sc1")
    A("s_mov_b64 exec, -1")
    LB("L_wo_next")
    TS(7)
    A("s_cmp_eq_u32 s46, 1"); A("s_cbranch_scc1 L_hdone")
    A("s_mov_b32 s46, 1")
    gate_wait("L_wo_gate", 2 if g2 else 1)
    TS(8)
    A("s_branch L_wo_pass")

    LB("L_ffn")
    C("ffn role: h, LN(h), 32 gate/up columns, 32 rows of w2; first 16 also finish 32 output columns")
    def ffn_weights():
        A("v_lshlrev_b32 v58, 6, v22"); A("v_lshl_add_u32 v58, v20, 3, v58"); A("s_lshl_b32 s40, s39, 7"); A("v_add_u32 v58, s40, v58")
        A("s_movk_i32 s40, 3584"); A("v_mul_u32_u24 v58, s40, v58")
        A("v_and_b32 v59, 3, v21"); A("v_lshl_add_u32 v58, v59, 4, v58"); A("s_lshl_b32 s40, s49, 6"); A("v_add_u32 v58, s40, v58")
        A("v_bfe_u32 v59, v21, 2, 1"); A("v_cmp_eq_u32 vcc, 1, v59")
        A("v_mov_b32 v60, s16"); A("v_mov_b32 v61, s18"); A("v_cndmask_b32 v60, v60, v61, vcc")
        A("v_mov_b32 v61, s17"); A("v_mov_b32 v62, s19"); A("v_cndmask_b32 v61, v61, v62, vcc")
        A("v_mov_b32 v59, 0"); A("v_lshl_add_u64 v[60:61], v[58:59], 0, v[60:61]")
        A("s_lshl_b32 s40, s49, 15"); A("s_lshl_b32 s41, s39, 8"); A("s_add_u32 s40, s40, s41"); A("s_add_u32 s40, s40, 4096")
        A("s_add_u32 s52, s20, s40"); A("s_addc_u32 s53, s21, 0")
        A("v_lshlrev_b32 v58, 13, v20"); A("v_lshl_add_u32 v58, v21, 4, v58")
        if jitf: gate_wait("L_f_jit", 1); TS(11)
        A("s_mov_b64 s[40:41], 7168"); A(f"s_mov_b64 s[42:43], {7168 + 24 * 3584}")
        if 'f' in fake:
            A("s_lshl_b32 s40, s49, 2"); A("s_add_u32 s40, s40, s39"); A("s_lshl_b32 s40, s40, 13"); A("v_lshl_add_u32 v62, v0, 4, s40"); A("v_add_u32 v62, 4096, v62")
            for s in range(2):
                for i in range(8): A(f"global_load_dwordx4 {vr(160+32*s+4*i,4)}, v62, s[{16+2*s}:{17+2*s}] offset:{1024*i-4096} {w_flags}")
                A("s_waitcnt vmcnt(0)")
        for s in range(2 if 'f' not in fake else 0):
            for i in range(8):
                A(f"global_load_dwordx4 {vr(160+32*s+4*i,4)}, v[60:61], off{' offset:3584' if i & 1 else ''} {w_flags}")
                if i & 1 and not (s == 1 and i == 7): A(f"v_lshl_add_u64 v[60:61], v[60:61], 0, {'s[42:43]' if i == 7 else 's[40:41]'}")
            if not jitf: A("s_waitcnt vmcnt(0)")
        for i in range(8): A(f"global_load_dwordx4 {vr(224+4*i,4)}, v58, s[52:53] offset:{1024*i-4096} {w_flags}")
        for s in range(3):
            A(f"s_waitcnt vmcnt({16 - 8*s})")
            transpose8(64 + 32 * s, 160 + 32 * s)
        TS(5)
    if not jitf: ffn_weights()
    A("v_and_b32 v8, 31, v0")
    A("s_lshl_b32 s40, s39, 8"); A("v_lshl_add_u32 v5, v8, 3, s40")
    A("global_load_dwordx2 v[48:49], v5, s[4:5]")
    A("s_waitcnt vmcnt(0)")
    unpack(50, 49)
    A("v_and_b32 v49, 0xffff0000, v48"); A("v_lshlrev_b32 v48, 16, v48")
    alive("f")
    A("v_lshrrev_b32 v9, 5, v0"); A("v_lshlrev_b32 v4, 11, v9"); A("v_lshl_add_u32 v4, v8, 4, v4")
    A("s_lshl_b32 s40, s39, 9"); A(f"s_add_u32 s40, s40, {H2 + 4096}"); A("v_add_u32 v4, s40, v4"); A("v_add_u32 v6, 0x2000, v4")
    A(f"v_add_u32 v5, {HB}, v5")
    A("s_lshl_b32 s40, s39, 3"); A(f"s_add_u32 s40, s40, {ST}"); A("v_mov_b32 v7, s40"); A(f"v_mov_b32 v9, {ST}")
    A("s_lshl_b32 s40, s39, 8"); A(f"s_add_u32 s40, s40, {HN}"); A("v_lshl_add_u32 v10, v8, 3, s40")
    A("v_lshlrev_b32 v11, 7, v22"); A("v_lshl_add_u32 v11, v20, 4, v11"); A("v_add_u32 v11, s40, v11")
    A("s_lshl_b32 s41, s39, 9"); A(f"s_add_u32 s41, s41, {RED}")
    A("v_lshlrev_b32 v13, 8, v22"); A("v_lshl_add_u32 v13, v23, 5, v13"); A("v_add_u32 v13, s41, v13")
    A("v_lshlrev_b32 v14, 5, v20"); A("v_lshl_add_u32 v14, v23, 2, v14"); A(f"v_add_u32 v14, {RED}, v14")
    A("v_lshrrev_b32 v52, 2, v21"); A("v_mul_u32_u24 v52, 7168, v52"); A("v_and_b32 v53, 3, v21"); A("v_lshl_add_u32 v52, v53, 5, v52"); A("v_lshl_add_u32 v52, v20, 4, v52")
    A("s_lshl_b32 s54, s49, 7"); A(f"s_mul_i32 s41, s39, {4*7168}"); A("s_add_u32 s54, s54, s41")
    A("v_cmp_eq_u32 s[56:57], 1, v20")
    A("s_mul_i32 s41, s59, 7168"); A(f"s_add_u32 s41, s41, {H3 + 3072}"); A("v_lshl_add_u32 v53, v0, 4, s41")
    A("v_and_b32 v54, 7, v0"); A("s_lshl_b32 s41, s59, 6"); A("v_lshl_add_u32 v54, v54, 3, s41"); A(f"v_add_u32 v55, {HB}, v54")
    if jitf: ffn_weights()
    if not dry: gate_wait("L_f_gate0", 2 if g2 else 1)
    LB("L_f_pass")
    A(f"s_mov_b32 s41, {H3}"); A("s_cmp_eq_u32 s46, 0"); A(f"s_cmov_b32 s41, {DUMMY}"); A("s_add_u32 s41, s41, s54")
    A("v_add_u32 v56, s41, v52")
    A(f"s_mov_b32 s51, {SPIN_MAX}")
    def hload(r):
        for i in range(4): A(f"global_load_dwordx4 {vr(r+4*i,4)}, v{4 if i < 2 else 6}, s[26:27] offset:{(i % 2) * 4096 - 4096} sc1")
    def hsum(r):
        TS(6)
        for h in range(2): A(f"v_pk_add_f32 {vr(40+2*h,2)}, {vr(r+2*h,2)}, {vr(r+4+2*h,2)}")
        for h in range(2): A(f"v_pk_add_f32 {vr(44+2*h,2)}, {vr(r+8+2*h,2)}, {vr(r+12+2*h,2)}")
    hload(192)
    if stag: A(f"s_sleep {stag}")
    LB("L_f_poll")
    hload(208)
    A("s_waitcnt vmcnt(4)")
    any_poison(range(192, 208), 40)
    A("s_cbranch_vccz L_f_gotA")
    hload(192)
    A("s_waitcnt vmcnt(4)")
    any_poison(range(208, 224), 40)
    A("s_cmp_eq_u32 s46, 0"); A("s_cbranch_scc1 L_f_gotB")
    A("s_sub_u32 s51, s51, 1"); A("s_cbranch_scc1 L_f_gotB")
    A("s_cbranch_vccnz L_f_poll")
    LB("L_f_gotB")
    hsum(208)
    A("s_cmp_eq_u32 s46, 0"); A("s_cbranch_scc0 L_f_got")
    LB("L_f_gotA")
    hsum(192)
    LB("L_f_got")
    for h in range(2): A(f"v_pk_add_f32 {vr(24+2*h,2)}, {vr(40+2*h,2)}, {vr(44+2*h,2)}")
    swap_red("add_f32", [24, 25, 26, 27], [28, 29, 30, 31], 32)
    A("v_cvt_pk_bf16_f32 v28, v24, v25"); A("v_cvt_pk_bf16_f32 v29, v26, v27")
    unpack(24, 28); unpack(26, 29)
    A("v_pk_add_f32 v[24:25], v[24:25], v[48:49]"); A("v_pk_add_f32 v[26:27], v[26:27], v[50:51]")
    A("v_cvt_pk_bf16_f32 v28, v24, v25"); A("v_cvt_pk_bf16_f32 v29, v26, v27")
    unpack(24, 28); unpack(26, 29)
    C("mean and centred sum of squares of this wave's 128 values; merged across waves after the barrier")
    A("v_readfirstlane_b32 s40, v24")
    A("ds_write_b64 v5, v[28:29]"); A("s_nop 0")
    for k in range(4): A(f"v_subrev_f32 v{32+k}, s40, v{24+k}")
    A("v_add_f32 v30, v32, v33"); A("v_mul_f32 v31, v32, v32"); A("v_add_f32 v36, v34, v35"); A("v_mul_f32 v37, v33, v33")
    A("v_fmac_f32 v31, v34, v34"); A("v_fmac_f32 v37, v35, v35"); A("v_add_f32 v30, v30, v36"); A("v_add_f32 v31, v31, v37")
    dpp_red("add_f32", [30, 31]); swap_red("add_f32", [30, 31], [32, 33], 16)
    A("v_mul_f32 v32, 0x3c000000, v30"); A("v_fma_f32 v31, -v32, v30, v31"); A("v_add_f32 v30, s40, v32")
    A("ds_write_b64 v7, v[30:31]")
    barrier_real("L_f_nb1")
    A("ds_read_b128 v[32:35], v9"); A("ds_read_b128 v[36:39], v9 offset:16")
    A("s_waitcnt lgkmcnt(0)")
    A("v_add_f32 v30, v32, v34"); A("v_add_f32 v31, v36, v38"); A("v_add_f32 v33, v33, v35"); A("v_add_f32 v30, v30, v31"); A("v_add_f32 v37, v37, v39")
    A("v_mul_f32 v30, 0x3e800000, v30"); A("v_add_f32 v33, v33, v37")
    for k in (32, 34, 36, 38): A(f"v_sub_f32 v{k}, v{k}, v30")
    A("v_mul_f32 v32, v32, v32"); A("v_mul_f32 v36, v36, v36"); A("v_fmac_f32 v32, v34, v34"); A("v_fmac_f32 v36, v38, v38")
    bf16r(30)
    A("v_add_f32 v32, v32, v36"); A("v_mul_f32 v33, 0x3b000000, v33"); A("v_fmac_f32 v33, 0x3e800000, v32")
    for k in range(4): A(f"v_sub_f32 v{24+k}, v{24+k}, v30")
    bf16r(33)
    A("v_add_f32 v33, 0x3727c5ac, v33")
    bf16r(33)
    A("v_sqrt_f32 v33, v33")
    A("v_cvt_pk_bf16_f32 v28, v24, v25"); A("v_cvt_pk_bf16_f32 v29, v26, v27")
    bf16r(33)
    A("v_rcp_f32 v33, v33")
    unpack(24, 28); unpack(26, 29)
    for k in range(4): A(f"v_mul_f32 v{24+k}, v{24+k}, v33")
    A("v_cvt_pk_bf16_f32 v28, v24, v25"); A("v_cvt_pk_bf16_f32 v29, v26, v27")
    A("ds_write_b64 v10, v[28:29]")
    A("ds_read_b128 v[40:43], v11"); A("ds_read_b128 v[44:47], v11 offset:64")
    A("s_waitcnt lgkmcnt(1)")
    for e in range(8): A(f"v_mfma_f32_16x16x32_bf16 {vr(160+4*e,4)}, v[40:43], {vr(64+4*e,4)}, 0")
    A("s_waitcnt lgkmcnt(0)")
    for e in range(8): A(f"v_mfma_f32_16x16x32_bf16 {vr(160+4*e,4)}, v[44:47], {vr(96+4*e,4)}, {vr(160+4*e,4)}")
    A("s_mov_b32 exec_lo, 0xff"); A("s_mov_b32 exec_hi, 0xff00")
    A("s_nop 5")
    for e in range(0, 8, 2): A(f"ds_write2_b32 v13, v{160+4*e}, v{164+4*e} offset0:{e} offset1:{e+1}")
    A("s_mov_b64 exec, -1")
    barrier_real("L_f_nb2")
    TS(7)
    for p in range(8):
        if p == 4: A("v_add_u32 v15, 1024, v14")
        A(f"ds_read2_b32 {vr(24+2*p,2)}, v{14 if p < 4 else 15} offset0:{64*(p&3)} offset1:{64*(p&3)+32}")
    for k in range(4):
        A(f"s_waitcnt lgkmcnt({6-2*k})"); A(f"v_pk_add_f32 {vr(24+4*k,2)}, {vr(24+4*k,2)}, {vr(26+4*k,2)}")
    A("v_pk_add_f32 v[24:25], v[24:25], v[28:29]"); A("v_pk_add_f32 v[32:33], v[32:33], v[36:37]"); A("v_pk_add_f32 v[24:25], v[24:25], v[32:33]")
    A("v_cvt_pk_bf16_f32 v26, v24, v25")
    unpack(24, 26)
    A(f"v_mul_f32 v26, {NL2E:#x}, v24"); A("v_exp_f32 v26, v26"); A("s_nop 0")
    A("v_add_f32 v26, 1.0, v26"); A("v_rcp_f32 v26, v26"); A("s_nop 0")
    A("v_mul_f32 v26, v24, v26")
    bf16r(26)
    A("v_mul_f32 v26, v26, v25"); A("s_nop 1")
    A("v_mov_b32_dpp v27, v26 quad_perm:[1,0,3,2] row_mask:0xf bank_mask:0xf")
    A("v_cvt_pk_bf16_f32 v26, v26, v27"); A("s_nop 1")
    for k in range(4): A(f"v_mov_b32_dpp v{40+k}, v26 row_newbcast:{2*k} row_mask:0xf bank_mask:0xf")
    A("s_nop 1")
    for e in range(8): A(f"v_mfma_f32_16x16x32_bf16 {vr(160+4*e,4)}, v[40:43], {vr(128+4*e,4)}, 0")
    A("s_nop 4")
    for e in range(4): A(f"v_cndmask_b32 v{24+e}, v{160+4*e}, v{176+4*e}, s[56:57]")
    A("s_mov_b32 exec_hi, 0")
    A("global_store_dwordx4 v56, v[24:27], s[26:27] sc1")
    A("s_mov_b64 exec, -1")
    TS(8)
    A("s_cmp_lg_u32 s39, 0"); A("s_cbranch_scc1 L_f_next")
    A("s_cmp_ge_u32 s59, 16"); A("s_cbranch_scc1 L_f_next")
    C("final stage: 32 output columns")
    def oload(r):
        for i in range(7): A(f"global_load_dwordx4 {vr(r+4*i,4)}, v53, s[26:27] offset:{1024*i-3072} sc1")
    def osum(r):
        TS(9)
        for d, x, y in ((160, r, r+4), (164, r+8, r+12), (168, r+16, r+20), (160, 160, r+24)):
            for h in range(2): A(f"v_pk_add_f32 {vr(d+2*h,2)}, {vr(x+2*h,2)}, {vr(y+2*h,2)}")
    A("s_waitcnt vmcnt(1)")
    oload(192)
    A(f"s_add_u32 s42, s26, {DUMMY}"); A("s_addc_u32 s43, s27, 0")
    A("s_cmp_eq_u32 s46, 0"); A("s_cselect_b32 s42, s42, s22"); A("s_cselect_b32 s43, s43, s23")
    A("ds_read_b64 v[44:45], v55")
    A(f"s_mov_b32 s51, {SPIN_MAX}")
    if stag: A(f"s_sleep {stag}")
    LB("L_o_poll")
    oload(220)
    A("s_waitcnt vmcnt(7)")
    any_poison(range(192, 220), 40)
    A("s_cbranch_vccz L_o_gotA")
    oload(192)
    A("s_waitcnt vmcnt(7)")
    any_poison(range(220, 248), 40)
    A("s_cmp_eq_u32 s46, 0"); A("s_cbranch_scc1 L_o_gotB")
    A("s_sub_u32 s51, s51, 1"); A("s_cbranch_scc1 L_o_gotB")
    A("s_cbranch_vccnz L_o_poll")
    LB("L_o_gotB")
    osum(220)
    A("s_cmp_eq_u32 s46, 0"); A("s_cbranch_scc0 L_o_got")
    LB("L_o_gotA")
    osum(192)
    LB("L_o_got")
    for d, y in ((164, 168), (160, 164)):
        for h in range(2): A(f"v_pk_add_f32 {vr(d+2*h,2)}, {vr(d+2*h,2)}, {vr(y+2*h,2)}")
    A("s_nop 0")
    for k in range(4): A(f"v_add_f32_dpp v{160+k}, v{160+k}, v{160+k} row_ror:8 row_mask:0xf bank_mask:0xf")
    swap_red("add_f32", [160, 161, 162, 163], [164, 165, 166, 167], 16)
    swap_red("add_f32", [160, 161, 162, 163], [164, 165, 166, 167], 32)
    A("v_cvt_pk_bf16_f32 v164, v160, v161"); A("v_cvt_pk_bf16_f32 v165, v162, v163")
    unpack(160, 164); unpack(162, 165)
    A("s_waitcnt lgkmcnt(0)")
    unpack(164, 44); unpack(166, 45)
    A("v_pk_add_f32 v[160:161], v[160:161], v[164:165]"); A("v_pk_add_f32 v[162:163], v[162:163], v[166:167]")
    A("v_cvt_pk_bf16_f32 v160, v160, v161"); A("v_cvt_pk_bf16_f32 v161, v162, v163")
    A("s_mov_b64 exec, 0xff")
    A("global_store_dwordx2 v54, v[160:161], s[42:43]")
    A("s_mov_b64 exec, -1")
    A("s_cmp_eq_u32 s46, 0"); A("s_cbranch_scc1 L_f_next")
    A("s_cmp_lg_u32 s59, 0"); A("s_cbranch_scc1 L_f_next")
    A("v_mov_b32 v57, 0"); A("s_mov_b64 exec, 1")
    A("global_store_dword v57, v3, s[26:27] sc1")
    A("s_mov_b64 exec, -1")
    LB("L_f_next")
    TS(10)
    A("s_cmp_eq_u32 s46, 1"); A("s_cbranch_scc1 L_hdone")
    A("s_mov_b32 s46, 1")
    gate_wait("L_f_gate", 2 if g2 else 1)
    A("s_branch L_f_pass")
    LB("L_hdone")
    TS_flush("H")
    LB("L_end")
    A("s_endpgm")
    L.append('.section .rodata,"a"'); L.append(".p2align 6"); L.append(f".amdhsa_kernel {NAME}_kernel")
    for s in ("next_free_vgpr 256", "next_free_sgpr 96", "accum_offset 256", "group_segment_fixed_size 0", "kernarg_size 96",
              "user_sgpr_count 2", "user_sgpr_kernarg_segment_ptr 1", "system_sgpr_workgroup_id_x 1", "float_denorm_mode_32 3"):
        L.append("  .amdhsa_" + s)
    L.append(".end_amdhsa_kernel")
    return "\n".join(L) + "\n"

if __name__ == "__main__":
    kw = eval("dict(" + (sys.argv[2] if len(sys.argv) > 2 else "") + ")")
    open(sys.argv[1], "w").write(gen(**kw))
```

```python
import sys
NAME = "sequential_preLN__gqa_block_cached__glu_gated_swiglu__decode"

WQL = 0x20000; SP = 0x20000
QL = 0x24400; SML = 0x24800; CNT = 0x24880; GATE = 0x24884; QRDY = 0x24888; WQC = 0x2488C; TAGL = 0x24890
WB = 0x25000; OB = 0x25200; RED = 0x25800; HB = 0x26000; HM = 0x26400; ST = 0x26600; HN = 0x26800; EL = 0x27000; TQ = 0x27400
LDS_BYTES = 163840
EPOCH = 0; ALIVE = 0x400; QH = 0x800; POOL = 0xC000; PPOOL = 0xF8000; QBUF = 0xD0000; ML = 0xF0000; H2 = 0x8000; PART = 0x10000; H3 = 0x90000; DUMMY = 0xB0000; TSB = 0x100000
TAGC = 0x9E3779B9
L2E = 0x3FB8AA3B; NL2E = 0xBFB8AA3B; SCALE = 0x3DB504F3
SPIN_MAX = 1 << 16

def gen(PACE=5, PACE0=5, S=27, NG=8, touch=False, qsleep=8, early=False, hold=False, gsleep=2, jitf=False, jitw=False, wqmap=False, ksplit=True, lazy=True, rot=0, rotm='x', F=0, fk=False, wgt=False, I1=16, I2=19, XB=24, hmove=False, pfh=False, fine=False, wburst=False, w13f=None, WTRIG=0, hint2=0, h2sleep=0, outf='sc1', qgf='sc1', pof='sc1', qsf='sc1', xf='', pwoff=0, PACEB=15, pw=0, pws='mpho', pwf='sc1', TPOS=4, g2=True, R1=8, R2=5, barpos=0, pf=True, stag=3, wend=False, rr=True, noswz=False, nocomp=False, noh=False, NV=4, VSTART=2, VSTEP=2, VW=0, QTH=20, MLTH=20, noroles=False, dbgts=False, prog=False, ts=False, dry=False, wq_flags="nt", w_flags="nt", kv_flags="nt"):
    PR = 128 - 4 * S; D = 8 * PR; PRM = -(-(1 << 16) // PR)
    assert all((t * PRM) >> 16 == t // PR for t in range(D))
    P = 4 * (S - F) if F else 0
    L = []
    def A(s): L.append("  " + s)
    def LB(s): L.append(s + ":")
    def C(s): L.append("  ; " + s)
    def vr(a, n): return f"v[{a}:{a+n-1}]"
    def TS(k):
        if ts and not fine:
            A("s_memrealtime s[60:61]"); A("s_waitcnt lgkmcnt(0)"); A(f"s_mov_b32 s{64+k}, s60")
    def TC(k):
        if fine:
            A(f"s_memtime s[{80+2*k}:{81+2*k}]")
    def TC_fin(n):
        if fine:
            A("s_waitcnt lgkmcnt(0)")
            for k in range(n): A(f"s_mov_b32 s{64+k}, s{80+2*k}")
    def TS_flush(kind="S"):
        if ts and dbgts:
            A("s_mov_b64 exec, -1"); A("v_mov_b32 v250, 0")
            if kind == "S":
                A("s_not_b32 s62, s64"); A("v_writelane_b32 v250, s62, 0"); A("s_not_b32 s62, s70"); A("v_writelane_b32 v250, s62, 13")
                for lane, k in ((1, 6), (2, 1), (3, 2), (4, 5)): A(f"v_writelane_b32 v250, s{64+k}, {lane}")
            else:
                for lane, k in ((5, 1), (6, 3), (7, 4)): A(f"v_writelane_b32 v250, s{64+k}, {lane}")
                A("s_not_b32 s62, s68"); A("s_cmp_eq_u32 s68, 0"); A("s_cselect_b32 s62, 0, s62"); A("v_writelane_b32 v250, s62, 14")
                A("s_cmp_eq_u32 s47, 0"); A("s_cbranch_scc0 L_dbgf")
                A("v_writelane_b32 v250, s70, 8"); A("v_writelane_b32 v250, s71, 9"); A("s_branch L_dbge")
                LB("L_dbgf")
                A("v_writelane_b32 v250, s70, 10"); A("v_writelane_b32 v250, s72, 11"); A("v_writelane_b32 v250, s74, 12")
                LB("L_dbge")
            A("v_mbcnt_lo_u32_b32 v251, -1, 0"); A("v_mbcnt_hi_u32_b32 v251, -1, v251"); A("v_lshlrev_b32 v251, 2, v251")
            A("s_mov_b64 exec, 0xffff")
            A("global_atomic_umax v251, v250, s[24:25] sc1")
        elif ts:
            A("s_mov_b64 exec, -1")
            A("v_mov_b32 v250, 0")
            for k in range(16): A(f"v_writelane_b32 v250, s{64+k}, {k}")
            A("v_mbcnt_lo_u32_b32 v251, -1, 0"); A("v_mbcnt_hi_u32_b32 v251, -1, v251")
            A("s_lshl_b32 s62, s2, 3"); A("s_add_u32 s62, s62, s3"); A("s_lshl_b32 s62, s62, 6"); A(f"s_add_u32 s62, s62, {TSB}")
            A("v_lshl_add_u32 v251, v251, 2, s62")
            A("s_mov_b64 exec, 0xffff")
            A("global_store_dword v251, v250, s[26:27]")
    def dpp_red(op, xs):
        for rot in (8, 4, 2, 1):
            if len(xs) < 3: A(f"s_nop {2 - len(xs)}" if len(xs) < 2 else "s_nop 0")
            for x in xs: A(f"v_{op}_dpp v{x}, v{x}, v{x} row_ror:{rot} row_mask:0xf bank_mask:0xf")
    def swap_red(op, xs, ts_, which):
        for x, t in zip(xs, ts_): A(f"v_mov_b32 v{t}, v{x}")
        A("s_nop 1")
        for x, t in zip(xs, ts_): A(f"v_permlane{which}_swap_b32 v{x}, v{t}")
        for x, t in zip(xs, ts_): A(f"v_{op} v{x}, v{x}, v{t}")
    def unpack(dst, src):
        A(f"v_lshlrev_b32 v{dst}, 16, v{src}"); A(f"v_and_b32 v{dst+1}, 0xffff0000, v{src}")
    def bf16r(x):
        A(f"v_cvt_pk_bf16_f32 v{x}, v{x}, v{x}"); A(f"v_and_b32 v{x}, 0xffff0000, v{x}")
    def layernorm(src, f, t):
        for k in range(4): unpack(f + 2 * k, src + k)
        A(f"v_add_f32 v{t}, v{f}, v{f+1}"); A(f"v_add_f32 v{t+1}, v{f+2}, v{f+3}")
        A(f"v_add_f32 v{t+2}, v{f+4}, v{f+5}"); A(f"v_add_f32 v{t+3}, v{f+6}, v{f+7}")
        A(f"v_add_f32 v{t}, v{t}, v{t+1}"); A(f"v_add_f32 v{t+2}, v{t+2}, v{t+3}"); A(f"v_add_f32 v{t}, v{t}, v{t+2}")
        dpp_red("add_f32", [t]); swap_red("add_f32", [t], [t+1], 16); swap_red("add_f32", [t], [t+1], 32)
        A(f"v_mul_f32 v{t}, 0x3b000000, v{t}")
        A(f"v_sub_f32 v{t+2}, v{f}, v{t}"); A(f"v_mul_f32 v{t+1}, v{t+2}, v{t+2}")
        for k in range(1, 8):
            A(f"v_sub_f32 v{t+2}, v{f+k}, v{t}"); A(f"v_fmac_f32 v{t+1}, v{t+2}, v{t+2}")
        bf16r(t)
        dpp_red("add_f32", [t+1]); swap_red("add_f32", [t+1], [t+2], 16); swap_red("add_f32", [t+1], [t+2], 32)
        A(f"v_mul_f32 v{t+1}, 0x3b000000, v{t+1}")
        bf16r(t+1)
        A(f"v_add_f32 v{t+1}, 0x3727c5ac, v{t+1}")
        bf16r(t+1)
        A(f"v_sqrt_f32 v{t+1}, v{t+1}")
        for k in range(8): A(f"v_sub_f32 v{f+k}, v{f+k}, v{t}")
        bf16r(t+1)
        A(f"v_rcp_f32 v{t+1}, v{t+1}")
        for k in range(4): A(f"v_cvt_pk_bf16_f32 v{src+k}, v{f+2*k}, v{f+2*k+1}")
        for k in range(4): unpack(f + 2 * k, src + k)
        for k in range(8): A(f"v_mul_f32 v{f+k}, v{f+k}, v{t+1}")
        for k in range(4): A(f"v_cvt_pk_bf16_f32 v{src+k}, v{f+2*k}, v{f+2*k+1}")
    def transpose8(dst, src):
        for e in range(8):
            for j in range(4):
                a = src + 4 * (2 * j) + (e >> 1); b = src + 4 * (2 * j + 1) + (e >> 1)
                A(f"v_perm_b32 v{dst+4*e+j}, v{b}, v{a}, s{45 if e & 1 else 44}")
    def any_poison(regs, t):
        regs = list(regs)
        A(f"v_max3_u32 v{t}, v{regs[0]}, v{regs[1]}, v{regs[2]}" if len(regs) >= 3 else f"v_max_u32 v{t}, v{regs[0]}, v{regs[1]}")
        rest = regs[3:] if len(regs) >= 3 else []
        while len(rest) >= 2:
            A(f"v_max3_u32 v{t}, v{t}, v{rest[0]}, v{rest[1]}"); rest = rest[2:]
        if rest: A(f"v_max_u32 v{t}, v{t}, v{rest[0]}")
        A(f"v_cmp_eq_u32 vcc, -1, v{t}")
    def barrier_real(lbl):
        A("s_waitcnt lgkmcnt(0)")
        if dry: A("s_cmp_eq_u32 s46, 0"); A(f"s_cbranch_scc1 {lbl}")
        A("s_barrier"); LB(lbl)
    def alive(tag):
        if wend: A("s_branch L_hdone")
        C("every workgroup reset its hand-off slots before it wrote its word here")
        A(f"v_lshlrev_b32 v4, 4, v0"); A(f"v_add_u32 v4, {ALIVE}, v4")
        A(f"s_mov_b32 s51, {SPIN_MAX}")
        LB(f"L_alive_{tag}")
        A("global_load_dwordx4 v[24:27], v4, s[26:27] sc1")
        A("s_sub_u32 s51, s51, 1"); A(f"s_cbranch_scc1 L_alive_ok_{tag}")
        A("s_waitcnt vmcnt(0)")
        for k in range(4): A(f"v_xor_b32 v{24+k}, v{24+k}, v3")
        A("v_or3_b32 v24, v24, v25, v26"); A("v_or_b32 v24, v24, v27")
        A("v_cmp_ne_u32 vcc, 0, v24"); A(f"s_cbranch_vccnz L_alive_{tag}")
        LB(f"L_alive_ok_{tag}")
        A("s_waitcnt vmcnt(0)")
    def gate_wait(lbl, lvl=1):
        A(f"v_mov_b32 v1, {GATE}")
        LB(lbl)
        A(f"s_sleep {gsleep}"); A("ds_read_b32 v2, v1"); A("s_waitcnt lgkmcnt(0)"); A("v_readfirstlane_b32 s40, v2")
        A(f"s_cmp_lt_u32 s40, {lvl}"); A(f"s_cbranch_scc1 {lbl}")

    L.append(f"; @launch grid=(256,1,1) block=(512,1,1) lds={LDS_BYTES}")
    L.append('.amdgcn_target "amdgcn-amd-amdhsa--gfx950"')
    L.append(".text"); L.append(f".globl {NAME}_kernel"); L.append(".p2align 8"); L.append(f".type {NAME}_kernel,@function")
    LB(f"{NAME}_kernel")
    A("s_cmp_ge_u32 s2, 256"); A("s_cbranch_scc1 L_end")
    A("s_load_dwordx16 s[4:19], s[0:1], 0")
    A("s_load_dwordx8 s[20:27], s[0:1], 64")
    if ts:
        for k in range(16): A(f"s_mov_b32 s{64+k}, 0")
        A("s_memrealtime s[60:61]")
    A("v_lshrrev_b32 v1, 6, v0")
    A("v_and_b32 v0, 63, v0")
    A("v_readfirstlane_b32 s3, v1")
    def codepf():
        if pf:
            C("one idle wave pulls this kernel's code towards the L2 while the others start")
            A("s_cmp_lg_u32 s3, 5"); A("s_cbranch_scc1 L_nopf")
            A("s_getpc_b64 s[40:41]"); LB("L_pc")
            A(f"s_sub_u32 s40, s40, L_pc-{NAME}_kernel"); A("s_subb_u32 s41, s41, 0")
            A("v_lshlrev_b32 v8, 7, v0"); A(f"v_min_u32 v9, L_end-{NAME}_kernel-8192, v8")
            A("global_load_dword v10, v8, s[40:41] " + xf); A("s_add_u32 s40, s40, 8192"); A("s_addc_u32 s41, s41, 0"); A("global_load_dword v10, v9, s[40:41] " + xf)
            LB("L_nopf")
    if not pfh: codepf()
    A("s_lshr_b32 s36, s2, 5")
    A("s_and_b32 s37, s2, 31")
    A("s_and_b32 s38, s2, 7"); A("s_lshl_b32 s38, s38, 2"); A("s_lshr_b32 s39, s37, 3"); A("s_add_u32 s38, s38, s39")
    A(f"v_mov_b32 v1, {CNT}")
    for k in range(4): A(f"v_mov_b32 v{4+k}, 0")
    A("ds_write_b128 v1, v[4:7]")
    def hentry():
        if pfh: codepf()
        A("v_mov_b32 v16, 0"); A("v_lshlrev_b32 v1, 4, v0")
        A("s_lshl_b32 s40, s36, 10"); A(f"s_add_u32 s40, s40, {POOL}"); A("v_and_b32 v19, 3, v0"); A("v_lshl_add_u32 v19, v19, 8, s40")
        A("s_waitcnt lgkmcnt(0)")
        A("s_cmp_lg_u32 s3, 4"); A("s_cbranch_scc1 L_hbar")
        if F:
            A("s_cmp_lt_u32 s37, 24"); A("s_cbranch_scc1 L_hx")
            A("s_and_b32 s40, s2, 7"); A("s_lshl_b32 s41, s36, 3"); A("s_add_u32 s40, s40, s41"); A("s_lshl_b32 s40, s40, 9"); A(f"s_add_u32 s40, s40, {PPOOL}")
            A("v_and_b32 v18, 3, v0"); A("v_lshl_add_u32 v18, v18, 7, s40")
            A("global_store_dword v18, v16, s[26:27] sc1")
        A("s_cmp_lg_u32 s37, 31"); A("s_cbranch_scc1 L_hx")
        A("global_store_dword v19, v16, s[26:27] sc1")
        LB("L_hx")
        A("global_load_dwordx4 v[4:7], v1, s[4:5]")
        A("global_load_dword v3, v16, s[26:27] sc1")
        LB("L_hbar")
        A("s_barrier"); A("s_branch L_helper")
    if hmove: A("s_cmp_ge_u32 s3, 4"); A("s_cbranch_scc1 L_hentry")
    else:
        A("s_cmp_lt_u32 s3, 4"); A("s_cbranch_scc1 L_stream"); hentry(); LB("L_stream")

    C("streaming waves: K/V tiles of 16 keys through a 4-slot LDS ring per wave")
    A("v_lshrrev_b32 v20, 4, v0")
    A("v_and_b32 v21, 15, v0")
    A("v_lshlrev_b32 v22, 1, v20")
    A("v_xor_b32 v22, v22, v21")
    A("v_lshlrev_b32 v22, 4, v22")
    A("v_lshl_add_u32 v2, v20, 8, v22")
    A("v_xor_b32 v3, 0x80, v2"); A("v_xor_b32 v4, 16, v2"); A("v_xor_b32 v5, 0x90, v2")
    if noswz:
        for i in range(4): A(f"v_lshlrev_b32 v{2+i}, 4, v0")
    C("four workgroups share a 2 MiB page of K and V (rows of 4 tiles interleaved); the last rows of all pages form a ticket pool")
    A("s_and_b32 s40, s2, 7"); A("s_lshl_b32 s41, s36, 3"); A("s_add_u32 s40, s40, s41"); A("s_lshl_b32 s40, s40, 21")
    A("s_lshl_b32 s41, s39, 14"); A("s_add_u32 s40, s40, s41")
    A("s_lshl_b32 s41, s3, 12"); A("s_add_u32 s40, s40, s41")
    if rot:
        A(f"s_and_b32 s59, s40, {~0x1fffff & 0xffffffff:#x}"); A(f"s_add_u32 s59, s59, {4*S*16384}")
        if rotm == 'x': A("s_and_b32 s41, s2, 7")
        elif rotm == 'h': A("s_mov_b32 s41, s36")
        else: A("s_and_b32 s41, s2, 7"); A("s_xor_b32 s41, s41, s36")
        A(f"s_mul_i32 s41, s41, {rot * 65536}"); A("s_add_u32 s40, s40, s41")
    A("s_lshl_b32 s41, s3, 15")
    A("s_mov_b32 s30, 0x8000000"); A("s_mov_b32 s31, 0x20000"); A("s_mov_b32 s34, 0x8000000"); A("s_mov_b32 s35, 0x20000")
    A("s_mov_b32 s42, 0x2000")
    A("s_mov_b32 s44, 4")
    C("first: 32 rows x 64 columns of wq per wave into LDS (used by the first helper wave)")
    A("v_lshrrev_b32 v22, 3, v0"); A("v_and_b32 v23, 7, v0"); A("v_lshlrev_b32 v22, 13, v22"); A("v_lshl_add_u32 v22, v23, 4, v22")
    A("s_lshl_b32 s47, s39, 20"); A("s_lshl_b32 s48, s3, 18"); A("s_add_u32 s47, s47, s48"); A("s_lshl_b32 s48, s36, 10"); A("s_add_u32 s47, s47, s48")
    A("s_and_b32 s48, s2, 7"); A("s_lshl_b32 s48, s48, 7"); A("s_add_u32 s47, s47, s48")
    A("s_lshl_b32 s48, s3, 12"); A(f"s_add_u32 m0, s48, {WQL}")
    A("s_waitcnt lgkmcnt(0)")
    if ts: A("s_mov_b32 s64, s60")
    A("s_add_u32 s48, s10, s47"); A("s_addc_u32 s49, s11, 0")
    for k in range(4):
        if k: A("v_add_u32 v22, 0x10000, v22"); A("s_add_u32 m0, m0, 1024"); A("s_nop 0")
        else: A("s_mov_b32 s28, s6")
        A(f"global_load_lds_dwordx4 v22, s[48:49] {wq_flags}")
    A("s_and_b32 s29, s7, 0xffff"); A("s_mov_b32 s32, s8"); A("s_and_b32 s33, s9, 0xffff")
    if barpos == 0: A("s_barrier")
    TS(6)
    def adv():
        A("s_add_u32 s40, s40, 65536")
        if rot: A("s_cmp_ge_u32 s40, s59"); A(f"s_cselect_b32 s48, {4*S*16384}, 0"); A("s_sub_u32 s40, s40, s48")
    def issue_tile(pace, tk=False):
        def ticket(i):
            if tk and i == TPOS:
                A("s_cmp_lg_u32 s43, 0"); A(f"s_cbranch_scc1 L_notk{tk}")
                if wgt:
                    A("s_mov_b64 exec, 1"); A("ds_add_rtn_u32 v22, v23, v119"); A("s_mov_b64 exec, -1")
                    A("s_waitcnt lgkmcnt(0)"); A("v_readfirstlane_b32 s48, v22")
                    A("s_cmp_eq_u32 s48, 0"); A("s_cselect_b32 s56, 1, 0"); A(f"s_cbranch_scc0 L_notk{tk}")
                A("s_mov_b32 s58, 1"); A(f"s_atomic_add s58, s[26:27], {'s56' if F else 's57'} glc")
                LB(f"L_notk{tk}")
        A("s_mov_b32 m0, s41")
        for i in range(4):
            ticket(i); A(f"s_waitcnt vmcnt({pace})"); A(f"buffer_load_dwordx4 v{2+i}, s[28:31], s40 offen offset:{i*1024} {kv_flags} lds")
        A("s_add_u32 m0, s41, 4096")
        for i in range(4):
            ticket(4 + i); A(f"s_waitcnt vmcnt({pace})"); A(f"buffer_load_dwordx4 v{2+i}, s[32:35], s40 offen offset:{i*1024} {kv_flags} lds")
        ticket(8)
        adv()
    LB("L_fill")
    issue_tile(PACE0)
    A("s_xor_b32 s41, s41, s42"); A("s_xor_b32 s42, s42, 0x4000")
    A("s_cmp_lg_u32 s44, 4"); A("s_cbranch_scc1 L_nosig")
    if barpos == 1: A("s_barrier")
    A("s_waitcnt vmcnt(8)"); A("v_mov_b32 v22, 1"); A("s_mov_b64 exec, 1")
    A(f"ds_add_u32 v1, v22 offset:{WQC - CNT}"); A("s_mov_b64 exec, -1")
    LB("L_nosig")
    A("s_sub_u32 s44, s44, 1"); A("s_cmp_lg_u32 s44, 0"); A("s_cbranch_scc1 L_fill")
    if hmove:
        A("s_branch L_filled"); LB("L_hentry"); hentry(); LB("L_filled")
    TS(1)
    A("s_lshl_b32 s46, s36, 24"); A("s_lshl_b32 s47, s3, 12"); A("s_add_u32 s46, s46, s47"); A(f"s_add_u32 s46, s46, {4*S*16384}")
    if wgt:
        assert not F and D + 2 <= 256
        A("s_lshl_b32 s57, s36, 10"); A(f"s_add_u32 s57, s57, {POOL}")
        A("s_mov_b32 s56, 0")
    else:
        A("s_lshl_b32 s57, s36, 2"); A("s_add_u32 s57, s57, s3"); A("s_lshl_b32 s57, s57, 8"); A(f"s_add_u32 s57, s57, {POOL}")
    A("s_mov_b32 s58, 0")
    if F:
        A("s_and_b32 s56, s2, 7"); A("s_lshl_b32 s47, s36, 3"); A("s_add_u32 s56, s56, s47")
        A("s_lshl_b32 s59, s56, 21"); A("s_lshl_b32 s47, s3, 12"); A("s_add_u32 s59, s59, s47"); A(f"s_add_u32 s59, s59, {4*F*16384}")
        A("s_lshl_b32 s56, s56, 2"); A("s_add_u32 s56, s56, s3"); A("s_lshl_b32 s56, s56, 7"); A(f"s_add_u32 s56, s56, {PPOOL}")
    C("addresses of the final merge")
    A("s_lshl_b32 s47, s3, 11"); A(f"s_add_u32 s47, s47, {SP}")
    A("v_lshlrev_b32 v122, 9, v21"); A("v_lshl_add_u32 v122, v20, 4, v122"); A("v_add_u32 v122, s47, v122")
    A("s_lshl_b32 s47, s3, 5"); A(f"s_add_u32 s47, s47, {SML}")
    A("v_lshl_add_u32 v123, v21, 3, s47")
    A(f"v_lshlrev_b32 v124, 5, v0"); A(f"v_add_u32 v124, {SP}, v124")
    A(f"v_lshlrev_b32 v125, 3, v20"); A(f"v_add_u32 v125, {SML}, v125")
    A("s_lshl_b32 s47, s36, 15"); A("s_lshl_b32 s48, s38, 8"); A("s_add_u32 s47, s47, s48"); A(f"s_add_u32 s47, s47, {PART}")
    A("v_lshlrev_b32 v126, 13, v20"); A("v_lshl_add_u32 v126, v21, 4, v126"); A("v_add_u32 v126, s47, v126")
    A("s_lshl_b32 s47, s36, 12"); A("s_lshl_b32 s48, s38, 7"); A("s_add_u32 s47, s47, s48"); A(f"s_add_u32 s47, s47, {ML}")
    A("v_lshl_add_u32 v127, v20, 3, s47")
    A(f"v_mov_b32 v1, {CNT}"); A("v_mov_b32 v119, 1")
    A(f"s_mov_b32 s43, {(F if F else S) - 4}")
    A("v_lshlrev_b32 v23, 1, v21"); A("v_and_b32 v23, 15, v23"); A("v_lshrrev_b32 v24, 3, v21"); A("v_or_b32 v23, v23, v24")
    A("v_and_b32 v24, 1, v20"); A("v_lshlrev_b32 v24, 1, v24"); A("v_lshrrev_b32 v25, 1, v20"); A("v_or_b32 v24, v24, v25")
    A("v_xor_b32 v23, v23, v24"); A("v_lshlrev_b32 v23, 4, v23"); A("v_lshl_add_u32 v23, v21, 8, v23")
    A("v_add_u32 v6, s41, v23")
    for s in range(1, 4): A(f"v_xor_b32 v{6+s}, {s << 6}, v6")
    A("v_lshrrev_b32 v25, 2, v0")
    A("v_lshlrev_b32 v26, 1, v25"); A("v_and_b32 v26, 15, v26"); A("v_lshrrev_b32 v27, 3, v25"); A("v_or_b32 v26, v26, v27")
    A("v_bfe_u32 v27, v0, 1, 1"); A("v_xor_b32 v26, v26, v27"); A("v_lshlrev_b32 v26, 4, v26")
    A("v_lshl_add_u32 v26, v25, 8, v26")
    A("v_and_b32 v27, 1, v0"); A("v_lshl_add_u32 v26, v27, 3, v26")
    A("s_add_u32 s44, s41, 4096")
    A("v_add_u32 v10, s44, v26")
    for t in range(1, 8): A(f"v_xor_b32 v{10+t}, {t << 5}, v10")
    A("v_and_b32 v25, 3, v21"); A("v_lshlrev_b32 v25, 8, v25"); A("v_lshl_add_u32 v25, v24, 4, v25"); A(f"v_add_u32 v108, {QL}, v25")
    if wgt: A(f"v_mov_b32 v23, {EL}")
    A("v_mov_b32 v18, 0xff7fffff"); A("v_mov_b32 v19, 0x7f7fffff"); A("v_mov_b32 v109, 0")
    for k in range(32): A(f"v_mov_b32 v{76+k}, 0")
    A(f"s_mov_b32 s45, {L2E}"); A("s_mov_b32 s44, 4"); A("s_mov_b32 s54, 0x2000"); A("s_mov_b32 s55, 4")
    if ts: A("s_mov_b32 s51, 0")
    A(f"v_mov_b32 v116, {QRDY}")
    if fk: A("s_mov_b32 s62, s39")
    A("s_mov_b32 s39, 0"); A("s_mov_b32 s52, 0"); A(f"s_mul_i32 s53, s3, {VW}"); A(f"s_add_u32 s53, s53, {VSTART}")
    if noh: A("s_branch L_qok")
    C("while q is not there yet, keep streaming: park up to NV more tiles in registers")
    for k in range(NV):
        A("ds_read_b32 v117, v116"); A("s_waitcnt lgkmcnt(0)"); A("v_readfirstlane_b32 s48, v117")
        A("s_cmp_lg_u32 s48, 0"); A("s_cbranch_scc1 L_qok")
        for i in range(8):
            A(f"s_waitcnt vmcnt({PACE0})"); A(f"buffer_load_dwordx4 {vr(128+32*k+4*i,4)}, v{2+(i&3)}, s[{28 if i < 4 else 32}:{31 if i < 4 else 35}], s40 offen offset:{(i&3)*1024} {kv_flags}")
        adv(); A("s_add_u32 s52, s52, 1"); A("s_sub_u32 s43, s43, 1")
    LB("L_qwait")
    A("ds_read_b32 v117, v116"); A("s_waitcnt lgkmcnt(0)"); A("v_readfirstlane_b32 s48, v117")
    A("s_cmp_lg_u32 s48, 0"); A("s_cbranch_scc1 L_qok"); A("s_sleep 1"); A("s_branch L_qwait")
    LB("L_qok")
    if ts: A("s_add_u32 s51, s51, s52"); A("s_mov_b32 s77, s52")
    TS(2)
    for s in range(4): A(f"ds_read_b128 {vr(24+4*s,4)}, v108 offset:{64*s}")
    LB("L_tile")
    A("s_waitcnt vmcnt(24)")
    A("s_cmp_gt_u32 s44, 3"); A("s_cbranch_scc1 L_go")
    A("s_waitcnt vmcnt(16)"); A("s_cmp_gt_u32 s44, 2"); A("s_cbranch_scc1 L_go")
    A("s_waitcnt vmcnt(8)"); A("s_cmp_gt_u32 s44, 1"); A("s_cbranch_scc1 L_go")
    if ksplit:
        C("last tile: start on K while V is still arriving")
        A("s_waitcnt vmcnt(4)")
        TS(3); TC(0)
        for s in range(4): A(f"ds_read_b128 {vr(40+4*s,4)}, v{6+s}")
        for s in range(4):
            A(f"s_waitcnt lgkmcnt({3-s})")
            A(f"v_mfma_f32_16x16x32_bf16 v[72:75], {vr(40+4*s,4)}, {vr(24+4*s,4)}, {'0' if s == 0 else 'v[72:75]'}")
        A("s_branch L_sm")
    else:
        A("s_waitcnt vmcnt(0)")
        TS(3)
    LB("L_go")
    if nocomp: A("s_waitcnt lgkmcnt(0)"); A("s_branch L_skipc")
    for s in range(4): A(f"ds_read_b128 {vr(40+4*s,4)}, v{6+s}")
    for t in range(8): A(f"ds_read_b64_tr_b16 {vr(56+2*t,2)}, v{10+t}")
    for s in range(4):
        A(f"s_waitcnt lgkmcnt({11-s})")
        A(f"v_mfma_f32_16x16x32_bf16 v[72:75], {vr(40+4*s,4)}, {vr(24+4*s,4)}, {'0' if s == 0 else 'v[72:75]'}")
    LB("L_sm")
    for k in range(12): A(f"v_xor_b32 v{6+k}, s54, v{6+k}")
    A("v_cvt_pk_bf16_f32 v110, v72, v73"); A("v_cvt_pk_bf16_f32 v111, v74, v75")
    unpack(112, 110); unpack(114, 111)
    for k in range(4): A(f"v_mul_f32 v{112+k}, {SCALE:#x}, v{112+k}")
    A("v_cvt_pk_bf16_f32 v110, v112, v113"); A("v_cvt_pk_bf16_f32 v111, v114, v115")
    unpack(112, 110); unpack(114, 111)
    if lazy:
        A("v_max3_f32 v116, v112, v113, v114"); A("v_max_f32 v117, v115, v18")
        for k in range(4): A(f"v_fma_f32 v{72+k}, v{112+k}, s45, v19")
        A("v_max_f32 v110, v116, v117"); A("v_max_f32 v111, v116, v117")
        A("v_cmp_gt_f32 vcc, v110, v18")
        A("v_mov_b32 v118, 1.0")
        A("s_cbranch_vccnz L_newmax")
        for k in range(4): A(f"v_exp_f32 v{112+k}, v{72+k}")
        A("s_nop 0")
    else:
        A("v_max3_f32 v116, v112, v113, v114"); A("v_max3_f32 v116, v116, v115, v18")
        swap_red("max_f32", [116], [117], 16); swap_red("max_f32", [116], [117], 32)
        A(f"v_mul_f32 v117, {NL2E:#x}, v116"); A("v_floor_f32 v117, v117")
        A("v_cmp_lt_f32 vcc, v117, v19")
        A("v_sub_f32 v118, v117, v19")
        for k in range(4): A(f"v_fma_f32 v{112+k}, v{112+k}, s45, v117")
        A("v_exp_f32 v118, v118")
        for k in range(4): A(f"v_exp_f32 v{112+k}, v{112+k}")
        A("v_mov_b32 v18, v116"); A("v_mov_b32 v19, v117")
        A("s_cbranch_vccz L_nors")
        for k in range(16): A(f"v_pk_mul_f32 {vr(76+2*k,2)}, {vr(76+2*k,2)}, v[118:119] op_sel_hi:[1,0]")
    LB("L_nors")
    A("v_add_f32 v116, v112, v113"); A("v_add_f32 v117, v114, v115")
    A("v_cvt_pk_bf16_f32 v120, v112, v113"); A("v_cvt_pk_bf16_f32 v121, v114, v115")
    A("v_add_f32 v116, v116, v117"); A("v_fma_f32 v109, v109, v118, v116")
    if ksplit:
        A("s_cmp_gt_u32 s44, 1"); A("s_cbranch_scc1 L_pv")
        for k in range(8): A(f"v_xor_b32 v{10+k}, s54, v{10+k}")
        TC(1)
        A("s_waitcnt vmcnt(0)")
        TC(2)
        for t in range(8): A(f"ds_read_b64_tr_b16 {vr(56+2*t,2)}, v{10+t}")
        for t in range(8):
            A(f"s_waitcnt lgkmcnt({7-t})"); A(f"v_mfma_f32_16x16x16_bf16 {vr(76+4*t,4)}, {vr(56+2*t,2)}, v[120:121], {vr(76+4*t,4)}")
        A("s_branch L_fin")
        LB("L_pv")
    A("s_waitcnt lgkmcnt(0)")
    for t in range(8): A(f"v_mfma_f32_16x16x16_bf16 {vr(76+4*t,4)}, {vr(56+2*t,2)}, v[120:121], {vr(76+4*t,4)}")
    LB("L_skipc")
    if NV:
        A("s_cmp_eq_u32 s52, 0"); A("s_cbranch_scc1 L_nopark")
        A("s_sub_u32 s53, s53, 1"); A("s_cmp_lg_u32 s53, 0"); A("s_cbranch_scc1 L_nopark")
        LB("L_park")
        C("move a parked tile into the slot that just became free and run it")
        A(f"s_mov_b32 s53, {VSTEP + 1}"); A("s_sub_u32 s52, s52, 1")
        A("v_lshl_add_u32 v116, v0, 4, s41")
        A("s_waitcnt vmcnt(8)")
        for k in range(NV):
            if k < NV - 1: A(f"s_cmp_lg_u32 s52, {k}"); A(f"s_cbranch_scc1 L_pk{k}")
            for i in range(8): A(f"ds_write_b128 v116, {vr(128+32*k+4*i,4)} offset:{1024*i}")
            if k < NV - 1: A("s_branch L_pkd"); LB(f"L_pk{k}")
        LB("L_pkd")
        for k in range(12): A(f"v_xor_b32 v{6+k}, s54, v{6+k}")
        A("s_branch L_go")
        LB("L_nopark")
    A("s_xor_b32 s54, s54, 0x4000")
    C("s55: wanted number of tiles in the ring (4 at first, 2 later so that nothing waits unprocessed at the end, 0 when the pool is empty)")
    A("s_add_u32 s39, s39, 1")
    A(f"s_cmp_lt_u32 s39, {I1}"); A("s_cbranch_scc1 L_keep")
    A("s_cmp_lg_u32 s52, 0"); A("s_cbranch_scc1 L_keep")
    A(f"s_cmp_lt_u32 s39, {I2}"); A("s_cselect_b32 s48, 3, 2"); A("s_min_u32 s55, s55, s48")
    A("s_cmp_gt_u32 s44, s55"); A("s_cbranch_scc1 L_drain")
    LB("L_keep")
    if WTRIG:
        A(f"s_cmp_lg_u32 s43, {WTRIG}"); A("s_cbranch_scc1 L_notrig")
        A(f"ds_add_u32 v1, v119 offset:{WQC - CNT}")
        LB("L_notrig")
    A("s_cmp_eq_u32 s43, 0"); A("s_cbranch_scc1 L_dyn")
    A("s_sub_u32 s43, s43, 1"); A("s_branch L_issue")
    LB("L_dyn")
    if F:
        C("rows of this page are handed out in order to its four workgroups; each wave's last page ticket is one of the last four")
        A("s_cmp_eq_u32 s56, s57"); A("s_cbranch_scc1 L_head")
        if fk: A("s_mov_b32 s58, s62"); A("s_add_u32 s62, s62, 4")
        A("s_lshl_b32 s50, s58, 14"); A("s_add_u32 s40, s59, s50")
        A(f"s_cmp_ge_u32 s58, {P - 4}"); A("s_cselect_b32 s56, s57, s56")
        A("s_branch L_issue")
        LB("L_head")
    if wgt:
        C("one row of four tiles per ticket: the first wave to need it asks, the others read its answer")
        A("s_cmp_eq_u32 s56, 0"); A("s_cbranch_scc1 L_rdq")
        A("v_mov_b32 v22, s58"); A(f"ds_write_b32 v23, v22 offset:{TQ - EL}"); A("s_branch L_gotq")
        LB("L_rdq")
        A(f"ds_read_b32 v22, v23 offset:{TQ - EL}"); A("s_waitcnt lgkmcnt(0)"); A("v_readfirstlane_b32 s58, v22")
        A("s_cmp_eq_u32 s58, -1"); A("s_cbranch_scc1 L_rdq")
        LB("L_gotq")
    A(f"s_cmp_ge_u32 s58, {D}"); A("s_cbranch_scc1 L_empty")
    if wgt: A("v_add_u32 v23, 4, v23")
    A("s_and_b32 s49, s58, 7"); A("s_lshr_b32 s50, s58, 3")
    A("s_lshl_b32 s49, s49, 21"); A("s_lshl_b32 s50, s50, 14"); A("s_add_u32 s40, s46, s49"); A("s_add_u32 s40, s40, s50")
    if XB:
        A(f"s_cmp_lt_u32 s58, {D - XB}"); A("s_cbranch_scc1 L_issue")
        C("last round of the pool: others have stopped, do not hold these loads back")
        issue_tile(PACEB, 2)
        A("s_branch L_issued")
    LB("L_issue")
    issue_tile(PACE, 1)
    LB("L_issued")
    A("s_xor_b32 s41, s41, s42"); A("s_xor_b32 s42, s42, 0x4000")
    if prog:
        A("s_add_u32 s51, s51, 1")
        for k, r in enumerate((4, 8, 12, 16, 20, 24, 28)):
            A(f"s_cmp_eq_u32 s51, {r}"); A(f"s_cbranch_scc0 L_pg{k}"); TS(7 + k); LB(f"L_pg{k}")
    A("s_branch L_tile")
    LB("L_empty")
    if NV:
        A("s_cmp_eq_u32 s52, 0"); A("s_cbranch_scc1 L_empty2")
        A("s_xor_b32 s54, s54, 0x4000"); A("s_branch L_park")
        LB("L_empty2")
    A(f"ds_write_b32 v1, v119 offset:{GATE - CNT}"); A("s_mov_b32 s55, 0")
    if ts: A("s_add_u32 s79, s51, 4"); TS(14)
    LB("L_drain")
    A("s_sub_u32 s44, s44, 1"); A("s_cmp_lg_u32 s44, 0"); A("s_cbranch_scc1 L_tile")
    LB("L_fin")
    TS(4); TC(3)
    C("epilogue: merge the four waves' partial results, publish")
    A("v_mov_b32 v116, v109"); A("v_mov_b32 v108, v19"); A("s_nop 0")
    A("v_permlane16_swap_b32 v109, v116"); A("v_add_f32 v117, v109, v116"); A("v_add_f32 v109, v109, v116")
    A("s_mov_b32 exec_lo, 0x000f000f"); A("s_mov_b32 exec_hi, 0x000f000f")
    for t in range(8): A(f"ds_write_b128 v122, {vr(76+4*t,4)} offset:{64*t}")
    A("s_mov_b64 exec, -1")
    A("v_permlane32_swap_b32 v109, v117"); A("v_add_f32 v109, v109, v117")
    A("s_mov_b64 exec, 15")
    A("ds_write_b64 v123, v[108:109]")
    A("s_mov_b64 exec, 1")
    A("ds_add_rtn_u32 v111, v1, v119")
    A("s_mov_b64 exec, -1")
    A("s_waitcnt lgkmcnt(0)")
    TC(4)
    A("v_readfirstlane_b32 s44, v111")
    if fine: A("s_mov_b32 s79, s44")
    A("s_cmp_eq_u32 s44, 3"); A("s_cbranch_scc0 L_sdone")
    for w in range(4): A(f"ds_read_b64 {vr(24+2*w,2)}, v125 offset:{32*w}")
    for w in range(4):
        A(f"ds_read_b128 {vr(40+8*w,4)}, v124 offset:{2048*w}"); A(f"ds_read_b128 {vr(44+8*w,4)}, v124 offset:{2048*w+16}")
    A("s_waitcnt lgkmcnt(8)")
    A("v_min3_f32 v32, v24, v26, v28"); A("v_min_f32 v32, v32, v30")
    for w in range(4): A(f"v_sub_f32 v{24+2*w}, v32, v{24+2*w}")
    for w in range(4): A(f"v_exp_f32 v{24+2*w}, v{24+2*w}")
    A("s_waitcnt lgkmcnt(6)")
    for k in range(4): A(f"v_pk_mul_f32 {vr(40+2*k,2)}, {vr(40+2*k,2)}, v[24:25] op_sel_hi:[1,0]")
    for w in range(1, 4):
        A(f"s_waitcnt lgkmcnt({6 - 2*w})")
        for k in range(4): A(f"v_pk_fma_f32 {vr(40+2*k,2)}, {vr(40+8*w+2*k,2)}, {vr(24+2*w,2)}, {vr(40+2*k,2)} op_sel_hi:[1,0,1]")
    for k in range(4): A(f"v_cvt_pk_bf16_f32 v{40+k}, v{40+2*k}, v{41+2*k}")
    A("global_store_dwordx4 v126, v[40:43], s[26:27] sc1")
    A("v_mul_f32 v33, v24, v25")
    for w in range(1, 4): A(f"v_fmac_f32 v33, v{24+2*w}, v{25+2*w}")
    A("s_mov_b32 exec_lo, 0x00010001"); A("s_mov_b32 exec_hi, 0x00010001")
    A("global_store_dwordx2 v127, v[32:33], s[26:27] sc1")
    A("v_mov_b32 v117, 2"); A(f"ds_write_b32 v1, v117 offset:{GATE - CNT}")
    LB("L_sdone")
    TC(5); TC_fin(6)
    TS(5)
    TS_flush()
    A("s_endpgm")

    if lazy:
        LB("L_newmax")
        C("some row has a new maximum: agree on it across the four key groups, rescale")
        A("v_permlane16_swap_b32 v110, v111"); A("v_max_f32 v116, v110, v111"); A("v_max_f32 v117, v110, v111"); A("s_nop 1")
        A("v_permlane32_swap_b32 v116, v117"); A("v_max_f32 v18, v116, v117")
        A(f"v_mul_f32 v117, {NL2E:#x}, v18"); A("v_floor_f32 v117, v117")
        A("v_cmp_lt_f32 vcc, v117, v19")
        A("v_sub_f32 v118, v117, v19")
        for k in range(4): A(f"v_fma_f32 v{112+k}, v{112+k}, s45, v117")
        A("v_exp_f32 v118, v118")
        for k in range(4): A(f"v_exp_f32 v{112+k}, v{112+k}")
        A("v_mov_b32 v19, v117")
        A("s_cbranch_vccz L_nors")
        for k in range(16): A(f"v_pk_mul_f32 {vr(76+2*k,2)}, {vr(76+2*k,2)}, v[118:119] op_sel_hi:[1,0]")
        A("s_branch L_nors")
    LB("L_helper")
    if noh: A("s_endpgm")
    A("s_mov_b32 s47, s39")
    A("s_mov_b32 s50, s39")
    A("s_cmp_eq_u32 s37, 15"); A("s_cselect_b32 s47, 3, s47")
    A("s_sub_u32 s39, s3, 4")
    A("s_and_b32 s48, s37, 7")
    A("s_mul_i32 s59, s36, 7"); A("s_add_u32 s59, s59, s48")
    A("s_lshl_b32 s49, s48, 3"); A("s_add_u32 s49, s49, s36")
    A("v_lshrrev_b32 v20, 4, v0"); A("v_and_b32 v21, 15, v0")
    A("v_lshrrev_b32 v22, 3, v21"); A("v_and_b32 v23, 7, v21")
    A("s_mov_b32 s44, 0x05040100"); A("s_mov_b32 s45, 0x07060302")
    if dry: A("s_mov_b32 s46, 0")
    A("s_cmp_eq_u32 s39, 0"); A("s_cbranch_scc1 L_w4")
    A("s_cmp_ge_u32 s47, 2"); A("s_cbranch_scc1 L_end")
    if ts: A("s_mov_b32 s64, s60")
    A(f"v_mov_b32 v1, {QRDY}")
    LB("L_hq")
    A("s_sleep 4"); A("ds_read_b32 v2, v1"); A("s_waitcnt lgkmcnt(0)"); A("v_readfirstlane_b32 s40, v2")
    A("s_cmp_eq_u32 s40, 0"); A("s_cbranch_scc1 L_hq")
    A(f"ds_read_b32 v3, v1 offset:{TAGL - QRDY}"); A("s_waitcnt vmcnt(0) lgkmcnt(0)")
    A("s_branch L_roles")

    LB("L_w4")
    C("first helper wave: reset this workgroup's hand-off slots; 128 rows x 64 columns of LN(x) @ wq; gather q")
    A("s_setprio 3")
    if ts: A("s_mov_b32 s64, s60")
    for k in range(4): A(f"v_mov_b32 v{72+k}, -1")
    A("s_lshl_b32 s40, s36, 15"); A("s_lshl_b32 s41, s38, 8"); A("s_add_u32 s40, s40, s41"); A(f"s_add_u32 s40, s40, {PART}")
    A("v_lshlrev_b32 v76, 13, v20"); A("v_lshl_add_u32 v76, v21, 4, v76"); A("v_add_u32 v76, s40, v76")
    A("s_lshl_b32 s40, s36, 12"); A("s_lshl_b32 s41, s38, 7"); A("s_add_u32 s41, s40, s41"); A(f"s_add_u32 s41, s41, {ML}")
    A("v_lshl_add_u32 v77, v20, 3, s41")
    A(f"v_add_u32 v10, {HN}, v1")
    A("s_lshl_b32 s40, s50, 8"); A(f"s_add_u32 s40, s40, {HN}"); A("v_lshl_add_u32 v11, v20, 4, s40")
    A("v_bfe_u32 v13, v0, 2, 2"); A("v_lshl_add_u32 v13, v20, 3, v13"); A("v_lshlrev_b32 v13, 7, v13")
    A("v_and_b32 v14, 3, v0"); A("v_lshl_add_u32 v13, v14, 3, v13"); A(f"v_add_u32 v13, {WQL}, v13")
    A(f"v_lshlrev_b32 v14, 2, v0"); A(f"v_add_u32 v18, {QL}, v14")
    A("s_lshl_b32 s40, s36, 14"); A(f"s_add_u32 s40, s40, {QBUF + 4096}")
    A("v_add_u32 v17, s40, v1"); A("v_add_u32 v19, 0x2000, v17")
    A("s_lshl_b32 s41, s50, 12"); A("s_add_u32 s40, s40, s41"); A("s_lshl_b32 s41, s48, 9"); A("s_add_u32 s40, s40, s41"); A("s_sub_u32 s40, s40, 4096")
    A("v_lshl_add_u32 v15, v0, 3, s40")
    A("s_lshl_b32 s40, s2, 2"); A(f"s_add_u32 s40, s40, {ALIVE}"); A("v_mov_b32 v78, s40")
    A("v_cmp_eq_u32 s[52:53], 1, v20"); A("v_cmp_eq_u32 s[54:55], 2, v20"); A("v_cmp_eq_u32 s[56:57], 3, v20")
    A(f"v_mov_b32 v14, {WQC}")
    A("s_waitcnt vmcnt(0)")
    TS(1)
    A("global_store_dwordx4 v76, v[72:75], s[26:27] " + pof)
    A("s_mov_b32 exec_lo, 0x00010001"); A("s_mov_b32 exec_hi, 0x00010001")
    A("global_store_dwordx2 v77, v[72:73], s[26:27] " + pof)
    A("s_mov_b64 exec, -1")
    A(f"v_add_u32 v3, {TAGC:#x}, v3")
    layernorm(4, 24, 32)
    A("ds_write_b128 v10, v[4:7]")
    for k in range(4): A(f"ds_read_b128 {vr(40+4*k,4)}, v11 offset:{64*k}")
    LB("L_wqw")
    A("ds_read_b32 v24, v14"); A("s_waitcnt lgkmcnt(0)"); A("v_readfirstlane_b32 s40, v24")
    A("s_cmp_lt_u32 s40, 4"); A("s_cbranch_scc1 L_wqw")
    TS(2)
    for k in range(4):
        for t in range(4):
            r = 96 + 16 * k + 4 * t
            A(f"ds_read_b64_tr_b16 {vr(r,2)}, v13 offset:{4096*k + 32*t}"); A(f"ds_read_b64_tr_b16 {vr(r+2,2)}, v13 offset:{4096*k + 32*t + 512}")
    for k in range(4):
        for t in range(4):
            n = 4 * k + t
            A(f"s_waitcnt lgkmcnt({min(15, 2*(15-n))})")
            A(f"v_mfma_f32_16x16x32_bf16 {vr(56+4*t,4)}, {vr(40+4*k,4)}, {vr(96+16*k+4*t,4)}, {'0' if k == 0 else vr(56+4*t,4)}")
    A("s_nop 5")
    A("v_cndmask_b32 v2, v56, v60, s[52:53]"); A("s_nop 0"); A("v_cndmask_b32 v2, v2, v64, s[54:55]"); A("v_cndmask_b32 v2, v2, v68, s[56:57]")
    A("global_store_dwordx2 v15, v[2:3], s[26:27] " + qsf)
    A("s_mov_b64 exec, 1")
    A(f"global_store_dword v78, v3, s[26:27] offset:{QH - ALIVE} sc1")
    A("s_mov_b64 exec, -1")
    A("s_cmp_ge_u32 s47, 2"); A("s_cbranch_scc0 L_w4r")
    LB("L_w4b")
    TS(3)
    A(f"s_mov_b32 s51, {SPIN_MAX}")
    def qload(r):
        for i in range(16): A(f"global_load_dwordx4 {vr(r+4*i,4)}, v{17 if i < 8 else 19}, s[26:27] offset:{(i % 8) * 1024 - 4096} sc1")
    def qcheck(r):
        A(f"v_xor_b32 v24, v{r+1}, v3"); A(f"v_xor_b32 v25, v{r+3}, v3")
        ws = [r + 4 * i + k for i in range(1, 16) for k in (1, 3)]
        for n, w in enumerate(ws):
            A(f"v_xor_b32 v26, v{w}, v3"); A(f"v_or_b32 v{24 + (n & 1)}, v{24 + (n & 1)}, v26")
        A("v_or_b32 v24, v24, v25"); A("v_cmp_ne_u32 vcc, 0, v24")
    def qsum(r):
        for k in range(4):
            for h in (0, 2):
                A(f"v_add_f32 v{r+4*k+h}, v{r+4*k+h}, v{r+16+4*k+h}"); A(f"v_add_f32 v{r+32+4*k+h}, v{r+32+4*k+h}, v{r+48+4*k+h}")
        for k in range(4):
            for h in (0, 2): A(f"v_add_f32 v{r+4*k+h}, v{r+4*k+h}, v{r+32+4*k+h}")
        for k in range(4): A(f"v_cvt_pk_bf16_f32 v{24+k}, v{r+4*k}, v{r+4*k+2}")
    C("the group's 32 words announce the partial q stores; the tags inside the data are what is trusted")
    A("s_lshl_b32 s40, s36, 7"); A(f"s_add_u32 s40, s40, {QH}"); A("v_and_b32 v12, 31, v0"); A("v_lshl_add_u32 v12, v12, 2, s40")
    A("global_load_dword v28, v12, s[26:27] sc1")
    A(f"s_sleep {qsleep}")
    LB("L_qhint")
    A("global_load_dword v29, v12, s[26:27] sc1")
    A("s_waitcnt vmcnt(1)")
    A("v_cmp_eq_u32 vcc, v28, v3"); A("s_bcnt1_i32_b32 s40, vcc_lo"); A(f"s_cmp_ge_u32 s40, {QTH}"); A("s_cbranch_scc1 L_qgo")
    A("global_load_dword v28, v12, s[26:27] sc1")
    A("s_waitcnt vmcnt(1)")
    A("v_cmp_eq_u32 vcc, v29, v3"); A("s_bcnt1_i32_b32 s40, vcc_lo")
    A("s_sub_u32 s51, s51, 1"); A("s_cbranch_scc1 L_qgo")
    A(f"s_cmp_lt_u32 s40, {QTH}"); A("s_cbranch_scc1 L_qhint")
    LB("L_qgo")
    C("a completed load that was issued after the resets: they have landed")
    A("s_mov_b64 exec, 1"); A("global_store_dword v78, v3, s[26:27] sc1"); A("s_mov_b64 exec, -1")
    TS(12)
    A("s_mov_b32 s55, 0xffff")
    LB("L_qpoll")
    for i in range(16):
        A(f"s_bitcmp1_b32 s55, {i}"); A(f"s_cbranch_scc0 L_qs{i}")
        A(f"global_load_dwordx4 {vr(96+4*i,4)}, v{17 if i < 8 else 19}, s[26:27] offset:{(i % 8) * 1024 - 4096} {qgf}")
        LB(f"L_qs{i}")
    A("s_waitcnt vmcnt(0)")
    for i in range(16):
        A(f"v_cmp_ne_u32 vcc, v{97+4*i}, v3"); A(f"v_cmp_ne_u32 s[40:41], v{99+4*i}, v3"); A("s_or_b64 vcc, vcc, s[40:41]")
        A(f"s_cbranch_scc1 L_qc{i}"); A(f"s_bitset0_b32 s55, {i}"); LB(f"L_qc{i}")
    A("s_sub_u32 s51, s51, 1"); A("s_cbranch_scc1 L_qgot")
    A("s_cmp_lg_u32 s55, 0"); A("s_cbranch_scc1 L_qpoll")
    LB("L_qgot")
    qsum(96)
    if wgt:
        A(f"v_add_u32 v28, {EL}, v1"); A(f"ds_write_b128 v28, v[72:75] offset:{TQ - EL}")
        for k in range(4): A(f"v_mov_b32 v{76+k}, 0")
        A("ds_write_b128 v28, v[76:79]")
    A("ds_write2_b32 v18, v24, v25 offset0:0 offset1:64"); A("ds_write2_b32 v18, v26, v27 offset0:128 offset1:192")
    A(f"v_mov_b32 v18, {QRDY}"); A("v_mov_b32 v19, 1")
    A(f"ds_write_b32 v18, v3 offset:{TAGL - QRDY}"); A("ds_write_b32 v18, v19")
    A("s_waitcnt lgkmcnt(0)")
    A("s_setprio 0")
    TS(4)
    if touch:
        A("v_lshlrev_b32 v4, 21, v0"); A("s_lshl_b32 s40, s36, 24"); A(f"s_add_u32 s40, s40, {0x200000 - 128}"); A("v_add_u32 v4, s40, v4")
        A("s_mov_b64 exec, 0xff")
        A("global_load_dword v240, v4, s[6:7] nt"); A("global_load_dword v240, v4, s[8:9] nt")
        A("s_mov_b64 exec, -1")
    A("s_waitcnt vmcnt(0)")
    A("s_branch L_roles")
    LB("L_w4r")
    A("s_cmp_eq_u32 s47, 0"); A("s_cbranch_scc0 L_w4f")
    A("s_lshl_b32 s40, s48, 11"); A("s_lshl_b32 s41, s36, 8"); A("s_add_u32 s40, s40, s41"); A(f"s_add_u32 s40, s40, {H2}")
    A("v_lshl_add_u32 v76, v21, 4, s40")
    A("s_mov_b64 exec, 0xffff")
    A("global_store_dwordx4 v76, v[72:75], s[26:27] " + pof)
    A("s_mov_b64 exec, -1")
    A("s_branch L_w4b")
    LB("L_w4f")
    A("s_lshl_b32 s41, s49, 7"); A(f"s_add_u32 s41, s41, {H3}")
    A("v_lshrrev_b32 v76, 3, v0"); A("v_mul_u32_u24 v76, 7168, v76"); A("v_and_b32 v77, 7, v0"); A("v_lshl_add_u32 v76, v77, 4, v76"); A("v_add_u32 v76, s41, v76")
    A(f"v_add_u32 v77, {8*7168}, v76")
    A("global_store_dwordx4 v76, v[72:75], s[26:27] " + pof); A("global_store_dwordx4 v77, v[72:75], s[26:27] " + pof)
    A("s_branch L_w4b")
    LB("L_roles")
    if noroles: A("s_branch L_hdone")
    A("s_cmp_eq_u32 s47, 1"); A("s_cbranch_scc1 L_ffn")
    A("s_cmp_eq_u32 s47, 0"); A("s_cbranch_scc0 L_hdone")
    A("s_mov_b32 s40, s36"); A("s_mov_b32 s36, s48"); A("s_mov_b32 s48, s40")

    C("wo role: merge 32 splits of one kv group, multiply by a 512x64 block of wo")
    A("s_lshl_b32 s40, s36, 2"); A("s_add_u32 s40, s40, s39")
    A("s_lshl_b32 s41, s40, 17"); A("s_lshl_b32 s42, s48, 7"); A("s_add_u32 s41, s41, s42"); A("s_add_u32 s41, s41, 4096")
    A("s_add_u32 s52, s12, s41"); A("s_addc_u32 s53, s13, 0")
    A("v_lshlrev_b32 v58, 16, v22"); A("v_lshl_add_u32 v58, v20, 13, v58"); A("v_lshl_add_u32 v58, v23, 4, v58"); A("v_add_u32 v59, 0x8000, v58")
    def wo_weights():
        if jitw: gate_wait("L_w_jit", 1); TS(11)
        for s in range(2):
            for i in range(8): A(f"global_load_dwordx4 {vr(160+32*s+4*i,4)}, v{58+s}, s[52:53] offset:{1024*i-4096} {w_flags}")
            if not jitw: A("s_waitcnt vmcnt(0)")
        for s in range(2):
            A(f"s_waitcnt vmcnt({8 - 8*s})")
            transpose8(96 + 32 * s, 160 + 32 * s)
        TS(5)
    if not jitw: wo_weights()
    alive("w")
    A("s_lshl_b32 s41, s40, 13"); A(f"s_add_u32 s41, s41, {PART}")
    A("v_lshlrev_b32 v14, 4, v21"); A("v_lshl_add_u32 v4, v20, 11, v14"); A("v_add_u32 v4, s41, v4")
    A("s_lshl_b32 s41, s36, 12"); A("s_lshl_b32 s42, s39, 3"); A("s_add_u32 s41, s41, s42"); A(f"s_add_u32 s41, s41, {ML}")
    A("v_and_b32 v8, 31, v0"); A("v_lshl_add_u32 v6, v8, 7, s41")
    A("s_lshl_b32 s41, s39, 6"); A(f"s_add_u32 s41, s41, {WB}")
    A("v_lshl_add_u32 v9, v8, 1, s41"); A("v_lshl_add_u32 v10, v20, 4, s41")
    A("s_lshl_b32 s41, s39, 8"); A(f"s_add_u32 s41, s41, {OB}")
    A("v_add_u32 v11, s41, v14")
    A("v_lshlrev_b32 v12, 7, v22"); A("v_lshl_add_u32 v12, v20, 4, v12"); A("v_add_u32 v12, s41, v12")
    A("s_lshl_b32 s41, s39, 9"); A(f"s_add_u32 s41, s41, {RED}")
    A("v_lshlrev_b32 v13, 8, v22"); A("v_lshl_add_u32 v13, v23, 5, v13"); A("v_add_u32 v13, s41, v13")
    A(f"v_add_u32 v15, {RED}, v14")
    A("s_lshl_b32 s41, s36, 11"); A("s_lshl_b32 s42, s48, 8"); A("s_add_u32 s54, s41, s42")
    if jitw: wo_weights()
    if pw:
        if pw == 2: gate_wait("L_wo_pw", 1)
        if 'm' in pws: A(f"global_load_dwordx2 v[80:81], v6, s[26:27] {pwf}")
        for i in range(8 if 'p' in pws else 0): A(f"global_load_dwordx4 {vr(16+4*i,4)}, v4, s[26:27] offset:{256*i} {pwf}")
    if not dry: gate_wait("L_wo_gate0", 2 if g2 else 1); TS(8)
    LB("L_wo_pass")
    A(f"s_mov_b32 s41, {H2}")
    if dry: A("s_cmp_eq_u32 s46, 0"); A(f"s_cmov_b32 s41, {DUMMY}")
    A("s_add_u32 s41, s41, s54")
    A("v_add_u32 v7, s41, v14")
    A(f"s_mov_b32 s51, {SPIN_MAX}")
    LB("L_wo_ml")
    A("global_load_dwordx2 v[80:81], v6, s[26:27] sc1")
    A("s_waitcnt vmcnt(0)")
    any_poison([80, 81], 84)
    A("s_bcnt1_i32_b32 s57, vcc_lo")
    if dry: A("s_cmp_eq_u32 s46, 0"); A("s_cbranch_scc1 L_wo_go")
    A("s_sub_u32 s51, s51, 1"); A("s_cbranch_scc1 L_wo_go")
    A(f"s_cmp_gt_u32 s57, {32 - MLTH}"); A("s_cbranch_scc1 L_wo_ml")
    LB("L_wo_go")
    TS(9)
    def wload(r, m):
        A(f"global_load_dwordx2 {vr(m,2)}, v6, s[26:27] sc1")
        for i in range(8): A(f"global_load_dwordx4 {vr(r+4*i,4)}, v4, s[26:27] offset:{256*i} sc1")
    def wcheck(r, m): any_poison([m, m+1] + list(range(r, r + 32)), 84)
    wload(16, 80)
    if stag: A(f"s_sleep {stag}")
    LB("L_wo_poll")
    if ts: A("s_add_u32 s79, s79, 1")
    wload(48, 82)
    A("s_waitcnt vmcnt(9)")
    wcheck(16, 80)
    A("s_cbranch_vccz L_wo_gotA")
    wload(16, 80)
    A("s_waitcnt vmcnt(9)")
    wcheck(48, 82)
    if dry: A("s_cmp_eq_u32 s46, 0"); A("s_cbranch_scc1 L_wo_gotB")
    A("s_sub_u32 s51, s51, 1"); A("s_cbranch_scc1 L_wo_gotB")
    A("s_cbranch_vccnz L_wo_poll")
    def wcomb(r, m):
        TS(6); TC(0)
        A(f"v_mov_b32 v84, v{m}")
        P = []
        for e in range(8):
            for j in range(4):
                x = r + 4 * (2 * j) + (e >> 1); y = r + 4 * (2 * j + 1) + (e >> 1)
                P.append(f"v_perm_b32 v{160+4*e+j}, v{y}, v{x}, s{45 if e & 1 else 44}")
        def fill(n):
            for _ in range(n): A(P.pop(0))
        for rot in (8, 4, 2, 1):
            fill(2); A(f"v_min_f32_dpp v84, v84, v84 row_ror:{rot} row_mask:0xf bank_mask:0xf")
        A("v_mov_b32 v85, v84"); fill(2); A("v_permlane16_swap_b32 v84, v85"); A("v_min_f32 v84, v84, v85")
        A(f"v_sub_f32 v84, v84, v{m}"); A("v_exp_f32 v84, v84"); fill(1)
        A("v_cvt_pk_bf16_f32 v86, v84, v84")
        A("ds_write_b16 v9, v86"); A("ds_read_b128 v[88:91], v10")
        A(f"v_mul_f32 v85, v84, v{m+1}")
        for rot in (8, 4, 2, 1):
            fill(2); A(f"v_add_f32_dpp v85, v85, v85 row_ror:{rot} row_mask:0xf bank_mask:0xf")
        A("v_mov_b32 v86, v85"); fill(2); A("v_permlane16_swap_b32 v85, v86"); A("v_add_f32 v85, v85, v86")
        A("v_rcp_f32 v85, v85")
        fill(len(P))
    LB("L_wo_gotB")
    wcomb(48, 82)
    if dry: A("s_cmp_eq_u32 s46, 0"); A("s_cbranch_scc0 L_wo_got")
    else: A("s_branch L_wo_got")
    LB("L_wo_gotA")
    wcomb(16, 80)
    LB("L_wo_got")
    TC(1)
    A("s_waitcnt lgkmcnt(0)")
    TC(2)
    for e in range(8): A(f"v_mfma_f32_16x16x32_bf16 {vr(192+4*e,4)}, v[88:91], {vr(160+4*e,4)}, 0")
    A("s_nop 0")
    for e in range(8): A(f"v_mul_f32 v{192+4*e}, v{192+4*e}, v85")
    for k in range(4): A(f"v_cvt_pk_bf16_f32 v{88+k}, v{192+8*k}, v{196+8*k}")
    TC(3)
    A("ds_write_b128 v11, v[88:91]")
    A("ds_read_b128 v[160:163], v12"); A("ds_read_b128 v[164:167], v12 offset:64")
    A("s_waitcnt lgkmcnt(1)")
    for e in range(8): A(f"v_mfma_f32_16x16x32_bf16 {vr(192+4*e,4)}, v[160:163], {vr(96+4*e,4)}, 0")
    A("s_waitcnt lgkmcnt(0)")
    for e in range(8): A(f"v_mfma_f32_16x16x32_bf16 {vr(192+4*e,4)}, v[164:167], {vr(128+4*e,4)}, {vr(192+4*e,4)}")
    A("s_mov_b32 exec_lo, 0xff"); A("s_mov_b32 exec_hi, 0xff00")
    A("s_nop 5")
    for e in range(0, 8, 2): A(f"ds_write2_b32 v13, v{192+4*e}, v{196+4*e} offset0:{e} offset1:{e+1}")
    A("s_mov_b64 exec, -1")
    TC(4)
    barrier_real("L_wo_nb")
    TC(5)
    A("s_cmp_lg_u32 s39, 0"); A("s_cbranch_scc1 L_wo_next")
    for p in range(8): A(f"ds_read_b128 {vr(160+4*p,4)}, v15 offset:{256*p}")
    for st, wcnt in ((0, 6), (8, 4), (16, 2), (24, 0)):
        A(f"s_waitcnt lgkmcnt({wcnt})")
        for h in range(2): A(f"v_pk_add_f32 {vr(160+st+2*h,2)}, {vr(160+st+2*h,2)}, {vr(164+st+2*h,2)}")
    for h in range(2): A(f"v_pk_add_f32 {vr(160+2*h,2)}, {vr(160+2*h,2)}, {vr(168+2*h,2)}")
    for h in range(2): A(f"v_pk_add_f32 {vr(176+2*h,2)}, {vr(176+2*h,2)}, {vr(184+2*h,2)}")
    for h in range(2): A(f"v_pk_add_f32 {vr(160+2*h,2)}, {vr(160+2*h,2)}, {vr(176+2*h,2)}")
    A("s_mov_b64 exec, 0xffff")
    A("global_store_dwordx4 v7, v[160:163], s[26:27] sc1")
    A("s_mov_b64 exec, -1")
    LB("L_wo_next")
    TC(6); TC_fin(7)
    TS(7)
    if dry:
        A("s_cmp_eq_u32 s46, 1"); A("s_cbranch_scc1 L_hdone")
        A("s_mov_b32 s46, 1")
        gate_wait("L_wo_gate", 2 if g2 else 1)
        TS(8)
        A("s_branch L_wo_pass")
    else: A("s_branch L_hdone") if ts else A("s_endpgm")

    LB("L_ffn")
    C("ffn role: h, LN(h), 32 gate/up columns, 32 rows of w2; first 16 also finish 32 output columns")
    def ffn_weights():
        A("v_lshlrev_b32 v58, 6, v22"); A("v_lshl_add_u32 v58, v20, 3, v58"); A("s_lshl_b32 s40, s39, 7"); A("v_add_u32 v58, s40, v58")
        A("s_movk_i32 s40, 3584"); A("v_mul_u32_u24 v58, s40, v58")
        A("v_and_b32 v59, 3, v21"); A("v_lshl_add_u32 v58, v59, 4, v58"); A("s_lshl_b32 s40, s49, 6"); A("v_add_u32 v58, s40, v58")
        A("v_bfe_u32 v59, v21, 2, 1"); A("v_cmp_eq_u32 vcc, 1, v59")
        A("v_mov_b32 v60, s16"); A("v_mov_b32 v61, s18"); A("v_cndmask_b32 v60, v60, v61, vcc")
        A("v_mov_b32 v61, s17"); A("v_mov_b32 v62, s19"); A("v_cndmask_b32 v61, v61, v62, vcc")
        A("v_mov_b32 v59, 0"); A("v_lshl_add_u64 v[60:61], v[58:59], 0, v[60:61]")
        A("s_lshl_b32 s40, s49, 15"); A("s_lshl_b32 s41, s39, 8"); A("s_add_u32 s40, s40, s41"); A("s_add_u32 s40, s40, 4096")
        A("s_add_u32 s52, s20, s40"); A("s_addc_u32 s53, s21, 0")
        A("v_lshlrev_b32 v58, 13, v20"); A("v_lshl_add_u32 v58, v21, 4, v58")
        if jitf: gate_wait("L_f_jit", 1); TS(11)
        if WTRIG:
            A(f"v_mov_b32 v1, {WQC}")
            LB("L_f_trig")
            A("s_sleep 2"); A("ds_read_b32 v2, v1"); A("s_waitcnt lgkmcnt(0)"); A("v_readfirstlane_b32 s40, v2")
            A("s_cmp_lt_u32 s40, 5"); A("s_cbranch_scc1 L_f_trig")
        A("s_mov_b64 s[40:41], 7168"); A(f"s_mov_b64 s[42:43], {7168 + 24 * 3584}")
        for s in range(2):
            for i in range(8):
                A(f"global_load_dwordx4 {vr(160+32*s+4*i,4)}, v[60:61], off{' offset:3584' if i & 1 else ''} {w_flags if w13f is None else w13f}")
                if i & 1 and not (s == 1 and i == 7): A(f"v_lshl_add_u64 v[60:61], v[60:61], 0, {'s[42:43]' if i == 7 else 's[40:41]'}")
            if not jitf and not wburst: A("s_waitcnt vmcnt(0)")
        for i in range(8): A(f"global_load_dwordx4 {vr(224+4*i,4)}, v58, s[52:53] offset:{1024*i-4096} {w_flags}")
        for s in range(3):
            A(f"s_waitcnt vmcnt({16 - 8*s})")
            transpose8(64 + 32 * s, 160 + 32 * s)
        TS(5)
    if not jitf: ffn_weights()
    A("v_and_b32 v8, 31, v0")
    A("s_lshl_b32 s40, s39, 8"); A("v_lshl_add_u32 v5, v8, 3, s40")
    A("global_load_dwordx2 v[48:49], v5, s[4:5]")
    A("s_waitcnt vmcnt(0)")
    unpack(50, 49)
    A("v_and_b32 v49, 0xffff0000, v48"); A("v_lshlrev_b32 v48, 16, v48")
    alive("f")
    A("v_lshrrev_b32 v9, 5, v0"); A("v_lshlrev_b32 v4, 11, v9"); A("v_lshl_add_u32 v4, v8, 4, v4")
    A("s_lshl_b32 s40, s39, 9"); A(f"s_add_u32 s40, s40, {H2 + 4096}"); A("v_add_u32 v4, s40, v4"); A("v_add_u32 v6, 0x2000, v4")
    A(f"v_add_u32 v5, {HB}, v5")
    A("s_lshl_b32 s40, s39, 3"); A(f"s_add_u32 s40, s40, {ST}"); A("v_mov_b32 v7, s40"); A(f"v_mov_b32 v9, {ST}")
    A("s_lshl_b32 s40, s39, 8"); A(f"s_add_u32 s40, s40, {HN}"); A("v_lshl_add_u32 v10, v8, 3, s40")
    A("v_lshlrev_b32 v11, 7, v22"); A("v_lshl_add_u32 v11, v20, 4, v11"); A("v_add_u32 v11, s40, v11")
    A("s_lshl_b32 s41, s39, 9"); A(f"s_add_u32 s41, s41, {RED}")
    A("v_lshlrev_b32 v13, 8, v22"); A("v_lshl_add_u32 v13, v23, 5, v13"); A("v_add_u32 v13, s41, v13")
    A("v_lshlrev_b32 v14, 5, v20"); A("v_lshl_add_u32 v14, v23, 2, v14"); A(f"v_add_u32 v14, {RED}, v14")
    A("v_lshrrev_b32 v52, 2, v21"); A("v_mul_u32_u24 v52, 7168, v52"); A("v_and_b32 v53, 3, v21"); A("v_lshl_add_u32 v52, v53, 5, v52"); A("v_lshl_add_u32 v52, v20, 4, v52")
    A("s_lshl_b32 s54, s49, 7"); A(f"s_mul_i32 s41, s39, {4*7168}"); A("s_add_u32 s54, s54, s41")
    A("v_cmp_eq_u32 s[56:57], 1, v20")
    A("s_mul_i32 s41, s59, 7168"); A(f"s_add_u32 s41, s41, {H3 + 3072}"); A("v_lshl_add_u32 v53, v0, 4, s41")
    A("v_and_b32 v54, 7, v0"); A("s_lshl_b32 s41, s59, 6"); A("v_lshl_add_u32 v54, v54, 3, s41"); A(f"v_add_u32 v55, {HB}, v54")
    if jitf: ffn_weights()
    if pw:
        if pw == 2: gate_wait("L_f_pw", 1)
        for i in range(4 if 'h' in pws else 0): A(f"global_load_dwordx4 {vr(192+4*i,4)}, v{4 if i < 2 else 6}, s[26:27] offset:{(i % 2) * 4096 - 4096} {pwf}")
        A("s_cmp_lg_u32 s39, 0"); A("s_cbranch_scc1 L_f_npw"); A("s_cmp_ge_u32 s59, 16"); A("s_cbranch_scc1 L_f_npw")
        A(f"v_add_u32 v57, {pwoff}, v53")
        for i in range(7 if 'o' in pws else 0): A(f"global_load_dwordx4 {vr(220+4*i,4)}, v57, s[26:27] offset:{1024*i-3072} {pwf}")
        LB("L_f_npw")
    if not dry: gate_wait("L_f_gate0", 2 if g2 else 1)
    LB("L_f_pass")
    A(f"s_mov_b32 s41, {H3}")
    if dry: A("s_cmp_eq_u32 s46, 0"); A(f"s_cmov_b32 s41, {DUMMY}")
    A("s_add_u32 s41, s41, s54")
    A("v_add_u32 v56, s41, v52")
    A(f"s_mov_b32 s51, {SPIN_MAX}")
    def hload(r):
        for i in range(4): A(f"global_load_dwordx4 {vr(r+4*i,4)}, v{4 if i < 2 else 6}, s[26:27] offset:{(i % 2) * 4096 - 4096} sc1")
    def hsum(r):
        TS(6)
        for h in range(2): A(f"v_pk_add_f32 {vr(40+2*h,2)}, {vr(r+2*h,2)}, {vr(r+4+2*h,2)}")
        for h in range(2): A(f"v_pk_add_f32 {vr(44+2*h,2)}, {vr(r+8+2*h,2)}, {vr(r+12+2*h,2)}")
    if hint2:
        LB("L_f_hint")
        if h2sleep: A(f"s_sleep {h2sleep}")
        if hint2 == 1:
            A("global_load_dwordx4 v[192:195], v4, s[26:27] offset:-4096 sc1"); A("s_waitcnt vmcnt(0)")
            any_poison(range(192, 196), 40)
            A("s_sub_u32 s51, s51, 1"); A("s_cbranch_scc1 L_f_go"); A("s_cbranch_vccnz L_f_hint")
        else:
            A("global_load_dword v192, v4, s[26:27] offset:-4096 sc1"); A("s_waitcnt vmcnt(0)")
            A("v_cmp_ne_u32 vcc, -1, v192")
            A("s_sub_u32 s51, s51, 1"); A("s_cbranch_scc1 L_f_go"); A("s_cbranch_vccz L_f_hint")
        LB("L_f_go")
    hload(192)
    if stag: A(f"s_sleep {stag}")
    LB("L_f_poll")
    hload(208)
    A("s_waitcnt vmcnt(4)")
    any_poison(range(192, 208), 40)
    A("s_cbranch_vccz L_f_gotA")
    hload(192)
    A("s_waitcnt vmcnt(4)")
    any_poison(range(208, 224), 40)
    if dry: A("s_cmp_eq_u32 s46, 0"); A("s_cbranch_scc1 L_f_gotB")
    A("s_sub_u32 s51, s51, 1"); A("s_cbranch_scc1 L_f_gotB")
    A("s_cbranch_vccnz L_f_poll")
    LB("L_f_gotB")
    hsum(208)
    if dry: A("s_cmp_eq_u32 s46, 0"); A("s_cbranch_scc0 L_f_got")
    else: A("s_branch L_f_got")
    LB("L_f_gotA")
    hsum(192)
    LB("L_f_got")
    TC(0)
    for h in range(2): A(f"v_pk_add_f32 {vr(24+2*h,2)}, {vr(40+2*h,2)}, {vr(44+2*h,2)}")
    swap_red("add_f32", [24, 25, 26, 27], [28, 29, 30, 31], 32)
    A("v_cvt_pk_bf16_f32 v28, v24, v25"); A("v_cvt_pk_bf16_f32 v29, v26, v27")
    unpack(24, 28); unpack(26, 29)
    A("v_pk_add_f32 v[24:25], v[24:25], v[48:49]"); A("v_pk_add_f32 v[26:27], v[26:27], v[50:51]")
    A("v_cvt_pk_bf16_f32 v28, v24, v25"); A("v_cvt_pk_bf16_f32 v29, v26, v27")
    unpack(24, 28); unpack(26, 29)
    C("mean and centred sum of squares of this wave's 128 values; merged across waves after the barrier")
    A("v_readfirstlane_b32 s40, v24")
    A("ds_write_b64 v5, v[28:29]"); A("s_nop 0")
    for k in range(4): A(f"v_subrev_f32 v{32+k}, s40, v{24+k}")
    A("v_add_f32 v30, v32, v33"); A("v_mul_f32 v31, v32, v32"); A("v_add_f32 v36, v34, v35"); A("v_mul_f32 v37, v33, v33")
    A("v_fmac_f32 v31, v34, v34"); A("v_fmac_f32 v37, v35, v35"); A("v_add_f32 v30, v30, v36"); A("v_add_f32 v31, v31, v37")
    dpp_red("add_f32", [30, 31]); swap_red("add_f32", [30, 31], [32, 33], 16)
    A("v_mul_f32 v32, 0x3c000000, v30"); A("v_fma_f32 v31, -v32, v30, v31"); A("v_add_f32 v30, s40, v32")
    A("ds_write_b64 v7, v[30:31]")
    TC(1)
    barrier_real("L_f_nb1")
    TC(2)
    A("ds_read_b128 v[32:35], v9"); A("ds_read_b128 v[36:39], v9 offset:16")
    A("s_waitcnt lgkmcnt(0)")
    A("v_add_f32 v30, v32, v34"); A("v_add_f32 v31, v36, v38"); A("v_add_f32 v33, v33, v35"); A("v_add_f32 v30, v30, v31"); A("v_add_f32 v37, v37, v39")
    A("v_mul_f32 v30, 0x3e800000, v30"); A("v_add_f32 v33, v33, v37")
    for k in (32, 34, 36, 38): A(f"v_sub_f32 v{k}, v{k}, v30")
    A("v_mul_f32 v32, v32, v32"); A("v_mul_f32 v36, v36, v36"); A("v_fmac_f32 v32, v34, v34"); A("v_fmac_f32 v36, v38, v38")
    bf16r(30)
    A("v_add_f32 v32, v32, v36"); A("v_mul_f32 v33, 0x3b000000, v33"); A("v_fmac_f32 v33, 0x3e800000, v32")
    for k in range(4): A(f"v_sub_f32 v{24+k}, v{24+k}, v30")
    bf16r(33)
    A("v_add_f32 v33, 0x3727c5ac, v33")
    bf16r(33)
    A("v_sqrt_f32 v33, v33")
    A("v_cvt_pk_bf16_f32 v28, v24, v25"); A("v_cvt_pk_bf16_f32 v29, v26, v27")
    bf16r(33)
    A("v_rcp_f32 v33, v33")
    unpack(24, 28); unpack(26, 29)
    for k in range(4): A(f"v_mul_f32 v{24+k}, v{24+k}, v33")
    A("v_cvt_pk_bf16_f32 v28, v24, v25"); A("v_cvt_pk_bf16_f32 v29, v26, v27")
    A("ds_write_b64 v10, v[28:29]")
    TC(3)
    A("ds_read_b128 v[40:43], v11"); A("ds_read_b128 v[44:47], v11 offset:64")
    A("s_waitcnt lgkmcnt(1)")
    for e in range(8): A(f"v_mfma_f32_16x16x32_bf16 {vr(160+4*e,4)}, v[40:43], {vr(64+4*e,4)}, 0")
    A("s_waitcnt lgkmcnt(0)")
    for e in range(8): A(f"v_mfma_f32_16x16x32_bf16 {vr(160+4*e,4)}, v[44:47], {vr(96+4*e,4)}, {vr(160+4*e,4)}")
    A("s_mov_b32 exec_lo, 0xff"); A("s_mov_b32 exec_hi, 0xff00")
    A("s_nop 5")
    for e in range(0, 8, 2): A(f"ds_write2_b32 v13, v{160+4*e}, v{164+4*e} offset0:{e} offset1:{e+1}")
    A("s_mov_b64 exec, -1")
    TC(4)
    barrier_real("L_f_nb2")
    TC(5)
    TS(7)
    for p in range(8):
        if p == 4: A("v_add_u32 v15, 1024, v14")
        A(f"ds_read2_b32 {vr(24+2*p,2)}, v{14 if p < 4 else 15} offset0:{64*(p&3)} offset1:{64*(p&3)+32}")
    for k in range(4):
        A(f"s_waitcnt lgkmcnt({6-2*k})"); A(f"v_pk_add_f32 {vr(24+4*k,2)}, {vr(24+4*k,2)}, {vr(26+4*k,2)}")
    A("v_pk_add_f32 v[24:25], v[24:25], v[28:29]"); A("v_pk_add_f32 v[32:33], v[32:33], v[36:37]"); A("v_pk_add_f32 v[24:25], v[24:25], v[32:33]")
    A("v_cvt_pk_bf16_f32 v26, v24, v25")
    unpack(24, 26)
    A(f"v_mul_f32 v26, {NL2E:#x}, v24"); A("v_exp_f32 v26, v26"); A("s_nop 0")
    A("v_add_f32 v26, 1.0, v26"); A("v_rcp_f32 v26, v26"); A("s_nop 0")
    A("v_mul_f32 v26, v24, v26")
    bf16r(26)
    A("v_mul_f32 v26, v26, v25"); A("s_nop 1")
    A("v_mov_b32_dpp v27, v26 quad_perm:[1,0,3,2] row_mask:0xf bank_mask:0xf")
    A("v_cvt_pk_bf16_f32 v26, v26, v27"); A("s_nop 1")
    for k in range(4): A(f"v_mov_b32_dpp v{40+k}, v26 row_newbcast:{2*k} row_mask:0xf bank_mask:0xf")
    A("s_nop 1")
    TC(6)
    for e in range(8): A(f"v_mfma_f32_16x16x32_bf16 {vr(160+4*e,4)}, v[40:43], {vr(128+4*e,4)}, 0")
    A("s_nop 4")
    for e in range(4): A(f"v_cndmask_b32 v{24+e}, v{160+4*e}, v{176+4*e}, s[56:57]")
    A("s_mov_b32 exec_hi, 0")
    A("global_store_dwordx4 v56, v[24:27], s[26:27] sc1")
    A("s_mov_b64 exec, -1")
    TC(7); TC_fin(8)
    TS(8)
    A("s_cmp_eq_u32 s39, 0"); A("s_cbranch_scc1 L_f_fin")
    C("every first helper wave has read the old word long ago: give the next launch's hand-offs a different tag")
    A("s_cmp_lg_u32 s39, 1"); A("s_cbranch_scc1 L_f_next"); A("s_cmp_lg_u32 s59, 0"); A("s_cbranch_scc1 L_f_next")
    if dry: A("s_cmp_eq_u32 s46, 0"); A("s_cbranch_scc1 L_f_next")
    A("v_mov_b32 v57, 0"); A("s_mov_b64 exec, 1")
    A("global_store_dword v57, v3, s[26:27] sc1")
    A("s_mov_b64 exec, -1"); A("s_branch L_f_next")
    LB("L_f_fin")
    A("s_cmp_ge_u32 s59, 16"); A("s_cbranch_scc1 L_f_next")
    C("final stage: 32 output columns")
    def oload(r):
        for i in range(7): A(f"global_load_dwordx4 {vr(r+4*i,4)}, v53, s[26:27] offset:{1024*i-3072} sc1")
    def osum(r):
        TS(9)
        for d, x, y in ((160, r, r+4), (164, r+8, r+12), (168, r+16, r+20), (160, 160, r+24)):
            for h in range(2): A(f"v_pk_add_f32 {vr(d+2*h,2)}, {vr(x+2*h,2)}, {vr(y+2*h,2)}")
    A("s_waitcnt vmcnt(1)")
    oload(192)
    if dry:
        A(f"s_add_u32 s42, s26, {DUMMY}"); A("s_addc_u32 s43, s27, 0")
        A("s_cmp_eq_u32 s46, 0"); A("s_cselect_b32 s42, s42, s22"); A("s_cselect_b32 s43, s43, s23")
    else: A("s_mov_b64 s[42:43], s[22:23]")
    A("ds_read_b64 v[44:45], v55")
    A(f"s_mov_b32 s51, {SPIN_MAX}")
    if stag: A(f"s_sleep {stag}")
    LB("L_o_poll")
    oload(220)
    A("s_waitcnt vmcnt(7)")
    any_poison(range(192, 220), 40)
    A("s_cbranch_vccz L_o_gotA")
    oload(192)
    A("s_waitcnt vmcnt(7)")
    any_poison(range(220, 248), 40)
    if dry: A("s_cmp_eq_u32 s46, 0"); A("s_cbranch_scc1 L_o_gotB")
    A("s_sub_u32 s51, s51, 1"); A("s_cbranch_scc1 L_o_gotB")
    A("s_cbranch_vccnz L_o_poll")
    LB("L_o_gotB")
    osum(220)
    if dry: A("s_cmp_eq_u32 s46, 0"); A("s_cbranch_scc0 L_o_got")
    else: A("s_branch L_o_got")
    LB("L_o_gotA")
    osum(192)
    LB("L_o_got")
    for d, y in ((164, 168), (160, 164)):
        for h in range(2): A(f"v_pk_add_f32 {vr(d+2*h,2)}, {vr(d+2*h,2)}, {vr(y+2*h,2)}")
    A("s_nop 0")
    for k in range(4): A(f"v_add_f32_dpp v{160+k}, v{160+k}, v{160+k} row_ror:8 row_mask:0xf bank_mask:0xf")
    swap_red("add_f32", [160, 161, 162, 163], [164, 165, 166, 167], 16)
    swap_red("add_f32", [160, 161, 162, 163], [164, 165, 166, 167], 32)
    A("v_cvt_pk_bf16_f32 v164, v160, v161"); A("v_cvt_pk_bf16_f32 v165, v162, v163")
    unpack(160, 164); unpack(162, 165)
    A("s_waitcnt lgkmcnt(0)")
    unpack(164, 44); unpack(166, 45)
    A("v_pk_add_f32 v[160:161], v[160:161], v[164:165]"); A("v_pk_add_f32 v[162:163], v[162:163], v[166:167]")
    A("v_cvt_pk_bf16_f32 v160, v160, v161"); A("v_cvt_pk_bf16_f32 v161, v162, v163")
    A("s_mov_b64 exec, 0xff")
    A("global_store_dwordx2 v54, v[160:161], s[42:43] " + outf)
    A("s_mov_b64 exec, -1")
    LB("L_f_next")
    TS(10)
    if dry:
        A("s_cmp_eq_u32 s46, 1"); A("s_cbranch_scc1 L_hdone")
        A("s_mov_b32 s46, 1")
        gate_wait("L_f_gate", 2 if g2 else 1)
        A("s_branch L_f_pass")
    LB("L_hdone")
    TS_flush("H")
    LB("L_end")
    A("s_endpgm")
    L.append('.section .rodata,"a"'); L.append(".p2align 6"); L.append(f".amdhsa_kernel {NAME}_kernel")
    for s in ("next_free_vgpr 256", "next_free_sgpr 102" if fine else "next_free_sgpr 96", "accum_offset 256", "group_segment_fixed_size 0", "kernarg_size 96",
              "user_sgpr_count 2", "user_sgpr_kernarg_segment_ptr 1", "system_sgpr_workgroup_id_x 1", "float_denorm_mode_32 3"):
        L.append("  .amdhsa_" + s)
    L.append(".end_amdhsa_kernel")
    return "\n".join(L) + "\n"

if __name__ == "__main__":
    kw = eval("dict(" + (sys.argv[2] if len(sys.argv) > 2 else "") + ")")
    open(sys.argv[1], "w").write(gen(**kw))
```

```python
import sys
NAME = "sequential_preLN__gqa_block_cached__glu_gated_swiglu__decode"

WQL = 0x20000; SP = 0x20000
QL = 0x24400; SML = 0x24800; CNT = 0x24880; GATE = 0x24884; QRDY = 0x24888; WQC = 0x2488C; TAGL = 0x24890
WB = 0x25000; OB = 0x25200; RED = 0x25800; HB = 0x26000; HM = 0x26400; ST = 0x26600; HN = 0x26800; EL = 0x27000; TQ = 0x27400
LDS_BYTES = 163840
EPOCH = 0; ALIVE = 0x400; QH = 0x800; AR = 0xC00; POOL = 0xC000; PPOOL = 0xF8000; QBUF = 0xD0000; ML = 0xF0000; H2 = 0x50000; PART = 0x10000; H3 = 0x90000; DUMMY = 0xB0000; TSB = 0x100000
TAGC = 0x9E3779B9
L2E = 0x3FB8AA3B; NL2E = 0xBFB8AA3B; SCALE = 0x3DB504F3
SPIN_MAX = 1 << 16


HEADER = """
;
"""

def gen(PACE=5, PACE0=5, S=27, NG=8, touch=False, qsleep=8, early=False, hold=False, gsleep=2, jitf=False, jitw=False, wqmap=False, ksplit=True, lazy=True, rot=0, rotm='x', F=0, fk=False, wgt=False, sq=False, QW=8, sa=False, XS=16, rep=True, qmask=0xffff, nopois=False, noalive=False, I1=16, I2=19, XB=24, hmove=False, pfh=False, fine=False, wburst=False, w13f=None, WTRIG=0, hint2=2, h2sleep=0, outf='sc1', qgf='sc1', pof='sc1', qsf='sc1', xf='', pwoff=0, PACEB=15, pw=0, pws='mpho', pwf='sc1', TPOS=4, g2=True, R1=8, R2=5, barpos=0, pf=True, stag=3, wend=False, rr=True, noswz=False, nocomp=False, noh=False, NV=4, VSTART=2, VSTEP=2, VW=0, QTH=20, MLTH=20, noroles=False, dbgts=False, prog=False, ts=False, dry=False, wq_flags="nt", w_flags="nt", kv_flags="nt"):
    PR = 128 - 4 * S; D = 8 * PR; PRM = -(-(1 << 16) // PR)
    assert all((t * PRM) >> 16 == t // PR for t in range(D))
    P = 4 * (S - F) if F else 0
    L = []
    def A(s): L.append("  " + s)
    def LB(s): L.append(s + ":")
    def C(s): L.append("  ; " + s)
    def vr(a, n): return f"v[{a}:{a+n-1}]"
    def TS(k):
        if ts and not fine:
            A("s_memrealtime s[60:61]"); A("s_waitcnt lgkmcnt(0)"); A(f"s_mov_b32 s{64+k}, s60")
    def TC(k):
        if fine:
            A(f"s_memtime s[{80+2*k}:{81+2*k}]")
    def TC_fin(n):
        if fine:
            A("s_waitcnt lgkmcnt(0)")
            for k in range(n): A(f"s_mov_b32 s{64+k}, s{80+2*k}")
    def TS_flush(kind="S"):
        if ts and dbgts:
            A("s_mov_b64 exec, -1"); A("v_mov_b32 v250, 0")
            if kind == "S":
                A("s_not_b32 s62, s64"); A("v_writelane_b32 v250, s62, 0"); A("s_not_b32 s62, s70"); A("v_writelane_b32 v250, s62, 13")
                for lane, k in ((1, 6), (2, 1), (3, 2), (4, 5)): A(f"v_writelane_b32 v250, s{64+k}, {lane}")
            else:
                for lane, k in ((5, 1), (6, 3), (7, 4)): A(f"v_writelane_b32 v250, s{64+k}, {lane}")
                A("s_not_b32 s62, s68"); A("s_cmp_eq_u32 s68, 0"); A("s_cselect_b32 s62, 0, s62"); A("v_writelane_b32 v250, s62, 14")
                A("s_cmp_eq_u32 s47, 0"); A("s_cbranch_scc0 L_dbgf")
                A("v_writelane_b32 v250, s70, 8"); A("v_writelane_b32 v250, s71, 9"); A("s_branch L_dbge")
                LB("L_dbgf")
                A("v_writelane_b32 v250, s70, 10"); A("v_writelane_b32 v250, s72, 11"); A("v_writelane_b32 v250, s74, 12")
                LB("L_dbge")
            A("v_mbcnt_lo_u32_b32 v251, -1, 0"); A("v_mbcnt_hi_u32_b32 v251, -1, v251"); A("v_lshlrev_b32 v251, 2, v251")
            A("s_mov_b64 exec, 0xffff")
            A("global_atomic_umax v251, v250, s[24:25] sc1")
        elif ts:
            A("s_mov_b64 exec, -1")
            A("v_mov_b32 v250, 0")
            for k in range(16): A(f"v_writelane_b32 v250, s{64+k}, {k}")
            A("v_mbcnt_lo_u32_b32 v251, -1, 0"); A("v_mbcnt_hi_u32_b32 v251, -1, v251")
            A("s_lshl_b32 s62, s2, 3"); A("s_add_u32 s62, s62, s3"); A("s_lshl_b32 s62, s62, 6"); A(f"s_add_u32 s62, s62, {TSB}")
            A("v_lshl_add_u32 v251, v251, 2, s62")
            A("s_mov_b64 exec, 0xffff")
            A("global_store_dword v251, v250, s[26:27]")
    def dpp_red(op, xs):
        for rot in (8, 4, 2, 1):
            if len(xs) < 3: A(f"s_nop {2 - len(xs)}" if len(xs) < 2 else "s_nop 0")
            for x in xs: A(f"v_{op}_dpp v{x}, v{x}, v{x} row_ror:{rot} row_mask:0xf bank_mask:0xf")
    def swap_red(op, xs, ts_, which):
        for x, t in zip(xs, ts_): A(f"v_mov_b32 v{t}, v{x}")
        A("s_nop 1")
        for x, t in zip(xs, ts_): A(f"v_permlane{which}_swap_b32 v{x}, v{t}")
        for x, t in zip(xs, ts_): A(f"v_{op} v{x}, v{x}, v{t}")
    def unpack(dst, src):
        A(f"v_lshlrev_b32 v{dst}, 16, v{src}"); A(f"v_and_b32 v{dst+1}, 0xffff0000, v{src}")
    def bf16r(x):
        A(f"v_cvt_pk_bf16_f32 v{x}, v{x}, v{x}"); A(f"v_and_b32 v{x}, 0xffff0000, v{x}")
    def layernorm(src, f, t):
        for k in range(4): unpack(f + 2 * k, src + k)
        A(f"v_add_f32 v{t}, v{f}, v{f+1}"); A(f"v_add_f32 v{t+1}, v{f+2}, v{f+3}")
        A(f"v_add_f32 v{t+2}, v{f+4}, v{f+5}"); A(f"v_add_f32 v{t+3}, v{f+6}, v{f+7}")
        A(f"v_add_f32 v{t}, v{t}, v{t+1}"); A(f"v_add_f32 v{t+2}, v{t+2}, v{t+3}"); A(f"v_add_f32 v{t}, v{t}, v{t+2}")
        dpp_red("add_f32", [t]); swap_red("add_f32", [t], [t+1], 16); swap_red("add_f32", [t], [t+1], 32)
        A(f"v_mul_f32 v{t}, 0x3b000000, v{t}")
        A(f"v_sub_f32 v{t+2}, v{f}, v{t}"); A(f"v_mul_f32 v{t+1}, v{t+2}, v{t+2}")
        for k in range(1, 8):
            A(f"v_sub_f32 v{t+2}, v{f+k}, v{t}"); A(f"v_fmac_f32 v{t+1}, v{t+2}, v{t+2}")
        bf16r(t)
        dpp_red("add_f32", [t+1]); swap_red("add_f32", [t+1], [t+2], 16); swap_red("add_f32", [t+1], [t+2], 32)
        A(f"v_mul_f32 v{t+1}, 0x3b000000, v{t+1}")
        bf16r(t+1)
        A(f"v_add_f32 v{t+1}, 0x3727c5ac, v{t+1}")
        bf16r(t+1)
        A(f"v_sqrt_f32 v{t+1}, v{t+1}")
        for k in range(8): A(f"v_sub_f32 v{f+k}, v{f+k}, v{t}")
        bf16r(t+1)
        A(f"v_rcp_f32 v{t+1}, v{t+1}")
        for k in range(4): A(f"v_cvt_pk_bf16_f32 v{src+k}, v{f+2*k}, v{f+2*k+1}")
        for k in range(4): unpack(f + 2 * k, src + k)
        for k in range(8): A(f"v_mul_f32 v{f+k}, v{f+k}, v{t+1}")
        for k in range(4): A(f"v_cvt_pk_bf16_f32 v{src+k}, v{f+2*k}, v{f+2*k+1}")
    def transpose8(dst, src):
        for e in range(8):
            for j in range(4):
                a = src + 4 * (2 * j) + (e >> 1); b = src + 4 * (2 * j + 1) + (e >> 1)
                A(f"v_perm_b32 v{dst+4*e+j}, v{b}, v{a}, s{45 if e & 1 else 44}")
    def any_poison(regs, t):
        regs = list(regs)
        A(f"v_max3_u32 v{t}, v{regs[0]}, v{regs[1]}, v{regs[2]}" if len(regs) >= 3 else f"v_max_u32 v{t}, v{regs[0]}, v{regs[1]}")
        rest = regs[3:] if len(regs) >= 3 else []
        while len(rest) >= 2:
            A(f"v_max3_u32 v{t}, v{t}, v{rest[0]}, v{rest[1]}"); rest = rest[2:]
        if rest: A(f"v_max_u32 v{t}, v{t}, v{rest[0]}")
        A(f"v_cmp_eq_u32 vcc, -1, v{t}")
    def barrier_real(lbl):
        A("s_waitcnt lgkmcnt(0)")
        if dry: A("s_cmp_eq_u32 s46, 0"); A(f"s_cbranch_scc1 {lbl}")
        A("s_barrier"); LB(lbl)
    def scheck(lbl, off, n):
        A(f"s_mov_b32 s51, {SPIN_MAX}")
        for r in range(0, n, 16):
            w = min(16, n - r)
            LB(f"{lbl}_{r}")
            A(f"s_load_dwordx{w} s[80:{79+w}], s[26:27], s41 glc")
            A("s_sub_u32 s51, s51, 1"); A(f"s_cbranch_scc1 {lbl}_x")
            A("s_waitcnt lgkmcnt(0)")
            for k in range(w): A(f"s_xor_b32 s{80+k}, s{80+k}, s58")
            for k in range(1, w): A(f"s_or_b32 s80, s80, s{80+k}")
            A(f"s_cbranch_scc1 {lbl}_{r}")
            if r + 16 < n: A("s_add_u32 s41, s41, 64")
        LB(f"{lbl}_x")
        A("s_waitcnt lgkmcnt(0)")
    def alive(tag):
        if wend: A("s_branch L_hdone")
        if noalive: return
        C("every workgroup reset its hand-off slots before it wrote its word here")
        if sa:
            A("v_readfirstlane_b32 s58, v3")
            if tag == "w": A("s_lshl_b32 s41, s36, 7"); A(f"s_add_u32 s41, s41, {ALIVE}"); scheck("L_alw", 0, 32)
            else: A(f"s_mov_b32 s41, {AR}"); scheck("L_alf", 0, 120)
            return
        A(f"v_lshlrev_b32 v4, 4, v0"); A(f"v_add_u32 v4, {ALIVE}, v4")
        A(f"s_mov_b32 s51, {SPIN_MAX}")
        LB(f"L_alive_{tag}")
        A("global_load_dwordx4 v[24:27], v4, s[26:27] sc1")
        A("s_sub_u32 s51, s51, 1"); A(f"s_cbranch_scc1 L_alive_ok_{tag}")
        A("s_waitcnt vmcnt(0)")
        for k in range(4): A(f"v_xor_b32 v{24+k}, v{24+k}, v3")
        A("v_or3_b32 v24, v24, v25, v26"); A("v_or_b32 v24, v24, v27")
        A("v_cmp_ne_u32 vcc, 0, v24"); A(f"s_cbranch_vccnz L_alive_{tag}")
        LB(f"L_alive_ok_{tag}")
        A("s_waitcnt vmcnt(0)")
    def gate_wait(lbl, lvl=1):
        A(f"v_mov_b32 v1, {GATE}")
        LB(lbl)
        A(f"s_sleep {gsleep}"); A("ds_read_b32 v2, v1"); A("s_waitcnt lgkmcnt(0)"); A("v_readfirstlane_b32 s40, v2")
        A(f"s_cmp_lt_u32 s40, {lvl}"); A(f"s_cbranch_scc1 {lbl}")

    L.extend(HEADER.strip("\n").split("\n"))
    L.append(f"; @launch grid=(256,1,1) block=(512,1,1) lds={LDS_BYTES}")
    L.append('.amdgcn_target "amdgcn-amd-amdhsa--gfx950"')
    L.append(".text"); L.append(f".globl {NAME}_kernel"); L.append(".p2align 8"); L.append(f".type {NAME}_kernel,@function")
    LB(f"{NAME}_kernel")
    A("s_cmp_ge_u32 s2, 256"); A("s_cbranch_scc1 L_end")
    A("s_load_dwordx16 s[4:19], s[0:1], 0")
    A("s_load_dwordx8 s[20:27], s[0:1], 64")
    if ts:
        for k in range(16): A(f"s_mov_b32 s{64+k}, 0")
        A("s_memrealtime s[60:61]")
    A("v_lshrrev_b32 v1, 6, v0")
    A("v_and_b32 v0, 63, v0")
    A("v_readfirstlane_b32 s3, v1")
    def codepf():
        if pf:
            C("one idle wave pulls this kernel's code towards the L2 while the others start")
            A("s_cmp_lg_u32 s3, 5"); A("s_cbranch_scc1 L_nopf")
            A("s_getpc_b64 s[40:41]"); LB("L_pc")
            A(f"s_sub_u32 s40, s40, L_pc-{NAME}_kernel"); A("s_subb_u32 s41, s41, 0")
            A("v_lshlrev_b32 v8, 7, v0"); A(f"v_min_u32 v9, L_end-{NAME}_kernel-8192, v8")
            A("global_load_dword v10, v8, s[40:41] " + xf); A("s_add_u32 s40, s40, 8192"); A("s_addc_u32 s41, s41, 0"); A("global_load_dword v10, v9, s[40:41] " + xf)
            LB("L_nopf")
    if not pfh: codepf()
    A("s_lshr_b32 s36, s2, 5")
    A("s_and_b32 s37, s2, 31")
    A("s_and_b32 s38, s2, 7"); A("s_lshl_b32 s38, s38, 2"); A("s_lshr_b32 s39, s37, 3"); A("s_add_u32 s38, s38, s39")
    A(f"v_mov_b32 v1, {CNT}")
    for k in range(4): A(f"v_mov_b32 v{4+k}, 0")
    A("ds_write_b128 v1, v[4:7]")
    def hentry():
        if pfh: codepf()
        A("v_mov_b32 v16, 0"); A("v_lshlrev_b32 v1, 4, v0")
        A("s_lshl_b32 s40, s36, 10"); A(f"s_add_u32 s40, s40, {POOL}"); A("v_and_b32 v19, 3, v0"); A("v_lshl_add_u32 v19, v19, 8, s40")
        A("s_waitcnt lgkmcnt(0)")
        A("s_cmp_lg_u32 s3, 4"); A("s_cbranch_scc1 L_hbar")
        if F:
            A("s_cmp_lt_u32 s37, 24"); A("s_cbranch_scc1 L_hx")
            A("s_and_b32 s40, s2, 7"); A("s_lshl_b32 s41, s36, 3"); A("s_add_u32 s40, s40, s41"); A("s_lshl_b32 s40, s40, 9"); A(f"s_add_u32 s40, s40, {PPOOL}")
            A("v_and_b32 v18, 3, v0"); A("v_lshl_add_u32 v18, v18, 7, s40")
            A("global_store_dword v18, v16, s[26:27] sc1")
        A("s_cmp_lg_u32 s37, 31"); A("s_cbranch_scc1 L_hx")
        A("global_store_dword v19, v16, s[26:27] sc1")
        LB("L_hx")
        A("global_load_dwordx4 v[4:7], v1, s[4:5]")
        A("global_load_dword v3, v16, s[26:27] sc1")
        LB("L_hbar")
        A("s_barrier"); A("s_branch L_helper")
    if hmove: A("s_cmp_ge_u32 s3, 4"); A("s_cbranch_scc1 L_hentry")
    else:
        A("s_cmp_lt_u32 s3, 4"); A("s_cbranch_scc1 L_stream"); hentry(); LB("L_stream")

    C("streaming waves: K/V tiles of 16 keys through a 4-slot LDS ring per wave")
    A("v_lshrrev_b32 v20, 4, v0")
    A("v_and_b32 v21, 15, v0")
    A("v_lshlrev_b32 v22, 1, v20")
    A("v_xor_b32 v22, v22, v21")
    A("v_lshlrev_b32 v22, 4, v22")
    A("v_lshl_add_u32 v2, v20, 8, v22")
    A("v_xor_b32 v3, 0x80, v2"); A("v_xor_b32 v4, 16, v2"); A("v_xor_b32 v5, 0x90, v2")
    if noswz:
        for i in range(4): A(f"v_lshlrev_b32 v{2+i}, 4, v0")
    C("four workgroups share a 2 MiB page of K and V (rows of 4 tiles interleaved); the last rows of all pages form a ticket pool")
    A("s_and_b32 s40, s2, 7"); A("s_lshl_b32 s41, s36, 3"); A("s_add_u32 s40, s40, s41"); A("s_lshl_b32 s40, s40, 21")
    A("s_lshl_b32 s41, s39, 14"); A("s_add_u32 s40, s40, s41")
    A("s_lshl_b32 s41, s3, 12"); A("s_add_u32 s40, s40, s41")
    if rot:
        A(f"s_and_b32 s59, s40, {~0x1fffff & 0xffffffff:#x}"); A(f"s_add_u32 s59, s59, {4*S*16384}")
        if rotm == 'x': A("s_and_b32 s41, s2, 7")
        elif rotm == 'h': A("s_mov_b32 s41, s36")
        else: A("s_and_b32 s41, s2, 7"); A("s_xor_b32 s41, s41, s36")
        A(f"s_mul_i32 s41, s41, {rot * 65536}"); A("s_add_u32 s40, s40, s41")
    A("s_lshl_b32 s41, s3, 15")
    A("s_mov_b32 s30, 0x8000000"); A("s_mov_b32 s31, 0x20000"); A("s_mov_b32 s34, 0x8000000"); A("s_mov_b32 s35, 0x20000")
    A("s_mov_b32 s42, 0x2000")
    A("s_mov_b32 s44, 4")
    C("first: 32 rows x 64 columns of wq per wave into LDS (used by the first helper wave)")
    A("v_lshrrev_b32 v22, 3, v0"); A("v_and_b32 v23, 7, v0"); A("v_lshlrev_b32 v22, 13, v22"); A("v_lshl_add_u32 v22, v23, 4, v22")
    A("s_lshl_b32 s47, s39, 20"); A("s_lshl_b32 s48, s3, 18"); A("s_add_u32 s47, s47, s48"); A("s_lshl_b32 s48, s36, 10"); A("s_add_u32 s47, s47, s48")
    A("s_and_b32 s48, s2, 7"); A("s_lshl_b32 s48, s48, 7"); A("s_add_u32 s47, s47, s48")
    A("s_lshl_b32 s48, s3, 12"); A(f"s_add_u32 m0, s48, {WQL}")
    A("s_waitcnt lgkmcnt(0)")
    if ts: A("s_mov_b32 s64, s60")
    A("s_add_u32 s48, s10, s47"); A("s_addc_u32 s49, s11, 0")
    for k in range(4):
        if k: A("v_add_u32 v22, 0x10000, v22"); A("s_add_u32 m0, m0, 1024"); A("s_nop 0")
        else: A("s_mov_b32 s28, s6")
        A(f"global_load_lds_dwordx4 v22, s[48:49] {wq_flags}")
    A("s_and_b32 s29, s7, 0xffff"); A("s_mov_b32 s32, s8"); A("s_and_b32 s33, s9, 0xffff")
    if barpos == 0: A("s_barrier")
    TS(6)
    def adv():
        A("s_add_u32 s40, s40, 65536")
        if rot: A("s_cmp_ge_u32 s40, s59"); A(f"s_cselect_b32 s48, {4*S*16384}, 0"); A("s_sub_u32 s40, s40, s48")
    def issue_tile(pace, tk=False):
        def ticket(i):
            if tk and i == TPOS:
                A("s_cmp_lg_u32 s43, 0"); A(f"s_cbranch_scc1 L_notk{tk}")
                if wgt:
                    A("s_mov_b64 exec, 1"); A("ds_add_rtn_u32 v22, v23, v119"); A("s_mov_b64 exec, -1")
                    A("s_waitcnt lgkmcnt(0)"); A("v_readfirstlane_b32 s48, v22")
                    A("s_cmp_eq_u32 s48, 0"); A("s_cselect_b32 s56, 1, 0"); A(f"s_cbranch_scc0 L_notk{tk}")
                A("s_mov_b32 s58, 1"); A(f"s_atomic_add s58, s[26:27], {'s56' if F else 's57'} glc")
                LB(f"L_notk{tk}")
        A("s_mov_b32 m0, s41")
        for i in range(4):
            ticket(i); A(f"s_waitcnt vmcnt({pace})"); A(f"buffer_load_dwordx4 v{2+i}, s[28:31], s40 offen offset:{i*1024} {kv_flags} lds")
        A("s_add_u32 m0, s41, 4096")
        for i in range(4):
            ticket(4 + i); A(f"s_waitcnt vmcnt({pace})"); A(f"buffer_load_dwordx4 v{2+i}, s[32:35], s40 offen offset:{i*1024} {kv_flags} lds")
        ticket(8)
        adv()
    LB("L_fill")
    issue_tile(PACE0)
    A("s_xor_b32 s41, s41, s42"); A("s_xor_b32 s42, s42, 0x4000")
    A("s_cmp_lg_u32 s44, 4"); A("s_cbranch_scc1 L_nosig")
    if barpos == 1: A("s_barrier")
    A("s_waitcnt vmcnt(8)"); A("v_mov_b32 v22, 1"); A("s_mov_b64 exec, 1")
    A(f"ds_add_u32 v1, v22 offset:{WQC - CNT}"); A("s_mov_b64 exec, -1")
    LB("L_nosig")
    A("s_sub_u32 s44, s44, 1"); A("s_cmp_lg_u32 s44, 0"); A("s_cbranch_scc1 L_fill")
    if hmove:
        A("s_branch L_filled"); LB("L_hentry"); hentry(); LB("L_filled")
    TS(1)
    A("s_lshl_b32 s46, s36, 24"); A("s_lshl_b32 s47, s3, 12"); A("s_add_u32 s46, s46, s47"); A(f"s_add_u32 s46, s46, {4*S*16384}")
    if wgt:
        assert not F and D + 2 <= 256
        A("s_lshl_b32 s57, s36, 10"); A(f"s_add_u32 s57, s57, {POOL}")
        A("s_mov_b32 s56, 0")
    else:
        A("s_lshl_b32 s57, s36, 2"); A("s_add_u32 s57, s57, s3"); A("s_lshl_b32 s57, s57, 8"); A(f"s_add_u32 s57, s57, {POOL}")
    A("s_mov_b32 s58, 0")
    if F:
        A("s_and_b32 s56, s2, 7"); A("s_lshl_b32 s47, s36, 3"); A("s_add_u32 s56, s56, s47")
        A("s_lshl_b32 s59, s56, 21"); A("s_lshl_b32 s47, s3, 12"); A("s_add_u32 s59, s59, s47"); A(f"s_add_u32 s59, s59, {4*F*16384}")
        A("s_lshl_b32 s56, s56, 2"); A("s_add_u32 s56, s56, s3"); A("s_lshl_b32 s56, s56, 7"); A(f"s_add_u32 s56, s56, {PPOOL}")
    C("addresses of the final merge")
    A("s_lshl_b32 s47, s3, 11"); A(f"s_add_u32 s47, s47, {SP}")
    A("v_lshlrev_b32 v122, 9, v21"); A("v_lshl_add_u32 v122, v20, 4, v122"); A("v_add_u32 v122, s47, v122")
    A("s_lshl_b32 s47, s3, 5"); A(f"s_add_u32 s47, s47, {SML}")
    A("v_lshl_add_u32 v123, v21, 3, s47")
    A(f"v_lshlrev_b32 v124, 5, v0"); A(f"v_add_u32 v124, {SP}, v124")
    A(f"v_lshlrev_b32 v125, 3, v20"); A(f"v_add_u32 v125, {SML}, v125")
    A("s_lshl_b32 s47, s36, 15"); A("s_lshl_b32 s48, s38, 8"); A("s_add_u32 s47, s47, s48"); A(f"s_add_u32 s47, s47, {PART}")
    A("v_lshlrev_b32 v126, 13, v20"); A("v_lshl_add_u32 v126, v21, 4, v126"); A("v_add_u32 v126, s47, v126")
    A("s_lshl_b32 s47, s36, 12"); A("s_lshl_b32 s48, s38, 7"); A("s_add_u32 s47, s47, s48"); A(f"s_add_u32 s47, s47, {ML}")
    A("v_lshl_add_u32 v127, v20, 3, s47")
    A(f"v_mov_b32 v1, {CNT}"); A("v_mov_b32 v119, 1")
    A(f"s_mov_b32 s43, {(F if F else S) - 4}")
    A("v_lshlrev_b32 v23, 1, v21"); A("v_and_b32 v23, 15, v23"); A("v_lshrrev_b32 v24, 3, v21"); A("v_or_b32 v23, v23, v24")
    A("v_and_b32 v24, 1, v20"); A("v_lshlrev_b32 v24, 1, v24"); A("v_lshrrev_b32 v25, 1, v20"); A("v_or_b32 v24, v24, v25")
    A("v_xor_b32 v23, v23, v24"); A("v_lshlrev_b32 v23, 4, v23"); A("v_lshl_add_u32 v23, v21, 8, v23")
    A("v_add_u32 v6, s41, v23")
    for s in range(1, 4): A(f"v_xor_b32 v{6+s}, {s << 6}, v6")
    A("v_lshrrev_b32 v25, 2, v0")
    A("v_lshlrev_b32 v26, 1, v25"); A("v_and_b32 v26, 15, v26"); A("v_lshrrev_b32 v27, 3, v25"); A("v_or_b32 v26, v26, v27")
    A("v_bfe_u32 v27, v0, 1, 1"); A("v_xor_b32 v26, v26, v27"); A("v_lshlrev_b32 v26, 4, v26")
    A("v_lshl_add_u32 v26, v25, 8, v26")
    A("v_and_b32 v27, 1, v0"); A("v_lshl_add_u32 v26, v27, 3, v26")
    A("s_add_u32 s44, s41, 4096")
    A("v_add_u32 v10, s44, v26")
    for t in range(1, 8): A(f"v_xor_b32 v{10+t}, {t << 5}, v10")
    A("v_and_b32 v25, 3, v21"); A("v_lshlrev_b32 v25, 8, v25"); A("v_lshl_add_u32 v25, v24, 4, v25"); A(f"v_add_u32 v108, {QL}, v25")
    if wgt: A(f"v_mov_b32 v23, {EL}")
    A("v_mov_b32 v18, 0xff7fffff"); A("v_mov_b32 v19, 0x7f7fffff"); A("v_mov_b32 v109, 0")
    for k in range(32): A(f"v_mov_b32 v{76+k}, 0")
    A(f"s_mov_b32 s45, {L2E}"); A("s_mov_b32 s44, 4"); A("s_mov_b32 s54, 0x2000"); A("s_mov_b32 s55, 4")
    if ts: A("s_mov_b32 s51, 0")
    A(f"v_mov_b32 v116, {QRDY}")
    if fk: A("s_mov_b32 s62, s39")
    A("s_mov_b32 s39, 0"); A("s_mov_b32 s52, 0"); A(f"s_mul_i32 s53, s3, {VW}"); A(f"s_add_u32 s53, s53, {VSTART}")
    if noh: A("s_branch L_qok")
    C("while q is not there yet, keep streaming: park up to NV more tiles in registers")
    for k in range(NV):
        A("ds_read_b32 v117, v116"); A("s_waitcnt lgkmcnt(0)"); A("v_readfirstlane_b32 s48, v117")
        A("s_cmp_lg_u32 s48, 0"); A("s_cbranch_scc1 L_qok")
        for i in range(8):
            A(f"s_waitcnt vmcnt({PACE0})"); A(f"buffer_load_dwordx4 {vr(128+32*k+4*i,4)}, v{2+(i&3)}, s[{28 if i < 4 else 32}:{31 if i < 4 else 35}], s40 offen offset:{(i&3)*1024} {kv_flags}")
        adv(); A("s_add_u32 s52, s52, 1"); A("s_sub_u32 s43, s43, 1")
    LB("L_qwait")
    A("ds_read_b32 v117, v116"); A("s_waitcnt lgkmcnt(0)"); A("v_readfirstlane_b32 s48, v117")
    A("s_cmp_lg_u32 s48, 0"); A("s_cbranch_scc1 L_qok"); A("s_sleep 1"); A("s_branch L_qwait")
    LB("L_qok")
    if ts: A("s_add_u32 s51, s51, s52"); A("s_mov_b32 s77, s52")
    TS(2)
    for s in range(4): A(f"ds_read_b128 {vr(24+4*s,4)}, v108 offset:{64*s}")
    LB("L_tile")
    A("s_waitcnt vmcnt(24)")
    A("s_cmp_gt_u32 s44, 3"); A("s_cbranch_scc1 L_go")
    A("s_waitcnt vmcnt(16)"); A("s_cmp_gt_u32 s44, 2"); A("s_cbranch_scc1 L_go")
    A("s_waitcnt vmcnt(8)"); A("s_cmp_gt_u32 s44, 1"); A("s_cbranch_scc1 L_go")
    if ksplit:
        C("last tile: start on K while V is still arriving")
        A("s_waitcnt vmcnt(4)")
        TS(3); TC(0)
        for s in range(4): A(f"ds_read_b128 {vr(40+4*s,4)}, v{6+s}")
        for s in range(4):
            A(f"s_waitcnt lgkmcnt({3-s})")
            A(f"v_mfma_f32_16x16x32_bf16 v[72:75], {vr(40+4*s,4)}, {vr(24+4*s,4)}, {'0' if s == 0 else 'v[72:75]'}")
        A("s_branch L_sm")
    else:
        A("s_waitcnt vmcnt(0)")
        TS(3)
    LB("L_go")
    if nocomp: A("s_waitcnt lgkmcnt(0)"); A("s_branch L_skipc")
    for s in range(4): A(f"ds_read_b128 {vr(40+4*s,4)}, v{6+s}")
    for t in range(8): A(f"ds_read_b64_tr_b16 {vr(56+2*t,2)}, v{10+t}")
    for s in range(4):
        A(f"s_waitcnt lgkmcnt({11-s})")
        A(f"v_mfma_f32_16x16x32_bf16 v[72:75], {vr(40+4*s,4)}, {vr(24+4*s,4)}, {'0' if s == 0 else 'v[72:75]'}")
    LB("L_sm")
    for k in range(12): A(f"v_xor_b32 v{6+k}, s54, v{6+k}")
    A("v_cvt_pk_bf16_f32 v110, v72, v73"); A("v_cvt_pk_bf16_f32 v111, v74, v75")
    unpack(112, 110); unpack(114, 111)
    for k in range(4): A(f"v_mul_f32 v{112+k}, {SCALE:#x}, v{112+k}")
    A("v_cvt_pk_bf16_f32 v110, v112, v113"); A("v_cvt_pk_bf16_f32 v111, v114, v115")
    unpack(112, 110); unpack(114, 111)
    if lazy:
        A("v_max3_f32 v116, v112, v113, v114"); A("v_max_f32 v117, v115, v18")
        for k in range(4): A(f"v_fma_f32 v{72+k}, v{112+k}, s45, v19")
        A("v_max_f32 v110, v116, v117"); A("v_max_f32 v111, v116, v117")
        A("v_cmp_gt_f32 vcc, v110, v18")
        A("v_mov_b32 v118, 1.0")
        A("s_cbranch_vccnz L_newmax")
        for k in range(4): A(f"v_exp_f32 v{112+k}, v{72+k}")
        A("s_nop 0")
    else:
        A("v_max3_f32 v116, v112, v113, v114"); A("v_max3_f32 v116, v116, v115, v18")
        swap_red("max_f32", [116], [117], 16); swap_red("max_f32", [116], [117], 32)
        A(f"v_mul_f32 v117, {NL2E:#x}, v116"); A("v_floor_f32 v117, v117")
        A("v_cmp_lt_f32 vcc, v117, v19")
        A("v_sub_f32 v118, v117, v19")
        for k in range(4): A(f"v_fma_f32 v{112+k}, v{112+k}, s45, v117")
        A("v_exp_f32 v118, v118")
        for k in range(4): A(f"v_exp_f32 v{112+k}, v{112+k}")
        A("v_mov_b32 v18, v116"); A("v_mov_b32 v19, v117")
        A("s_cbranch_vccz L_nors")
        for k in range(16): A(f"v_pk_mul_f32 {vr(76+2*k,2)}, {vr(76+2*k,2)}, v[118:119] op_sel_hi:[1,0]")
    LB("L_nors")
    A("v_add_f32 v116, v112, v113"); A("v_add_f32 v117, v114, v115")
    A("v_cvt_pk_bf16_f32 v120, v112, v113"); A("v_cvt_pk_bf16_f32 v121, v114, v115")
    A("v_add_f32 v116, v116, v117"); A("v_fma_f32 v109, v109, v118, v116")
    if ksplit:
        A("s_cmp_gt_u32 s44, 1"); A("s_cbranch_scc1 L_pv")
        for k in range(8): A(f"v_xor_b32 v{10+k}, s54, v{10+k}")
        TC(1)
        A("s_waitcnt vmcnt(0)")
        TC(2)
        for t in range(8): A(f"ds_read_b64_tr_b16 {vr(56+2*t,2)}, v{10+t}")
        for t in range(8):
            A(f"s_waitcnt lgkmcnt({7-t})"); A(f"v_mfma_f32_16x16x16_bf16 {vr(76+4*t,4)}, {vr(56+2*t,2)}, v[120:121], {vr(76+4*t,4)}")
        A("s_branch L_fin")
        LB("L_pv")
    A("s_waitcnt lgkmcnt(0)")
    for t in range(8): A(f"v_mfma_f32_16x16x16_bf16 {vr(76+4*t,4)}, {vr(56+2*t,2)}, v[120:121], {vr(76+4*t,4)}")
    LB("L_skipc")
    if NV:
        A("s_cmp_eq_u32 s52, 0"); A("s_cbranch_scc1 L_nopark")
        A("s_sub_u32 s53, s53, 1"); A("s_cmp_lg_u32 s53, 0"); A("s_cbranch_scc1 L_nopark")
        LB("L_park")
        C("move a parked tile into the slot that just became free and run it")
        A(f"s_mov_b32 s53, {VSTEP + 1}"); A("s_sub_u32 s52, s52, 1")
        A("v_lshl_add_u32 v116, v0, 4, s41")
        A("s_waitcnt vmcnt(8)")
        for k in range(NV):
            if k < NV - 1: A(f"s_cmp_lg_u32 s52, {k}"); A(f"s_cbranch_scc1 L_pk{k}")
            for i in range(8): A(f"ds_write_b128 v116, {vr(128+32*k+4*i,4)} offset:{1024*i}")
            if k < NV - 1: A("s_branch L_pkd"); LB(f"L_pk{k}")
        LB("L_pkd")
        for k in range(12): A(f"v_xor_b32 v{6+k}, s54, v{6+k}")
        A("s_branch L_go")
        LB("L_nopark")
    A("s_xor_b32 s54, s54, 0x4000")
    C("s55: wanted number of tiles in the ring (4 at first, 2 later so that nothing waits unprocessed at the end, 0 when the pool is empty)")
    A("s_add_u32 s39, s39, 1")
    A(f"s_cmp_lt_u32 s39, {I1}"); A("s_cbranch_scc1 L_keep")
    A("s_cmp_lg_u32 s52, 0"); A("s_cbranch_scc1 L_keep")
    A(f"s_cmp_lt_u32 s39, {I2}"); A("s_cselect_b32 s48, 3, 2"); A("s_min_u32 s55, s55, s48")
    A("s_cmp_gt_u32 s44, s55"); A("s_cbranch_scc1 L_drain")
    LB("L_keep")
    if WTRIG:
        A(f"s_cmp_lg_u32 s43, {WTRIG}"); A("s_cbranch_scc1 L_notrig")
        A(f"ds_add_u32 v1, v119 offset:{WQC - CNT}")
        LB("L_notrig")
    A("s_cmp_eq_u32 s43, 0"); A("s_cbranch_scc1 L_dyn")
    A("s_sub_u32 s43, s43, 1"); A("s_branch L_issue")
    LB("L_dyn")
    if F:
        C("rows of this page are handed out in order to its four workgroups; each wave's last page ticket is one of the last four")
        A("s_cmp_eq_u32 s56, s57"); A("s_cbranch_scc1 L_head")
        if fk: A("s_mov_b32 s58, s62"); A("s_add_u32 s62, s62, 4")
        A("s_lshl_b32 s50, s58, 14"); A("s_add_u32 s40, s59, s50")
        A(f"s_cmp_ge_u32 s58, {P - 4}"); A("s_cselect_b32 s56, s57, s56")
        A("s_branch L_issue")
        LB("L_head")
    if wgt:
        C("one row of four tiles per ticket: the first wave to need it asks, the others read its answer")
        A("s_cmp_eq_u32 s56, 0"); A("s_cbranch_scc1 L_rdq")
        A("v_mov_b32 v22, s58"); A(f"ds_write_b32 v23, v22 offset:{TQ - EL}"); A("s_branch L_gotq")
        LB("L_rdq")
        A(f"ds_read_b32 v22, v23 offset:{TQ - EL}"); A("s_waitcnt lgkmcnt(0)"); A("v_readfirstlane_b32 s58, v22")
        A("s_cmp_eq_u32 s58, -1"); A("s_cbranch_scc1 L_rdq")
        LB("L_gotq")
    A(f"s_cmp_ge_u32 s58, {D}"); A("s_cbranch_scc1 L_empty")
    if wgt: A("v_add_u32 v23, 4, v23")
    A("s_and_b32 s49, s58, 7"); A("s_lshr_b32 s50, s58, 3")
    A("s_lshl_b32 s49, s49, 21"); A("s_lshl_b32 s50, s50, 14"); A("s_add_u32 s40, s46, s49"); A("s_add_u32 s40, s40, s50")
    if XB:
        A(f"s_cmp_lt_u32 s58, {D - XB}"); A("s_cbranch_scc1 L_issue")
        C("last round of the pool: others have stopped, do not hold these loads back")
        if XS:
            C("a wave that got one of the last XS rows does not ask again (the others still drain the counter)")
            A(f"s_cmp_ge_u32 s58, {D - XS}"); A("s_cselect_b32 s43, 1, 0"); A(f"s_cselect_b32 s58, {D}, s58")
        issue_tile(PACEB, 2)
        if XS: A("s_mov_b32 s43, 0")
        A("s_branch L_issued")
    LB("L_issue")
    issue_tile(PACE, 1)
    LB("L_issued")
    A("s_xor_b32 s41, s41, s42"); A("s_xor_b32 s42, s42, 0x4000")
    if prog:
        A("s_add_u32 s51, s51, 1")
        for k, r in enumerate((4, 8, 12, 16, 20, 24, 28)):
            A(f"s_cmp_eq_u32 s51, {r}"); A(f"s_cbranch_scc0 L_pg{k}"); TS(7 + k); LB(f"L_pg{k}")
    A("s_branch L_tile")
    LB("L_empty")
    if NV:
        A("s_cmp_eq_u32 s52, 0"); A("s_cbranch_scc1 L_empty2")
        A("s_xor_b32 s54, s54, 0x4000"); A("s_branch L_park")
        LB("L_empty2")
    A(f"ds_write_b32 v1, v119 offset:{GATE - CNT}"); A("s_mov_b32 s55, 0")
    if ts: A("s_add_u32 s79, s51, 4"); TS(14)
    LB("L_drain")
    A("s_sub_u32 s44, s44, 1"); A("s_cmp_lg_u32 s44, 0"); A("s_cbranch_scc1 L_tile")
    LB("L_fin")
    TS(4); TC(3)
    C("epilogue: merge the four waves' partial results, publish")
    A("v_mov_b32 v116, v109"); A("v_mov_b32 v108, v19"); A("s_nop 0")
    A("v_permlane16_swap_b32 v109, v116"); A("v_add_f32 v117, v109, v116"); A("v_add_f32 v109, v109, v116")
    A("s_mov_b32 exec_lo, 0x000f000f"); A("s_mov_b32 exec_hi, 0x000f000f")
    for t in range(8): A(f"ds_write_b128 v122, {vr(76+4*t,4)} offset:{64*t}")
    A("s_mov_b64 exec, -1")
    A("v_permlane32_swap_b32 v109, v117"); A("v_add_f32 v109, v109, v117")
    A("s_mov_b64 exec, 15")
    A("ds_write_b64 v123, v[108:109]")
    A("s_mov_b64 exec, 1")
    A("ds_add_rtn_u32 v111, v1, v119")
    A("s_mov_b64 exec, -1")
    A("s_waitcnt lgkmcnt(0)")
    TC(4)
    A("v_readfirstlane_b32 s44, v111")
    if fine: A("s_mov_b32 s79, s44")
    A("s_cmp_eq_u32 s44, 3"); A("s_cbranch_scc0 L_sdone")
    for w in range(4): A(f"ds_read_b64 {vr(24+2*w,2)}, v125 offset:{32*w}")
    for w in range(4):
        A(f"ds_read_b128 {vr(40+8*w,4)}, v124 offset:{2048*w}"); A(f"ds_read_b128 {vr(44+8*w,4)}, v124 offset:{2048*w+16}")
    A("s_waitcnt lgkmcnt(8)")
    A("v_min3_f32 v32, v24, v26, v28"); A("v_min_f32 v32, v32, v30")
    for w in range(4): A(f"v_sub_f32 v{24+2*w}, v32, v{24+2*w}")
    for w in range(4): A(f"v_exp_f32 v{24+2*w}, v{24+2*w}")
    A("s_waitcnt lgkmcnt(6)")
    for k in range(4): A(f"v_pk_mul_f32 {vr(40+2*k,2)}, {vr(40+2*k,2)}, v[24:25] op_sel_hi:[1,0]")
    for w in range(1, 4):
        A(f"s_waitcnt lgkmcnt({6 - 2*w})")
        for k in range(4): A(f"v_pk_fma_f32 {vr(40+2*k,2)}, {vr(40+8*w+2*k,2)}, {vr(24+2*w,2)}, {vr(40+2*k,2)} op_sel_hi:[1,0,1]")
    for k in range(4): A(f"v_cvt_pk_bf16_f32 v{40+k}, v{40+2*k}, v{41+2*k}")
    A("global_store_dwordx4 v126, v[40:43], s[26:27] sc1")
    A("v_mul_f32 v33, v24, v25")
    for w in range(1, 4): A(f"v_fmac_f32 v33, v{24+2*w}, v{25+2*w}")
    A("s_mov_b32 exec_lo, 0x00010001"); A("s_mov_b32 exec_hi, 0x00010001")
    A("global_store_dwordx2 v127, v[32:33], s[26:27] sc1")
    A("v_mov_b32 v117, 2"); A(f"ds_write_b32 v1, v117 offset:{GATE - CNT}")
    LB("L_sdone")
    TC(5); TC_fin(6)
    TS(5)
    TS_flush()
    A("s_endpgm")

    if lazy:
        LB("L_newmax")
        C("some row has a new maximum: agree on it across the four key groups, rescale")
        A("v_permlane16_swap_b32 v110, v111"); A("v_max_f32 v116, v110, v111"); A("v_max_f32 v117, v110, v111"); A("s_nop 1")
        A("v_permlane32_swap_b32 v116, v117"); A("v_max_f32 v18, v116, v117")
        A(f"v_mul_f32 v117, {NL2E:#x}, v18"); A("v_floor_f32 v117, v117")
        A("v_cmp_lt_f32 vcc, v117, v19")
        A("v_sub_f32 v118, v117, v19")
        for k in range(4): A(f"v_fma_f32 v{112+k}, v{112+k}, s45, v117")
        A("v_exp_f32 v118, v118")
        for k in range(4): A(f"v_exp_f32 v{112+k}, v{112+k}")
        A("v_mov_b32 v19, v117")
        A("s_cbranch_vccz L_nors")
        for k in range(16): A(f"v_pk_mul_f32 {vr(76+2*k,2)}, {vr(76+2*k,2)}, v[118:119] op_sel_hi:[1,0]")
        A("s_branch L_nors")
    LB("L_helper")
    if noh: A("s_endpgm")
    A("s_mov_b32 s47, s39")
    A("s_mov_b32 s50, s39")
    A("s_cmp_eq_u32 s37, 15"); A("s_cselect_b32 s47, 3, s47")
    A("s_sub_u32 s39, s3, 4")
    A("s_and_b32 s48, s37, 7")
    A("s_mul_i32 s59, s36, 7"); A("s_add_u32 s59, s59, s48")
    A("s_lshl_b32 s49, s48, 3"); A("s_add_u32 s49, s49, s36")
    A("v_lshrrev_b32 v20, 4, v0"); A("v_and_b32 v21, 15, v0")
    A("v_lshrrev_b32 v22, 3, v21"); A("v_and_b32 v23, 7, v21")
    A("s_mov_b32 s44, 0x05040100"); A("s_mov_b32 s45, 0x07060302")
    if dry: A("s_mov_b32 s46, 0")
    A("s_cmp_eq_u32 s39, 0"); A("s_cbranch_scc1 L_w4")
    A("s_cmp_ge_u32 s47, 2"); A("s_cbranch_scc1 L_end")
    if ts: A("s_mov_b32 s64, s60")
    A(f"v_mov_b32 v1, {QRDY}")
    LB("L_hq")
    A("s_sleep 4"); A("ds_read_b32 v2, v1"); A("s_waitcnt lgkmcnt(0)"); A("v_readfirstlane_b32 s40, v2")
    A("s_cmp_eq_u32 s40, 0"); A("s_cbranch_scc1 L_hq")
    A(f"ds_read_b32 v3, v1 offset:{TAGL - QRDY}"); A("s_waitcnt vmcnt(0) lgkmcnt(0)")
    A("s_branch L_roles")

    LB("L_w4")
    C("first helper wave: reset this workgroup's hand-off slots; 128 rows x 64 columns of LN(x) @ wq; gather q")
    A("s_setprio 3")
    if ts: A("s_mov_b32 s64, s60")
    for k in range(4): A(f"v_mov_b32 v{72+k}, -1")
    A("s_lshl_b32 s40, s36, 15"); A("s_lshl_b32 s41, s38, 8"); A("s_add_u32 s40, s40, s41"); A(f"s_add_u32 s40, s40, {PART}")
    A("v_lshlrev_b32 v76, 13, v20"); A("v_lshl_add_u32 v76, v21, 4, v76"); A("v_add_u32 v76, s40, v76")
    A("s_lshl_b32 s40, s36, 12"); A("s_lshl_b32 s41, s38, 7"); A("s_add_u32 s41, s40, s41"); A(f"s_add_u32 s41, s41, {ML}")
    A("v_lshl_add_u32 v77, v20, 3, s41")
    A(f"v_add_u32 v10, {HN}, v1")
    A("s_lshl_b32 s40, s50, 8"); A(f"s_add_u32 s40, s40, {HN}"); A("v_lshl_add_u32 v11, v20, 4, s40")
    A("v_bfe_u32 v13, v0, 2, 2"); A("v_lshl_add_u32 v13, v20, 3, v13"); A("v_lshlrev_b32 v13, 7, v13")
    A("v_and_b32 v14, 3, v0"); A("v_lshl_add_u32 v13, v14, 3, v13"); A(f"v_add_u32 v13, {WQL}, v13")
    A(f"v_lshlrev_b32 v14, 2, v0"); A(f"v_add_u32 v18, {QL}, v14")
    A("s_lshl_b32 s40, s36, 14"); A(f"s_add_u32 s40, s40, {QBUF + 4096}")
    A("v_add_u32 v17, s40, v1"); A("v_add_u32 v19, 0x2000, v17")
    A("s_lshl_b32 s41, s50, 12"); A("s_add_u32 s40, s40, s41"); A("s_lshl_b32 s41, s48, 9"); A("s_add_u32 s40, s40, s41"); A("s_sub_u32 s40, s40, 4096")
    A("v_lshl_add_u32 v15, v0, 3, s40")
    A("s_lshl_b32 s40, s2, 2"); A(f"s_add_u32 s40, s40, {ALIVE}"); A("v_mov_b32 v78, s40")
    A("v_cmp_eq_u32 s[52:53], 1, v20"); A("v_cmp_eq_u32 s[54:55], 2, v20"); A("v_cmp_eq_u32 s[56:57], 3, v20")
    A(f"v_mov_b32 v14, {WQC}")
    A("s_waitcnt vmcnt(0)")
    TS(1)
    A("global_store_dwordx4 v76, v[72:75], s[26:27] " + pof)
    A("s_mov_b32 exec_lo, 0x00010001"); A("s_mov_b32 exec_hi, 0x00010001")
    A("global_store_dwordx2 v77, v[72:73], s[26:27] " + pof)
    A("s_mov_b64 exec, -1")
    A(f"v_add_u32 v3, {TAGC:#x}, v3")
    layernorm(4, 24, 32)
    A("ds_write_b128 v10, v[4:7]")
    for k in range(4): A(f"ds_read_b128 {vr(40+4*k,4)}, v11 offset:{64*k}")
    LB("L_wqw")
    A("ds_read_b32 v24, v14"); A("s_waitcnt lgkmcnt(0)"); A("v_readfirstlane_b32 s40, v24")
    A("s_cmp_lt_u32 s40, 4"); A("s_cbranch_scc1 L_wqw")
    TS(2)
    for k in range(4):
        for t in range(4):
            r = 96 + 16 * k + 4 * t
            A(f"ds_read_b64_tr_b16 {vr(r,2)}, v13 offset:{4096*k + 32*t}"); A(f"ds_read_b64_tr_b16 {vr(r+2,2)}, v13 offset:{4096*k + 32*t + 512}")
    for k in range(4):
        for t in range(4):
            n = 4 * k + t
            A(f"s_waitcnt lgkmcnt({min(15, 2*(15-n))})")
            A(f"v_mfma_f32_16x16x32_bf16 {vr(56+4*t,4)}, {vr(40+4*k,4)}, {vr(96+16*k+4*t,4)}, {'0' if k == 0 else vr(56+4*t,4)}")
    A("s_nop 5")
    A("v_cndmask_b32 v2, v56, v60, s[52:53]"); A("s_nop 0"); A("v_cndmask_b32 v2, v2, v64, s[54:55]"); A("v_cndmask_b32 v2, v2, v68, s[56:57]")
    A("global_store_dwordx2 v15, v[2:3], s[26:27] " + qsf)
    A("s_mov_b64 exec, 1")
    A(f"global_store_dword v78, v3, s[26:27] offset:{QH - ALIVE} sc1")
    A("s_mov_b64 exec, -1")
    A("s_cmp_ge_u32 s47, 2"); A("s_cbranch_scc0 L_w4r")
    LB("L_w4b")
    TS(3)
    A(f"s_mov_b32 s51, {SPIN_MAX}")
    def qload(r):
        for i in range(16): A(f"global_load_dwordx4 {vr(r+4*i,4)}, v{17 if i < 8 else 19}, s[26:27] offset:{(i % 8) * 1024 - 4096} sc1")
    def qcheck(r):
        A(f"v_xor_b32 v24, v{r+1}, v3"); A(f"v_xor_b32 v25, v{r+3}, v3")
        ws = [r + 4 * i + k for i in range(1, 16) for k in (1, 3)]
        for n, w in enumerate(ws):
            A(f"v_xor_b32 v26, v{w}, v3"); A(f"v_or_b32 v{24 + (n & 1)}, v{24 + (n & 1)}, v26")
        A("v_or_b32 v24, v24, v25"); A("v_cmp_ne_u32 vcc, 0, v24")
    def qsum(r):
        for k in range(4):
            for h in (0, 2):
                A(f"v_add_f32 v{r+4*k+h}, v{r+4*k+h}, v{r+16+4*k+h}"); A(f"v_add_f32 v{r+32+4*k+h}, v{r+32+4*k+h}, v{r+48+4*k+h}")
        for k in range(4):
            for h in (0, 2): A(f"v_add_f32 v{r+4*k+h}, v{r+4*k+h}, v{r+32+4*k+h}")
        for k in range(4): A(f"v_cvt_pk_bf16_f32 v{24+k}, v{r+4*k}, v{r+4*k+2}")
    C("the group's 32 words announce the partial q stores; the tags inside the data are what is trusted")
    if sq:
        A("v_readfirstlane_b32 s58, v3"); A("s_lshl_b32 s41, s36, 7"); A(f"s_add_u32 s41, s41, {QH + 4 * (32 - QW)}")
        scheck("L_qh", 0, QW)
        A(f"s_mov_b32 s51, {SPIN_MAX}")
        A("s_waitcnt vmcnt(0)")
    else:
        A("s_lshl_b32 s40, s36, 7"); A(f"s_add_u32 s40, s40, {QH}"); A("v_and_b32 v12, 31, v0"); A("v_lshl_add_u32 v12, v12, 2, s40")
        A("global_load_dword v28, v12, s[26:27] sc1")
        A(f"s_sleep {qsleep}")
        LB("L_qhint")
        A("global_load_dword v29, v12, s[26:27] sc1")
        A("s_waitcnt vmcnt(1)")
        A("v_cmp_eq_u32 vcc, v28, v3"); A("s_bcnt1_i32_b32 s40, vcc_lo"); A(f"s_cmp_ge_u32 s40, {QTH}"); A("s_cbranch_scc1 L_qgo")
        A("global_load_dword v28, v12, s[26:27] sc1")
        A("s_waitcnt vmcnt(1)")
        A("v_cmp_eq_u32 vcc, v29, v3"); A("s_bcnt1_i32_b32 s40, vcc_lo")
        A("s_sub_u32 s51, s51, 1"); A("s_cbranch_scc1 L_qgo")
        A(f"s_cmp_lt_u32 s40, {QTH}"); A("s_cbranch_scc1 L_qhint")
    LB("L_qgo")
    C("a completed load that was issued after the resets: they have landed")
    A("s_mov_b64 exec, 1"); A("global_store_dword v78, v3, s[26:27] sc1")
    if sa:
        A("s_cmp_ge_u32 s47, 2"); A("s_cbranch_scc1 L_noar")
        A("s_lshl_b32 s40, s36, 3"); A("s_add_u32 s40, s40, s48"); A("s_add_u32 s41, s49, 64"); A("s_cmp_eq_u32 s47, 0"); A("s_cselect_b32 s40, s40, s41")
        A("s_lshl_b32 s40, s40, 2"); A(f"s_add_u32 s40, s40, {AR}"); A("v_mov_b32 v77, s40")
        A("global_store_dword v77, v3, s[26:27] sc1")
        LB("L_noar")
    A("s_mov_b64 exec, -1")
    TS(12)
    A(f"s_mov_b32 s55, {qmask}")
    LB("L_qpoll")
    for i in range(16):
        A(f"s_bitcmp1_b32 s55, {i}"); A(f"s_cbranch_scc0 L_qs{i}")
        A(f"global_load_dwordx4 {vr(96+4*i,4)}, v{17 if i < 8 else 19}, s[26:27] offset:{(i % 8) * 1024 - 4096} {qgf}")
        LB(f"L_qs{i}")
    A("s_waitcnt vmcnt(0)")
    for i in range(16):
        A(f"v_cmp_ne_u32 vcc, v{97+4*i}, v3"); A(f"v_cmp_ne_u32 s[40:41], v{99+4*i}, v3"); A("s_or_b64 vcc, vcc, s[40:41]")
        A(f"s_cbranch_scc1 L_qc{i}"); A(f"s_bitset0_b32 s55, {i}"); LB(f"L_qc{i}")
    A("s_sub_u32 s51, s51, 1"); A("s_cbranch_scc1 L_qgot")
    A("s_cmp_lg_u32 s55, 0"); A("s_cbranch_scc1 L_qpoll")
    LB("L_qgot")
    qsum(96)
    if wgt:
        A(f"v_add_u32 v28, {EL}, v1"); A(f"ds_write_b128 v28, v[72:75] offset:{TQ - EL}")
        for k in range(4): A(f"v_mov_b32 v{76+k}, 0")
        A("ds_write_b128 v28, v[76:79]")
    A("ds_write2_b32 v18, v24, v25 offset0:0 offset1:64"); A("ds_write2_b32 v18, v26, v27 offset0:128 offset1:192")
    A(f"v_mov_b32 v18, {QRDY}"); A("v_mov_b32 v19, 1")
    A(f"ds_write_b32 v18, v3 offset:{TAGL - QRDY}"); A("ds_write_b32 v18, v19")
    A("s_waitcnt lgkmcnt(0)")
    A("s_setprio 0")
    TS(4)
    if touch:
        A("v_lshlrev_b32 v4, 21, v0"); A("s_lshl_b32 s40, s36, 24"); A(f"s_add_u32 s40, s40, {0x200000 - 128}"); A("v_add_u32 v4, s40, v4")
        A("s_mov_b64 exec, 0xff")
        A("global_load_dword v240, v4, s[6:7] nt"); A("global_load_dword v240, v4, s[8:9] nt")
        A("s_mov_b64 exec, -1")
    A("s_waitcnt vmcnt(0)")
    A("s_branch L_roles")
    LB("L_w4r")
    A("s_cmp_eq_u32 s47, 0"); A("s_cbranch_scc0 L_w4f")
    A("s_lshl_b32 s40, s48, 11"); A("s_lshl_b32 s41, s36, 8"); A("s_add_u32 s40, s40, s41"); A(f"s_add_u32 s40, s40, {H2}")
    A("v_lshl_add_u32 v76, v21, 4, s40")
    if rep:
        A("v_lshl_add_u32 v76, v20, 14, v76"); A("v_add_u32 v77, 0x10000, v76")
        A("global_store_dwordx4 v76, v[72:75], s[26:27] " + pof); A("global_store_dwordx4 v77, v[72:75], s[26:27] " + pof)
    else:
        A("s_mov_b64 exec, 0xffff")
        A("global_store_dwordx4 v76, v[72:75], s[26:27] " + pof)
        A("s_mov_b64 exec, -1")
    A("s_branch L_w4b")
    LB("L_w4f")
    A("s_lshl_b32 s41, s49, 7"); A(f"s_add_u32 s41, s41, {H3}")
    A("v_lshrrev_b32 v76, 3, v0"); A("v_mul_u32_u24 v76, 7168, v76"); A("v_and_b32 v77, 7, v0"); A("v_lshl_add_u32 v76, v77, 4, v76"); A("v_add_u32 v76, s41, v76")
    A(f"v_add_u32 v77, {8*7168}, v76")
    A("global_store_dwordx4 v76, v[72:75], s[26:27] " + pof); A("global_store_dwordx4 v77, v[72:75], s[26:27] " + pof)
    A("s_branch L_w4b")
    LB("L_roles")
    if noroles: A("s_branch L_hdone")
    A("s_cmp_eq_u32 s47, 1"); A("s_cbranch_scc1 L_ffn")
    A("s_cmp_eq_u32 s47, 0"); A("s_cbranch_scc0 L_hdone")
    A("s_mov_b32 s40, s36"); A("s_mov_b32 s36, s48"); A("s_mov_b32 s48, s40")

    C("wo role: merge 32 splits of one kv group, multiply by a 512x64 block of wo")
    A("s_lshl_b32 s40, s36, 2"); A("s_add_u32 s40, s40, s39")
    A("s_lshl_b32 s41, s40, 17"); A("s_lshl_b32 s42, s48, 7"); A("s_add_u32 s41, s41, s42"); A("s_add_u32 s41, s41, 4096")
    A("s_add_u32 s52, s12, s41"); A("s_addc_u32 s53, s13, 0")
    A("v_lshlrev_b32 v58, 16, v22"); A("v_lshl_add_u32 v58, v20, 13, v58"); A("v_lshl_add_u32 v58, v23, 4, v58"); A("v_add_u32 v59, 0x8000, v58")
    def wo_weights():
        if jitw: gate_wait("L_w_jit", 1); TS(11)
        for s in range(2):
            for i in range(8): A(f"global_load_dwordx4 {vr(160+32*s+4*i,4)}, v{58+s}, s[52:53] offset:{1024*i-4096} {w_flags}")
            if not jitw: A("s_waitcnt vmcnt(0)")
        for s in range(2):
            A(f"s_waitcnt vmcnt({8 - 8*s})")
            transpose8(96 + 32 * s, 160 + 32 * s)
        TS(5)
    if not jitw: wo_weights()
    alive("w")
    A("s_lshl_b32 s41, s40, 13"); A(f"s_add_u32 s41, s41, {PART}")
    A("v_lshlrev_b32 v14, 4, v21"); A("v_lshl_add_u32 v4, v20, 11, v14"); A("v_add_u32 v4, s41, v4")
    A("s_lshl_b32 s41, s36, 12"); A("s_lshl_b32 s42, s39, 3"); A("s_add_u32 s41, s41, s42"); A(f"s_add_u32 s41, s41, {ML}")
    A("v_and_b32 v8, 31, v0"); A("v_lshl_add_u32 v6, v8, 7, s41")
    A("s_lshl_b32 s41, s39, 6"); A(f"s_add_u32 s41, s41, {WB}")
    A("v_lshl_add_u32 v9, v8, 1, s41"); A("v_lshl_add_u32 v10, v20, 4, s41")
    A("s_lshl_b32 s41, s39, 8"); A(f"s_add_u32 s41, s41, {OB}")
    A("v_add_u32 v11, s41, v14")
    A("v_lshlrev_b32 v12, 7, v22"); A("v_lshl_add_u32 v12, v20, 4, v12"); A("v_add_u32 v12, s41, v12")
    A("s_lshl_b32 s41, s39, 9"); A(f"s_add_u32 s41, s41, {RED}")
    A("v_lshlrev_b32 v13, 8, v22"); A("v_lshl_add_u32 v13, v23, 5, v13"); A("v_add_u32 v13, s41, v13")
    A(f"v_add_u32 v15, {RED}, v14")
    A("s_lshl_b32 s41, s36, 11"); A("s_lshl_b32 s42, s48, 8"); A("s_add_u32 s54, s41, s42")
    if jitw: wo_weights()
    if pw:
        if pw == 2: gate_wait("L_wo_pw", 1)
        if 'm' in pws: A(f"global_load_dwordx2 v[80:81], v6, s[26:27] {pwf}")
        for i in range(8 if 'p' in pws else 0): A(f"global_load_dwordx4 {vr(16+4*i,4)}, v4, s[26:27] offset:{256*i} {pwf}")
    if not dry: gate_wait("L_wo_gate0", 2 if g2 else 1); TS(8)
    LB("L_wo_pass")
    A(f"s_mov_b32 s41, {H2}")
    if dry: A("s_cmp_eq_u32 s46, 0"); A(f"s_cmov_b32 s41, {DUMMY}")
    A("s_add_u32 s41, s41, s54")
    A("v_add_u32 v7, s41, v14")
    if rep: A("v_lshrrev_b32 v5, 4, v0"); A("v_lshl_add_u32 v7, v5, 14, v7"); A("v_add_u32 v5, 0x10000, v7")
    A(f"s_mov_b32 s51, {SPIN_MAX}")
    LB("L_wo_ml")
    A("global_load_dwordx2 v[80:81], v6, s[26:27] sc1")
    A("s_waitcnt vmcnt(0)")
    any_poison([80, 81], 84)
    A("s_bcnt1_i32_b32 s57, vcc_lo")
    if dry: A("s_cmp_eq_u32 s46, 0"); A("s_cbranch_scc1 L_wo_go")
    A("s_sub_u32 s51, s51, 1"); A("s_cbranch_scc1 L_wo_go")
    A(f"s_cmp_gt_u32 s57, {32 - MLTH}"); A("s_cbranch_scc1 L_wo_ml")
    LB("L_wo_go")
    TS(9)
    def wload(r, m):
        A(f"global_load_dwordx2 {vr(m,2)}, v6, s[26:27] sc1")
        for i in range(8): A(f"global_load_dwordx4 {vr(r+4*i,4)}, v4, s[26:27] offset:{256*i} sc1")
    def wcheck(r, m): any_poison([m, m+1] + list(range(r, r + 32)), 84)
    wload(16, 80)
    if stag: A(f"s_sleep {stag}")
    LB("L_wo_poll")
    if ts: A("s_add_u32 s79, s79, 1")
    wload(48, 82)
    A("s_waitcnt vmcnt(9)")
    wcheck(16, 80)
    A("s_cbranch_vccz L_wo_gotA")
    wload(16, 80)
    A("s_waitcnt vmcnt(9)")
    wcheck(48, 82)
    if dry: A("s_cmp_eq_u32 s46, 0"); A("s_cbranch_scc1 L_wo_gotB")
    A("s_sub_u32 s51, s51, 1"); A("s_cbranch_scc1 L_wo_gotB")
    A("s_cbranch_vccnz L_wo_poll")
    def wcomb(r, m):
        TS(6); TC(0)
        A(f"v_mov_b32 v84, v{m}")
        P = []
        for e in range(8):
            for j in range(4):
                x = r + 4 * (2 * j) + (e >> 1); y = r + 4 * (2 * j + 1) + (e >> 1)
                P.append(f"v_perm_b32 v{160+4*e+j}, v{y}, v{x}, s{45 if e & 1 else 44}")
        def fill(n):
            for _ in range(n): A(P.pop(0))
        for rot in (8, 4, 2, 1):
            fill(2); A(f"v_min_f32_dpp v84, v84, v84 row_ror:{rot} row_mask:0xf bank_mask:0xf")
        A("v_mov_b32 v85, v84"); fill(2); A("v_permlane16_swap_b32 v84, v85"); A("v_min_f32 v84, v84, v85")
        A(f"v_sub_f32 v84, v84, v{m}"); A("v_exp_f32 v84, v84"); fill(1)
        A("v_cvt_pk_bf16_f32 v86, v84, v84")
        A("ds_write_b16 v9, v86"); A("ds_read_b128 v[88:91], v10")
        A(f"v_mul_f32 v85, v84, v{m+1}")
        for rot in (8, 4, 2, 1):
            fill(2); A(f"v_add_f32_dpp v85, v85, v85 row_ror:{rot} row_mask:0xf bank_mask:0xf")
        A("v_mov_b32 v86, v85"); fill(2); A("v_permlane16_swap_b32 v85, v86"); A("v_add_f32 v85, v85, v86")
        A("v_rcp_f32 v85, v85")
        fill(len(P))
    LB("L_wo_gotB")
    wcomb(48, 82)
    if dry: A("s_cmp_eq_u32 s46, 0"); A("s_cbranch_scc0 L_wo_got")
    else: A("s_branch L_wo_got")
    LB("L_wo_gotA")
    wcomb(16, 80)
    LB("L_wo_got")
    TC(1)
    A("s_waitcnt lgkmcnt(0)")
    TC(2)
    for e in range(8): A(f"v_mfma_f32_16x16x32_bf16 {vr(192+4*e,4)}, v[88:91], {vr(160+4*e,4)}, 0")
    A("s_nop 0")
    for e in range(8): A(f"v_mul_f32 v{192+4*e}, v{192+4*e}, v85")
    for k in range(4): A(f"v_cvt_pk_bf16_f32 v{88+k}, v{192+8*k}, v{196+8*k}")
    TC(3)
    A("ds_write_b128 v11, v[88:91]")
    A("ds_read_b128 v[160:163], v12"); A("ds_read_b128 v[164:167], v12 offset:64")
    A("s_waitcnt lgkmcnt(1)")
    for e in range(8): A(f"v_mfma_f32_16x16x32_bf16 {vr(192+4*e,4)}, v[160:163], {vr(96+4*e,4)}, 0")
    A("s_waitcnt lgkmcnt(0)")
    for e in range(8): A(f"v_mfma_f32_16x16x32_bf16 {vr(192+4*e,4)}, v[164:167], {vr(128+4*e,4)}, {vr(192+4*e,4)}")
    A("s_mov_b32 exec_lo, 0xff"); A("s_mov_b32 exec_hi, 0xff00")
    A("s_nop 5")
    for e in range(0, 8, 2): A(f"ds_write2_b32 v13, v{192+4*e}, v{196+4*e} offset0:{e} offset1:{e+1}")
    A("s_mov_b64 exec, -1")
    TC(4)
    barrier_real("L_wo_nb")
    TC(5)
    A("s_cmp_lg_u32 s39, 0"); A("s_cbranch_scc1 L_wo_next")
    for p in range(8): A(f"ds_read_b128 {vr(160+4*p,4)}, v15 offset:{256*p}")
    for st, wcnt in ((0, 6), (8, 4), (16, 2), (24, 0)):
        A(f"s_waitcnt lgkmcnt({wcnt})")
        for h in range(2): A(f"v_pk_add_f32 {vr(160+st+2*h,2)}, {vr(160+st+2*h,2)}, {vr(164+st+2*h,2)}")
    for h in range(2): A(f"v_pk_add_f32 {vr(160+2*h,2)}, {vr(160+2*h,2)}, {vr(168+2*h,2)}")
    for h in range(2): A(f"v_pk_add_f32 {vr(176+2*h,2)}, {vr(176+2*h,2)}, {vr(184+2*h,2)}")
    for h in range(2): A(f"v_pk_add_f32 {vr(160+2*h,2)}, {vr(160+2*h,2)}, {vr(176+2*h,2)}")
    if rep:
        C("eight copies, so that the readers of different dies do not queue on one line")
        A("global_store_dwordx4 v7, v[160:163], s[26:27] sc1"); A("global_store_dwordx4 v5, v[160:163], s[26:27] sc1")
    else:
        A("s_mov_b64 exec, 0xffff")
        A("global_store_dwordx4 v7, v[160:163], s[26:27] sc1")
        A("s_mov_b64 exec, -1")
    LB("L_wo_next")
    TC(6); TC_fin(7)
    TS(7)
    if dry:
        A("s_cmp_eq_u32 s46, 1"); A("s_cbranch_scc1 L_hdone")
        A("s_mov_b32 s46, 1")
        gate_wait("L_wo_gate", 2 if g2 else 1)
        TS(8)
        A("s_branch L_wo_pass")
    else: A("s_branch L_hdone") if ts else A("s_endpgm")

    LB("L_ffn")
    C("ffn role: h, LN(h), 32 gate/up columns, 32 rows of w2; first 16 also finish 32 output columns")
    def ffn_weights():
        A("v_lshlrev_b32 v58, 6, v22"); A("v_lshl_add_u32 v58, v20, 3, v58"); A("s_lshl_b32 s40, s39, 7"); A("v_add_u32 v58, s40, v58")
        A("s_movk_i32 s40, 3584"); A("v_mul_u32_u24 v58, s40, v58")
        A("v_and_b32 v59, 3, v21"); A("v_lshl_add_u32 v58, v59, 4, v58"); A("s_lshl_b32 s40, s49, 6"); A("v_add_u32 v58, s40, v58")
        A("v_bfe_u32 v59, v21, 2, 1"); A("v_cmp_eq_u32 vcc, 1, v59")
        A("v_mov_b32 v60, s16"); A("v_mov_b32 v61, s18"); A("v_cndmask_b32 v60, v60, v61, vcc")
        A("v_mov_b32 v61, s17"); A("v_mov_b32 v62, s19"); A("v_cndmask_b32 v61, v61, v62, vcc")
        A("v_mov_b32 v59, 0"); A("v_lshl_add_u64 v[60:61], v[58:59], 0, v[60:61]")
        A("s_lshl_b32 s40, s49, 15"); A("s_lshl_b32 s41, s39, 8"); A("s_add_u32 s40, s40, s41"); A("s_add_u32 s40, s40, 4096")
        A("s_add_u32 s52, s20, s40"); A("s_addc_u32 s53, s21, 0")
        A("v_lshlrev_b32 v58, 13, v20"); A("v_lshl_add_u32 v58, v21, 4, v58")
        if jitf: gate_wait("L_f_jit", 1); TS(11)
        if WTRIG:
            A(f"v_mov_b32 v1, {WQC}")
            LB("L_f_trig")
            A("s_sleep 2"); A("ds_read_b32 v2, v1"); A("s_waitcnt lgkmcnt(0)"); A("v_readfirstlane_b32 s40, v2")
            A("s_cmp_lt_u32 s40, 5"); A("s_cbranch_scc1 L_f_trig")
        A("s_mov_b64 s[40:41], 7168"); A(f"s_mov_b64 s[42:43], {7168 + 24 * 3584}")
        for s in range(2):
            for i in range(8):
                A(f"global_load_dwordx4 {vr(160+32*s+4*i,4)}, v[60:61], off{' offset:3584' if i & 1 else ''} {w_flags if w13f is None else w13f}")
                if i & 1 and not (s == 1 and i == 7): A(f"v_lshl_add_u64 v[60:61], v[60:61], 0, {'s[42:43]' if i == 7 else 's[40:41]'}")
            if not jitf and not wburst: A("s_waitcnt vmcnt(0)")
        for i in range(8): A(f"global_load_dwordx4 {vr(224+4*i,4)}, v58, s[52:53] offset:{1024*i-4096} {w_flags}")
        for s in range(3):
            A(f"s_waitcnt vmcnt({16 - 8*s})")
            transpose8(64 + 32 * s, 160 + 32 * s)
        TS(5)
    if not jitf: ffn_weights()
    A("v_and_b32 v8, 31, v0")
    A("s_lshl_b32 s40, s39, 8"); A("v_lshl_add_u32 v5, v8, 3, s40")
    A("global_load_dwordx2 v[48:49], v5, s[4:5]")
    A("s_waitcnt vmcnt(0)")
    unpack(50, 49)
    A("v_and_b32 v49, 0xffff0000, v48"); A("v_lshlrev_b32 v48, 16, v48")
    alive("f")
    A("v_lshrrev_b32 v9, 5, v0"); A("v_lshlrev_b32 v4, 11, v9"); A("v_lshl_add_u32 v4, v8, 4, v4")
    A("s_lshl_b32 s40, s39, 9"); A(f"s_add_u32 s40, s40, {H2 + 4096}")
    if rep: A("s_lshl_b32 s41, s48, 14"); A("s_add_u32 s40, s40, s41")
    A("v_add_u32 v4, s40, v4"); A("v_add_u32 v6, 0x2000, v4")
    A(f"v_add_u32 v5, {HB}, v5")
    A("s_lshl_b32 s40, s39, 3"); A(f"s_add_u32 s40, s40, {ST}"); A("v_mov_b32 v7, s40"); A(f"v_mov_b32 v9, {ST}")
    A("s_lshl_b32 s40, s39, 8"); A(f"s_add_u32 s40, s40, {HN}"); A("v_lshl_add_u32 v10, v8, 3, s40")
    A("v_lshlrev_b32 v11, 7, v22"); A("v_lshl_add_u32 v11, v20, 4, v11"); A("v_add_u32 v11, s40, v11")
    A("s_lshl_b32 s41, s39, 9"); A(f"s_add_u32 s41, s41, {RED}")
    A("v_lshlrev_b32 v13, 8, v22"); A("v_lshl_add_u32 v13, v23, 5, v13"); A("v_add_u32 v13, s41, v13")
    A("v_lshlrev_b32 v14, 5, v20"); A("v_lshl_add_u32 v14, v23, 2, v14"); A(f"v_add_u32 v14, {RED}, v14")
    A("v_lshrrev_b32 v52, 2, v21"); A("v_mul_u32_u24 v52, 7168, v52"); A("v_and_b32 v53, 3, v21"); A("v_lshl_add_u32 v52, v53, 5, v52"); A("v_lshl_add_u32 v52, v20, 4, v52")
    A("s_lshl_b32 s54, s49, 7"); A(f"s_mul_i32 s41, s39, {4*7168}"); A("s_add_u32 s54, s54, s41")
    A("v_cmp_eq_u32 s[56:57], 1, v20")
    A("s_mul_i32 s41, s59, 7168"); A(f"s_add_u32 s41, s41, {H3 + 3072}"); A("v_lshl_add_u32 v53, v0, 4, s41")
    A("v_and_b32 v54, 7, v0"); A("s_lshl_b32 s41, s59, 6"); A("v_lshl_add_u32 v54, v54, 3, s41"); A(f"v_add_u32 v55, {HB}, v54")
    if jitf: ffn_weights()
    if pw:
        if pw == 2: gate_wait("L_f_pw", 1)
        for i in range(4 if 'h' in pws else 0): A(f"global_load_dwordx4 {vr(192+4*i,4)}, v{4 if i < 2 else 6}, s[26:27] offset:{(i % 2) * 4096 - 4096} {pwf}")
        A("s_cmp_lg_u32 s39, 0"); A("s_cbranch_scc1 L_f_npw"); A("s_cmp_ge_u32 s59, 16"); A("s_cbranch_scc1 L_f_npw")
        A(f"v_add_u32 v57, {pwoff}, v53")
        for i in range(7 if 'o' in pws else 0): A(f"global_load_dwordx4 {vr(220+4*i,4)}, v57, s[26:27] offset:{1024*i-3072} {pwf}")
        LB("L_f_npw")
    if not dry: gate_wait("L_f_gate0", 2 if g2 else 1)
    LB("L_f_pass")
    A(f"s_mov_b32 s41, {H3}")
    if dry: A("s_cmp_eq_u32 s46, 0"); A(f"s_cmov_b32 s41, {DUMMY}")
    A("s_add_u32 s41, s41, s54")
    A("v_add_u32 v56, s41, v52")
    A(f"s_mov_b32 s51, {SPIN_MAX}")
    def hload(r):
        for i in range(4): A(f"global_load_dwordx4 {vr(r+4*i,4)}, v{4 if i < 2 else 6}, s[26:27] offset:{(i % 2) * 4096 - 4096} sc1")
    def hsum(r):
        TS(6)
        for h in range(2): A(f"v_pk_add_f32 {vr(40+2*h,2)}, {vr(r+2*h,2)}, {vr(r+4+2*h,2)}")
        for h in range(2): A(f"v_pk_add_f32 {vr(44+2*h,2)}, {vr(r+8+2*h,2)}, {vr(r+12+2*h,2)}")
    if hint2:
        LB("L_f_hint")
        if h2sleep: A(f"s_sleep {h2sleep}")
        if hint2 == 1:
            A("global_load_dwordx4 v[192:195], v4, s[26:27] offset:-4096 sc1"); A("s_waitcnt vmcnt(0)")
            any_poison(range(192, 196), 40)
            A("s_sub_u32 s51, s51, 1"); A("s_cbranch_scc1 L_f_go"); A("s_cbranch_vccnz L_f_hint")
        else:
            A("global_load_dword v192, v4, s[26:27] offset:-4096 sc1"); A("s_waitcnt vmcnt(0)")
            A("v_cmp_ne_u32 vcc, -1, v192")
            A("s_sub_u32 s51, s51, 1"); A("s_cbranch_scc1 L_f_go"); A("s_cbranch_vccz L_f_hint")
        LB("L_f_go")
    hload(192)
    if stag: A(f"s_sleep {stag}")
    LB("L_f_poll")
    hload(208)
    A("s_waitcnt vmcnt(4)")
    any_poison(range(192, 208), 40)
    A("s_cbranch_vccz L_f_gotA")
    hload(192)
    A("s_waitcnt vmcnt(4)")
    any_poison(range(208, 224), 40)
    if dry: A("s_cmp_eq_u32 s46, 0"); A("s_cbranch_scc1 L_f_gotB")
    A("s_sub_u32 s51, s51, 1"); A("s_cbranch_scc1 L_f_gotB")
    A("s_cbranch_vccnz L_f_poll")
    LB("L_f_gotB")
    hsum(208)
    if dry: A("s_cmp_eq_u32 s46, 0"); A("s_cbranch_scc0 L_f_got")
    else: A("s_branch L_f_got")
    LB("L_f_gotA")
    hsum(192)
    LB("L_f_got")
    TC(0)
    for h in range(2): A(f"v_pk_add_f32 {vr(24+2*h,2)}, {vr(40+2*h,2)}, {vr(44+2*h,2)}")
    swap_red("add_f32", [24, 25, 26, 27], [28, 29, 30, 31], 32)
    A("v_cvt_pk_bf16_f32 v28, v24, v25"); A("v_cvt_pk_bf16_f32 v29, v26, v27")
    unpack(24, 28); unpack(26, 29)
    A("v_pk_add_f32 v[24:25], v[24:25], v[48:49]"); A("v_pk_add_f32 v[26:27], v[26:27], v[50:51]")
    A("v_cvt_pk_bf16_f32 v28, v24, v25"); A("v_cvt_pk_bf16_f32 v29, v26, v27")
    unpack(24, 28); unpack(26, 29)
    C("mean and centred sum of squares of this wave's 128 values; merged across waves after the barrier")
    A("v_readfirstlane_b32 s40, v24")
    A("ds_write_b64 v5, v[28:29]"); A("s_nop 0")
    for k in range(4): A(f"v_subrev_f32 v{32+k}, s40, v{24+k}")
    A("v_add_f32 v30, v32, v33"); A("v_mul_f32 v31, v32, v32"); A("v_add_f32 v36, v34, v35"); A("v_mul_f32 v37, v33, v33")
    A("v_fmac_f32 v31, v34, v34"); A("v_fmac_f32 v37, v35, v35"); A("v_add_f32 v30, v30, v36"); A("v_add_f32 v31, v31, v37")
    dpp_red("add_f32", [30, 31]); swap_red("add_f32", [30, 31], [32, 33], 16)
    A("v_mul_f32 v32, 0x3c000000, v30"); A("v_fma_f32 v31, -v32, v30, v31"); A("v_add_f32 v30, s40, v32")
    A("ds_write_b64 v7, v[30:31]")
    TC(1)
    barrier_real("L_f_nb1")
    TC(2)
    A("ds_read_b128 v[32:35], v9"); A("ds_read_b128 v[36:39], v9 offset:16")
    A("s_waitcnt lgkmcnt(0)")
    A("v_add_f32 v30, v32, v34"); A("v_add_f32 v31, v36, v38"); A("v_add_f32 v33, v33, v35"); A("v_add_f32 v30, v30, v31"); A("v_add_f32 v37, v37, v39")
    A("v_mul_f32 v30, 0x3e800000, v30"); A("v_add_f32 v33, v33, v37")
    for k in (32, 34, 36, 38): A(f"v_sub_f32 v{k}, v{k}, v30")
    A("v_mul_f32 v32, v32, v32"); A("v_mul_f32 v36, v36, v36"); A("v_fmac_f32 v32, v34, v34"); A("v_fmac_f32 v36, v38, v38")
    bf16r(30)
    A("v_add_f32 v32, v32, v36"); A("v_mul_f32 v33, 0x3b000000, v33"); A("v_fmac_f32 v33, 0x3e800000, v32")
    for k in range(4): A(f"v_sub_f32 v{24+k}, v{24+k}, v30")
    bf16r(33)
    A("v_add_f32 v33, 0x3727c5ac, v33")
    bf16r(33)
    A("v_sqrt_f32 v33, v33")
    A("v_cvt_pk_bf16_f32 v28, v24, v25"); A("v_cvt_pk_bf16_f32 v29, v26, v27")
    bf16r(33)
    A("v_rcp_f32 v33, v33")
    unpack(24, 28); unpack(26, 29)
    for k in range(4): A(f"v_mul_f32 v{24+k}, v{24+k}, v33")
    A("v_cvt_pk_bf16_f32 v28, v24, v25"); A("v_cvt_pk_bf16_f32 v29, v26, v27")
    A("ds_write_b64 v10, v[28:29]")
    TC(3)
    A("ds_read_b128 v[40:43], v11"); A("ds_read_b128 v[44:47], v11 offset:64")
    A("s_waitcnt lgkmcnt(1)")
    for e in range(8): A(f"v_mfma_f32_16x16x32_bf16 {vr(160+4*e,4)}, v[40:43], {vr(64+4*e,4)}, 0")
    A("s_waitcnt lgkmcnt(0)")
    for e in range(8): A(f"v_mfma_f32_16x16x32_bf16 {vr(160+4*e,4)}, v[44:47], {vr(96+4*e,4)}, {vr(160+4*e,4)}")
    A("s_mov_b32 exec_lo, 0xff"); A("s_mov_b32 exec_hi, 0xff00")
    A("s_nop 5")
    for e in range(0, 8, 2): A(f"ds_write2_b32 v13, v{160+4*e}, v{164+4*e} offset0:{e} offset1:{e+1}")
    A("s_mov_b64 exec, -1")
    TC(4)
    barrier_real("L_f_nb2")
    TC(5)
    TS(7)
    for p in range(8):
        if p == 4: A("v_add_u32 v15, 1024, v14")
        A(f"ds_read2_b32 {vr(24+2*p,2)}, v{14 if p < 4 else 15} offset0:{64*(p&3)} offset1:{64*(p&3)+32}")
    for k in range(4):
        A(f"s_waitcnt lgkmcnt({6-2*k})"); A(f"v_pk_add_f32 {vr(24+4*k,2)}, {vr(24+4*k,2)}, {vr(26+4*k,2)}")
    A("v_pk_add_f32 v[24:25], v[24:25], v[28:29]"); A("v_pk_add_f32 v[32:33], v[32:33], v[36:37]"); A("v_pk_add_f32 v[24:25], v[24:25], v[32:33]")
    A("v_cvt_pk_bf16_f32 v26, v24, v25")
    unpack(24, 26)
    A(f"v_mul_f32 v26, {NL2E:#x}, v24"); A("v_exp_f32 v26, v26"); A("s_nop 0")
    A("v_add_f32 v26, 1.0, v26"); A("v_rcp_f32 v26, v26"); A("s_nop 0")
    A("v_mul_f32 v26, v24, v26")
    bf16r(26)
    A("v_mul_f32 v26, v26, v25"); A("s_nop 1")
    A("v_mov_b32_dpp v27, v26 quad_perm:[1,0,3,2] row_mask:0xf bank_mask:0xf")
    A("v_cvt_pk_bf16_f32 v26, v26, v27"); A("s_nop 1")
    for k in range(4): A(f"v_mov_b32_dpp v{40+k}, v26 row_newbcast:{2*k} row_mask:0xf bank_mask:0xf")
    A("s_nop 1")
    TC(6)
    for e in range(8): A(f"v_mfma_f32_16x16x32_bf16 {vr(160+4*e,4)}, v[40:43], {vr(128+4*e,4)}, 0")
    A("s_nop 4")
    for e in range(4): A(f"v_cndmask_b32 v{24+e}, v{160+4*e}, v{176+4*e}, s[56:57]")
    A("s_mov_b32 exec_hi, 0")
    A("global_store_dwordx4 v56, v[24:27], s[26:27] sc1")
    A("s_mov_b64 exec, -1")
    TC(7); TC_fin(8)
    TS(8)
    A("s_cmp_eq_u32 s39, 0"); A("s_cbranch_scc1 L_f_fin")
    C("every first helper wave has read the old word long ago: give the next launch's hand-offs a different tag")
    A("s_cmp_lg_u32 s39, 1"); A("s_cbranch_scc1 L_f_next"); A("s_cmp_lg_u32 s59, 0"); A("s_cbranch_scc1 L_f_next")
    if dry: A("s_cmp_eq_u32 s46, 0"); A("s_cbranch_scc1 L_f_next")
    A("v_mov_b32 v57, 0"); A("s_mov_b64 exec, 1")
    A("global_store_dword v57, v3, s[26:27] sc1")
    A("s_mov_b64 exec, -1"); A("s_branch L_f_next")
    LB("L_f_fin")
    A("s_cmp_ge_u32 s59, 16"); A("s_cbranch_scc1 L_f_next")
    C("final stage: 32 output columns")
    def oload(r):
        for i in range(7): A(f"global_load_dwordx4 {vr(r+4*i,4)}, v53, s[26:27] offset:{1024*i-3072} sc1")
    def osum(r):
        TS(9)
        for d, x, y in ((160, r, r+4), (164, r+8, r+12), (168, r+16, r+20), (160, 160, r+24)):
            for h in range(2): A(f"v_pk_add_f32 {vr(d+2*h,2)}, {vr(x+2*h,2)}, {vr(y+2*h,2)}")
    A("s_waitcnt vmcnt(1)")
    oload(192)
    if dry:
        A(f"s_add_u32 s42, s26, {DUMMY}"); A("s_addc_u32 s43, s27, 0")
        A("s_cmp_eq_u32 s46, 0"); A("s_cselect_b32 s42, s42, s22"); A("s_cselect_b32 s43, s43, s23")
    else: A("s_mov_b64 s[42:43], s[22:23]")
    A("ds_read_b64 v[44:45], v55")
    A(f"s_mov_b32 s51, {SPIN_MAX}")
    if stag: A(f"s_sleep {stag}")
    LB("L_o_poll")
    oload(220)
    A("s_waitcnt vmcnt(7)")
    any_poison(range(192, 220), 40)
    A("s_cbranch_vccz L_o_gotA")
    oload(192)
    A("s_waitcnt vmcnt(7)")
    any_poison(range(220, 248), 40)
    if dry: A("s_cmp_eq_u32 s46, 0"); A("s_cbranch_scc1 L_o_gotB")
    A("s_sub_u32 s51, s51, 1"); A("s_cbranch_scc1 L_o_gotB")
    A("s_cbranch_vccnz L_o_poll")
    LB("L_o_gotB")
    osum(220)
    if dry: A("s_cmp_eq_u32 s46, 0"); A("s_cbranch_scc0 L_o_got")
    else: A("s_branch L_o_got")
    LB("L_o_gotA")
    osum(192)
    LB("L_o_got")
    for d, y in ((164, 168), (160, 164)):
        for h in range(2): A(f"v_pk_add_f32 {vr(d+2*h,2)}, {vr(d+2*h,2)}, {vr(y+2*h,2)}")
    A("s_nop 0")
    for k in range(4): A(f"v_add_f32_dpp v{160+k}, v{160+k}, v{160+k} row_ror:8 row_mask:0xf bank_mask:0xf")
    swap_red("add_f32", [160, 161, 162, 163], [164, 165, 166, 167], 16)
    swap_red("add_f32", [160, 161, 162, 163], [164, 165, 166, 167], 32)
    A("v_cvt_pk_bf16_f32 v164, v160, v161"); A("v_cvt_pk_bf16_f32 v165, v162, v163")
    unpack(160, 164); unpack(162, 165)
    A("s_waitcnt lgkmcnt(0)")
    unpack(164, 44); unpack(166, 45)
    A("v_pk_add_f32 v[160:161], v[160:161], v[164:165]"); A("v_pk_add_f32 v[162:163], v[162:163], v[166:167]")
    A("v_cvt_pk_bf16_f32 v160, v160, v161"); A("v_cvt_pk_bf16_f32 v161, v162, v163")
    A("s_mov_b64 exec, 0xff")
    A("global_store_dwordx2 v54, v[160:161], s[42:43] " + outf)
    A("s_mov_b64 exec, -1")
    LB("L_f_next")
    TS(10)
    if dry:
        A("s_cmp_eq_u32 s46, 1"); A("s_cbranch_scc1 L_hdone")
        A("s_mov_b32 s46, 1")
        gate_wait("L_f_gate", 2 if g2 else 1)
        A("s_branch L_f_pass")
    LB("L_hdone")
    TS_flush("H")
    LB("L_end")
    A("s_endpgm")
    L.append('.section .rodata,"a"'); L.append(".p2align 6"); L.append(f".amdhsa_kernel {NAME}_kernel")
    for s in ("next_free_vgpr 256", "next_free_sgpr 102" if fine else "next_free_sgpr 96", "accum_offset 256", "group_segment_fixed_size 0", "kernarg_size 96",
              "user_sgpr_count 2", "user_sgpr_kernarg_segment_ptr 1", "system_sgpr_workgroup_id_x 1", "float_denorm_mode_32 3"):
        L.append("  .amdhsa_" + s)
    L.append(".end_amdhsa_kernel")
    return "\n".join(L) + "\n"

if __name__ == "__main__":
    kw = eval("dict(" + (sys.argv[2] if len(sys.argv) > 2 else "") + ")")
    open(sys.argv[1], "w").write(gen(**kw))
```

```python
import sys
NAME = "sequential_preLN__gqa_block_cached__glu_gated_swiglu__decode"

WQL = 0x20000; SP = 0x20000
QL = 0x24400; SML = 0x24800; CNT = 0x24880; GATE = 0x24884; QRDY = 0x24888; WQC = 0x2488C; TAGL = 0x24890
WB = 0x25000; OB = 0x25200; RED = 0x25800; HB = 0x26000; HM = 0x26400; ST = 0x26600; HN = 0x26800; EL = 0x27000; TQ = 0x27400; REDC = 0x27800
LDS_BYTES = 163840
EPOCH = 0; ALIVE = 0x400; QH = 0x800; AR = 0xC00; POOL = 0xC000; PPOOL = 0xF8000; QBUF = 0xD0000; ML = 0xF0000; H2 = 0x50000; PART = 0x10000; H3 = 0x90000; DUMMY = 0xB0000; TSB = 0x100000
TAGC = 0x9E3779B9
L2E = 0x3FB8AA3B; NL2E = 0xBFB8AA3B; SCALE = 0x3DB504F3
SPIN_MAX = 1 << 16


HEADER = """
;
"""

def gen(PACE=5, PACE0=5, S=27, NG=8, touch=False, qsleep=8, early=False, hold=False, gsleep=2, jitf=False, jitw=False, wqmap=False, ksplit=True, lazy=True, rot=0, rotm='x', F=0, fk=False, wgt=False, sq=False, QW=8, sa=False, XS=16, rep=True, qmask=0xffff, nopois=False, noalive=False, I1=16, I2=22, IW=1, IU=1, fuse=True, PRE=5, ilv=False, burst=True, KP=(2,1,1), XB=24, hmove=False, pfh=False, fine=False, wburst=False, w13f=None, WTRIG=0, hint2=2, h2sleep=0, outf='sc1', qgf='sc1', pof='sc1', qsf='sc1', xf='', pwoff=0, PACEB=15, pw=0, pws='mpho', pwf='sc1', TPOS=4, g2=True, R1=8, R2=5, barpos=0, pf=True, stag=3, wend=False, rr=True, noswz=False, nocomp=False, noh=False, NV=4, VSTART=2, VSTEP=2, VW=0, QTH=20, MLTH=20, noroles=False, dbgts=False, prog=False, ts=False, dry=False, wq_flags="nt", w_flags="nt", kv_flags="nt"):
    PR = 128 - 4 * S; D = 8 * PR; PRM = -(-(1 << 16) // PR)
    assert all((t * PRM) >> 16 == t // PR for t in range(D))
    P = 4 * (S - F) if F else 0
    L = []
    def A(s): L.append("  " + s)
    def LB(s): L.append(s + ":")
    def C(s): L.append("  ; " + s)
    def vr(a, n): return f"v[{a}:{a+n-1}]"
    def TS(k):
        if ts and not fine:
            A("s_memrealtime s[60:61]"); A("s_waitcnt lgkmcnt(0)"); A(f"s_mov_b32 s{64+k}, s60")
    def TC(k):
        if fine:
            A(f"s_memtime s[{80+2*k}:{81+2*k}]")
    def TC_fin(n):
        if fine:
            A("s_waitcnt lgkmcnt(0)")
            for k in range(n): A(f"s_mov_b32 s{64+k}, s{80+2*k}")
    def TS_flush(kind="S"):
        if ts and dbgts:
            A("s_mov_b64 exec, -1"); A("v_mov_b32 v250, 0")
            if kind == "S":
                A("s_not_b32 s62, s64"); A("v_writelane_b32 v250, s62, 0"); A("s_not_b32 s62, s70"); A("v_writelane_b32 v250, s62, 13")
                for lane, k in ((1, 6), (2, 1), (3, 2), (4, 5)): A(f"v_writelane_b32 v250, s{64+k}, {lane}")
            else:
                for lane, k in ((5, 1), (6, 3), (7, 4)): A(f"v_writelane_b32 v250, s{64+k}, {lane}")
                A("s_not_b32 s62, s68"); A("s_cmp_eq_u32 s68, 0"); A("s_cselect_b32 s62, 0, s62"); A("v_writelane_b32 v250, s62, 14")
                A("s_cmp_eq_u32 s47, 0"); A("s_cbranch_scc0 L_dbgf")
                A("v_writelane_b32 v250, s70, 8"); A("v_writelane_b32 v250, s71, 9"); A("s_branch L_dbge")
                LB("L_dbgf")
                A("v_writelane_b32 v250, s70, 10"); A("v_writelane_b32 v250, s72, 11"); A("v_writelane_b32 v250, s74, 12")
                LB("L_dbge")
            A("v_mbcnt_lo_u32_b32 v251, -1, 0"); A("v_mbcnt_hi_u32_b32 v251, -1, v251"); A("v_lshlrev_b32 v251, 2, v251")
            A("s_mov_b64 exec, 0xffff")
            A("global_atomic_umax v251, v250, s[24:25] sc1")
        elif ts:
            A("s_mov_b64 exec, -1")
            A("v_mov_b32 v250, 0")
            for k in range(16): A(f"v_writelane_b32 v250, s{64+k}, {k}")
            A("v_mbcnt_lo_u32_b32 v251, -1, 0"); A("v_mbcnt_hi_u32_b32 v251, -1, v251")
            A("s_lshl_b32 s62, s2, 3"); A("s_add_u32 s62, s62, s3"); A("s_lshl_b32 s62, s62, 6"); A(f"s_add_u32 s62, s62, {TSB}")
            A("v_lshl_add_u32 v251, v251, 2, s62")
            A("s_mov_b64 exec, 0xffff")
            A("global_store_dword v251, v250, s[26:27]")
    def dpp_red(op, xs):
        for rot in (8, 4, 2, 1):
            if len(xs) < 3: A(f"s_nop {2 - len(xs)}" if len(xs) < 2 else "s_nop 0")
            for x in xs: A(f"v_{op}_dpp v{x}, v{x}, v{x} row_ror:{rot} row_mask:0xf bank_mask:0xf")
    def swap_red(op, xs, ts_, which):
        for x, t in zip(xs, ts_): A(f"v_mov_b32 v{t}, v{x}")
        A("s_nop 1")
        for x, t in zip(xs, ts_): A(f"v_permlane{which}_swap_b32 v{x}, v{t}")
        for x, t in zip(xs, ts_): A(f"v_{op} v{x}, v{x}, v{t}")
    def unpack(dst, src):
        A(f"v_lshlrev_b32 v{dst}, 16, v{src}"); A(f"v_and_b32 v{dst+1}, 0xffff0000, v{src}")
    def bf16r(x):
        A(f"v_cvt_pk_bf16_f32 v{x}, v{x}, v{x}"); A(f"v_and_b32 v{x}, 0xffff0000, v{x}")
    def layernorm(src, f, t):
        for k in range(4): unpack(f + 2 * k, src + k)
        A(f"v_add_f32 v{t}, v{f}, v{f+1}"); A(f"v_add_f32 v{t+1}, v{f+2}, v{f+3}")
        A(f"v_add_f32 v{t+2}, v{f+4}, v{f+5}"); A(f"v_add_f32 v{t+3}, v{f+6}, v{f+7}")
        A(f"v_add_f32 v{t}, v{t}, v{t+1}"); A(f"v_add_f32 v{t+2}, v{t+2}, v{t+3}"); A(f"v_add_f32 v{t}, v{t}, v{t+2}")
        dpp_red("add_f32", [t]); swap_red("add_f32", [t], [t+1], 16); swap_red("add_f32", [t], [t+1], 32)
        A(f"v_mul_f32 v{t}, 0x3b000000, v{t}")
        A(f"v_sub_f32 v{t+2}, v{f}, v{t}"); A(f"v_mul_f32 v{t+1}, v{t+2}, v{t+2}")
        for k in range(1, 8):
            A(f"v_sub_f32 v{t+2}, v{f+k}, v{t}"); A(f"v_fmac_f32 v{t+1}, v{t+2}, v{t+2}")
        bf16r(t)
        dpp_red("add_f32", [t+1]); swap_red("add_f32", [t+1], [t+2], 16); swap_red("add_f32", [t+1], [t+2], 32)
        A(f"v_mul_f32 v{t+1}, 0x3b000000, v{t+1}")
        bf16r(t+1)
        A(f"v_add_f32 v{t+1}, 0x3727c5ac, v{t+1}")
        bf16r(t+1)
        A(f"v_sqrt_f32 v{t+1}, v{t+1}")
        for k in range(8): A(f"v_sub_f32 v{f+k}, v{f+k}, v{t}")
        bf16r(t+1)
        A(f"v_rcp_f32 v{t+1}, v{t+1}")
        for k in range(4): A(f"v_cvt_pk_bf16_f32 v{src+k}, v{f+2*k}, v{f+2*k+1}")
        for k in range(4): unpack(f + 2 * k, src + k)
        for k in range(8): A(f"v_mul_f32 v{f+k}, v{f+k}, v{t+1}")
        for k in range(4): A(f"v_cvt_pk_bf16_f32 v{src+k}, v{f+2*k}, v{f+2*k+1}")
    def transpose8(dst, src):
        for e in range(8):
            for j in range(4):
                a = src + 4 * (2 * j) + (e >> 1); b = src + 4 * (2 * j + 1) + (e >> 1)
                A(f"v_perm_b32 v{dst+4*e+j}, v{b}, v{a}, s{45 if e & 1 else 44}")
    def any_poison(regs, t):
        regs = list(regs)
        A(f"v_max3_u32 v{t}, v{regs[0]}, v{regs[1]}, v{regs[2]}" if len(regs) >= 3 else f"v_max_u32 v{t}, v{regs[0]}, v{regs[1]}")
        rest = regs[3:] if len(regs) >= 3 else []
        while len(rest) >= 2:
            A(f"v_max3_u32 v{t}, v{t}, v{rest[0]}, v{rest[1]}"); rest = rest[2:]
        if rest: A(f"v_max_u32 v{t}, v{t}, v{rest[0]}")
        A(f"v_cmp_eq_u32 vcc, -1, v{t}")
    def barrier_real(lbl):
        A("s_waitcnt lgkmcnt(0)")
        if dry: A("s_cmp_eq_u32 s46, 0"); A(f"s_cbranch_scc1 {lbl}")
        A("s_barrier"); LB(lbl)
    def scheck(lbl, off, n):
        A(f"s_mov_b32 s51, {SPIN_MAX}")
        for r in range(0, n, 16):
            w = min(16, n - r)
            LB(f"{lbl}_{r}")
            A(f"s_load_dwordx{w} s[80:{79+w}], s[26:27], s41 glc")
            A("s_sub_u32 s51, s51, 1"); A(f"s_cbranch_scc1 {lbl}_x")
            A("s_waitcnt lgkmcnt(0)")
            for k in range(w): A(f"s_xor_b32 s{80+k}, s{80+k}, s58")
            for k in range(1, w): A(f"s_or_b32 s80, s80, s{80+k}")
            A(f"s_cbranch_scc1 {lbl}_{r}")
            if r + 16 < n: A("s_add_u32 s41, s41, 64")
        LB(f"{lbl}_x")
        A("s_waitcnt lgkmcnt(0)")
    def alive(tag):
        if wend: A("s_branch L_hdone")
        if noalive: return
        C("every workgroup reset its hand-off slots before it wrote its word here")
        if sa:
            A("v_readfirstlane_b32 s58, v3")
            if tag == "w": A("s_lshl_b32 s41, s36, 7"); A(f"s_add_u32 s41, s41, {ALIVE}"); scheck("L_alw", 0, 32)
            else: A(f"s_mov_b32 s41, {AR}"); scheck("L_alf", 0, 120)
            return
        A(f"v_lshlrev_b32 v4, 4, v0"); A(f"v_add_u32 v4, {ALIVE}, v4")
        A(f"s_mov_b32 s51, {SPIN_MAX}")
        LB(f"L_alive_{tag}")
        A("global_load_dwordx4 v[24:27], v4, s[26:27] sc1")
        A("s_sub_u32 s51, s51, 1"); A(f"s_cbranch_scc1 L_alive_ok_{tag}")
        A("s_waitcnt vmcnt(0)")
        for k in range(4): A(f"v_xor_b32 v{24+k}, v{24+k}, v3")
        A("v_or3_b32 v24, v24, v25, v26"); A("v_or_b32 v24, v24, v27")
        A("v_cmp_ne_u32 vcc, 0, v24"); A(f"s_cbranch_vccnz L_alive_{tag}")
        LB(f"L_alive_ok_{tag}")
        A("s_waitcnt vmcnt(0)")
    def gate_wait(lbl, lvl=1):
        A(f"v_mov_b32 v1, {GATE}")
        LB(lbl)
        A(f"s_sleep {gsleep}"); A("ds_read_b32 v2, v1"); A("s_waitcnt lgkmcnt(0)"); A("v_readfirstlane_b32 s40, v2")
        A(f"s_cmp_lt_u32 s40, {lvl}"); A(f"s_cbranch_scc1 {lbl}")

    L.extend(HEADER.strip("\n").split("\n"))
    L.append(f"; @launch grid=(256,1,1) block=(512,1,1) lds={LDS_BYTES}")
    L.append('.amdgcn_target "amdgcn-amd-amdhsa--gfx950"')
    L.append(".text"); L.append(f".globl {NAME}_kernel"); L.append(".p2align 8"); L.append(f".type {NAME}_kernel,@function")
    LB(f"{NAME}_kernel")
    A("s_cmp_ge_u32 s2, 256"); A("s_cbranch_scc1 L_end")
    A("s_load_dwordx16 s[4:19], s[0:1], 0")
    A("s_load_dwordx8 s[20:27], s[0:1], 64")
    if ts:
        for k in range(16): A(f"s_mov_b32 s{64+k}, 0")
        A("s_memrealtime s[60:61]")
    A("v_lshrrev_b32 v1, 6, v0")
    A("v_and_b32 v0, 63, v0")
    A("v_readfirstlane_b32 s3, v1")
    def codepf():
        if pf:
            C("one idle wave pulls this kernel's code towards the L2 while the others start")
            A("s_cmp_lg_u32 s3, 5"); A("s_cbranch_scc1 L_nopf")
            A("s_getpc_b64 s[40:41]"); LB("L_pc")
            A(f"s_sub_u32 s40, s40, L_pc-{NAME}_kernel"); A("s_subb_u32 s41, s41, 0")
            A("v_lshlrev_b32 v8, 7, v0"); A(f"v_min_u32 v9, L_end-{NAME}_kernel-8192, v8")
            A("global_load_dword v10, v8, s[40:41] " + xf); A("s_add_u32 s40, s40, 8192"); A("s_addc_u32 s41, s41, 0"); A("global_load_dword v10, v9, s[40:41] " + xf)
            LB("L_nopf")
    if not pfh: codepf()
    A("s_lshr_b32 s36, s2, 5")
    A("s_and_b32 s37, s2, 31")
    A("s_and_b32 s38, s2, 7"); A("s_lshl_b32 s38, s38, 2"); A("s_lshr_b32 s39, s37, 3"); A("s_add_u32 s38, s38, s39")
    A(f"v_mov_b32 v1, {CNT}")
    for k in range(4): A(f"v_mov_b32 v{4+k}, 0")
    A("ds_write_b128 v1, v[4:7]")
    def hentry():
        if pfh: codepf()
        A("v_mov_b32 v16, 0"); A("v_lshlrev_b32 v1, 4, v0")
        A("s_lshl_b32 s40, s36, 10"); A(f"s_add_u32 s40, s40, {POOL}"); A("v_and_b32 v19, 3, v0"); A("v_lshl_add_u32 v19, v19, 8, s40")
        A("s_waitcnt lgkmcnt(0)")
        A("s_cmp_lg_u32 s3, 4"); A("s_cbranch_scc1 L_hbar")
        if F:
            A("s_cmp_lt_u32 s37, 24"); A("s_cbranch_scc1 L_hx")
            A("s_and_b32 s40, s2, 7"); A("s_lshl_b32 s41, s36, 3"); A("s_add_u32 s40, s40, s41"); A("s_lshl_b32 s40, s40, 9"); A(f"s_add_u32 s40, s40, {PPOOL}")
            A("v_and_b32 v18, 3, v0"); A("v_lshl_add_u32 v18, v18, 7, s40")
            A("global_store_dword v18, v16, s[26:27] sc1")
        A("s_cmp_lg_u32 s37, 31"); A("s_cbranch_scc1 L_hx")
        A("global_store_dword v19, v16, s[26:27] sc1")
        LB("L_hx")
        A("global_load_dwordx4 v[4:7], v1, s[4:5]")
        A("global_load_dword v3, v16, s[26:27] sc1")
        LB("L_hbar")
        A("s_barrier"); A("s_branch L_helper")
    if hmove: A("s_cmp_ge_u32 s3, 4"); A("s_cbranch_scc1 L_hentry")
    else:
        A("s_cmp_lt_u32 s3, 4"); A("s_cbranch_scc1 L_stream"); hentry(); LB("L_stream")

    C("streaming waves: K/V tiles of 16 keys through a 4-slot LDS ring per wave")
    A("v_lshrrev_b32 v20, 4, v0")
    A("v_and_b32 v21, 15, v0")
    A("v_lshlrev_b32 v22, 1, v20")
    A("v_xor_b32 v22, v22, v21")
    A("v_lshlrev_b32 v22, 4, v22")
    A("v_lshl_add_u32 v2, v20, 8, v22")
    A("v_xor_b32 v3, 0x80, v2"); A("v_xor_b32 v4, 16, v2"); A("v_xor_b32 v5, 0x90, v2")
    if noswz:
        for i in range(4): A(f"v_lshlrev_b32 v{2+i}, 4, v0")
    C("four workgroups share a 2 MiB page of K and V (rows of 4 tiles interleaved); the last rows of all pages form a ticket pool")
    A("s_and_b32 s40, s2, 7"); A("s_lshl_b32 s41, s36, 3"); A("s_add_u32 s40, s40, s41"); A("s_lshl_b32 s40, s40, 21")
    A("s_lshl_b32 s41, s39, 14"); A("s_add_u32 s40, s40, s41")
    A("s_lshl_b32 s41, s3, 12"); A("s_add_u32 s40, s40, s41")
    if rot:
        A(f"s_and_b32 s59, s40, {~0x1fffff & 0xffffffff:#x}"); A(f"s_add_u32 s59, s59, {4*S*16384}")
        if rotm == 'x': A("s_and_b32 s41, s2, 7")
        elif rotm == 'h': A("s_mov_b32 s41, s36")
        else: A("s_and_b32 s41, s2, 7"); A("s_xor_b32 s41, s41, s36")
        A(f"s_mul_i32 s41, s41, {rot * 65536}"); A("s_add_u32 s40, s40, s41")
    A("s_lshl_b32 s41, s3, 15")
    A("s_mov_b32 s30, 0x8000000"); A("s_mov_b32 s31, 0x20000"); A("s_mov_b32 s34, 0x8000000"); A("s_mov_b32 s35, 0x20000")
    A("s_mov_b32 s42, 0x2000")
    A("s_mov_b32 s44, 4")
    C("first: 32 rows x 64 columns of wq per wave into LDS (used by the first helper wave)")
    A("v_lshrrev_b32 v22, 3, v0"); A("v_and_b32 v23, 7, v0"); A("v_lshlrev_b32 v22, 13, v22"); A("v_lshl_add_u32 v22, v23, 4, v22")
    A("s_lshl_b32 s47, s39, 20"); A("s_lshl_b32 s48, s3, 18"); A("s_add_u32 s47, s47, s48"); A("s_lshl_b32 s48, s36, 10"); A("s_add_u32 s47, s47, s48")
    A("s_and_b32 s48, s2, 7"); A("s_lshl_b32 s48, s48, 7"); A("s_add_u32 s47, s47, s48")
    A("s_lshl_b32 s48, s3, 12"); A(f"s_add_u32 m0, s48, {WQL}")
    A("s_waitcnt lgkmcnt(0)")
    if ts: A("s_mov_b32 s64, s60")
    A("s_add_u32 s48, s10, s47"); A("s_addc_u32 s49, s11, 0")
    for k in range(4):
        if k: A("v_add_u32 v22, 0x10000, v22"); A("s_add_u32 m0, m0, 1024"); A("s_nop 0")
        else: A("s_mov_b32 s28, s6")
        A(f"global_load_lds_dwordx4 v22, s[48:49] {wq_flags}")
    A("s_and_b32 s29, s7, 0xffff"); A("s_mov_b32 s32, s8"); A("s_and_b32 s33, s9, 0xffff")
    if barpos == 0: A("s_barrier")
    TS(6)
    def adv():
        A("s_add_u32 s40, s40, 65536")
        if rot: A("s_cmp_ge_u32 s40, s59"); A(f"s_cselect_b32 s48, {4*S*16384}, 0"); A("s_sub_u32 s40, s40, s48")
    def issue_tile(pace, tk=False):
        def ticket(i):
            if tk and i == TPOS:
                A("s_cmp_lg_u32 s43, 0"); A(f"s_cbranch_scc1 L_notk{tk}")
                if wgt:
                    A("s_mov_b64 exec, 1"); A("ds_add_rtn_u32 v22, v23, v119"); A("s_mov_b64 exec, -1")
                    A("s_waitcnt lgkmcnt(0)"); A("v_readfirstlane_b32 s48, v22")
                    A("s_cmp_eq_u32 s48, 0"); A("s_cselect_b32 s56, 1, 0"); A(f"s_cbranch_scc0 L_notk{tk}")
                A("s_mov_b32 s58, 1"); A(f"s_atomic_add s58, s[26:27], {'s56' if F else 's57'} glc")
                LB(f"L_notk{tk}")
        A("s_mov_b32 m0, s41")
        for i in range(4):
            ticket(i); A(f"s_waitcnt vmcnt({pace})"); A(f"buffer_load_dwordx4 v{2+i}, s[28:31], s40 offen offset:{i*1024} {kv_flags} lds")
        A("s_add_u32 m0, s41, 4096")
        for i in range(4):
            ticket(4 + i); A(f"s_waitcnt vmcnt({pace})"); A(f"buffer_load_dwordx4 v{2+i}, s[32:35], s40 offen offset:{i*1024} {kv_flags} lds")
        ticket(8)
        adv()
    LB("L_fill")
    issue_tile(PACE0)
    A("s_xor_b32 s41, s41, s42"); A("s_xor_b32 s42, s42, 0x4000")
    A("s_cmp_lg_u32 s44, 4"); A("s_cbranch_scc1 L_nosig")
    if barpos == 1: A("s_barrier")
    A("s_waitcnt vmcnt(8)"); A("v_mov_b32 v22, 1"); A("s_mov_b64 exec, 1")
    A(f"ds_add_u32 v1, v22 offset:{WQC - CNT}"); A("s_mov_b64 exec, -1")
    LB("L_nosig")
    A("s_sub_u32 s44, s44, 1"); A("s_cmp_lg_u32 s44, 0"); A("s_cbranch_scc1 L_fill")
    if hmove:
        A("s_branch L_filled"); LB("L_hentry"); hentry(); LB("L_filled")
    TS(1)
    A("s_lshl_b32 s46, s36, 24"); A("s_lshl_b32 s47, s3, 12"); A("s_add_u32 s46, s46, s47"); A(f"s_add_u32 s46, s46, {4*S*16384}")
    if wgt:
        assert not F and D + 2 <= 256
        A("s_lshl_b32 s57, s36, 10"); A(f"s_add_u32 s57, s57, {POOL}")
        A("s_mov_b32 s56, 0")
    else:
        A("s_lshl_b32 s57, s36, 2"); A("s_add_u32 s57, s57, s3"); A("s_lshl_b32 s57, s57, 8"); A(f"s_add_u32 s57, s57, {POOL}")
    A("s_mov_b32 s58, 0")
    if F:
        A("s_and_b32 s56, s2, 7"); A("s_lshl_b32 s47, s36, 3"); A("s_add_u32 s56, s56, s47")
        A("s_lshl_b32 s59, s56, 21"); A("s_lshl_b32 s47, s3, 12"); A("s_add_u32 s59, s59, s47"); A(f"s_add_u32 s59, s59, {4*F*16384}")
        A("s_lshl_b32 s56, s56, 2"); A("s_add_u32 s56, s56, s3"); A("s_lshl_b32 s56, s56, 7"); A(f"s_add_u32 s56, s56, {PPOOL}")
    C("addresses of the final merge")
    A("s_lshl_b32 s47, s3, 11"); A(f"s_add_u32 s47, s47, {SP}")
    A("v_lshlrev_b32 v122, 9, v21"); A("v_lshl_add_u32 v122, v20, 4, v122"); A("v_add_u32 v122, s47, v122")
    A("s_lshl_b32 s47, s3, 5"); A(f"s_add_u32 s47, s47, {SML}")
    A("v_lshl_add_u32 v123, v21, 3, s47")
    A(f"v_lshlrev_b32 v124, 5, v0"); A(f"v_add_u32 v124, {SP}, v124")
    A(f"v_lshlrev_b32 v125, 3, v20"); A(f"v_add_u32 v125, {SML}, v125")
    A("s_lshl_b32 s47, s36, 15"); A("s_lshl_b32 s48, s38, 8"); A("s_add_u32 s47, s47, s48"); A(f"s_add_u32 s47, s47, {PART}")
    A("v_lshlrev_b32 v126, 13, v20"); A("v_lshl_add_u32 v126, v21, 4, v126"); A("v_add_u32 v126, s47, v126")
    A("s_lshl_b32 s47, s36, 12"); A("s_lshl_b32 s48, s38, 7"); A("s_add_u32 s47, s47, s48"); A(f"s_add_u32 s47, s47, {ML}")
    A("v_lshl_add_u32 v127, v20, 3, s47")
    A(f"v_mov_b32 v1, {CNT}"); A("v_mov_b32 v119, 1")
    A(f"s_mov_b32 s43, {(F if F else S) - 4}")
    A("v_lshlrev_b32 v23, 1, v21"); A("v_and_b32 v23, 15, v23"); A("v_lshrrev_b32 v24, 3, v21"); A("v_or_b32 v23, v23, v24")
    A("v_and_b32 v24, 1, v20"); A("v_lshlrev_b32 v24, 1, v24"); A("v_lshrrev_b32 v25, 1, v20"); A("v_or_b32 v24, v24, v25")
    A("v_xor_b32 v23, v23, v24"); A("v_lshlrev_b32 v23, 4, v23"); A("v_lshl_add_u32 v23, v21, 8, v23")
    A("v_add_u32 v6, s41, v23")
    for s in range(1, 4): A(f"v_xor_b32 v{6+s}, {s << 6}, v6")
    A("v_lshrrev_b32 v25, 2, v0")
    A("v_lshlrev_b32 v26, 1, v25"); A("v_and_b32 v26, 15, v26"); A("v_lshrrev_b32 v27, 3, v25"); A("v_or_b32 v26, v26, v27")
    A("v_bfe_u32 v27, v0, 1, 1"); A("v_xor_b32 v26, v26, v27"); A("v_lshlrev_b32 v26, 4, v26")
    A("v_lshl_add_u32 v26, v25, 8, v26")
    A("v_and_b32 v27, 1, v0"); A("v_lshl_add_u32 v26, v27, 3, v26")
    A("s_add_u32 s44, s41, 4096")
    A("v_add_u32 v10, s44, v26")
    for t in range(1, 8): A(f"v_xor_b32 v{10+t}, {t << 5}, v10")
    A("v_and_b32 v25, 3, v21"); A("v_lshlrev_b32 v25, 8, v25"); A("v_lshl_add_u32 v25, v24, 4, v25"); A(f"v_add_u32 v108, {QL}, v25")
    if wgt: A(f"v_mov_b32 v23, {EL}")
    A("v_mov_b32 v18, 0xff7fffff"); A("v_mov_b32 v19, 0x7f7fffff"); A("v_mov_b32 v109, 0")
    for k in range(32): A(f"v_mov_b32 v{76+k}, 0")
    A(f"s_mov_b32 s45, {L2E}"); A("s_mov_b32 s44, 4"); A("s_mov_b32 s54, 0x2000"); A("s_mov_b32 s55, 4")
    if ts: A("s_mov_b32 s51, 0")
    A(f"v_mov_b32 v116, {QRDY}")
    if fk: A("s_mov_b32 s62, s39")
    A(f"s_mul_i32 s39, s39, {IU}"); A(f"s_mul_i32 s52, s3, {IW}"); A("s_add_u32 s39, s39, s52"); A("s_mov_b32 s52, 0"); A(f"s_mul_i32 s53, s3, {VW}"); A(f"s_add_u32 s53, s53, {VSTART}")
    if noh: A("s_branch L_qok")
    C("while q is not there yet, keep streaming: park up to NV more tiles in registers")
    for k in range(NV):
        A("ds_read_b32 v117, v116"); A("s_waitcnt lgkmcnt(0)"); A("v_readfirstlane_b32 s48, v117")
        A("s_cmp_lg_u32 s48, 0"); A("s_cbranch_scc1 L_qok")
        for i in range(8):
            A(f"s_waitcnt vmcnt({PACE0})"); A(f"buffer_load_dwordx4 {vr(128+32*k+4*i,4)}, v{2+(i&3)}, s[{28 if i < 4 else 32}:{31 if i < 4 else 35}], s40 offen offset:{(i&3)*1024} {kv_flags}")
        adv(); A("s_add_u32 s52, s52, 1"); A("s_sub_u32 s43, s43, 1")
    LB("L_qwait")
    A("ds_read_b32 v117, v116"); A("s_waitcnt lgkmcnt(0)"); A("v_readfirstlane_b32 s48, v117")
    A("s_cmp_lg_u32 s48, 0"); A("s_cbranch_scc1 L_qok"); A("s_sleep 1"); A("s_branch L_qwait")
    LB("L_qok")
    if ts: A("s_add_u32 s51, s51, s52"); A("s_mov_b32 s77, s52")
    TS(2)
    for s in range(4): A(f"ds_read_b128 {vr(24+4*s,4)}, v108 offset:{64*s}")
    if ilv:
        def kload(i, pace=PACE): A(f"s_waitcnt vmcnt({pace})"); A(f"buffer_load_dwordx4 v{2+i}, s[28:31], s40 offen offset:{i*1024} {kv_flags} lds")
        def kblock(lo, n, lbl):
            if n:
                A("s_bitcmp1_b32 s62, 0"); A(f"s_cbranch_scc0 {lbl}")
                if lo == 0: A("s_mov_b32 m0, s41")
                for i in range(lo, lo + n): kload(i)
                LB(lbl)
        A("s_mov_b32 s55, 3"); A("s_mov_b32 s56, -16")
        LB("L_tile")
        A("s_mov_b32 s62, 0")
        A("s_cmp_gt_u32 s44, 1"); A("s_cbranch_scc1 L_dec")
        C("last tile: start on K while V is still arriving")
        A("s_waitcnt vmcnt(4)")
        TS(3); TC(0)
        for s in range(4): A(f"ds_read_b128 {vr(40+4*s,4)}, v{6+s}")
        for s in range(4):
            A(f"s_waitcnt lgkmcnt({3-s})")
            A(f"v_mfma_f32_16x16x32_bf16 v[72:75], {vr(40+4*s,4)}, {vr(24+4*s,4)}, {'0' if s == 0 else 'v[72:75]'}")
        A("s_branch L_sm")
        LB("L_empty")
        if NV:
            A("s_cmp_eq_u32 s52, 0"); A("s_cbranch_scc1 L_empty2")
            A("s_waitcnt vmcnt(0)"); A("s_mov_b32 s62, 4"); A("s_branch L_go")
            LB("L_empty2")
        if NV:
            A("s_sub_u32 s48, s39, s56"); A("s_cmp_gt_u32 s48, 2"); A("s_cbranch_scc1 L_empty3")
            A("s_waitcnt vmcnt(0)")
            LB("L_empty3")
        A(f"ds_write_b32 v1, v119 offset:{GATE - CNT}"); A("s_mov_b32 s55, 0")
        if ts: A("s_add_u32 s79, s51, 4"); TS(14)
        A("s_branch L_go")
        LB("L_dec")
        C("s62: what refills the free slot while this tile is computed: 1 loads, 3 loads with the second half unthrottled, 4 a parked tile, 0 nothing")
        C("s55: wanted number of tiles in the ring (3 at first, 2 later so that nothing waits unprocessed at the end, 0 when the pool is empty)")
        A("s_waitcnt vmcnt(8) lgkmcnt(0)")
        A("s_add_u32 s39, s39, 1")
        A("s_cmp_gt_u32 s44, s55"); A("s_cbranch_scc1 L_go")
        A("s_mov_b32 s63, 1")
        if NV:
            A("s_cmp_eq_u32 s52, 0"); A("s_cbranch_scc1 L_np")
            A("s_sub_u32 s53, s53, 1"); A("s_cmp_eq_u32 s53, 0"); A("s_cselect_b32 s62, 4, 0"); A("s_cbranch_scc1 L_go")
            A("s_cmp_eq_u32 s53, 1"); A(f"s_cselect_b32 s63, {3 if burst else 1}, 1"); A("s_branch L_src")
            LB("L_np")
        A(f"s_cmp_lt_u32 s39, {I2}"); A("s_cbranch_scc1 L_src")
        A("s_cmp_eq_u32 s55, 3"); A(f"s_cselect_b32 s63, {3 if burst else 1}, 1"); A("s_mov_b32 s55, 2")
        LB("L_src")
        A("s_cmp_eq_u32 s43, 0"); A("s_cbranch_scc1 L_dyn")
        A("s_sub_u32 s43, s43, 1"); A("s_mov_b32 s62, s63"); A("s_branch L_go")
        LB("L_dyn")
        A(f"s_cmp_ge_u32 s58, {D}"); A("s_cbranch_scc1 L_empty")
        A("s_and_b32 s49, s58, 7"); A("s_lshr_b32 s50, s58, 3")
        A("s_lshl_b32 s49, s49, 21"); A("s_lshl_b32 s50, s50, 14"); A("s_add_u32 s40, s46, s49"); A("s_add_u32 s40, s40, s50")
        A(f"s_cmp_ge_u32 s58, {D - XB}"); A("s_cselect_b32 s62, 3, s63")
        C("a wave that got one of the last rows does not ask again (the others still drain the counter)")
        A(f"s_cmp_ge_u32 s58, {D - XS}"); A("s_cselect_b32 s62, 11, s62"); A(f"s_cselect_b32 s58, {D}, s58")
        LB("L_go")
        for s in range(4): A(f"ds_read_b128 {vr(40+4*s,4)}, v{6+s}")
        for t in range(8): A(f"ds_read_b64_tr_b16 {vr(56+2*t,2)}, v{10+t}")
        kblock(0, KP[0], "L_k0")
        for s in range(4):
            A(f"s_waitcnt lgkmcnt({11-s})")
            A(f"v_mfma_f32_16x16x32_bf16 v[72:75], {vr(40+4*s,4)}, {vr(24+4*s,4)}, {'0' if s == 0 else 'v[72:75]'}")
        LB("L_sm")
        for k in range(12): A(f"v_xor_b32 v{6+k}, s54, v{6+k}")
        kblock(KP[0], KP[1], "L_k1")
        A("v_cvt_pk_bf16_f32 v110, v72, v73"); A("v_cvt_pk_bf16_f32 v111, v74, v75")
        unpack(112, 110); unpack(114, 111)
        for k in range(4): A(f"v_mul_f32 v{112+k}, {SCALE:#x}, v{112+k}")
        A("v_cvt_pk_bf16_f32 v110, v112, v113"); A("v_cvt_pk_bf16_f32 v111, v114, v115")
        unpack(112, 110); unpack(114, 111)
        A("v_max3_f32 v116, v112, v113, v114"); A("v_max_f32 v117, v115, v18")
        for k in range(4): A(f"v_fma_f32 v{72+k}, v{112+k}, s45, v19")
        A("v_max_f32 v110, v116, v117"); A("v_max_f32 v111, v116, v117")
        A("v_cmp_gt_f32 vcc, v110, v18")
        A("v_mov_b32 v118, 1.0")
        A("s_cbranch_vccnz L_newmax")
        for k in range(4): A(f"v_exp_f32 v{112+k}, v{72+k}")
        A("s_nop 0")
        LB("L_nors")
        A("v_add_f32 v116, v112, v113"); A("v_add_f32 v117, v114, v115")
        A("v_cvt_pk_bf16_f32 v120, v112, v113"); A("v_cvt_pk_bf16_f32 v121, v114, v115")
        A("v_add_f32 v116, v116, v117"); A("v_fma_f32 v109, v109, v118, v116")
        A("s_cmp_gt_u32 s44, 1"); A("s_cbranch_scc1 L_pv")
        for k in range(8): A(f"v_xor_b32 v{10+k}, s54, v{10+k}")
        TC(1)
        A("s_waitcnt vmcnt(0)")
        TC(2)
        for t in range(8): A(f"ds_read_b64_tr_b16 {vr(56+2*t,2)}, v{10+t}")
        for t in range(8):
            A(f"s_waitcnt lgkmcnt({7-t})"); A(f"v_mfma_f32_16x16x16_bf16 {vr(76+4*t,4)}, {vr(56+2*t,2)}, v[120:121], {vr(76+4*t,4)}")
        A("s_branch L_fin")
        LB("L_pv")
        kblock(KP[0] + KP[1], KP[2], "L_k2")
        A("s_waitcnt lgkmcnt(0)")
        for t in range(8): A(f"v_mfma_f32_16x16x16_bf16 {vr(76+4*t,4)}, {vr(56+2*t,2)}, v[120:121], {vr(76+4*t,4)}")
        A("s_xor_b32 s54, s54, 0x4000")
        A("s_bitcmp1_b32 s62, 0"); A("s_cbranch_scc1 L_rest")
        A("s_cmp_lg_u32 s62, 0"); A("s_cbranch_scc1 L_park")
        A("s_sub_u32 s44, s44, 1"); A("s_branch L_tile")
        LB("L_rest")
        if sum(KP) == 0: A("s_mov_b32 m0, s41")
        for i in range(sum(KP), 4): kload(i)
        A("s_lshr_b32 s48, s62, 3"); A("s_or_b32 s48, s48, s43"); A("s_cbranch_scc1 L_notk")
        A("s_mov_b32 s58, 1"); A("s_atomic_add s58, s[26:27], s57 glc")
        LB("L_notk")
        A("s_add_u32 m0, s41, 4096")
        A("s_bitcmp1_b32 s62, 1"); A("s_cbranch_scc1 L_vb")
        for i in range(4): A(f"s_waitcnt vmcnt({PACE})"); A(f"buffer_load_dwordx4 v{2+i}, s[32:35], s40 offen offset:{i*1024} {kv_flags} lds")
        LB("L_issued")
        adv()
        LB("L_slot")
        A("s_xor_b32 s41, s41, s42"); A("s_xor_b32 s42, s42, 0x4000")
        if prog:
            A("s_bitcmp1_b32 s62, 0"); A("s_addc_u32 s51, s51, 0")
            for k, r in enumerate((4, 8, 12, 16, 20, 24, 28)):
                A(f"s_cmp_eq_u32 s51, {r}"); A(f"s_cbranch_scc0 L_pg{k}"); TS(7 + k); LB(f"L_pg{k}")
        A("s_branch L_tile")
        LB("L_vb")
        for i in range(4): A(f"buffer_load_dwordx4 v{2+i}, s[32:35], s40 offen offset:{i*1024} {kv_flags} lds")
        A("s_branch L_issued")
        LB("L_park")
        C("a parked tile takes the free slot")
        A(f"s_mov_b32 s53, {VSTEP + 1}"); A("s_sub_u32 s52, s52, 1"); A("s_mov_b32 s56, s39")
        A("v_lshl_add_u32 v116, v0, 4, s41")
        for k in range(NV):
            if k < NV - 1: A(f"s_cmp_lg_u32 s52, {k}"); A(f"s_cbranch_scc1 L_pk{k}")
            for i in range(8): A(f"ds_write_b128 v116, {vr(128+32*k+4*i,4)} offset:{1024*i}")
            A("s_branch L_slot")
            if k < NV - 1: LB(f"L_pk{k}")
        if not NV: A("s_branch L_slot")
    else:
        LB("L_tile")
        A("s_waitcnt vmcnt(24)")
        A("s_cmp_gt_u32 s44, 3"); A("s_cbranch_scc1 L_go")
        A("s_waitcnt vmcnt(16)"); A("s_cmp_gt_u32 s44, 2"); A("s_cbranch_scc1 L_go")
        A("s_waitcnt vmcnt(8)"); A("s_cmp_gt_u32 s44, 1"); A("s_cbranch_scc1 L_go")
        if ksplit:
            C("last tile: start on K while V is still arriving")
            A("s_waitcnt vmcnt(4)")
            TS(3); TC(0)
            for s in range(4): A(f"ds_read_b128 {vr(40+4*s,4)}, v{6+s}")
            for s in range(4):
                A(f"s_waitcnt lgkmcnt({3-s})")
                A(f"v_mfma_f32_16x16x32_bf16 v[72:75], {vr(40+4*s,4)}, {vr(24+4*s,4)}, {'0' if s == 0 else 'v[72:75]'}")
            A("s_branch L_sm")
        else:
            A("s_waitcnt vmcnt(0)")
            TS(3)
        LB("L_go")
        if nocomp: A("s_waitcnt lgkmcnt(0)"); A("s_branch L_skipc")
        for s in range(4): A(f"ds_read_b128 {vr(40+4*s,4)}, v{6+s}")
        for t in range(8): A(f"ds_read_b64_tr_b16 {vr(56+2*t,2)}, v{10+t}")
        for s in range(4):
            A(f"s_waitcnt lgkmcnt({11-s})")
            A(f"v_mfma_f32_16x16x32_bf16 v[72:75], {vr(40+4*s,4)}, {vr(24+4*s,4)}, {'0' if s == 0 else 'v[72:75]'}")
        LB("L_sm")
        for k in range(12): A(f"v_xor_b32 v{6+k}, s54, v{6+k}")
        A("v_cvt_pk_bf16_f32 v110, v72, v73"); A("v_cvt_pk_bf16_f32 v111, v74, v75")
        unpack(112, 110); unpack(114, 111)
        for k in range(4): A(f"v_mul_f32 v{112+k}, {SCALE:#x}, v{112+k}")
        A("v_cvt_pk_bf16_f32 v110, v112, v113"); A("v_cvt_pk_bf16_f32 v111, v114, v115")
        unpack(112, 110); unpack(114, 111)
        if lazy:
            A("v_max3_f32 v116, v112, v113, v114"); A("v_max_f32 v117, v115, v18")
            for k in range(4): A(f"v_fma_f32 v{72+k}, v{112+k}, s45, v19")
            A("v_max_f32 v110, v116, v117"); A("v_max_f32 v111, v116, v117")
            A("v_cmp_gt_f32 vcc, v110, v18")
            A("v_mov_b32 v118, 1.0")
            A("s_cbranch_vccnz L_newmax")
            for k in range(4): A(f"v_exp_f32 v{112+k}, v{72+k}")
            A("s_nop 0")
        else:
            A("v_max3_f32 v116, v112, v113, v114"); A("v_max3_f32 v116, v116, v115, v18")
            swap_red("max_f32", [116], [117], 16); swap_red("max_f32", [116], [117], 32)
            A(f"v_mul_f32 v117, {NL2E:#x}, v116"); A("v_floor_f32 v117, v117")
            A("v_cmp_lt_f32 vcc, v117, v19")
            A("v_sub_f32 v118, v117, v19")
            for k in range(4): A(f"v_fma_f32 v{112+k}, v{112+k}, s45, v117")
            A("v_exp_f32 v118, v118")
            for k in range(4): A(f"v_exp_f32 v{112+k}, v{112+k}")
            A("v_mov_b32 v18, v116"); A("v_mov_b32 v19, v117")
            A("s_cbranch_vccz L_nors")
            for k in range(16): A(f"v_pk_mul_f32 {vr(76+2*k,2)}, {vr(76+2*k,2)}, v[118:119] op_sel_hi:[1,0]")
        LB("L_nors")
        A("v_add_f32 v116, v112, v113"); A("v_add_f32 v117, v114, v115")
        A("v_cvt_pk_bf16_f32 v120, v112, v113"); A("v_cvt_pk_bf16_f32 v121, v114, v115")
        A("v_add_f32 v116, v116, v117"); A("v_fma_f32 v109, v109, v118, v116")
        if ksplit:
            A("s_cmp_gt_u32 s44, 1"); A("s_cbranch_scc1 L_pv")
            for k in range(8): A(f"v_xor_b32 v{10+k}, s54, v{10+k}")
            TC(1)
            A("s_waitcnt vmcnt(0)")
            TC(2)
            for t in range(8): A(f"ds_read_b64_tr_b16 {vr(56+2*t,2)}, v{10+t}")
            for t in range(8):
                A(f"s_waitcnt lgkmcnt({7-t})"); A(f"v_mfma_f32_16x16x16_bf16 {vr(76+4*t,4)}, {vr(56+2*t,2)}, v[120:121], {vr(76+4*t,4)}")
            A("s_branch L_fin")
            LB("L_pv")
        A("s_waitcnt lgkmcnt(0)")
        for t in range(8): A(f"v_mfma_f32_16x16x16_bf16 {vr(76+4*t,4)}, {vr(56+2*t,2)}, v[120:121], {vr(76+4*t,4)}")
        LB("L_skipc")
        if NV:
            A("s_cmp_eq_u32 s52, 0"); A("s_cbranch_scc1 L_nopark")
            A("s_sub_u32 s53, s53, 1"); A("s_cmp_lg_u32 s53, 0"); A("s_cbranch_scc1 L_nopark")
            LB("L_park")
            C("move a parked tile into the slot that just became free and run it")
            A(f"s_mov_b32 s53, {VSTEP + 1}"); A("s_sub_u32 s52, s52, 1")
            A("v_lshl_add_u32 v116, v0, 4, s41")
            A("s_waitcnt vmcnt(8)")
            for k in range(NV):
                if k < NV - 1: A(f"s_cmp_lg_u32 s52, {k}"); A(f"s_cbranch_scc1 L_pk{k}")
                for i in range(8): A(f"ds_write_b128 v116, {vr(128+32*k+4*i,4)} offset:{1024*i}")
                if k < NV - 1: A("s_branch L_pkd"); LB(f"L_pk{k}")
            LB("L_pkd")
            for k in range(12): A(f"v_xor_b32 v{6+k}, s54, v{6+k}")
            A("s_branch L_go")
            LB("L_nopark")
        A("s_xor_b32 s54, s54, 0x4000")
        C("s55: wanted number of tiles in the ring (4 at first, 2 later so that nothing waits unprocessed at the end, 0 when the pool is empty)")
        A("s_add_u32 s39, s39, 1")
        A(f"s_cmp_lt_u32 s39, {I1}"); A("s_cbranch_scc1 L_keep")
        A("s_cmp_lg_u32 s52, 0"); A("s_cbranch_scc1 L_keep")
        A(f"s_cmp_lt_u32 s39, {I2}"); A("s_cselect_b32 s48, 3, 2"); A("s_min_u32 s55, s55, s48")
        A("s_cmp_gt_u32 s44, s55"); A("s_cbranch_scc1 L_drain")
        LB("L_keep")
        if WTRIG:
            A(f"s_cmp_lg_u32 s43, {WTRIG}"); A("s_cbranch_scc1 L_notrig")
            A(f"ds_add_u32 v1, v119 offset:{WQC - CNT}")
            LB("L_notrig")
        A("s_cmp_eq_u32 s43, 0"); A("s_cbranch_scc1 L_dyn")
        A("s_sub_u32 s43, s43, 1"); A("s_branch L_issue")
        LB("L_dyn")
        if F:
            C("rows of this page are handed out in order to its four workgroups; each wave's last page ticket is one of the last four")
            A("s_cmp_eq_u32 s56, s57"); A("s_cbranch_scc1 L_head")
            if fk: A("s_mov_b32 s58, s62"); A("s_add_u32 s62, s62, 4")
            A("s_lshl_b32 s50, s58, 14"); A("s_add_u32 s40, s59, s50")
            A(f"s_cmp_ge_u32 s58, {P - 4}"); A("s_cselect_b32 s56, s57, s56")
            A("s_branch L_issue")
            LB("L_head")
        if wgt:
            C("one row of four tiles per ticket: the first wave to need it asks, the others read its answer")
            A("s_cmp_eq_u32 s56, 0"); A("s_cbranch_scc1 L_rdq")
            A("v_mov_b32 v22, s58"); A(f"ds_write_b32 v23, v22 offset:{TQ - EL}"); A("s_branch L_gotq")
            LB("L_rdq")
            A(f"ds_read_b32 v22, v23 offset:{TQ - EL}"); A("s_waitcnt lgkmcnt(0)"); A("v_readfirstlane_b32 s58, v22")
            A("s_cmp_eq_u32 s58, -1"); A("s_cbranch_scc1 L_rdq")
            LB("L_gotq")
        A(f"s_cmp_ge_u32 s58, {D}"); A("s_cbranch_scc1 L_empty")
        if wgt: A("v_add_u32 v23, 4, v23")
        A("s_and_b32 s49, s58, 7"); A("s_lshr_b32 s50, s58, 3")
        A("s_lshl_b32 s49, s49, 21"); A("s_lshl_b32 s50, s50, 14"); A("s_add_u32 s40, s46, s49"); A("s_add_u32 s40, s40, s50")
        if XB:
            A(f"s_cmp_lt_u32 s58, {D - XB}"); A("s_cbranch_scc1 L_issue")
            C("last round of the pool: others have stopped, do not hold these loads back")
            if XS:
                C("a wave that got one of the last XS rows does not ask again (the others still drain the counter)")
                A(f"s_cmp_ge_u32 s58, {D - XS}"); A("s_cselect_b32 s43, 1, 0"); A(f"s_cselect_b32 s58, {D}, s58")
            issue_tile(PACEB, 2)
            if XS: A("s_mov_b32 s43, 0")
            A("s_branch L_issued")
        LB("L_issue")
        issue_tile(PACE, 1)
        LB("L_issued")
        A("s_xor_b32 s41, s41, s42"); A("s_xor_b32 s42, s42, 0x4000")
        if prog:
            A("s_add_u32 s51, s51, 1")
            for k, r in enumerate((4, 8, 12, 16, 20, 24, 28)):
                A(f"s_cmp_eq_u32 s51, {r}"); A(f"s_cbranch_scc0 L_pg{k}"); TS(7 + k); LB(f"L_pg{k}")
        A("s_branch L_tile")
        LB("L_empty")
        if NV:
            A("s_cmp_eq_u32 s52, 0"); A("s_cbranch_scc1 L_empty2")
            A("s_xor_b32 s54, s54, 0x4000"); A("s_branch L_park")
            LB("L_empty2")
        A(f"ds_write_b32 v1, v119 offset:{GATE - CNT}"); A("s_mov_b32 s55, 0")
        if ts: A("s_add_u32 s79, s51, 4"); TS(14)
        LB("L_drain")
        A("s_sub_u32 s44, s44, 1"); A("s_cmp_lg_u32 s44, 0"); A("s_cbranch_scc1 L_tile")
    LB("L_fin")
    TS(4); TC(3)
    C("epilogue: merge the four waves' partial results, publish")
    A("v_mov_b32 v116, v109"); A("v_mov_b32 v108, v19"); A("s_nop 0")
    A("v_permlane16_swap_b32 v109, v116"); A("v_add_f32 v117, v109, v116"); A("v_add_f32 v109, v109, v116")
    A("s_mov_b32 exec_lo, 0x000f000f"); A("s_mov_b32 exec_hi, 0x000f000f")
    for t in range(8): A(f"ds_write_b128 v122, {vr(76+4*t,4)} offset:{64*t}")
    A("s_mov_b64 exec, -1")
    A("v_permlane32_swap_b32 v109, v117"); A("v_add_f32 v109, v109, v117")
    A("s_mov_b64 exec, 15")
    A("ds_write_b64 v123, v[108:109]")
    A("s_mov_b64 exec, 1")
    A("ds_add_rtn_u32 v111, v1, v119")
    A("s_mov_b64 exec, -1")
    A("s_waitcnt lgkmcnt(0)")
    TC(4)
    A("v_readfirstlane_b32 s44, v111")
    if fine: A("s_mov_b32 s79, s44")
    A("s_cmp_eq_u32 s44, 3"); A("s_cbranch_scc0 L_sdone")
    for w in range(4): A(f"ds_read_b64 {vr(24+2*w,2)}, v125 offset:{32*w}")
    for w in range(4):
        A(f"ds_read_b128 {vr(40+8*w,4)}, v124 offset:{2048*w}"); A(f"ds_read_b128 {vr(44+8*w,4)}, v124 offset:{2048*w+16}")
    A("s_waitcnt lgkmcnt(8)")
    A("v_min3_f32 v32, v24, v26, v28"); A("v_min_f32 v32, v32, v30")
    for w in range(4): A(f"v_sub_f32 v{24+2*w}, v32, v{24+2*w}")
    for w in range(4): A(f"v_exp_f32 v{24+2*w}, v{24+2*w}")
    A("s_waitcnt lgkmcnt(6)")
    for k in range(4): A(f"v_pk_mul_f32 {vr(40+2*k,2)}, {vr(40+2*k,2)}, v[24:25] op_sel_hi:[1,0]")
    for w in range(1, 4):
        A(f"s_waitcnt lgkmcnt({6 - 2*w})")
        for k in range(4): A(f"v_pk_fma_f32 {vr(40+2*k,2)}, {vr(40+8*w+2*k,2)}, {vr(24+2*w,2)}, {vr(40+2*k,2)} op_sel_hi:[1,0,1]")
    for k in range(4): A(f"v_cvt_pk_bf16_f32 v{40+k}, v{40+2*k}, v{41+2*k}")
    A("global_store_dwordx4 v126, v[40:43], s[26:27] sc1")
    A("v_mul_f32 v33, v24, v25")
    for w in range(1, 4): A(f"v_fmac_f32 v33, v{24+2*w}, v{25+2*w}")
    A("s_mov_b32 exec_lo, 0x00010001"); A("s_mov_b32 exec_hi, 0x00010001")
    A("global_store_dwordx2 v127, v[32:33], s[26:27] sc1")
    A("v_mov_b32 v117, 2"); A(f"ds_write_b32 v1, v117 offset:{GATE - CNT}")
    LB("L_sdone")
    TC(5); TC_fin(6)
    TS(5)
    TS_flush()
    A("s_endpgm")

    if lazy:
        LB("L_newmax")
        C("some row has a new maximum: agree on it across the four key groups, rescale")
        A("v_permlane16_swap_b32 v110, v111"); A("v_max_f32 v116, v110, v111"); A("v_max_f32 v117, v110, v111"); A("s_nop 1")
        A("v_permlane32_swap_b32 v116, v117"); A("v_max_f32 v18, v116, v117")
        A(f"v_mul_f32 v117, {NL2E:#x}, v18"); A("v_floor_f32 v117, v117")
        A("v_cmp_lt_f32 vcc, v117, v19")
        A("v_sub_f32 v118, v117, v19")
        for k in range(4): A(f"v_fma_f32 v{112+k}, v{112+k}, s45, v117")
        A("v_exp_f32 v118, v118")
        for k in range(4): A(f"v_exp_f32 v{112+k}, v{112+k}")
        A("v_mov_b32 v19, v117")
        A("s_cbranch_vccz L_nors")
        for k in range(16): A(f"v_pk_mul_f32 {vr(76+2*k,2)}, {vr(76+2*k,2)}, v[118:119] op_sel_hi:[1,0]")
        A("s_branch L_nors")
    LB("L_helper")
    if noh: A("s_endpgm")
    A("s_mov_b32 s47, s39")
    A("s_mov_b32 s50, s39")
    A("s_cmp_eq_u32 s37, 15"); A("s_cselect_b32 s47, 3, s47")
    A("s_sub_u32 s39, s3, 4")
    A("s_and_b32 s48, s37, 7")
    A("s_mul_i32 s59, s36, 7"); A("s_add_u32 s59, s59, s48")
    A("s_lshl_b32 s49, s48, 3"); A("s_add_u32 s49, s49, s36")
    A("v_lshrrev_b32 v20, 4, v0"); A("v_and_b32 v21, 15, v0")
    A("v_lshrrev_b32 v22, 3, v21"); A("v_and_b32 v23, 7, v21")
    A("s_mov_b32 s44, 0x05040100"); A("s_mov_b32 s45, 0x07060302")
    if dry: A("s_mov_b32 s46, 0")
    A("s_cmp_eq_u32 s39, 0"); A("s_cbranch_scc1 L_w4")
    A("s_cmp_ge_u32 s47, 2"); A("s_cbranch_scc1 L_end")
    if ts: A("s_mov_b32 s64, s60")
    A(f"v_mov_b32 v1, {QRDY}")
    LB("L_hq")
    A("s_sleep 4"); A("ds_read_b32 v2, v1"); A("s_waitcnt lgkmcnt(0)"); A("v_readfirstlane_b32 s40, v2")
    A("s_cmp_eq_u32 s40, 0"); A("s_cbranch_scc1 L_hq")
    A(f"ds_read_b32 v3, v1 offset:{TAGL - QRDY}"); A("s_waitcnt vmcnt(0) lgkmcnt(0)")
    A("s_branch L_roles")

    LB("L_w4")
    C("first helper wave: reset this workgroup's hand-off slots; 128 rows x 64 columns of LN(x) @ wq; gather q")
    A("s_setprio 3")
    if ts: A("s_mov_b32 s64, s60")
    for k in range(4): A(f"v_mov_b32 v{72+k}, -1")
    A("s_lshl_b32 s40, s36, 15"); A("s_lshl_b32 s41, s38, 8"); A("s_add_u32 s40, s40, s41"); A(f"s_add_u32 s40, s40, {PART}")
    A("v_lshlrev_b32 v76, 13, v20"); A("v_lshl_add_u32 v76, v21, 4, v76"); A("v_add_u32 v76, s40, v76")
    A("s_lshl_b32 s40, s36, 12"); A("s_lshl_b32 s41, s38, 7"); A("s_add_u32 s41, s40, s41"); A(f"s_add_u32 s41, s41, {ML}")
    A("v_lshl_add_u32 v77, v20, 3, s41")
    A(f"v_add_u32 v10, {HN}, v1")
    A("s_lshl_b32 s40, s50, 8"); A(f"s_add_u32 s40, s40, {HN}"); A("v_lshl_add_u32 v11, v20, 4, s40")
    A("v_bfe_u32 v13, v0, 2, 2"); A("v_lshl_add_u32 v13, v20, 3, v13"); A("v_lshlrev_b32 v13, 7, v13")
    A("v_and_b32 v14, 3, v0"); A("v_lshl_add_u32 v13, v14, 3, v13"); A(f"v_add_u32 v13, {WQL}, v13")
    A(f"v_lshlrev_b32 v14, 2, v0"); A(f"v_add_u32 v18, {QL}, v14")
    A("s_lshl_b32 s40, s36, 14"); A(f"s_add_u32 s40, s40, {QBUF + 4096}")
    A("v_add_u32 v17, s40, v1"); A("v_add_u32 v19, 0x2000, v17")
    A("s_lshl_b32 s41, s50, 12"); A("s_add_u32 s40, s40, s41"); A("s_lshl_b32 s41, s48, 9"); A("s_add_u32 s40, s40, s41"); A("s_sub_u32 s40, s40, 4096")
    A("v_lshl_add_u32 v15, v0, 3, s40")
    A("s_lshl_b32 s40, s2, 2"); A(f"s_add_u32 s40, s40, {ALIVE}"); A("v_mov_b32 v78, s40")
    A("v_cmp_eq_u32 s[52:53], 1, v20"); A("v_cmp_eq_u32 s[54:55], 2, v20"); A("v_cmp_eq_u32 s[56:57], 3, v20")
    A(f"v_mov_b32 v14, {WQC}")
    A("s_waitcnt vmcnt(0)")
    TS(1)
    A("global_store_dwordx4 v76, v[72:75], s[26:27] " + pof)
    A("s_mov_b32 exec_lo, 0x00010001"); A("s_mov_b32 exec_hi, 0x00010001")
    A("global_store_dwordx2 v77, v[72:73], s[26:27] " + pof)
    A("s_mov_b64 exec, -1")
    A(f"v_add_u32 v3, {TAGC:#x}, v3")
    layernorm(4, 24, 32)
    A("ds_write_b128 v10, v[4:7]")
    for k in range(4): A(f"ds_read_b128 {vr(40+4*k,4)}, v11 offset:{64*k}")
    LB("L_wqw")
    A("ds_read_b32 v24, v14"); A("s_waitcnt lgkmcnt(0)"); A("v_readfirstlane_b32 s40, v24")
    A("s_cmp_lt_u32 s40, 4"); A("s_cbranch_scc1 L_wqw")
    TS(2)
    for k in range(4):
        for t in range(4):
            r = 96 + 16 * k + 4 * t
            A(f"ds_read_b64_tr_b16 {vr(r,2)}, v13 offset:{4096*k + 32*t}"); A(f"ds_read_b64_tr_b16 {vr(r+2,2)}, v13 offset:{4096*k + 32*t + 512}")
    for k in range(4):
        for t in range(4):
            n = 4 * k + t
            A(f"s_waitcnt lgkmcnt({min(15, 2*(15-n))})")
            A(f"v_mfma_f32_16x16x32_bf16 {vr(56+4*t,4)}, {vr(40+4*k,4)}, {vr(96+16*k+4*t,4)}, {'0' if k == 0 else vr(56+4*t,4)}")
    A("s_nop 5")
    A("v_cndmask_b32 v2, v56, v60, s[52:53]"); A("s_nop 0"); A("v_cndmask_b32 v2, v2, v64, s[54:55]"); A("v_cndmask_b32 v2, v2, v68, s[56:57]")
    A("global_store_dwordx2 v15, v[2:3], s[26:27] " + qsf)
    A("s_mov_b64 exec, 1")
    A(f"global_store_dword v78, v3, s[26:27] offset:{QH - ALIVE} sc1")
    A("s_mov_b64 exec, -1")
    A("s_cmp_ge_u32 s47, 2"); A("s_cbranch_scc0 L_w4r")
    LB("L_w4b")
    TS(3)
    A(f"s_mov_b32 s51, {SPIN_MAX}")
    def qload(r):
        for i in range(16): A(f"global_load_dwordx4 {vr(r+4*i,4)}, v{17 if i < 8 else 19}, s[26:27] offset:{(i % 8) * 1024 - 4096} sc1")
    def qcheck(r):
        A(f"v_xor_b32 v24, v{r+1}, v3"); A(f"v_xor_b32 v25, v{r+3}, v3")
        ws = [r + 4 * i + k for i in range(1, 16) for k in (1, 3)]
        for n, w in enumerate(ws):
            A(f"v_xor_b32 v26, v{w}, v3"); A(f"v_or_b32 v{24 + (n & 1)}, v{24 + (n & 1)}, v26")
        A("v_or_b32 v24, v24, v25"); A("v_cmp_ne_u32 vcc, 0, v24")
    def qsum(r):
        for k in range(4):
            for h in (0, 2):
                A(f"v_add_f32 v{r+4*k+h}, v{r+4*k+h}, v{r+16+4*k+h}"); A(f"v_add_f32 v{r+32+4*k+h}, v{r+32+4*k+h}, v{r+48+4*k+h}")
        for k in range(4):
            for h in (0, 2): A(f"v_add_f32 v{r+4*k+h}, v{r+4*k+h}, v{r+32+4*k+h}")
        for k in range(4): A(f"v_cvt_pk_bf16_f32 v{24+k}, v{r+4*k}, v{r+4*k+2}")
    C("the group's 32 words announce the partial q stores; the tags inside the data are what is trusted")
    if sq:
        A("v_readfirstlane_b32 s58, v3"); A("s_lshl_b32 s41, s36, 7"); A(f"s_add_u32 s41, s41, {QH + 4 * (32 - QW)}")
        scheck("L_qh", 0, QW)
        A(f"s_mov_b32 s51, {SPIN_MAX}")
        A("s_waitcnt vmcnt(0)")
    else:
        A("s_lshl_b32 s40, s36, 7"); A(f"s_add_u32 s40, s40, {QH}"); A("v_and_b32 v12, 31, v0"); A("v_lshl_add_u32 v12, v12, 2, s40")
        A("global_load_dword v28, v12, s[26:27] sc1")
        A(f"s_sleep {qsleep}")
        LB("L_qhint")
        A("global_load_dword v29, v12, s[26:27] sc1")
        A("s_waitcnt vmcnt(1)")
        A("v_cmp_eq_u32 vcc, v28, v3"); A("s_bcnt1_i32_b32 s40, vcc_lo"); A(f"s_cmp_ge_u32 s40, {QTH}"); A("s_cbranch_scc1 L_qgo")
        A("global_load_dword v28, v12, s[26:27] sc1")
        A("s_waitcnt vmcnt(1)")
        A("v_cmp_eq_u32 vcc, v29, v3"); A("s_bcnt1_i32_b32 s40, vcc_lo")
        A("s_sub_u32 s51, s51, 1"); A("s_cbranch_scc1 L_qgo")
        A(f"s_cmp_lt_u32 s40, {QTH}"); A("s_cbranch_scc1 L_qhint")
    LB("L_qgo")
    C("a completed load that was issued after the resets: they have landed")
    A("s_mov_b64 exec, 1"); A("global_store_dword v78, v3, s[26:27] sc1")
    if sa:
        A("s_cmp_ge_u32 s47, 2"); A("s_cbranch_scc1 L_noar")
        A("s_lshl_b32 s40, s36, 3"); A("s_add_u32 s40, s40, s48"); A("s_add_u32 s41, s49, 64"); A("s_cmp_eq_u32 s47, 0"); A("s_cselect_b32 s40, s40, s41")
        A("s_lshl_b32 s40, s40, 2"); A(f"s_add_u32 s40, s40, {AR}"); A("v_mov_b32 v77, s40")
        A("global_store_dword v77, v3, s[26:27] sc1")
        LB("L_noar")
    A("s_mov_b64 exec, -1")
    TS(12)
    A(f"s_mov_b32 s55, {qmask}")
    LB("L_qpoll")
    for i in range(16):
        A(f"s_bitcmp1_b32 s55, {i}"); A(f"s_cbranch_scc0 L_qs{i}")
        A(f"global_load_dwordx4 {vr(96+4*i,4)}, v{17 if i < 8 else 19}, s[26:27] offset:{(i % 8) * 1024 - 4096} {qgf}")
        LB(f"L_qs{i}")
    A("s_waitcnt vmcnt(0)")
    for i in range(16):
        A(f"v_cmp_ne_u32 vcc, v{97+4*i}, v3"); A(f"v_cmp_ne_u32 s[40:41], v{99+4*i}, v3"); A("s_or_b64 vcc, vcc, s[40:41]")
        A(f"s_cbranch_scc1 L_qc{i}"); A(f"s_bitset0_b32 s55, {i}"); LB(f"L_qc{i}")
    A("s_sub_u32 s51, s51, 1"); A("s_cbranch_scc1 L_qgot")
    A("s_cmp_lg_u32 s55, 0"); A("s_cbranch_scc1 L_qpoll")
    LB("L_qgot")
    qsum(96)
    if wgt:
        A(f"v_add_u32 v28, {EL}, v1"); A(f"ds_write_b128 v28, v[72:75] offset:{TQ - EL}")
        for k in range(4): A(f"v_mov_b32 v{76+k}, 0")
        A("ds_write_b128 v28, v[76:79]")
    A("ds_write2_b32 v18, v24, v25 offset0:0 offset1:64"); A("ds_write2_b32 v18, v26, v27 offset0:128 offset1:192")
    A(f"v_mov_b32 v18, {QRDY}"); A("v_mov_b32 v19, 1")
    A(f"ds_write_b32 v18, v3 offset:{TAGL - QRDY}"); A("ds_write_b32 v18, v19")
    A("s_waitcnt lgkmcnt(0)")
    A("s_setprio 0")
    TS(4)
    if touch:
        A("v_lshlrev_b32 v4, 21, v0"); A("s_lshl_b32 s40, s36, 24"); A(f"s_add_u32 s40, s40, {0x200000 - 128}"); A("v_add_u32 v4, s40, v4")
        A("s_mov_b64 exec, 0xff")
        A("global_load_dword v240, v4, s[6:7] nt"); A("global_load_dword v240, v4, s[8:9] nt")
        A("s_mov_b64 exec, -1")
    A("s_waitcnt vmcnt(0)")
    A("s_branch L_roles")
    LB("L_w4r")
    A("s_cmp_eq_u32 s47, 0"); A("s_cbranch_scc0 L_w4f")
    A("s_lshl_b32 s40, s48, 11"); A("s_lshl_b32 s41, s36, 8"); A("s_add_u32 s40, s40, s41"); A(f"s_add_u32 s40, s40, {H2}")
    A("v_lshl_add_u32 v76, v21, 4, s40")
    if rep:
        A("v_lshl_add_u32 v76, v20, 14, v76"); A("v_add_u32 v77, 0x10000, v76")
        A("global_store_dwordx4 v76, v[72:75], s[26:27] " + pof); A("global_store_dwordx4 v77, v[72:75], s[26:27] " + pof)
    else:
        A("s_mov_b64 exec, 0xffff")
        A("global_store_dwordx4 v76, v[72:75], s[26:27] " + pof)
        A("s_mov_b64 exec, -1")
    A("s_branch L_w4b")
    LB("L_w4f")
    A("s_lshl_b32 s41, s49, 7"); A(f"s_add_u32 s41, s41, {H3}")
    A("v_lshrrev_b32 v76, 3, v0"); A("v_mul_u32_u24 v76, 7168, v76"); A("v_and_b32 v77, 7, v0"); A("v_lshl_add_u32 v76, v77, 4, v76"); A("v_add_u32 v76, s41, v76")
    A(f"v_add_u32 v77, {8*7168}, v76")
    A("global_store_dwordx4 v76, v[72:75], s[26:27] " + pof); A("global_store_dwordx4 v77, v[72:75], s[26:27] " + pof)
    A("s_branch L_w4b")
    LB("L_roles")
    if noroles: A("s_branch L_hdone")
    A("s_cmp_eq_u32 s47, 1"); A("s_cbranch_scc1 L_ffn")
    A("s_cmp_eq_u32 s47, 0"); A("s_cbranch_scc0 L_hdone")
    A("s_mov_b32 s40, s36"); A("s_mov_b32 s36, s48"); A("s_mov_b32 s48, s40")

    C("wo role: merge 32 splits of one kv group, multiply by a 512x64 block of wo")
    A("s_lshl_b32 s40, s36, 2"); A("s_add_u32 s40, s40, s39")
    A("s_lshl_b32 s41, s40, 17"); A("s_lshl_b32 s42, s48, 7"); A("s_add_u32 s41, s41, s42"); A("s_add_u32 s41, s41, 4096")
    A("s_add_u32 s52, s12, s41"); A("s_addc_u32 s53, s13, 0")
    A("v_lshlrev_b32 v58, 16, v22"); A("v_lshl_add_u32 v58, v20, 13, v58"); A("v_lshl_add_u32 v58, v23, 4, v58"); A("v_add_u32 v59, 0x8000, v58")
    def wo_weights():
        if jitw: gate_wait("L_w_jit", 1); TS(11)
        for s in range(2):
            for i in range(8): A(f"global_load_dwordx4 {vr(160+32*s+4*i,4)}, v{58+s}, s[52:53] offset:{1024*i-4096} {w_flags}")
            if not jitw: A("s_waitcnt vmcnt(0)")
        for s in range(2):
            A(f"s_waitcnt vmcnt({8 - 8*s})")
            transpose8(96 + 32 * s, 160 + 32 * s)
        TS(5)
    if not jitw: wo_weights()
    alive("w")
    A("s_lshl_b32 s41, s40, 13"); A(f"s_add_u32 s41, s41, {PART}")
    A("v_lshlrev_b32 v14, 4, v21"); A("v_lshl_add_u32 v4, v20, 11, v14"); A("v_add_u32 v4, s41, v4")
    A("s_lshl_b32 s41, s36, 12"); A("s_lshl_b32 s42, s39, 3"); A("s_add_u32 s41, s41, s42"); A(f"s_add_u32 s41, s41, {ML}")
    A("v_and_b32 v8, 31, v0"); A("v_lshl_add_u32 v6, v8, 7, s41")
    A("s_lshl_b32 s41, s39, 6"); A(f"s_add_u32 s41, s41, {WB}")
    A("v_lshl_add_u32 v9, v8, 1, s41"); A("v_lshl_add_u32 v10, v20, 4, s41")
    A("s_lshl_b32 s41, s39, 8"); A(f"s_add_u32 s41, s41, {OB}")
    A("v_add_u32 v11, s41, v14")
    A("v_lshlrev_b32 v12, 7, v22"); A("v_lshl_add_u32 v12, v20, 4, v12"); A("v_add_u32 v12, s41, v12")
    A("s_lshl_b32 s41, s39, 9"); A(f"s_add_u32 s41, s41, {RED}")
    A("v_lshlrev_b32 v13, 8, v22"); A("v_lshl_add_u32 v13, v23, 5, v13"); A("v_add_u32 v13, s41, v13")
    A(f"v_add_u32 v15, {RED}, v14")
    A("s_lshl_b32 s41, s36, 11"); A("s_lshl_b32 s42, s48, 8"); A("s_add_u32 s54, s41, s42")
    if jitw: wo_weights()
    if pw:
        if pw == 2: gate_wait("L_wo_pw", 1)
        if 'm' in pws: A(f"global_load_dwordx2 v[80:81], v6, s[26:27] {pwf}")
        for i in range(8 if 'p' in pws else 0): A(f"global_load_dwordx4 {vr(16+4*i,4)}, v4, s[26:27] offset:{256*i} {pwf}")
    if not dry: gate_wait("L_wo_gate0", 2 if g2 else 1); TS(8)
    LB("L_wo_pass")
    A(f"s_mov_b32 s41, {H2}")
    if dry: A("s_cmp_eq_u32 s46, 0"); A(f"s_cmov_b32 s41, {DUMMY}")
    A("s_add_u32 s41, s41, s54")
    A("v_add_u32 v7, s41, v14")
    if rep: A("v_lshrrev_b32 v5, 4, v0"); A("v_lshl_add_u32 v7, v5, 14, v7"); A("v_add_u32 v5, 0x10000, v7")
    A(f"s_mov_b32 s51, {SPIN_MAX}")
    LB("L_wo_ml")
    A("global_load_dwordx2 v[80:81], v6, s[26:27] sc1")
    A("s_waitcnt vmcnt(0)")
    any_poison([80, 81], 84)
    A("s_bcnt1_i32_b32 s57, vcc_lo")
    if dry: A("s_cmp_eq_u32 s46, 0"); A("s_cbranch_scc1 L_wo_go")
    A("s_sub_u32 s51, s51, 1"); A("s_cbranch_scc1 L_wo_go")
    A(f"s_cmp_gt_u32 s57, {32 - MLTH}"); A("s_cbranch_scc1 L_wo_ml")
    LB("L_wo_go")
    TS(9)
    def wload(r, m):
        A(f"global_load_dwordx2 {vr(m,2)}, v6, s[26:27] sc1")
        for i in range(8): A(f"global_load_dwordx4 {vr(r+4*i,4)}, v4, s[26:27] offset:{256*i} sc1")
    def wcheck(r, m): any_poison([m, m+1] + list(range(r, r + 32)), 84)
    wload(16, 80)
    if stag: A(f"s_sleep {stag}")
    LB("L_wo_poll")
    if ts: A("s_add_u32 s79, s79, 1")
    wload(48, 82)
    A("s_waitcnt vmcnt(9)")
    wcheck(16, 80)
    A("s_cbranch_vccz L_wo_gotA")
    wload(16, 80)
    A("s_waitcnt vmcnt(9)")
    wcheck(48, 82)
    if dry: A("s_cmp_eq_u32 s46, 0"); A("s_cbranch_scc1 L_wo_gotB")
    A("s_sub_u32 s51, s51, 1"); A("s_cbranch_scc1 L_wo_gotB")
    A("s_cbranch_vccnz L_wo_poll")
    def wcomb(r, m):
        TS(6); TC(0)
        A(f"v_mov_b32 v84, v{m}")
        P = []
        for e in range(8):
            for j in range(4):
                x = r + 4 * (2 * j) + (e >> 1); y = r + 4 * (2 * j + 1) + (e >> 1)
                P.append(f"v_perm_b32 v{160+4*e+j}, v{y}, v{x}, s{45 if e & 1 else 44}")
        def fill(n):
            for _ in range(n): A(P.pop(0))
        for rot in (8, 4, 2, 1):
            fill(2); A(f"v_min_f32_dpp v84, v84, v84 row_ror:{rot} row_mask:0xf bank_mask:0xf")
        A("v_mov_b32 v85, v84"); fill(2); A("v_permlane16_swap_b32 v84, v85"); A("v_min_f32 v84, v84, v85")
        A(f"v_sub_f32 v84, v84, v{m}"); A("v_exp_f32 v84, v84"); fill(1)
        A("v_cvt_pk_bf16_f32 v86, v84, v84")
        A("ds_write_b16 v9, v86"); A("ds_read_b128 v[88:91], v10")
        A(f"v_mul_f32 v85, v84, v{m+1}")
        for rot in (8, 4, 2, 1):
            fill(2); A(f"v_add_f32_dpp v85, v85, v85 row_ror:{rot} row_mask:0xf bank_mask:0xf")
        A("v_mov_b32 v86, v85"); fill(2); A("v_permlane16_swap_b32 v85, v86"); A("v_add_f32 v85, v85, v86")
        A("v_rcp_f32 v85, v85")
        fill(len(P))
    LB("L_wo_gotB")
    wcomb(48, 82)
    if dry: A("s_cmp_eq_u32 s46, 0"); A("s_cbranch_scc0 L_wo_got")
    else: A("s_branch L_wo_got")
    LB("L_wo_gotA")
    wcomb(16, 80)
    LB("L_wo_got")
    TC(1)
    A("s_waitcnt lgkmcnt(0)")
    TC(2)
    for e in range(8): A(f"v_mfma_f32_16x16x32_bf16 {vr(192+4*e,4)}, v[88:91], {vr(160+4*e,4)}, 0")
    A("s_nop 0")
    for e in range(8): A(f"v_mul_f32 v{192+4*e}, v{192+4*e}, v85")
    for k in range(4): A(f"v_cvt_pk_bf16_f32 v{88+k}, v{192+8*k}, v{196+8*k}")
    TC(3)
    A("ds_write_b128 v11, v[88:91]")
    A("ds_read_b128 v[160:163], v12"); A("ds_read_b128 v[164:167], v12 offset:64")
    A("s_waitcnt lgkmcnt(1)")
    for e in range(8): A(f"v_mfma_f32_16x16x32_bf16 {vr(192+4*e,4)}, v[160:163], {vr(96+4*e,4)}, 0")
    A("s_waitcnt lgkmcnt(0)")
    for e in range(8): A(f"v_mfma_f32_16x16x32_bf16 {vr(192+4*e,4)}, v[164:167], {vr(128+4*e,4)}, {vr(192+4*e,4)}")
    A("s_mov_b32 exec_lo, 0xff"); A("s_mov_b32 exec_hi, 0xff00")
    A("s_nop 5")
    for e in range(0, 8, 2): A(f"ds_write2_b32 v13, v{192+4*e}, v{196+4*e} offset0:{e} offset1:{e+1}")
    A("s_mov_b64 exec, -1")
    TC(4)
    barrier_real("L_wo_nb")
    TC(5)
    A("s_cmp_lg_u32 s39, 0"); A("s_cbranch_scc1 L_wo_next")
    for p in range(8): A(f"ds_read_b128 {vr(160+4*p,4)}, v15 offset:{256*p}")
    for st, wcnt in ((0, 6), (8, 4), (16, 2), (24, 0)):
        A(f"s_waitcnt lgkmcnt({wcnt})")
        for h in range(2): A(f"v_pk_add_f32 {vr(160+st+2*h,2)}, {vr(160+st+2*h,2)}, {vr(164+st+2*h,2)}")
    for h in range(2): A(f"v_pk_add_f32 {vr(160+2*h,2)}, {vr(160+2*h,2)}, {vr(168+2*h,2)}")
    for h in range(2): A(f"v_pk_add_f32 {vr(176+2*h,2)}, {vr(176+2*h,2)}, {vr(184+2*h,2)}")
    for h in range(2): A(f"v_pk_add_f32 {vr(160+2*h,2)}, {vr(160+2*h,2)}, {vr(176+2*h,2)}")
    if rep:
        C("eight copies, so that the readers of different dies do not queue on one line")
        A("global_store_dwordx4 v7, v[160:163], s[26:27] sc1"); A("global_store_dwordx4 v5, v[160:163], s[26:27] sc1")
    else:
        A("s_mov_b64 exec, 0xffff")
        A("global_store_dwordx4 v7, v[160:163], s[26:27] sc1")
        A("s_mov_b64 exec, -1")
    LB("L_wo_next")
    TC(6); TC_fin(7)
    TS(7)
    if dry:
        A("s_cmp_eq_u32 s46, 1"); A("s_cbranch_scc1 L_hdone")
        A("s_mov_b32 s46, 1")
        gate_wait("L_wo_gate", 2 if g2 else 1)
        TS(8)
        A("s_branch L_wo_pass")
    else: A("s_branch L_hdone") if ts else A("s_endpgm")

    LB("L_ffn")
    C("ffn role: h, LN(h), 32 gate/up columns, 32 rows of w2; first 16 also finish 32 output columns")
    def ffn_weights():
        A("v_lshlrev_b32 v58, 6, v22"); A("v_lshl_add_u32 v58, v20, 3, v58"); A("s_lshl_b32 s40, s39, 7"); A("v_add_u32 v58, s40, v58")
        A("s_movk_i32 s40, 3584"); A("v_mul_u32_u24 v58, s40, v58")
        A("v_and_b32 v59, 3, v21"); A("v_lshl_add_u32 v58, v59, 4, v58"); A("s_lshl_b32 s40, s49, 6"); A("v_add_u32 v58, s40, v58")
        A("v_bfe_u32 v59, v21, 2, 1"); A("v_cmp_eq_u32 vcc, 1, v59")
        A("v_mov_b32 v60, s16"); A("v_mov_b32 v61, s18"); A("v_cndmask_b32 v60, v60, v61, vcc")
        A("v_mov_b32 v61, s17"); A("v_mov_b32 v62, s19"); A("v_cndmask_b32 v61, v61, v62, vcc")
        A("v_mov_b32 v59, 0"); A("v_lshl_add_u64 v[60:61], v[58:59], 0, v[60:61]")
        A("s_lshl_b32 s40, s49, 15"); A("s_lshl_b32 s41, s39, 8"); A("s_add_u32 s40, s40, s41"); A("s_add_u32 s40, s40, 4096")
        A("s_add_u32 s52, s20, s40"); A("s_addc_u32 s53, s21, 0")
        A("v_lshlrev_b32 v58, 13, v20"); A("v_lshl_add_u32 v58, v21, 4, v58")
        if jitf: gate_wait("L_f_jit", 1); TS(11)
        if WTRIG:
            A(f"v_mov_b32 v1, {WQC}")
            LB("L_f_trig")
            A("s_sleep 2"); A("ds_read_b32 v2, v1"); A("s_waitcnt lgkmcnt(0)"); A("v_readfirstlane_b32 s40, v2")
            A("s_cmp_lt_u32 s40, 5"); A("s_cbranch_scc1 L_f_trig")
        A("s_mov_b64 s[40:41], 7168"); A(f"s_mov_b64 s[42:43], {7168 + 24 * 3584}")
        for s in range(2):
            for i in range(8):
                A(f"global_load_dwordx4 {vr(160+32*s+4*i,4)}, v[60:61], off{' offset:3584' if i & 1 else ''} {w_flags if w13f is None else w13f}")
                if i & 1 and not (s == 1 and i == 7): A(f"v_lshl_add_u64 v[60:61], v[60:61], 0, {'s[42:43]' if i == 7 else 's[40:41]'}")
            if not jitf and not wburst: A("s_waitcnt vmcnt(0)")
        for i in range(8): A(f"global_load_dwordx4 {vr(224+4*i,4)}, v58, s[52:53] offset:{1024*i-4096} {w_flags}")
        for s in range(3):
            A(f"s_waitcnt vmcnt({16 - 8*s})")
            transpose8(64 + 32 * s, 160 + 32 * s)
        TS(5)
    if not jitf: ffn_weights()
    A("v_and_b32 v8, 31, v0")
    A("s_lshl_b32 s40, s39, 8"); A("v_lshl_add_u32 v5, v8, 3, s40")
    A("global_load_dwordx2 v[48:49], v5, s[4:5]")
    A("s_waitcnt vmcnt(0)")
    unpack(50, 49)
    A("v_and_b32 v49, 0xffff0000, v48"); A("v_lshlrev_b32 v48, 16, v48")
    alive("f")
    A("v_lshrrev_b32 v9, 5, v0"); A("v_lshlrev_b32 v4, 11, v9"); A("v_lshl_add_u32 v4, v8, 4, v4")
    A("s_lshl_b32 s40, s39, 9"); A(f"s_add_u32 s40, s40, {H2 + 4096}")
    if rep: A("s_lshl_b32 s41, s48, 14"); A("s_add_u32 s40, s40, s41")
    A("v_add_u32 v4, s40, v4"); A("v_add_u32 v6, 0x2000, v4")
    A(f"v_add_u32 v5, {HB}, v5")
    A("s_lshl_b32 s40, s39, 3"); A(f"s_add_u32 s40, s40, {ST}"); A("v_mov_b32 v7, s40"); A(f"v_mov_b32 v9, {ST}")
    A("s_lshl_b32 s40, s39, 8"); A(f"s_add_u32 s40, s40, {HN}"); A("v_lshl_add_u32 v10, v8, 3, s40")
    A("v_lshlrev_b32 v11, 7, v22"); A("v_lshl_add_u32 v11, v20, 4, v11"); A("v_add_u32 v11, s40, v11")
    A("s_lshl_b32 s41, s39, 9"); A(f"s_add_u32 s41, s41, {RED}")
    A("v_lshlrev_b32 v13, 8, v22"); A("v_lshl_add_u32 v13, v23, 5, v13"); A("v_add_u32 v13, s41, v13")
    A("v_lshlrev_b32 v14, 5, v20"); A("v_lshl_add_u32 v14, v23, 2, v14"); A(f"v_add_u32 v14, {RED}, v14")
    A("v_lshrrev_b32 v52, 2, v21"); A("v_mul_u32_u24 v52, 7168, v52"); A("v_and_b32 v53, 3, v21"); A("v_lshl_add_u32 v52, v53, 5, v52"); A("v_lshl_add_u32 v52, v20, 4, v52")
    A("s_lshl_b32 s54, s49, 7"); A(f"s_mul_i32 s41, s39, {4*7168}"); A("s_add_u32 s54, s54, s41")
    A("v_cmp_eq_u32 s[56:57], 1, v20")
    A("s_mul_i32 s41, s59, 7168"); A(f"s_add_u32 s41, s41, {H3 + 3072}"); A("v_lshl_add_u32 v53, v0, 4, s41")
    A("v_and_b32 v54, 7, v0"); A("s_lshl_b32 s41, s59, 6"); A("v_lshl_add_u32 v54, v54, 3, s41"); A(f"v_add_u32 v55, {HB}, v54")
    if jitf: ffn_weights()
    if fuse:
        assert not dry and not WTRIG
        C("LN is applied after the product: gate = (h @ w - mean * colsum(w)) / sd; column sums now, while idle")
        A("s_lshl_b32 s40, s39, 8"); A(f"s_add_u32 s40, s40, {HB}")
        A("v_lshlrev_b32 v11, 7, v22"); A("v_lshl_add_u32 v11, v20, 4, v11"); A("v_add_u32 v11, s40, v11")
        for k in range(4): A(f"v_mov_b32 v{40+k}, 0x3f803f80")
        A("v_mov_b32 v24, -1"); A("v_mov_b32 v25, -1"); A("ds_write_b64 v7, v[24:25]")
        for e in range(8): A(f"v_mfma_f32_16x16x32_bf16 {vr(160+4*e,4)}, v[40:43], {vr(64+4*e,4)}, 0")
        for e in range(8): A(f"v_mfma_f32_16x16x32_bf16 {vr(160+4*e,4)}, v[40:43], {vr(96+4*e,4)}, {vr(160+4*e,4)}")
        A(f"v_add_u32 v15, {REDC - RED}, v13"); A(f"v_mov_b32 v1, {WQC}"); A("v_mov_b32 v2, 1")
        A("s_mov_b32 exec_lo, 0xff"); A("s_mov_b32 exec_hi, 0xff00"); A("s_nop 3")
        for e in range(0, 8, 2): A(f"ds_write2_b32 v15, v{160+4*e}, v{164+4*e} offset0:{e} offset1:{e+1}")
        A("s_mov_b64 exec, 1"); A("ds_add_u32 v1, v2"); A("s_mov_b64 exec, -1")
        LB("L_f_cw")
        A("s_sleep 2"); A("ds_read_b32 v2, v1"); A("s_waitcnt lgkmcnt(0)"); A("v_readfirstlane_b32 s40, v2")
        A("s_cmp_lt_u32 s40, 8"); A("s_cbranch_scc1 L_f_cw")
        A(f"v_add_u32 v15, {REDC - RED}, v14"); A("v_add_u32 v2, 1024, v15")
        for p in range(8): A(f"ds_read2_b32 {vr(24+2*p,2)}, v{15 if p < 4 else 2} offset0:{64*(p&3)} offset1:{64*(p&3)+32}")
        A("s_waitcnt lgkmcnt(0)")
        for k in range(4): A(f"v_pk_add_f32 {vr(24+4*k,2)}, {vr(24+4*k,2)}, {vr(26+4*k,2)}")
        A("v_pk_add_f32 v[24:25], v[24:25], v[28:29]"); A("v_pk_add_f32 v[32:33], v[32:33], v[36:37]"); A("v_pk_add_f32 v[58:59], v[24:25], v[32:33]")
        A("v_add_u32 v15, 1024, v14")
    if pw:
        if pw == 2: gate_wait("L_f_pw", 1)
        for i in range(4 if 'h' in pws else 0): A(f"global_load_dwordx4 {vr(192+4*i,4)}, v{4 if i < 2 else 6}, s[26:27] offset:{(i % 2) * 4096 - 4096} {pwf}")
        A("s_cmp_lg_u32 s39, 0"); A("s_cbranch_scc1 L_f_npw"); A("s_cmp_ge_u32 s59, 16"); A("s_cbranch_scc1 L_f_npw")
        A(f"v_add_u32 v57, {pwoff}, v53")
        for i in range(7 if 'o' in pws else 0): A(f"global_load_dwordx4 {vr(220+4*i,4)}, v57, s[26:27] offset:{1024*i-3072} {pwf}")
        LB("L_f_npw")
    if not dry: gate_wait("L_f_gate0", 2 if g2 else 1)
    LB("L_f_pass")
    A(f"s_mov_b32 s41, {H3}")
    if dry: A("s_cmp_eq_u32 s46, 0"); A(f"s_cmov_b32 s41, {DUMMY}")
    A("s_add_u32 s41, s41, s54")
    A("v_add_u32 v56, s41, v52")
    A(f"s_mov_b32 s51, {SPIN_MAX}")
    def hload(r):
        for i in range(4): A(f"global_load_dwordx4 {vr(r+4*i,4)}, v{4 if i < 2 else 6}, s[26:27] offset:{(i % 2) * 4096 - 4096} sc1")
    def hsum(r):
        TS(6)
        for h in range(2): A(f"v_pk_add_f32 {vr(40+2*h,2)}, {vr(r+2*h,2)}, {vr(r+4+2*h,2)}")
        for h in range(2): A(f"v_pk_add_f32 {vr(44+2*h,2)}, {vr(r+8+2*h,2)}, {vr(r+12+2*h,2)}")
    if hint2:
        LB("L_f_hint")
        if h2sleep: A(f"s_sleep {h2sleep}")
        if hint2 == 1:
            A("global_load_dwordx4 v[192:195], v4, s[26:27] offset:-4096 sc1"); A("s_waitcnt vmcnt(0)")
            any_poison(range(192, 196), 40)
            A("s_sub_u32 s51, s51, 1"); A("s_cbranch_scc1 L_f_go"); A("s_cbranch_vccnz L_f_hint")
        else:
            A("global_load_dword v192, v4, s[26:27] offset:-4096 sc1"); A("s_waitcnt vmcnt(0)")
            A("v_cmp_ne_u32 vcc, -1, v192")
            A("s_sub_u32 s51, s51, 1"); A("s_cbranch_scc1 L_f_go"); A("s_cbranch_vccz L_f_hint")
        LB("L_f_go")
    hload(192)
    if stag: A(f"s_sleep {stag}")
    LB("L_f_poll")
    hload(208)
    A("s_waitcnt vmcnt(4)")
    any_poison(range(192, 208), 40)
    A("s_cbranch_vccz L_f_gotA")
    hload(192)
    A("s_waitcnt vmcnt(4)")
    any_poison(range(208, 224), 40)
    if dry: A("s_cmp_eq_u32 s46, 0"); A("s_cbranch_scc1 L_f_gotB")
    A("s_sub_u32 s51, s51, 1"); A("s_cbranch_scc1 L_f_gotB")
    A("s_cbranch_vccnz L_f_poll")
    LB("L_f_gotB")
    hsum(208)
    if dry: A("s_cmp_eq_u32 s46, 0"); A("s_cbranch_scc0 L_f_got")
    else: A("s_branch L_f_got")
    LB("L_f_gotA")
    hsum(192)
    LB("L_f_got")
    TC(0)
    for h in range(2): A(f"v_pk_add_f32 {vr(24+2*h,2)}, {vr(40+2*h,2)}, {vr(44+2*h,2)}")
    swap_red("add_f32", [24, 25, 26, 27], [28, 29, 30, 31], 32)
    A("v_cvt_pk_bf16_f32 v28, v24, v25"); A("v_cvt_pk_bf16_f32 v29, v26, v27")
    unpack(24, 28); unpack(26, 29)
    A("v_pk_add_f32 v[24:25], v[24:25], v[48:49]"); A("v_pk_add_f32 v[26:27], v[26:27], v[50:51]")
    A("v_cvt_pk_bf16_f32 v28, v24, v25"); A("v_cvt_pk_bf16_f32 v29, v26, v27")
    if fuse:
        A("ds_write_b64 v5, v[28:29]")
        A("ds_read_b128 v[40:43], v11"); A("ds_read_b128 v[44:47], v11 offset:64")
        unpack(24, 28); unpack(26, 29)
        C("mean and centred sum of squares of this wave's 128 values, under the matrix work")
        A("v_readfirstlane_b32 s40, v24"); A("s_nop 1")
        for k in range(4): A(f"v_subrev_f32 v{32+k}, s40, v{24+k}")
        A("v_add_f32 v30, v32, v33"); A("v_mul_f32 v31, v32, v32"); A("v_add_f32 v36, v34, v35"); A("v_mul_f32 v37, v33, v33")
        A("v_fmac_f32 v31, v34, v34"); A("v_fmac_f32 v37, v35, v35"); A("v_add_f32 v30, v30, v36"); A("v_add_f32 v31, v31, v37")
        TC(1)
        CH = [f"v_sub_f32 v{k}, v{k}, v30" for k in (32, 34, 36, 38)] + ["v_add_f32 v33, v33, v37", "v_mul_f32 v32, v32, v32", "v_mul_f32 v36, v36, v36", "v_fmac_f32 v32, v34, v34", "v_fmac_f32 v36, v38, v38"]
        M = [f"v_mfma_f32_16x16x32_bf16 {vr(160+4*e,4)}, v[40:43], {vr(64+4*e,4)}, 0" for e in range(8)] + \
            [f"v_mfma_f32_16x16x32_bf16 {vr(160+4*e,4)}, v[44:47], {vr(96+4*e,4)}, {vr(160+4*e,4)}" for e in range(8)]
        A("s_waitcnt lgkmcnt(0)")
        for rot in (8, 4, 2, 1):
            A(M.pop(0))
            for x in (30, 31): A(f"v_add_f32_dpp v{x}, v{x}, v{x} row_ror:{rot} row_mask:0xf bank_mask:0xf")
        A(M.pop(0)); A("v_mov_b32 v32, v30"); A("v_mov_b32 v33, v31"); A(M.pop(0)); A(M.pop(0))
        A("v_permlane16_swap_b32 v30, v32"); A("v_permlane16_swap_b32 v31, v33"); A(M.pop(0))
        A("v_add_f32 v30, v30, v32"); A("v_add_f32 v31, v31, v33"); A(M.pop(0))
        A("v_mul_f32 v32, 0x3c000000, v30"); A(M.pop(0))
        A("v_fma_f32 v31, -v32, v30, v31"); A("v_add_f32 v30, s40, v32"); A(M.pop(0))
        A("v_min_u32 v31, -2, v31"); A(M.pop(0))
        A("ds_write_b64 v7, v[30:31]")
        for m in M: A(m)
        TC(2)
        A("ds_read_b128 v[32:35], v9"); A("ds_read_b128 v[36:39], v9 offset:16")
        A("s_mov_b32 exec_lo, 0xff"); A("s_mov_b32 exec_hi, 0xff00"); A("s_nop 3")
        for e in range(0, 8, 2): A(f"ds_write2_b32 v13, v{160+4*e}, v{164+4*e} offset0:{e} offset1:{e+1}")
        A("s_mov_b64 exec, -1")
        A("s_waitcnt lgkmcnt(4)")
        LB("L_f_ck")
        A("v_max3_u32 v30, v33, v35, v37"); A("v_add_f32 v24, v32, v34"); A("v_max_u32 v30, v30, v39"); A("v_add_f32 v31, v36, v38")
        A("v_cmp_eq_u32 vcc, -1, v30"); A("v_add_f32 v30, v24, v31"); A("s_cbranch_vccz L_f_sok")
        A("ds_read_b128 v[32:35], v9"); A("ds_read_b128 v[36:39], v9 offset:16"); A("s_waitcnt lgkmcnt(0)"); A("s_branch L_f_ck")
        LB("L_f_sok")
        TC(3)
        A("v_add_f32 v33, v33, v35"); A("v_mul_f32 v30, 0x3e800000, v30"); A("v_add_f32 v37, v37, v39")
        for k in range(PRE): A(CH.pop(0))
        TC(4)
        A("s_waitcnt lgkmcnt(0)"); A("s_barrier")
        TC(5)
        TS(7)
        for p in range(8): A(f"ds_read2_b32 {vr(160+2*p,2)}, v{14 if p < 4 else 15} offset0:{64*(p&3)} offset1:{64*(p&3)+32}")
        for c_ in CH: A(c_)
        A("v_add_f32 v32, v32, v36"); A("v_mul_f32 v33, 0x3b000000, v33"); A("v_cvt_pk_bf16_f32 v30, v30, v30"); A("v_fmac_f32 v33, 0x3e800000, v32")
        A("v_and_b32 v30, 0xffff0000, v30")
        bf16r(33)
        A("v_add_f32 v33, 0x3727c5ac, v33")
        bf16r(33)
        A("v_sqrt_f32 v33, v33")
        for k in range(4):
            A(f"s_waitcnt lgkmcnt({6-2*k})"); A(f"v_pk_add_f32 {vr(160+4*k,2)}, {vr(160+4*k,2)}, {vr(162+4*k,2)}")
            if k == 0: A("v_cvt_pk_bf16_f32 v33, v33, v33")
            if k == 1: A("v_and_b32 v33, 0xffff0000, v33")
            if k == 2: A("v_rcp_f32 v32, v33")
        A("v_pk_add_f32 v[160:161], v[160:161], v[164:165]"); A("v_pk_add_f32 v[168:169], v[168:169], v[172:173]")
        A("v_pk_fma_f32 v[160:161], v[58:59], v[30:31], v[160:161] op_sel_hi:[1,0,1] neg_lo:[0,1,0] neg_hi:[0,1,0]")
        A("v_pk_add_f32 v[24:25], v[160:161], v[168:169]")
        A("v_pk_mul_f32 v[24:25], v[24:25], v[32:33] op_sel_hi:[1,0]")
    else:
        unpack(24, 28); unpack(26, 29)
        C("mean and centred sum of squares of this wave's 128 values; merged across waves after the barrier")
        A("v_readfirstlane_b32 s40, v24")
        A("ds_write_b64 v5, v[28:29]"); A("s_nop 0")
        for k in range(4): A(f"v_subrev_f32 v{32+k}, s40, v{24+k}")
        A("v_add_f32 v30, v32, v33"); A("v_mul_f32 v31, v32, v32"); A("v_add_f32 v36, v34, v35"); A("v_mul_f32 v37, v33, v33")
        A("v_fmac_f32 v31, v34, v34"); A("v_fmac_f32 v37, v35, v35"); A("v_add_f32 v30, v30, v36"); A("v_add_f32 v31, v31, v37")
        dpp_red("add_f32", [30, 31]); swap_red("add_f32", [30, 31], [32, 33], 16)
        A("v_mul_f32 v32, 0x3c000000, v30"); A("v_fma_f32 v31, -v32, v30, v31"); A("v_add_f32 v30, s40, v32")
        A("ds_write_b64 v7, v[30:31]")
        TC(1)
        barrier_real("L_f_nb1")
        TC(2)
        A("ds_read_b128 v[32:35], v9"); A("ds_read_b128 v[36:39], v9 offset:16")
        A("s_waitcnt lgkmcnt(0)")
        A("v_add_f32 v30, v32, v34"); A("v_add_f32 v31, v36, v38"); A("v_add_f32 v33, v33, v35"); A("v_add_f32 v30, v30, v31"); A("v_add_f32 v37, v37, v39")
        A("v_mul_f32 v30, 0x3e800000, v30"); A("v_add_f32 v33, v33, v37")
        for k in (32, 34, 36, 38): A(f"v_sub_f32 v{k}, v{k}, v30")
        A("v_mul_f32 v32, v32, v32"); A("v_mul_f32 v36, v36, v36"); A("v_fmac_f32 v32, v34, v34"); A("v_fmac_f32 v36, v38, v38")
        bf16r(30)
        A("v_add_f32 v32, v32, v36"); A("v_mul_f32 v33, 0x3b000000, v33"); A("v_fmac_f32 v33, 0x3e800000, v32")
        for k in range(4): A(f"v_sub_f32 v{24+k}, v{24+k}, v30")
        bf16r(33)
        A("v_add_f32 v33, 0x3727c5ac, v33")
        bf16r(33)
        A("v_sqrt_f32 v33, v33")
        A("v_cvt_pk_bf16_f32 v28, v24, v25"); A("v_cvt_pk_bf16_f32 v29, v26, v27")
        bf16r(33)
        A("v_rcp_f32 v33, v33")
        unpack(24, 28); unpack(26, 29)
        for k in range(4): A(f"v_mul_f32 v{24+k}, v{24+k}, v33")
        A("v_cvt_pk_bf16_f32 v28, v24, v25"); A("v_cvt_pk_bf16_f32 v29, v26, v27")
        A("ds_write_b64 v10, v[28:29]")
        TC(3)
        A("ds_read_b128 v[40:43], v11"); A("ds_read_b128 v[44:47], v11 offset:64")
        A("s_waitcnt lgkmcnt(1)")
        for e in range(8): A(f"v_mfma_f32_16x16x32_bf16 {vr(160+4*e,4)}, v[40:43], {vr(64+4*e,4)}, 0")
        A("s_waitcnt lgkmcnt(0)")
        for e in range(8): A(f"v_mfma_f32_16x16x32_bf16 {vr(160+4*e,4)}, v[44:47], {vr(96+4*e,4)}, {vr(160+4*e,4)}")
        A("s_mov_b32 exec_lo, 0xff"); A("s_mov_b32 exec_hi, 0xff00")
        A("s_nop 5")
        for e in range(0, 8, 2): A(f"ds_write2_b32 v13, v{160+4*e}, v{164+4*e} offset0:{e} offset1:{e+1}")
        A("s_mov_b64 exec, -1")
        TC(4)
        barrier_real("L_f_nb2")
        TC(5)
        TS(7)
        for p in range(8):
            if p == 4: A("v_add_u32 v15, 1024, v14")
            A(f"ds_read2_b32 {vr(24+2*p,2)}, v{14 if p < 4 else 15} offset0:{64*(p&3)} offset1:{64*(p&3)+32}")
        for k in range(4):
            A(f"s_waitcnt lgkmcnt({6-2*k})"); A(f"v_pk_add_f32 {vr(24+4*k,2)}, {vr(24+4*k,2)}, {vr(26+4*k,2)}")
        A("v_pk_add_f32 v[24:25], v[24:25], v[28:29]"); A("v_pk_add_f32 v[32:33], v[32:33], v[36:37]"); A("v_pk_add_f32 v[24:25], v[24:25], v[32:33]")
    A("v_cvt_pk_bf16_f32 v26, v24, v25")
    unpack(24, 26)
    A(f"v_mul_f32 v26, {NL2E:#x}, v24"); A("v_exp_f32 v26, v26"); A("s_nop 0")
    A("v_add_f32 v26, 1.0, v26"); A("v_rcp_f32 v26, v26"); A("s_nop 0")
    A("v_mul_f32 v26, v24, v26")
    bf16r(26)
    A("v_mul_f32 v26, v26, v25"); A("s_nop 1")
    A("v_mov_b32_dpp v27, v26 quad_perm:[1,0,3,2] row_mask:0xf bank_mask:0xf")
    A("v_cvt_pk_bf16_f32 v26, v26, v27"); A("s_nop 1")
    for k in range(4): A(f"v_mov_b32_dpp v{40+k}, v26 row_newbcast:{2*k} row_mask:0xf bank_mask:0xf")
    A("s_nop 1")
    TC(6)
    for e in range(8): A(f"v_mfma_f32_16x16x32_bf16 {vr(160+4*e,4)}, v[40:43], {vr(128+4*e,4)}, 0")
    A("s_nop 4")
    for e in range(4): A(f"v_cndmask_b32 v{24+e}, v{160+4*e}, v{176+4*e}, s[56:57]")
    A("s_mov_b32 exec_hi, 0")
    A("global_store_dwordx4 v56, v[24:27], s[26:27] sc1")
    A("s_mov_b64 exec, -1")
    TC(7); TC_fin(8)
    TS(8)
    A("s_cmp_eq_u32 s39, 0"); A("s_cbranch_scc1 L_f_fin")
    C("every first helper wave has read the old word long ago: give the next launch's hand-offs a different tag")
    A("s_cmp_lg_u32 s39, 1"); A("s_cbranch_scc1 L_f_next"); A("s_cmp_lg_u32 s59, 0"); A("s_cbranch_scc1 L_f_next")
    if dry: A("s_cmp_eq_u32 s46, 0"); A("s_cbranch_scc1 L_f_next")
    A("v_mov_b32 v57, 0"); A("s_mov_b64 exec, 1")
    A("global_store_dword v57, v3, s[26:27] sc1")
    A("s_mov_b64 exec, -1"); A("s_branch L_f_next")
    LB("L_f_fin")
    A("s_cmp_ge_u32 s59, 16"); A("s_cbranch_scc1 L_f_next")
    C("final stage: 32 output columns")
    def oload(r):
        for i in range(7): A(f"global_load_dwordx4 {vr(r+4*i,4)}, v53, s[26:27] offset:{1024*i-3072} sc1")
    def osum(r):
        TS(9)
        for d, x, y in ((160, r, r+4), (164, r+8, r+12), (168, r+16, r+20), (160, 160, r+24)):
            for h in range(2): A(f"v_pk_add_f32 {vr(d+2*h,2)}, {vr(x+2*h,2)}, {vr(y+2*h,2)}")
    A("s_waitcnt vmcnt(1)")
    oload(192)
    if dry:
        A(f"s_add_u32 s42, s26, {DUMMY}"); A("s_addc_u32 s43, s27, 0")
        A("s_cmp_eq_u32 s46, 0"); A("s_cselect_b32 s42, s42, s22"); A("s_cselect_b32 s43, s43, s23")
    else: A("s_mov_b64 s[42:43], s[22:23]")
    A("ds_read_b64 v[44:45], v55")
    A(f"s_mov_b32 s51, {SPIN_MAX}")
    if stag: A(f"s_sleep {stag}")
    LB("L_o_poll")
    oload(220)
    A("s_waitcnt vmcnt(7)")
    any_poison(range(192, 220), 40)
    A("s_cbranch_vccz L_o_gotA")
    oload(192)
    A("s_waitcnt vmcnt(7)")
    any_poison(range(220, 248), 40)
    if dry: A("s_cmp_eq_u32 s46, 0"); A("s_cbranch_scc1 L_o_gotB")
    A("s_sub_u32 s51, s51, 1"); A("s_cbranch_scc1 L_o_gotB")
    A("s_cbranch_vccnz L_o_poll")
    LB("L_o_gotB")
    osum(220)
    if dry: A("s_cmp_eq_u32 s46, 0"); A("s_cbranch_scc0 L_o_got")
    else: A("s_branch L_o_got")
    LB("L_o_gotA")
    osum(192)
    LB("L_o_got")
    for d, y in ((164, 168), (160, 164)):
        for h in range(2): A(f"v_pk_add_f32 {vr(d+2*h,2)}, {vr(d+2*h,2)}, {vr(y+2*h,2)}")
    A("s_nop 0")
    for k in range(4): A(f"v_add_f32_dpp v{160+k}, v{160+k}, v{160+k} row_ror:8 row_mask:0xf bank_mask:0xf")
    swap_red("add_f32", [160, 161, 162, 163], [164, 165, 166, 167], 16)
    swap_red("add_f32", [160, 161, 162, 163], [164, 165, 166, 167], 32)
    A("v_cvt_pk_bf16_f32 v164, v160, v161"); A("v_cvt_pk_bf16_f32 v165, v162, v163")
    unpack(160, 164); unpack(162, 165)
    A("s_waitcnt lgkmcnt(0)")
    unpack(164, 44); unpack(166, 45)
    A("v_pk_add_f32 v[160:161], v[160:161], v[164:165]"); A("v_pk_add_f32 v[162:163], v[162:163], v[166:167]")
    A("v_cvt_pk_bf16_f32 v160, v160, v161"); A("v_cvt_pk_bf16_f32 v161, v162, v163")
    A("s_mov_b64 exec, 0xff")
    A("global_store_dwordx2 v54, v[160:161], s[42:43] " + outf)
    A("s_mov_b64 exec, -1")
    LB("L_f_next")
    TS(10)
    if dry:
        A("s_cmp_eq_u32 s46, 1"); A("s_cbranch_scc1 L_hdone")
        A("s_mov_b32 s46, 1")
        gate_wait("L_f_gate", 2 if g2 else 1)
        A("s_branch L_f_pass")
    LB("L_hdone")
    TS_flush("H")
    LB("L_end")
    A("s_endpgm")
    L.append('.section .rodata,"a"'); L.append(".p2align 6"); L.append(f".amdhsa_kernel {NAME}_kernel")
    for s in ("next_free_vgpr 256", "next_free_sgpr 102" if fine else "next_free_sgpr 96", "accum_offset 256", "group_segment_fixed_size 0", "kernarg_size 96",
              "user_sgpr_count 2", "user_sgpr_kernarg_segment_ptr 1", "system_sgpr_workgroup_id_x 1", "float_denorm_mode_32 3"):
        L.append("  .amdhsa_" + s)
    L.append(".end_amdhsa_kernel")
    return "\n".join(L) + "\n"

if __name__ == "__main__":
    kw = eval("dict(" + (sys.argv[2] if len(sys.argv) > 2 else "") + ")")
    open(sys.argv[1], "w").write(gen(**kw))
```

```python
import sys
NAME = "sequential_preLN__gqa_block_cached__glu_gated_swiglu__decode"

WQL = 0x20000; SP = 0x20000
QL = 0x24400; SML = 0x24800; CNT = 0x24880; GATE = 0x24884; QRDY = 0x24888; WQC = 0x2488C; TAGL = 0x24890
WB = 0x25000; OB = 0x25200; RED = 0x25800; HB = 0x26000; HM = 0x26400; ST = 0x26600; HN = 0x26800; EL = 0x27000; TQ = 0x27400; REDC = 0x27800
LDS_BYTES = 163840
EPOCH = 0; ALIVE = 0x400; QH = 0x800; AR = 0xC00; POOL = 0xC000; PPOOL = 0xF8000; QBUF = 0xD0000; ML = 0xF0000; H2 = 0x50000; PART = 0x10000; H3 = 0x90000; DUMMY = 0xB0000; TSB = 0x100000
TAGC = 0x9E3779B9
L2E = 0x3FB8AA3B; NL2E = 0xBFB8AA3B; SCALE = 0x3DB504F3
SPIN_MAX = 1 << 16


HEADER = """
;
"""

def gen(PACE=5, PACE0=5, S=27, NG=8, touch=False, qsleep=8, early=False, hold=False, gsleep=2, jitf=False, jitw=False, wqmap=False, ksplit=True, lazy=True, rot=0, rotm='x', F=0, fk=False, wgt=False, sq=False, QW=8, sa=False, XS=16, rep=True, qmask=0xffff, nopois=False, noalive=False, I1=16, I2=22, IW=1, IU=1, fuse=True, nohint=1, gok=True, NCH=3, mlt=True, qretry=0, nowait=False, w4stop=0, PRE=5, ilv=False, burst=True, KP=(2,1,1), XB=24, hmove=False, pfh=False, fine=False, wburst=False, w13f='', SKW=0, SKF=3, SKT=17, WTRIG=0, hint2=2, h2sleep=0, outf='sc1', qgf='sc1', pof='sc1', qsf='sc1', xf='', pwoff=0, PACEB=15, pw=0, pws='mpho', pwf='sc1', TPOS=4, g2=True, R1=8, R2=5, barpos=0, pf=True, stag=3, wend=False, rr=True, noswz=False, nocomp=False, noh=False, NV=4, VSTART=2, VSTEP=2, VW=0, QTH=20, MLTH=20, noroles=False, dbgts=False, prog=False, ts=False, dry=False, wq_flags="nt", w_flags="nt", kv_flags="nt"):
    PR = 128 - 4 * S; D = 8 * PR; PRM = -(-(1 << 16) // PR)
    assert all((t * PRM) >> 16 == t // PR for t in range(D))
    P = 4 * (S - F) if F else 0
    L = []
    def A(s): L.append("  " + s)
    def LB(s): L.append(s + ":")
    def C(s): L.append("  ; " + s)
    def vr(a, n): return f"v[{a}:{a+n-1}]"
    def TS(k):
        if ts and not fine:
            A("s_memrealtime s[60:61]"); A("s_waitcnt lgkmcnt(0)"); A(f"s_mov_b32 s{64+k}, s60")
    def TC(k):
        if fine:
            A(f"s_memtime s[{80+2*k}:{81+2*k}]")
    def TC_fin(n):
        if fine:
            A("s_waitcnt lgkmcnt(0)")
            for k in range(n): A(f"s_mov_b32 s{64+k}, s{80+2*k}")
    def TS_flush(kind="S"):
        if ts and dbgts:
            A("s_mov_b64 exec, -1"); A("v_mov_b32 v250, 0")
            if kind == "S":
                A("s_not_b32 s62, s64"); A("v_writelane_b32 v250, s62, 0"); A("s_not_b32 s62, s70"); A("v_writelane_b32 v250, s62, 13")
                for lane, k in ((1, 6), (2, 1), (3, 2), (4, 5)): A(f"v_writelane_b32 v250, s{64+k}, {lane}")
            else:
                for lane, k in ((5, 1), (6, 3), (7, 4)): A(f"v_writelane_b32 v250, s{64+k}, {lane}")
                A("s_not_b32 s62, s68"); A("s_cmp_eq_u32 s68, 0"); A("s_cselect_b32 s62, 0, s62"); A("v_writelane_b32 v250, s62, 14")
                A("s_cmp_eq_u32 s47, 0"); A("s_cbranch_scc0 L_dbgf")
                A("v_writelane_b32 v250, s70, 8"); A("v_writelane_b32 v250, s71, 9"); A("s_branch L_dbge")
                LB("L_dbgf")
                A("v_writelane_b32 v250, s70, 10"); A("v_writelane_b32 v250, s72, 11"); A("v_writelane_b32 v250, s74, 12")
                LB("L_dbge")
            A("v_mbcnt_lo_u32_b32 v251, -1, 0"); A("v_mbcnt_hi_u32_b32 v251, -1, v251"); A("v_lshlrev_b32 v251, 2, v251")
            A("s_mov_b64 exec, 0xffff")
            A("global_atomic_umax v251, v250, s[24:25] sc1")
        elif ts:
            A("s_mov_b64 exec, -1")
            A("v_mov_b32 v250, 0")
            for k in range(16): A(f"v_writelane_b32 v250, s{64+k}, {k}")
            A("v_mbcnt_lo_u32_b32 v251, -1, 0"); A("v_mbcnt_hi_u32_b32 v251, -1, v251")
            A("s_lshl_b32 s62, s2, 3"); A("s_add_u32 s62, s62, s3"); A("s_lshl_b32 s62, s62, 6"); A(f"s_add_u32 s62, s62, {TSB}")
            A("v_lshl_add_u32 v251, v251, 2, s62")
            A("s_mov_b64 exec, 0xffff")
            A("global_store_dword v251, v250, s[26:27]")
    def dpp_red(op, xs):
        for rot in (8, 4, 2, 1):
            if len(xs) < 3: A(f"s_nop {2 - len(xs)}" if len(xs) < 2 else "s_nop 0")
            for x in xs: A(f"v_{op}_dpp v{x}, v{x}, v{x} row_ror:{rot} row_mask:0xf bank_mask:0xf")
    def swap_red(op, xs, ts_, which):
        for x, t in zip(xs, ts_): A(f"v_mov_b32 v{t}, v{x}")
        A("s_nop 1")
        for x, t in zip(xs, ts_): A(f"v_permlane{which}_swap_b32 v{x}, v{t}")
        for x, t in zip(xs, ts_): A(f"v_{op} v{x}, v{x}, v{t}")
    def unpack(dst, src):
        A(f"v_lshlrev_b32 v{dst}, 16, v{src}"); A(f"v_and_b32 v{dst+1}, 0xffff0000, v{src}")
    def bf16r(x):
        A(f"v_cvt_pk_bf16_f32 v{x}, v{x}, v{x}"); A(f"v_and_b32 v{x}, 0xffff0000, v{x}")
    def layernorm(src, f, t):
        for k in range(4): unpack(f + 2 * k, src + k)
        A(f"v_add_f32 v{t}, v{f}, v{f+1}"); A(f"v_add_f32 v{t+1}, v{f+2}, v{f+3}")
        A(f"v_add_f32 v{t+2}, v{f+4}, v{f+5}"); A(f"v_add_f32 v{t+3}, v{f+6}, v{f+7}")
        A(f"v_add_f32 v{t}, v{t}, v{t+1}"); A(f"v_add_f32 v{t+2}, v{t+2}, v{t+3}"); A(f"v_add_f32 v{t}, v{t}, v{t+2}")
        dpp_red("add_f32", [t]); swap_red("add_f32", [t], [t+1], 16); swap_red("add_f32", [t], [t+1], 32)
        A(f"v_mul_f32 v{t}, 0x3b000000, v{t}")
        A(f"v_sub_f32 v{t+2}, v{f}, v{t}"); A(f"v_mul_f32 v{t+1}, v{t+2}, v{t+2}")
        for k in range(1, 8):
            A(f"v_sub_f32 v{t+2}, v{f+k}, v{t}"); A(f"v_fmac_f32 v{t+1}, v{t+2}, v{t+2}")
        bf16r(t)
        dpp_red("add_f32", [t+1]); swap_red("add_f32", [t+1], [t+2], 16); swap_red("add_f32", [t+1], [t+2], 32)
        A(f"v_mul_f32 v{t+1}, 0x3b000000, v{t+1}")
        bf16r(t+1)
        A(f"v_add_f32 v{t+1}, 0x3727c5ac, v{t+1}")
        bf16r(t+1)
        A(f"v_sqrt_f32 v{t+1}, v{t+1}")
        for k in range(8): A(f"v_sub_f32 v{f+k}, v{f+k}, v{t}")
        bf16r(t+1)
        A(f"v_rcp_f32 v{t+1}, v{t+1}")
        for k in range(4): A(f"v_cvt_pk_bf16_f32 v{src+k}, v{f+2*k}, v{f+2*k+1}")
        for k in range(4): unpack(f + 2 * k, src + k)
        for k in range(8): A(f"v_mul_f32 v{f+k}, v{f+k}, v{t+1}")
        for k in range(4): A(f"v_cvt_pk_bf16_f32 v{src+k}, v{f+2*k}, v{f+2*k+1}")
    def transpose8(dst, src):
        for e in range(8):
            for j in range(4):
                a = src + 4 * (2 * j) + (e >> 1); b = src + 4 * (2 * j + 1) + (e >> 1)
                A(f"v_perm_b32 v{dst+4*e+j}, v{b}, v{a}, s{45 if e & 1 else 44}")
    def any_poison(regs, t, nt=1):
        regs = list(regs)
        if nt > 1:
            chains = [regs[k::nt] for k in range(nt)]; started = [False] * nt
            while any(chains):
                for k in range(nt):
                    c = chains[k]
                    if not c: continue
                    if not started[k]:
                        n = min(3, len(c)); x = c[:n]; started[k] = True
                    else:
                        n = min(2, len(c)); x = [t + k] + c[:n]
                    A(f"v_max3_u32 v{t+k}, v{x[0]}, v{x[1]}, v{x[2]}" if len(x) == 3 else f"v_max_u32 v{t+k}, v{x[0]}, v{x[1]}")
                    chains[k] = c[n:]
            regs = list(range(t, t + nt))
        A(f"v_max3_u32 v{t}, v{regs[0]}, v{regs[1]}, v{regs[2]}" if len(regs) >= 3 else f"v_max_u32 v{t}, v{regs[0]}, v{regs[1]}")
        rest = regs[3:] if len(regs) >= 3 else []
        while len(rest) >= 2:
            A(f"v_max3_u32 v{t}, v{t}, v{rest[0]}, v{rest[1]}"); rest = rest[2:]
        if rest: A(f"v_max_u32 v{t}, v{t}, v{rest[0]}")
        A(f"v_cmp_eq_u32 vcc, -1, v{t}")
    def barrier_real(lbl):
        A("s_waitcnt lgkmcnt(0)")
        if dry: A("s_cmp_eq_u32 s46, 0"); A(f"s_cbranch_scc1 {lbl}")
        A("s_barrier"); LB(lbl)
    def scheck(lbl, off, n):
        A(f"s_mov_b32 s51, {SPIN_MAX}")
        for r in range(0, n, 16):
            w = min(16, n - r)
            LB(f"{lbl}_{r}")
            A(f"s_load_dwordx{w} s[80:{79+w}], s[26:27], s41 glc")
            A("s_sub_u32 s51, s51, 1"); A(f"s_cbranch_scc1 {lbl}_x")
            A("s_waitcnt lgkmcnt(0)")
            for k in range(w): A(f"s_xor_b32 s{80+k}, s{80+k}, s58")
            for k in range(1, w): A(f"s_or_b32 s80, s80, s{80+k}")
            A(f"s_cbranch_scc1 {lbl}_{r}")
            if r + 16 < n: A("s_add_u32 s41, s41, 64")
        LB(f"{lbl}_x")
        A("s_waitcnt lgkmcnt(0)")
    def alive(tag):
        if wend: A("s_branch L_hdone")
        if noalive: return
        C("every workgroup reset its hand-off slots before it wrote its word here")
        if gok:
            A(f"v_and_b32 v4, 7, v0"); A("v_lshlrev_b32 v4, 2, v4"); A(f"s_mov_b32 s51, {SPIN_MAX}")
            LB(f"L_alive_{tag}")
            A(f"global_load_dword v24, v4, s[26:27] offset:{ALIVE} sc1")
            A("s_sub_u32 s51, s51, 1"); A(f"s_cbranch_scc1 L_alive_ok_{tag}")
            A("s_waitcnt vmcnt(0)")
            A("v_cmp_ne_u32 vcc, v24, v3"); A(f"s_cbranch_vccnz L_alive_{tag}")
            LB(f"L_alive_ok_{tag}")
            A("s_waitcnt vmcnt(0)")
            return
        if sa:
            A("v_readfirstlane_b32 s58, v3")
            if tag == "w": A("s_lshl_b32 s41, s36, 7"); A(f"s_add_u32 s41, s41, {ALIVE}"); scheck("L_alw", 0, 32)
            else: A(f"s_mov_b32 s41, {AR}"); scheck("L_alf", 0, 120)
            return
        A(f"v_lshlrev_b32 v4, 4, v0"); A(f"v_add_u32 v4, {ALIVE}, v4")
        A(f"s_mov_b32 s51, {SPIN_MAX}")
        LB(f"L_alive_{tag}")
        A("global_load_dwordx4 v[24:27], v4, s[26:27] sc1")
        A("s_sub_u32 s51, s51, 1"); A(f"s_cbranch_scc1 L_alive_ok_{tag}")
        A("s_waitcnt vmcnt(0)")
        for k in range(4): A(f"v_xor_b32 v{24+k}, v{24+k}, v3")
        A("v_or3_b32 v24, v24, v25, v26"); A("v_or_b32 v24, v24, v27")
        A("v_cmp_ne_u32 vcc, 0, v24"); A(f"s_cbranch_vccnz L_alive_{tag}")
        LB(f"L_alive_ok_{tag}")
        A("s_waitcnt vmcnt(0)")
    def gate_wait(lbl, lvl=1):
        A(f"v_mov_b32 v1, {GATE}")
        LB(lbl)
        A(f"s_sleep {gsleep}"); A("ds_read_b32 v2, v1"); A("s_waitcnt lgkmcnt(0)"); A("v_readfirstlane_b32 s40, v2")
        A(f"s_cmp_lt_u32 s40, {lvl}"); A(f"s_cbranch_scc1 {lbl}")

    L.extend(HEADER.strip("\n").split("\n"))
    L.append(f"; @launch grid=(256,1,1) block=(512,1,1) lds={LDS_BYTES}")
    L.append('.amdgcn_target "amdgcn-amd-amdhsa--gfx950"')
    L.append(".text"); L.append(f".globl {NAME}_kernel"); L.append(".p2align 8"); L.append(f".type {NAME}_kernel,@function")
    LB(f"{NAME}_kernel")
    A("s_cmp_ge_u32 s2, 256"); A("s_cbranch_scc1 L_end")
    A("s_load_dwordx16 s[4:19], s[0:1], 0")
    A("s_load_dwordx8 s[20:27], s[0:1], 64")
    if ts:
        for k in range(16): A(f"s_mov_b32 s{64+k}, 0")
        A("s_memrealtime s[60:61]")
    A("v_lshrrev_b32 v1, 6, v0")
    A("v_and_b32 v0, 63, v0")
    A("v_readfirstlane_b32 s3, v1")
    def codepf():
        if pf:
            C("one idle wave pulls this kernel's code towards the L2 while the others start")
            A("s_cmp_lg_u32 s3, 5"); A("s_cbranch_scc1 L_nopf")
            A("s_getpc_b64 s[40:41]"); LB("L_pc")
            A(f"s_sub_u32 s40, s40, L_pc-{NAME}_kernel"); A("s_subb_u32 s41, s41, 0")
            A("v_lshlrev_b32 v8, 7, v0"); A(f"v_min_u32 v9, L_end-{NAME}_kernel-8192, v8")
            A("global_load_dword v10, v8, s[40:41] " + xf); A("s_add_u32 s40, s40, 8192"); A("s_addc_u32 s41, s41, 0"); A("global_load_dword v10, v9, s[40:41] " + xf)
            LB("L_nopf")
    if not pfh: codepf()
    A("s_lshr_b32 s36, s2, 5")
    A("s_and_b32 s37, s2, 31")
    A("s_and_b32 s38, s2, 7"); A("s_lshl_b32 s38, s38, 2"); A("s_lshr_b32 s39, s37, 3"); A("s_add_u32 s38, s38, s39")
    A(f"v_mov_b32 v1, {CNT}")
    for k in range(4): A(f"v_mov_b32 v{4+k}, 0")
    A("ds_write_b128 v1, v[4:7]")
    def hentry():
        if pfh: codepf()
        A("v_mov_b32 v16, 0"); A("v_lshlrev_b32 v1, 4, v0")
        A("s_lshl_b32 s40, s36, 10"); A(f"s_add_u32 s40, s40, {POOL}"); A("v_and_b32 v19, 3, v0"); A("v_lshl_add_u32 v19, v19, 8, s40")
        A("s_waitcnt lgkmcnt(0)")
        A("s_cmp_lg_u32 s3, 4"); A("s_cbranch_scc1 L_hbar")
        if F:
            A("s_cmp_lt_u32 s37, 24"); A("s_cbranch_scc1 L_hx")
            A("s_and_b32 s40, s2, 7"); A("s_lshl_b32 s41, s36, 3"); A("s_add_u32 s40, s40, s41"); A("s_lshl_b32 s40, s40, 9"); A(f"s_add_u32 s40, s40, {PPOOL}")
            A("v_and_b32 v18, 3, v0"); A("v_lshl_add_u32 v18, v18, 7, s40")
            A("global_store_dword v18, v16, s[26:27] sc1")
        A("s_cmp_lg_u32 s37, 31"); A("s_cbranch_scc1 L_hx")
        A("global_store_dword v19, v16, s[26:27] sc1")
        LB("L_hx")
        A("global_load_dwordx4 v[4:7], v1, s[4:5]")
        A("global_load_dword v3, v16, s[26:27] sc1")
        LB("L_hbar")
        A("s_barrier"); A("s_branch L_helper")
    if hmove: A("s_cmp_ge_u32 s3, 4"); A("s_cbranch_scc1 L_hentry")
    else:
        A("s_cmp_lt_u32 s3, 4"); A("s_cbranch_scc1 L_stream"); hentry(); LB("L_stream")

    C("streaming waves: K/V tiles of 16 keys through a 4-slot LDS ring per wave")
    A("v_lshrrev_b32 v20, 4, v0")
    A("v_and_b32 v21, 15, v0")
    A("v_lshlrev_b32 v22, 1, v20")
    A("v_xor_b32 v22, v22, v21")
    A("v_lshlrev_b32 v22, 4, v22")
    A("v_lshl_add_u32 v2, v20, 8, v22")
    A("v_xor_b32 v3, 0x80, v2"); A("v_xor_b32 v4, 16, v2"); A("v_xor_b32 v5, 0x90, v2")
    if noswz:
        for i in range(4): A(f"v_lshlrev_b32 v{2+i}, 4, v0")
    C("four workgroups share a 2 MiB page of K and V (rows of 4 tiles interleaved); the last rows of all pages form a ticket pool")
    A("s_and_b32 s40, s2, 7"); A("s_lshl_b32 s41, s36, 3"); A("s_add_u32 s40, s40, s41"); A("s_lshl_b32 s40, s40, 21")
    A("s_lshl_b32 s41, s39, 14"); A("s_add_u32 s40, s40, s41")
    A("s_lshl_b32 s41, s3, 12"); A("s_add_u32 s40, s40, s41")
    if rot:
        A(f"s_and_b32 s59, s40, {~0x1fffff & 0xffffffff:#x}"); A(f"s_add_u32 s59, s59, {4*S*16384}")
        if rotm == 'x': A("s_and_b32 s41, s2, 7")
        elif rotm == 'h': A("s_mov_b32 s41, s36")
        else: A("s_and_b32 s41, s2, 7"); A("s_xor_b32 s41, s41, s36")
        A(f"s_mul_i32 s41, s41, {rot * 65536}"); A("s_add_u32 s40, s40, s41")
    A("s_lshl_b32 s41, s3, 15")
    A("s_mov_b32 s30, 0x8000000"); A("s_mov_b32 s31, 0x20000"); A("s_mov_b32 s34, 0x8000000"); A("s_mov_b32 s35, 0x20000")
    A("s_mov_b32 s42, 0x2000")
    A("s_mov_b32 s44, 4")
    C("first: 32 rows x 64 columns of wq per wave into LDS (used by the first helper wave)")
    A("v_lshrrev_b32 v22, 3, v0"); A("v_and_b32 v23, 7, v0"); A("v_lshlrev_b32 v22, 13, v22"); A("v_lshl_add_u32 v22, v23, 4, v22")
    A("s_lshl_b32 s47, s39, 20"); A("s_lshl_b32 s48, s3, 18"); A("s_add_u32 s47, s47, s48"); A("s_lshl_b32 s48, s36, 10"); A("s_add_u32 s47, s47, s48")
    A("s_and_b32 s48, s2, 7"); A("s_lshl_b32 s48, s48, 7"); A("s_add_u32 s47, s47, s48")
    A("s_lshl_b32 s48, s3, 12"); A(f"s_add_u32 m0, s48, {WQL}")
    A("s_waitcnt lgkmcnt(0)")
    if ts: A("s_mov_b32 s64, s60")
    A("s_add_u32 s48, s10, s47"); A("s_addc_u32 s49, s11, 0")
    for k in range(4):
        if k: A("v_add_u32 v22, 0x10000, v22"); A("s_add_u32 m0, m0, 1024"); A("s_nop 0")
        else: A("s_mov_b32 s28, s6")
        A(f"global_load_lds_dwordx4 v22, s[48:49] {wq_flags}")
    A("s_and_b32 s29, s7, 0xffff"); A("s_mov_b32 s32, s8"); A("s_and_b32 s33, s9, 0xffff")
    if barpos == 0: A("s_barrier")
    TS(6)
    def adv():
        A("s_add_u32 s40, s40, 65536")
        if rot: A("s_cmp_ge_u32 s40, s59"); A(f"s_cselect_b32 s48, {4*S*16384}, 0"); A("s_sub_u32 s40, s40, s48")
    def issue_tile(pace, tk=False):
        def ticket(i):
            if tk and i == TPOS:
                A("s_cmp_lg_u32 s43, 0"); A(f"s_cbranch_scc1 L_notk{tk}")
                if wgt:
                    A("s_mov_b64 exec, 1"); A("ds_add_rtn_u32 v22, v23, v119"); A("s_mov_b64 exec, -1")
                    A("s_waitcnt lgkmcnt(0)"); A("v_readfirstlane_b32 s48, v22")
                    A("s_cmp_eq_u32 s48, 0"); A("s_cselect_b32 s56, 1, 0"); A(f"s_cbranch_scc0 L_notk{tk}")
                A("s_mov_b32 s58, 1"); A(f"s_atomic_add s58, s[26:27], {'s56' if F else 's57'} glc")
                LB(f"L_notk{tk}")
        A("s_mov_b32 m0, s41")
        for i in range(4):
            ticket(i); A(f"s_waitcnt vmcnt({pace})"); A(f"buffer_load_dwordx4 v{2+i}, s[28:31], s40 offen offset:{i*1024} {kv_flags} lds")
        A("s_add_u32 m0, s41, 4096")
        for i in range(4):
            ticket(4 + i); A(f"s_waitcnt vmcnt({pace})"); A(f"buffer_load_dwordx4 v{2+i}, s[32:35], s40 offen offset:{i*1024} {kv_flags} lds")
        ticket(8)
        adv()
    LB("L_fill")
    issue_tile(PACE0)
    A("s_xor_b32 s41, s41, s42"); A("s_xor_b32 s42, s42, 0x4000")
    A("s_cmp_lg_u32 s44, 4"); A("s_cbranch_scc1 L_nosig")
    if barpos == 1: A("s_barrier")
    A("s_waitcnt vmcnt(8)"); A("v_mov_b32 v22, 1"); A("s_mov_b64 exec, 1")
    A(f"ds_add_u32 v1, v22 offset:{WQC - CNT}"); A("s_mov_b64 exec, -1")
    LB("L_nosig")
    A("s_sub_u32 s44, s44, 1"); A("s_cmp_lg_u32 s44, 0"); A("s_cbranch_scc1 L_fill")
    if hmove:
        A("s_branch L_filled"); LB("L_hentry"); hentry(); LB("L_filled")
    TS(1)
    A("s_lshl_b32 s46, s36, 24"); A("s_lshl_b32 s47, s3, 12"); A("s_add_u32 s46, s46, s47"); A(f"s_add_u32 s46, s46, {4*S*16384}")
    if wgt:
        assert not F and D + 2 <= 256
        A("s_lshl_b32 s57, s36, 10"); A(f"s_add_u32 s57, s57, {POOL}")
        A("s_mov_b32 s56, 0")
    else:
        A("s_lshl_b32 s57, s36, 2"); A("s_add_u32 s57, s57, s3"); A("s_lshl_b32 s57, s57, 8"); A(f"s_add_u32 s57, s57, {POOL}")
    A("s_mov_b32 s58, 0")
    if F:
        A("s_and_b32 s56, s2, 7"); A("s_lshl_b32 s47, s36, 3"); A("s_add_u32 s56, s56, s47")
        A("s_lshl_b32 s59, s56, 21"); A("s_lshl_b32 s47, s3, 12"); A("s_add_u32 s59, s59, s47"); A(f"s_add_u32 s59, s59, {4*F*16384}")
        A("s_lshl_b32 s56, s56, 2"); A("s_add_u32 s56, s56, s3"); A("s_lshl_b32 s56, s56, 7"); A(f"s_add_u32 s56, s56, {PPOOL}")
    C("addresses of the final merge")
    A("s_lshl_b32 s47, s3, 11"); A(f"s_add_u32 s47, s47, {SP}")
    A("v_lshlrev_b32 v122, 9, v21"); A("v_lshl_add_u32 v122, v20, 4, v122"); A("v_add_u32 v122, s47, v122")
    A("s_lshl_b32 s47, s3, 5"); A(f"s_add_u32 s47, s47, {SML}")
    A("v_lshl_add_u32 v123, v21, 3, s47")
    A(f"v_lshlrev_b32 v124, 5, v0"); A(f"v_add_u32 v124, {SP}, v124")
    A(f"v_lshlrev_b32 v125, 3, v20"); A(f"v_add_u32 v125, {SML}, v125")
    A("s_lshl_b32 s47, s36, 15"); A("s_lshl_b32 s48, s38, 8"); A("s_add_u32 s47, s47, s48"); A(f"s_add_u32 s47, s47, {PART}")
    A("v_lshlrev_b32 v126, 13, v20"); A("v_lshl_add_u32 v126, v21, 4, v126"); A("v_add_u32 v126, s47, v126")
    A("s_lshl_b32 s47, s36, 12"); A("s_lshl_b32 s48, s38, 7"); A("s_add_u32 s47, s47, s48"); A(f"s_add_u32 s47, s47, {ML}")
    A(f"v_lshl_add_u32 v127, v20, {4 if mlt else 3}, s47")
    A(f"v_mov_b32 v1, {CNT}"); A("v_mov_b32 v119, 1")
    A(f"s_mov_b32 s43, {(F if F else S) - 4}")
    if SKW or SKF:
        A("s_mov_b32 s62, 0"); A("s_cmp_lt_u32 s37, 15"); A(f"s_cselect_b32 s62, {SKF}, s62"); A("s_cmp_lt_u32 s37, 8"); A(f"s_cselect_b32 s62, {SKW}, s62")
    A("v_lshlrev_b32 v23, 1, v21"); A("v_and_b32 v23, 15, v23"); A("v_lshrrev_b32 v24, 3, v21"); A("v_or_b32 v23, v23, v24")
    A("v_and_b32 v24, 1, v20"); A("v_lshlrev_b32 v24, 1, v24"); A("v_lshrrev_b32 v25, 1, v20"); A("v_or_b32 v24, v24, v25")
    A("v_xor_b32 v23, v23, v24"); A("v_lshlrev_b32 v23, 4, v23"); A("v_lshl_add_u32 v23, v21, 8, v23")
    A("v_add_u32 v6, s41, v23")
    for s in range(1, 4): A(f"v_xor_b32 v{6+s}, {s << 6}, v6")
    A("v_lshrrev_b32 v25, 2, v0")
    A("v_lshlrev_b32 v26, 1, v25"); A("v_and_b32 v26, 15, v26"); A("v_lshrrev_b32 v27, 3, v25"); A("v_or_b32 v26, v26, v27")
    A("v_bfe_u32 v27, v0, 1, 1"); A("v_xor_b32 v26, v26, v27"); A("v_lshlrev_b32 v26, 4, v26")
    A("v_lshl_add_u32 v26, v25, 8, v26")
    A("v_and_b32 v27, 1, v0"); A("v_lshl_add_u32 v26, v27, 3, v26")
    A("s_add_u32 s44, s41, 4096")
    A("v_add_u32 v10, s44, v26")
    for t in range(1, 8): A(f"v_xor_b32 v{10+t}, {t << 5}, v10")
    A("v_and_b32 v25, 3, v21"); A("v_lshlrev_b32 v25, 8, v25"); A("v_lshl_add_u32 v25, v24, 4, v25"); A(f"v_add_u32 v108, {QL}, v25")
    if wgt: A(f"v_mov_b32 v23, {EL}")
    A("v_mov_b32 v18, 0xff7fffff"); A("v_mov_b32 v19, 0x7f7fffff"); A("v_mov_b32 v109, 0")
    for k in range(32): A(f"v_mov_b32 v{76+k}, 0")
    A(f"s_mov_b32 s45, {L2E}"); A("s_mov_b32 s44, 4"); A("s_mov_b32 s54, 0x2000"); A("s_mov_b32 s55, 4")
    if ts: A("s_mov_b32 s51, 0")
    A(f"v_mov_b32 v116, {QRDY}")
    if fk: A("s_mov_b32 s62, s39")
    A(f"s_mul_i32 s39, s39, {IU}"); A(f"s_mul_i32 s52, s3, {IW}"); A("s_add_u32 s39, s39, s52"); A("s_mov_b32 s52, 0"); A(f"s_mul_i32 s53, s3, {VW}"); A(f"s_add_u32 s53, s53, {VSTART}")
    if noh or nowait: A("s_branch L_qok")
    C("while q is not there yet, keep streaming: park up to NV more tiles in registers")
    for k in range(NV):
        A("ds_read_b32 v117, v116"); A("s_waitcnt lgkmcnt(0)"); A("v_readfirstlane_b32 s48, v117")
        A("s_cmp_lg_u32 s48, 0"); A("s_cbranch_scc1 L_qok")
        for i in range(8):
            A(f"s_waitcnt vmcnt({PACE0})"); A(f"buffer_load_dwordx4 {vr(128+32*k+4*i,4)}, v{2+(i&3)}, s[{28 if i < 4 else 32}:{31 if i < 4 else 35}], s40 offen offset:{(i&3)*1024} {kv_flags}")
        adv(); A("s_add_u32 s52, s52, 1"); A("s_sub_u32 s43, s43, 1")
    LB("L_qwait")
    A("ds_read_b32 v117, v116"); A("s_waitcnt lgkmcnt(0)"); A("v_readfirstlane_b32 s48, v117")
    A("s_cmp_lg_u32 s48, 0"); A("s_cbranch_scc1 L_qok"); A("s_sleep 1"); A("s_branch L_qwait")
    LB("L_qok")
    if ts: A("s_add_u32 s51, s51, s52"); A("s_mov_b32 s77, s52")
    TS(2)
    if mlt: A(f"ds_read_b32 v22, v1 offset:{TAGL - CNT}")
    for s in range(4): A(f"ds_read_b128 {vr(24+4*s,4)}, v108 offset:{64*s}")
    if ilv:
        def kload(i, pace=PACE): A(f"s_waitcnt vmcnt({pace})"); A(f"buffer_load_dwordx4 v{2+i}, s[28:31], s40 offen offset:{i*1024} {kv_flags} lds")
        def kblock(lo, n, lbl):
            if n:
                A("s_bitcmp1_b32 s62, 0"); A(f"s_cbranch_scc0 {lbl}")
                if lo == 0: A("s_mov_b32 m0, s41")
                for i in range(lo, lo + n): kload(i)
                LB(lbl)
        A("s_mov_b32 s55, 3"); A("s_mov_b32 s56, -16")
        LB("L_tile")
        A("s_mov_b32 s62, 0")
        A("s_cmp_gt_u32 s44, 1"); A("s_cbranch_scc1 L_dec")
        C("last tile: start on K while V is still arriving")
        A("s_waitcnt vmcnt(4)")
        TS(3); TC(0)
        for s in range(4): A(f"ds_read_b128 {vr(40+4*s,4)}, v{6+s}")
        for s in range(4):
            A(f"s_waitcnt lgkmcnt({3-s})")
            A(f"v_mfma_f32_16x16x32_bf16 v[72:75], {vr(40+4*s,4)}, {vr(24+4*s,4)}, {'0' if s == 0 else 'v[72:75]'}")
        A("s_branch L_sm")
        LB("L_empty")
        if NV:
            A("s_cmp_eq_u32 s52, 0"); A("s_cbranch_scc1 L_empty2")
            A("s_waitcnt vmcnt(0)"); A("s_mov_b32 s62, 4"); A("s_branch L_go")
            LB("L_empty2")
        if NV:
            A("s_sub_u32 s48, s39, s56"); A("s_cmp_gt_u32 s48, 2"); A("s_cbranch_scc1 L_empty3")
            A("s_waitcnt vmcnt(0)")
            LB("L_empty3")
        A(f"ds_write_b32 v1, v119 offset:{GATE - CNT}"); A("s_mov_b32 s55, 0")
        if ts: A("s_add_u32 s79, s51, 4"); TS(14)
        A("s_branch L_go")
        LB("L_dec")
        C("s62: what refills the free slot while this tile is computed: 1 loads, 3 loads with the second half unthrottled, 4 a parked tile, 0 nothing")
        C("s55: wanted number of tiles in the ring (3 at first, 2 later so that nothing waits unprocessed at the end, 0 when the pool is empty)")
        A("s_waitcnt vmcnt(8) lgkmcnt(0)")
        A("s_add_u32 s39, s39, 1")
        A("s_cmp_gt_u32 s44, s55"); A("s_cbranch_scc1 L_go")
        A("s_mov_b32 s63, 1")
        if NV:
            A("s_cmp_eq_u32 s52, 0"); A("s_cbranch_scc1 L_np")
            A("s_sub_u32 s53, s53, 1"); A("s_cmp_eq_u32 s53, 0"); A("s_cselect_b32 s62, 4, 0"); A("s_cbranch_scc1 L_go")
            A("s_cmp_eq_u32 s53, 1"); A(f"s_cselect_b32 s63, {3 if burst else 1}, 1"); A("s_branch L_src")
            LB("L_np")
        A(f"s_cmp_lt_u32 s39, {I2}"); A("s_cbranch_scc1 L_src")
        A("s_cmp_eq_u32 s55, 3"); A(f"s_cselect_b32 s63, {3 if burst else 1}, 1"); A("s_mov_b32 s55, 2")
        LB("L_src")
        A("s_cmp_eq_u32 s43, 0"); A("s_cbranch_scc1 L_dyn")
        A("s_sub_u32 s43, s43, 1"); A("s_mov_b32 s62, s63"); A("s_branch L_go")
        LB("L_dyn")
        A(f"s_cmp_ge_u32 s58, {D}"); A("s_cbranch_scc1 L_empty")
        A("s_and_b32 s49, s58, 7"); A("s_lshr_b32 s50, s58, 3")
        A("s_lshl_b32 s49, s49, 21"); A("s_lshl_b32 s50, s50, 14"); A("s_add_u32 s40, s46, s49"); A("s_add_u32 s40, s40, s50")
        A(f"s_cmp_ge_u32 s58, {D - XB}"); A("s_cselect_b32 s62, 3, s63")
        C("a wave that got one of the last rows does not ask again (the others still drain the counter)")
        A(f"s_cmp_ge_u32 s58, {D - XS}"); A("s_cselect_b32 s62, 11, s62"); A(f"s_cselect_b32 s58, {D}, s58")
        LB("L_go")
        for s in range(4): A(f"ds_read_b128 {vr(40+4*s,4)}, v{6+s}")
        for t in range(8): A(f"ds_read_b64_tr_b16 {vr(56+2*t,2)}, v{10+t}")
        kblock(0, KP[0], "L_k0")
        for s in range(4):
            A(f"s_waitcnt lgkmcnt({11-s})")
            A(f"v_mfma_f32_16x16x32_bf16 v[72:75], {vr(40+4*s,4)}, {vr(24+4*s,4)}, {'0' if s == 0 else 'v[72:75]'}")
        LB("L_sm")
        for k in range(12): A(f"v_xor_b32 v{6+k}, s54, v{6+k}")
        kblock(KP[0], KP[1], "L_k1")
        A("v_cvt_pk_bf16_f32 v110, v72, v73"); A("v_cvt_pk_bf16_f32 v111, v74, v75")
        unpack(112, 110); unpack(114, 111)
        for k in range(4): A(f"v_mul_f32 v{112+k}, {SCALE:#x}, v{112+k}")
        A("v_cvt_pk_bf16_f32 v110, v112, v113"); A("v_cvt_pk_bf16_f32 v111, v114, v115")
        unpack(112, 110); unpack(114, 111)
        A("v_max3_f32 v116, v112, v113, v114"); A("v_max_f32 v117, v115, v18")
        for k in range(4): A(f"v_fma_f32 v{72+k}, v{112+k}, s45, v19")
        A("v_max_f32 v110, v116, v117"); A("v_max_f32 v111, v116, v117")
        A("v_cmp_gt_f32 vcc, v110, v18")
        A("v_mov_b32 v118, 1.0")
        A("s_cbranch_vccnz L_newmax")
        for k in range(4): A(f"v_exp_f32 v{112+k}, v{72+k}")
        A("s_nop 0")
        LB("L_nors")
        A("v_add_f32 v116, v112, v113"); A("v_add_f32 v117, v114, v115")
        A("v_cvt_pk_bf16_f32 v120, v112, v113"); A("v_cvt_pk_bf16_f32 v121, v114, v115")
        A("v_add_f32 v116, v116, v117"); A("v_fma_f32 v109, v109, v118, v116")
        A("s_cmp_gt_u32 s44, 1"); A("s_cbranch_scc1 L_pv")
        for k in range(8): A(f"v_xor_b32 v{10+k}, s54, v{10+k}")
        TC(1)
        A("s_waitcnt vmcnt(0)")
        TC(2)
        for t in range(8): A(f"ds_read_b64_tr_b16 {vr(56+2*t,2)}, v{10+t}")
        for t in range(8):
            A(f"s_waitcnt lgkmcnt({7-t})"); A(f"v_mfma_f32_16x16x16_bf16 {vr(76+4*t,4)}, {vr(56+2*t,2)}, v[120:121], {vr(76+4*t,4)}")
        A("s_branch L_fin")
        LB("L_pv")
        kblock(KP[0] + KP[1], KP[2], "L_k2")
        A("s_waitcnt lgkmcnt(0)")
        for t in range(8): A(f"v_mfma_f32_16x16x16_bf16 {vr(76+4*t,4)}, {vr(56+2*t,2)}, v[120:121], {vr(76+4*t,4)}")
        A("s_xor_b32 s54, s54, 0x4000")
        A("s_bitcmp1_b32 s62, 0"); A("s_cbranch_scc1 L_rest")
        A("s_cmp_lg_u32 s62, 0"); A("s_cbranch_scc1 L_park")
        A("s_sub_u32 s44, s44, 1"); A("s_branch L_tile")
        LB("L_rest")
        if sum(KP) == 0: A("s_mov_b32 m0, s41")
        for i in range(sum(KP), 4): kload(i)
        A("s_lshr_b32 s48, s62, 3"); A("s_or_b32 s48, s48, s43"); A("s_cbranch_scc1 L_notk")
        A("s_mov_b32 s58, 1"); A("s_atomic_add s58, s[26:27], s57 glc")
        LB("L_notk")
        A("s_add_u32 m0, s41, 4096")
        A("s_bitcmp1_b32 s62, 1"); A("s_cbranch_scc1 L_vb")
        for i in range(4): A(f"s_waitcnt vmcnt({PACE})"); A(f"buffer_load_dwordx4 v{2+i}, s[32:35], s40 offen offset:{i*1024} {kv_flags} lds")
        LB("L_issued")
        adv()
        LB("L_slot")
        A("s_xor_b32 s41, s41, s42"); A("s_xor_b32 s42, s42, 0x4000")
        if prog:
            A("s_bitcmp1_b32 s62, 0"); A("s_addc_u32 s51, s51, 0")
            for k, r in enumerate((4, 8, 12, 16, 20, 24, 28)):
                A(f"s_cmp_eq_u32 s51, {r}"); A(f"s_cbranch_scc0 L_pg{k}"); TS(7 + k); LB(f"L_pg{k}")
        A("s_branch L_tile")
        LB("L_vb")
        for i in range(4): A(f"buffer_load_dwordx4 v{2+i}, s[32:35], s40 offen offset:{i*1024} {kv_flags} lds")
        A("s_branch L_issued")
        LB("L_park")
        C("a parked tile takes the free slot")
        A(f"s_mov_b32 s53, {VSTEP + 1}"); A("s_sub_u32 s52, s52, 1"); A("s_mov_b32 s56, s39")
        A("v_lshl_add_u32 v116, v0, 4, s41")
        for k in range(NV):
            if k < NV - 1: A(f"s_cmp_lg_u32 s52, {k}"); A(f"s_cbranch_scc1 L_pk{k}")
            for i in range(8): A(f"ds_write_b128 v116, {vr(128+32*k+4*i,4)} offset:{1024*i}")
            A("s_branch L_slot")
            if k < NV - 1: LB(f"L_pk{k}")
        if not NV: A("s_branch L_slot")
    else:
        LB("L_tile")
        A("s_waitcnt vmcnt(24)")
        A("s_cmp_gt_u32 s44, 3"); A("s_cbranch_scc1 L_go")
        A("s_waitcnt vmcnt(16)"); A("s_cmp_gt_u32 s44, 2"); A("s_cbranch_scc1 L_go")
        A("s_waitcnt vmcnt(8)"); A("s_cmp_gt_u32 s44, 1"); A("s_cbranch_scc1 L_go")
        if ksplit:
            C("last tile: start on K while V is still arriving")
            A("s_waitcnt vmcnt(4)")
            TS(3); TC(0)
            for s in range(4): A(f"ds_read_b128 {vr(40+4*s,4)}, v{6+s}")
            for s in range(4):
                A(f"s_waitcnt lgkmcnt({3-s})")
                A(f"v_mfma_f32_16x16x32_bf16 v[72:75], {vr(40+4*s,4)}, {vr(24+4*s,4)}, {'0' if s == 0 else 'v[72:75]'}")
            A("s_branch L_sm")
        else:
            A("s_waitcnt vmcnt(0)")
            TS(3)
        LB("L_go")
        if nocomp: A("s_waitcnt lgkmcnt(0)"); A("s_branch L_skipc")
        for s in range(4): A(f"ds_read_b128 {vr(40+4*s,4)}, v{6+s}")
        for t in range(8): A(f"ds_read_b64_tr_b16 {vr(56+2*t,2)}, v{10+t}")
        for s in range(4):
            A(f"s_waitcnt lgkmcnt({11-s})")
            A(f"v_mfma_f32_16x16x32_bf16 v[72:75], {vr(40+4*s,4)}, {vr(24+4*s,4)}, {'0' if s == 0 else 'v[72:75]'}")
        LB("L_sm")
        for k in range(12): A(f"v_xor_b32 v{6+k}, s54, v{6+k}")
        A("v_cvt_pk_bf16_f32 v110, v72, v73"); A("v_cvt_pk_bf16_f32 v111, v74, v75")
        unpack(112, 110); unpack(114, 111)
        for k in range(4): A(f"v_mul_f32 v{112+k}, {SCALE:#x}, v{112+k}")
        A("v_cvt_pk_bf16_f32 v110, v112, v113"); A("v_cvt_pk_bf16_f32 v111, v114, v115")
        unpack(112, 110); unpack(114, 111)
        if lazy:
            A("v_max3_f32 v116, v112, v113, v114"); A("v_max_f32 v117, v115, v18")
            for k in range(4): A(f"v_fma_f32 v{72+k}, v{112+k}, s45, v19")
            A("v_max_f32 v110, v116, v117"); A("v_max_f32 v111, v116, v117")
            A("v_cmp_gt_f32 vcc, v110, v18")
            A("v_mov_b32 v118, 1.0")
            A("s_cbranch_vccnz L_newmax")
            for k in range(4): A(f"v_exp_f32 v{112+k}, v{72+k}")
            A("s_nop 0")
        else:
            A("v_max3_f32 v116, v112, v113, v114"); A("v_max3_f32 v116, v116, v115, v18")
            swap_red("max_f32", [116], [117], 16); swap_red("max_f32", [116], [117], 32)
            A(f"v_mul_f32 v117, {NL2E:#x}, v116"); A("v_floor_f32 v117, v117")
            A("v_cmp_lt_f32 vcc, v117, v19")
            A("v_sub_f32 v118, v117, v19")
            for k in range(4): A(f"v_fma_f32 v{112+k}, v{112+k}, s45, v117")
            A("v_exp_f32 v118, v118")
            for k in range(4): A(f"v_exp_f32 v{112+k}, v{112+k}")
            A("v_mov_b32 v18, v116"); A("v_mov_b32 v19, v117")
            A("s_cbranch_vccz L_nors")
            for k in range(16): A(f"v_pk_mul_f32 {vr(76+2*k,2)}, {vr(76+2*k,2)}, v[118:119] op_sel_hi:[1,0]")
        LB("L_nors")
        A("v_add_f32 v116, v112, v113"); A("v_add_f32 v117, v114, v115")
        A("v_cvt_pk_bf16_f32 v120, v112, v113"); A("v_cvt_pk_bf16_f32 v121, v114, v115")
        A("v_add_f32 v116, v116, v117"); A("v_fma_f32 v109, v109, v118, v116")
        if ksplit:
            A("s_cmp_gt_u32 s44, 1"); A("s_cbranch_scc1 L_pv")
            for k in range(8): A(f"v_xor_b32 v{10+k}, s54, v{10+k}")
            TC(1)
            A("s_waitcnt vmcnt(0)")
            TC(2)
            for t in range(8): A(f"ds_read_b64_tr_b16 {vr(56+2*t,2)}, v{10+t}")
            for t in range(8):
                A(f"s_waitcnt lgkmcnt({7-t})"); A(f"v_mfma_f32_16x16x16_bf16 {vr(76+4*t,4)}, {vr(56+2*t,2)}, v[120:121], {vr(76+4*t,4)}")
            A("s_branch L_fin")
            LB("L_pv")
        A("s_waitcnt lgkmcnt(0)")
        for t in range(8): A(f"v_mfma_f32_16x16x16_bf16 {vr(76+4*t,4)}, {vr(56+2*t,2)}, v[120:121], {vr(76+4*t,4)}")
        LB("L_skipc")
        if NV:
            A("s_cmp_eq_u32 s52, 0"); A("s_cbranch_scc1 L_nopark")
            A("s_sub_u32 s53, s53, 1"); A("s_cmp_lg_u32 s53, 0"); A("s_cbranch_scc1 L_nopark")
            LB("L_park")
            C("move a parked tile into the slot that just became free and run it")
            A(f"s_mov_b32 s53, {VSTEP + 1}"); A("s_sub_u32 s52, s52, 1")
            A("v_lshl_add_u32 v116, v0, 4, s41")
            A("s_waitcnt vmcnt(8)")
            for k in range(NV):
                if k < NV - 1: A(f"s_cmp_lg_u32 s52, {k}"); A(f"s_cbranch_scc1 L_pk{k}")
                for i in range(8): A(f"ds_write_b128 v116, {vr(128+32*k+4*i,4)} offset:{1024*i}")
                if k < NV - 1: A("s_branch L_pkd"); LB(f"L_pk{k}")
            LB("L_pkd")
            for k in range(12): A(f"v_xor_b32 v{6+k}, s54, v{6+k}")
            A("s_branch L_go")
            LB("L_nopark")
        A("s_xor_b32 s54, s54, 0x4000")
        C("s55: wanted number of tiles in the ring (4 at first, 2 later so that nothing waits unprocessed at the end, 0 when the pool is empty)")
        A("s_add_u32 s39, s39, 1")
        A(f"s_cmp_lt_u32 s39, {I1}"); A("s_cbranch_scc1 L_keep")
        A("s_cmp_lg_u32 s52, 0"); A("s_cbranch_scc1 L_keep")
        A(f"s_cmp_lt_u32 s39, {I2}"); A("s_cselect_b32 s48, 3, 2"); A("s_min_u32 s55, s55, s48")
        A("s_cmp_gt_u32 s44, s55"); A("s_cbranch_scc1 L_drain")
        LB("L_keep")
        if WTRIG:
            A(f"s_cmp_lg_u32 s43, {WTRIG}"); A("s_cbranch_scc1 L_notrig")
            A(f"ds_add_u32 v1, v119 offset:{WQC - CNT}")
            LB("L_notrig")
        A("s_cmp_eq_u32 s43, 0"); A("s_cbranch_scc1 L_dyn")
        if SKW or SKF:
            C("workgroups that also fetch weights fall behind: they jump a few rows to stay level with their neighbours and do those rows last")
            A(f"s_cmp_lg_u32 s43, {SKT}"); A("s_cbranch_scc1 L_nsk")
            A("s_mov_b32 s63, s40"); A("s_lshl_b32 s48, s62, 16"); A("s_add_u32 s40, s40, s48")
            LB("L_nsk")
            A("s_cmp_eq_u32 s43, s62"); A("s_cselect_b32 s40, s63, s40")
        A("s_sub_u32 s43, s43, 1"); A("s_branch L_issue")
        LB("L_dyn")
        if F:
            C("rows of this page are handed out in order to its four workgroups; each wave's last page ticket is one of the last four")
            A("s_cmp_eq_u32 s56, s57"); A("s_cbranch_scc1 L_head")
            if fk: A("s_mov_b32 s58, s62"); A("s_add_u32 s62, s62, 4")
            A("s_lshl_b32 s50, s58, 14"); A("s_add_u32 s40, s59, s50")
            A(f"s_cmp_ge_u32 s58, {P - 4}"); A("s_cselect_b32 s56, s57, s56")
            A("s_branch L_issue")
            LB("L_head")
        if wgt:
            C("one row of four tiles per ticket: the first wave to need it asks, the others read its answer")
            A("s_cmp_eq_u32 s56, 0"); A("s_cbranch_scc1 L_rdq")
            A("v_mov_b32 v22, s58"); A(f"ds_write_b32 v23, v22 offset:{TQ - EL}"); A("s_branch L_gotq")
            LB("L_rdq")
            A(f"ds_read_b32 v22, v23 offset:{TQ - EL}"); A("s_waitcnt lgkmcnt(0)"); A("v_readfirstlane_b32 s58, v22")
            A("s_cmp_eq_u32 s58, -1"); A("s_cbranch_scc1 L_rdq")
            LB("L_gotq")
        A(f"s_cmp_ge_u32 s58, {D}"); A("s_cbranch_scc1 L_empty")
        if wgt: A("v_add_u32 v23, 4, v23")
        A("s_and_b32 s49, s58, 7"); A("s_lshr_b32 s50, s58, 3")
        A("s_lshl_b32 s49, s49, 21"); A("s_lshl_b32 s50, s50, 14"); A("s_add_u32 s40, s46, s49"); A("s_add_u32 s40, s40, s50")
        if XB:
            A(f"s_cmp_lt_u32 s58, {D - XB}"); A("s_cbranch_scc1 L_issue")
            C("last round of the pool: others have stopped, do not hold these loads back")
            if XS:
                C("a wave that got one of the last XS rows does not ask again (the others still drain the counter)")
                A(f"s_cmp_ge_u32 s58, {D - XS}"); A("s_cselect_b32 s43, 1, 0"); A(f"s_cselect_b32 s58, {D}, s58")
            issue_tile(PACEB, 2)
            if XS: A("s_mov_b32 s43, 0")
            A("s_branch L_issued")
        LB("L_issue")
        issue_tile(PACE, 1)
        LB("L_issued")
        A("s_xor_b32 s41, s41, s42"); A("s_xor_b32 s42, s42, 0x4000")
        if prog:
            A("s_add_u32 s51, s51, 1")
            for k, r in enumerate((4, 8, 12, 16, 20, 24, 28)):
                A(f"s_cmp_eq_u32 s51, {r}"); A(f"s_cbranch_scc0 L_pg{k}"); TS(7 + k); LB(f"L_pg{k}")
        A("s_branch L_tile")
        LB("L_empty")
        if NV:
            A("s_cmp_eq_u32 s52, 0"); A("s_cbranch_scc1 L_empty2")
            A("s_xor_b32 s54, s54, 0x4000"); A("s_branch L_park")
            LB("L_empty2")
        A(f"ds_write_b32 v1, v119 offset:{GATE - CNT}"); A("s_mov_b32 s55, 0")
        if ts: A("s_add_u32 s79, s51, 4"); TS(14)
        LB("L_drain")
        A("s_sub_u32 s44, s44, 1"); A("s_cmp_lg_u32 s44, 0"); A("s_cbranch_scc1 L_tile")
    LB("L_fin")
    TS(4); TC(3)
    C("epilogue: merge the four waves' partial results, publish")
    A("v_mov_b32 v116, v109"); A("v_mov_b32 v108, v19"); A("s_nop 0")
    A("v_permlane16_swap_b32 v109, v116"); A("v_add_f32 v117, v109, v116"); A("v_add_f32 v109, v109, v116")
    A("s_mov_b32 exec_lo, 0x000f000f"); A("s_mov_b32 exec_hi, 0x000f000f")
    for t in range(8): A(f"ds_write_b128 v122, {vr(76+4*t,4)} offset:{64*t}")
    A("s_mov_b64 exec, -1")
    A("v_permlane32_swap_b32 v109, v117"); A("v_add_f32 v109, v109, v117")
    A("s_mov_b64 exec, 15")
    A("ds_write_b64 v123, v[108:109]")
    A("s_mov_b64 exec, 1")
    A("ds_add_rtn_u32 v111, v1, v119")
    A("s_mov_b64 exec, -1")
    A("s_waitcnt lgkmcnt(0)")
    TC(4)
    A("v_readfirstlane_b32 s44, v111")
    if fine: A("s_mov_b32 s79, s44")
    A("s_cmp_eq_u32 s44, 3"); A("s_cbranch_scc0 L_sdone")
    if mlt: A("v_mov_b32 v33, v22"); A("v_mov_b32 v35, v22")
    for w in range(4): A(f"ds_read_b64 {vr(24+2*w,2)}, v125 offset:{32*w}")
    for w in range(4):
        A(f"ds_read_b128 {vr(40+8*w,4)}, v124 offset:{2048*w}"); A(f"ds_read_b128 {vr(44+8*w,4)}, v124 offset:{2048*w+16}")
    A("s_waitcnt lgkmcnt(8)")
    A("v_min3_f32 v32, v24, v26, v28"); A("v_min_f32 v32, v32, v30")
    for w in range(4): A(f"v_sub_f32 v{24+2*w}, v32, v{24+2*w}")
    for w in range(4): A(f"v_exp_f32 v{24+2*w}, v{24+2*w}")
    A("s_waitcnt lgkmcnt(6)")
    for k in range(4): A(f"v_pk_mul_f32 {vr(40+2*k,2)}, {vr(40+2*k,2)}, v[24:25] op_sel_hi:[1,0]")
    for w in range(1, 4):
        A(f"s_waitcnt lgkmcnt({6 - 2*w})")
        for k in range(4): A(f"v_pk_fma_f32 {vr(40+2*k,2)}, {vr(40+8*w+2*k,2)}, {vr(24+2*w,2)}, {vr(40+2*k,2)} op_sel_hi:[1,0,1]")
    for k in range(4): A(f"v_cvt_pk_bf16_f32 v{40+k}, v{40+2*k}, v{41+2*k}")
    A("global_store_dwordx4 v126, v[40:43], s[26:27] sc1")
    lr = 34 if mlt else 33
    A(f"v_mul_f32 v{lr}, v24, v25")
    for w in range(1, 4): A(f"v_fmac_f32 v{lr}, v{24+2*w}, v{25+2*w}")
    A("s_mov_b32 exec_lo, 0x00010001"); A("s_mov_b32 exec_hi, 0x00010001")
    if mlt: A("global_store_dwordx4 v127, v[32:35], s[26:27] sc1")
    else: A("global_store_dwordx2 v127, v[32:33], s[26:27] sc1")
    A("v_mov_b32 v117, 2"); A(f"ds_write_b32 v1, v117 offset:{GATE - CNT}")
    LB("L_sdone")
    TC(5); TC_fin(6)
    TS(5)
    TS_flush()
    A("s_endpgm")

    if lazy:
        LB("L_newmax")
        C("some row has a new maximum: agree on it across the four key groups, rescale")
        A("v_permlane16_swap_b32 v110, v111"); A("v_max_f32 v116, v110, v111"); A("v_max_f32 v117, v110, v111"); A("s_nop 1")
        A("v_permlane32_swap_b32 v116, v117"); A("v_max_f32 v18, v116, v117")
        A(f"v_mul_f32 v117, {NL2E:#x}, v18"); A("v_floor_f32 v117, v117")
        A("v_cmp_lt_f32 vcc, v117, v19")
        A("v_sub_f32 v118, v117, v19")
        for k in range(4): A(f"v_fma_f32 v{112+k}, v{112+k}, s45, v117")
        A("v_exp_f32 v118, v118")
        for k in range(4): A(f"v_exp_f32 v{112+k}, v{112+k}")
        A("v_mov_b32 v19, v117")
        A("s_cbranch_vccz L_nors")
        for k in range(16): A(f"v_pk_mul_f32 {vr(76+2*k,2)}, {vr(76+2*k,2)}, v[118:119] op_sel_hi:[1,0]")
        A("s_branch L_nors")
    LB("L_helper")
    if noh: A("s_endpgm")
    A("s_mov_b32 s47, s39")
    A("s_mov_b32 s50, s39")
    A("s_cmp_eq_u32 s37, 15"); A("s_cselect_b32 s47, 3, s47")
    A("s_sub_u32 s39, s3, 4")
    A("s_and_b32 s48, s37, 7")
    A("s_mul_i32 s59, s36, 7"); A("s_add_u32 s59, s59, s48")
    A("s_lshl_b32 s49, s48, 3"); A("s_add_u32 s49, s49, s36")
    A("v_lshrrev_b32 v20, 4, v0"); A("v_and_b32 v21, 15, v0")
    A("v_lshrrev_b32 v22, 3, v21"); A("v_and_b32 v23, 7, v21")
    A("s_mov_b32 s44, 0x05040100"); A("s_mov_b32 s45, 0x07060302")
    if dry: A("s_mov_b32 s46, 0")
    A("s_cmp_eq_u32 s39, 0"); A("s_cbranch_scc1 L_w4")
    if noroles: A("s_endpgm")
    A("s_cmp_ge_u32 s47, 2"); A("s_cbranch_scc1 L_end")
    if ts: A("s_mov_b32 s64, s60")
    A(f"v_mov_b32 v1, {QRDY}")
    LB("L_hq")
    A("s_sleep 4"); A("ds_read_b32 v2, v1"); A("s_waitcnt lgkmcnt(0)"); A("v_readfirstlane_b32 s40, v2")
    A("s_cmp_eq_u32 s40, 0"); A("s_cbranch_scc1 L_hq")
    A(f"ds_read_b32 v3, v1 offset:{TAGL - QRDY}"); A("s_waitcnt vmcnt(0) lgkmcnt(0)")
    A("s_branch L_roles")

    LB("L_w4")
    C("first helper wave: reset this workgroup's hand-off slots; 128 rows x 64 columns of LN(x) @ wq; gather q")
    if w4stop == 1: A("s_endpgm")
    A("s_setprio 3")
    if ts: A("s_mov_b32 s64, s60")
    for k in range(4): A(f"v_mov_b32 v{72+k}, -1")
    A("s_lshl_b32 s40, s36, 15"); A("s_lshl_b32 s41, s38, 8"); A("s_add_u32 s40, s40, s41"); A(f"s_add_u32 s40, s40, {PART}")
    A("v_lshlrev_b32 v76, 13, v20"); A("v_lshl_add_u32 v76, v21, 4, v76"); A("v_add_u32 v76, s40, v76")
    A("s_lshl_b32 s40, s36, 12"); A("s_lshl_b32 s41, s38, 7"); A("s_add_u32 s41, s40, s41"); A(f"s_add_u32 s41, s41, {ML}")
    A("v_lshl_add_u32 v77, v20, 3, s41")
    A(f"v_add_u32 v10, {HN}, v1")
    A("s_lshl_b32 s40, s50, 8"); A(f"s_add_u32 s40, s40, {HN}"); A("v_lshl_add_u32 v11, v20, 4, s40")
    A("v_bfe_u32 v13, v0, 2, 2"); A("v_lshl_add_u32 v13, v20, 3, v13"); A("v_lshlrev_b32 v13, 7, v13")
    A("v_and_b32 v14, 3, v0"); A("v_lshl_add_u32 v13, v14, 3, v13"); A(f"v_add_u32 v13, {WQL}, v13")
    A(f"v_lshlrev_b32 v14, 2, v0"); A(f"v_add_u32 v18, {QL}, v14")
    A("s_lshl_b32 s40, s36, 14"); A(f"s_add_u32 s40, s40, {QBUF + 4096}")
    A("v_add_u32 v17, s40, v1"); A("v_add_u32 v19, 0x2000, v17")
    A("s_lshl_b32 s41, s50, 12"); A("s_add_u32 s40, s40, s41"); A("s_lshl_b32 s41, s48, 9"); A("s_add_u32 s40, s40, s41"); A("s_sub_u32 s40, s40, 4096")
    A("v_lshl_add_u32 v15, v0, 3, s40")
    A("s_lshl_b32 s40, s2, 2"); A(f"s_add_u32 s40, s40, {ALIVE}"); A("v_mov_b32 v78, s40")
    A("v_cmp_eq_u32 s[52:53], 1, v20"); A("v_cmp_eq_u32 s[54:55], 2, v20"); A("v_cmp_eq_u32 s[56:57], 3, v20")
    A(f"v_mov_b32 v14, {WQC}")
    A("s_waitcnt vmcnt(0)")
    TS(1)
    if not nopois: A("global_store_dwordx4 v76, v[72:75], s[26:27] " + pof)
    if not mlt:
        A("s_mov_b32 exec_lo, 0x00010001"); A("s_mov_b32 exec_hi, 0x00010001")
        A("global_store_dwordx2 v77, v[72:73], s[26:27] " + pof)
        A("s_mov_b64 exec, -1")
    if gok:
        if nopois < 2: A("s_cmp_ge_u32 s47, 2"); A("s_cbranch_scc0 L_w4r")
        LB("L_w4b")
    A(f"v_add_u32 v3, {TAGC:#x}, v3")
    layernorm(4, 24, 32)
    A("ds_write_b128 v10, v[4:7]")
    for k in range(4): A(f"ds_read_b128 {vr(40+4*k,4)}, v11 offset:{64*k}")
    LB("L_wqw")
    A("ds_read_b32 v24, v14"); A("s_waitcnt lgkmcnt(0)"); A("v_readfirstlane_b32 s40, v24")
    A("s_cmp_lt_u32 s40, 4"); A("s_cbranch_scc1 L_wqw")
    TS(2)
    for k in range(4):
        for t in range(4):
            r = 96 + 16 * k + 4 * t
            A(f"ds_read_b64_tr_b16 {vr(r,2)}, v13 offset:{4096*k + 32*t}"); A(f"ds_read_b64_tr_b16 {vr(r+2,2)}, v13 offset:{4096*k + 32*t + 512}")
    for k in range(4):
        for t in range(4):
            n = 4 * k + t
            A(f"s_waitcnt lgkmcnt({min(15, 2*(15-n))})")
            A(f"v_mfma_f32_16x16x32_bf16 {vr(56+4*t,4)}, {vr(40+4*k,4)}, {vr(96+16*k+4*t,4)}, {'0' if k == 0 else vr(56+4*t,4)}")
    A("s_nop 5")
    A("v_cndmask_b32 v2, v56, v60, s[52:53]"); A("s_nop 0"); A("v_cndmask_b32 v2, v2, v64, s[54:55]"); A("v_cndmask_b32 v2, v2, v68, s[56:57]")
    if gok: A("s_waitcnt vmcnt(0)")
    A("global_store_dwordx2 v15, v[2:3], s[26:27] " + qsf)
    if not nohint:
        A("s_mov_b64 exec, 1"); A(f"global_store_dword v78, v3, s[26:27] offset:{QH - ALIVE} sc1"); A("s_mov_b64 exec, -1")
    if not gok:
        A("s_cmp_ge_u32 s47, 2"); A("s_cbranch_scc0 L_w4r")
        LB("L_w4b")
    if w4stop == 2: A("s_endpgm")
    TS(3)
    A(f"s_mov_b32 s51, {SPIN_MAX}")
    def qload(r):
        for i in range(16): A(f"global_load_dwordx4 {vr(r+4*i,4)}, v{17 if i < 8 else 19}, s[26:27] offset:{(i % 8) * 1024 - 4096} sc1")
    def qcheck(r):
        A(f"v_xor_b32 v24, v{r+1}, v3"); A(f"v_xor_b32 v25, v{r+3}, v3")
        ws = [r + 4 * i + k for i in range(1, 16) for k in (1, 3)]
        for n, w in enumerate(ws):
            A(f"v_xor_b32 v26, v{w}, v3"); A(f"v_or_b32 v{24 + (n & 1)}, v{24 + (n & 1)}, v26")
        A("v_or_b32 v24, v24, v25"); A("v_cmp_ne_u32 vcc, 0, v24")
    def qsum(r):
        for k in range(4):
            for h in (0, 2):
                A(f"v_add_f32 v{r+4*k+h}, v{r+4*k+h}, v{r+16+4*k+h}"); A(f"v_add_f32 v{r+32+4*k+h}, v{r+32+4*k+h}, v{r+48+4*k+h}")
        for k in range(4):
            for h in (0, 2): A(f"v_add_f32 v{r+4*k+h}, v{r+4*k+h}, v{r+32+4*k+h}")
        for k in range(4): A(f"v_cvt_pk_bf16_f32 v{24+k}, v{r+4*k}, v{r+4*k+2}")
    if not nohint: C("the group's 32 words announce the partial q stores; the tags inside the data are what is trusted")
    if nohint:
        if nohint > 1: A(f"s_sleep {nohint}")
        A("s_waitcnt vmcnt(0)")
    elif sq:
        A("v_readfirstlane_b32 s58, v3"); A("s_lshl_b32 s41, s36, 7"); A(f"s_add_u32 s41, s41, {QH + 4 * (32 - QW)}")
        scheck("L_qh", 0, QW)
        A(f"s_mov_b32 s51, {SPIN_MAX}")
        A("s_waitcnt vmcnt(0)")
    else:
        A("s_lshl_b32 s40, s36, 7"); A(f"s_add_u32 s40, s40, {QH}"); A("v_and_b32 v12, 31, v0"); A("v_lshl_add_u32 v12, v12, 2, s40")
        A("global_load_dword v28, v12, s[26:27] sc1")
        A(f"s_sleep {qsleep}")
        LB("L_qhint")
        A("global_load_dword v29, v12, s[26:27] sc1")
        A("s_waitcnt vmcnt(1)")
        A("v_cmp_eq_u32 vcc, v28, v3"); A("s_bcnt1_i32_b32 s40, vcc_lo"); A(f"s_cmp_ge_u32 s40, {QTH}"); A("s_cbranch_scc1 L_qgo")
        A("global_load_dword v28, v12, s[26:27] sc1")
        A("s_waitcnt vmcnt(1)")
        A("v_cmp_eq_u32 vcc, v29, v3"); A("s_bcnt1_i32_b32 s40, vcc_lo")
        A("s_sub_u32 s51, s51, 1"); A("s_cbranch_scc1 L_qgo")
        A(f"s_cmp_lt_u32 s40, {QTH}"); A("s_cbranch_scc1 L_qhint")
    LB("L_qgo")
    if not gok: C("the resets have landed: tell the later stages")
    A("s_mov_b64 exec, 1") if not gok else None
    if not gok: A("global_store_dword v78, v3, s[26:27] sc1")
    if sa:
        A("s_cmp_ge_u32 s47, 2"); A("s_cbranch_scc1 L_noar")
        A("s_lshl_b32 s40, s36, 3"); A("s_add_u32 s40, s40, s48"); A("s_add_u32 s41, s49, 64"); A("s_cmp_eq_u32 s47, 0"); A("s_cselect_b32 s40, s40, s41")
        A("s_lshl_b32 s40, s40, 2"); A(f"s_add_u32 s40, s40, {AR}"); A("v_mov_b32 v77, s40")
        A("global_store_dword v77, v3, s[26:27] sc1")
        LB("L_noar")
    if not gok: A("s_mov_b64 exec, -1")
    TS(12)
    if w4stop == 3: A("s_endpgm")
    A(f"s_mov_b32 s55, {qmask}")
    LB("L_qpoll")
    for i in range(16):
        A(f"s_bitcmp1_b32 s55, {i}"); A(f"s_cbranch_scc0 L_qs{i}")
        A(f"global_load_dwordx4 {vr(96+4*i,4)}, v{17 if i < 8 else 19}, s[26:27] offset:{(i % 8) * 1024 - 4096} {qgf}")
        LB(f"L_qs{i}")
    A("s_waitcnt vmcnt(0)")
    for i in range(16):
        A(f"v_cmp_ne_u32 vcc, v{97+4*i}, v3"); A(f"v_cmp_ne_u32 s[40:41], v{99+4*i}, v3"); A("s_or_b64 vcc, vcc, s[40:41]")
        A(f"s_cbranch_scc1 L_qc{i}"); A(f"s_bitset0_b32 s55, {i}"); LB(f"L_qc{i}")
    A("s_sub_u32 s51, s51, 1"); A("s_cbranch_scc1 L_qgot")
    if qretry:
        A("s_cmp_eq_u32 s55, 0"); A("s_cbranch_scc1 L_qgot"); A(f"s_sleep {qretry}"); A("s_branch L_qpoll")
    else: A("s_cmp_lg_u32 s55, 0"); A("s_cbranch_scc1 L_qpoll")
    LB("L_qgot")
    qsum(96)
    if wgt:
        A(f"v_add_u32 v28, {EL}, v1"); A(f"ds_write_b128 v28, v[72:75] offset:{TQ - EL}")
        for k in range(4): A(f"v_mov_b32 v{76+k}, 0")
        A("ds_write_b128 v28, v[76:79]")
    A("ds_write2_b32 v18, v24, v25 offset0:0 offset1:64"); A("ds_write2_b32 v18, v26, v27 offset0:128 offset1:192")
    A(f"v_mov_b32 v18, {QRDY}"); A("v_mov_b32 v19, 1")
    A(f"ds_write_b32 v18, v3 offset:{TAGL - QRDY}"); A("ds_write_b32 v18, v19")
    A("s_waitcnt lgkmcnt(0)")
    A("s_setprio 0")
    if gok:
        C("one member per group tells the later stages that all 32 members' resets have landed")
        A("s_cmp_lg_u32 s37, 16"); A("s_cbranch_scc1 L_nogok")
        A("s_lshl_b32 s40, s36, 2"); A(f"s_add_u32 s40, s40, {ALIVE}"); A("v_mov_b32 v78, s40")
        A("s_mov_b64 exec, 1"); A("global_store_dword v78, v3, s[26:27] sc1"); A("s_mov_b64 exec, -1")
        LB("L_nogok")
    TS(4)
    if touch:
        A("v_lshlrev_b32 v4, 21, v0"); A("s_lshl_b32 s40, s36, 24"); A(f"s_add_u32 s40, s40, {0x200000 - 128}"); A("v_add_u32 v4, s40, v4")
        A("s_mov_b64 exec, 0xff")
        A("global_load_dword v240, v4, s[6:7] nt"); A("global_load_dword v240, v4, s[8:9] nt")
        A("s_mov_b64 exec, -1")
    A("s_waitcnt vmcnt(0)")
    A("s_branch L_roles")
    LB("L_w4r")
    A("s_cmp_eq_u32 s47, 0"); A("s_cbranch_scc0 L_w4f")
    A("s_lshl_b32 s40, s48, 11"); A("s_lshl_b32 s41, s36, 8"); A("s_add_u32 s40, s40, s41"); A(f"s_add_u32 s40, s40, {H2}")
    A("v_lshl_add_u32 v76, v21, 4, s40")
    if rep:
        A("v_lshl_add_u32 v76, v20, 14, v76"); A("v_add_u32 v77, 0x10000, v76")
        A("global_store_dwordx4 v76, v[72:75], s[26:27] " + pof); A("global_store_dwordx4 v77, v[72:75], s[26:27] " + pof)
    else:
        A("s_mov_b64 exec, 0xffff")
        A("global_store_dwordx4 v76, v[72:75], s[26:27] " + pof)
        A("s_mov_b64 exec, -1")
    A("s_branch L_w4b")
    LB("L_w4f")
    A("s_lshl_b32 s41, s49, 7"); A(f"s_add_u32 s41, s41, {H3}")
    A("v_lshrrev_b32 v76, 3, v0"); A("v_mul_u32_u24 v76, 7168, v76"); A("v_and_b32 v77, 7, v0"); A("v_lshl_add_u32 v76, v77, 4, v76"); A("v_add_u32 v76, s41, v76")
    A(f"v_add_u32 v77, {8*7168}, v76")
    A("global_store_dwordx4 v76, v[72:75], s[26:27] " + pof); A("global_store_dwordx4 v77, v[72:75], s[26:27] " + pof)
    A("s_branch L_w4b")
    LB("L_roles")
    if noroles: A("s_branch L_hdone")
    A("s_cmp_eq_u32 s47, 1"); A("s_cbranch_scc1 L_ffn")
    A("s_cmp_eq_u32 s47, 0"); A("s_cbranch_scc0 L_hdone")
    A("s_mov_b32 s40, s36"); A("s_mov_b32 s36, s48"); A("s_mov_b32 s48, s40")

    C("wo role: merge 32 splits of one kv group, multiply by a 512x64 block of wo")
    A("s_lshl_b32 s40, s36, 2"); A("s_add_u32 s40, s40, s39")
    A("s_lshl_b32 s41, s40, 17"); A("s_lshl_b32 s42, s48, 7"); A("s_add_u32 s41, s41, s42"); A("s_add_u32 s41, s41, 4096")
    A("s_add_u32 s52, s12, s41"); A("s_addc_u32 s53, s13, 0")
    A("v_lshlrev_b32 v58, 16, v22"); A("v_lshl_add_u32 v58, v20, 13, v58"); A("v_lshl_add_u32 v58, v23, 4, v58"); A("v_add_u32 v59, 0x8000, v58")
    def wo_weights():
        if jitw: gate_wait("L_w_jit", 1); TS(11)
        for s in range(2):
            for i in range(8): A(f"global_load_dwordx4 {vr(160+32*s+4*i,4)}, v{58+s}, s[52:53] offset:{1024*i-4096} {w_flags}")
            if not jitw: A("s_waitcnt vmcnt(0)")
        for s in range(2):
            A(f"s_waitcnt vmcnt({8 - 8*s})")
            transpose8(96 + 32 * s, 160 + 32 * s)
        TS(5)
    if not jitw: wo_weights()
    alive("w")
    A("s_lshl_b32 s41, s40, 13"); A(f"s_add_u32 s41, s41, {PART}")
    A("v_lshlrev_b32 v14, 4, v21"); A("v_lshl_add_u32 v4, v20, 11, v14"); A("v_add_u32 v4, s41, v4")
    A("s_lshl_b32 s41, s36, 12"); A(f"s_lshl_b32 s42, s39, {4 if mlt else 3}"); A("s_add_u32 s41, s41, s42"); A(f"s_add_u32 s41, s41, {ML}")
    A("v_and_b32 v8, 31, v0"); A("v_lshl_add_u32 v6, v8, 7, s41")
    A("s_lshl_b32 s41, s39, 6"); A(f"s_add_u32 s41, s41, {WB}")
    A("v_lshl_add_u32 v9, v8, 1, s41"); A("v_lshl_add_u32 v10, v20, 4, s41")
    A("s_lshl_b32 s41, s39, 8"); A(f"s_add_u32 s41, s41, {OB}")
    A("v_add_u32 v11, s41, v14")
    A("v_lshlrev_b32 v12, 7, v22"); A("v_lshl_add_u32 v12, v20, 4, v12"); A("v_add_u32 v12, s41, v12")
    A("s_lshl_b32 s41, s39, 9"); A(f"s_add_u32 s41, s41, {RED}")
    A("v_lshlrev_b32 v13, 8, v22"); A("v_lshl_add_u32 v13, v23, 5, v13"); A("v_add_u32 v13, s41, v13")
    A(f"v_add_u32 v15, {RED}, v14")
    A("s_lshl_b32 s41, s36, 11"); A("s_lshl_b32 s42, s48, 8"); A("s_add_u32 s54, s41, s42")
    if jitw: wo_weights()
    if pw:
        if pw == 2: gate_wait("L_wo_pw", 1)
        if 'm' in pws: A(f"global_load_dwordx2 v[80:81], v6, s[26:27] {pwf}")
        for i in range(8 if 'p' in pws else 0): A(f"global_load_dwordx4 {vr(16+4*i,4)}, v4, s[26:27] offset:{256*i} {pwf}")
    if not dry: gate_wait("L_wo_gate0", 2 if g2 else 1); TS(8)
    LB("L_wo_pass")
    A(f"s_mov_b32 s41, {H2}")
    if dry: A("s_cmp_eq_u32 s46, 0"); A(f"s_cmov_b32 s41, {DUMMY}")
    A("s_add_u32 s41, s41, s54")
    A("v_add_u32 v7, s41, v14")
    if rep: A("v_lshrrev_b32 v5, 4, v0"); A("v_lshl_add_u32 v7, v5, 14, v7"); A("v_add_u32 v5, 0x10000, v7")
    A(f"s_mov_b32 s51, {SPIN_MAX}")
    if MLTH >= 0:
        LB("L_wo_ml")
        if mlt:
            A("global_load_dwordx4 v[224:227], v6, s[26:27] sc1")
            A("s_waitcnt vmcnt(0)")
            A("v_cmp_ne_u32 vcc, v227, v3")
        else:
            A("global_load_dwordx2 v[80:81], v6, s[26:27] sc1")
            A("s_waitcnt vmcnt(0)")
            any_poison([80, 81], 84)
        A("s_bcnt1_i32_b32 s57, vcc_lo")
        if dry: A("s_cmp_eq_u32 s46, 0"); A("s_cbranch_scc1 L_wo_go")
        A("s_sub_u32 s51, s51, 1"); A("s_cbranch_scc1 L_wo_go")
        A(f"s_cmp_gt_u32 s57, {32 - MLTH}"); A("s_cbranch_scc1 L_wo_ml")
    LB("L_wo_go")
    TS(9)
    def wload(r, m):
        A(f"global_load_dwordx4 {vr(m,4)}, v6, s[26:27] sc1" if mlt else f"global_load_dwordx2 {vr(m,2)}, v6, s[26:27] sc1")
        for i in range(8): A(f"global_load_dwordx4 {vr(r+4*i,4)}, v4, s[26:27] offset:{256*i} sc1")
    def wcheck(r, m):
        if mlt:
            A(f"v_cmp_ne_u32 s[40:41], v{m+1}, v3"); A(f"v_cmp_ne_u32 s[42:43], v{m+3}, v3")
            any_poison(list(range(r, r + 32)), 84, NCH)
            A("s_or_b64 s[40:41], s[40:41], s[42:43]"); A("s_or_b64 s[40:41], vcc, s[40:41]")
        else: any_poison([m, m+1] + list(range(r, r + 32)), 84)
    MA, MB = (224, 228) if mlt else (80, 82)
    wload(16, MA)
    if stag: A(f"s_sleep {stag}")
    LB("L_wo_poll")
    if ts: A("s_add_u32 s79, s79, 1")
    wload(48, MB)
    A("s_waitcnt vmcnt(9)")
    wcheck(16, MA)
    A("s_cbranch_scc0 L_wo_gotA" if mlt else "s_cbranch_vccz L_wo_gotA")
    wload(16, MA)
    A("s_waitcnt vmcnt(9)")
    wcheck(48, MB)
    if dry: A("s_cmp_eq_u32 s46, 0"); A("s_cbranch_scc1 L_wo_gotB")
    if mlt: A("s_cbranch_scc0 L_wo_gotB"); A("s_sub_u32 s51, s51, 1"); A("s_cbranch_scc0 L_wo_poll")
    else:
        A("s_sub_u32 s51, s51, 1"); A("s_cbranch_scc1 L_wo_gotB")
        A("s_cbranch_vccnz L_wo_poll")
    def wcomb(r, m):
        TS(6); TC(0)
        A(f"v_mov_b32 v84, v{m}")
        P = []
        for e in range(8):
            for j in range(4):
                x = r + 4 * (2 * j) + (e >> 1); y = r + 4 * (2 * j + 1) + (e >> 1)
                P.append(f"v_perm_b32 v{160+4*e+j}, v{y}, v{x}, s{45 if e & 1 else 44}")
        def fill(n):
            for _ in range(n): A(P.pop(0))
        for rot in (8, 4, 2, 1):
            fill(2); A(f"v_min_f32_dpp v84, v84, v84 row_ror:{rot} row_mask:0xf bank_mask:0xf")
        A("v_mov_b32 v85, v84"); fill(2); A("v_permlane16_swap_b32 v84, v85"); A("v_min_f32 v84, v84, v85")
        A(f"v_sub_f32 v84, v84, v{m}"); A("v_exp_f32 v84, v84"); fill(1)
        A("v_cvt_pk_bf16_f32 v86, v84, v84")
        A("ds_write_b16 v9, v86"); A("ds_read_b128 v[88:91], v10")
        A(f"v_mul_f32 v85, v84, v{m + (2 if mlt else 1)}")
        for rot in (8, 4, 2, 1):
            fill(2); A(f"v_add_f32_dpp v85, v85, v85 row_ror:{rot} row_mask:0xf bank_mask:0xf")
        A("v_mov_b32 v86, v85"); fill(2); A("v_permlane16_swap_b32 v85, v86"); A("v_add_f32 v85, v85, v86")
        A("v_rcp_f32 v85, v85")
        fill(len(P))
    LB("L_wo_gotB")
    wcomb(48, MB)
    if dry: A("s_cmp_eq_u32 s46, 0"); A("s_cbranch_scc0 L_wo_got")
    else: A("s_branch L_wo_got")
    LB("L_wo_gotA")
    wcomb(16, MA)
    LB("L_wo_got")
    TC(1)
    A("s_waitcnt lgkmcnt(0)")
    TC(2)
    for e in range(8): A(f"v_mfma_f32_16x16x32_bf16 {vr(192+4*e,4)}, v[88:91], {vr(160+4*e,4)}, 0")
    A("s_nop 0")
    for e in range(8): A(f"v_mul_f32 v{192+4*e}, v{192+4*e}, v85")
    for k in range(4): A(f"v_cvt_pk_bf16_f32 v{88+k}, v{192+8*k}, v{196+8*k}")
    TC(3)
    A("ds_write_b128 v11, v[88:91]")
    A("ds_read_b128 v[160:163], v12"); A("ds_read_b128 v[164:167], v12 offset:64")
    A("s_waitcnt lgkmcnt(1)")
    for e in range(8): A(f"v_mfma_f32_16x16x32_bf16 {vr(192+4*e,4)}, v[160:163], {vr(96+4*e,4)}, 0")
    A("s_waitcnt lgkmcnt(0)")
    for e in range(8): A(f"v_mfma_f32_16x16x32_bf16 {vr(192+4*e,4)}, v[164:167], {vr(128+4*e,4)}, {vr(192+4*e,4)}")
    A("s_mov_b32 exec_lo, 0xff"); A("s_mov_b32 exec_hi, 0xff00")
    A("s_nop 5")
    for e in range(0, 8, 2): A(f"ds_write2_b32 v13, v{192+4*e}, v{196+4*e} offset0:{e} offset1:{e+1}")
    A("s_mov_b64 exec, -1")
    TC(4)
    barrier_real("L_wo_nb")
    TC(5)
    A("s_cmp_lg_u32 s39, 0"); A("s_cbranch_scc1 L_wo_next")
    for p in range(8): A(f"ds_read_b128 {vr(160+4*p,4)}, v15 offset:{256*p}")
    for st, wcnt in ((0, 6), (8, 4), (16, 2), (24, 0)):
        A(f"s_waitcnt lgkmcnt({wcnt})")
        for h in range(2): A(f"v_pk_add_f32 {vr(160+st+2*h,2)}, {vr(160+st+2*h,2)}, {vr(164+st+2*h,2)}")
    for h in range(2): A(f"v_pk_add_f32 {vr(160+2*h,2)}, {vr(160+2*h,2)}, {vr(168+2*h,2)}")
    for h in range(2): A(f"v_pk_add_f32 {vr(176+2*h,2)}, {vr(176+2*h,2)}, {vr(184+2*h,2)}")
    for h in range(2): A(f"v_pk_add_f32 {vr(160+2*h,2)}, {vr(160+2*h,2)}, {vr(176+2*h,2)}")
    if rep:
        C("eight copies, so that the readers of different dies do not queue on one line")
        A("global_store_dwordx4 v7, v[160:163], s[26:27] sc1"); A("global_store_dwordx4 v5, v[160:163], s[26:27] sc1")
    else:
        A("s_mov_b64 exec, 0xffff")
        A("global_store_dwordx4 v7, v[160:163], s[26:27] sc1")
        A("s_mov_b64 exec, -1")
    LB("L_wo_next")
    TC(6); TC_fin(7)
    TS(7)
    if dry:
        A("s_cmp_eq_u32 s46, 1"); A("s_cbranch_scc1 L_hdone")
        A("s_mov_b32 s46, 1")
        gate_wait("L_wo_gate", 2 if g2 else 1)
        TS(8)
        A("s_branch L_wo_pass")
    else: A("s_branch L_hdone") if ts else A("s_endpgm")

    LB("L_ffn")
    C("ffn role: h, LN(h), 32 gate/up columns, 32 rows of w2; first 16 also finish 32 output columns")
    def ffn_weights():
        A("v_lshlrev_b32 v58, 6, v22"); A("v_lshl_add_u32 v58, v20, 3, v58"); A("s_lshl_b32 s40, s39, 7"); A("v_add_u32 v58, s40, v58")
        A("s_movk_i32 s40, 3584"); A("v_mul_u32_u24 v58, s40, v58")
        A("v_and_b32 v59, 3, v21"); A("v_lshl_add_u32 v58, v59, 4, v58"); A("s_lshl_b32 s40, s49, 6"); A("v_add_u32 v58, s40, v58")
        A("v_bfe_u32 v59, v21, 2, 1"); A("v_cmp_eq_u32 vcc, 1, v59")
        A("v_mov_b32 v60, s16"); A("v_mov_b32 v61, s18"); A("v_cndmask_b32 v60, v60, v61, vcc")
        A("v_mov_b32 v61, s17"); A("v_mov_b32 v62, s19"); A("v_cndmask_b32 v61, v61, v62, vcc")
        A("v_mov_b32 v59, 0"); A("v_lshl_add_u64 v[60:61], v[58:59], 0, v[60:61]")
        A("s_lshl_b32 s40, s49, 15"); A("s_lshl_b32 s41, s39, 8"); A("s_add_u32 s40, s40, s41"); A("s_add_u32 s40, s40, 4096")
        A("s_add_u32 s52, s20, s40"); A("s_addc_u32 s53, s21, 0")
        A("v_lshlrev_b32 v58, 13, v20"); A("v_lshl_add_u32 v58, v21, 4, v58")
        if jitf: gate_wait("L_f_jit", 1); TS(11)
        if WTRIG:
            A(f"v_mov_b32 v1, {WQC}")
            LB("L_f_trig")
            A("s_sleep 2"); A("ds_read_b32 v2, v1"); A("s_waitcnt lgkmcnt(0)"); A("v_readfirstlane_b32 s40, v2")
            A("s_cmp_lt_u32 s40, 5"); A("s_cbranch_scc1 L_f_trig")
        A("s_mov_b64 s[40:41], 7168"); A(f"s_mov_b64 s[42:43], {7168 + 24 * 3584}")
        for s in range(2):
            for i in range(8):
                A(f"global_load_dwordx4 {vr(160+32*s+4*i,4)}, v[60:61], off{' offset:3584' if i & 1 else ''} {w_flags if w13f is None else w13f}")
                if i & 1 and not (s == 1 and i == 7): A(f"v_lshl_add_u64 v[60:61], v[60:61], 0, {'s[42:43]' if i == 7 else 's[40:41]'}")
            if not jitf and not wburst: A("s_waitcnt vmcnt(0)")
        for i in range(8): A(f"global_load_dwordx4 {vr(224+4*i,4)}, v58, s[52:53] offset:{1024*i-4096} {w_flags}")
        for s in range(3):
            A(f"s_waitcnt vmcnt({16 - 8*s})")
            transpose8(64 + 32 * s, 160 + 32 * s)
        TS(5)
    if not jitf: ffn_weights()
    A("v_and_b32 v8, 31, v0")
    A("s_lshl_b32 s40, s39, 8"); A("v_lshl_add_u32 v5, v8, 3, s40")
    A("global_load_dwordx2 v[48:49], v5, s[4:5]")
    A("s_waitcnt vmcnt(0)")
    unpack(50, 49)
    A("v_and_b32 v49, 0xffff0000, v48"); A("v_lshlrev_b32 v48, 16, v48")
    alive("f")
    A("v_lshrrev_b32 v9, 5, v0"); A("v_lshlrev_b32 v4, 11, v9"); A("v_lshl_add_u32 v4, v8, 4, v4")
    A("s_lshl_b32 s40, s39, 9"); A(f"s_add_u32 s40, s40, {H2 + 4096}")
    if rep: A("s_lshl_b32 s41, s48, 14"); A("s_add_u32 s40, s40, s41")
    A("v_add_u32 v4, s40, v4"); A("v_add_u32 v6, 0x2000, v4")
    A(f"v_add_u32 v5, {HB}, v5")
    A("s_lshl_b32 s40, s39, 3"); A(f"s_add_u32 s40, s40, {ST}"); A("v_mov_b32 v7, s40"); A(f"v_mov_b32 v9, {ST}")
    A("s_lshl_b32 s40, s39, 8"); A(f"s_add_u32 s40, s40, {HN}"); A("v_lshl_add_u32 v10, v8, 3, s40")
    A("v_lshlrev_b32 v11, 7, v22"); A("v_lshl_add_u32 v11, v20, 4, v11"); A("v_add_u32 v11, s40, v11")
    A("s_lshl_b32 s41, s39, 9"); A(f"s_add_u32 s41, s41, {RED}")
    A("v_lshlrev_b32 v13, 8, v22"); A("v_lshl_add_u32 v13, v23, 5, v13"); A("v_add_u32 v13, s41, v13")
    A("v_lshlrev_b32 v14, 5, v20"); A("v_lshl_add_u32 v14, v23, 2, v14"); A(f"v_add_u32 v14, {RED}, v14")
    A("v_lshrrev_b32 v52, 2, v21"); A("v_mul_u32_u24 v52, 7168, v52"); A("v_and_b32 v53, 3, v21"); A("v_lshl_add_u32 v52, v53, 5, v52"); A("v_lshl_add_u32 v52, v20, 4, v52")
    A("s_lshl_b32 s54, s49, 7"); A(f"s_mul_i32 s41, s39, {4*7168}"); A("s_add_u32 s54, s54, s41")
    A("v_cmp_eq_u32 s[56:57], 1, v20")
    A("s_mul_i32 s41, s59, 7168"); A(f"s_add_u32 s41, s41, {H3 + 3072}"); A("v_lshl_add_u32 v53, v0, 4, s41")
    A("v_and_b32 v54, 7, v0"); A("s_lshl_b32 s41, s59, 6"); A("v_lshl_add_u32 v54, v54, 3, s41"); A(f"v_add_u32 v55, {HB}, v54")
    if jitf: ffn_weights()
    if fuse:
        assert not dry and not WTRIG
        C("LN is applied after the product: gate = (h @ w - mean * colsum(w)) / sd; column sums now, while idle")
        A("s_lshl_b32 s40, s39, 8"); A(f"s_add_u32 s40, s40, {HB}")
        A("v_lshlrev_b32 v11, 7, v22"); A("v_lshl_add_u32 v11, v20, 4, v11"); A("v_add_u32 v11, s40, v11")
        for k in range(4): A(f"v_mov_b32 v{40+k}, 0x3f803f80")
        A("v_mov_b32 v24, -1"); A("v_mov_b32 v25, -1"); A("ds_write_b64 v7, v[24:25]")
        for e in range(8): A(f"v_mfma_f32_16x16x32_bf16 {vr(160+4*e,4)}, v[40:43], {vr(64+4*e,4)}, 0")
        for e in range(8): A(f"v_mfma_f32_16x16x32_bf16 {vr(160+4*e,4)}, v[40:43], {vr(96+4*e,4)}, {vr(160+4*e,4)}")
        A(f"v_add_u32 v15, {REDC - RED}, v13"); A(f"v_mov_b32 v1, {WQC}"); A("v_mov_b32 v2, 1")
        A("s_mov_b32 exec_lo, 0xff"); A("s_mov_b32 exec_hi, 0xff00"); A("s_nop 3")
        for e in range(0, 8, 2): A(f"ds_write2_b32 v15, v{160+4*e}, v{164+4*e} offset0:{e} offset1:{e+1}")
        A("s_mov_b64 exec, 1"); A("ds_add_u32 v1, v2"); A("s_mov_b64 exec, -1")
        LB("L_f_cw")
        A("s_sleep 2"); A("ds_read_b32 v2, v1"); A("s_waitcnt lgkmcnt(0)"); A("v_readfirstlane_b32 s40, v2")
        A("s_cmp_lt_u32 s40, 8"); A("s_cbranch_scc1 L_f_cw")
        A(f"v_add_u32 v15, {REDC - RED}, v14"); A("v_add_u32 v2, 1024, v15")
        for p in range(8): A(f"ds_read2_b32 {vr(24+2*p,2)}, v{15 if p < 4 else 2} offset0:{64*(p&3)} offset1:{64*(p&3)+32}")
        A("s_waitcnt lgkmcnt(0)")
        for k in range(4): A(f"v_pk_add_f32 {vr(24+4*k,2)}, {vr(24+4*k,2)}, {vr(26+4*k,2)}")
        A("v_pk_add_f32 v[24:25], v[24:25], v[28:29]"); A("v_pk_add_f32 v[32:33], v[32:33], v[36:37]"); A("v_pk_add_f32 v[58:59], v[24:25], v[32:33]")
        A("v_add_u32 v15, 1024, v14")
    if pw:
        if pw == 2: gate_wait("L_f_pw", 1)
        for i in range(4 if 'h' in pws else 0): A(f"global_load_dwordx4 {vr(192+4*i,4)}, v{4 if i < 2 else 6}, s[26:27] offset:{(i % 2) * 4096 - 4096} {pwf}")
        A("s_cmp_lg_u32 s39, 0"); A("s_cbranch_scc1 L_f_npw"); A("s_cmp_ge_u32 s59, 16"); A("s_cbranch_scc1 L_f_npw")
        A(f"v_add_u32 v57, {pwoff}, v53")
        for i in range(7 if 'o' in pws else 0): A(f"global_load_dwordx4 {vr(220+4*i,4)}, v57, s[26:27] offset:{1024*i-3072} {pwf}")
        LB("L_f_npw")
    if not dry: gate_wait("L_f_gate0", 2 if g2 else 1)
    LB("L_f_pass")
    A(f"s_mov_b32 s41, {H3}")
    if dry: A("s_cmp_eq_u32 s46, 0"); A(f"s_cmov_b32 s41, {DUMMY}")
    A("s_add_u32 s41, s41, s54")
    A("v_add_u32 v56, s41, v52")
    A(f"s_mov_b32 s51, {SPIN_MAX}")
    def hload(r):
        for i in range(4): A(f"global_load_dwordx4 {vr(r+4*i,4)}, v{4 if i < 2 else 6}, s[26:27] offset:{(i % 2) * 4096 - 4096} sc1")
    def hsum(r):
        TS(6)
        for h in range(2): A(f"v_pk_add_f32 {vr(40+2*h,2)}, {vr(r+2*h,2)}, {vr(r+4+2*h,2)}")
        for h in range(2): A(f"v_pk_add_f32 {vr(44+2*h,2)}, {vr(r+8+2*h,2)}, {vr(r+12+2*h,2)}")
    if hint2:
        LB("L_f_hint")
        if h2sleep: A(f"s_sleep {h2sleep}")
        if hint2 == 1:
            A("global_load_dwordx4 v[192:195], v4, s[26:27] offset:-4096 sc1"); A("s_waitcnt vmcnt(0)")
            any_poison(range(192, 196), 40)
            A("s_sub_u32 s51, s51, 1"); A("s_cbranch_scc1 L_f_go"); A("s_cbranch_vccnz L_f_hint")
        else:
            A("global_load_dword v192, v4, s[26:27] offset:-4096 sc1"); A("s_waitcnt vmcnt(0)")
            A("v_cmp_ne_u32 vcc, -1, v192")
            A("s_sub_u32 s51, s51, 1"); A("s_cbranch_scc1 L_f_go"); A("s_cbranch_vccz L_f_hint")
        LB("L_f_go")
    hload(192)
    if stag: A(f"s_sleep {stag}")
    LB("L_f_poll")
    hload(208)
    A("s_waitcnt vmcnt(4)")
    any_poison(range(192, 208), 40, NCH)
    A("s_cbranch_vccz L_f_gotA")
    hload(192)
    A("s_waitcnt vmcnt(4)")
    any_poison(range(208, 224), 40, NCH)
    if dry: A("s_cmp_eq_u32 s46, 0"); A("s_cbranch_scc1 L_f_gotB")
    A("s_sub_u32 s51, s51, 1"); A("s_cbranch_scc1 L_f_gotB")
    A("s_cbranch_vccnz L_f_poll")
    LB("L_f_gotB")
    hsum(208)
    if dry: A("s_cmp_eq_u32 s46, 0"); A("s_cbranch_scc0 L_f_got")
    else: A("s_branch L_f_got")
    LB("L_f_gotA")
    hsum(192)
    LB("L_f_got")
    TC(0)
    for h in range(2): A(f"v_pk_add_f32 {vr(24+2*h,2)}, {vr(40+2*h,2)}, {vr(44+2*h,2)}")
    swap_red("add_f32", [24, 25, 26, 27], [28, 29, 30, 31], 32)
    A("v_cvt_pk_bf16_f32 v28, v24, v25"); A("v_cvt_pk_bf16_f32 v29, v26, v27")
    unpack(24, 28); unpack(26, 29)
    A("v_pk_add_f32 v[24:25], v[24:25], v[48:49]"); A("v_pk_add_f32 v[26:27], v[26:27], v[50:51]")
    A("v_cvt_pk_bf16_f32 v28, v24, v25"); A("v_cvt_pk_bf16_f32 v29, v26, v27")
    if fuse:
        A("ds_write_b64 v5, v[28:29]")
        A("ds_read_b128 v[40:43], v11"); A("ds_read_b128 v[44:47], v11 offset:64")
        unpack(24, 28); unpack(26, 29)
        C("mean and centred sum of squares of this wave's 128 values, under the matrix work")
        A("v_readfirstlane_b32 s40, v24"); A("s_nop 1")
        for k in range(4): A(f"v_subrev_f32 v{32+k}, s40, v{24+k}")
        A("v_add_f32 v30, v32, v33"); A("v_mul_f32 v31, v32, v32"); A("v_add_f32 v36, v34, v35"); A("v_mul_f32 v37, v33, v33")
        A("v_fmac_f32 v31, v34, v34"); A("v_fmac_f32 v37, v35, v35"); A("v_add_f32 v30, v30, v36"); A("v_add_f32 v31, v31, v37")
        TC(1)
        CH = [f"v_sub_f32 v{k}, v{k}, v30" for k in (32, 34, 36, 38)] + ["v_add_f32 v33, v33, v37", "v_mul_f32 v32, v32, v32", "v_mul_f32 v36, v36, v36", "v_fmac_f32 v32, v34, v34", "v_fmac_f32 v36, v38, v38"]
        M = [f"v_mfma_f32_16x16x32_bf16 {vr(160+4*e,4)}, v[40:43], {vr(64+4*e,4)}, 0" for e in range(8)] + \
            [f"v_mfma_f32_16x16x32_bf16 {vr(160+4*e,4)}, v[44:47], {vr(96+4*e,4)}, {vr(160+4*e,4)}" for e in range(8)]
        A("s_waitcnt lgkmcnt(0)")
        for rot in (8, 4, 2, 1):
            A(M.pop(0))
            for x in (30, 31): A(f"v_add_f32_dpp v{x}, v{x}, v{x} row_ror:{rot} row_mask:0xf bank_mask:0xf")
        A(M.pop(0)); A("v_mov_b32 v32, v30"); A("v_mov_b32 v33, v31"); A(M.pop(0)); A(M.pop(0))
        A("v_permlane16_swap_b32 v30, v32"); A("v_permlane16_swap_b32 v31, v33"); A(M.pop(0))
        A("v_add_f32 v30, v30, v32"); A("v_add_f32 v31, v31, v33"); A(M.pop(0))
        A("v_mul_f32 v32, 0x3c000000, v30"); A(M.pop(0))
        A("v_fma_f32 v31, -v32, v30, v31"); A("v_add_f32 v30, s40, v32"); A(M.pop(0))
        A("v_min_u32 v31, -2, v31"); A(M.pop(0))
        A("ds_write_b64 v7, v[30:31]")
        for m in M: A(m)
        TC(2)
        A("ds_read_b128 v[32:35], v9"); A("ds_read_b128 v[36:39], v9 offset:16")
        A("s_mov_b32 exec_lo, 0xff"); A("s_mov_b32 exec_hi, 0xff00"); A("s_nop 3")
        for e in range(0, 8, 2): A(f"ds_write2_b32 v13, v{160+4*e}, v{164+4*e} offset0:{e} offset1:{e+1}")
        A("s_mov_b64 exec, -1")
        A("s_waitcnt lgkmcnt(4)")
        LB("L_f_ck")
        A("v_max3_u32 v30, v33, v35, v37"); A("v_add_f32 v24, v32, v34"); A("v_max_u32 v30, v30, v39"); A("v_add_f32 v31, v36, v38")
        A("v_cmp_eq_u32 vcc, -1, v30"); A("v_add_f32 v30, v24, v31"); A("s_cbranch_vccz L_f_sok")
        A("ds_read_b128 v[32:35], v9"); A("ds_read_b128 v[36:39], v9 offset:16"); A("s_waitcnt lgkmcnt(0)"); A("s_branch L_f_ck")
        LB("L_f_sok")
        TC(3)
        A("v_add_f32 v33, v33, v35"); A("v_mul_f32 v30, 0x3e800000, v30"); A("v_add_f32 v37, v37, v39")
        for k in range(PRE): A(CH.pop(0))
        TC(4)
        A("s_waitcnt lgkmcnt(0)"); A("s_barrier")
        TC(5)
        TS(7)
        for p in range(8): A(f"ds_read2_b32 {vr(160+2*p,2)}, v{14 if p < 4 else 15} offset0:{64*(p&3)} offset1:{64*(p&3)+32}")
        for c_ in CH: A(c_)
        A("v_add_f32 v32, v32, v36"); A("v_mul_f32 v33, 0x3b000000, v33"); A("v_cvt_pk_bf16_f32 v30, v30, v30"); A("v_fmac_f32 v33, 0x3e800000, v32")
        A("v_and_b32 v30, 0xffff0000, v30")
        bf16r(33)
        A("v_add_f32 v33, 0x3727c5ac, v33")
        bf16r(33)
        A("v_sqrt_f32 v33, v33")
        for k in range(4):
            A(f"s_waitcnt lgkmcnt({6-2*k})"); A(f"v_pk_add_f32 {vr(160+4*k,2)}, {vr(160+4*k,2)}, {vr(162+4*k,2)}")
            if k == 0: A("v_cvt_pk_bf16_f32 v33, v33, v33")
            if k == 1: A("v_and_b32 v33, 0xffff0000, v33")
            if k == 2: A("v_rcp_f32 v32, v33")
        A("v_pk_add_f32 v[160:161], v[160:161], v[164:165]"); A("v_pk_add_f32 v[168:169], v[168:169], v[172:173]")
        A("v_pk_fma_f32 v[160:161], v[58:59], v[30:31], v[160:161] op_sel_hi:[1,0,1] neg_lo:[0,1,0] neg_hi:[0,1,0]")
        A("v_pk_add_f32 v[24:25], v[160:161], v[168:169]")
        A("v_pk_mul_f32 v[24:25], v[24:25], v[32:33] op_sel_hi:[1,0]")
    else:
        unpack(24, 28); unpack(26, 29)
        C("mean and centred sum of squares of this wave's 128 values; merged across waves after the barrier")
        A("v_readfirstlane_b32 s40, v24")
        A("ds_write_b64 v5, v[28:29]"); A("s_nop 0")
        for k in range(4): A(f"v_subrev_f32 v{32+k}, s40, v{24+k}")
        A("v_add_f32 v30, v32, v33"); A("v_mul_f32 v31, v32, v32"); A("v_add_f32 v36, v34, v35"); A("v_mul_f32 v37, v33, v33")
        A("v_fmac_f32 v31, v34, v34"); A("v_fmac_f32 v37, v35, v35"); A("v_add_f32 v30, v30, v36"); A("v_add_f32 v31, v31, v37")
        dpp_red("add_f32", [30, 31]); swap_red("add_f32", [30, 31], [32, 33], 16)
        A("v_mul_f32 v32, 0x3c000000, v30"); A("v_fma_f32 v31, -v32, v30, v31"); A("v_add_f32 v30, s40, v32")
        A("ds_write_b64 v7, v[30:31]")
        TC(1)
        barrier_real("L_f_nb1")
        TC(2)
        A("ds_read_b128 v[32:35], v9"); A("ds_read_b128 v[36:39], v9 offset:16")
        A("s_waitcnt lgkmcnt(0)")
        A("v_add_f32 v30, v32, v34"); A("v_add_f32 v31, v36, v38"); A("v_add_f32 v33, v33, v35"); A("v_add_f32 v30, v30, v31"); A("v_add_f32 v37, v37, v39")
        A("v_mul_f32 v30, 0x3e800000, v30"); A("v_add_f32 v33, v33, v37")
        for k in (32, 34, 36, 38): A(f"v_sub_f32 v{k}, v{k}, v30")
        A("v_mul_f32 v32, v32, v32"); A("v_mul_f32 v36, v36, v36"); A("v_fmac_f32 v32, v34, v34"); A("v_fmac_f32 v36, v38, v38")
        bf16r(30)
        A("v_add_f32 v32, v32, v36"); A("v_mul_f32 v33, 0x3b000000, v33"); A("v_fmac_f32 v33, 0x3e800000, v32")
        for k in range(4): A(f"v_sub_f32 v{24+k}, v{24+k}, v30")
        bf16r(33)
        A("v_add_f32 v33, 0x3727c5ac, v33")
        bf16r(33)
        A("v_sqrt_f32 v33, v33")
        A("v_cvt_pk_bf16_f32 v28, v24, v25"); A("v_cvt_pk_bf16_f32 v29, v26, v27")
        bf16r(33)
        A("v_rcp_f32 v33, v33")
        unpack(24, 28); unpack(26, 29)
        for k in range(4): A(f"v_mul_f32 v{24+k}, v{24+k}, v33")
        A("v_cvt_pk_bf16_f32 v28, v24, v25"); A("v_cvt_pk_bf16_f32 v29, v26, v27")
        A("ds_write_b64 v10, v[28:29]")
        TC(3)
        A("ds_read_b128 v[40:43], v11"); A("ds_read_b128 v[44:47], v11 offset:64")
        A("s_waitcnt lgkmcnt(1)")
        for e in range(8): A(f"v_mfma_f32_16x16x32_bf16 {vr(160+4*e,4)}, v[40:43], {vr(64+4*e,4)}, 0")
        A("s_waitcnt lgkmcnt(0)")
        for e in range(8): A(f"v_mfma_f32_16x16x32_bf16 {vr(160+4*e,4)}, v[44:47], {vr(96+4*e,4)}, {vr(160+4*e,4)}")
        A("s_mov_b32 exec_lo, 0xff"); A("s_mov_b32 exec_hi, 0xff00")
        A("s_nop 5")
        for e in range(0, 8, 2): A(f"ds_write2_b32 v13, v{160+4*e}, v{164+4*e} offset0:{e} offset1:{e+1}")
        A("s_mov_b64 exec, -1")
        TC(4)
        barrier_real("L_f_nb2")
        TC(5)
        TS(7)
        for p in range(8):
            if p == 4: A("v_add_u32 v15, 1024, v14")
            A(f"ds_read2_b32 {vr(24+2*p,2)}, v{14 if p < 4 else 15} offset0:{64*(p&3)} offset1:{64*(p&3)+32}")
        for k in range(4):
            A(f"s_waitcnt lgkmcnt({6-2*k})"); A(f"v_pk_add_f32 {vr(24+4*k,2)}, {vr(24+4*k,2)}, {vr(26+4*k,2)}")
        A("v_pk_add_f32 v[24:25], v[24:25], v[28:29]"); A("v_pk_add_f32 v[32:33], v[32:33], v[36:37]"); A("v_pk_add_f32 v[24:25], v[24:25], v[32:33]")
    A("v_cvt_pk_bf16_f32 v26, v24, v25")
    unpack(24, 26)
    A(f"v_mul_f32 v26, {NL2E:#x}, v24"); A("v_exp_f32 v26, v26"); A("s_nop 0")
    A("v_add_f32 v26, 1.0, v26"); A("v_rcp_f32 v26, v26"); A("s_nop 0")
    A("v_mul_f32 v26, v24, v26")
    bf16r(26)
    A("v_mul_f32 v26, v26, v25"); A("s_nop 1")
    A("v_mov_b32_dpp v27, v26 quad_perm:[1,0,3,2] row_mask:0xf bank_mask:0xf")
    A("v_cvt_pk_bf16_f32 v26, v26, v27"); A("s_nop 1")
    for k in range(4): A(f"v_mov_b32_dpp v{40+k}, v26 row_newbcast:{2*k} row_mask:0xf bank_mask:0xf")
    A("s_nop 1")
    TC(6)
    for e in range(8): A(f"v_mfma_f32_16x16x32_bf16 {vr(160+4*e,4)}, v[40:43], {vr(128+4*e,4)}, 0")
    A("s_nop 4")
    for e in range(4): A(f"v_cndmask_b32 v{24+e}, v{160+4*e}, v{176+4*e}, s[56:57]")
    A("s_mov_b32 exec_hi, 0")
    A("global_store_dwordx4 v56, v[24:27], s[26:27] sc1")
    A("s_mov_b64 exec, -1")
    TC(7); TC_fin(8)
    TS(8)
    A("s_cmp_eq_u32 s39, 0"); A("s_cbranch_scc1 L_f_fin")
    C("every first helper wave has read the old word long ago: give the next launch's hand-offs a different tag")
    A("s_cmp_lg_u32 s39, 1"); A("s_cbranch_scc1 L_f_next"); A("s_cmp_lg_u32 s59, 0"); A("s_cbranch_scc1 L_f_next")
    if dry: A("s_cmp_eq_u32 s46, 0"); A("s_cbranch_scc1 L_f_next")
    A("v_mov_b32 v57, 0"); A("s_mov_b64 exec, 1")
    A("global_store_dword v57, v3, s[26:27] sc1")
    A("s_mov_b64 exec, -1"); A("s_branch L_f_next")
    LB("L_f_fin")
    A("s_cmp_ge_u32 s59, 16"); A("s_cbranch_scc1 L_f_next")
    C("final stage: 32 output columns")
    def oload(r):
        for i in range(7): A(f"global_load_dwordx4 {vr(r+4*i,4)}, v53, s[26:27] offset:{1024*i-3072} sc1")
    def osum(r):
        TS(9)
        for d, x, y in ((160, r, r+4), (164, r+8, r+12), (168, r+16, r+20), (160, 160, r+24)):
            for h in range(2): A(f"v_pk_add_f32 {vr(d+2*h,2)}, {vr(x+2*h,2)}, {vr(y+2*h,2)}")
    A("s_waitcnt vmcnt(1)")
    oload(192)
    if dry:
        A(f"s_add_u32 s42, s26, {DUMMY}"); A("s_addc_u32 s43, s27, 0")
        A("s_cmp_eq_u32 s46, 0"); A("s_cselect_b32 s42, s42, s22"); A("s_cselect_b32 s43, s43, s23")
    else: A("s_mov_b64 s[42:43], s[22:23]")
    A("ds_read_b64 v[44:45], v55")
    A(f"s_mov_b32 s51, {SPIN_MAX}")
    if stag: A(f"s_sleep {stag}")
    LB("L_o_poll")
    oload(220)
    A("s_waitcnt vmcnt(7)")
    any_poison(range(192, 220), 40, NCH)
    A("s_cbranch_vccz L_o_gotA")
    oload(192)
    A("s_waitcnt vmcnt(7)")
    any_poison(range(220, 248), 40, NCH)
    if dry: A("s_cmp_eq_u32 s46, 0"); A("s_cbranch_scc1 L_o_gotB")
    A("s_sub_u32 s51, s51, 1"); A("s_cbranch_scc1 L_o_gotB")
    A("s_cbranch_vccnz L_o_poll")
    LB("L_o_gotB")
    osum(220)
    if dry: A("s_cmp_eq_u32 s46, 0"); A("s_cbranch_scc0 L_o_got")
    else: A("s_branch L_o_got")
    LB("L_o_gotA")
    osum(192)
    LB("L_o_got")
    for d, y in ((164, 168), (160, 164)):
        for h in range(2): A(f"v_pk_add_f32 {vr(d+2*h,2)}, {vr(d+2*h,2)}, {vr(y+2*h,2)}")
    A("s_nop 0")
    for k in range(4): A(f"v_add_f32_dpp v{160+k}, v{160+k}, v{160+k} row_ror:8 row_mask:0xf bank_mask:0xf")
    swap_red("add_f32", [160, 161, 162, 163], [164, 165, 166, 167], 16)
    swap_red("add_f32", [160, 161, 162, 163], [164, 165, 166, 167], 32)
    A("v_cvt_pk_bf16_f32 v164, v160, v161"); A("v_cvt_pk_bf16_f32 v165, v162, v163")
    unpack(160, 164); unpack(162, 165)
    A("s_waitcnt lgkmcnt(0)")
    unpack(164, 44); unpack(166, 45)
    A("v_pk_add_f32 v[160:161], v[160:161], v[164:165]"); A("v_pk_add_f32 v[162:163], v[162:163], v[166:167]")
    A("v_cvt_pk_bf16_f32 v160, v160, v161"); A("v_cvt_pk_bf16_f32 v161, v162, v163")
    A("s_mov_b64 exec, 0xff")
    A("global_store_dwordx2 v54, v[160:161], s[42:43] " + outf)
    A("s_mov_b64 exec, -1")
    LB("L_f_next")
    TS(10)
    if dry:
        A("s_cmp_eq_u32 s46, 1"); A("s_cbranch_scc1 L_hdone")
        A("s_mov_b32 s46, 1")
        gate_wait("L_f_gate", 2 if g2 else 1)
        A("s_branch L_f_pass")
    LB("L_hdone")
    TS_flush("H")
    LB("L_end")
    A("s_endpgm")
    L.append('.section .rodata,"a"'); L.append(".p2align 6"); L.append(f".amdhsa_kernel {NAME}_kernel")
    for s in ("next_free_vgpr 256", "next_free_sgpr 102" if fine else "next_free_sgpr 96", "accum_offset 256", "group_segment_fixed_size 0", "kernarg_size 96",
              "user_sgpr_count 2", "user_sgpr_kernarg_segment_ptr 1", "system_sgpr_workgroup_id_x 1", "float_denorm_mode_32 3"):
        L.append("  .amdhsa_" + s)
    L.append(".end_amdhsa_kernel")
    return "\n".join(L) + "\n"

if __name__ == "__main__":
    kw = eval("dict(" + (sys.argv[2] if len(sys.argv) > 2 else "") + ")")
    open(sys.argv[1], "w").write(gen(**kw))
```

```python
import sys
NAME = "sequential_preLN__gqa_block_cached__glu_gated_swiglu__decode"

WQL = 0x20000; SP = 0x20000
QL = 0x24400; SML = 0x24800; CNT = 0x24880; GATE = 0x24884; QRDY = 0x24888; WQC = 0x2488C; TAGL = 0x24890
WB = 0x25000; OB = 0x25200; RED = 0x25800; HB = 0x26000; HM = 0x26400; ST = 0x26600; HN = 0x26800; EL = 0x27000; TQ = 0x27400; REDC = 0x27800
LDS_BYTES = 163840
EPOCH = 0; ALIVE = 0x400; QH = 0x800; AR = 0xC00; POOL = 0xC000; PPOOL = 0xF8000; QBUF = 0xD0000; ML = 0xF0000; H2 = 0x50000; PART = 0x10000; H3 = 0x90000; DUMMY = 0xB0000; TSB = 0x100000
TAGC = 0x9E3779B9
L2E = 0x3FB8AA3B; NL2E = 0xBFB8AA3B; SCALE = 0x3DB504F3
SPIN_MAX = 1 << 16


HEADER = """
;
"""

def gen(PACE=5, PACE0=5, S=27, NG=8, touch=False, qsleep=8, early=False, hold=False, gsleep=2, jitf=False, jitw=False, wqmap=False, ksplit=True, lazy=True, rot=0, rotm='x', F=0, fk=False, wgt=False, sq=False, QW=8, sa=False, XS=16, rep=True, qmask=0xffff, nopois=False, noalive=False, I1=16, I2=22, IW=1, IU=1, fuse=True, nohint=1, gok=True, NCH=3, mlt=True, qretry=0, nowait=False, w4stop=0, PRE=5, ilv=False, burst=True, KP=(2,1,1), XB=24, hmove=False, pfh=False, fine=False, wburst=False, w13f='', tw=0, sprio=0, wprio=3, align=0, SKW=0, SKF=3, SKT=17, WTRIG=0, hint2=2, h2sleep=0, outf='sc1', qgf='sc1', pof='sc1', qsf='sc1', xf='', pwoff=0, PACEB=15, pw=0, pws='mpho', pwf='sc1', TPOS=4, g2=True, R1=8, R2=5, barpos=0, pf=True, stag=3, wend=False, rr=True, noswz=False, nocomp=False, noh=False, NV=4, VSTART=2, VSTEP=2, VW=0, QTH=20, MLTH=20, noroles=False, dbgts=False, prog=False, ts=False, dry=False, wq_flags="nt", w_flags="nt", kv_flags="nt"):
    PR = 128 - 4 * S; D = 8 * PR; PRM = -(-(1 << 16) // PR)
    assert all((t * PRM) >> 16 == t // PR for t in range(D))
    P = 4 * (S - F) if F else 0
    L = []
    def A(s): L.append("  " + s)
    def LB(s): L.append(s + ":")
    def C(s): L.append("  ; " + s)
    def vr(a, n): return f"v[{a}:{a+n-1}]"
    def TS(k):
        if ts and not fine:
            A("s_memrealtime s[60:61]"); A("s_waitcnt lgkmcnt(0)"); A(f"s_mov_b32 s{64+k}, s60")
    def TC(k):
        if fine:
            A(f"s_memtime s[{80+2*k}:{81+2*k}]")
    def TC_fin(n):
        if fine:
            A("s_waitcnt lgkmcnt(0)")
            for k in range(n): A(f"s_mov_b32 s{64+k}, s{80+2*k}")
    def TS_flush(kind="S"):
        if ts and dbgts:
            A("s_mov_b64 exec, -1"); A("v_mov_b32 v250, 0")
            if kind == "S":
                A("s_not_b32 s62, s64"); A("v_writelane_b32 v250, s62, 0"); A("s_not_b32 s62, s70"); A("v_writelane_b32 v250, s62, 13")
                for lane, k in ((1, 6), (2, 1), (3, 2), (4, 5)): A(f"v_writelane_b32 v250, s{64+k}, {lane}")
            else:
                for lane, k in ((5, 1), (6, 3), (7, 4)): A(f"v_writelane_b32 v250, s{64+k}, {lane}")
                A("s_not_b32 s62, s68"); A("s_cmp_eq_u32 s68, 0"); A("s_cselect_b32 s62, 0, s62"); A("v_writelane_b32 v250, s62, 14")
                A("s_cmp_eq_u32 s47, 0"); A("s_cbranch_scc0 L_dbgf")
                A("v_writelane_b32 v250, s70, 8"); A("v_writelane_b32 v250, s71, 9"); A("s_branch L_dbge")
                LB("L_dbgf")
                A("v_writelane_b32 v250, s70, 10"); A("v_writelane_b32 v250, s72, 11"); A("v_writelane_b32 v250, s74, 12")
                LB("L_dbge")
            A("v_mbcnt_lo_u32_b32 v251, -1, 0"); A("v_mbcnt_hi_u32_b32 v251, -1, v251"); A("v_lshlrev_b32 v251, 2, v251")
            A("s_mov_b64 exec, 0xffff")
            A("global_atomic_umax v251, v250, s[24:25] sc1")
        elif ts:
            A("s_mov_b64 exec, -1")
            A("v_mov_b32 v250, 0")
            for k in range(16): A(f"v_writelane_b32 v250, s{64+k}, {k}")
            A("v_mbcnt_lo_u32_b32 v251, -1, 0"); A("v_mbcnt_hi_u32_b32 v251, -1, v251")
            A("s_lshl_b32 s62, s2, 3"); A("s_add_u32 s62, s62, s3"); A("s_lshl_b32 s62, s62, 6"); A(f"s_add_u32 s62, s62, {TSB}")
            A("v_lshl_add_u32 v251, v251, 2, s62")
            A("s_mov_b64 exec, 0xffff")
            A("global_store_dword v251, v250, s[26:27]")
    def dpp_red(op, xs):
        for rot in (8, 4, 2, 1):
            if len(xs) < 3: A(f"s_nop {2 - len(xs)}" if len(xs) < 2 else "s_nop 0")
            for x in xs: A(f"v_{op}_dpp v{x}, v{x}, v{x} row_ror:{rot} row_mask:0xf bank_mask:0xf")
    def swap_red(op, xs, ts_, which):
        for x, t in zip(xs, ts_): A(f"v_mov_b32 v{t}, v{x}")
        A("s_nop 1")
        for x, t in zip(xs, ts_): A(f"v_permlane{which}_swap_b32 v{x}, v{t}")
        for x, t in zip(xs, ts_): A(f"v_{op} v{x}, v{x}, v{t}")
    def unpack(dst, src):
        A(f"v_lshlrev_b32 v{dst}, 16, v{src}"); A(f"v_and_b32 v{dst+1}, 0xffff0000, v{src}")
    def bf16r(x):
        A(f"v_cvt_pk_bf16_f32 v{x}, v{x}, v{x}"); A(f"v_and_b32 v{x}, 0xffff0000, v{x}")
    def layernorm(src, f, t):
        for k in range(4): unpack(f + 2 * k, src + k)
        A(f"v_add_f32 v{t}, v{f}, v{f+1}"); A(f"v_add_f32 v{t+1}, v{f+2}, v{f+3}")
        A(f"v_add_f32 v{t+2}, v{f+4}, v{f+5}"); A(f"v_add_f32 v{t+3}, v{f+6}, v{f+7}")
        A(f"v_add_f32 v{t}, v{t}, v{t+1}"); A(f"v_add_f32 v{t+2}, v{t+2}, v{t+3}"); A(f"v_add_f32 v{t}, v{t}, v{t+2}")
        dpp_red("add_f32", [t]); swap_red("add_f32", [t], [t+1], 16); swap_red("add_f32", [t], [t+1], 32)
        A(f"v_mul_f32 v{t}, 0x3b000000, v{t}")
        A(f"v_sub_f32 v{t+2}, v{f}, v{t}"); A(f"v_mul_f32 v{t+1}, v{t+2}, v{t+2}")
        for k in range(1, 8):
            A(f"v_sub_f32 v{t+2}, v{f+k}, v{t}"); A(f"v_fmac_f32 v{t+1}, v{t+2}, v{t+2}")
        bf16r(t)
        dpp_red("add_f32", [t+1]); swap_red("add_f32", [t+1], [t+2], 16); swap_red("add_f32", [t+1], [t+2], 32)
        A(f"v_mul_f32 v{t+1}, 0x3b000000, v{t+1}")
        bf16r(t+1)
        A(f"v_add_f32 v{t+1}, 0x3727c5ac, v{t+1}")
        bf16r(t+1)
        A(f"v_sqrt_f32 v{t+1}, v{t+1}")
        for k in range(8): A(f"v_sub_f32 v{f+k}, v{f+k}, v{t}")
        bf16r(t+1)
        A(f"v_rcp_f32 v{t+1}, v{t+1}")
        for k in range(4): A(f"v_cvt_pk_bf16_f32 v{src+k}, v{f+2*k}, v{f+2*k+1}")
        for k in range(4): unpack(f + 2 * k, src + k)
        for k in range(8): A(f"v_mul_f32 v{f+k}, v{f+k}, v{t+1}")
        for k in range(4): A(f"v_cvt_pk_bf16_f32 v{src+k}, v{f+2*k}, v{f+2*k+1}")
    def transpose8(dst, src):
        for e in range(8):
            for j in range(4):
                a = src + 4 * (2 * j) + (e >> 1); b = src + 4 * (2 * j + 1) + (e >> 1)
                A(f"v_perm_b32 v{dst+4*e+j}, v{b}, v{a}, s{45 if e & 1 else 44}")
    def any_poison(regs, t, nt=1):
        regs = list(regs)
        if nt > 1:
            chains = [regs[k::nt] for k in range(nt)]; started = [False] * nt
            while any(chains):
                for k in range(nt):
                    c = chains[k]
                    if not c: continue
                    if not started[k]:
                        n = min(3, len(c)); x = c[:n]; started[k] = True
                    else:
                        n = min(2, len(c)); x = [t + k] + c[:n]
                    A(f"v_max3_u32 v{t+k}, v{x[0]}, v{x[1]}, v{x[2]}" if len(x) == 3 else f"v_max_u32 v{t+k}, v{x[0]}, v{x[1]}")
                    chains[k] = c[n:]
            regs = list(range(t, t + nt))
        A(f"v_max3_u32 v{t}, v{regs[0]}, v{regs[1]}, v{regs[2]}" if len(regs) >= 3 else f"v_max_u32 v{t}, v{regs[0]}, v{regs[1]}")
        rest = regs[3:] if len(regs) >= 3 else []
        while len(rest) >= 2:
            A(f"v_max3_u32 v{t}, v{t}, v{rest[0]}, v{rest[1]}"); rest = rest[2:]
        if rest: A(f"v_max_u32 v{t}, v{t}, v{rest[0]}")
        A(f"v_cmp_eq_u32 vcc, -1, v{t}")
    def barrier_real(lbl):
        A("s_waitcnt lgkmcnt(0)")
        if dry: A("s_cmp_eq_u32 s46, 0"); A(f"s_cbranch_scc1 {lbl}")
        A("s_barrier"); LB(lbl)
    def scheck(lbl, off, n):
        A(f"s_mov_b32 s51, {SPIN_MAX}")
        for r in range(0, n, 16):
            w = min(16, n - r)
            LB(f"{lbl}_{r}")
            A(f"s_load_dwordx{w} s[80:{79+w}], s[26:27], s41 glc")
            A("s_sub_u32 s51, s51, 1"); A(f"s_cbranch_scc1 {lbl}_x")
            A("s_waitcnt lgkmcnt(0)")
            for k in range(w): A(f"s_xor_b32 s{80+k}, s{80+k}, s58")
            for k in range(1, w): A(f"s_or_b32 s80, s80, s{80+k}")
            A(f"s_cbranch_scc1 {lbl}_{r}")
            if r + 16 < n: A("s_add_u32 s41, s41, 64")
        LB(f"{lbl}_x")
        A("s_waitcnt lgkmcnt(0)")
    def alive(tag):
        if wend: A("s_branch L_hdone")
        if noalive: return
        C("every workgroup reset its hand-off slots before it wrote its word here")
        if gok:
            A(f"v_and_b32 v4, 7, v0"); A("v_lshlrev_b32 v4, 2, v4"); A(f"s_mov_b32 s51, {SPIN_MAX}")
            LB(f"L_alive_{tag}")
            A(f"global_load_dword v24, v4, s[26:27] offset:{ALIVE} sc1")
            A("s_sub_u32 s51, s51, 1"); A(f"s_cbranch_scc1 L_alive_ok_{tag}")
            A("s_waitcnt vmcnt(0)")
            A("v_cmp_ne_u32 vcc, v24, v3"); A(f"s_cbranch_vccnz L_alive_{tag}")
            LB(f"L_alive_ok_{tag}")
            A("s_waitcnt vmcnt(0)")
            return
        if sa:
            A("v_readfirstlane_b32 s58, v3")
            if tag == "w": A("s_lshl_b32 s41, s36, 7"); A(f"s_add_u32 s41, s41, {ALIVE}"); scheck("L_alw", 0, 32)
            else: A(f"s_mov_b32 s41, {AR}"); scheck("L_alf", 0, 120)
            return
        A(f"v_lshlrev_b32 v4, 4, v0"); A(f"v_add_u32 v4, {ALIVE}, v4")
        A(f"s_mov_b32 s51, {SPIN_MAX}")
        LB(f"L_alive_{tag}")
        A("global_load_dwordx4 v[24:27], v4, s[26:27] sc1")
        A("s_sub_u32 s51, s51, 1"); A(f"s_cbranch_scc1 L_alive_ok_{tag}")
        A("s_waitcnt vmcnt(0)")
        for k in range(4): A(f"v_xor_b32 v{24+k}, v{24+k}, v3")
        A("v_or3_b32 v24, v24, v25, v26"); A("v_or_b32 v24, v24, v27")
        A("v_cmp_ne_u32 vcc, 0, v24"); A(f"s_cbranch_vccnz L_alive_{tag}")
        LB(f"L_alive_ok_{tag}")
        A("s_waitcnt vmcnt(0)")
    def gate_wait(lbl, lvl=1):
        A(f"v_mov_b32 v1, {GATE}")
        LB(lbl)
        A(f"s_sleep {gsleep}"); A("ds_read_b32 v2, v1"); A("s_waitcnt lgkmcnt(0)"); A("v_readfirstlane_b32 s40, v2")
        A(f"s_cmp_lt_u32 s40, {lvl}"); A(f"s_cbranch_scc1 {lbl}")

    L.extend(HEADER.strip("\n").split("\n"))
    L.append(f"; @launch grid=(256,1,1) block=(512,1,1) lds={LDS_BYTES}")
    L.append('.amdgcn_target "amdgcn-amd-amdhsa--gfx950"')
    L.append(".text"); L.append(f".globl {NAME}_kernel"); L.append(".p2align 8"); L.append(f".type {NAME}_kernel,@function")
    LB(f"{NAME}_kernel")
    A("s_cmp_ge_u32 s2, 256"); A("s_cbranch_scc1 L_end")
    A("s_load_dwordx16 s[4:19], s[0:1], 0")
    A("s_load_dwordx8 s[20:27], s[0:1], 64")
    if ts:
        for k in range(16): A(f"s_mov_b32 s{64+k}, 0")
        A("s_memrealtime s[60:61]")
    A("v_lshrrev_b32 v1, 6, v0")
    A("v_and_b32 v0, 63, v0")
    A("v_readfirstlane_b32 s3, v1")
    def codepf():
        if pf:
            C("one idle wave pulls this kernel's code towards the L2 while the others start")
            A("s_cmp_lg_u32 s3, 5"); A("s_cbranch_scc1 L_nopf")
            A("s_getpc_b64 s[40:41]"); LB("L_pc")
            A(f"s_sub_u32 s40, s40, L_pc-{NAME}_kernel"); A("s_subb_u32 s41, s41, 0")
            A("v_lshlrev_b32 v8, 7, v0"); A(f"v_min_u32 v9, L_end-{NAME}_kernel-8192, v8")
            A("global_load_dword v10, v8, s[40:41] " + xf); A("s_add_u32 s40, s40, 8192"); A("s_addc_u32 s41, s41, 0"); A("global_load_dword v10, v9, s[40:41] " + xf)
            LB("L_nopf")
    if not pfh: codepf()
    A("s_lshr_b32 s36, s2, 5")
    A("s_and_b32 s37, s2, 31")
    A("s_and_b32 s38, s2, 7"); A("s_lshl_b32 s38, s38, 2"); A("s_lshr_b32 s39, s37, 3"); A("s_add_u32 s38, s38, s39")
    A(f"v_mov_b32 v1, {CNT}")
    for k in range(4): A(f"v_mov_b32 v{4+k}, 0")
    A("ds_write_b128 v1, v[4:7]")
    def hentry():
        if pfh: codepf()
        A("v_mov_b32 v16, 0"); A("v_lshlrev_b32 v1, 4, v0")
        A("s_lshl_b32 s40, s36, 10"); A(f"s_add_u32 s40, s40, {POOL}"); A("v_and_b32 v19, 3, v0"); A("v_lshl_add_u32 v19, v19, 8, s40")
        A("s_waitcnt lgkmcnt(0)")
        A("s_cmp_lg_u32 s3, 4"); A("s_cbranch_scc1 L_hbar")
        if F:
            A("s_cmp_lt_u32 s37, 24"); A("s_cbranch_scc1 L_hx")
            A("s_and_b32 s40, s2, 7"); A("s_lshl_b32 s41, s36, 3"); A("s_add_u32 s40, s40, s41"); A("s_lshl_b32 s40, s40, 9"); A(f"s_add_u32 s40, s40, {PPOOL}")
            A("v_and_b32 v18, 3, v0"); A("v_lshl_add_u32 v18, v18, 7, s40")
            A("global_store_dword v18, v16, s[26:27] sc1")
        A("s_cmp_lg_u32 s37, 31"); A("s_cbranch_scc1 L_hx")
        A("global_store_dword v19, v16, s[26:27] sc1")
        LB("L_hx")
        A("global_load_dwordx4 v[4:7], v1, s[4:5]")
        A("global_load_dword v3, v16, s[26:27] sc1")
        LB("L_hbar")
        A("s_barrier"); A("s_branch L_helper")
    if hmove: A("s_cmp_ge_u32 s3, 4"); A("s_cbranch_scc1 L_hentry")
    else:
        A("s_cmp_lt_u32 s3, 4"); A("s_cbranch_scc1 L_stream"); hentry(); LB("L_stream")

    C("streaming waves: K/V tiles of 16 keys through a 4-slot LDS ring per wave")
    if sprio: A(f"s_setprio {sprio}")
    A("v_lshrrev_b32 v20, 4, v0")
    A("v_and_b32 v21, 15, v0")
    A("v_lshlrev_b32 v22, 1, v20")
    A("v_xor_b32 v22, v22, v21")
    A("v_lshlrev_b32 v22, 4, v22")
    A("v_lshl_add_u32 v2, v20, 8, v22")
    A("v_xor_b32 v3, 0x80, v2"); A("v_xor_b32 v4, 16, v2"); A("v_xor_b32 v5, 0x90, v2")
    if noswz:
        for i in range(4): A(f"v_lshlrev_b32 v{2+i}, 4, v0")
    C("four workgroups share a 2 MiB page of K and V (rows of 4 tiles interleaved); the last rows of all pages form a ticket pool")
    if tw: A(f"s_mul_i32 s40, s36, {tw}"); A("s_add_u32 s40, s40, s2"); A("s_and_b32 s40, s40, 7")
    else: A("s_and_b32 s40, s2, 7")
    A("s_lshl_b32 s41, s36, 3"); A("s_add_u32 s40, s40, s41"); A("s_lshl_b32 s40, s40, 21")
    A("s_lshl_b32 s41, s39, 14"); A("s_add_u32 s40, s40, s41")
    A("s_lshl_b32 s41, s3, 12"); A("s_add_u32 s40, s40, s41")
    if rot:
        A(f"s_and_b32 s59, s40, {~0x1fffff & 0xffffffff:#x}"); A(f"s_add_u32 s59, s59, {4*S*16384}")
        if rotm == 'x': A("s_and_b32 s41, s2, 7")
        elif rotm == 'h': A("s_mov_b32 s41, s36")
        else: A("s_and_b32 s41, s2, 7"); A("s_xor_b32 s41, s41, s36")
        A(f"s_mul_i32 s41, s41, {rot * 65536}"); A("s_add_u32 s40, s40, s41")
    A("s_lshl_b32 s41, s3, 15")
    A("s_mov_b32 s30, 0x8000000"); A("s_mov_b32 s31, 0x20000"); A("s_mov_b32 s34, 0x8000000"); A("s_mov_b32 s35, 0x20000")
    A("s_mov_b32 s42, 0x2000")
    A("s_mov_b32 s44, 4")
    C("first: 32 rows x 64 columns of wq per wave into LDS (used by the first helper wave)")
    A("v_lshrrev_b32 v22, 3, v0"); A("v_and_b32 v23, 7, v0"); A("v_lshlrev_b32 v22, 13, v22"); A("v_lshl_add_u32 v22, v23, 4, v22")
    A("s_lshl_b32 s47, s39, 20"); A("s_lshl_b32 s48, s3, 18"); A("s_add_u32 s47, s47, s48"); A("s_lshl_b32 s48, s36, 10"); A("s_add_u32 s47, s47, s48")
    A("s_and_b32 s48, s2, 7"); A("s_lshl_b32 s48, s48, 7"); A("s_add_u32 s47, s47, s48")
    A("s_lshl_b32 s48, s3, 12"); A(f"s_add_u32 m0, s48, {WQL}")
    A("s_waitcnt lgkmcnt(0)")
    if ts: A("s_mov_b32 s64, s60")
    A("s_add_u32 s48, s10, s47"); A("s_addc_u32 s49, s11, 0")
    for k in range(4):
        if k: A("v_add_u32 v22, 0x10000, v22"); A("s_add_u32 m0, m0, 1024"); A("s_nop 0")
        else: A("s_mov_b32 s28, s6")
        A(f"global_load_lds_dwordx4 v22, s[48:49] {wq_flags}")
    A("s_and_b32 s29, s7, 0xffff"); A("s_mov_b32 s32, s8"); A("s_and_b32 s33, s9, 0xffff")
    if barpos == 0: A("s_barrier")
    TS(6)
    def adv():
        A("s_add_u32 s40, s40, 65536")
        if rot: A("s_cmp_ge_u32 s40, s59"); A(f"s_cselect_b32 s48, {4*S*16384}, 0"); A("s_sub_u32 s40, s40, s48")
    def issue_tile(pace, tk=False):
        def ticket(i):
            if tk and i == TPOS:
                A("s_cmp_lg_u32 s43, 0"); A(f"s_cbranch_scc1 L_notk{tk}")
                if wgt:
                    A("s_mov_b64 exec, 1"); A("ds_add_rtn_u32 v22, v23, v119"); A("s_mov_b64 exec, -1")
                    A("s_waitcnt lgkmcnt(0)"); A("v_readfirstlane_b32 s48, v22")
                    A("s_cmp_eq_u32 s48, 0"); A("s_cselect_b32 s56, 1, 0"); A(f"s_cbranch_scc0 L_notk{tk}")
                A("s_mov_b32 s58, 1"); A(f"s_atomic_add s58, s[26:27], {'s56' if F else 's57'} glc")
                LB(f"L_notk{tk}")
        A("s_mov_b32 m0, s41")
        for i in range(4):
            ticket(i); A(f"s_waitcnt vmcnt({pace})"); A(f"buffer_load_dwordx4 v{2+i}, s[28:31], s40 offen offset:{i*1024} {kv_flags} lds")
        A("s_add_u32 m0, s41, 4096")
        for i in range(4):
            ticket(4 + i); A(f"s_waitcnt vmcnt({pace})"); A(f"buffer_load_dwordx4 v{2+i}, s[32:35], s40 offen offset:{i*1024} {kv_flags} lds")
        ticket(8)
        adv()
    LB("L_fill")
    issue_tile(PACE0)
    A("s_xor_b32 s41, s41, s42"); A("s_xor_b32 s42, s42, 0x4000")
    A("s_cmp_lg_u32 s44, 4"); A("s_cbranch_scc1 L_nosig")
    if barpos == 1: A("s_barrier")
    A("s_waitcnt vmcnt(8)"); A("v_mov_b32 v22, 1"); A("s_mov_b64 exec, 1")
    A(f"ds_add_u32 v1, v22 offset:{WQC - CNT}"); A("s_mov_b64 exec, -1")
    LB("L_nosig")
    A("s_sub_u32 s44, s44, 1"); A("s_cmp_lg_u32 s44, 0"); A("s_cbranch_scc1 L_fill")
    if hmove:
        A("s_branch L_filled"); LB("L_hentry"); hentry(); LB("L_filled")
    TS(1)
    A("s_lshl_b32 s46, s36, 24"); A("s_lshl_b32 s47, s3, 12"); A("s_add_u32 s46, s46, s47"); A(f"s_add_u32 s46, s46, {4*S*16384}")
    if wgt:
        assert not F and D + 2 <= 256
        A("s_lshl_b32 s57, s36, 10"); A(f"s_add_u32 s57, s57, {POOL}")
        A("s_mov_b32 s56, 0")
    else:
        A("s_lshl_b32 s57, s36, 2"); A("s_add_u32 s57, s57, s3"); A("s_lshl_b32 s57, s57, 8"); A(f"s_add_u32 s57, s57, {POOL}")
    A("s_mov_b32 s58, 0")
    if F:
        A("s_and_b32 s56, s2, 7"); A("s_lshl_b32 s47, s36, 3"); A("s_add_u32 s56, s56, s47")
        A("s_lshl_b32 s59, s56, 21"); A("s_lshl_b32 s47, s3, 12"); A("s_add_u32 s59, s59, s47"); A(f"s_add_u32 s59, s59, {4*F*16384}")
        A("s_lshl_b32 s56, s56, 2"); A("s_add_u32 s56, s56, s3"); A("s_lshl_b32 s56, s56, 7"); A(f"s_add_u32 s56, s56, {PPOOL}")
    C("addresses of the final merge")
    A("s_lshl_b32 s47, s3, 11"); A(f"s_add_u32 s47, s47, {SP}")
    A("v_lshlrev_b32 v122, 9, v21"); A("v_lshl_add_u32 v122, v20, 4, v122"); A("v_add_u32 v122, s47, v122")
    A("s_lshl_b32 s47, s3, 5"); A(f"s_add_u32 s47, s47, {SML}")
    A("v_lshl_add_u32 v123, v21, 3, s47")
    A(f"v_lshlrev_b32 v124, 5, v0"); A(f"v_add_u32 v124, {SP}, v124")
    A(f"v_lshlrev_b32 v125, 3, v20"); A(f"v_add_u32 v125, {SML}, v125")
    A("s_lshl_b32 s47, s36, 15"); A("s_lshl_b32 s48, s38, 8"); A("s_add_u32 s47, s47, s48"); A(f"s_add_u32 s47, s47, {PART}")
    A("v_lshlrev_b32 v126, 13, v20"); A("v_lshl_add_u32 v126, v21, 4, v126"); A("v_add_u32 v126, s47, v126")
    A("s_lshl_b32 s47, s36, 12"); A("s_lshl_b32 s48, s38, 7"); A("s_add_u32 s47, s47, s48"); A(f"s_add_u32 s47, s47, {ML}")
    A(f"v_lshl_add_u32 v127, v20, {4 if mlt else 3}, s47")
    A(f"v_mov_b32 v1, {CNT}"); A("v_mov_b32 v119, 1")
    A(f"s_mov_b32 s43, {(F if F else S) - 4}")
    if SKW or SKF:
        A("s_mov_b32 s62, 0"); A("s_cmp_lt_u32 s37, 15"); A(f"s_cselect_b32 s62, {SKF}, s62"); A("s_cmp_lt_u32 s37, 8"); A(f"s_cselect_b32 s62, {SKW}, s62")
    A("v_lshlrev_b32 v23, 1, v21"); A("v_and_b32 v23, 15, v23"); A("v_lshrrev_b32 v24, 3, v21"); A("v_or_b32 v23, v23, v24")
    A("v_and_b32 v24, 1, v20"); A("v_lshlrev_b32 v24, 1, v24"); A("v_lshrrev_b32 v25, 1, v20"); A("v_or_b32 v24, v24, v25")
    A("v_xor_b32 v23, v23, v24"); A("v_lshlrev_b32 v23, 4, v23"); A("v_lshl_add_u32 v23, v21, 8, v23")
    A("v_add_u32 v6, s41, v23")
    for s in range(1, 4): A(f"v_xor_b32 v{6+s}, {s << 6}, v6")
    A("v_lshrrev_b32 v25, 2, v0")
    A("v_lshlrev_b32 v26, 1, v25"); A("v_and_b32 v26, 15, v26"); A("v_lshrrev_b32 v27, 3, v25"); A("v_or_b32 v26, v26, v27")
    A("v_bfe_u32 v27, v0, 1, 1"); A("v_xor_b32 v26, v26, v27"); A("v_lshlrev_b32 v26, 4, v26")
    A("v_lshl_add_u32 v26, v25, 8, v26")
    A("v_and_b32 v27, 1, v0"); A("v_lshl_add_u32 v26, v27, 3, v26")
    A("s_add_u32 s44, s41, 4096")
    A("v_add_u32 v10, s44, v26")
    for t in range(1, 8): A(f"v_xor_b32 v{10+t}, {t << 5}, v10")
    A("v_and_b32 v25, 3, v21"); A("v_lshlrev_b32 v25, 8, v25"); A("v_lshl_add_u32 v25, v24, 4, v25"); A(f"v_add_u32 v108, {QL}, v25")
    if wgt: A(f"v_mov_b32 v23, {EL}")
    A("v_mov_b32 v18, 0xff7fffff"); A("v_mov_b32 v19, 0x7f7fffff"); A("v_mov_b32 v109, 0")
    for k in range(32): A(f"v_mov_b32 v{76+k}, 0")
    A(f"s_mov_b32 s45, {L2E}"); A("s_mov_b32 s44, 4"); A("s_mov_b32 s54, 0x2000"); A("s_mov_b32 s55, 4")
    if ts: A("s_mov_b32 s51, 0")
    A(f"v_mov_b32 v116, {QRDY}")
    if fk: A("s_mov_b32 s62, s39")
    A(f"s_mul_i32 s39, s39, {IU}"); A(f"s_mul_i32 s52, s3, {IW}"); A("s_add_u32 s39, s39, s52"); A("s_mov_b32 s52, 0"); A(f"s_mul_i32 s53, s3, {VW}"); A(f"s_add_u32 s53, s53, {VSTART}")
    if noh or nowait: A("s_branch L_qok")
    C("while q is not there yet, keep streaming: park up to NV more tiles in registers")
    for k in range(NV):
        A("ds_read_b32 v117, v116"); A("s_waitcnt lgkmcnt(0)"); A("v_readfirstlane_b32 s48, v117")
        A("s_cmp_lg_u32 s48, 0"); A("s_cbranch_scc1 L_qok")
        for i in range(8):
            A(f"s_waitcnt vmcnt({PACE0})"); A(f"buffer_load_dwordx4 {vr(128+32*k+4*i,4)}, v{2+(i&3)}, s[{28 if i < 4 else 32}:{31 if i < 4 else 35}], s40 offen offset:{(i&3)*1024} {kv_flags}")
        adv(); A("s_add_u32 s52, s52, 1"); A("s_sub_u32 s43, s43, 1")
    LB("L_qwait")
    A("ds_read_b32 v117, v116"); A("s_waitcnt lgkmcnt(0)"); A("v_readfirstlane_b32 s48, v117")
    A("s_cmp_lg_u32 s48, 0"); A("s_cbranch_scc1 L_qok"); A("s_sleep 1"); A("s_branch L_qwait")
    LB("L_qok")
    if ts: A("s_add_u32 s51, s51, s52"); A("s_mov_b32 s77, s52")
    TS(2)
    if mlt: A(f"ds_read_b32 v22, v1 offset:{TAGL - CNT}")
    for s in range(4): A(f"ds_read_b128 {vr(24+4*s,4)}, v108 offset:{64*s}")
    if ilv:
        def kload(i, pace=PACE): A(f"s_waitcnt vmcnt({pace})"); A(f"buffer_load_dwordx4 v{2+i}, s[28:31], s40 offen offset:{i*1024} {kv_flags} lds")
        def kblock(lo, n, lbl):
            if n:
                A("s_bitcmp1_b32 s62, 0"); A(f"s_cbranch_scc0 {lbl}")
                if lo == 0: A("s_mov_b32 m0, s41")
                for i in range(lo, lo + n): kload(i)
                LB(lbl)
        A("s_mov_b32 s55, 3"); A("s_mov_b32 s56, -16")
        LB("L_tile")
        A("s_mov_b32 s62, 0")
        A("s_cmp_gt_u32 s44, 1"); A("s_cbranch_scc1 L_dec")
        C("last tile: start on K while V is still arriving")
        A("s_waitcnt vmcnt(4)")
        TS(3); TC(0)
        for s in range(4): A(f"ds_read_b128 {vr(40+4*s,4)}, v{6+s}")
        for s in range(4):
            A(f"s_waitcnt lgkmcnt({3-s})")
            A(f"v_mfma_f32_16x16x32_bf16 v[72:75], {vr(40+4*s,4)}, {vr(24+4*s,4)}, {'0' if s == 0 else 'v[72:75]'}")
        A("s_branch L_sm")
        LB("L_empty")
        if NV:
            A("s_cmp_eq_u32 s52, 0"); A("s_cbranch_scc1 L_empty2")
            A("s_waitcnt vmcnt(0)"); A("s_mov_b32 s62, 4"); A("s_branch L_go")
            LB("L_empty2")
        if NV:
            A("s_sub_u32 s48, s39, s56"); A("s_cmp_gt_u32 s48, 2"); A("s_cbranch_scc1 L_empty3")
            A("s_waitcnt vmcnt(0)")
            LB("L_empty3")
        A(f"ds_write_b32 v1, v119 offset:{GATE - CNT}"); A("s_mov_b32 s55, 0")
        if ts: A("s_add_u32 s79, s51, 4"); TS(14)
        A("s_branch L_go")
        LB("L_dec")
        C("s62: what refills the free slot while this tile is computed: 1 loads, 3 loads with the second half unthrottled, 4 a parked tile, 0 nothing")
        C("s55: wanted number of tiles in the ring (3 at first, 2 later so that nothing waits unprocessed at the end, 0 when the pool is empty)")
        A("s_waitcnt vmcnt(8) lgkmcnt(0)")
        A("s_add_u32 s39, s39, 1")
        A("s_cmp_gt_u32 s44, s55"); A("s_cbranch_scc1 L_go")
        A("s_mov_b32 s63, 1")
        if NV:
            A("s_cmp_eq_u32 s52, 0"); A("s_cbranch_scc1 L_np")
            A("s_sub_u32 s53, s53, 1"); A("s_cmp_eq_u32 s53, 0"); A("s_cselect_b32 s62, 4, 0"); A("s_cbranch_scc1 L_go")
            A("s_cmp_eq_u32 s53, 1"); A(f"s_cselect_b32 s63, {3 if burst else 1}, 1"); A("s_branch L_src")
            LB("L_np")
        A(f"s_cmp_lt_u32 s39, {I2}"); A("s_cbranch_scc1 L_src")
        A("s_cmp_eq_u32 s55, 3"); A(f"s_cselect_b32 s63, {3 if burst else 1}, 1"); A("s_mov_b32 s55, 2")
        LB("L_src")
        A("s_cmp_eq_u32 s43, 0"); A("s_cbranch_scc1 L_dyn")
        A("s_sub_u32 s43, s43, 1"); A("s_mov_b32 s62, s63"); A("s_branch L_go")
        LB("L_dyn")
        A(f"s_cmp_ge_u32 s58, {D}"); A("s_cbranch_scc1 L_empty")
        A("s_and_b32 s49, s58, 7"); A("s_lshr_b32 s50, s58, 3")
        A("s_lshl_b32 s49, s49, 21"); A("s_lshl_b32 s50, s50, 14"); A("s_add_u32 s40, s46, s49"); A("s_add_u32 s40, s40, s50")
        A(f"s_cmp_ge_u32 s58, {D - XB}"); A("s_cselect_b32 s62, 3, s63")
        C("a wave that got one of the last rows does not ask again (the others still drain the counter)")
        A(f"s_cmp_ge_u32 s58, {D - XS}"); A("s_cselect_b32 s62, 11, s62"); A(f"s_cselect_b32 s58, {D}, s58")
        LB("L_go")
        for s in range(4): A(f"ds_read_b128 {vr(40+4*s,4)}, v{6+s}")
        for t in range(8): A(f"ds_read_b64_tr_b16 {vr(56+2*t,2)}, v{10+t}")
        kblock(0, KP[0], "L_k0")
        for s in range(4):
            A(f"s_waitcnt lgkmcnt({11-s})")
            A(f"v_mfma_f32_16x16x32_bf16 v[72:75], {vr(40+4*s,4)}, {vr(24+4*s,4)}, {'0' if s == 0 else 'v[72:75]'}")
        LB("L_sm")
        for k in range(12): A(f"v_xor_b32 v{6+k}, s54, v{6+k}")
        kblock(KP[0], KP[1], "L_k1")
        A("v_cvt_pk_bf16_f32 v110, v72, v73"); A("v_cvt_pk_bf16_f32 v111, v74, v75")
        unpack(112, 110); unpack(114, 111)
        for k in range(4): A(f"v_mul_f32 v{112+k}, {SCALE:#x}, v{112+k}")
        A("v_cvt_pk_bf16_f32 v110, v112, v113"); A("v_cvt_pk_bf16_f32 v111, v114, v115")
        unpack(112, 110); unpack(114, 111)
        A("v_max3_f32 v116, v112, v113, v114"); A("v_max_f32 v117, v115, v18")
        for k in range(4): A(f"v_fma_f32 v{72+k}, v{112+k}, s45, v19")
        A("v_max_f32 v110, v116, v117"); A("v_max_f32 v111, v116, v117")
        A("v_cmp_gt_f32 vcc, v110, v18")
        A("v_mov_b32 v118, 1.0")
        A("s_cbranch_vccnz L_newmax")
        for k in range(4): A(f"v_exp_f32 v{112+k}, v{72+k}")
        A("s_nop 0")
        LB("L_nors")
        A("v_add_f32 v116, v112, v113"); A("v_add_f32 v117, v114, v115")
        A("v_cvt_pk_bf16_f32 v120, v112, v113"); A("v_cvt_pk_bf16_f32 v121, v114, v115")
        A("v_add_f32 v116, v116, v117"); A("v_fma_f32 v109, v109, v118, v116")
        A("s_cmp_gt_u32 s44, 1"); A("s_cbranch_scc1 L_pv")
        for k in range(8): A(f"v_xor_b32 v{10+k}, s54, v{10+k}")
        TC(1)
        A("s_waitcnt vmcnt(0)")
        TC(2)
        for t in range(8): A(f"ds_read_b64_tr_b16 {vr(56+2*t,2)}, v{10+t}")
        for t in range(8):
            A(f"s_waitcnt lgkmcnt({7-t})"); A(f"v_mfma_f32_16x16x16_bf16 {vr(76+4*t,4)}, {vr(56+2*t,2)}, v[120:121], {vr(76+4*t,4)}")
        A("s_branch L_fin")
        LB("L_pv")
        kblock(KP[0] + KP[1], KP[2], "L_k2")
        A("s_waitcnt lgkmcnt(0)")
        for t in range(8): A(f"v_mfma_f32_16x16x16_bf16 {vr(76+4*t,4)}, {vr(56+2*t,2)}, v[120:121], {vr(76+4*t,4)}")
        A("s_xor_b32 s54, s54, 0x4000")
        A("s_bitcmp1_b32 s62, 0"); A("s_cbranch_scc1 L_rest")
        A("s_cmp_lg_u32 s62, 0"); A("s_cbranch_scc1 L_park")
        A("s_sub_u32 s44, s44, 1"); A("s_branch L_tile")
        LB("L_rest")
        if sum(KP) == 0: A("s_mov_b32 m0, s41")
        for i in range(sum(KP), 4): kload(i)
        A("s_lshr_b32 s48, s62, 3"); A("s_or_b32 s48, s48, s43"); A("s_cbranch_scc1 L_notk")
        A("s_mov_b32 s58, 1"); A("s_atomic_add s58, s[26:27], s57 glc")
        LB("L_notk")
        A("s_add_u32 m0, s41, 4096")
        A("s_bitcmp1_b32 s62, 1"); A("s_cbranch_scc1 L_vb")
        for i in range(4): A(f"s_waitcnt vmcnt({PACE})"); A(f"buffer_load_dwordx4 v{2+i}, s[32:35], s40 offen offset:{i*1024} {kv_flags} lds")
        LB("L_issued")
        adv()
        LB("L_slot")
        A("s_xor_b32 s41, s41, s42"); A("s_xor_b32 s42, s42, 0x4000")
        if prog:
            A("s_bitcmp1_b32 s62, 0"); A("s_addc_u32 s51, s51, 0")
            for k, r in enumerate((4, 8, 12, 16, 20, 24, 28)):
                A(f"s_cmp_eq_u32 s51, {r}"); A(f"s_cbranch_scc0 L_pg{k}"); TS(7 + k); LB(f"L_pg{k}")
        A("s_branch L_tile")
        LB("L_vb")
        for i in range(4): A(f"buffer_load_dwordx4 v{2+i}, s[32:35], s40 offen offset:{i*1024} {kv_flags} lds")
        A("s_branch L_issued")
        LB("L_park")
        C("a parked tile takes the free slot")
        A(f"s_mov_b32 s53, {VSTEP + 1}"); A("s_sub_u32 s52, s52, 1"); A("s_mov_b32 s56, s39")
        A("v_lshl_add_u32 v116, v0, 4, s41")
        for k in range(NV):
            if k < NV - 1: A(f"s_cmp_lg_u32 s52, {k}"); A(f"s_cbranch_scc1 L_pk{k}")
            for i in range(8): A(f"ds_write_b128 v116, {vr(128+32*k+4*i,4)} offset:{1024*i}")
            A("s_branch L_slot")
            if k < NV - 1: LB(f"L_pk{k}")
        if not NV: A("s_branch L_slot")
    else:
        if align: L.append(f".p2align {align}")
        LB("L_tile")
        A("s_waitcnt vmcnt(24)")
        A("s_cmp_gt_u32 s44, 3"); A("s_cbranch_scc1 L_go")
        A("s_waitcnt vmcnt(16)"); A("s_cmp_gt_u32 s44, 2"); A("s_cbranch_scc1 L_go")
        A("s_waitcnt vmcnt(8)"); A("s_cmp_gt_u32 s44, 1"); A("s_cbranch_scc1 L_go")
        if ksplit:
            C("last tile: start on K while V is still arriving")
            A("s_waitcnt vmcnt(4)")
            TS(3); TC(0)
            for s in range(4): A(f"ds_read_b128 {vr(40+4*s,4)}, v{6+s}")
            for s in range(4):
                A(f"s_waitcnt lgkmcnt({3-s})")
                A(f"v_mfma_f32_16x16x32_bf16 v[72:75], {vr(40+4*s,4)}, {vr(24+4*s,4)}, {'0' if s == 0 else 'v[72:75]'}")
            A("s_branch L_sm")
        else:
            A("s_waitcnt vmcnt(0)")
            TS(3)
        LB("L_go")
        if nocomp: A("s_waitcnt lgkmcnt(0)"); A("s_branch L_skipc")
        for s in range(4): A(f"ds_read_b128 {vr(40+4*s,4)}, v{6+s}")
        for t in range(8): A(f"ds_read_b64_tr_b16 {vr(56+2*t,2)}, v{10+t}")
        for s in range(4):
            A(f"s_waitcnt lgkmcnt({11-s})")
            A(f"v_mfma_f32_16x16x32_bf16 v[72:75], {vr(40+4*s,4)}, {vr(24+4*s,4)}, {'0' if s == 0 else 'v[72:75]'}")
        LB("L_sm")
        for k in range(12): A(f"v_xor_b32 v{6+k}, s54, v{6+k}")
        A("v_cvt_pk_bf16_f32 v110, v72, v73"); A("v_cvt_pk_bf16_f32 v111, v74, v75")
        unpack(112, 110); unpack(114, 111)
        for k in range(4): A(f"v_mul_f32 v{112+k}, {SCALE:#x}, v{112+k}")
        A("v_cvt_pk_bf16_f32 v110, v112, v113"); A("v_cvt_pk_bf16_f32 v111, v114, v115")
        unpack(112, 110); unpack(114, 111)
        if lazy:
            A("v_max3_f32 v116, v112, v113, v114"); A("v_max_f32 v117, v115, v18")
            for k in range(4): A(f"v_fma_f32 v{72+k}, v{112+k}, s45, v19")
            A("v_max_f32 v110, v116, v117"); A("v_max_f32 v111, v116, v117")
            A("v_cmp_gt_f32 vcc, v110, v18")
            A("v_mov_b32 v118, 1.0")
            A("s_cbranch_vccnz L_newmax")
            for k in range(4): A(f"v_exp_f32 v{112+k}, v{72+k}")
            A("s_nop 0")
        else:
            A("v_max3_f32 v116, v112, v113, v114"); A("v_max3_f32 v116, v116, v115, v18")
            swap_red("max_f32", [116], [117], 16); swap_red("max_f32", [116], [117], 32)
            A(f"v_mul_f32 v117, {NL2E:#x}, v116"); A("v_floor_f32 v117, v117")
            A("v_cmp_lt_f32 vcc, v117, v19")
            A("v_sub_f32 v118, v117, v19")
            for k in range(4): A(f"v_fma_f32 v{112+k}, v{112+k}, s45, v117")
            A("v_exp_f32 v118, v118")
            for k in range(4): A(f"v_exp_f32 v{112+k}, v{112+k}")
            A("v_mov_b32 v18, v116"); A("v_mov_b32 v19, v117")
            A("s_cbranch_vccz L_nors")
            for k in range(16): A(f"v_pk_mul_f32 {vr(76+2*k,2)}, {vr(76+2*k,2)}, v[118:119] op_sel_hi:[1,0]")
        LB("L_nors")
        A("v_add_f32 v116, v112, v113"); A("v_add_f32 v117, v114, v115")
        A("v_cvt_pk_bf16_f32 v120, v112, v113"); A("v_cvt_pk_bf16_f32 v121, v114, v115")
        A("v_add_f32 v116, v116, v117"); A("v_fma_f32 v109, v109, v118, v116")
        if ksplit:
            A("s_cmp_gt_u32 s44, 1"); A("s_cbranch_scc1 L_pv")
            for k in range(8): A(f"v_xor_b32 v{10+k}, s54, v{10+k}")
            TC(1)
            A("s_waitcnt vmcnt(0)")
            TC(2)
            for t in range(8): A(f"ds_read_b64_tr_b16 {vr(56+2*t,2)}, v{10+t}")
            for t in range(8):
                A(f"s_waitcnt lgkmcnt({7-t})"); A(f"v_mfma_f32_16x16x16_bf16 {vr(76+4*t,4)}, {vr(56+2*t,2)}, v[120:121], {vr(76+4*t,4)}")
            A("s_branch L_fin")
            LB("L_pv")
        A("s_waitcnt lgkmcnt(0)")
        for t in range(8): A(f"v_mfma_f32_16x16x16_bf16 {vr(76+4*t,4)}, {vr(56+2*t,2)}, v[120:121], {vr(76+4*t,4)}")
        LB("L_skipc")
        if NV:
            A("s_cmp_eq_u32 s52, 0"); A("s_cbranch_scc1 L_nopark")
            A("s_sub_u32 s53, s53, 1"); A("s_cmp_lg_u32 s53, 0"); A("s_cbranch_scc1 L_nopark")
            LB("L_park")
            C("move a parked tile into the slot that just became free and run it")
            A(f"s_mov_b32 s53, {VSTEP + 1}"); A("s_sub_u32 s52, s52, 1")
            A("v_lshl_add_u32 v116, v0, 4, s41")
            A("s_waitcnt vmcnt(8)")
            for k in range(NV):
                if k < NV - 1: A(f"s_cmp_lg_u32 s52, {k}"); A(f"s_cbranch_scc1 L_pk{k}")
                for i in range(8): A(f"ds_write_b128 v116, {vr(128+32*k+4*i,4)} offset:{1024*i}")
                if k < NV - 1: A("s_branch L_pkd"); LB(f"L_pk{k}")
            LB("L_pkd")
            for k in range(12): A(f"v_xor_b32 v{6+k}, s54, v{6+k}")
            A("s_branch L_go")
            LB("L_nopark")
        A("s_xor_b32 s54, s54, 0x4000")
        C("s55: wanted number of tiles in the ring (4 at first, 2 later so that nothing waits unprocessed at the end, 0 when the pool is empty)")
        A("s_add_u32 s39, s39, 1")
        A(f"s_cmp_lt_u32 s39, {I1}"); A("s_cbranch_scc1 L_keep")
        A("s_cmp_lg_u32 s52, 0"); A("s_cbranch_scc1 L_keep")
        A(f"s_cmp_lt_u32 s39, {I2}"); A("s_cselect_b32 s48, 3, 2"); A("s_min_u32 s55, s55, s48")
        A("s_cmp_gt_u32 s44, s55"); A("s_cbranch_scc1 L_drain")
        LB("L_keep")
        if WTRIG:
            A(f"s_cmp_lg_u32 s43, {WTRIG}"); A("s_cbranch_scc1 L_notrig")
            A(f"ds_add_u32 v1, v119 offset:{WQC - CNT}")
            LB("L_notrig")
        A("s_cmp_eq_u32 s43, 0"); A("s_cbranch_scc1 L_dyn")
        if SKW or SKF:
            C("workgroups that also fetch weights fall behind: they jump a few rows to stay level with their neighbours and do those rows last")
            A(f"s_cmp_lg_u32 s43, {SKT}"); A("s_cbranch_scc1 L_nsk")
            A("s_mov_b32 s63, s40"); A("s_lshl_b32 s48, s62, 16"); A("s_add_u32 s40, s40, s48")
            LB("L_nsk")
            A("s_cmp_eq_u32 s43, s62"); A("s_cselect_b32 s40, s63, s40")
        A("s_sub_u32 s43, s43, 1"); A("s_branch L_issue")
        LB("L_dyn")
        if F:
            C("rows of this page are handed out in order to its four workgroups; each wave's last page ticket is one of the last four")
            A("s_cmp_eq_u32 s56, s57"); A("s_cbranch_scc1 L_head")
            if fk: A("s_mov_b32 s58, s62"); A("s_add_u32 s62, s62, 4")
            A("s_lshl_b32 s50, s58, 14"); A("s_add_u32 s40, s59, s50")
            A(f"s_cmp_ge_u32 s58, {P - 4}"); A("s_cselect_b32 s56, s57, s56")
            A("s_branch L_issue")
            LB("L_head")
        if wgt:
            C("one row of four tiles per ticket: the first wave to need it asks, the others read its answer")
            A("s_cmp_eq_u32 s56, 0"); A("s_cbranch_scc1 L_rdq")
            A("v_mov_b32 v22, s58"); A(f"ds_write_b32 v23, v22 offset:{TQ - EL}"); A("s_branch L_gotq")
            LB("L_rdq")
            A(f"ds_read_b32 v22, v23 offset:{TQ - EL}"); A("s_waitcnt lgkmcnt(0)"); A("v_readfirstlane_b32 s58, v22")
            A("s_cmp_eq_u32 s58, -1"); A("s_cbranch_scc1 L_rdq")
            LB("L_gotq")
        A(f"s_cmp_ge_u32 s58, {D}"); A("s_cbranch_scc1 L_empty")
        if wgt: A("v_add_u32 v23, 4, v23")
        A("s_and_b32 s49, s58, 7"); A("s_lshr_b32 s50, s58, 3")
        A("s_lshl_b32 s49, s49, 21"); A("s_lshl_b32 s50, s50, 14"); A("s_add_u32 s40, s46, s49"); A("s_add_u32 s40, s40, s50")
        if XB:
            A(f"s_cmp_lt_u32 s58, {D - XB}"); A("s_cbranch_scc1 L_issue")
            C("last round of the pool: others have stopped, do not hold these loads back")
            if XS:
                C("a wave that got one of the last XS rows does not ask again (the others still drain the counter)")
                A(f"s_cmp_ge_u32 s58, {D - XS}"); A("s_cselect_b32 s43, 1, 0"); A(f"s_cselect_b32 s58, {D}, s58")
            issue_tile(PACEB, 2)
            if XS: A("s_mov_b32 s43, 0")
            A("s_branch L_issued")
        LB("L_issue")
        issue_tile(PACE, 1)
        LB("L_issued")
        A("s_xor_b32 s41, s41, s42"); A("s_xor_b32 s42, s42, 0x4000")
        if prog:
            A("s_add_u32 s51, s51, 1")
            for k, r in enumerate((4, 8, 12, 16, 20, 24, 28)):
                A(f"s_cmp_eq_u32 s51, {r}"); A(f"s_cbranch_scc0 L_pg{k}"); TS(7 + k); LB(f"L_pg{k}")
        A("s_branch L_tile")
        LB("L_empty")
        if NV:
            A("s_cmp_eq_u32 s52, 0"); A("s_cbranch_scc1 L_empty2")
            A("s_xor_b32 s54, s54, 0x4000"); A("s_branch L_park")
            LB("L_empty2")
        A(f"ds_write_b32 v1, v119 offset:{GATE - CNT}"); A("s_mov_b32 s55, 0")
        if ts: A("s_add_u32 s79, s51, 4"); TS(14)
        LB("L_drain")
        A("s_sub_u32 s44, s44, 1"); A("s_cmp_lg_u32 s44, 0"); A("s_cbranch_scc1 L_tile")
    LB("L_fin")
    TS(4); TC(3)
    C("epilogue: merge the four waves' partial results, publish")
    A("v_mov_b32 v116, v109"); A("v_mov_b32 v108, v19"); A("s_nop 0")
    A("v_permlane16_swap_b32 v109, v116"); A("v_add_f32 v117, v109, v116"); A("v_add_f32 v109, v109, v116")
    A("s_mov_b32 exec_lo, 0x000f000f"); A("s_mov_b32 exec_hi, 0x000f000f")
    for t in range(8): A(f"ds_write_b128 v122, {vr(76+4*t,4)} offset:{64*t}")
    A("s_mov_b64 exec, -1")
    A("v_permlane32_swap_b32 v109, v117"); A("v_add_f32 v109, v109, v117")
    A("s_mov_b64 exec, 15")
    A("ds_write_b64 v123, v[108:109]")
    A("s_mov_b64 exec, 1")
    A("ds_add_rtn_u32 v111, v1, v119")
    A("s_mov_b64 exec, -1")
    A("s_waitcnt lgkmcnt(0)")
    TC(4)
    A("v_readfirstlane_b32 s44, v111")
    if fine: A("s_mov_b32 s79, s44")
    A("s_cmp_eq_u32 s44, 3"); A("s_cbranch_scc0 L_sdone")
    if mlt: A("v_mov_b32 v33, v22"); A("v_mov_b32 v35, v22")
    for w in range(4): A(f"ds_read_b64 {vr(24+2*w,2)}, v125 offset:{32*w}")
    for w in range(4):
        A(f"ds_read_b128 {vr(40+8*w,4)}, v124 offset:{2048*w}"); A(f"ds_read_b128 {vr(44+8*w,4)}, v124 offset:{2048*w+16}")
    A("s_waitcnt lgkmcnt(8)")
    A("v_min3_f32 v32, v24, v26, v28"); A("v_min_f32 v32, v32, v30")
    for w in range(4): A(f"v_sub_f32 v{24+2*w}, v32, v{24+2*w}")
    for w in range(4): A(f"v_exp_f32 v{24+2*w}, v{24+2*w}")
    A("s_waitcnt lgkmcnt(6)")
    for k in range(4): A(f"v_pk_mul_f32 {vr(40+2*k,2)}, {vr(40+2*k,2)}, v[24:25] op_sel_hi:[1,0]")
    for w in range(1, 4):
        A(f"s_waitcnt lgkmcnt({6 - 2*w})")
        for k in range(4): A(f"v_pk_fma_f32 {vr(40+2*k,2)}, {vr(40+8*w+2*k,2)}, {vr(24+2*w,2)}, {vr(40+2*k,2)} op_sel_hi:[1,0,1]")
    for k in range(4): A(f"v_cvt_pk_bf16_f32 v{40+k}, v{40+2*k}, v{41+2*k}")
    A("global_store_dwordx4 v126, v[40:43], s[26:27] sc1")
    lr = 34 if mlt else 33
    A(f"v_mul_f32 v{lr}, v24, v25")
    for w in range(1, 4): A(f"v_fmac_f32 v{lr}, v{24+2*w}, v{25+2*w}")
    A("s_mov_b32 exec_lo, 0x00010001"); A("s_mov_b32 exec_hi, 0x00010001")
    if mlt: A("global_store_dwordx4 v127, v[32:35], s[26:27] sc1")
    else: A("global_store_dwordx2 v127, v[32:33], s[26:27] sc1")
    A("v_mov_b32 v117, 2"); A(f"ds_write_b32 v1, v117 offset:{GATE - CNT}")
    LB("L_sdone")
    TC(5); TC_fin(6)
    TS(5)
    TS_flush()
    A("s_endpgm")

    if lazy:
        LB("L_newmax")
        C("some row has a new maximum: agree on it across the four key groups, rescale")
        A("v_permlane16_swap_b32 v110, v111"); A("v_max_f32 v116, v110, v111"); A("v_max_f32 v117, v110, v111"); A("s_nop 1")
        A("v_permlane32_swap_b32 v116, v117"); A("v_max_f32 v18, v116, v117")
        A(f"v_mul_f32 v117, {NL2E:#x}, v18"); A("v_floor_f32 v117, v117")
        A("v_cmp_lt_f32 vcc, v117, v19")
        A("v_sub_f32 v118, v117, v19")
        for k in range(4): A(f"v_fma_f32 v{112+k}, v{112+k}, s45, v117")
        A("v_exp_f32 v118, v118")
        for k in range(4): A(f"v_exp_f32 v{112+k}, v{112+k}")
        A("v_mov_b32 v19, v117")
        A("s_cbranch_vccz L_nors")
        for k in range(16): A(f"v_pk_mul_f32 {vr(76+2*k,2)}, {vr(76+2*k,2)}, v[118:119] op_sel_hi:[1,0]")
        A("s_branch L_nors")
    LB("L_helper")
    if noh: A("s_endpgm")
    A("s_mov_b32 s47, s39")
    A("s_mov_b32 s50, s39")
    A("s_cmp_eq_u32 s37, 15"); A("s_cselect_b32 s47, 3, s47")
    A("s_sub_u32 s39, s3, 4")
    A("s_and_b32 s48, s37, 7")
    A("s_mul_i32 s59, s36, 7"); A("s_add_u32 s59, s59, s48")
    A("s_lshl_b32 s49, s48, 3"); A("s_add_u32 s49, s49, s36")
    A("v_lshrrev_b32 v20, 4, v0"); A("v_and_b32 v21, 15, v0")
    A("v_lshrrev_b32 v22, 3, v21"); A("v_and_b32 v23, 7, v21")
    A("s_mov_b32 s44, 0x05040100"); A("s_mov_b32 s45, 0x07060302")
    if dry: A("s_mov_b32 s46, 0")
    A("s_cmp_eq_u32 s39, 0"); A("s_cbranch_scc1 L_w4")
    if noroles: A("s_endpgm")
    A("s_cmp_ge_u32 s47, 2"); A("s_cbranch_scc1 L_end")
    if ts: A("s_mov_b32 s64, s60")
    A(f"v_mov_b32 v1, {QRDY}")
    LB("L_hq")
    A("s_sleep 4"); A("ds_read_b32 v2, v1"); A("s_waitcnt lgkmcnt(0)"); A("v_readfirstlane_b32 s40, v2")
    A("s_cmp_eq_u32 s40, 0"); A("s_cbranch_scc1 L_hq")
    A(f"ds_read_b32 v3, v1 offset:{TAGL - QRDY}"); A("s_waitcnt vmcnt(0) lgkmcnt(0)")
    A("s_branch L_roles")

    LB("L_w4")
    C("first helper wave: reset this workgroup's hand-off slots; 128 rows x 64 columns of LN(x) @ wq; gather q")
    if w4stop == 1: A("s_endpgm")
    A(f"s_setprio {wprio}")
    if ts: A("s_mov_b32 s64, s60")
    for k in range(4): A(f"v_mov_b32 v{72+k}, -1")
    A("s_lshl_b32 s40, s36, 15"); A("s_lshl_b32 s41, s38, 8"); A("s_add_u32 s40, s40, s41"); A(f"s_add_u32 s40, s40, {PART}")
    A("v_lshlrev_b32 v76, 13, v20"); A("v_lshl_add_u32 v76, v21, 4, v76"); A("v_add_u32 v76, s40, v76")
    A("s_lshl_b32 s40, s36, 12"); A("s_lshl_b32 s41, s38, 7"); A("s_add_u32 s41, s40, s41"); A(f"s_add_u32 s41, s41, {ML}")
    A("v_lshl_add_u32 v77, v20, 3, s41")
    A(f"v_add_u32 v10, {HN}, v1")
    A("s_lshl_b32 s40, s50, 8"); A(f"s_add_u32 s40, s40, {HN}"); A("v_lshl_add_u32 v11, v20, 4, s40")
    A("v_bfe_u32 v13, v0, 2, 2"); A("v_lshl_add_u32 v13, v20, 3, v13"); A("v_lshlrev_b32 v13, 7, v13")
    A("v_and_b32 v14, 3, v0"); A("v_lshl_add_u32 v13, v14, 3, v13"); A(f"v_add_u32 v13, {WQL}, v13")
    A(f"v_lshlrev_b32 v14, 2, v0"); A(f"v_add_u32 v18, {QL}, v14")
    A("s_lshl_b32 s40, s36, 14"); A(f"s_add_u32 s40, s40, {QBUF + 4096}")
    A("v_add_u32 v17, s40, v1"); A("v_add_u32 v19, 0x2000, v17")
    A("s_lshl_b32 s41, s50, 12"); A("s_add_u32 s40, s40, s41"); A("s_lshl_b32 s41, s48, 9"); A("s_add_u32 s40, s40, s41"); A("s_sub_u32 s40, s40, 4096")
    A("v_lshl_add_u32 v15, v0, 3, s40")
    A("s_lshl_b32 s40, s2, 2"); A(f"s_add_u32 s40, s40, {ALIVE}"); A("v_mov_b32 v78, s40")
    A("v_cmp_eq_u32 s[52:53], 1, v20"); A("v_cmp_eq_u32 s[54:55], 2, v20"); A("v_cmp_eq_u32 s[56:57], 3, v20")
    A(f"v_mov_b32 v14, {WQC}")
    A("s_waitcnt vmcnt(0)")
    TS(1)
    if not nopois: A("global_store_dwordx4 v76, v[72:75], s[26:27] " + pof)
    if not mlt:
        A("s_mov_b32 exec_lo, 0x00010001"); A("s_mov_b32 exec_hi, 0x00010001")
        A("global_store_dwordx2 v77, v[72:73], s[26:27] " + pof)
        A("s_mov_b64 exec, -1")
    if gok:
        if nopois < 2: A("s_cmp_ge_u32 s47, 2"); A("s_cbranch_scc0 L_w4r")
        LB("L_w4b")
    A(f"v_add_u32 v3, {TAGC:#x}, v3")
    layernorm(4, 24, 32)
    A("ds_write_b128 v10, v[4:7]")
    for k in range(4): A(f"ds_read_b128 {vr(40+4*k,4)}, v11 offset:{64*k}")
    LB("L_wqw")
    A("ds_read_b32 v24, v14"); A("s_waitcnt lgkmcnt(0)"); A("v_readfirstlane_b32 s40, v24")
    A("s_cmp_lt_u32 s40, 4"); A("s_cbranch_scc1 L_wqw")
    TS(2)
    for k in range(4):
        for t in range(4):
            r = 96 + 16 * k + 4 * t
            A(f"ds_read_b64_tr_b16 {vr(r,2)}, v13 offset:{4096*k + 32*t}"); A(f"ds_read_b64_tr_b16 {vr(r+2,2)}, v13 offset:{4096*k + 32*t + 512}")
    for k in range(4):
        for t in range(4):
            n = 4 * k + t
            A(f"s_waitcnt lgkmcnt({min(15, 2*(15-n))})")
            A(f"v_mfma_f32_16x16x32_bf16 {vr(56+4*t,4)}, {vr(40+4*k,4)}, {vr(96+16*k+4*t,4)}, {'0' if k == 0 else vr(56+4*t,4)}")
    A("s_nop 5")
    A("v_cndmask_b32 v2, v56, v60, s[52:53]"); A("s_nop 0"); A("v_cndmask_b32 v2, v2, v64, s[54:55]"); A("v_cndmask_b32 v2, v2, v68, s[56:57]")
    if gok: A("s_waitcnt vmcnt(0)")
    A("global_store_dwordx2 v15, v[2:3], s[26:27] " + qsf)
    if not nohint:
        A("s_mov_b64 exec, 1"); A(f"global_store_dword v78, v3, s[26:27] offset:{QH - ALIVE} sc1"); A("s_mov_b64 exec, -1")
    if not gok:
        A("s_cmp_ge_u32 s47, 2"); A("s_cbranch_scc0 L_w4r")
        LB("L_w4b")
    if w4stop == 2: A("s_endpgm")
    TS(3)
    A(f"s_mov_b32 s51, {SPIN_MAX}")
    def qload(r):
        for i in range(16): A(f"global_load_dwordx4 {vr(r+4*i,4)}, v{17 if i < 8 else 19}, s[26:27] offset:{(i % 8) * 1024 - 4096} sc1")
    def qcheck(r):
        A(f"v_xor_b32 v24, v{r+1}, v3"); A(f"v_xor_b32 v25, v{r+3}, v3")
        ws = [r + 4 * i + k for i in range(1, 16) for k in (1, 3)]
        for n, w in enumerate(ws):
            A(f"v_xor_b32 v26, v{w}, v3"); A(f"v_or_b32 v{24 + (n & 1)}, v{24 + (n & 1)}, v26")
        A("v_or_b32 v24, v24, v25"); A("v_cmp_ne_u32 vcc, 0, v24")
    def qsum(r):
        for k in range(4):
            for h in (0, 2):
                A(f"v_add_f32 v{r+4*k+h}, v{r+4*k+h}, v{r+16+4*k+h}"); A(f"v_add_f32 v{r+32+4*k+h}, v{r+32+4*k+h}, v{r+48+4*k+h}")
        for k in range(4):
            for h in (0, 2): A(f"v_add_f32 v{r+4*k+h}, v{r+4*k+h}, v{r+32+4*k+h}")
        for k in range(4): A(f"v_cvt_pk_bf16_f32 v{24+k}, v{r+4*k}, v{r+4*k+2}")
    if not nohint: C("the group's 32 words announce the partial q stores; the tags inside the data are what is trusted")
    if nohint:
        if nohint > 1: A(f"s_sleep {nohint}")
        A("s_waitcnt vmcnt(0)")
    elif sq:
        A("v_readfirstlane_b32 s58, v3"); A("s_lshl_b32 s41, s36, 7"); A(f"s_add_u32 s41, s41, {QH + 4 * (32 - QW)}")
        scheck("L_qh", 0, QW)
        A(f"s_mov_b32 s51, {SPIN_MAX}")
        A("s_waitcnt vmcnt(0)")
    else:
        A("s_lshl_b32 s40, s36, 7"); A(f"s_add_u32 s40, s40, {QH}"); A("v_and_b32 v12, 31, v0"); A("v_lshl_add_u32 v12, v12, 2, s40")
        A("global_load_dword v28, v12, s[26:27] sc1")
        A(f"s_sleep {qsleep}")
        LB("L_qhint")
        A("global_load_dword v29, v12, s[26:27] sc1")
        A("s_waitcnt vmcnt(1)")
        A("v_cmp_eq_u32 vcc, v28, v3"); A("s_bcnt1_i32_b32 s40, vcc_lo"); A(f"s_cmp_ge_u32 s40, {QTH}"); A("s_cbranch_scc1 L_qgo")
        A("global_load_dword v28, v12, s[26:27] sc1")
        A("s_waitcnt vmcnt(1)")
        A("v_cmp_eq_u32 vcc, v29, v3"); A("s_bcnt1_i32_b32 s40, vcc_lo")
        A("s_sub_u32 s51, s51, 1"); A("s_cbranch_scc1 L_qgo")
        A(f"s_cmp_lt_u32 s40, {QTH}"); A("s_cbranch_scc1 L_qhint")
    LB("L_qgo")
    if not gok: C("the resets have landed: tell the later stages")
    A("s_mov_b64 exec, 1") if not gok else None
    if not gok: A("global_store_dword v78, v3, s[26:27] sc1")
    if sa:
        A("s_cmp_ge_u32 s47, 2"); A("s_cbranch_scc1 L_noar")
        A("s_lshl_b32 s40, s36, 3"); A("s_add_u32 s40, s40, s48"); A("s_add_u32 s41, s49, 64"); A("s_cmp_eq_u32 s47, 0"); A("s_cselect_b32 s40, s40, s41")
        A("s_lshl_b32 s40, s40, 2"); A(f"s_add_u32 s40, s40, {AR}"); A("v_mov_b32 v77, s40")
        A("global_store_dword v77, v3, s[26:27] sc1")
        LB("L_noar")
    if not gok: A("s_mov_b64 exec, -1")
    TS(12)
    if w4stop == 3: A("s_endpgm")
    A(f"s_mov_b32 s55, {qmask}")
    LB("L_qpoll")
    for i in range(16):
        A(f"s_bitcmp1_b32 s55, {i}"); A(f"s_cbranch_scc0 L_qs{i}")
        A(f"global_load_dwordx4 {vr(96+4*i,4)}, v{17 if i < 8 else 19}, s[26:27] offset:{(i % 8) * 1024 - 4096} {qgf}")
        LB(f"L_qs{i}")
    A("s_waitcnt vmcnt(0)")
    for i in range(16):
        A(f"v_cmp_ne_u32 vcc, v{97+4*i}, v3"); A(f"v_cmp_ne_u32 s[40:41], v{99+4*i}, v3"); A("s_or_b64 vcc, vcc, s[40:41]")
        A(f"s_cbranch_scc1 L_qc{i}"); A(f"s_bitset0_b32 s55, {i}"); LB(f"L_qc{i}")
    A("s_sub_u32 s51, s51, 1"); A("s_cbranch_scc1 L_qgot")
    if qretry:
        A("s_cmp_eq_u32 s55, 0"); A("s_cbranch_scc1 L_qgot"); A(f"s_sleep {qretry}"); A("s_branch L_qpoll")
    else: A("s_cmp_lg_u32 s55, 0"); A("s_cbranch_scc1 L_qpoll")
    LB("L_qgot")
    qsum(96)
    if wgt:
        A(f"v_add_u32 v28, {EL}, v1"); A(f"ds_write_b128 v28, v[72:75] offset:{TQ - EL}")
        for k in range(4): A(f"v_mov_b32 v{76+k}, 0")
        A("ds_write_b128 v28, v[76:79]")
    A("ds_write2_b32 v18, v24, v25 offset0:0 offset1:64"); A("ds_write2_b32 v18, v26, v27 offset0:128 offset1:192")
    A(f"v_mov_b32 v18, {QRDY}"); A("v_mov_b32 v19, 1")
    A(f"ds_write_b32 v18, v3 offset:{TAGL - QRDY}"); A("ds_write_b32 v18, v19")
    A("s_waitcnt lgkmcnt(0)")
    A("s_setprio 0")
    if gok:
        C("one member per group tells the later stages that all 32 members' resets have landed")
        A("s_cmp_lg_u32 s37, 16"); A("s_cbranch_scc1 L_nogok")
        A("s_lshl_b32 s40, s36, 2"); A(f"s_add_u32 s40, s40, {ALIVE}"); A("v_mov_b32 v78, s40")
        A("s_mov_b64 exec, 1"); A("global_store_dword v78, v3, s[26:27] sc1"); A("s_mov_b64 exec, -1")
        LB("L_nogok")
    TS(4)
    if touch:
        A("v_lshlrev_b32 v4, 21, v0"); A("s_lshl_b32 s40, s36, 24"); A(f"s_add_u32 s40, s40, {0x200000 - 128}"); A("v_add_u32 v4, s40, v4")
        A("s_mov_b64 exec, 0xff")
        A("global_load_dword v240, v4, s[6:7] nt"); A("global_load_dword v240, v4, s[8:9] nt")
        A("s_mov_b64 exec, -1")
    A("s_waitcnt vmcnt(0)")
    A("s_branch L_roles")
    LB("L_w4r")
    A("s_cmp_eq_u32 s47, 0"); A("s_cbranch_scc0 L_w4f")
    A("s_lshl_b32 s40, s48, 11"); A("s_lshl_b32 s41, s36, 8"); A("s_add_u32 s40, s40, s41"); A(f"s_add_u32 s40, s40, {H2}")
    A("v_lshl_add_u32 v76, v21, 4, s40")
    if rep:
        A("v_lshl_add_u32 v76, v20, 14, v76"); A("v_add_u32 v77, 0x10000, v76")
        A("global_store_dwordx4 v76, v[72:75], s[26:27] " + pof); A("global_store_dwordx4 v77, v[72:75], s[26:27] " + pof)
    else:
        A("s_mov_b64 exec, 0xffff")
        A("global_store_dwordx4 v76, v[72:75], s[26:27] " + pof)
        A("s_mov_b64 exec, -1")
    A("s_branch L_w4b")
    LB("L_w4f")
    A("s_lshl_b32 s41, s49, 7"); A(f"s_add_u32 s41, s41, {H3}")
    A("v_lshrrev_b32 v76, 3, v0"); A("v_mul_u32_u24 v76, 7168, v76"); A("v_and_b32 v77, 7, v0"); A("v_lshl_add_u32 v76, v77, 4, v76"); A("v_add_u32 v76, s41, v76")
    A(f"v_add_u32 v77, {8*7168}, v76")
    A("global_store_dwordx4 v76, v[72:75], s[26:27] " + pof); A("global_store_dwordx4 v77, v[72:75], s[26:27] " + pof)
    A("s_branch L_w4b")
    LB("L_roles")
    if noroles: A("s_branch L_hdone")
    A("s_cmp_eq_u32 s47, 1"); A("s_cbranch_scc1 L_ffn")
    A("s_cmp_eq_u32 s47, 0"); A("s_cbranch_scc0 L_hdone")
    A("s_mov_b32 s40, s36"); A("s_mov_b32 s36, s48"); A("s_mov_b32 s48, s40")

    C("wo role: merge 32 splits of one kv group, multiply by a 512x64 block of wo")
    A("s_lshl_b32 s40, s36, 2"); A("s_add_u32 s40, s40, s39")
    A("s_lshl_b32 s41, s40, 17"); A("s_lshl_b32 s42, s48, 7"); A("s_add_u32 s41, s41, s42"); A("s_add_u32 s41, s41, 4096")
    A("s_add_u32 s52, s12, s41"); A("s_addc_u32 s53, s13, 0")
    A("v_lshlrev_b32 v58, 16, v22"); A("v_lshl_add_u32 v58, v20, 13, v58"); A("v_lshl_add_u32 v58, v23, 4, v58"); A("v_add_u32 v59, 0x8000, v58")
    def wo_weights():
        if jitw: gate_wait("L_w_jit", 1); TS(11)
        for s in range(2):
            for i in range(8): A(f"global_load_dwordx4 {vr(160+32*s+4*i,4)}, v{58+s}, s[52:53] offset:{1024*i-4096} {w_flags}")
            if not jitw: A("s_waitcnt vmcnt(0)")
        for s in range(2):
            A(f"s_waitcnt vmcnt({8 - 8*s})")
            transpose8(96 + 32 * s, 160 + 32 * s)
        TS(5)
    if not jitw: wo_weights()
    alive("w")
    A("s_lshl_b32 s41, s40, 13"); A(f"s_add_u32 s41, s41, {PART}")
    A("v_lshlrev_b32 v14, 4, v21"); A("v_lshl_add_u32 v4, v20, 11, v14"); A("v_add_u32 v4, s41, v4")
    A("s_lshl_b32 s41, s36, 12"); A(f"s_lshl_b32 s42, s39, {4 if mlt else 3}"); A("s_add_u32 s41, s41, s42"); A(f"s_add_u32 s41, s41, {ML}")
    A("v_and_b32 v8, 31, v0"); A("v_lshl_add_u32 v6, v8, 7, s41")
    A("s_lshl_b32 s41, s39, 6"); A(f"s_add_u32 s41, s41, {WB}")
    A("v_lshl_add_u32 v9, v8, 1, s41"); A("v_lshl_add_u32 v10, v20, 4, s41")
    A("s_lshl_b32 s41, s39, 8"); A(f"s_add_u32 s41, s41, {OB}")
    A("v_add_u32 v11, s41, v14")
    A("v_lshlrev_b32 v12, 7, v22"); A("v_lshl_add_u32 v12, v20, 4, v12"); A("v_add_u32 v12, s41, v12")
    A("s_lshl_b32 s41, s39, 9"); A(f"s_add_u32 s41, s41, {RED}")
    A("v_lshlrev_b32 v13, 8, v22"); A("v_lshl_add_u32 v13, v23, 5, v13"); A("v_add_u32 v13, s41, v13")
    A(f"v_add_u32 v15, {RED}, v14")
    A("s_lshl_b32 s41, s36, 11"); A("s_lshl_b32 s42, s48, 8"); A("s_add_u32 s54, s41, s42")
    if jitw: wo_weights()
    if pw:
        if pw == 2: gate_wait("L_wo_pw", 1)
        if 'm' in pws: A(f"global_load_dwordx2 v[80:81], v6, s[26:27] {pwf}")
        for i in range(8 if 'p' in pws else 0): A(f"global_load_dwordx4 {vr(16+4*i,4)}, v4, s[26:27] offset:{256*i} {pwf}")
    if not dry: gate_wait("L_wo_gate0", 2 if g2 else 1); TS(8)
    LB("L_wo_pass")
    A(f"s_mov_b32 s41, {H2}")
    if dry: A("s_cmp_eq_u32 s46, 0"); A(f"s_cmov_b32 s41, {DUMMY}")
    A("s_add_u32 s41, s41, s54")
    A("v_add_u32 v7, s41, v14")
    if rep: A("v_lshrrev_b32 v5, 4, v0"); A("v_lshl_add_u32 v7, v5, 14, v7"); A("v_add_u32 v5, 0x10000, v7")
    A(f"s_mov_b32 s51, {SPIN_MAX}")
    if MLTH >= 0:
        LB("L_wo_ml")
        if mlt:
            A("global_load_dwordx4 v[224:227], v6, s[26:27] sc1")
            A("s_waitcnt vmcnt(0)")
            A("v_cmp_ne_u32 vcc, v227, v3")
        else:
            A("global_load_dwordx2 v[80:81], v6, s[26:27] sc1")
            A("s_waitcnt vmcnt(0)")
            any_poison([80, 81], 84)
        A("s_bcnt1_i32_b32 s57, vcc_lo")
        if dry: A("s_cmp_eq_u32 s46, 0"); A("s_cbranch_scc1 L_wo_go")
        A("s_sub_u32 s51, s51, 1"); A("s_cbranch_scc1 L_wo_go")
        A(f"s_cmp_gt_u32 s57, {32 - MLTH}"); A("s_cbranch_scc1 L_wo_ml")
    LB("L_wo_go")
    TS(9)
    def wload(r, m):
        A(f"global_load_dwordx4 {vr(m,4)}, v6, s[26:27] sc1" if mlt else f"global_load_dwordx2 {vr(m,2)}, v6, s[26:27] sc1")
        for i in range(8): A(f"global_load_dwordx4 {vr(r+4*i,4)}, v4, s[26:27] offset:{256*i} sc1")
    def wcheck(r, m):
        if mlt:
            A(f"v_cmp_ne_u32 s[40:41], v{m+1}, v3"); A(f"v_cmp_ne_u32 s[42:43], v{m+3}, v3")
            any_poison(list(range(r, r + 32)), 84, NCH)
            A("s_or_b64 s[40:41], s[40:41], s[42:43]"); A("s_or_b64 s[40:41], vcc, s[40:41]")
        else: any_poison([m, m+1] + list(range(r, r + 32)), 84)
    MA, MB = (224, 228) if mlt else (80, 82)
    wload(16, MA)
    if stag: A(f"s_sleep {stag}")
    LB("L_wo_poll")
    if ts: A("s_add_u32 s79, s79, 1")
    wload(48, MB)
    A("s_waitcnt vmcnt(9)")
    wcheck(16, MA)
    A("s_cbranch_scc0 L_wo_gotA" if mlt else "s_cbranch_vccz L_wo_gotA")
    wload(16, MA)
    A("s_waitcnt vmcnt(9)")
    wcheck(48, MB)
    if dry: A("s_cmp_eq_u32 s46, 0"); A("s_cbranch_scc1 L_wo_gotB")
    if mlt: A("s_cbranch_scc0 L_wo_gotB"); A("s_sub_u32 s51, s51, 1"); A("s_cbranch_scc0 L_wo_poll")
    else:
        A("s_sub_u32 s51, s51, 1"); A("s_cbranch_scc1 L_wo_gotB")
        A("s_cbranch_vccnz L_wo_poll")
    def wcomb(r, m):
        TS(6); TC(0)
        A(f"v_mov_b32 v84, v{m}")
        P = []
        for e in range(8):
            for j in range(4):
                x = r + 4 * (2 * j) + (e >> 1); y = r + 4 * (2 * j + 1) + (e >> 1)
                P.append(f"v_perm_b32 v{160+4*e+j}, v{y}, v{x}, s{45 if e & 1 else 44}")
        def fill(n):
            for _ in range(n): A(P.pop(0))
        for rot in (8, 4, 2, 1):
            fill(2); A(f"v_min_f32_dpp v84, v84, v84 row_ror:{rot} row_mask:0xf bank_mask:0xf")
        A("v_mov_b32 v85, v84"); fill(2); A("v_permlane16_swap_b32 v84, v85"); A("v_min_f32 v84, v84, v85")
        A(f"v_sub_f32 v84, v84, v{m}"); A("v_exp_f32 v84, v84"); fill(1)
        A("v_cvt_pk_bf16_f32 v86, v84, v84")
        A("ds_write_b16 v9, v86"); A("ds_read_b128 v[88:91], v10")
        A(f"v_mul_f32 v85, v84, v{m + (2 if mlt else 1)}")
        for rot in (8, 4, 2, 1):
            fill(2); A(f"v_add_f32_dpp v85, v85, v85 row_ror:{rot} row_mask:0xf bank_mask:0xf")
        A("v_mov_b32 v86, v85"); fill(2); A("v_permlane16_swap_b32 v85, v86"); A("v_add_f32 v85, v85, v86")
        A("v_rcp_f32 v85, v85")
        fill(len(P))
    LB("L_wo_gotB")
    wcomb(48, MB)
    if dry: A("s_cmp_eq_u32 s46, 0"); A("s_cbranch_scc0 L_wo_got")
    else: A("s_branch L_wo_got")
    LB("L_wo_gotA")
    wcomb(16, MA)
    LB("L_wo_got")
    TC(1)
    A("s_waitcnt lgkmcnt(0)")
    TC(2)
    for e in range(8): A(f"v_mfma_f32_16x16x32_bf16 {vr(192+4*e,4)}, v[88:91], {vr(160+4*e,4)}, 0")
    A("s_nop 0")
    for e in range(8): A(f"v_mul_f32 v{192+4*e}, v{192+4*e}, v85")
    for k in range(4): A(f"v_cvt_pk_bf16_f32 v{88+k}, v{192+8*k}, v{196+8*k}")
    TC(3)
    A("ds_write_b128 v11, v[88:91]")
    A("ds_read_b128 v[160:163], v12"); A("ds_read_b128 v[164:167], v12 offset:64")
    A("s_waitcnt lgkmcnt(1)")
    for e in range(8): A(f"v_mfma_f32_16x16x32_bf16 {vr(192+4*e,4)}, v[160:163], {vr(96+4*e,4)}, 0")
    A("s_waitcnt lgkmcnt(0)")
    for e in range(8): A(f"v_mfma_f32_16x16x32_bf16 {vr(192+4*e,4)}, v[164:167], {vr(128+4*e,4)}, {vr(192+4*e,4)}")
    A("s_mov_b32 exec_lo, 0xff"); A("s_mov_b32 exec_hi, 0xff00")
    A("s_nop 5")
    for e in range(0, 8, 2): A(f"ds_write2_b32 v13, v{192+4*e}, v{196+4*e} offset0:{e} offset1:{e+1}")
    A("s_mov_b64 exec, -1")
    TC(4)
    barrier_real("L_wo_nb")
    TC(5)
    A("s_cmp_lg_u32 s39, 0"); A("s_cbranch_scc1 L_wo_next")
    for p in range(8): A(f"ds_read_b128 {vr(160+4*p,4)}, v15 offset:{256*p}")
    for st, wcnt in ((0, 6), (8, 4), (16, 2), (24, 0)):
        A(f"s_waitcnt lgkmcnt({wcnt})")
        for h in range(2): A(f"v_pk_add_f32 {vr(160+st+2*h,2)}, {vr(160+st+2*h,2)}, {vr(164+st+2*h,2)}")
    for h in range(2): A(f"v_pk_add_f32 {vr(160+2*h,2)}, {vr(160+2*h,2)}, {vr(168+2*h,2)}")
    for h in range(2): A(f"v_pk_add_f32 {vr(176+2*h,2)}, {vr(176+2*h,2)}, {vr(184+2*h,2)}")
    for h in range(2): A(f"v_pk_add_f32 {vr(160+2*h,2)}, {vr(160+2*h,2)}, {vr(176+2*h,2)}")
    if rep:
        C("eight copies, so that the readers of different dies do not queue on one line")
        A("global_store_dwordx4 v7, v[160:163], s[26:27] sc1"); A("global_store_dwordx4 v5, v[160:163], s[26:27] sc1")
    else:
        A("s_mov_b64 exec, 0xffff")
        A("global_store_dwordx4 v7, v[160:163], s[26:27] sc1")
        A("s_mov_b64 exec, -1")
    LB("L_wo_next")
    TC(6); TC_fin(7)
    TS(7)
    if dry:
        A("s_cmp_eq_u32 s46, 1"); A("s_cbranch_scc1 L_hdone")
        A("s_mov_b32 s46, 1")
        gate_wait("L_wo_gate", 2 if g2 else 1)
        TS(8)
        A("s_branch L_wo_pass")
    else: A("s_branch L_hdone") if ts else A("s_endpgm")

    LB("L_ffn")
    C("ffn role: h, LN(h), 32 gate/up columns, 32 rows of w2; first 16 also finish 32 output columns")
    def ffn_weights():
        A("v_lshlrev_b32 v58, 6, v22"); A("v_lshl_add_u32 v58, v20, 3, v58"); A("s_lshl_b32 s40, s39, 7"); A("v_add_u32 v58, s40, v58")
        A("s_movk_i32 s40, 3584"); A("v_mul_u32_u24 v58, s40, v58")
        A("v_and_b32 v59, 3, v21"); A("v_lshl_add_u32 v58, v59, 4, v58"); A("s_lshl_b32 s40, s49, 6"); A("v_add_u32 v58, s40, v58")
        A("v_bfe_u32 v59, v21, 2, 1"); A("v_cmp_eq_u32 vcc, 1, v59")
        A("v_mov_b32 v60, s16"); A("v_mov_b32 v61, s18"); A("v_cndmask_b32 v60, v60, v61, vcc")
        A("v_mov_b32 v61, s17"); A("v_mov_b32 v62, s19"); A("v_cndmask_b32 v61, v61, v62, vcc")
        A("v_mov_b32 v59, 0"); A("v_lshl_add_u64 v[60:61], v[58:59], 0, v[60:61]")
        A("s_lshl_b32 s40, s49, 15"); A("s_lshl_b32 s41, s39, 8"); A("s_add_u32 s40, s40, s41"); A("s_add_u32 s40, s40, 4096")
        A("s_add_u32 s52, s20, s40"); A("s_addc_u32 s53, s21, 0")
        A("v_lshlrev_b32 v58, 13, v20"); A("v_lshl_add_u32 v58, v21, 4, v58")
        if jitf: gate_wait("L_f_jit", 1); TS(11)
        if WTRIG:
            A(f"v_mov_b32 v1, {WQC}")
            LB("L_f_trig")
            A("s_sleep 2"); A("ds_read_b32 v2, v1"); A("s_waitcnt lgkmcnt(0)"); A("v_readfirstlane_b32 s40, v2")
            A("s_cmp_lt_u32 s40, 5"); A("s_cbranch_scc1 L_f_trig")
        A("s_mov_b64 s[40:41], 7168"); A(f"s_mov_b64 s[42:43], {7168 + 24 * 3584}")
        for s in range(2):
            for i in range(8):
                A(f"global_load_dwordx4 {vr(160+32*s+4*i,4)}, v[60:61], off{' offset:3584' if i & 1 else ''} {w_flags if w13f is None else w13f}")
                if i & 1 and not (s == 1 and i == 7): A(f"v_lshl_add_u64 v[60:61], v[60:61], 0, {'s[42:43]' if i == 7 else 's[40:41]'}")
            if not jitf and not wburst: A("s_waitcnt vmcnt(0)")
        for i in range(8): A(f"global_load_dwordx4 {vr(224+4*i,4)}, v58, s[52:53] offset:{1024*i-4096} {w_flags}")
        for s in range(3):
            A(f"s_waitcnt vmcnt({16 - 8*s})")
            transpose8(64 + 32 * s, 160 + 32 * s)
        TS(5)
    if not jitf: ffn_weights()
    A("v_and_b32 v8, 31, v0")
    A("s_lshl_b32 s40, s39, 8"); A("v_lshl_add_u32 v5, v8, 3, s40")
    A("global_load_dwordx2 v[48:49], v5, s[4:5]")
    A("s_waitcnt vmcnt(0)")
    unpack(50, 49)
    A("v_and_b32 v49, 0xffff0000, v48"); A("v_lshlrev_b32 v48, 16, v48")
    alive("f")
    A("v_lshrrev_b32 v9, 5, v0"); A("v_lshlrev_b32 v4, 11, v9"); A("v_lshl_add_u32 v4, v8, 4, v4")
    A("s_lshl_b32 s40, s39, 9"); A(f"s_add_u32 s40, s40, {H2 + 4096}")
    if rep: A("s_lshl_b32 s41, s48, 14"); A("s_add_u32 s40, s40, s41")
    A("v_add_u32 v4, s40, v4"); A("v_add_u32 v6, 0x2000, v4")
    A(f"v_add_u32 v5, {HB}, v5")
    A("s_lshl_b32 s40, s39, 3"); A(f"s_add_u32 s40, s40, {ST}"); A("v_mov_b32 v7, s40"); A(f"v_mov_b32 v9, {ST}")
    A("s_lshl_b32 s40, s39, 8"); A(f"s_add_u32 s40, s40, {HN}"); A("v_lshl_add_u32 v10, v8, 3, s40")
    A("v_lshlrev_b32 v11, 7, v22"); A("v_lshl_add_u32 v11, v20, 4, v11"); A("v_add_u32 v11, s40, v11")
    A("s_lshl_b32 s41, s39, 9"); A(f"s_add_u32 s41, s41, {RED}")
    A("v_lshlrev_b32 v13, 8, v22"); A("v_lshl_add_u32 v13, v23, 5, v13"); A("v_add_u32 v13, s41, v13")
    A("v_lshlrev_b32 v14, 5, v20"); A("v_lshl_add_u32 v14, v23, 2, v14"); A(f"v_add_u32 v14, {RED}, v14")
    A("v_lshrrev_b32 v52, 2, v21"); A("v_mul_u32_u24 v52, 7168, v52"); A("v_and_b32 v53, 3, v21"); A("v_lshl_add_u32 v52, v53, 5, v52"); A("v_lshl_add_u32 v52, v20, 4, v52")
    A("s_lshl_b32 s54, s49, 7"); A(f"s_mul_i32 s41, s39, {4*7168}"); A("s_add_u32 s54, s54, s41")
    A("v_cmp_eq_u32 s[56:57], 1, v20")
    A("s_mul_i32 s41, s59, 7168"); A(f"s_add_u32 s41, s41, {H3 + 3072}"); A("v_lshl_add_u32 v53, v0, 4, s41")
    A("v_and_b32 v54, 7, v0"); A("s_lshl_b32 s41, s59, 6"); A("v_lshl_add_u32 v54, v54, 3, s41"); A(f"v_add_u32 v55, {HB}, v54")
    if jitf: ffn_weights()
    if fuse:
        assert not dry and not WTRIG
        C("LN is applied after the product: gate = (h @ w - mean * colsum(w)) / sd; column sums now, while idle")
        A("s_lshl_b32 s40, s39, 8"); A(f"s_add_u32 s40, s40, {HB}")
        A("v_lshlrev_b32 v11, 7, v22"); A("v_lshl_add_u32 v11, v20, 4, v11"); A("v_add_u32 v11, s40, v11")
        for k in range(4): A(f"v_mov_b32 v{40+k}, 0x3f803f80")
        A("v_mov_b32 v24, -1"); A("v_mov_b32 v25, -1"); A("ds_write_b64 v7, v[24:25]")
        for e in range(8): A(f"v_mfma_f32_16x16x32_bf16 {vr(160+4*e,4)}, v[40:43], {vr(64+4*e,4)}, 0")
        for e in range(8): A(f"v_mfma_f32_16x16x32_bf16 {vr(160+4*e,4)}, v[40:43], {vr(96+4*e,4)}, {vr(160+4*e,4)}")
        A(f"v_add_u32 v15, {REDC - RED}, v13"); A(f"v_mov_b32 v1, {WQC}"); A("v_mov_b32 v2, 1")
        A("s_mov_b32 exec_lo, 0xff"); A("s_mov_b32 exec_hi, 0xff00"); A("s_nop 3")
        for e in range(0, 8, 2): A(f"ds_write2_b32 v15, v{160+4*e}, v{164+4*e} offset0:{e} offset1:{e+1}")
        A("s_mov_b64 exec, 1"); A("ds_add_u32 v1, v2"); A("s_mov_b64 exec, -1")
        LB("L_f_cw")
        A("s_sleep 2"); A("ds_read_b32 v2, v1"); A("s_waitcnt lgkmcnt(0)"); A("v_readfirstlane_b32 s40, v2")
        A("s_cmp_lt_u32 s40, 8"); A("s_cbranch_scc1 L_f_cw")
        A(f"v_add_u32 v15, {REDC - RED}, v14"); A("v_add_u32 v2, 1024, v15")
        for p in range(8): A(f"ds_read2_b32 {vr(24+2*p,2)}, v{15 if p < 4 else 2} offset0:{64*(p&3)} offset1:{64*(p&3)+32}")
        A("s_waitcnt lgkmcnt(0)")
        for k in range(4): A(f"v_pk_add_f32 {vr(24+4*k,2)}, {vr(24+4*k,2)}, {vr(26+4*k,2)}")
        A("v_pk_add_f32 v[24:25], v[24:25], v[28:29]"); A("v_pk_add_f32 v[32:33], v[32:33], v[36:37]"); A("v_pk_add_f32 v[58:59], v[24:25], v[32:33]")
        A("v_add_u32 v15, 1024, v14")
    if pw:
        if pw == 2: gate_wait("L_f_pw", 1)
        for i in range(4 if 'h' in pws else 0): A(f"global_load_dwordx4 {vr(192+4*i,4)}, v{4 if i < 2 else 6}, s[26:27] offset:{(i % 2) * 4096 - 4096} {pwf}")
        A("s_cmp_lg_u32 s39, 0"); A("s_cbranch_scc1 L_f_npw"); A("s_cmp_ge_u32 s59, 16"); A("s_cbranch_scc1 L_f_npw")
        A(f"v_add_u32 v57, {pwoff}, v53")
        for i in range(7 if 'o' in pws else 0): A(f"global_load_dwordx4 {vr(220+4*i,4)}, v57, s[26:27] offset:{1024*i-3072} {pwf}")
        LB("L_f_npw")
    if not dry: gate_wait("L_f_gate0", 2 if g2 else 1)
    LB("L_f_pass")
    A(f"s_mov_b32 s41, {H3}")
    if dry: A("s_cmp_eq_u32 s46, 0"); A(f"s_cmov_b32 s41, {DUMMY}")
    A("s_add_u32 s41, s41, s54")
    A("v_add_u32 v56, s41, v52")
    A(f"s_mov_b32 s51, {SPIN_MAX}")
    def hload(r):
        for i in range(4): A(f"global_load_dwordx4 {vr(r+4*i,4)}, v{4 if i < 2 else 6}, s[26:27] offset:{(i % 2) * 4096 - 4096} sc1")
    def hsum(r):
        TS(6)
        for h in range(2): A(f"v_pk_add_f32 {vr(40+2*h,2)}, {vr(r+2*h,2)}, {vr(r+4+2*h,2)}")
        for h in range(2): A(f"v_pk_add_f32 {vr(44+2*h,2)}, {vr(r+8+2*h,2)}, {vr(r+12+2*h,2)}")
    if hint2:
        LB("L_f_hint")
        if h2sleep: A(f"s_sleep {h2sleep}")
        if hint2 == 1:
            A("global_load_dwordx4 v[192:195], v4, s[26:27] offset:-4096 sc1"); A("s_waitcnt vmcnt(0)")
            any_poison(range(192, 196), 40)
            A("s_sub_u32 s51, s51, 1"); A("s_cbranch_scc1 L_f_go"); A("s_cbranch_vccnz L_f_hint")
        else:
            A("global_load_dword v192, v4, s[26:27] offset:-4096 sc1"); A("s_waitcnt vmcnt(0)")
            A("v_cmp_ne_u32 vcc, -1, v192")
            A("s_sub_u32 s51, s51, 1"); A("s_cbranch_scc1 L_f_go"); A("s_cbranch_vccz L_f_hint")
        LB("L_f_go")
    hload(192)
    if stag: A(f"s_sleep {stag}")
    LB("L_f_poll")
    hload(208)
    A("s_waitcnt vmcnt(4)")
    any_poison(range(192, 208), 40, NCH)
    A("s_cbranch_vccz L_f_gotA")
    hload(192)
    A("s_waitcnt vmcnt(4)")
    any_poison(range(208, 224), 40, NCH)
    if dry: A("s_cmp_eq_u32 s46, 0"); A("s_cbranch_scc1 L_f_gotB")
    A("s_sub_u32 s51, s51, 1"); A("s_cbranch_scc1 L_f_gotB")
    A("s_cbranch_vccnz L_f_poll")
    LB("L_f_gotB")
    hsum(208)
    if dry: A("s_cmp_eq_u32 s46, 0"); A("s_cbranch_scc0 L_f_got")
    else: A("s_branch L_f_got")
    LB("L_f_gotA")
    hsum(192)
    LB("L_f_got")
    TC(0)
    for h in range(2): A(f"v_pk_add_f32 {vr(24+2*h,2)}, {vr(40+2*h,2)}, {vr(44+2*h,2)}")
    swap_red("add_f32", [24, 25, 26, 27], [28, 29, 30, 31], 32)
    A("v_cvt_pk_bf16_f32 v28, v24, v25"); A("v_cvt_pk_bf16_f32 v29, v26, v27")
    unpack(24, 28); unpack(26, 29)
    A("v_pk_add_f32 v[24:25], v[24:25], v[48:49]"); A("v_pk_add_f32 v[26:27], v[26:27], v[50:51]")
    A("v_cvt_pk_bf16_f32 v28, v24, v25"); A("v_cvt_pk_bf16_f32 v29, v26, v27")
    if fuse:
        A("ds_write_b64 v5, v[28:29]")
        A("ds_read_b128 v[40:43], v11"); A("ds_read_b128 v[44:47], v11 offset:64")
        unpack(24, 28); unpack(26, 29)
        C("mean and centred sum of squares of this wave's 128 values, under the matrix work")
        A("v_readfirstlane_b32 s40, v24"); A("s_nop 1")
        for k in range(4): A(f"v_subrev_f32 v{32+k}, s40, v{24+k}")
        A("v_add_f32 v30, v32, v33"); A("v_mul_f32 v31, v32, v32"); A("v_add_f32 v36, v34, v35"); A("v_mul_f32 v37, v33, v33")
        A("v_fmac_f32 v31, v34, v34"); A("v_fmac_f32 v37, v35, v35"); A("v_add_f32 v30, v30, v36"); A("v_add_f32 v31, v31, v37")
        TC(1)
        CH = [f"v_sub_f32 v{k}, v{k}, v30" for k in (32, 34, 36, 38)] + ["v_add_f32 v33, v33, v37", "v_mul_f32 v32, v32, v32", "v_mul_f32 v36, v36, v36", "v_fmac_f32 v32, v34, v34", "v_fmac_f32 v36, v38, v38"]
        M = [f"v_mfma_f32_16x16x32_bf16 {vr(160+4*e,4)}, v[40:43], {vr(64+4*e,4)}, 0" for e in range(8)] + \
            [f"v_mfma_f32_16x16x32_bf16 {vr(160+4*e,4)}, v[44:47], {vr(96+4*e,4)}, {vr(160+4*e,4)}" for e in range(8)]
        A("s_waitcnt lgkmcnt(0)")
        for rot in (8, 4, 2, 1):
            A(M.pop(0))
            for x in (30, 31): A(f"v_add_f32_dpp v{x}, v{x}, v{x} row_ror:{rot} row_mask:0xf bank_mask:0xf")
        A(M.pop(0)); A("v_mov_b32 v32, v30"); A("v_mov_b32 v33, v31"); A(M.pop(0)); A(M.pop(0))
        A("v_permlane16_swap_b32 v30, v32"); A("v_permlane16_swap_b32 v31, v33"); A(M.pop(0))
        A("v_add_f32 v30, v30, v32"); A("v_add_f32 v31, v31, v33"); A(M.pop(0))
        A("v_mul_f32 v32, 0x3c000000, v30"); A(M.pop(0))
        A("v_fma_f32 v31, -v32, v30, v31"); A("v_add_f32 v30, s40, v32"); A(M.pop(0))
        A("v_min_u32 v31, -2, v31"); A(M.pop(0))
        A("ds_write_b64 v7, v[30:31]")
        for m in M: A(m)
        TC(2)
        A("ds_read_b128 v[32:35], v9"); A("ds_read_b128 v[36:39], v9 offset:16")
        A("s_mov_b32 exec_lo, 0xff"); A("s_mov_b32 exec_hi, 0xff00"); A("s_nop 3")
        for e in range(0, 8, 2): A(f"ds_write2_b32 v13, v{160+4*e}, v{164+4*e} offset0:{e} offset1:{e+1}")
        A("s_mov_b64 exec, -1")
        A("s_waitcnt lgkmcnt(4)")
        LB("L_f_ck")
        A("v_max3_u32 v30, v33, v35, v37"); A("v_add_f32 v24, v32, v34"); A("v_max_u32 v30, v30, v39"); A("v_add_f32 v31, v36, v38")
        A("v_cmp_eq_u32 vcc, -1, v30"); A("v_add_f32 v30, v24, v31"); A("s_cbranch_vccz L_f_sok")
        A("ds_read_b128 v[32:35], v9"); A("ds_read_b128 v[36:39], v9 offset:16"); A("s_waitcnt lgkmcnt(0)"); A("s_branch L_f_ck")
        LB("L_f_sok")
        TC(3)
        A("v_add_f32 v33, v33, v35"); A("v_mul_f32 v30, 0x3e800000, v30"); A("v_add_f32 v37, v37, v39")
        for k in range(PRE): A(CH.pop(0))
        TC(4)
        A("s_waitcnt lgkmcnt(0)"); A("s_barrier")
        TC(5)
        TS(7)
        for p in range(8): A(f"ds_read2_b32 {vr(160+2*p,2)}, v{14 if p < 4 else 15} offset0:{64*(p&3)} offset1:{64*(p&3)+32}")
        for c_ in CH: A(c_)
        A("v_add_f32 v32, v32, v36"); A("v_mul_f32 v33, 0x3b000000, v33"); A("v_cvt_pk_bf16_f32 v30, v30, v30"); A("v_fmac_f32 v33, 0x3e800000, v32")
        A("v_and_b32 v30, 0xffff0000, v30")
        bf16r(33)
        A("v_add_f32 v33, 0x3727c5ac, v33")
        bf16r(33)
        A("v_sqrt_f32 v33, v33")
        for k in range(4):
            A(f"s_waitcnt lgkmcnt({6-2*k})"); A(f"v_pk_add_f32 {vr(160+4*k,2)}, {vr(160+4*k,2)}, {vr(162+4*k,2)}")
            if k == 0: A("v_cvt_pk_bf16_f32 v33, v33, v33")
            if k == 1: A("v_and_b32 v33, 0xffff0000, v33")
            if k == 2: A("v_rcp_f32 v32, v33")
        A("v_pk_add_f32 v[160:161], v[160:161], v[164:165]"); A("v_pk_add_f32 v[168:169], v[168:169], v[172:173]")
        A("v_pk_fma_f32 v[160:161], v[58:59], v[30:31], v[160:161] op_sel_hi:[1,0,1] neg_lo:[0,1,0] neg_hi:[0,1,0]")
        A("v_pk_add_f32 v[24:25], v[160:161], v[168:169]")
        A("v_pk_mul_f32 v[24:25], v[24:25], v[32:33] op_sel_hi:[1,0]")
    else:
        unpack(24, 28); unpack(26, 29)
        C("mean and centred sum of squares of this wave's 128 values; merged across waves after the barrier")
        A("v_readfirstlane_b32 s40, v24")
        A("ds_write_b64 v5, v[28:29]"); A("s_nop 0")
        for k in range(4): A(f"v_subrev_f32 v{32+k}, s40, v{24+k}")
        A("v_add_f32 v30, v32, v33"); A("v_mul_f32 v31, v32, v32"); A("v_add_f32 v36, v34, v35"); A("v_mul_f32 v37, v33, v33")
        A("v_fmac_f32 v31, v34, v34"); A("v_fmac_f32 v37, v35, v35"); A("v_add_f32 v30, v30, v36"); A("v_add_f32 v31, v31, v37")
        dpp_red("add_f32", [30, 31]); swap_red("add_f32", [30, 31], [32, 33], 16)
        A("v_mul_f32 v32, 0x3c000000, v30"); A("v_fma_f32 v31, -v32, v30, v31"); A("v_add_f32 v30, s40, v32")
        A("ds_write_b64 v7, v[30:31]")
        TC(1)
        barrier_real("L_f_nb1")
        TC(2)
        A("ds_read_b128 v[32:35], v9"); A("ds_read_b128 v[36:39], v9 offset:16")
        A("s_waitcnt lgkmcnt(0)")
        A("v_add_f32 v30, v32, v34"); A("v_add_f32 v31, v36, v38"); A("v_add_f32 v33, v33, v35"); A("v_add_f32 v30, v30, v31"); A("v_add_f32 v37, v37, v39")
        A("v_mul_f32 v30, 0x3e800000, v30"); A("v_add_f32 v33, v33, v37")
        for k in (32, 34, 36, 38): A(f"v_sub_f32 v{k}, v{k}, v30")
        A("v_mul_f32 v32, v32, v32"); A("v_mul_f32 v36, v36, v36"); A("v_fmac_f32 v32, v34, v34"); A("v_fmac_f32 v36, v38, v38")
        bf16r(30)
        A("v_add_f32 v32, v32, v36"); A("v_mul_f32 v33, 0x3b000000, v33"); A("v_fmac_f32 v33, 0x3e800000, v32")
        for k in range(4): A(f"v_sub_f32 v{24+k}, v{24+k}, v30")
        bf16r(33)
        A("v_add_f32 v33, 0x3727c5ac, v33")
        bf16r(33)
        A("v_sqrt_f32 v33, v33")
        A("v_cvt_pk_bf16_f32 v28, v24, v25"); A("v_cvt_pk_bf16_f32 v29, v26, v27")
        bf16r(33)
        A("v_rcp_f32 v33, v33")
        unpack(24, 28); unpack(26, 29)
        for k in range(4): A(f"v_mul_f32 v{24+k}, v{24+k}, v33")
        A("v_cvt_pk_bf16_f32 v28, v24, v25"); A("v_cvt_pk_bf16_f32 v29, v26, v27")
        A("ds_write_b64 v10, v[28:29]")
        TC(3)
        A("ds_read_b128 v[40:43], v11"); A("ds_read_b128 v[44:47], v11 offset:64")
        A("s_waitcnt lgkmcnt(1)")
        for e in range(8): A(f"v_mfma_f32_16x16x32_bf16 {vr(160+4*e,4)}, v[40:43], {vr(64+4*e,4)}, 0")
        A("s_waitcnt lgkmcnt(0)")
        for e in range(8): A(f"v_mfma_f32_16x16x32_bf16 {vr(160+4*e,4)}, v[44:47], {vr(96+4*e,4)}, {vr(160+4*e,4)}")
        A("s_mov_b32 exec_lo, 0xff"); A("s_mov_b32 exec_hi, 0xff00")
        A("s_nop 5")
        for e in range(0, 8, 2): A(f"ds_write2_b32 v13, v{160+4*e}, v{164+4*e} offset0:{e} offset1:{e+1}")
        A("s_mov_b64 exec, -1")
        TC(4)
        barrier_real("L_f_nb2")
        TC(5)
        TS(7)
        for p in range(8):
            if p == 4: A("v_add_u32 v15, 1024, v14")
            A(f"ds_read2_b32 {vr(24+2*p,2)}, v{14 if p < 4 else 15} offset0:{64*(p&3)} offset1:{64*(p&3)+32}")
        for k in range(4):
            A(f"s_waitcnt lgkmcnt({6-2*k})"); A(f"v_pk_add_f32 {vr(24+4*k,2)}, {vr(24+4*k,2)}, {vr(26+4*k,2)}")
        A("v_pk_add_f32 v[24:25], v[24:25], v[28:29]"); A("v_pk_add_f32 v[32:33], v[32:33], v[36:37]"); A("v_pk_add_f32 v[24:25], v[24:25], v[32:33]")
    A("v_cvt_pk_bf16_f32 v26, v24, v25")
    unpack(24, 26)
    A(f"v_mul_f32 v26, {NL2E:#x}, v24"); A("v_exp_f32 v26, v26"); A("s_nop 0")
    A("v_add_f32 v26, 1.0, v26"); A("v_rcp_f32 v26, v26"); A("s_nop 0")
    A("v_mul_f32 v26, v24, v26")
    bf16r(26)
    A("v_mul_f32 v26, v26, v25"); A("s_nop 1")
    A("v_mov_b32_dpp v27, v26 quad_perm:[1,0,3,2] row_mask:0xf bank_mask:0xf")
    A("v_cvt_pk_bf16_f32 v26, v26, v27"); A("s_nop 1")
    for k in range(4): A(f"v_mov_b32_dpp v{40+k}, v26 row_newbcast:{2*k} row_mask:0xf bank_mask:0xf")
    A("s_nop 1")
    TC(6)
    for e in range(8): A(f"v_mfma_f32_16x16x32_bf16 {vr(160+4*e,4)}, v[40:43], {vr(128+4*e,4)}, 0")
    A("s_nop 4")
    for e in range(4): A(f"v_cndmask_b32 v{24+e}, v{160+4*e}, v{176+4*e}, s[56:57]")
    A("s_mov_b32 exec_hi, 0")
    A("global_store_dwordx4 v56, v[24:27], s[26:27] sc1")
    A("s_mov_b64 exec, -1")
    TC(7); TC_fin(8)
    TS(8)
    A("s_cmp_eq_u32 s39, 0"); A("s_cbranch_scc1 L_f_fin")
    C("every first helper wave has read the old word long ago: give the next launch's hand-offs a different tag")
    A("s_cmp_lg_u32 s39, 1"); A("s_cbranch_scc1 L_f_next"); A("s_cmp_lg_u32 s59, 0"); A("s_cbranch_scc1 L_f_next")
    if dry: A("s_cmp_eq_u32 s46, 0"); A("s_cbranch_scc1 L_f_next")
    A("v_mov_b32 v57, 0"); A("s_mov_b64 exec, 1")
    A("global_store_dword v57, v3, s[26:27] sc1")
    A("s_mov_b64 exec, -1"); A("s_branch L_f_next")
    LB("L_f_fin")
    A("s_cmp_ge_u32 s59, 16"); A("s_cbranch_scc1 L_f_next")
    C("final stage: 32 output columns")
    def oload(r):
        for i in range(7): A(f"global_load_dwordx4 {vr(r+4*i,4)}, v53, s[26:27] offset:{1024*i-3072} sc1")
    def osum(r):
        TS(9)
        for d, x, y in ((160, r, r+4), (164, r+8, r+12), (168, r+16, r+20), (160, 160, r+24)):
            for h in range(2): A(f"v_pk_add_f32 {vr(d+2*h,2)}, {vr(x+2*h,2)}, {vr(y+2*h,2)}")
    A("s_waitcnt vmcnt(1)")
    oload(192)
    if dry:
        A(f"s_add_u32 s42, s26, {DUMMY}"); A("s_addc_u32 s43, s27, 0")
        A("s_cmp_eq_u32 s46, 0"); A("s_cselect_b32 s42, s42, s22"); A("s_cselect_b32 s43, s43, s23")
    else: A("s_mov_b64 s[42:43], s[22:23]")
    A("ds_read_b64 v[44:45], v55")
    A(f"s_mov_b32 s51, {SPIN_MAX}")
    if stag: A(f"s_sleep {stag}")
    LB("L_o_poll")
    oload(220)
    A("s_waitcnt vmcnt(7)")
    any_poison(range(192, 220), 40, NCH)
    A("s_cbranch_vccz L_o_gotA")
    oload(192)
    A("s_waitcnt vmcnt(7)")
    any_poison(range(220, 248), 40, NCH)
    if dry: A("s_cmp_eq_u32 s46, 0"); A("s_cbranch_scc1 L_o_gotB")
    A("s_sub_u32 s51, s51, 1"); A("s_cbranch_scc1 L_o_gotB")
    A("s_cbranch_vccnz L_o_poll")
    LB("L_o_gotB")
    osum(220)
    if dry: A("s_cmp_eq_u32 s46, 0"); A("s_cbranch_scc0 L_o_got")
    else: A("s_branch L_o_got")
    LB("L_o_gotA")
    osum(192)
    LB("L_o_got")
    for d, y in ((164, 168), (160, 164)):
        for h in range(2): A(f"v_pk_add_f32 {vr(d+2*h,2)}, {vr(d+2*h,2)}, {vr(y+2*h,2)}")
    A("s_nop 0")
    for k in range(4): A(f"v_add_f32_dpp v{160+k}, v{160+k}, v{160+k} row_ror:8 row_mask:0xf bank_mask:0xf")
    swap_red("add_f32", [160, 161, 162, 163], [164, 165, 166, 167], 16)
    swap_red("add_f32", [160, 161, 162, 163], [164, 165, 166, 167], 32)
    A("v_cvt_pk_bf16_f32 v164, v160, v161"); A("v_cvt_pk_bf16_f32 v165, v162, v163")
    unpack(160, 164); unpack(162, 165)
    A("s_waitcnt lgkmcnt(0)")
    unpack(164, 44); unpack(166, 45)
    A("v_pk_add_f32 v[160:161], v[160:161], v[164:165]"); A("v_pk_add_f32 v[162:163], v[162:163], v[166:167]")
    A("v_cvt_pk_bf16_f32 v160, v160, v161"); A("v_cvt_pk_bf16_f32 v161, v162, v163")
    A("s_mov_b64 exec, 0xff")
    A("global_store_dwordx2 v54, v[160:161], s[42:43] " + outf)
    A("s_mov_b64 exec, -1")
    LB("L_f_next")
    TS(10)
    if dry:
        A("s_cmp_eq_u32 s46, 1"); A("s_cbranch_scc1 L_hdone")
        A("s_mov_b32 s46, 1")
        gate_wait("L_f_gate", 2 if g2 else 1)
        A("s_branch L_f_pass")
    LB("L_hdone")
    TS_flush("H")
    LB("L_end")
    A("s_endpgm")
    L.append('.section .rodata,"a"'); L.append(".p2align 6"); L.append(f".amdhsa_kernel {NAME}_kernel")
    for s in ("next_free_vgpr 256", "next_free_sgpr 102" if fine else "next_free_sgpr 96", "accum_offset 256", "group_segment_fixed_size 0", "kernarg_size 96",
              "user_sgpr_count 2", "user_sgpr_kernarg_segment_ptr 1", "system_sgpr_workgroup_id_x 1", "float_denorm_mode_32 3"):
        L.append("  .amdhsa_" + s)
    L.append(".end_amdhsa_kernel")
    return "\n".join(L) + "\n"

if __name__ == "__main__":
    kw = eval("dict(" + (sys.argv[2] if len(sys.argv) > 2 else "") + ")")
    open(sys.argv[1], "w").write(gen(**kw))
```

```python
import sys
NAME = "sequential_preLN__gqa_block_cached__glu_gated_swiglu__decode"

WQL = 0x20000; SP = 0x20000
QL = 0x27000; SML = 0x27400; CNT = 0x27480; GATE = 0x27484; QRDY = 0x27488; WQC = 0x2748C; TAGL = 0x27490
WB = 0x25000; OB = 0x25200; RED = 0x25800; HB = 0x26000; HM = 0x26400; ST = 0x26600; HN = 0x26800; EL = 0x24000; TQ = 0x24400; REDC = 0x27800
LDS_BYTES = 163840
EPOCH = 0; ALIVE = 0x400; QH = 0x800; AR = 0xC00; POOL = 0xC000; PPOOL = 0xF8000; QBUF = 0xD0000; ML = 0xF0000; H2 = 0x50000; PART = 0x10000; H3 = 0x90000; DUMMY = 0xB0000; TSB = 0x100000
TAGC = 0x9E3779B9
L2E = 0x3FB8AA3B; NL2E = 0xBFB8AA3B; SCALE = 0x3DB504F3
SPIN_MAX = 1 << 16


HEADER = """
;
"""

def gen(PACE=6, PACE0=5, S=26, NG=8, touch=False, qsleep=8, early=False, hold=False, gsleep=2, jitf=False, jitw=False, wqmap=False, ksplit=True, lazy=True, rot=0, rotm='x', F=0, fk=False, wgt=False, sq=False, QW=8, sa=False, XS=16, rep=True, qmask=0xffff, nopois=False, noalive=False, I1=16, I2=22, IW=1, IU=1, fuse=True, nohint=1, gok=True, NCH=3, mlt=True, qretry=0, nowait=False, w4stop=0, PRE=5, ilv=False, burst=True, KP=(2,1,1), XB=24, hmove=False, pfh=False, fine=False, wburst=False, w13f='', tp=True, NA=0, NK0=13, lst=False, KS=0, VR=0, KT=7, tw=0, sprio=0, wprio=3, align=0, SKW=0, SKF=3, SKT=17, WTRIG=0, hint2=2, h2sleep=0, outf='sc1', qgf='sc1', pof='sc1', qsf='sc1', xf='', pwoff=0, PACEB=15, pw=0, pws='mpho', pwf='sc1', TPOS=4, g2=True, R1=8, R2=5, barpos=0, pf=True, stag=3, wend=False, rr=True, noswz=False, nocomp=False, noh=False, NV=4, VSTART=2, VSTEP=2, VW=0, QTH=20, MLTH=20, noroles=False, dbgts=False, prog=False, ts=False, dry=False, wq_flags="nt", w_flags="nt", kv_flags="nt"):
    if tp:
        assert S % 2 == 0 and not ilv and not rot and not F and not wgt and lazy and ksplit
        SKW = SKF = 0
    lst = tp and (lst or NA > 0)
    if lst: S = 2 * (NK0 + NA)
    NK = S // 2; DA = 32 * NA; CAP = 20
    PR = 128 - 4 * S; D = 8 * PR; PRM = -(-(1 << 16) // PR)
    assert all((t * PRM) >> 16 == t // PR for t in range(D))
    P = 4 * (S - F) if F else 0
    L = []
    def A(s): L.append("  " + s)
    def LB(s): L.append(s + ":")
    def C(s): L.append("  ; " + s)
    def vr(a, n): return f"v[{a}:{a+n-1}]"
    def TS(k):
        if ts and not fine:
            A("s_memrealtime s[60:61]"); A("s_waitcnt lgkmcnt(0)"); A(f"s_mov_b32 s{64+k}, s60")
    def TC(k):
        if fine:
            A(f"s_memtime s[{80+2*k}:{81+2*k}]")
    def TC_fin(n):
        if fine:
            A("s_waitcnt lgkmcnt(0)")
            for k in range(n): A(f"s_mov_b32 s{64+k}, s{80+2*k}")
    def TS_flush(kind="S"):
        if ts and dbgts:
            A("s_mov_b64 exec, -1"); A("v_mov_b32 v250, 0")
            if kind == "S":
                A("s_not_b32 s62, s64"); A("v_writelane_b32 v250, s62, 0"); A("s_not_b32 s62, s70"); A("v_writelane_b32 v250, s62, 13")
                for lane, k in ((1, 6), (2, 1), (3, 2), (4, 5)): A(f"v_writelane_b32 v250, s{64+k}, {lane}")
            else:
                for lane, k in ((5, 1), (6, 3), (7, 4)): A(f"v_writelane_b32 v250, s{64+k}, {lane}")
                A("s_not_b32 s62, s68"); A("s_cmp_eq_u32 s68, 0"); A("s_cselect_b32 s62, 0, s62"); A("v_writelane_b32 v250, s62, 14")
                A("s_cmp_eq_u32 s47, 0"); A("s_cbranch_scc0 L_dbgf")
                A("v_writelane_b32 v250, s70, 8"); A("v_writelane_b32 v250, s71, 9"); A("s_branch L_dbge")
                LB("L_dbgf")
                A("v_writelane_b32 v250, s70, 10"); A("v_writelane_b32 v250, s72, 11"); A("v_writelane_b32 v250, s74, 12")
                LB("L_dbge")
            A("v_mbcnt_lo_u32_b32 v251, -1, 0"); A("v_mbcnt_hi_u32_b32 v251, -1, v251"); A("v_lshlrev_b32 v251, 2, v251")
            A("s_mov_b64 exec, 0xffff")
            A("global_atomic_umax v251, v250, s[24:25] sc1")
        elif ts:
            A("s_mov_b64 exec, -1")
            A("v_mov_b32 v250, 0")
            for k in range(16): A(f"v_writelane_b32 v250, s{64+k}, {k}")
            A("v_mbcnt_lo_u32_b32 v251, -1, 0"); A("v_mbcnt_hi_u32_b32 v251, -1, v251")
            A("s_lshl_b32 s62, s2, 3"); A("s_add_u32 s62, s62, s3"); A("s_lshl_b32 s62, s62, 6"); A(f"s_add_u32 s62, s62, {TSB}")
            A("v_lshl_add_u32 v251, v251, 2, s62")
            A("s_mov_b64 exec, 0xffff")
            A("global_store_dword v251, v250, s[26:27]")
    def dpp_red(op, xs):
        for rot in (8, 4, 2, 1):
            if len(xs) < 3: A(f"s_nop {2 - len(xs)}" if len(xs) < 2 else "s_nop 0")
            for x in xs: A(f"v_{op}_dpp v{x}, v{x}, v{x} row_ror:{rot} row_mask:0xf bank_mask:0xf")
    def swap_red(op, xs, ts_, which):
        for x, t in zip(xs, ts_): A(f"v_mov_b32 v{t}, v{x}")
        A("s_nop 1")
        for x, t in zip(xs, ts_): A(f"v_permlane{which}_swap_b32 v{x}, v{t}")
        for x, t in zip(xs, ts_): A(f"v_{op} v{x}, v{x}, v{t}")
    def unpack(dst, src):
        A(f"v_lshlrev_b32 v{dst}, 16, v{src}"); A(f"v_and_b32 v{dst+1}, 0xffff0000, v{src}")
    def bf16r(x):
        A(f"v_cvt_pk_bf16_f32 v{x}, v{x}, v{x}"); A(f"v_and_b32 v{x}, 0xffff0000, v{x}")
    def layernorm(src, f, t):
        for k in range(4): unpack(f + 2 * k, src + k)
        A(f"v_add_f32 v{t}, v{f}, v{f+1}"); A(f"v_add_f32 v{t+1}, v{f+2}, v{f+3}")
        A(f"v_add_f32 v{t+2}, v{f+4}, v{f+5}"); A(f"v_add_f32 v{t+3}, v{f+6}, v{f+7}")
        A(f"v_add_f32 v{t}, v{t}, v{t+1}"); A(f"v_add_f32 v{t+2}, v{t+2}, v{t+3}"); A(f"v_add_f32 v{t}, v{t}, v{t+2}")
        dpp_red("add_f32", [t]); swap_red("add_f32", [t], [t+1], 16); swap_red("add_f32", [t], [t+1], 32)
        A(f"v_mul_f32 v{t}, 0x3b000000, v{t}")
        A(f"v_sub_f32 v{t+2}, v{f}, v{t}"); A(f"v_mul_f32 v{t+1}, v{t+2}, v{t+2}")
        for k in range(1, 8):
            A(f"v_sub_f32 v{t+2}, v{f+k}, v{t}"); A(f"v_fmac_f32 v{t+1}, v{t+2}, v{t+2}")
        bf16r(t)
        dpp_red("add_f32", [t+1]); swap_red("add_f32", [t+1], [t+2], 16); swap_red("add_f32", [t+1], [t+2], 32)
        A(f"v_mul_f32 v{t+1}, 0x3b000000, v{t+1}")
        bf16r(t+1)
        A(f"v_add_f32 v{t+1}, 0x3727c5ac, v{t+1}")
        bf16r(t+1)
        A(f"v_sqrt_f32 v{t+1}, v{t+1}")
        for k in range(8): A(f"v_sub_f32 v{f+k}, v{f+k}, v{t}")
        bf16r(t+1)
        A(f"v_rcp_f32 v{t+1}, v{t+1}")
        for k in range(4): A(f"v_cvt_pk_bf16_f32 v{src+k}, v{f+2*k}, v{f+2*k+1}")
        for k in range(4): unpack(f + 2 * k, src + k)
        for k in range(8): A(f"v_mul_f32 v{f+k}, v{f+k}, v{t+1}")
        for k in range(4): A(f"v_cvt_pk_bf16_f32 v{src+k}, v{f+2*k}, v{f+2*k+1}")
    def transpose8(dst, src):
        for e in range(8):
            for j in range(4):
                a = src + 4 * (2 * j) + (e >> 1); b = src + 4 * (2 * j + 1) + (e >> 1)
                A(f"v_perm_b32 v{dst+4*e+j}, v{b}, v{a}, s{45 if e & 1 else 44}")
    def any_poison(regs, t, nt=1):
        regs = list(regs)
        if nt > 1:
            chains = [regs[k::nt] for k in range(nt)]; started = [False] * nt
            while any(chains):
                for k in range(nt):
                    c = chains[k]
                    if not c: continue
                    if not started[k]:
                        n = min(3, len(c)); x = c[:n]; started[k] = True
                    else:
                        n = min(2, len(c)); x = [t + k] + c[:n]
                    A(f"v_max3_u32 v{t+k}, v{x[0]}, v{x[1]}, v{x[2]}" if len(x) == 3 else f"v_max_u32 v{t+k}, v{x[0]}, v{x[1]}")
                    chains[k] = c[n:]
            regs = list(range(t, t + nt))
        A(f"v_max3_u32 v{t}, v{regs[0]}, v{regs[1]}, v{regs[2]}" if len(regs) >= 3 else f"v_max_u32 v{t}, v{regs[0]}, v{regs[1]}")
        rest = regs[3:] if len(regs) >= 3 else []
        while len(rest) >= 2:
            A(f"v_max3_u32 v{t}, v{t}, v{rest[0]}, v{rest[1]}"); rest = rest[2:]
        if rest: A(f"v_max_u32 v{t}, v{t}, v{rest[0]}")
        A(f"v_cmp_eq_u32 vcc, -1, v{t}")
    def barrier_real(lbl):
        A("s_waitcnt lgkmcnt(0)")
        if dry: A("s_cmp_eq_u32 s46, 0"); A(f"s_cbranch_scc1 {lbl}")
        A("s_barrier"); LB(lbl)
    def scheck(lbl, off, n):
        A(f"s_mov_b32 s51, {SPIN_MAX}")
        for r in range(0, n, 16):
            w = min(16, n - r)
            LB(f"{lbl}_{r}")
            A(f"s_load_dwordx{w} s[80:{79+w}], s[26:27], s41 glc")
            A("s_sub_u32 s51, s51, 1"); A(f"s_cbranch_scc1 {lbl}_x")
            A("s_waitcnt lgkmcnt(0)")
            for k in range(w): A(f"s_xor_b32 s{80+k}, s{80+k}, s58")
            for k in range(1, w): A(f"s_or_b32 s80, s80, s{80+k}")
            A(f"s_cbranch_scc1 {lbl}_{r}")
            if r + 16 < n: A("s_add_u32 s41, s41, 64")
        LB(f"{lbl}_x")
        A("s_waitcnt lgkmcnt(0)")
    def alive(tag):
        if wend: A("s_branch L_hdone")
        if noalive: return
        C("every workgroup reset its hand-off slots before it wrote its word here")
        if gok:
            A(f"v_and_b32 v4, 7, v0"); A("v_lshlrev_b32 v4, 2, v4"); A(f"s_mov_b32 s51, {SPIN_MAX}")
            LB(f"L_alive_{tag}")
            A(f"global_load_dword v24, v4, s[26:27] offset:{ALIVE} sc1")
            A("s_sub_u32 s51, s51, 1"); A(f"s_cbranch_scc1 L_alive_ok_{tag}")
            A("s_waitcnt vmcnt(0)")
            A("v_cmp_ne_u32 vcc, v24, v3"); A(f"s_cbranch_vccnz L_alive_{tag}")
            LB(f"L_alive_ok_{tag}")
            A("s_waitcnt vmcnt(0)")
            return
        if sa:
            A("v_readfirstlane_b32 s58, v3")
            if tag == "w": A("s_lshl_b32 s41, s36, 7"); A(f"s_add_u32 s41, s41, {ALIVE}"); scheck("L_alw", 0, 32)
            else: A(f"s_mov_b32 s41, {AR}"); scheck("L_alf", 0, 120)
            return
        A(f"v_lshlrev_b32 v4, 4, v0"); A(f"v_add_u32 v4, {ALIVE}, v4")
        A(f"s_mov_b32 s51, {SPIN_MAX}")
        LB(f"L_alive_{tag}")
        A("global_load_dwordx4 v[24:27], v4, s[26:27] sc1")
        A("s_sub_u32 s51, s51, 1"); A(f"s_cbranch_scc1 L_alive_ok_{tag}")
        A("s_waitcnt vmcnt(0)")
        for k in range(4): A(f"v_xor_b32 v{24+k}, v{24+k}, v3")
        A("v_or3_b32 v24, v24, v25, v26"); A("v_or_b32 v24, v24, v27")
        A("v_cmp_ne_u32 vcc, 0, v24"); A(f"s_cbranch_vccnz L_alive_{tag}")
        LB(f"L_alive_ok_{tag}")
        A("s_waitcnt vmcnt(0)")
    def gate_wait(lbl, lvl=1):
        A(f"v_mov_b32 v1, {GATE}")
        LB(lbl)
        A(f"s_sleep {gsleep}"); A("ds_read_b32 v2, v1"); A("s_waitcnt lgkmcnt(0)"); A("v_readfirstlane_b32 s40, v2")
        A(f"s_cmp_lt_u32 s40, {lvl}"); A(f"s_cbranch_scc1 {lbl}")

    L.extend(HEADER.strip("\n").split("\n"))
    L.append(f"; @launch grid=(256,1,1) block=(512,1,1) lds={LDS_BYTES}")
    L.append('.amdgcn_target "amdgcn-amd-amdhsa--gfx950"')
    L.append(".text"); L.append(f".globl {NAME}_kernel"); L.append(".p2align 8"); L.append(f".type {NAME}_kernel,@function")
    LB(f"{NAME}_kernel")
    A("s_cmp_ge_u32 s2, 256"); A("s_cbranch_scc1 L_end")
    A("s_load_dwordx16 s[4:19], s[0:1], 0")
    A("s_load_dwordx8 s[20:27], s[0:1], 64")
    if ts:
        for k in range(16): A(f"s_mov_b32 s{64+k}, 0")
        A("s_memrealtime s[60:61]")
    A("v_lshrrev_b32 v1, 6, v0")
    A("v_and_b32 v0, 63, v0")
    A("v_readfirstlane_b32 s3, v1")
    def codepf():
        if pf:
            C("one idle wave pulls this kernel's code towards the L2 while the others start")
            A("s_cmp_lg_u32 s3, 5"); A("s_cbranch_scc1 L_nopf")
            A("s_getpc_b64 s[40:41]"); LB("L_pc")
            A(f"s_sub_u32 s40, s40, L_pc-{NAME}_kernel"); A("s_subb_u32 s41, s41, 0")
            A("v_lshlrev_b32 v8, 7, v0"); A(f"v_min_u32 v9, L_end-{NAME}_kernel-8192, v8")
            A("global_load_dword v10, v8, s[40:41] " + xf); A("s_add_u32 s40, s40, 8192"); A("s_addc_u32 s41, s41, 0"); A("global_load_dword v10, v9, s[40:41] " + xf)
            LB("L_nopf")
    if not pfh: codepf()
    A("s_lshr_b32 s36, s2, 5")
    A("s_and_b32 s37, s2, 31")
    A("s_and_b32 s38, s2, 7"); A("s_lshl_b32 s38, s38, 2"); A("s_lshr_b32 s39, s37, 3"); A("s_add_u32 s38, s38, s39")
    A(f"v_mov_b32 v1, {CNT}")
    for k in range(4): A(f"v_mov_b32 v{4+k}, 0")
    A("ds_write_b128 v1, v[4:7]")
    def hentry():
        if pfh: codepf()
        A("v_mov_b32 v16, 0"); A("v_lshlrev_b32 v1, 4, v0")
        A("s_lshl_b32 s40, s36, 10"); A(f"s_add_u32 s40, s40, {POOL}"); A("v_and_b32 v19, 7, v0"); A("v_lshl_add_u32 v19, v19, 7, s40")
        A("s_waitcnt lgkmcnt(0)")
        A("s_cmp_lg_u32 s3, 4"); A("s_cbranch_scc1 L_hbar")
        if F:
            A("s_cmp_lt_u32 s37, 24"); A("s_cbranch_scc1 L_hx")
            A("s_and_b32 s40, s2, 7"); A("s_lshl_b32 s41, s36, 3"); A("s_add_u32 s40, s40, s41"); A("s_lshl_b32 s40, s40, 9"); A(f"s_add_u32 s40, s40, {PPOOL}")
            A("v_and_b32 v18, 3, v0"); A("v_lshl_add_u32 v18, v18, 7, s40")
            A("global_store_dword v18, v16, s[26:27] sc1")
        A("s_cmp_lg_u32 s37, 31"); A("s_cbranch_scc1 L_hx")
        A("global_store_dword v19, v16, s[26:27] sc1")
        LB("L_hx")
        A("global_load_dwordx4 v[4:7], v1, s[4:5]")
        A("global_load_dword v3, v16, s[26:27] sc1")
        LB("L_hbar")
        A("s_barrier"); A("s_branch L_helper")
    if hmove: A("s_cmp_ge_u32 s3, 4"); A("s_cbranch_scc1 L_hentry")
    else:
        A("s_cmp_lt_u32 s3, 4"); A("s_cbranch_scc1 L_stream"); hentry(); LB("L_stream")

    C("streaming waves: K/V tiles of 16 keys through a 4-slot LDS ring per wave")
    if sprio: A(f"s_setprio {sprio}")
    A("v_lshrrev_b32 v20, 4, v0")
    A("v_and_b32 v21, 15, v0")
    A("v_lshlrev_b32 v22, 1, v20")
    A("v_xor_b32 v22, v22, v21")
    A("v_lshlrev_b32 v22, 4, v22")
    A("v_lshl_add_u32 v2, v20, 8, v22")
    A("v_xor_b32 v3, 0x80, v2"); A("v_xor_b32 v4, 16, v2"); A("v_xor_b32 v5, 0x90, v2")
    if noswz:
        for i in range(4): A(f"v_lshlrev_b32 v{2+i}, 4, v0")
    C("four workgroups share a 2 MiB page of K and V (rows of 4 tiles interleaved); the last rows of all pages form a ticket pool")
    if tw: A(f"s_mul_i32 s40, s36, {tw}"); A("s_add_u32 s40, s40, s2"); A("s_and_b32 s40, s40, 7")
    else: A("s_and_b32 s40, s2, 7")
    A("s_lshl_b32 s41, s36, 3"); A("s_add_u32 s40, s40, s41"); A("s_lshl_b32 s40, s40, 21")
    A("s_lshl_b32 s41, s39, 14"); A("s_add_u32 s40, s40, s41")
    A("s_lshl_b32 s41, s3, 12"); A("s_add_u32 s40, s40, s41")
    if rot:
        A(f"s_and_b32 s59, s40, {~0x1fffff & 0xffffffff:#x}"); A(f"s_add_u32 s59, s59, {4*S*16384}")
        if rotm == 'x': A("s_and_b32 s41, s2, 7")
        elif rotm == 'h': A("s_mov_b32 s41, s36")
        else: A("s_and_b32 s41, s2, 7"); A("s_xor_b32 s41, s41, s36")
        A(f"s_mul_i32 s41, s41, {rot * 65536}"); A("s_add_u32 s40, s40, s41")
    A("s_lshl_b32 s41, s3, 15")
    A("s_mov_b32 s30, 0x8000000"); A("s_mov_b32 s31, 0x20000"); A("s_mov_b32 s34, 0x8000000"); A("s_mov_b32 s35, 0x20000")
    A("s_mov_b32 s42, 0x2000")
    A("s_mov_b32 s44, 4")
    C("first: 32 rows x 64 columns of wq per wave into LDS (used by the first helper wave)")
    A("v_lshrrev_b32 v22, 3, v0"); A("v_and_b32 v23, 7, v0"); A("v_lshlrev_b32 v22, 13, v22"); A("v_lshl_add_u32 v22, v23, 4, v22")
    A("s_lshl_b32 s47, s39, 20"); A("s_lshl_b32 s48, s3, 18"); A("s_add_u32 s47, s47, s48"); A("s_lshl_b32 s48, s36, 10"); A("s_add_u32 s47, s47, s48")
    A("s_and_b32 s48, s2, 7"); A("s_lshl_b32 s48, s48, 7"); A("s_add_u32 s47, s47, s48")
    A("s_lshl_b32 s48, s3, 12"); A(f"s_add_u32 m0, s48, {WQL}")
    A("s_waitcnt lgkmcnt(0)")
    if ts: A("s_mov_b32 s64, s60")
    A("s_add_u32 s48, s10, s47"); A("s_addc_u32 s49, s11, 0")
    for k in range(4):
        if k: A("v_add_u32 v22, 0x10000, v22"); A("s_add_u32 m0, m0, 1024"); A("s_nop 0")
        else: A("s_mov_b32 s28, s6")
        A(f"global_load_lds_dwordx4 v22, s[48:49] {wq_flags}")
    A("s_and_b32 s29, s7, 0xffff")
    if tp: A("s_add_u32 s32, s6, 0x10000"); A("s_addc_u32 s33, s29, 0"); A("s_mov_b32 s62, s40")
    else: A("s_mov_b32 s32, s8"); A("s_and_b32 s33, s9, 0xffff")
    if barpos == 0: A("s_barrier")
    TS(6)
    def adv():
        A(f"s_add_u32 s40, s40, {131072 if tp else 65536}")
        if rot: A("s_cmp_ge_u32 s40, s59"); A(f"s_cselect_b32 s48, {4*S*16384}, 0"); A("s_sub_u32 s40, s40, s48")
    def issue_tile(pace, tk=False):
        def ticket(i):
            if tk and i == TPOS:
                if lst: A("s_cmp_eq_u32 s38, 0")
                else: A("s_cmp_lg_u32 s43, 0")
                A(f"s_cbranch_scc1 L_notk{tk}")
                if wgt:
                    A("s_mov_b64 exec, 1"); A("ds_add_rtn_u32 v22, v23, v119"); A("s_mov_b64 exec, -1")
                    A("s_waitcnt lgkmcnt(0)"); A("v_readfirstlane_b32 s48, v22")
                    A("s_cmp_eq_u32 s48, 0"); A("s_cselect_b32 s56, 1, 0"); A(f"s_cbranch_scc0 L_notk{tk}")
                A("s_mov_b32 s58, 1"); A(f"s_atomic_add s58, s[26:27], {'s38' if lst else 's56' if F else 's57'} glc")
                LB(f"L_notk{tk}")
        if lst and tk == 1: A("s_mov_b32 m0, s59"); A("s_add_u32 s59, s59, 1"); A("v_writelane_b32 v21, s40, m0")
        A("s_mov_b32 m0, s41")
        for i in range(4):
            ticket(i); A(f"s_waitcnt vmcnt({pace})"); A(f"buffer_load_dwordx4 v{2+i}, s[28:31], s40 offen offset:{i*1024} {kv_flags} lds")
        A("s_add_u32 m0, s41, 4096")
        for i in range(4):
            ticket(4 + i); A(f"s_waitcnt vmcnt({pace})"); A(f"buffer_load_dwordx4 v{2+i}, s[32:35], s40 offen offset:{i*1024} {kv_flags} lds")
        ticket(8)
        adv()
    LB("L_fill")
    issue_tile(PACE0)
    A("s_xor_b32 s41, s41, s42"); A("s_xor_b32 s42, s42, 0x4000")
    A("s_cmp_lg_u32 s44, 4"); A("s_cbranch_scc1 L_nosig")
    if barpos == 1: A("s_barrier")
    A("s_waitcnt vmcnt(8)"); A("v_mov_b32 v22, 1"); A("s_mov_b64 exec, 1")
    A(f"ds_add_u32 v1, v22 offset:{WQC - CNT}"); A("s_mov_b64 exec, -1")
    LB("L_nosig")
    A("s_sub_u32 s44, s44, 1"); A("s_cmp_lg_u32 s44, 0"); A("s_cbranch_scc1 L_fill")
    if hmove:
        A("s_branch L_filled"); LB("L_hentry"); hentry(); LB("L_filled")
    TS(1)
    A("s_lshl_b32 s46, s36, 24"); A("s_lshl_b32 s47, s3, 12"); A("s_add_u32 s46, s46, s47"); A(f"s_add_u32 s46, s46, {4*S*16384}")
    if wgt:
        assert not F and D + 2 <= 256
        A("s_lshl_b32 s57, s36, 10"); A(f"s_add_u32 s57, s57, {POOL}")
        A("s_mov_b32 s56, 0")
    else:
        A("s_lshl_b32 s57, s36, 2"); A("s_add_u32 s57, s57, s3"); A("s_lshl_b32 s57, s57, 8"); A(f"s_add_u32 s57, s57, {POOL}")
    A("s_mov_b32 s58, 0")
    if F:
        A("s_and_b32 s56, s2, 7"); A("s_lshl_b32 s47, s36, 3"); A("s_add_u32 s56, s56, s47")
        A("s_lshl_b32 s59, s56, 21"); A("s_lshl_b32 s47, s3, 12"); A("s_add_u32 s59, s59, s47"); A(f"s_add_u32 s59, s59, {4*F*16384}")
        A("s_lshl_b32 s56, s56, 2"); A("s_add_u32 s56, s56, s3"); A("s_lshl_b32 s56, s56, 7"); A(f"s_add_u32 s56, s56, {PPOOL}")
    C("addresses of the final merge")
    if tp: A("s_lshl_b32 s47, s3, 15")
    else: A("s_lshl_b32 s47, s3, 11"); A(f"s_add_u32 s47, s47, {SP}")
    A("v_lshlrev_b32 v122, 9, v21"); A("v_lshl_add_u32 v122, v20, 4, v122"); A("v_add_u32 v122, s47, v122")
    A("s_lshl_b32 s47, s3, 5"); A(f"s_add_u32 s47, s47, {SML}")
    A("v_lshl_add_u32 v123, v21, 3, s47")
    A(f"v_lshlrev_b32 v124, 5, v0")
    if not tp: A(f"v_add_u32 v124, {SP}, v124")
    A(f"v_lshlrev_b32 v125, 3, v20"); A(f"v_add_u32 v125, {SML}, v125")
    A("s_lshl_b32 s47, s36, 15"); A("s_lshl_b32 s48, s38, 8"); A("s_add_u32 s47, s47, s48"); A(f"s_add_u32 s47, s47, {PART}")
    A("v_lshlrev_b32 v126, 13, v20"); A("v_lshl_add_u32 v126, v21, 4, v126"); A("v_add_u32 v126, s47, v126")
    A("s_lshl_b32 s47, s36, 12"); A("s_lshl_b32 s48, s38, 7"); A("s_add_u32 s47, s47, s48"); A(f"s_add_u32 s47, s47, {ML}")
    A(f"v_lshl_add_u32 v127, v20, {4 if mlt else 3}, s47")
    A(f"v_mov_b32 v1, {CNT}"); A("v_mov_b32 v119, 1")
    A(f"s_mov_b32 s43, {(NK0 if lst else F if F else S) - 4}")
    if SKW or SKF:
        A("s_mov_b32 s62, 0"); A("s_cmp_lt_u32 s37, 15"); A(f"s_cselect_b32 s62, {SKF}, s62"); A("s_cmp_lt_u32 s37, 8"); A(f"s_cselect_b32 s62, {SKW}, s62")
    A("v_lshlrev_b32 v23, 1, v21"); A("v_and_b32 v23, 15, v23"); A("v_lshrrev_b32 v24, 3, v21"); A("v_or_b32 v23, v23, v24")
    A("v_and_b32 v24, 1, v20"); A("v_lshlrev_b32 v24, 1, v24"); A("v_lshrrev_b32 v25, 1, v20"); A("v_or_b32 v24, v24, v25")
    A("v_xor_b32 v23, v23, v24"); A("v_lshlrev_b32 v23, 4, v23"); A("v_lshl_add_u32 v23, v21, 8, v23")
    A("v_add_u32 v6, s41, v23")
    for s in range(1, 4): A(f"v_xor_b32 v{6+s}, {s << 6}, v6")
    A("v_lshrrev_b32 v25, 2, v0")
    A("v_lshlrev_b32 v26, 1, v25"); A("v_and_b32 v26, 15, v26"); A("v_lshrrev_b32 v27, 3, v25"); A("v_or_b32 v26, v26, v27")
    A("v_bfe_u32 v27, v0, 1, 1"); A("v_xor_b32 v26, v26, v27"); A("v_lshlrev_b32 v26, 4, v26")
    A("v_lshl_add_u32 v26, v25, 8, v26")
    A("v_and_b32 v27, 1, v0"); A("v_lshl_add_u32 v26, v27, 3, v26")
    if tp: A("v_add_u32 v10, s41, v26")
    else: A("s_add_u32 s44, s41, 4096"); A("v_add_u32 v10, s44, v26")
    for t in range(1, 8): A(f"v_xor_b32 v{10+t}, {t << 5}, v10")
    A("v_and_b32 v25, 3, v21"); A("v_lshlrev_b32 v25, 8, v25"); A("v_lshl_add_u32 v25, v24, 4, v25"); A(f"v_add_u32 v108, {QL}, v25")
    if tp:
        A("v_and_b32 v23, 3, v21"); A("v_lshlrev_b32 v23, 5, v23"); A("v_lshl_add_u32 v23, v20, 3, v23")
        A(f"s_mul_i32 s47, s3, {CAP * 256}"); A(f"s_add_u32 s47, s47, {WQL}"); A("v_add_u32 v23, s47, v23")
        A("s_mov_b32 s47, 0")
        if lst:
            A("s_sub_u32 s48, s37, 8"); A("s_cmp_lt_u32 s48, 7"); A(f"s_cselect_b32 s80, {VR}, 0"); A(f"s_cselect_b32 s81, {KS}, 0")
            for k in range(4): A(f"v_writelane_b32 v21, s62, {k}"); A("s_add_u32 s62, s62, 131072")
            A("s_mov_b32 s59, 4"); A("s_movk_i32 s62, 0x1000"); A("s_mov_b32 s36, s80"); A("s_mov_b32 s37, 0"); A("s_mov_b32 s38, 0")
    if wgt: A(f"v_mov_b32 v23, {EL}")
    A("v_mov_b32 v18, 0xff7fffff"); A("v_mov_b32 v19, 0x7f7fffff"); A("v_mov_b32 v109, 0")
    for k in range(32): A(f"v_mov_b32 v{76+k}, 0")
    A(f"s_mov_b32 s45, {L2E}"); A("s_mov_b32 s44, 4"); A("s_mov_b32 s54, 0x2000"); A("s_mov_b32 s55, 4")
    if ts: A("s_mov_b32 s51, 0")
    A(f"v_mov_b32 v116, {QRDY}")
    if fk: A("s_mov_b32 s62, s39")
    A(f"s_mul_i32 s39, s39, {IU}"); A(f"s_mul_i32 s52, s3, {IW}"); A("s_add_u32 s39, s39, s52"); A("s_mov_b32 s52, 0"); A(f"s_mul_i32 s53, s3, {VW}"); A(f"s_add_u32 s53, s53, {VSTART}")
    if noh or nowait: A("s_branch L_qok")
    C("while q is not there yet, keep streaming: park up to NV more tiles in registers")
    for k in range(NV):
        A("ds_read_b32 v117, v116"); A("s_waitcnt lgkmcnt(0)"); A("v_readfirstlane_b32 s48, v117")
        A("s_cmp_lg_u32 s48, 0"); A("s_cbranch_scc1 L_qok")
        for i in range(8):
            A(f"s_waitcnt vmcnt({PACE0})"); A(f"buffer_load_dwordx4 {vr(128+32*k+4*i,4)}, v{2+(i&3)}, s[{28 if i < 4 else 32}:{31 if i < 4 else 35}], s40 offen offset:{(i&3)*1024} {kv_flags}")
        if lst: A(f"v_writelane_b32 v21, s40, {4 + k}"); A("s_add_u32 s59, s59, 1")
        adv(); A("s_add_u32 s52, s52, 1"); A("s_sub_u32 s43, s43, 1")
    LB("L_qwait")
    A("ds_read_b32 v117, v116"); A("s_waitcnt lgkmcnt(0)"); A("v_readfirstlane_b32 s48, v117")
    A("s_cmp_lg_u32 s48, 0"); A("s_cbranch_scc1 L_qok"); A("s_sleep 1"); A("s_branch L_qwait")
    LB("L_qok")
    if tp: A("s_add_u32 s56, s52, 4")
    if ts: A("s_add_u32 s51, s51, s52"); A("s_mov_b32 s77, s52")
    TS(2)
    if mlt: A(f"ds_read_b32 v22, v1 offset:{TAGL - CNT}")
    for s in range(4): A(f"ds_read_b128 {vr(24+4*s,4)}, v108 offset:{64*s}")
    if ilv:
        def kload(i, pace=PACE): A(f"s_waitcnt vmcnt({pace})"); A(f"buffer_load_dwordx4 v{2+i}, s[28:31], s40 offen offset:{i*1024} {kv_flags} lds")
        def kblock(lo, n, lbl):
            if n:
                A("s_bitcmp1_b32 s62, 0"); A(f"s_cbranch_scc0 {lbl}")
                if lo == 0: A("s_mov_b32 m0, s41")
                for i in range(lo, lo + n): kload(i)
                LB(lbl)
        A("s_mov_b32 s55, 3"); A("s_mov_b32 s56, -16")
        LB("L_tile")
        A("s_mov_b32 s62, 0")
        A("s_cmp_gt_u32 s44, 1"); A("s_cbranch_scc1 L_dec")
        C("last tile: start on K while V is still arriving")
        A("s_waitcnt vmcnt(4)")
        TS(3); TC(0)
        for s in range(4): A(f"ds_read_b128 {vr(40+4*s,4)}, v{6+s}")
        for s in range(4):
            A(f"s_waitcnt lgkmcnt({3-s})")
            A(f"v_mfma_f32_16x16x32_bf16 v[72:75], {vr(40+4*s,4)}, {vr(24+4*s,4)}, {'0' if s == 0 else 'v[72:75]'}")
        A("s_branch L_sm")
        LB("L_empty")
        if NV:
            A("s_cmp_eq_u32 s52, 0"); A("s_cbranch_scc1 L_empty2")
            A("s_waitcnt vmcnt(0)"); A("s_mov_b32 s62, 4"); A("s_branch L_go")
            LB("L_empty2")
        if NV:
            A("s_sub_u32 s48, s39, s56"); A("s_cmp_gt_u32 s48, 2"); A("s_cbranch_scc1 L_empty3")
            A("s_waitcnt vmcnt(0)")
            LB("L_empty3")
        A(f"ds_write_b32 v1, v119 offset:{GATE - CNT}"); A("s_mov_b32 s55, 0")
        if ts: A("s_add_u32 s79, s51, 4"); TS(14)
        A("s_branch L_go")
        LB("L_dec")
        C("s62: what refills the free slot while this tile is computed: 1 loads, 3 loads with the second half unthrottled, 4 a parked tile, 0 nothing")
        C("s55: wanted number of tiles in the ring (3 at first, 2 later so that nothing waits unprocessed at the end, 0 when the pool is empty)")
        A("s_waitcnt vmcnt(8) lgkmcnt(0)")
        A("s_add_u32 s39, s39, 1")
        A("s_cmp_gt_u32 s44, s55"); A("s_cbranch_scc1 L_go")
        A("s_mov_b32 s63, 1")
        if NV:
            A("s_cmp_eq_u32 s52, 0"); A("s_cbranch_scc1 L_np")
            A("s_sub_u32 s53, s53, 1"); A("s_cmp_eq_u32 s53, 0"); A("s_cselect_b32 s62, 4, 0"); A("s_cbranch_scc1 L_go")
            A("s_cmp_eq_u32 s53, 1"); A(f"s_cselect_b32 s63, {3 if burst else 1}, 1"); A("s_branch L_src")
            LB("L_np")
        A(f"s_cmp_lt_u32 s39, {I2}"); A("s_cbranch_scc1 L_src")
        A("s_cmp_eq_u32 s55, 3"); A(f"s_cselect_b32 s63, {3 if burst else 1}, 1"); A("s_mov_b32 s55, 2")
        LB("L_src")
        A("s_cmp_eq_u32 s43, 0"); A("s_cbranch_scc1 L_dyn")
        A("s_sub_u32 s43, s43, 1"); A("s_mov_b32 s62, s63"); A("s_branch L_go")
        LB("L_dyn")
        A(f"s_cmp_ge_u32 s58, {D}"); A("s_cbranch_scc1 L_empty")
        A("s_and_b32 s49, s58, 7"); A("s_lshr_b32 s50, s58, 3")
        A("s_lshl_b32 s49, s49, 21"); A("s_lshl_b32 s50, s50, 14"); A("s_add_u32 s40, s46, s49"); A("s_add_u32 s40, s40, s50")
        A(f"s_cmp_ge_u32 s58, {D - XB}"); A("s_cselect_b32 s62, 3, s63")
        C("a wave that got one of the last rows does not ask again (the others still drain the counter)")
        A(f"s_cmp_ge_u32 s58, {D - XS}"); A("s_cselect_b32 s62, 11, s62"); A(f"s_cselect_b32 s58, {D}, s58")
        LB("L_go")
        for s in range(4): A(f"ds_read_b128 {vr(40+4*s,4)}, v{6+s}")
        for t in range(8): A(f"ds_read_b64_tr_b16 {vr(56+2*t,2)}, v{10+t}")
        kblock(0, KP[0], "L_k0")
        for s in range(4):
            A(f"s_waitcnt lgkmcnt({11-s})")
            A(f"v_mfma_f32_16x16x32_bf16 v[72:75], {vr(40+4*s,4)}, {vr(24+4*s,4)}, {'0' if s == 0 else 'v[72:75]'}")
        LB("L_sm")
        for k in range(12): A(f"v_xor_b32 v{6+k}, s54, v{6+k}")
        kblock(KP[0], KP[1], "L_k1")
        A("v_cvt_pk_bf16_f32 v110, v72, v73"); A("v_cvt_pk_bf16_f32 v111, v74, v75")
        unpack(112, 110); unpack(114, 111)
        for k in range(4): A(f"v_mul_f32 v{112+k}, {SCALE:#x}, v{112+k}")
        A("v_cvt_pk_bf16_f32 v110, v112, v113"); A("v_cvt_pk_bf16_f32 v111, v114, v115")
        unpack(112, 110); unpack(114, 111)
        A("v_max3_f32 v116, v112, v113, v114"); A("v_max_f32 v117, v115, v18")
        for k in range(4): A(f"v_fma_f32 v{72+k}, v{112+k}, s45, v19")
        A("v_max_f32 v110, v116, v117"); A("v_max_f32 v111, v116, v117")
        A("v_cmp_gt_f32 vcc, v110, v18")
        A("v_mov_b32 v118, 1.0")
        A("s_cbranch_vccnz L_newmax")
        for k in range(4): A(f"v_exp_f32 v{112+k}, v{72+k}")
        A("s_nop 0")
        LB("L_nors")
        A("v_add_f32 v116, v112, v113"); A("v_add_f32 v117, v114, v115")
        A("v_cvt_pk_bf16_f32 v120, v112, v113"); A("v_cvt_pk_bf16_f32 v121, v114, v115")
        A("v_add_f32 v116, v116, v117"); A("v_fma_f32 v109, v109, v118, v116")
        A("s_cmp_gt_u32 s44, 1"); A("s_cbranch_scc1 L_pv")
        for k in range(8): A(f"v_xor_b32 v{10+k}, s54, v{10+k}")
        TC(1)
        A("s_waitcnt vmcnt(0)")
        TC(2)
        for t in range(8): A(f"ds_read_b64_tr_b16 {vr(56+2*t,2)}, v{10+t}")
        for t in range(8):
            A(f"s_waitcnt lgkmcnt({7-t})"); A(f"v_mfma_f32_16x16x16_bf16 {vr(76+4*t,4)}, {vr(56+2*t,2)}, v[120:121], {vr(76+4*t,4)}")
        A("s_branch L_fin")
        LB("L_pv")
        kblock(KP[0] + KP[1], KP[2], "L_k2")
        A("s_waitcnt lgkmcnt(0)")
        for t in range(8): A(f"v_mfma_f32_16x16x16_bf16 {vr(76+4*t,4)}, {vr(56+2*t,2)}, v[120:121], {vr(76+4*t,4)}")
        A("s_xor_b32 s54, s54, 0x4000")
        A("s_bitcmp1_b32 s62, 0"); A("s_cbranch_scc1 L_rest")
        A("s_cmp_lg_u32 s62, 0"); A("s_cbranch_scc1 L_park")
        A("s_sub_u32 s44, s44, 1"); A("s_branch L_tile")
        LB("L_rest")
        if sum(KP) == 0: A("s_mov_b32 m0, s41")
        for i in range(sum(KP), 4): kload(i)
        A("s_lshr_b32 s48, s62, 3"); A("s_or_b32 s48, s48, s43"); A("s_cbranch_scc1 L_notk")
        A("s_mov_b32 s58, 1"); A("s_atomic_add s58, s[26:27], s57 glc")
        LB("L_notk")
        A("s_add_u32 m0, s41, 4096")
        A("s_bitcmp1_b32 s62, 1"); A("s_cbranch_scc1 L_vb")
        for i in range(4): A(f"s_waitcnt vmcnt({PACE})"); A(f"buffer_load_dwordx4 v{2+i}, s[32:35], s40 offen offset:{i*1024} {kv_flags} lds")
        LB("L_issued")
        adv()
        LB("L_slot")
        A("s_xor_b32 s41, s41, s42"); A("s_xor_b32 s42, s42, 0x4000")
        if prog:
            A("s_bitcmp1_b32 s62, 0"); A("s_addc_u32 s51, s51, 0")
            for k, r in enumerate((4, 8, 12, 16, 20, 24, 28)):
                A(f"s_cmp_eq_u32 s51, {r}"); A(f"s_cbranch_scc0 L_pg{k}"); TS(7 + k); LB(f"L_pg{k}")
        A("s_branch L_tile")
        LB("L_vb")
        for i in range(4): A(f"buffer_load_dwordx4 v{2+i}, s[32:35], s40 offen offset:{i*1024} {kv_flags} lds")
        A("s_branch L_issued")
        LB("L_park")
        C("a parked tile takes the free slot")
        A(f"s_mov_b32 s53, {VSTEP + 1}"); A("s_sub_u32 s52, s52, 1"); A("s_mov_b32 s56, s39")
        A("v_lshl_add_u32 v116, v0, 4, s41")
        for k in range(NV):
            if k < NV - 1: A(f"s_cmp_lg_u32 s52, {k}"); A(f"s_cbranch_scc1 L_pk{k}")
            for i in range(8): A(f"ds_write_b128 v116, {vr(128+32*k+4*i,4)} offset:{1024*i}")
            A("s_branch L_slot")
            if k < NV - 1: LB(f"L_pk{k}")
        if not NV: A("s_branch L_slot")
    else:
        if align: L.append(f".p2align {align}")
        LB("L_tile")
        A("s_waitcnt vmcnt(24)")
        A("s_cmp_gt_u32 s44, 3"); A("s_cbranch_scc1 L_go")
        A("s_waitcnt vmcnt(16)"); A("s_cmp_gt_u32 s44, 2"); A("s_cbranch_scc1 L_go")
        A("s_waitcnt vmcnt(8)"); A("s_cmp_gt_u32 s44, 1"); A("s_cbranch_scc1 L_go")
        if ksplit:
            if tp:
                if lst: A("s_lshl_b32 s48, s62, 1"); A("s_cmp_ge_u32 s47, s48")
                else: A(f"s_cmp_ge_u32 s47, {2*NK}")
                A("s_cbranch_scc1 L_last"); A("s_waitcnt vmcnt(0)"); A("s_branch L_go"); LB("L_last")
            C("last tile: start on K while V is still arriving")
            A("s_waitcnt vmcnt(4)")
            TS(3); TC(0)
            for s in range(4): A(f"ds_read_b128 {vr(40+4*s,4)}, v{6+s}")
            for s in range(4):
                A(f"s_waitcnt lgkmcnt({3-s})")
                A(f"v_mfma_f32_16x16x32_bf16 v[72:75], {vr(40+4*s,4)}, {vr(24+4*s,4)}, {'0' if s == 0 else 'v[72:75]'}")
            A("s_branch L_sm")
        else:
            A("s_waitcnt vmcnt(0)")
            TS(3)
        LB("L_go")
        if tp:
            C("ring entries: two K tiles each (scores kept in LDS), then the matching V tiles, then K+V tiles from the pool")
            A("s_mov_b32 s63, s47"); A("s_add_u32 s47, s47, 1"); A("s_cmp_eq_u32 s47, 4"); A("s_cselect_b32 s47, s56, s47")
            if lst:
                A("s_sub_u32 s48, s63, s62"); A("s_cbranch_scc1 L_kk")
                A("s_cmp_lt_u32 s48, s62"); A("s_cbranch_scc1 L_vv")
            else:
                A(f"s_cmp_lt_u32 s63, {NK}"); A("s_cbranch_scc1 L_kk")
                A(f"s_sub_u32 s48, s63, {NK}"); A(f"s_cmp_lt_u32 s63, {2*NK}"); A("s_cbranch_scc1 L_vv")
        if nocomp: A("s_waitcnt lgkmcnt(0)"); A("s_branch L_skipc")
        for s in range(4): A(f"ds_read_b128 {vr(40+4*s,4)}, v{6+s}")
        for t in range(8): A(f"ds_read_b64_tr_b16 {vr(56+2*t,2)}, v{10+t}{' offset:4096' if tp else ''}")
        for s in range(4):
            A(f"s_waitcnt lgkmcnt({11-s})")
            A(f"v_mfma_f32_16x16x32_bf16 v[72:75], {vr(40+4*s,4)}, {vr(24+4*s,4)}, {'0' if s == 0 else 'v[72:75]'}")
        LB("L_sm")
        for k in range(12): A(f"v_xor_b32 v{6+k}, s54, v{6+k}")
        A("v_cvt_pk_bf16_f32 v110, v72, v73"); A("v_cvt_pk_bf16_f32 v111, v74, v75")
        unpack(112, 110); unpack(114, 111)
        for k in range(4): A(f"v_mul_f32 v{112+k}, {SCALE:#x}, v{112+k}")
        A("v_cvt_pk_bf16_f32 v110, v112, v113"); A("v_cvt_pk_bf16_f32 v111, v114, v115")
        unpack(112, 110); unpack(114, 111)
        if lazy:
            A("v_max3_f32 v116, v112, v113, v114"); A("v_max_f32 v117, v115, v18")
            for k in range(4): A(f"v_fma_f32 v{72+k}, v{112+k}, s45, v19")
            A("v_max_f32 v110, v116, v117"); A("v_max_f32 v111, v116, v117")
            A("v_cmp_gt_f32 vcc, v110, v18")
            A("v_mov_b32 v118, 1.0")
            A("s_cbranch_vccnz L_newmax")
            for k in range(4): A(f"v_exp_f32 v{112+k}, v{72+k}")
            A("s_nop 0")
        else:
            A("v_max3_f32 v116, v112, v113, v114"); A("v_max3_f32 v116, v116, v115, v18")
            swap_red("max_f32", [116], [117], 16); swap_red("max_f32", [116], [117], 32)
            A(f"v_mul_f32 v117, {NL2E:#x}, v116"); A("v_floor_f32 v117, v117")
            A("v_cmp_lt_f32 vcc, v117, v19")
            A("v_sub_f32 v118, v117, v19")
            for k in range(4): A(f"v_fma_f32 v{112+k}, v{112+k}, s45, v117")
            A("v_exp_f32 v118, v118")
            for k in range(4): A(f"v_exp_f32 v{112+k}, v{112+k}")
            A("v_mov_b32 v18, v116"); A("v_mov_b32 v19, v117")
            A("s_cbranch_vccz L_nors")
            for k in range(16): A(f"v_pk_mul_f32 {vr(76+2*k,2)}, {vr(76+2*k,2)}, v[118:119] op_sel_hi:[1,0]")
        LB("L_nors")
        A("v_add_f32 v116, v112, v113"); A("v_add_f32 v117, v114, v115")
        A("v_cvt_pk_bf16_f32 v120, v112, v113"); A("v_cvt_pk_bf16_f32 v121, v114, v115")
        A("v_add_f32 v116, v116, v117"); A("v_fma_f32 v109, v109, v118, v116")
        if ksplit:
            A("s_cmp_gt_u32 s44, 1"); A("s_cbranch_scc1 L_pv")
            for k in range(8): A(f"v_xor_b32 v{10+k}, s54, v{10+k}")
            TC(1)
            A("s_waitcnt vmcnt(0)")
            TC(2)
            for t in range(8): A(f"ds_read_b64_tr_b16 {vr(56+2*t,2)}, v{10+t}{' offset:4096' if tp else ''}")
            for t in range(8):
                A(f"s_waitcnt lgkmcnt({7-t})"); A(f"v_mfma_f32_16x16x16_bf16 {vr(76+4*t,4)}, {vr(56+2*t,2)}, v[120:121], {vr(76+4*t,4)}")
            A("s_branch L_fin")
            LB("L_pv")
        A("s_waitcnt lgkmcnt(0)")
        for t in range(8): A(f"v_mfma_f32_16x16x16_bf16 {vr(76+4*t,4)}, {vr(56+2*t,2)}, v[120:121], {vr(76+4*t,4)}")
        LB("L_skipc")
        if NV:
            A("s_cmp_eq_u32 s52, 0"); A("s_cbranch_scc1 L_nopark")
            if tp: A("s_cmp_ge_u32 s47, s62" if lst else f"s_cmp_ge_u32 s47, {NK}"); A("s_cbranch_scc1 L_park")
            A("s_sub_u32 s53, s53, 1"); A("s_cmp_lg_u32 s53, 0"); A("s_cbranch_scc1 L_nopark")
            LB("L_park")
            C("move a parked tile into the slot that just became free and run it")
            A(f"s_mov_b32 s53, {VSTEP + 1}"); A("s_sub_u32 s52, s52, 1")
            A("v_lshl_add_u32 v116, v0, 4, s41")
            A("s_waitcnt vmcnt(8)")
            for k in range(NV):
                if k < NV - 1: A(f"s_cmp_lg_u32 s52, {k}"); A(f"s_cbranch_scc1 L_pk{k}")
                for i in range(8): A(f"ds_write_b128 v116, {vr(128+32*k+4*i,4)} offset:{1024*i}")
                if k < NV - 1: A("s_branch L_pkd"); LB(f"L_pk{k}")
            LB("L_pkd")
            for k in range(12): A(f"v_xor_b32 v{6+k}, s54, v{6+k}")
            if tp: A("s_add_u32 s63, s52, 4"); A("s_branch L_kk")
            else: A("s_branch L_go")
            LB("L_nopark")
        A("s_xor_b32 s54, s54, 0x4000")
        C("s55: wanted number of tiles in the ring (4 at first, 2 later so that nothing waits unprocessed at the end, 0 when the pool is empty)")
        A("s_add_u32 s39, s39, 1")
        A(f"s_cmp_lt_u32 s39, {I1}"); A("s_cbranch_scc1 L_keep")
        A("s_cmp_lg_u32 s52, 0"); A("s_cbranch_scc1 L_keep")
        A(f"s_cmp_lt_u32 s39, {I2}"); A("s_cselect_b32 s48, 3, 2"); A("s_min_u32 s55, s55, s48")
        A("s_cmp_gt_u32 s44, s55"); A("s_cbranch_scc1 L_drain")
        LB("L_keep")
        if WTRIG:
            A(f"s_cmp_lg_u32 s43, {WTRIG}"); A("s_cbranch_scc1 L_notrig")
            A(f"ds_add_u32 v1, v119 offset:{WQC - CNT}")
            LB("L_notrig")
        if lst:
            C("s37: 0 own K rows, 1 K rows by ticket, 2 the V rows of all of those, 3 K+V rows by ticket; s38: counter to ask next (0: none)")
            A("s_cmp_eq_u32 s37, 3"); A("s_cbranch_scc1 L_dyn")
            A("s_cmp_eq_u32 s37, 2"); A("s_cbranch_scc1 L_vrow")
            A("s_cmp_eq_u32 s37, 1"); A("s_cbranch_scc1 L_krow")
            if KS:
                C("workgroups that also fetch weights fall behind: they jump a few rows to stay level with their neighbours and do those rows last")
                A(f"s_cmp_lg_u32 s59, {KT + 1}"); A("s_cbranch_scc1 L_nsk")
                A("s_mov_b32 s82, s40"); A("s_lshl_b32 s48, s81, 17"); A("s_add_u32 s40, s40, s48")
                LB("L_nsk")
                A("s_cmp_eq_u32 s43, s81"); A("s_cselect_b32 s40, s82, s40")
            A("s_sub_u32 s43, s43, 1"); A("s_cmp_lg_u32 s43, 0"); A("s_cbranch_scc1 L_issue")
            if NA: A("s_add_u32 s38, s57, 128")
            A("s_mov_b32 s37, 1"); A("s_branch L_issue")
            LB("L_krow")
            if NA:
                A(f"s_cmp_ge_u32 s58, {DA}"); A("s_cbranch_scc1 L_kend")
                A("s_and_b32 s49, s58, 7"); A("s_lshl_b32 s49, s49, 21"); A("s_add_u32 s40, s46, s49")
                A("s_lshr_b32 s49, s58, 5"); A("s_lshl_b32 s49, s49, 17"); A("s_add_u32 s40, s40, s49")
                A("s_bfe_u32 s49, s58, 0x20003"); A("s_lshl_b32 s49, s49, 14"); A("s_add_u32 s40, s40, s49"); A(f"s_sub_u32 s40, s40, {8 * NA * 16384}")
                A(f"s_cmp_ge_u32 s58, {DA - 16}"); A("s_cbranch_scc1 L_klast")
                A(f"s_cmp_lt_u32 s59, {CAP - 1}"); A("s_cbranch_scc1 L_issue")
                LB("L_klast")
                A("s_mov_b32 s38, 0"); A(f"s_mov_b32 s58, {DA}"); A("s_branch L_issue")
            LB("L_kend")
            A("s_mov_b32 s62, s59"); A("s_mov_b32 s43, s59"); A("s_mov_b32 s37, 2"); A("s_mov_b32 s38, 0")
            A("s_mov_b32 s28, s8"); A("s_and_b32 s29, s9, 0xffff"); A("s_add_u32 s32, s8, 0x10000"); A("s_addc_u32 s33, s29, 0")
            LB("L_vrow")
            A("v_readlane_b32 s40, v21, s36"); A("s_add_u32 s36, s36, 1")
            A("s_cmp_eq_u32 s36, s62"); A("s_cselect_b32 s36, 0, s36")
            A("s_sub_u32 s43, s43, 1"); A("s_cmp_lg_u32 s43, 0"); A("s_cbranch_scc1 L_issue")
            A("s_mov_b32 s38, s57"); A("s_mov_b32 s37, 3"); A("s_branch L_issue")
        else:
            A("s_cmp_eq_u32 s43, 0"); A("s_cbranch_scc1 L_dyn")
            if SKW or SKF:
                C("workgroups that also fetch weights fall behind: they jump a few rows to stay level with their neighbours and do those rows last")
                A(f"s_cmp_lg_u32 s43, {SKT}"); A("s_cbranch_scc1 L_nsk")
                A("s_mov_b32 s63, s40"); A("s_lshl_b32 s48, s62, 16"); A("s_add_u32 s40, s40, s48")
                LB("L_nsk")
                A("s_cmp_eq_u32 s43, s62"); A("s_cselect_b32 s40, s63, s40")
            if tp:
                A(f"s_cmp_lg_u32 s43, {NK}"); A("s_cbranch_scc1 L_nosw")
                A("s_mov_b32 s28, s8"); A("s_and_b32 s29, s9, 0xffff"); A("s_add_u32 s32, s8, 0x10000"); A("s_addc_u32 s33, s29, 0"); A("s_mov_b32 s40, s62")
                LB("L_nosw")
            A("s_sub_u32 s43, s43, 1"); A("s_branch L_issue")
        LB("L_dyn")
        if tp: A("s_mov_b32 s28, s6"); A("s_and_b32 s29, s7, 0xffff"); A("s_mov_b32 s32, s8"); A("s_and_b32 s33, s9, 0xffff")
        if F:
            C("rows of this page are handed out in order to its four workgroups; each wave's last page ticket is one of the last four")
            A("s_cmp_eq_u32 s56, s57"); A("s_cbranch_scc1 L_head")
            if fk: A("s_mov_b32 s58, s62"); A("s_add_u32 s62, s62, 4")
            A("s_lshl_b32 s50, s58, 14"); A("s_add_u32 s40, s59, s50")
            A(f"s_cmp_ge_u32 s58, {P - 4}"); A("s_cselect_b32 s56, s57, s56")
            A("s_branch L_issue")
            LB("L_head")
        if wgt:
            C("one row of four tiles per ticket: the first wave to need it asks, the others read its answer")
            A("s_cmp_eq_u32 s56, 0"); A("s_cbranch_scc1 L_rdq")
            A("v_mov_b32 v22, s58"); A(f"ds_write_b32 v23, v22 offset:{TQ - EL}"); A("s_branch L_gotq")
            LB("L_rdq")
            A(f"ds_read_b32 v22, v23 offset:{TQ - EL}"); A("s_waitcnt lgkmcnt(0)"); A("v_readfirstlane_b32 s58, v22")
            A("s_cmp_eq_u32 s58, -1"); A("s_cbranch_scc1 L_rdq")
            LB("L_gotq")
        A(f"s_cmp_ge_u32 s58, {D}"); A("s_cbranch_scc1 L_empty")
        if wgt: A("v_add_u32 v23, 4, v23")
        A("s_and_b32 s49, s58, 7"); A("s_lshr_b32 s50, s58, 3")
        A("s_lshl_b32 s49, s49, 21"); A("s_lshl_b32 s50, s50, 14"); A("s_add_u32 s40, s46, s49"); A("s_add_u32 s40, s40, s50")
        if XB:
            A(f"s_cmp_lt_u32 s58, {D - XB}"); A("s_cbranch_scc1 L_issue")
            C("last round of the pool: others have stopped, do not hold these loads back")
            if XS:
                C("a wave that got one of the last XS rows does not ask again (the others still drain the counter)")
                A(f"s_cmp_ge_u32 s58, {D - XS}")
                A("s_cselect_b32 s38, 0, s38" if lst else "s_cselect_b32 s43, 1, 0"); A(f"s_cselect_b32 s58, {D}, s58")
            issue_tile(PACEB, 2)
            if XS: A("s_mov_b32 s43, 0")
            A("s_branch L_issued")
        LB("L_issue")
        issue_tile(PACE, 1)
        LB("L_issued")
        A("s_xor_b32 s41, s41, s42"); A("s_xor_b32 s42, s42, 0x4000")
        if prog:
            A("s_add_u32 s51, s51, 1")
            for k, r in enumerate((4, 8, 12, 16, 20, 24, 28)):
                A(f"s_cmp_eq_u32 s51, {r}"); A(f"s_cbranch_scc0 L_pg{k}"); TS(7 + k); LB(f"L_pg{k}")
        A("s_branch L_tile")
        LB("L_empty")
        if NV:
            A("s_cmp_eq_u32 s52, 0"); A("s_cbranch_scc1 L_empty2")
            A("s_xor_b32 s54, s54, 0x4000"); A("s_branch L_park")
            LB("L_empty2")
        A(f"ds_write_b32 v1, v119 offset:{GATE - CNT}"); A("s_mov_b32 s55, 0")
        if ts: A("s_add_u32 s79, s51, 4"); TS(14)
        LB("L_drain")
        A("s_sub_u32 s44, s44, 1"); A("s_cmp_lg_u32 s44, 0"); A("s_cbranch_scc1 L_tile")
    LB("L_fin")
    TS(4); TC(3)
    C("epilogue: merge the four waves' partial results, publish")
    A("v_mov_b32 v116, v109"); A("v_mov_b32 v108, v19"); A("s_nop 0")
    A("v_permlane16_swap_b32 v109, v116"); A("v_add_f32 v117, v109, v116"); A("v_add_f32 v109, v109, v116")
    A("s_mov_b32 exec_lo, 0x000f000f"); A("s_mov_b32 exec_hi, 0x000f000f")
    for t in range(8): A(f"ds_write_b128 v122, {vr(76+4*t,4)} offset:{64*t}")
    A("s_mov_b64 exec, -1")
    A("v_permlane32_swap_b32 v109, v117"); A("v_add_f32 v109, v109, v117")
    A("s_mov_b64 exec, 15")
    A("ds_write_b64 v123, v[108:109]")
    A("s_mov_b64 exec, 1")
    A("ds_add_rtn_u32 v111, v1, v119")
    A("s_mov_b64 exec, -1")
    A("s_waitcnt lgkmcnt(0)")
    TC(4)
    A("v_readfirstlane_b32 s44, v111")
    if fine: A("s_mov_b32 s79, s44")
    A("s_cmp_eq_u32 s44, 3"); A("s_cbranch_scc0 L_sdone")
    if mlt: A("v_mov_b32 v33, v22"); A("v_mov_b32 v35, v22")
    for w in range(4): A(f"ds_read_b64 {vr(24+2*w,2)}, v125 offset:{32*w}")
    for w in range(4):
        if tp:
            if w == 2: A("v_add_u32 v124, 0x10000, v124")
            A(f"ds_read_b128 {vr(40+8*w,4)}, v124 offset:{32768*(w&1)}"); A(f"ds_read_b128 {vr(44+8*w,4)}, v124 offset:{32768*(w&1)+16}")
        else:
            A(f"ds_read_b128 {vr(40+8*w,4)}, v124 offset:{2048*w}"); A(f"ds_read_b128 {vr(44+8*w,4)}, v124 offset:{2048*w+16}")
    A("s_waitcnt lgkmcnt(8)")
    A("v_min3_f32 v32, v24, v26, v28"); A("v_min_f32 v32, v32, v30")
    for w in range(4): A(f"v_sub_f32 v{24+2*w}, v32, v{24+2*w}")
    for w in range(4): A(f"v_exp_f32 v{24+2*w}, v{24+2*w}")
    A("s_waitcnt lgkmcnt(6)")
    for k in range(4): A(f"v_pk_mul_f32 {vr(40+2*k,2)}, {vr(40+2*k,2)}, v[24:25] op_sel_hi:[1,0]")
    for w in range(1, 4):
        A(f"s_waitcnt lgkmcnt({6 - 2*w})")
        for k in range(4): A(f"v_pk_fma_f32 {vr(40+2*k,2)}, {vr(40+8*w+2*k,2)}, {vr(24+2*w,2)}, {vr(40+2*k,2)} op_sel_hi:[1,0,1]")
    for k in range(4): A(f"v_cvt_pk_bf16_f32 v{40+k}, v{40+2*k}, v{41+2*k}")
    A("global_store_dwordx4 v126, v[40:43], s[26:27] sc1")
    lr = 34 if mlt else 33
    A(f"v_mul_f32 v{lr}, v24, v25")
    for w in range(1, 4): A(f"v_fmac_f32 v{lr}, v{24+2*w}, v{25+2*w}")
    A("s_mov_b32 exec_lo, 0x00010001"); A("s_mov_b32 exec_hi, 0x00010001")
    if mlt: A("global_store_dwordx4 v127, v[32:35], s[26:27] sc1")
    else: A("global_store_dwordx2 v127, v[32:33], s[26:27] sc1")
    A("v_mov_b32 v117, 2"); A(f"ds_write_b32 v1, v117 offset:{GATE - CNT}")
    LB("L_sdone")
    TC(5); TC_fin(6)
    TS(5)
    TS_flush()
    A("s_endpgm")

    if lazy:
        LB("L_newmax")
        C("some row has a new maximum: agree on it across the four key groups, rescale")
        A("v_permlane16_swap_b32 v110, v111"); A("v_max_f32 v116, v110, v111"); A("v_max_f32 v117, v110, v111"); A("s_nop 1")
        A("v_permlane32_swap_b32 v116, v117"); A("v_max_f32 v18, v116, v117")
        A(f"v_mul_f32 v117, {NL2E:#x}, v18"); A("v_floor_f32 v117, v117")
        A("v_cmp_lt_f32 vcc, v117, v19")
        A("v_sub_f32 v118, v117, v19")
        for k in range(4): A(f"v_fma_f32 v{112+k}, v{112+k}, s45, v117")
        A("v_exp_f32 v118, v118")
        for k in range(4): A(f"v_exp_f32 v{112+k}, v{112+k}")
        A("v_mov_b32 v19, v117")
        A("s_cbranch_vccz L_nors")
        for k in range(16): A(f"v_pk_mul_f32 {vr(76+2*k,2)}, {vr(76+2*k,2)}, v[118:119] op_sel_hi:[1,0]")
        A("s_branch L_nors")
    if tp:
        LB("L_kk")
        for h in range(2):
            for q in range(4): A(f"ds_read_b128 {vr(40+16*h+4*q,4)}, v{6+q} offset:{4096*h}")
        A("s_lshl_b32 s48, s63, 8"); A("v_add_u32 v116, s48, v23")
        for q in range(4):
            A(f"s_waitcnt lgkmcnt({7-q})")
            A(f"v_mfma_f32_16x16x32_bf16 v[72:75], {vr(40+4*q,4)}, {vr(24+4*q,4)}, {'0' if q == 0 else 'v[72:75]'}")
        for q in range(4):
            A(f"s_waitcnt lgkmcnt({3-q})")
            A(f"v_mfma_f32_16x16x32_bf16 v[112:115], {vr(56+4*q,4)}, {vr(24+4*q,4)}, {'0' if q == 0 else 'v[112:115]'}")
        for k in range(12): A(f"v_xor_b32 v{6+k}, s54, v{6+k}")
        for h, r in ((0, 72), (1, 112)):
            A(f"v_cvt_pk_bf16_f32 v{40+2*h}, v{r}, v{r+1}"); A(f"v_cvt_pk_bf16_f32 v{41+2*h}, v{r+2}, v{r+3}")
        for k in range(4): unpack(44 + 2 * k, 40 + k)
        for k in range(8): A(f"v_mul_f32 v{44+k}, {SCALE:#x}, v{44+k}")
        for k in range(4): A(f"v_cvt_pk_bf16_f32 v{40+k}, v{44+2*k}, v{45+2*k}")
        A("ds_write_b64 v116, v[40:41]"); A("ds_write_b64 v116, v[42:43] offset:128")
        A("s_branch L_skipc")
        LB("L_vv")
        if lst: A("s_add_u32 s48, s48, s80"); A("s_sub_u32 s49, s48, s62"); A("s_cselect_b32 s48, s48, s49")
        A("s_lshl_b32 s48, s48, 8"); A("v_add_u32 v116, s48, v23")
        A("ds_read_b64 v[72:73], v116"); A("ds_read_b64 v[74:75], v116 offset:128")
        for t in range(8):
            A(f"ds_read_b64_tr_b16 {vr(40+4*t,2)}, v{10+t}"); A(f"ds_read_b64_tr_b16 {vr(42+4*t,2)}, v{10+t} offset:4096")
        A("s_waitcnt lgkmcnt(15)")
        for k in range(4): unpack(128 + 2 * k, 72 + k)
        A("v_max3_f32 v116, v128, v129, v130"); A("v_max3_f32 v117, v131, v132, v133"); A("v_max3_f32 v112, v134, v135, v18")
        for k in range(8): A(f"v_fma_f32 v{136+k}, v{128+k}, s45, v19")
        A("v_max3_f32 v110, v116, v117, v112"); A("v_max3_f32 v111, v116, v117, v112")
        A("v_cmp_gt_f32 vcc, v110, v18")
        A("v_mov_b32 v118, 1.0")
        A("s_cbranch_vccz L_vv2")
        A("v_permlane16_swap_b32 v110, v111"); A("v_max_f32 v116, v110, v111"); A("v_max_f32 v117, v110, v111"); A("s_nop 1")
        A("v_permlane32_swap_b32 v116, v117"); A("v_max_f32 v18, v116, v117")
        A(f"v_mul_f32 v117, {NL2E:#x}, v18"); A("v_floor_f32 v117, v117")
        A("v_sub_f32 v118, v117, v19")
        for k in range(8): A(f"v_fma_f32 v{136+k}, v{128+k}, s45, v117")
        A("v_exp_f32 v118, v118"); A("v_mov_b32 v19, v117")
        for k in range(16): A(f"v_pk_mul_f32 {vr(76+2*k,2)}, {vr(76+2*k,2)}, v[118:119] op_sel_hi:[1,0]")
        LB("L_vv2")
        for k in range(8): A(f"v_exp_f32 v{136+k}, v{136+k}")
        for k in range(12): A(f"v_xor_b32 v{6+k}, s54, v{6+k}")
        for k in range(4): A(f"v_cvt_pk_bf16_f32 v{72+k}, v{136+2*k}, v{137+2*k}")
        for k in range(2): A(f"v_pk_add_f32 {vr(136+2*k,2)}, {vr(136+2*k,2)}, {vr(140+2*k,2)}")
        A("v_pk_add_f32 v[136:137], v[136:137], v[138:139]"); A("v_add_f32 v136, v136, v137"); A("v_fma_f32 v109, v109, v118, v136")
        A("s_waitcnt lgkmcnt(0)")
        for t in range(8): A(f"v_mfma_f32_16x16x32_bf16 {vr(76+4*t,4)}, {vr(40+4*t,4)}, v[72:75], {vr(76+4*t,4)}")
        A("s_branch L_skipc")
    LB("L_helper")
    if noh: A("s_endpgm")
    A("s_mov_b32 s47, s39")
    A("s_mov_b32 s50, s39")
    A("s_cmp_eq_u32 s37, 15"); A("s_cselect_b32 s47, 3, s47")
    A("s_sub_u32 s39, s3, 4")
    A("s_and_b32 s48, s37, 7")
    A("s_mul_i32 s59, s36, 7"); A("s_add_u32 s59, s59, s48")
    A("s_lshl_b32 s49, s48, 3"); A("s_add_u32 s49, s49, s36")
    A("v_lshrrev_b32 v20, 4, v0"); A("v_and_b32 v21, 15, v0")
    A("v_lshrrev_b32 v22, 3, v21"); A("v_and_b32 v23, 7, v21")
    A("s_mov_b32 s44, 0x05040100"); A("s_mov_b32 s45, 0x07060302")
    if dry: A("s_mov_b32 s46, 0")
    A("s_cmp_eq_u32 s39, 0"); A("s_cbranch_scc1 L_w4")
    if noroles: A("s_endpgm")
    A("s_cmp_ge_u32 s47, 2"); A("s_cbranch_scc1 L_end")
    if ts: A("s_mov_b32 s64, s60")
    A(f"v_mov_b32 v1, {QRDY}")
    LB("L_hq")
    A("s_sleep 4"); A("ds_read_b32 v2, v1"); A("s_waitcnt lgkmcnt(0)"); A("v_readfirstlane_b32 s40, v2")
    A("s_cmp_eq_u32 s40, 0"); A("s_cbranch_scc1 L_hq")
    A(f"ds_read_b32 v3, v1 offset:{TAGL - QRDY}"); A("s_waitcnt vmcnt(0) lgkmcnt(0)")
    A("s_branch L_roles")

    LB("L_w4")
    C("first helper wave: reset this workgroup's hand-off slots; 128 rows x 64 columns of LN(x) @ wq; gather q")
    if w4stop == 1: A("s_endpgm")
    A(f"s_setprio {wprio}")
    if ts: A("s_mov_b32 s64, s60")
    for k in range(4): A(f"v_mov_b32 v{72+k}, -1")
    A("s_lshl_b32 s40, s36, 15"); A("s_lshl_b32 s41, s38, 8"); A("s_add_u32 s40, s40, s41"); A(f"s_add_u32 s40, s40, {PART}")
    A("v_lshlrev_b32 v76, 13, v20"); A("v_lshl_add_u32 v76, v21, 4, v76"); A("v_add_u32 v76, s40, v76")
    A("s_lshl_b32 s40, s36, 12"); A("s_lshl_b32 s41, s38, 7"); A("s_add_u32 s41, s40, s41"); A(f"s_add_u32 s41, s41, {ML}")
    A("v_lshl_add_u32 v77, v20, 3, s41")
    A(f"v_add_u32 v10, {HN}, v1")
    A("s_lshl_b32 s40, s50, 8"); A(f"s_add_u32 s40, s40, {HN}"); A("v_lshl_add_u32 v11, v20, 4, s40")
    A("v_bfe_u32 v13, v0, 2, 2"); A("v_lshl_add_u32 v13, v20, 3, v13"); A("v_lshlrev_b32 v13, 7, v13")
    A("v_and_b32 v14, 3, v0"); A("v_lshl_add_u32 v13, v14, 3, v13"); A(f"v_add_u32 v13, {WQL}, v13")
    A(f"v_lshlrev_b32 v14, 2, v0"); A(f"v_add_u32 v18, {QL}, v14")
    A("s_lshl_b32 s40, s36, 14"); A(f"s_add_u32 s40, s40, {QBUF + 4096}")
    A("v_add_u32 v17, s40, v1"); A("v_add_u32 v19, 0x2000, v17")
    A("s_lshl_b32 s41, s50, 12"); A("s_add_u32 s40, s40, s41"); A("s_lshl_b32 s41, s48, 9"); A("s_add_u32 s40, s40, s41"); A("s_sub_u32 s40, s40, 4096")
    A("v_lshl_add_u32 v15, v0, 3, s40")
    A("s_lshl_b32 s40, s2, 2"); A(f"s_add_u32 s40, s40, {ALIVE}"); A("v_mov_b32 v78, s40")
    A("v_cmp_eq_u32 s[52:53], 1, v20"); A("v_cmp_eq_u32 s[54:55], 2, v20"); A("v_cmp_eq_u32 s[56:57], 3, v20")
    A(f"v_mov_b32 v14, {WQC}")
    A("s_waitcnt vmcnt(0)")
    TS(1)
    if not nopois: A("global_store_dwordx4 v76, v[72:75], s[26:27] " + pof)
    if not mlt:
        A("s_mov_b32 exec_lo, 0x00010001"); A("s_mov_b32 exec_hi, 0x00010001")
        A("global_store_dwordx2 v77, v[72:73], s[26:27] " + pof)
        A("s_mov_b64 exec, -1")
    if gok:
        if nopois < 2: A("s_cmp_ge_u32 s47, 2"); A("s_cbranch_scc0 L_w4r")
        LB("L_w4b")
    A(f"v_add_u32 v3, {TAGC:#x}, v3")
    layernorm(4, 24, 32)
    A("ds_write_b128 v10, v[4:7]")
    for k in range(4): A(f"ds_read_b128 {vr(40+4*k,4)}, v11 offset:{64*k}")
    LB("L_wqw")
    A("ds_read_b32 v24, v14"); A("s_waitcnt lgkmcnt(0)"); A("v_readfirstlane_b32 s40, v24")
    A("s_cmp_lt_u32 s40, 4"); A("s_cbranch_scc1 L_wqw")
    TS(2)
    for k in range(4):
        for t in range(4):
            r = 96 + 16 * k + 4 * t
            A(f"ds_read_b64_tr_b16 {vr(r,2)}, v13 offset:{4096*k + 32*t}"); A(f"ds_read_b64_tr_b16 {vr(r+2,2)}, v13 offset:{4096*k + 32*t + 512}")
    for k in range(4):
        for t in range(4):
            n = 4 * k + t
            A(f"s_waitcnt lgkmcnt({min(15, 2*(15-n))})")
            A(f"v_mfma_f32_16x16x32_bf16 {vr(56+4*t,4)}, {vr(40+4*k,4)}, {vr(96+16*k+4*t,4)}, {'0' if k == 0 else vr(56+4*t,4)}")
    A("s_nop 5")
    A("v_cndmask_b32 v2, v56, v60, s[52:53]"); A("s_nop 0"); A("v_cndmask_b32 v2, v2, v64, s[54:55]"); A("v_cndmask_b32 v2, v2, v68, s[56:57]")
    if gok: A("s_waitcnt vmcnt(0)")
    A("global_store_dwordx2 v15, v[2:3], s[26:27] " + qsf)
    if not nohint:
        A("s_mov_b64 exec, 1"); A(f"global_store_dword v78, v3, s[26:27] offset:{QH - ALIVE} sc1"); A("s_mov_b64 exec, -1")
    if not gok:
        A("s_cmp_ge_u32 s47, 2"); A("s_cbranch_scc0 L_w4r")
        LB("L_w4b")
    if w4stop == 2: A("s_endpgm")
    TS(3)
    A(f"s_mov_b32 s51, {SPIN_MAX}")
    def qload(r):
        for i in range(16): A(f"global_load_dwordx4 {vr(r+4*i,4)}, v{17 if i < 8 else 19}, s[26:27] offset:{(i % 8) * 1024 - 4096} sc1")
    def qcheck(r):
        A(f"v_xor_b32 v24, v{r+1}, v3"); A(f"v_xor_b32 v25, v{r+3}, v3")
        ws = [r + 4 * i + k for i in range(1, 16) for k in (1, 3)]
        for n, w in enumerate(ws):
            A(f"v_xor_b32 v26, v{w}, v3"); A(f"v_or_b32 v{24 + (n & 1)}, v{24 + (n & 1)}, v26")
        A("v_or_b32 v24, v24, v25"); A("v_cmp_ne_u32 vcc, 0, v24")
    def qsum(r):
        for k in range(4):
            for h in (0, 2):
                A(f"v_add_f32 v{r+4*k+h}, v{r+4*k+h}, v{r+16+4*k+h}"); A(f"v_add_f32 v{r+32+4*k+h}, v{r+32+4*k+h}, v{r+48+4*k+h}")
        for k in range(4):
            for h in (0, 2): A(f"v_add_f32 v{r+4*k+h}, v{r+4*k+h}, v{r+32+4*k+h}")
        for k in range(4): A(f"v_cvt_pk_bf16_f32 v{24+k}, v{r+4*k}, v{r+4*k+2}")
    if not nohint: C("the group's 32 words announce the partial q stores; the tags inside the data are what is trusted")
    if nohint:
        if nohint > 1: A(f"s_sleep {nohint}")
        A("s_waitcnt vmcnt(0)")
    elif sq:
        A("v_readfirstlane_b32 s58, v3"); A("s_lshl_b32 s41, s36, 7"); A(f"s_add_u32 s41, s41, {QH + 4 * (32 - QW)}")
        scheck("L_qh", 0, QW)
        A(f"s_mov_b32 s51, {SPIN_MAX}")
        A("s_waitcnt vmcnt(0)")
    else:
        A("s_lshl_b32 s40, s36, 7"); A(f"s_add_u32 s40, s40, {QH}"); A("v_and_b32 v12, 31, v0"); A("v_lshl_add_u32 v12, v12, 2, s40")
        A("global_load_dword v28, v12, s[26:27] sc1")
        A(f"s_sleep {qsleep}")
        LB("L_qhint")
        A("global_load_dword v29, v12, s[26:27] sc1")
        A("s_waitcnt vmcnt(1)")
        A("v_cmp_eq_u32 vcc, v28, v3"); A("s_bcnt1_i32_b32 s40, vcc_lo"); A(f"s_cmp_ge_u32 s40, {QTH}"); A("s_cbranch_scc1 L_qgo")
        A("global_load_dword v28, v12, s[26:27] sc1")
        A("s_waitcnt vmcnt(1)")
        A("v_cmp_eq_u32 vcc, v29, v3"); A("s_bcnt1_i32_b32 s40, vcc_lo")
        A("s_sub_u32 s51, s51, 1"); A("s_cbranch_scc1 L_qgo")
        A(f"s_cmp_lt_u32 s40, {QTH}"); A("s_cbranch_scc1 L_qhint")
    LB("L_qgo")
    if not gok: C("the resets have landed: tell the later stages")
    A("s_mov_b64 exec, 1") if not gok else None
    if not gok: A("global_store_dword v78, v3, s[26:27] sc1")
    if sa:
        A("s_cmp_ge_u32 s47, 2"); A("s_cbranch_scc1 L_noar")
        A("s_lshl_b32 s40, s36, 3"); A("s_add_u32 s40, s40, s48"); A("s_add_u32 s41, s49, 64"); A("s_cmp_eq_u32 s47, 0"); A("s_cselect_b32 s40, s40, s41")
        A("s_lshl_b32 s40, s40, 2"); A(f"s_add_u32 s40, s40, {AR}"); A("v_mov_b32 v77, s40")
        A("global_store_dword v77, v3, s[26:27] sc1")
        LB("L_noar")
    if not gok: A("s_mov_b64 exec, -1")
    TS(12)
    if w4stop == 3: A("s_endpgm")
    A(f"s_mov_b32 s55, {qmask}")
    LB("L_qpoll")
    for i in range(16):
        A(f"s_bitcmp1_b32 s55, {i}"); A(f"s_cbranch_scc0 L_qs{i}")
        A(f"global_load_dwordx4 {vr(96+4*i,4)}, v{17 if i < 8 else 19}, s[26:27] offset:{(i % 8) * 1024 - 4096} {qgf}")
        LB(f"L_qs{i}")
    A("s_waitcnt vmcnt(0)")
    for i in range(16):
        A(f"v_cmp_ne_u32 vcc, v{97+4*i}, v3"); A(f"v_cmp_ne_u32 s[40:41], v{99+4*i}, v3"); A("s_or_b64 vcc, vcc, s[40:41]")
        A(f"s_cbranch_scc1 L_qc{i}"); A(f"s_bitset0_b32 s55, {i}"); LB(f"L_qc{i}")
    A("s_sub_u32 s51, s51, 1"); A("s_cbranch_scc1 L_qgot")
    if qretry:
        A("s_cmp_eq_u32 s55, 0"); A("s_cbranch_scc1 L_qgot"); A(f"s_sleep {qretry}"); A("s_branch L_qpoll")
    else: A("s_cmp_lg_u32 s55, 0"); A("s_cbranch_scc1 L_qpoll")
    LB("L_qgot")
    qsum(96)
    if wgt:
        A(f"v_add_u32 v28, {EL}, v1"); A(f"ds_write_b128 v28, v[72:75] offset:{TQ - EL}")
        for k in range(4): A(f"v_mov_b32 v{76+k}, 0")
        A("ds_write_b128 v28, v[76:79]")
    A("ds_write2_b32 v18, v24, v25 offset0:0 offset1:64"); A("ds_write2_b32 v18, v26, v27 offset0:128 offset1:192")
    A(f"v_mov_b32 v18, {QRDY}"); A("v_mov_b32 v19, 1")
    A(f"ds_write_b32 v18, v3 offset:{TAGL - QRDY}"); A("ds_write_b32 v18, v19")
    A("s_waitcnt lgkmcnt(0)")
    A("s_setprio 0")
    if gok:
        C("one member per group tells the later stages that all 32 members' resets have landed")
        A("s_cmp_lg_u32 s37, 16"); A("s_cbranch_scc1 L_nogok")
        A("s_lshl_b32 s40, s36, 2"); A(f"s_add_u32 s40, s40, {ALIVE}"); A("v_mov_b32 v78, s40")
        A("s_mov_b64 exec, 1"); A("global_store_dword v78, v3, s[26:27] sc1"); A("s_mov_b64 exec, -1")
        LB("L_nogok")
    TS(4)
    if touch:
        A("v_lshlrev_b32 v4, 21, v0"); A("s_lshl_b32 s40, s36, 24"); A(f"s_add_u32 s40, s40, {0x200000 - 128}"); A("v_add_u32 v4, s40, v4")
        A("s_mov_b64 exec, 0xff")
        A("global_load_dword v240, v4, s[6:7] nt"); A("global_load_dword v240, v4, s[8:9] nt")
        A("s_mov_b64 exec, -1")
    A("s_waitcnt vmcnt(0)")
    A("s_branch L_roles")
    LB("L_w4r")
    A("s_cmp_eq_u32 s47, 0"); A("s_cbranch_scc0 L_w4f")
    A("s_lshl_b32 s40, s48, 11"); A("s_lshl_b32 s41, s36, 8"); A("s_add_u32 s40, s40, s41"); A(f"s_add_u32 s40, s40, {H2}")
    A("v_lshl_add_u32 v76, v21, 4, s40")
    if rep:
        A("v_lshl_add_u32 v76, v20, 14, v76"); A("v_add_u32 v77, 0x10000, v76")
        A("global_store_dwordx4 v76, v[72:75], s[26:27] " + pof); A("global_store_dwordx4 v77, v[72:75], s[26:27] " + pof)
    else:
        A("s_mov_b64 exec, 0xffff")
        A("global_store_dwordx4 v76, v[72:75], s[26:27] " + pof)
        A("s_mov_b64 exec, -1")
    A("s_branch L_w4b")
    LB("L_w4f")
    A("s_lshl_b32 s41, s49, 7"); A(f"s_add_u32 s41, s41, {H3}")
    A("v_lshrrev_b32 v76, 3, v0"); A("v_mul_u32_u24 v76, 7168, v76"); A("v_and_b32 v77, 7, v0"); A("v_lshl_add_u32 v76, v77, 4, v76"); A("v_add_u32 v76, s41, v76")
    A(f"v_add_u32 v77, {8*7168}, v76")
    A("global_store_dwordx4 v76, v[72:75], s[26:27] " + pof); A("global_store_dwordx4 v77, v[72:75], s[26:27] " + pof)
    A("s_branch L_w4b")
    LB("L_roles")
    if noroles: A("s_branch L_hdone")
    A("s_cmp_eq_u32 s47, 1"); A("s_cbranch_scc1 L_ffn")
    A("s_cmp_eq_u32 s47, 0"); A("s_cbranch_scc0 L_hdone")
    A("s_mov_b32 s40, s36"); A("s_mov_b32 s36, s48"); A("s_mov_b32 s48, s40")

    C("wo role: merge 32 splits of one kv group, multiply by a 512x64 block of wo")
    A("s_lshl_b32 s40, s36, 2"); A("s_add_u32 s40, s40, s39")
    A("s_lshl_b32 s41, s40, 17"); A("s_lshl_b32 s42, s48, 7"); A("s_add_u32 s41, s41, s42"); A("s_add_u32 s41, s41, 4096")
    A("s_add_u32 s52, s12, s41"); A("s_addc_u32 s53, s13, 0")
    A("v_lshlrev_b32 v58, 16, v22"); A("v_lshl_add_u32 v58, v20, 13, v58"); A("v_lshl_add_u32 v58, v23, 4, v58"); A("v_add_u32 v59, 0x8000, v58")
    def wo_weights():
        if jitw: gate_wait("L_w_jit", 1); TS(11)
        for s in range(2):
            for i in range(8): A(f"global_load_dwordx4 {vr(160+32*s+4*i,4)}, v{58+s}, s[52:53] offset:{1024*i-4096} {w_flags}")
            if not jitw: A("s_waitcnt vmcnt(0)")
        for s in range(2):
            A(f"s_waitcnt vmcnt({8 - 8*s})")
            transpose8(96 + 32 * s, 160 + 32 * s)
        TS(5)
    if not jitw: wo_weights()
    alive("w")
    A("s_lshl_b32 s41, s40, 13"); A(f"s_add_u32 s41, s41, {PART}")
    A("v_lshlrev_b32 v14, 4, v21"); A("v_lshl_add_u32 v4, v20, 11, v14"); A("v_add_u32 v4, s41, v4")
    A("s_lshl_b32 s41, s36, 12"); A(f"s_lshl_b32 s42, s39, {4 if mlt else 3}"); A("s_add_u32 s41, s41, s42"); A(f"s_add_u32 s41, s41, {ML}")
    A("v_and_b32 v8, 31, v0"); A("v_lshl_add_u32 v6, v8, 7, s41")
    A("s_lshl_b32 s41, s39, 6"); A(f"s_add_u32 s41, s41, {WB}")
    A("v_lshl_add_u32 v9, v8, 1, s41"); A("v_lshl_add_u32 v10, v20, 4, s41")
    A("s_lshl_b32 s41, s39, 8"); A(f"s_add_u32 s41, s41, {OB}")
    A("v_add_u32 v11, s41, v14")
    A("v_lshlrev_b32 v12, 7, v22"); A("v_lshl_add_u32 v12, v20, 4, v12"); A("v_add_u32 v12, s41, v12")
    A("s_lshl_b32 s41, s39, 9"); A(f"s_add_u32 s41, s41, {RED}")
    A("v_lshlrev_b32 v13, 8, v22"); A("v_lshl_add_u32 v13, v23, 5, v13"); A("v_add_u32 v13, s41, v13")
    A(f"v_add_u32 v15, {RED}, v14")
    A("s_lshl_b32 s41, s36, 11"); A("s_lshl_b32 s42, s48, 8"); A("s_add_u32 s54, s41, s42")
    if jitw: wo_weights()
    if pw:
        if pw == 2: gate_wait("L_wo_pw", 1)
        if 'm' in pws: A(f"global_load_dwordx2 v[80:81], v6, s[26:27] {pwf}")
        for i in range(8 if 'p' in pws else 0): A(f"global_load_dwordx4 {vr(16+4*i,4)}, v4, s[26:27] offset:{256*i} {pwf}")
    if not dry: gate_wait("L_wo_gate0", 2 if g2 else 1); TS(8)
    LB("L_wo_pass")
    A(f"s_mov_b32 s41, {H2}")
    if dry: A("s_cmp_eq_u32 s46, 0"); A(f"s_cmov_b32 s41, {DUMMY}")
    A("s_add_u32 s41, s41, s54")
    A("v_add_u32 v7, s41, v14")
    if rep: A("v_lshrrev_b32 v5, 4, v0"); A("v_lshl_add_u32 v7, v5, 14, v7"); A("v_add_u32 v5, 0x10000, v7")
    A(f"s_mov_b32 s51, {SPIN_MAX}")
    if MLTH >= 0:
        LB("L_wo_ml")
        if mlt:
            A("global_load_dwordx4 v[224:227], v6, s[26:27] sc1")
            A("s_waitcnt vmcnt(0)")
            A("v_cmp_ne_u32 vcc, v227, v3")
        else:
            A("global_load_dwordx2 v[80:81], v6, s[26:27] sc1")
            A("s_waitcnt vmcnt(0)")
            any_poison([80, 81], 84)
        A("s_bcnt1_i32_b32 s57, vcc_lo")
        if dry: A("s_cmp_eq_u32 s46, 0"); A("s_cbranch_scc1 L_wo_go")
        A("s_sub_u32 s51, s51, 1"); A("s_cbranch_scc1 L_wo_go")
        A(f"s_cmp_gt_u32 s57, {32 - MLTH}"); A("s_cbranch_scc1 L_wo_ml")
    LB("L_wo_go")
    TS(9)
    def wload(r, m):
        A(f"global_load_dwordx4 {vr(m,4)}, v6, s[26:27] sc1" if mlt else f"global_load_dwordx2 {vr(m,2)}, v6, s[26:27] sc1")
        for i in range(8): A(f"global_load_dwordx4 {vr(r+4*i,4)}, v4, s[26:27] offset:{256*i} sc1")
    def wcheck(r, m):
        if mlt:
            A(f"v_cmp_ne_u32 s[40:41], v{m+1}, v3"); A(f"v_cmp_ne_u32 s[42:43], v{m+3}, v3")
            any_poison(list(range(r, r + 32)), 84, NCH)
            A("s_or_b64 s[40:41], s[40:41], s[42:43]"); A("s_or_b64 s[40:41], vcc, s[40:41]")
        else: any_poison([m, m+1] + list(range(r, r + 32)), 84)
    MA, MB = (224, 228) if mlt else (80, 82)
    wload(16, MA)
    if stag: A(f"s_sleep {stag}")
    LB("L_wo_poll")
    if ts: A("s_add_u32 s79, s79, 1")
    wload(48, MB)
    A("s_waitcnt vmcnt(9)")
    wcheck(16, MA)
    A("s_cbranch_scc0 L_wo_gotA" if mlt else "s_cbranch_vccz L_wo_gotA")
    wload(16, MA)
    A("s_waitcnt vmcnt(9)")
    wcheck(48, MB)
    if dry: A("s_cmp_eq_u32 s46, 0"); A("s_cbranch_scc1 L_wo_gotB")
    if mlt: A("s_cbranch_scc0 L_wo_gotB"); A("s_sub_u32 s51, s51, 1"); A("s_cbranch_scc0 L_wo_poll")
    else:
        A("s_sub_u32 s51, s51, 1"); A("s_cbranch_scc1 L_wo_gotB")
        A("s_cbranch_vccnz L_wo_poll")
    def wcomb(r, m):
        TS(6); TC(0)
        A(f"v_mov_b32 v84, v{m}")
        P = []
        for e in range(8):
            for j in range(4):
                x = r + 4 * (2 * j) + (e >> 1); y = r + 4 * (2 * j + 1) + (e >> 1)
                P.append(f"v_perm_b32 v{160+4*e+j}, v{y}, v{x}, s{45 if e & 1 else 44}")
        def fill(n):
            for _ in range(n): A(P.pop(0))
        for rot in (8, 4, 2, 1):
            fill(2); A(f"v_min_f32_dpp v84, v84, v84 row_ror:{rot} row_mask:0xf bank_mask:0xf")
        A("v_mov_b32 v85, v84"); fill(2); A("v_permlane16_swap_b32 v84, v85"); A("v_min_f32 v84, v84, v85")
        A(f"v_sub_f32 v84, v84, v{m}"); A("v_exp_f32 v84, v84"); fill(1)
        A("v_cvt_pk_bf16_f32 v86, v84, v84")
        A("ds_write_b16 v9, v86"); A("ds_read_b128 v[88:91], v10")
        A(f"v_mul_f32 v85, v84, v{m + (2 if mlt else 1)}")
        for rot in (8, 4, 2, 1):
            fill(2); A(f"v_add_f32_dpp v85, v85, v85 row_ror:{rot} row_mask:0xf bank_mask:0xf")
        A("v_mov_b32 v86, v85"); fill(2); A("v_permlane16_swap_b32 v85, v86"); A("v_add_f32 v85, v85, v86")
        A("v_rcp_f32 v85, v85")
        fill(len(P))
    LB("L_wo_gotB")
    wcomb(48, MB)
    if dry: A("s_cmp_eq_u32 s46, 0"); A("s_cbranch_scc0 L_wo_got")
    else: A("s_branch L_wo_got")
    LB("L_wo_gotA")
    wcomb(16, MA)
    LB("L_wo_got")
    TC(1)
    A("s_waitcnt lgkmcnt(0)")
    TC(2)
    for e in range(8): A(f"v_mfma_f32_16x16x32_bf16 {vr(192+4*e,4)}, v[88:91], {vr(160+4*e,4)}, 0")
    A("s_nop 0")
    for e in range(8): A(f"v_mul_f32 v{192+4*e}, v{192+4*e}, v85")
    for k in range(4): A(f"v_cvt_pk_bf16_f32 v{88+k}, v{192+8*k}, v{196+8*k}")
    TC(3)
    A("ds_write_b128 v11, v[88:91]")
    A("ds_read_b128 v[160:163], v12"); A("ds_read_b128 v[164:167], v12 offset:64")
    A("s_waitcnt lgkmcnt(1)")
    for e in range(8): A(f"v_mfma_f32_16x16x32_bf16 {vr(192+4*e,4)}, v[160:163], {vr(96+4*e,4)}, 0")
    A("s_waitcnt lgkmcnt(0)")
    for e in range(8): A(f"v_mfma_f32_16x16x32_bf16 {vr(192+4*e,4)}, v[164:167], {vr(128+4*e,4)}, {vr(192+4*e,4)}")
    A("s_mov_b32 exec_lo, 0xff"); A("s_mov_b32 exec_hi, 0xff00")
    A("s_nop 5")
    for e in range(0, 8, 2): A(f"ds_write2_b32 v13, v{192+4*e}, v{196+4*e} offset0:{e} offset1:{e+1}")
    A("s_mov_b64 exec, -1")
    TC(4)
    barrier_real("L_wo_nb")
    TC(5)
    A("s_cmp_lg_u32 s39, 0"); A("s_cbranch_scc1 L_wo_next")
    for p in range(8): A(f"ds_read_b128 {vr(160+4*p,4)}, v15 offset:{256*p}")
    for st, wcnt in ((0, 6), (8, 4), (16, 2), (24, 0)):
        A(f"s_waitcnt lgkmcnt({wcnt})")
        for h in range(2): A(f"v_pk_add_f32 {vr(160+st+2*h,2)}, {vr(160+st+2*h,2)}, {vr(164+st+2*h,2)}")
    for h in range(2): A(f"v_pk_add_f32 {vr(160+2*h,2)}, {vr(160+2*h,2)}, {vr(168+2*h,2)}")
    for h in range(2): A(f"v_pk_add_f32 {vr(176+2*h,2)}, {vr(176+2*h,2)}, {vr(184+2*h,2)}")
    for h in range(2): A(f"v_pk_add_f32 {vr(160+2*h,2)}, {vr(160+2*h,2)}, {vr(176+2*h,2)}")
    if rep:
        C("eight copies, so that the readers of different dies do not queue on one line")
        A("global_store_dwordx4 v7, v[160:163], s[26:27] sc1"); A("global_store_dwordx4 v5, v[160:163], s[26:27] sc1")
    else:
        A("s_mov_b64 exec, 0xffff")
        A("global_store_dwordx4 v7, v[160:163], s[26:27] sc1")
        A("s_mov_b64 exec, -1")
    LB("L_wo_next")
    TC(6); TC_fin(7)
    TS(7)
    if dry:
        A("s_cmp_eq_u32 s46, 1"); A("s_cbranch_scc1 L_hdone")
        A("s_mov_b32 s46, 1")
        gate_wait("L_wo_gate", 2 if g2 else 1)
        TS(8)
        A("s_branch L_wo_pass")
    else: A("s_branch L_hdone") if ts else A("s_endpgm")

    LB("L_ffn")
    C("ffn role: h, LN(h), 32 gate/up columns, 32 rows of w2; first 16 also finish 32 output columns")
    def ffn_weights():
        A("v_lshlrev_b32 v58, 6, v22"); A("v_lshl_add_u32 v58, v20, 3, v58"); A("s_lshl_b32 s40, s39, 7"); A("v_add_u32 v58, s40, v58")
        A("s_movk_i32 s40, 3584"); A("v_mul_u32_u24 v58, s40, v58")
        A("v_and_b32 v59, 3, v21"); A("v_lshl_add_u32 v58, v59, 4, v58"); A("s_lshl_b32 s40, s49, 6"); A("v_add_u32 v58, s40, v58")
        A("v_bfe_u32 v59, v21, 2, 1"); A("v_cmp_eq_u32 vcc, 1, v59")
        A("v_mov_b32 v60, s16"); A("v_mov_b32 v61, s18"); A("v_cndmask_b32 v60, v60, v61, vcc")
        A("v_mov_b32 v61, s17"); A("v_mov_b32 v62, s19"); A("v_cndmask_b32 v61, v61, v62, vcc")
        A("v_mov_b32 v59, 0"); A("v_lshl_add_u64 v[60:61], v[58:59], 0, v[60:61]")
        A("s_lshl_b32 s40, s49, 15"); A("s_lshl_b32 s41, s39, 8"); A("s_add_u32 s40, s40, s41"); A("s_add_u32 s40, s40, 4096")
        A("s_add_u32 s52, s20, s40"); A("s_addc_u32 s53, s21, 0")
        A("v_lshlrev_b32 v58, 13, v20"); A("v_lshl_add_u32 v58, v21, 4, v58")
        if jitf: gate_wait("L_f_jit", 1); TS(11)
        if WTRIG:
            A(f"v_mov_b32 v1, {WQC}")
            LB("L_f_trig")
            A("s_sleep 2"); A("ds_read_b32 v2, v1"); A("s_waitcnt lgkmcnt(0)"); A("v_readfirstlane_b32 s40, v2")
            A("s_cmp_lt_u32 s40, 5"); A("s_cbranch_scc1 L_f_trig")
        A("s_mov_b64 s[40:41], 7168"); A(f"s_mov_b64 s[42:43], {7168 + 24 * 3584}")
        for s in range(2):
            for i in range(8):
                A(f"global_load_dwordx4 {vr(160+32*s+4*i,4)}, v[60:61], off{' offset:3584' if i & 1 else ''} {w_flags if w13f is None else w13f}")
                if i & 1 and not (s == 1 and i == 7): A(f"v_lshl_add_u64 v[60:61], v[60:61], 0, {'s[42:43]' if i == 7 else 's[40:41]'}")
            if not jitf and not wburst: A("s_waitcnt vmcnt(0)")
        for i in range(8): A(f"global_load_dwordx4 {vr(224+4*i,4)}, v58, s[52:53] offset:{1024*i-4096} {w_flags}")
        for s in range(3):
            A(f"s_waitcnt vmcnt({16 - 8*s})")
            transpose8(64 + 32 * s, 160 + 32 * s)
        TS(5)
    if not jitf: ffn_weights()
    A("v_and_b32 v8, 31, v0")
    A("s_lshl_b32 s40, s39, 8"); A("v_lshl_add_u32 v5, v8, 3, s40")
    A("global_load_dwordx2 v[48:49], v5, s[4:5]")
    A("s_waitcnt vmcnt(0)")
    unpack(50, 49)
    A("v_and_b32 v49, 0xffff0000, v48"); A("v_lshlrev_b32 v48, 16, v48")
    alive("f")
    A("v_lshrrev_b32 v9, 5, v0"); A("v_lshlrev_b32 v4, 11, v9"); A("v_lshl_add_u32 v4, v8, 4, v4")
    A("s_lshl_b32 s40, s39, 9"); A(f"s_add_u32 s40, s40, {H2 + 4096}")
    if rep: A("s_lshl_b32 s41, s48, 14"); A("s_add_u32 s40, s40, s41")
    A("v_add_u32 v4, s40, v4"); A("v_add_u32 v6, 0x2000, v4")
    A(f"v_add_u32 v5, {HB}, v5")
    A("s_lshl_b32 s40, s39, 3"); A(f"s_add_u32 s40, s40, {ST}"); A("v_mov_b32 v7, s40"); A(f"v_mov_b32 v9, {ST}")
    A("s_lshl_b32 s40, s39, 8"); A(f"s_add_u32 s40, s40, {HN}"); A("v_lshl_add_u32 v10, v8, 3, s40")
    A("v_lshlrev_b32 v11, 7, v22"); A("v_lshl_add_u32 v11, v20, 4, v11"); A("v_add_u32 v11, s40, v11")
    A("s_lshl_b32 s41, s39, 9"); A(f"s_add_u32 s41, s41, {RED}")
    A("v_lshlrev_b32 v13, 8, v22"); A("v_lshl_add_u32 v13, v23, 5, v13"); A("v_add_u32 v13, s41, v13")
    A("v_lshlrev_b32 v14, 5, v20"); A("v_lshl_add_u32 v14, v23, 2, v14"); A(f"v_add_u32 v14, {RED}, v14")
    A("v_lshrrev_b32 v52, 2, v21"); A("v_mul_u32_u24 v52, 7168, v52"); A("v_and_b32 v53, 3, v21"); A("v_lshl_add_u32 v52, v53, 5, v52"); A("v_lshl_add_u32 v52, v20, 4, v52")
    A("s_lshl_b32 s54, s49, 7"); A(f"s_mul_i32 s41, s39, {4*7168}"); A("s_add_u32 s54, s54, s41")
    A("v_cmp_eq_u32 s[56:57], 1, v20")
    A("s_mul_i32 s41, s59, 7168"); A(f"s_add_u32 s41, s41, {H3 + 3072}"); A("v_lshl_add_u32 v53, v0, 4, s41")
    A("v_and_b32 v54, 7, v0"); A("s_lshl_b32 s41, s59, 6"); A("v_lshl_add_u32 v54, v54, 3, s41"); A(f"v_add_u32 v55, {HB}, v54")
    if jitf: ffn_weights()
    if fuse:
        assert not dry and not WTRIG
        C("LN is applied after the product: gate = (h @ w - mean * colsum(w)) / sd; column sums now, while idle")
        A("s_lshl_b32 s40, s39, 8"); A(f"s_add_u32 s40, s40, {HB}")
        A("v_lshlrev_b32 v11, 7, v22"); A("v_lshl_add_u32 v11, v20, 4, v11"); A("v_add_u32 v11, s40, v11")
        for k in range(4): A(f"v_mov_b32 v{40+k}, 0x3f803f80")
        A("v_mov_b32 v24, -1"); A("v_mov_b32 v25, -1"); A("ds_write_b64 v7, v[24:25]")
        for e in range(8): A(f"v_mfma_f32_16x16x32_bf16 {vr(160+4*e,4)}, v[40:43], {vr(64+4*e,4)}, 0")
        for e in range(8): A(f"v_mfma_f32_16x16x32_bf16 {vr(160+4*e,4)}, v[40:43], {vr(96+4*e,4)}, {vr(160+4*e,4)}")
        A(f"v_add_u32 v15, {REDC - RED}, v13"); A(f"v_mov_b32 v1, {WQC}"); A("v_mov_b32 v2, 1")
        A("s_mov_b32 exec_lo, 0xff"); A("s_mov_b32 exec_hi, 0xff00"); A("s_nop 3")
        for e in range(0, 8, 2): A(f"ds_write2_b32 v15, v{160+4*e}, v{164+4*e} offset0:{e} offset1:{e+1}")
        A("s_mov_b64 exec, 1"); A("ds_add_u32 v1, v2"); A("s_mov_b64 exec, -1")
        LB("L_f_cw")
        A("s_sleep 2"); A("ds_read_b32 v2, v1"); A("s_waitcnt lgkmcnt(0)"); A("v_readfirstlane_b32 s40, v2")
        A("s_cmp_lt_u32 s40, 8"); A("s_cbranch_scc1 L_f_cw")
        A(f"v_add_u32 v15, {REDC - RED}, v14"); A("v_add_u32 v2, 1024, v15")
        for p in range(8): A(f"ds_read2_b32 {vr(24+2*p,2)}, v{15 if p < 4 else 2} offset0:{64*(p&3)} offset1:{64*(p&3)+32}")
        A("s_waitcnt lgkmcnt(0)")
        for k in range(4): A(f"v_pk_add_f32 {vr(24+4*k,2)}, {vr(24+4*k,2)}, {vr(26+4*k,2)}")
        A("v_pk_add_f32 v[24:25], v[24:25], v[28:29]"); A("v_pk_add_f32 v[32:33], v[32:33], v[36:37]"); A("v_pk_add_f32 v[58:59], v[24:25], v[32:33]")
        A("v_add_u32 v15, 1024, v14")
    if pw:
        if pw == 2: gate_wait("L_f_pw", 1)
        for i in range(4 if 'h' in pws else 0): A(f"global_load_dwordx4 {vr(192+4*i,4)}, v{4 if i < 2 else 6}, s[26:27] offset:{(i % 2) * 4096 - 4096} {pwf}")
        A("s_cmp_lg_u32 s39, 0"); A("s_cbranch_scc1 L_f_npw"); A("s_cmp_ge_u32 s59, 16"); A("s_cbranch_scc1 L_f_npw")
        A(f"v_add_u32 v57, {pwoff}, v53")
        for i in range(7 if 'o' in pws else 0): A(f"global_load_dwordx4 {vr(220+4*i,4)}, v57, s[26:27] offset:{1024*i-3072} {pwf}")
        LB("L_f_npw")
    if not dry: gate_wait("L_f_gate0", 2 if g2 else 1)
    LB("L_f_pass")
    A(f"s_mov_b32 s41, {H3}")
    if dry: A("s_cmp_eq_u32 s46, 0"); A(f"s_cmov_b32 s41, {DUMMY}")
    A("s_add_u32 s41, s41, s54")
    A("v_add_u32 v56, s41, v52")
    A(f"s_mov_b32 s51, {SPIN_MAX}")
    def hload(r):
        for i in range(4): A(f"global_load_dwordx4 {vr(r+4*i,4)}, v{4 if i < 2 else 6}, s[26:27] offset:{(i % 2) * 4096 - 4096} sc1")
    def hsum(r):
        TS(6)
        for h in range(2): A(f"v_pk_add_f32 {vr(40+2*h,2)}, {vr(r+2*h,2)}, {vr(r+4+2*h,2)}")
        for h in range(2): A(f"v_pk_add_f32 {vr(44+2*h,2)}, {vr(r+8+2*h,2)}, {vr(r+12+2*h,2)}")
    if hint2:
        LB("L_f_hint")
        if h2sleep: A(f"s_sleep {h2sleep}")
        if hint2 == 1:
            A("global_load_dwordx4 v[192:195], v4, s[26:27] offset:-4096 sc1"); A("s_waitcnt vmcnt(0)")
            any_poison(range(192, 196), 40)
            A("s_sub_u32 s51, s51, 1"); A("s_cbranch_scc1 L_f_go"); A("s_cbranch_vccnz L_f_hint")
        else:
            A("global_load_dword v192, v4, s[26:27] offset:-4096 sc1"); A("s_waitcnt vmcnt(0)")
            A("v_cmp_ne_u32 vcc, -1, v192")
            A("s_sub_u32 s51, s51, 1"); A("s_cbranch_scc1 L_f_go"); A("s_cbranch_vccz L_f_hint")
        LB("L_f_go")
    hload(192)
    if stag: A(f"s_sleep {stag}")
    LB("L_f_poll")
    hload(208)
    A("s_waitcnt vmcnt(4)")
    any_poison(range(192, 208), 40, NCH)
    A("s_cbranch_vccz L_f_gotA")
    hload(192)
    A("s_waitcnt vmcnt(4)")
    any_poison(range(208, 224), 40, NCH)
    if dry: A("s_cmp_eq_u32 s46, 0"); A("s_cbranch_scc1 L_f_gotB")
    A("s_sub_u32 s51, s51, 1"); A("s_cbranch_scc1 L_f_gotB")
    A("s_cbranch_vccnz L_f_poll")
    LB("L_f_gotB")
    hsum(208)
    if dry: A("s_cmp_eq_u32 s46, 0"); A("s_cbranch_scc0 L_f_got")
    else: A("s_branch L_f_got")
    LB("L_f_gotA")
    hsum(192)
    LB("L_f_got")
    TC(0)
    for h in range(2): A(f"v_pk_add_f32 {vr(24+2*h,2)}, {vr(40+2*h,2)}, {vr(44+2*h,2)}")
    swap_red("add_f32", [24, 25, 26, 27], [28, 29, 30, 31], 32)
    A("v_cvt_pk_bf16_f32 v28, v24, v25"); A("v_cvt_pk_bf16_f32 v29, v26, v27")
    unpack(24, 28); unpack(26, 29)
    A("v_pk_add_f32 v[24:25], v[24:25], v[48:49]"); A("v_pk_add_f32 v[26:27], v[26:27], v[50:51]")
    A("v_cvt_pk_bf16_f32 v28, v24, v25"); A("v_cvt_pk_bf16_f32 v29, v26, v27")
    if fuse:
        A("ds_write_b64 v5, v[28:29]")
        A("ds_read_b128 v[40:43], v11"); A("ds_read_b128 v[44:47], v11 offset:64")
        unpack(24, 28); unpack(26, 29)
        C("mean and centred sum of squares of this wave's 128 values, under the matrix work")
        A("v_readfirstlane_b32 s40, v24"); A("s_nop 1")
        for k in range(4): A(f"v_subrev_f32 v{32+k}, s40, v{24+k}")
        A("v_add_f32 v30, v32, v33"); A("v_mul_f32 v31, v32, v32"); A("v_add_f32 v36, v34, v35"); A("v_mul_f32 v37, v33, v33")
        A("v_fmac_f32 v31, v34, v34"); A("v_fmac_f32 v37, v35, v35"); A("v_add_f32 v30, v30, v36"); A("v_add_f32 v31, v31, v37")
        TC(1)
        CH = [f"v_sub_f32 v{k}, v{k}, v30" for k in (32, 34, 36, 38)] + ["v_add_f32 v33, v33, v37", "v_mul_f32 v32, v32, v32", "v_mul_f32 v36, v36, v36", "v_fmac_f32 v32, v34, v34", "v_fmac_f32 v36, v38, v38"]
        M = [f"v_mfma_f32_16x16x32_bf16 {vr(160+4*e,4)}, v[40:43], {vr(64+4*e,4)}, 0" for e in range(8)] + \
            [f"v_mfma_f32_16x16x32_bf16 {vr(160+4*e,4)}, v[44:47], {vr(96+4*e,4)}, {vr(160+4*e,4)}" for e in range(8)]
        A("s_waitcnt lgkmcnt(0)")
        for rot in (8, 4, 2, 1):
            A(M.pop(0))
            for x in (30, 31): A(f"v_add_f32_dpp v{x}, v{x}, v{x} row_ror:{rot} row_mask:0xf bank_mask:0xf")
        A(M.pop(0)); A("v_mov_b32 v32, v30"); A("v_mov_b32 v33, v31"); A(M.pop(0)); A(M.pop(0))
        A("v_permlane16_swap_b32 v30, v32"); A("v_permlane16_swap_b32 v31, v33"); A(M.pop(0))
        A("v_add_f32 v30, v30, v32"); A("v_add_f32 v31, v31, v33"); A(M.pop(0))
        A("v_mul_f32 v32, 0x3c000000, v30"); A(M.pop(0))
        A("v_fma_f32 v31, -v32, v30, v31"); A("v_add_f32 v30, s40, v32"); A(M.pop(0))
        A("v_min_u32 v31, -2, v31"); A(M.pop(0))
        A("ds_write_b64 v7, v[30:31]")
        for m in M: A(m)
        TC(2)
        A("ds_read_b128 v[32:35], v9"); A("ds_read_b128 v[36:39], v9 offset:16")
        A("s_mov_b32 exec_lo, 0xff"); A("s_mov_b32 exec_hi, 0xff00"); A("s_nop 3")
        for e in range(0, 8, 2): A(f"ds_write2_b32 v13, v{160+4*e}, v{164+4*e} offset0:{e} offset1:{e+1}")
        A("s_mov_b64 exec, -1")
        A("s_waitcnt lgkmcnt(4)")
        LB("L_f_ck")
        A("v_max3_u32 v30, v33, v35, v37"); A("v_add_f32 v24, v32, v34"); A("v_max_u32 v30, v30, v39"); A("v_add_f32 v31, v36, v38")
        A("v_cmp_eq_u32 vcc, -1, v30"); A("v_add_f32 v30, v24, v31"); A("s_cbranch_vccz L_f_sok")
        A("ds_read_b128 v[32:35], v9"); A("ds_read_b128 v[36:39], v9 offset:16"); A("s_waitcnt lgkmcnt(0)"); A("s_branch L_f_ck")
        LB("L_f_sok")
        TC(3)
        A("v_add_f32 v33, v33, v35"); A("v_mul_f32 v30, 0x3e800000, v30"); A("v_add_f32 v37, v37, v39")
        for k in range(PRE): A(CH.pop(0))
        TC(4)
        A("s_waitcnt lgkmcnt(0)"); A("s_barrier")
        TC(5)
        TS(7)
        for p in range(8): A(f"ds_read2_b32 {vr(160+2*p,2)}, v{14 if p < 4 else 15} offset0:{64*(p&3)} offset1:{64*(p&3)+32}")
        for c_ in CH: A(c_)
        A("v_add_f32 v32, v32, v36"); A("v_mul_f32 v33, 0x3b000000, v33"); A("v_cvt_pk_bf16_f32 v30, v30, v30"); A("v_fmac_f32 v33, 0x3e800000, v32")
        A("v_and_b32 v30, 0xffff0000, v30")
        bf16r(33)
        A("v_add_f32 v33, 0x3727c5ac, v33")
        bf16r(33)
        A("v_sqrt_f32 v33, v33")
        for k in range(4):
            A(f"s_waitcnt lgkmcnt({6-2*k})"); A(f"v_pk_add_f32 {vr(160+4*k,2)}, {vr(160+4*k,2)}, {vr(162+4*k,2)}")
            if k == 0: A("v_cvt_pk_bf16_f32 v33, v33, v33")
            if k == 1: A("v_and_b32 v33, 0xffff0000, v33")
            if k == 2: A("v_rcp_f32 v32, v33")
        A("v_pk_add_f32 v[160:161], v[160:161], v[164:165]"); A("v_pk_add_f32 v[168:169], v[168:169], v[172:173]")
        A("v_pk_fma_f32 v[160:161], v[58:59], v[30:31], v[160:161] op_sel_hi:[1,0,1] neg_lo:[0,1,0] neg_hi:[0,1,0]")
        A("v_pk_add_f32 v[24:25], v[160:161], v[168:169]")
        A("v_pk_mul_f32 v[24:25], v[24:25], v[32:33] op_sel_hi:[1,0]")
    else:
        unpack(24, 28); unpack(26, 29)
        C("mean and centred sum of squares of this wave's 128 values; merged across waves after the barrier")
        A("v_readfirstlane_b32 s40, v24")
        A("ds_write_b64 v5, v[28:29]"); A("s_nop 0")
        for k in range(4): A(f"v_subrev_f32 v{32+k}, s40, v{24+k}")
        A("v_add_f32 v30, v32, v33"); A("v_mul_f32 v31, v32, v32"); A("v_add_f32 v36, v34, v35"); A("v_mul_f32 v37, v33, v33")
        A("v_fmac_f32 v31, v34, v34"); A("v_fmac_f32 v37, v35, v35"); A("v_add_f32 v30, v30, v36"); A("v_add_f32 v31, v31, v37")
        dpp_red("add_f32", [30, 31]); swap_red("add_f32", [30, 31], [32, 33], 16)
        A("v_mul_f32 v32, 0x3c000000, v30"); A("v_fma_f32 v31, -v32, v30, v31"); A("v_add_f32 v30, s40, v32")
        A("ds_write_b64 v7, v[30:31]")
        TC(1)
        barrier_real("L_f_nb1")
        TC(2)
        A("ds_read_b128 v[32:35], v9"); A("ds_read_b128 v[36:39], v9 offset:16")
        A("s_waitcnt lgkmcnt(0)")
        A("v_add_f32 v30, v32, v34"); A("v_add_f32 v31, v36, v38"); A("v_add_f32 v33, v33, v35"); A("v_add_f32 v30, v30, v31"); A("v_add_f32 v37, v37, v39")
        A("v_mul_f32 v30, 0x3e800000, v30"); A("v_add_f32 v33, v33, v37")
        for k in (32, 34, 36, 38): A(f"v_sub_f32 v{k}, v{k}, v30")
        A("v_mul_f32 v32, v32, v32"); A("v_mul_f32 v36, v36, v36"); A("v_fmac_f32 v32, v34, v34"); A("v_fmac_f32 v36, v38, v38")
        bf16r(30)
        A("v_add_f32 v32, v32, v36"); A("v_mul_f32 v33, 0x3b000000, v33"); A("v_fmac_f32 v33, 0x3e800000, v32")
        for k in range(4): A(f"v_sub_f32 v{24+k}, v{24+k}, v30")
        bf16r(33)
        A("v_add_f32 v33, 0x3727c5ac, v33")
        bf16r(33)
        A("v_sqrt_f32 v33, v33")
        A("v_cvt_pk_bf16_f32 v28, v24, v25"); A("v_cvt_pk_bf16_f32 v29, v26, v27")
        bf16r(33)
        A("v_rcp_f32 v33, v33")
        unpack(24, 28); unpack(26, 29)
        for k in range(4): A(f"v_mul_f32 v{24+k}, v{24+k}, v33")
        A("v_cvt_pk_bf16_f32 v28, v24, v25"); A("v_cvt_pk_bf16_f32 v29, v26, v27")
        A("ds_write_b64 v10, v[28:29]")
        TC(3)
        A("ds_read_b128 v[40:43], v11"); A("ds_read_b128 v[44:47], v11 offset:64")
        A("s_waitcnt lgkmcnt(1)")
        for e in range(8): A(f"v_mfma_f32_16x16x32_bf16 {vr(160+4*e,4)}, v[40:43], {vr(64+4*e,4)}, 0")
        A("s_waitcnt lgkmcnt(0)")
        for e in range(8): A(f"v_mfma_f32_16x16x32_bf16 {vr(160+4*e,4)}, v[44:47], {vr(96+4*e,4)}, {vr(160+4*e,4)}")
        A("s_mov_b32 exec_lo, 0xff"); A("s_mov_b32 exec_hi, 0xff00")
        A("s_nop 5")
        for e in range(0, 8, 2): A(f"ds_write2_b32 v13, v{160+4*e}, v{164+4*e} offset0:{e} offset1:{e+1}")
        A("s_mov_b64 exec, -1")
        TC(4)
        barrier_real("L_f_nb2")
        TC(5)
        TS(7)
        for p in range(8):
            if p == 4: A("v_add_u32 v15, 1024, v14")
            A(f"ds_read2_b32 {vr(24+2*p,2)}, v{14 if p < 4 else 15} offset0:{64*(p&3)} offset1:{64*(p&3)+32}")
        for k in range(4):
            A(f"s_waitcnt lgkmcnt({6-2*k})"); A(f"v_pk_add_f32 {vr(24+4*k,2)}, {vr(24+4*k,2)}, {vr(26+4*k,2)}")
        A("v_pk_add_f32 v[24:25], v[24:25], v[28:29]"); A("v_pk_add_f32 v[32:33], v[32:33], v[36:37]"); A("v_pk_add_f32 v[24:25], v[24:25], v[32:33]")
    A("v_cvt_pk_bf16_f32 v26, v24, v25")
    unpack(24, 26)
    A(f"v_mul_f32 v26, {NL2E:#x}, v24"); A("v_exp_f32 v26, v26"); A("s_nop 0")
    A("v_add_f32 v26, 1.0, v26"); A("v_rcp_f32 v26, v26"); A("s_nop 0")
    A("v_mul_f32 v26, v24, v26")
    bf16r(26)
    A("v_mul_f32 v26, v26, v25"); A("s_nop 1")
    A("v_mov_b32_dpp v27, v26 quad_perm:[1,0,3,2] row_mask:0xf bank_mask:0xf")
    A("v_cvt_pk_bf16_f32 v26, v26, v27"); A("s_nop 1")
    for k in range(4): A(f"v_mov_b32_dpp v{40+k}, v26 row_newbcast:{2*k} row_mask:0xf bank_mask:0xf")
    A("s_nop 1")
    TC(6)
    for e in range(8): A(f"v_mfma_f32_16x16x32_bf16 {vr(160+4*e,4)}, v[40:43], {vr(128+4*e,4)}, 0")
    A("s_nop 4")
    for e in range(4): A(f"v_cndmask_b32 v{24+e}, v{160+4*e}, v{176+4*e}, s[56:57]")
    A("s_mov_b32 exec_hi, 0")
    A("global_store_dwordx4 v56, v[24:27], s[26:27] sc1")
    A("s_mov_b64 exec, -1")
    TC(7); TC_fin(8)
    TS(8)
    A("s_cmp_eq_u32 s39, 0"); A("s_cbranch_scc1 L_f_fin")
    C("every first helper wave has read the old word long ago: give the next launch's hand-offs a different tag")
    A("s_cmp_lg_u32 s39, 1"); A("s_cbranch_scc1 L_f_next"); A("s_cmp_lg_u32 s59, 0"); A("s_cbranch_scc1 L_f_next")
    if dry: A("s_cmp_eq_u32 s46, 0"); A("s_cbranch_scc1 L_f_next")
    A("v_mov_b32 v57, 0"); A("s_mov_b64 exec, 1")
    A("global_store_dword v57, v3, s[26:27] sc1")
    A("s_mov_b64 exec, -1"); A("s_branch L_f_next")
    LB("L_f_fin")
    A("s_cmp_ge_u32 s59, 16"); A("s_cbranch_scc1 L_f_next")
    C("final stage: 32 output columns")
    def oload(r):
        for i in range(7): A(f"global_load_dwordx4 {vr(r+4*i,4)}, v53, s[26:27] offset:{1024*i-3072} sc1")
    def osum(r):
        TS(9)
        for d, x, y in ((160, r, r+4), (164, r+8, r+12), (168, r+16, r+20), (160, 160, r+24)):
            for h in range(2): A(f"v_pk_add_f32 {vr(d+2*h,2)}, {vr(x+2*h,2)}, {vr(y+2*h,2)}")
    A("s_waitcnt vmcnt(1)")
    oload(192)
    if dry:
        A(f"s_add_u32 s42, s26, {DUMMY}"); A("s_addc_u32 s43, s27, 0")
        A("s_cmp_eq_u32 s46, 0"); A("s_cselect_b32 s42, s42, s22"); A("s_cselect_b32 s43, s43, s23")
    else: A("s_mov_b64 s[42:43], s[22:23]")
    A("ds_read_b64 v[44:45], v55")
    A(f"s_mov_b32 s51, {SPIN_MAX}")
    if stag: A(f"s_sleep {stag}")
    LB("L_o_poll")
    oload(220)
    A("s_waitcnt vmcnt(7)")
    any_poison(range(192, 220), 40, NCH)
    A("s_cbranch_vccz L_o_gotA")
    oload(192)
    A("s_waitcnt vmcnt(7)")
    any_poison(range(220, 248), 40, NCH)
    if dry: A("s_cmp_eq_u32 s46, 0"); A("s_cbranch_scc1 L_o_gotB")
    A("s_sub_u32 s51, s51, 1"); A("s_cbranch_scc1 L_o_gotB")
    A("s_cbranch_vccnz L_o_poll")
    LB("L_o_gotB")
    osum(220)
    if dry: A("s_cmp_eq_u32 s46, 0"); A("s_cbranch_scc0 L_o_got")
    else: A("s_branch L_o_got")
    LB("L_o_gotA")
    osum(192)
    LB("L_o_got")
    for d, y in ((164, 168), (160, 164)):
        for h in range(2): A(f"v_pk_add_f32 {vr(d+2*h,2)}, {vr(d+2*h,2)}, {vr(y+2*h,2)}")
    A("s_nop 0")
    for k in range(4): A(f"v_add_f32_dpp v{160+k}, v{160+k}, v{160+k} row_ror:8 row_mask:0xf bank_mask:0xf")
    swap_red("add_f32", [160, 161, 162, 163], [164, 165, 166, 167], 16)
    swap_red("add_f32", [160, 161, 162, 163], [164, 165, 166, 167], 32)
    A("v_cvt_pk_bf16_f32 v164, v160, v161"); A("v_cvt_pk_bf16_f32 v165, v162, v163")
    unpack(160, 164); unpack(162, 165)
    A("s_waitcnt lgkmcnt(0)")
    unpack(164, 44); unpack(166, 45)
    A("v_pk_add_f32 v[160:161], v[160:161], v[164:165]"); A("v_pk_add_f32 v[162:163], v[162:163], v[166:167]")
    A("v_cvt_pk_bf16_f32 v160, v160, v161"); A("v_cvt_pk_bf16_f32 v161, v162, v163")
    A("s_mov_b64 exec, 0xff")
    A("global_store_dwordx2 v54, v[160:161], s[42:43] " + outf)
    A("s_mov_b64 exec, -1")
    LB("L_f_next")
    TS(10)
    if dry:
        A("s_cmp_eq_u32 s46, 1"); A("s_cbranch_scc1 L_hdone")
        A("s_mov_b32 s46, 1")
        gate_wait("L_f_gate", 2 if g2 else 1)
        A("s_branch L_f_pass")
    LB("L_hdone")
    TS_flush("H")
    LB("L_end")
    A("s_endpgm")
    L.append('.section .rodata,"a"'); L.append(".p2align 6"); L.append(f".amdhsa_kernel {NAME}_kernel")
    for s in ("next_free_vgpr 256", "next_free_sgpr 102" if fine else "next_free_sgpr 96", "accum_offset 256", "group_segment_fixed_size 0", "kernarg_size 96",
              "user_sgpr_count 2", "user_sgpr_kernarg_segment_ptr 1", "system_sgpr_workgroup_id_x 1", "float_denorm_mode_32 3"):
        L.append("  .amdhsa_" + s)
    L.append(".end_amdhsa_kernel")
    return "\n".join(L) + "\n"

if __name__ == "__main__":
    kw = eval("dict(" + (sys.argv[2] if len(sys.argv) > 2 else "") + ")")
    open(sys.argv[1], "w").write(gen(**kw))
```

```python
import sys
NAME = "sequential_preLN__gqa_block_cached__glu_gated_swiglu__decode"

WQL = 0x20000; SP = 0x20000
QL = 0x27000; SML = 0x27400; CNT = 0x27480; GATE = 0x27484; QRDY = 0x27488; WQC = 0x2748C; TAGL = 0x27490
WB = 0x25000; OB = 0x25200; RED = 0x25800; HB = 0x26000; HM = 0x26400; ST = 0x26600; HN = 0x26800; EL = 0x24000; TQ = 0x24400; REDC = 0x27800
LDS_BYTES = 163840
EPOCH = 0; ALIVE = 0x400; QH = 0x800; AR = 0xC00; POOL = 0xC000; PPOOL = 0xF8000; QBUF = 0xD0000; ML = 0xF0000; H2 = 0x50000; PART = 0x10000; H3 = 0x90000; DUMMY = 0xB0000; TSB = 0x100000
TAGC = 0x9E3779B9
L2E = 0x3FB8AA3B; NL2E = 0xBFB8AA3B; SCALE = 0x3DB504F3
SPIN_MAX = 1 << 16


HEADER = """
;
"""

def gen(PACE=6, PACE0=5, S=26, NG=8, touch=False, qsleep=8, early=False, hold=False, gsleep=2, jitf=False, jitw=False, wqmap=False, ksplit=True, lazy=True, rot=0, rotm='x', F=0, fk=False, wgt=False, sq=False, QW=8, sa=False, XS=16, rep=True, qmask=0xffff, nopois=False, noalive=False, I1=16, I2=22, IW=1, IU=1, fuse=True, nohint=1, gok=True, NCH=3, mlt=True, qretry=0, nowait=False, w4stop=0, PRE=5, ilv=False, burst=True, KP=(2,1,1), XB=24, hmove=False, pfh=False, fine=False, wburst=False, w13f='', tp=True, NA=0, NK0=13, lst=False, KS=0, VR=0, KT=7, late=0, latem=7, tw=0, sprio=0, wprio=3, align=0, SKW=0, SKF=3, SKT=17, WTRIG=0, hint2=2, h2sleep=0, outf='sc1', qgf='sc1', pof='sc1', qsf='sc1', xf='', pwoff=0, PACEB=15, pw=0, pws='mpho', pwf='sc1', TPOS=5, g2=True, R1=8, R2=5, barpos=0, pf=True, stag=3, wend=False, rr=True, noswz=False, nocomp=False, noh=False, NV=4, VSTART=2, VSTEP=2, VW=0, QTH=20, MLTH=20, noroles=False, dbgts=False, prog=False, ts=False, dry=False, wq_flags="nt", w_flags="nt", kv_flags="nt"):
    if tp:
        assert S % 2 == 0 and not ilv and not rot and not F and not wgt and lazy and ksplit
        SKW = SKF = 0
    lst = tp and (lst or NA > 0)
    if lst: S = 2 * (NK0 + NA)
    NK = S // 2; DA = 32 * NA; CAP = 20
    PR = 128 - 4 * S; D = 8 * PR; PRM = -(-(1 << 16) // PR)
    assert all((t * PRM) >> 16 == t // PR for t in range(D))
    P = 4 * (S - F) if F else 0
    L = []
    def A(s): L.append("  " + s)
    def LB(s): L.append(s + ":")
    def C(s): L.append("  ; " + s)
    def vr(a, n): return f"v[{a}:{a+n-1}]"
    def TS(k):
        if ts and not fine:
            A("s_memrealtime s[60:61]"); A("s_waitcnt lgkmcnt(0)"); A(f"s_mov_b32 s{64+k}, s60")
    def TC(k):
        if fine:
            A(f"s_memtime s[{80+2*k}:{81+2*k}]")
    def TC_fin(n):
        if fine:
            A("s_waitcnt lgkmcnt(0)")
            for k in range(n): A(f"s_mov_b32 s{64+k}, s{80+2*k}")
    def TS_flush(kind="S"):
        if ts and dbgts:
            A("s_mov_b64 exec, -1"); A("v_mov_b32 v250, 0")
            if kind == "S":
                A("s_not_b32 s62, s64"); A("v_writelane_b32 v250, s62, 0"); A("s_not_b32 s62, s70"); A("v_writelane_b32 v250, s62, 13")
                for lane, k in ((1, 6), (2, 1), (3, 2), (4, 5)): A(f"v_writelane_b32 v250, s{64+k}, {lane}")
            else:
                for lane, k in ((5, 1), (6, 3), (7, 4)): A(f"v_writelane_b32 v250, s{64+k}, {lane}")
                A("s_not_b32 s62, s68"); A("s_cmp_eq_u32 s68, 0"); A("s_cselect_b32 s62, 0, s62"); A("v_writelane_b32 v250, s62, 14")
                A("s_cmp_eq_u32 s47, 0"); A("s_cbranch_scc0 L_dbgf")
                A("v_writelane_b32 v250, s70, 8"); A("v_writelane_b32 v250, s71, 9"); A("s_branch L_dbge")
                LB("L_dbgf")
                A("v_writelane_b32 v250, s70, 10"); A("v_writelane_b32 v250, s72, 11"); A("v_writelane_b32 v250, s74, 12")
                LB("L_dbge")
            A("v_mbcnt_lo_u32_b32 v251, -1, 0"); A("v_mbcnt_hi_u32_b32 v251, -1, v251"); A("v_lshlrev_b32 v251, 2, v251")
            A("s_mov_b64 exec, 0xffff")
            A("global_atomic_umax v251, v250, s[24:25] sc1")
        elif ts:
            A("s_mov_b64 exec, -1")
            A("v_mov_b32 v250, 0")
            for k in range(16): A(f"v_writelane_b32 v250, s{64+k}, {k}")
            A("v_mbcnt_lo_u32_b32 v251, -1, 0"); A("v_mbcnt_hi_u32_b32 v251, -1, v251")
            A("s_lshl_b32 s62, s2, 3"); A("s_add_u32 s62, s62, s3"); A("s_lshl_b32 s62, s62, 6"); A(f"s_add_u32 s62, s62, {TSB}")
            A("v_lshl_add_u32 v251, v251, 2, s62")
            A("s_mov_b64 exec, 0xffff")
            A("global_store_dword v251, v250, s[26:27]")
    def dpp_red(op, xs):
        for rot in (8, 4, 2, 1):
            if len(xs) < 3: A(f"s_nop {2 - len(xs)}" if len(xs) < 2 else "s_nop 0")
            for x in xs: A(f"v_{op}_dpp v{x}, v{x}, v{x} row_ror:{rot} row_mask:0xf bank_mask:0xf")
    def swap_red(op, xs, ts_, which):
        for x, t in zip(xs, ts_): A(f"v_mov_b32 v{t}, v{x}")
        A("s_nop 1")
        for x, t in zip(xs, ts_): A(f"v_permlane{which}_swap_b32 v{x}, v{t}")
        for x, t in zip(xs, ts_): A(f"v_{op} v{x}, v{x}, v{t}")
    def unpack(dst, src):
        A(f"v_lshlrev_b32 v{dst}, 16, v{src}"); A(f"v_and_b32 v{dst+1}, 0xffff0000, v{src}")
    def bf16r(x):
        A(f"v_cvt_pk_bf16_f32 v{x}, v{x}, v{x}"); A(f"v_and_b32 v{x}, 0xffff0000, v{x}")
    def layernorm(src, f, t):
        for k in range(4): unpack(f + 2 * k, src + k)
        A(f"v_add_f32 v{t}, v{f}, v{f+1}"); A(f"v_add_f32 v{t+1}, v{f+2}, v{f+3}")
        A(f"v_add_f32 v{t+2}, v{f+4}, v{f+5}"); A(f"v_add_f32 v{t+3}, v{f+6}, v{f+7}")
        A(f"v_add_f32 v{t}, v{t}, v{t+1}"); A(f"v_add_f32 v{t+2}, v{t+2}, v{t+3}"); A(f"v_add_f32 v{t}, v{t}, v{t+2}")
        dpp_red("add_f32", [t]); swap_red("add_f32", [t], [t+1], 16); swap_red("add_f32", [t], [t+1], 32)
        A(f"v_mul_f32 v{t}, 0x3b000000, v{t}")
        A(f"v_sub_f32 v{t+2}, v{f}, v{t}"); A(f"v_mul_f32 v{t+1}, v{t+2}, v{t+2}")
        for k in range(1, 8):
            A(f"v_sub_f32 v{t+2}, v{f+k}, v{t}"); A(f"v_fmac_f32 v{t+1}, v{t+2}, v{t+2}")
        bf16r(t)
        dpp_red("add_f32", [t+1]); swap_red("add_f32", [t+1], [t+2], 16); swap_red("add_f32", [t+1], [t+2], 32)
        A(f"v_mul_f32 v{t+1}, 0x3b000000, v{t+1}")
        bf16r(t+1)
        A(f"v_add_f32 v{t+1}, 0x3727c5ac, v{t+1}")
        bf16r(t+1)
        A(f"v_sqrt_f32 v{t+1}, v{t+1}")
        for k in range(8): A(f"v_sub_f32 v{f+k}, v{f+k}, v{t}")
        bf16r(t+1)
        A(f"v_rcp_f32 v{t+1}, v{t+1}")
        for k in range(4): A(f"v_cvt_pk_bf16_f32 v{src+k}, v{f+2*k}, v{f+2*k+1}")
        for k in range(4): unpack(f + 2 * k, src + k)
        for k in range(8): A(f"v_mul_f32 v{f+k}, v{f+k}, v{t+1}")
        for k in range(4): A(f"v_cvt_pk_bf16_f32 v{src+k}, v{f+2*k}, v{f+2*k+1}")
    def transpose8(dst, src):
        for e in range(8):
            for j in range(4):
                a = src + 4 * (2 * j) + (e >> 1); b = src + 4 * (2 * j + 1) + (e >> 1)
                A(f"v_perm_b32 v{dst+4*e+j}, v{b}, v{a}, s{45 if e & 1 else 44}")
    def any_poison(regs, t, nt=1):
        regs = list(regs)
        if nt > 1:
            chains = [regs[k::nt] for k in range(nt)]; started = [False] * nt
            while any(chains):
                for k in range(nt):
                    c = chains[k]
                    if not c: continue
                    if not started[k]:
                        n = min(3, len(c)); x = c[:n]; started[k] = True
                    else:
                        n = min(2, len(c)); x = [t + k] + c[:n]
                    A(f"v_max3_u32 v{t+k}, v{x[0]}, v{x[1]}, v{x[2]}" if len(x) == 3 else f"v_max_u32 v{t+k}, v{x[0]}, v{x[1]}")
                    chains[k] = c[n:]
            regs = list(range(t, t + nt))
        A(f"v_max3_u32 v{t}, v{regs[0]}, v{regs[1]}, v{regs[2]}" if len(regs) >= 3 else f"v_max_u32 v{t}, v{regs[0]}, v{regs[1]}")
        rest = regs[3:] if len(regs) >= 3 else []
        while len(rest) >= 2:
            A(f"v_max3_u32 v{t}, v{t}, v{rest[0]}, v{rest[1]}"); rest = rest[2:]
        if rest: A(f"v_max_u32 v{t}, v{t}, v{rest[0]}")
        A(f"v_cmp_eq_u32 vcc, -1, v{t}")
    def barrier_real(lbl):
        A("s_waitcnt lgkmcnt(0)")
        if dry: A("s_cmp_eq_u32 s46, 0"); A(f"s_cbranch_scc1 {lbl}")
        A("s_barrier"); LB(lbl)
    def scheck(lbl, off, n):
        A(f"s_mov_b32 s51, {SPIN_MAX}")
        for r in range(0, n, 16):
            w = min(16, n - r)
            LB(f"{lbl}_{r}")
            A(f"s_load_dwordx{w} s[80:{79+w}], s[26:27], s41 glc")
            A("s_sub_u32 s51, s51, 1"); A(f"s_cbranch_scc1 {lbl}_x")
            A("s_waitcnt lgkmcnt(0)")
            for k in range(w): A(f"s_xor_b32 s{80+k}, s{80+k}, s58")
            for k in range(1, w): A(f"s_or_b32 s80, s80, s{80+k}")
            A(f"s_cbranch_scc1 {lbl}_{r}")
            if r + 16 < n: A("s_add_u32 s41, s41, 64")
        LB(f"{lbl}_x")
        A("s_waitcnt lgkmcnt(0)")
    def alive(tag):
        if wend: A("s_branch L_hdone")
        if noalive: return
        C("every workgroup reset its hand-off slots before it wrote its word here")
        if gok:
            A(f"v_and_b32 v4, 7, v0"); A("v_lshlrev_b32 v4, 2, v4"); A(f"s_mov_b32 s51, {SPIN_MAX}")
            LB(f"L_alive_{tag}")
            A(f"global_load_dword v24, v4, s[26:27] offset:{ALIVE} sc1")
            A("s_sub_u32 s51, s51, 1"); A(f"s_cbranch_scc1 L_alive_ok_{tag}")
            A("s_waitcnt vmcnt(0)")
            A("v_cmp_ne_u32 vcc, v24, v3"); A(f"s_cbranch_vccnz L_alive_{tag}")
            LB(f"L_alive_ok_{tag}")
            A("s_waitcnt vmcnt(0)")
            return
        if sa:
            A("v_readfirstlane_b32 s58, v3")
            if tag == "w": A("s_lshl_b32 s41, s36, 7"); A(f"s_add_u32 s41, s41, {ALIVE}"); scheck("L_alw", 0, 32)
            else: A(f"s_mov_b32 s41, {AR}"); scheck("L_alf", 0, 120)
            return
        A(f"v_lshlrev_b32 v4, 4, v0"); A(f"v_add_u32 v4, {ALIVE}, v4")
        A(f"s_mov_b32 s51, {SPIN_MAX}")
        LB(f"L_alive_{tag}")
        A("global_load_dwordx4 v[24:27], v4, s[26:27] sc1")
        A("s_sub_u32 s51, s51, 1"); A(f"s_cbranch_scc1 L_alive_ok_{tag}")
        A("s_waitcnt vmcnt(0)")
        for k in range(4): A(f"v_xor_b32 v{24+k}, v{24+k}, v3")
        A("v_or3_b32 v24, v24, v25, v26"); A("v_or_b32 v24, v24, v27")
        A("v_cmp_ne_u32 vcc, 0, v24"); A(f"s_cbranch_vccnz L_alive_{tag}")
        LB(f"L_alive_ok_{tag}")
        A("s_waitcnt vmcnt(0)")
    def gate_wait(lbl, lvl=1):
        A(f"v_mov_b32 v1, {GATE}")
        LB(lbl)
        A(f"s_sleep {gsleep}"); A("ds_read_b32 v2, v1"); A("s_waitcnt lgkmcnt(0)"); A("v_readfirstlane_b32 s40, v2")
        A(f"s_cmp_lt_u32 s40, {lvl}"); A(f"s_cbranch_scc1 {lbl}")

    L.extend(HEADER.strip("\n").split("\n"))
    L.append(f"; @launch grid=(256,1,1) block=(512,1,1) lds={LDS_BYTES}")
    L.append('.amdgcn_target "amdgcn-amd-amdhsa--gfx950"')
    L.append(".text"); L.append(f".globl {NAME}_kernel"); L.append(".p2align 8"); L.append(f".type {NAME}_kernel,@function")
    LB(f"{NAME}_kernel")
    A("s_cmp_ge_u32 s2, 256"); A("s_cbranch_scc1 L_end")
    if late:
        A(f"s_and_b32 s3, s2, {latem}"); A(f"s_cmp_lg_u32 s3, {3 & latem}"); A("s_cbranch_scc1 L_nolate")
        for _ in range(late): A("s_sleep 37")
        LB("L_nolate")
    A("s_load_dwordx16 s[4:19], s[0:1], 0")
    A("s_load_dwordx8 s[20:27], s[0:1], 64")
    if ts:
        for k in range(16): A(f"s_mov_b32 s{64+k}, 0")
        A("s_memrealtime s[60:61]")
    A("v_lshrrev_b32 v1, 6, v0")
    A("v_and_b32 v0, 63, v0")
    A("v_readfirstlane_b32 s3, v1")
    def codepf():
        if pf:
            C("one idle wave pulls this kernel's code towards the L2 while the others start")
            A("s_cmp_lg_u32 s3, 5"); A("s_cbranch_scc1 L_nopf")
            A("s_getpc_b64 s[40:41]"); LB("L_pc")
            A(f"s_sub_u32 s40, s40, L_pc-{NAME}_kernel"); A("s_subb_u32 s41, s41, 0")
            A("v_lshlrev_b32 v8, 7, v0"); A(f"v_min_u32 v9, L_end-{NAME}_kernel-8192, v8")
            A("global_load_dword v10, v8, s[40:41] " + xf); A("s_add_u32 s40, s40, 8192"); A("s_addc_u32 s41, s41, 0"); A("global_load_dword v10, v9, s[40:41] " + xf)
            LB("L_nopf")
    if not pfh: codepf()
    A("s_lshr_b32 s36, s2, 5")
    A("s_and_b32 s37, s2, 31")
    A("s_and_b32 s38, s2, 7"); A("s_lshl_b32 s38, s38, 2"); A("s_lshr_b32 s39, s37, 3"); A("s_add_u32 s38, s38, s39")
    A(f"v_mov_b32 v1, {CNT}")
    for k in range(4): A(f"v_mov_b32 v{4+k}, 0")
    A("ds_write_b128 v1, v[4:7]")
    def hentry():
        if pfh: codepf()
        A("v_mov_b32 v16, 0"); A("v_lshlrev_b32 v1, 4, v0")
        A("s_lshl_b32 s40, s36, 10"); A(f"s_add_u32 s40, s40, {POOL}"); A("v_and_b32 v19, 7, v0"); A("v_lshl_add_u32 v19, v19, 7, s40")
        A("s_waitcnt lgkmcnt(0)")
        A("s_cmp_lg_u32 s3, 4"); A("s_cbranch_scc1 L_hbar")
        if F:
            A("s_cmp_lt_u32 s37, 24"); A("s_cbranch_scc1 L_hx")
            A("s_and_b32 s40, s2, 7"); A("s_lshl_b32 s41, s36, 3"); A("s_add_u32 s40, s40, s41"); A("s_lshl_b32 s40, s40, 9"); A(f"s_add_u32 s40, s40, {PPOOL}")
            A("v_and_b32 v18, 3, v0"); A("v_lshl_add_u32 v18, v18, 7, s40")
            A("global_store_dword v18, v16, s[26:27] sc1")
        A("s_cmp_lg_u32 s37, 31"); A("s_cbranch_scc1 L_hx")
        A("global_store_dword v19, v16, s[26:27] sc1")
        LB("L_hx")
        A("global_load_dwordx4 v[4:7], v1, s[4:5]")
        A("global_load_dword v3, v16, s[26:27] sc1")
        LB("L_hbar")
        A("s_barrier"); A("s_branch L_helper")
    if hmove: A("s_cmp_ge_u32 s3, 4"); A("s_cbranch_scc1 L_hentry")
    else:
        A("s_cmp_lt_u32 s3, 4"); A("s_cbranch_scc1 L_stream"); hentry(); LB("L_stream")

    C("streaming waves: K/V tiles of 16 keys through a 4-slot LDS ring per wave")
    if sprio: A(f"s_setprio {sprio}")
    A("v_lshrrev_b32 v20, 4, v0")
    A("v_and_b32 v21, 15, v0")
    A("v_lshlrev_b32 v22, 1, v20")
    A("v_xor_b32 v22, v22, v21")
    A("v_lshlrev_b32 v22, 4, v22")
    A("v_lshl_add_u32 v2, v20, 8, v22")
    A("v_xor_b32 v3, 0x80, v2"); A("v_xor_b32 v4, 16, v2"); A("v_xor_b32 v5, 0x90, v2")
    if noswz:
        for i in range(4): A(f"v_lshlrev_b32 v{2+i}, 4, v0")
    C("four workgroups share a 2 MiB page of K and V (rows of 4 tiles interleaved); the last rows of all pages form a ticket pool")
    if tw: A(f"s_mul_i32 s40, s36, {tw}"); A("s_add_u32 s40, s40, s2"); A("s_and_b32 s40, s40, 7")
    else: A("s_and_b32 s40, s2, 7")
    A("s_lshl_b32 s41, s36, 3"); A("s_add_u32 s40, s40, s41"); A("s_lshl_b32 s40, s40, 21")
    A("s_lshl_b32 s41, s39, 14"); A("s_add_u32 s40, s40, s41")
    A("s_lshl_b32 s41, s3, 12"); A("s_add_u32 s40, s40, s41")
    if rot:
        A(f"s_and_b32 s59, s40, {~0x1fffff & 0xffffffff:#x}"); A(f"s_add_u32 s59, s59, {4*S*16384}")
        if rotm == 'x': A("s_and_b32 s41, s2, 7")
        elif rotm == 'h': A("s_mov_b32 s41, s36")
        else: A("s_and_b32 s41, s2, 7"); A("s_xor_b32 s41, s41, s36")
        A(f"s_mul_i32 s41, s41, {rot * 65536}"); A("s_add_u32 s40, s40, s41")
    A("s_lshl_b32 s41, s3, 15")
    A("s_mov_b32 s30, 0x8000000"); A("s_mov_b32 s31, 0x20000"); A("s_mov_b32 s34, 0x8000000"); A("s_mov_b32 s35, 0x20000")
    A("s_mov_b32 s42, 0x2000")
    A("s_mov_b32 s44, 4")
    C("first: 32 rows x 64 columns of wq per wave into LDS (used by the first helper wave)")
    A("v_lshrrev_b32 v22, 3, v0"); A("v_and_b32 v23, 7, v0"); A("v_lshlrev_b32 v22, 13, v22"); A("v_lshl_add_u32 v22, v23, 4, v22")
    A("s_lshl_b32 s47, s39, 20"); A("s_lshl_b32 s48, s3, 18"); A("s_add_u32 s47, s47, s48"); A("s_lshl_b32 s48, s36, 10"); A("s_add_u32 s47, s47, s48")
    A("s_and_b32 s48, s2, 7"); A("s_lshl_b32 s48, s48, 7"); A("s_add_u32 s47, s47, s48")
    A("s_lshl_b32 s48, s3, 12"); A(f"s_add_u32 m0, s48, {WQL}")
    A("s_waitcnt lgkmcnt(0)")
    if ts: A("s_mov_b32 s64, s60")
    A("s_add_u32 s48, s10, s47"); A("s_addc_u32 s49, s11, 0")
    for k in range(4):
        if k: A("v_add_u32 v22, 0x10000, v22"); A("s_add_u32 m0, m0, 1024"); A("s_nop 0")
        else: A("s_mov_b32 s28, s6")
        A(f"global_load_lds_dwordx4 v22, s[48:49] {wq_flags}")
    A("s_and_b32 s29, s7, 0xffff")
    if tp: A("s_add_u32 s32, s6, 0x10000"); A("s_addc_u32 s33, s29, 0"); A("s_mov_b32 s62, s40")
    else: A("s_mov_b32 s32, s8"); A("s_and_b32 s33, s9, 0xffff")
    if barpos == 0: A("s_barrier")
    TS(6)
    def adv():
        A(f"s_add_u32 s40, s40, {131072 if tp else 65536}")
        if rot: A("s_cmp_ge_u32 s40, s59"); A(f"s_cselect_b32 s48, {4*S*16384}, 0"); A("s_sub_u32 s40, s40, s48")
    def issue_tile(pace, tk=False):
        def ticket(i):
            if tk and i == TPOS:
                if lst: A("s_cmp_eq_u32 s38, 0")
                else: A("s_cmp_lg_u32 s43, 0")
                A(f"s_cbranch_scc1 L_notk{tk}")
                if wgt:
                    A("s_mov_b64 exec, 1"); A("ds_add_rtn_u32 v22, v23, v119"); A("s_mov_b64 exec, -1")
                    A("s_waitcnt lgkmcnt(0)"); A("v_readfirstlane_b32 s48, v22")
                    A("s_cmp_eq_u32 s48, 0"); A("s_cselect_b32 s56, 1, 0"); A(f"s_cbranch_scc0 L_notk{tk}")
                A("s_mov_b32 s58, 1"); A(f"s_atomic_add s58, s[26:27], {'s38' if lst else 's56' if F else 's57'} glc")
                LB(f"L_notk{tk}")
        if lst and tk == 1: A("s_mov_b32 m0, s59"); A("s_add_u32 s59, s59, 1"); A("v_writelane_b32 v21, s40, m0")
        A("s_mov_b32 m0, s41")
        for i in range(4):
            ticket(i); A(f"s_waitcnt vmcnt({pace})"); A(f"buffer_load_dwordx4 v{2+i}, s[28:31], s40 offen offset:{i*1024} {kv_flags} lds")
        A("s_add_u32 m0, s41, 4096")
        for i in range(4):
            ticket(4 + i); A(f"s_waitcnt vmcnt({pace})"); A(f"buffer_load_dwordx4 v{2+i}, s[32:35], s40 offen offset:{i*1024} {kv_flags} lds")
        ticket(8)
        adv()
    LB("L_fill")
    issue_tile(PACE0)
    A("s_xor_b32 s41, s41, s42"); A("s_xor_b32 s42, s42, 0x4000")
    A("s_cmp_lg_u32 s44, 4"); A("s_cbranch_scc1 L_nosig")
    if barpos == 1: A("s_barrier")
    A("s_waitcnt vmcnt(8)"); A("v_mov_b32 v22, 1"); A("s_mov_b64 exec, 1")
    A(f"ds_add_u32 v1, v22 offset:{WQC - CNT}"); A("s_mov_b64 exec, -1")
    LB("L_nosig")
    A("s_sub_u32 s44, s44, 1"); A("s_cmp_lg_u32 s44, 0"); A("s_cbranch_scc1 L_fill")
    if hmove:
        A("s_branch L_filled"); LB("L_hentry"); hentry(); LB("L_filled")
    TS(1)
    A("s_lshl_b32 s46, s36, 24"); A("s_lshl_b32 s47, s3, 12"); A("s_add_u32 s46, s46, s47"); A(f"s_add_u32 s46, s46, {4*S*16384}")
    if wgt:
        assert not F and D + 2 <= 256
        A("s_lshl_b32 s57, s36, 10"); A(f"s_add_u32 s57, s57, {POOL}")
        A("s_mov_b32 s56, 0")
    else:
        A("s_lshl_b32 s57, s36, 2"); A("s_add_u32 s57, s57, s3"); A("s_lshl_b32 s57, s57, 8"); A(f"s_add_u32 s57, s57, {POOL}")
    A("s_mov_b32 s58, 0")
    if F:
        A("s_and_b32 s56, s2, 7"); A("s_lshl_b32 s47, s36, 3"); A("s_add_u32 s56, s56, s47")
        A("s_lshl_b32 s59, s56, 21"); A("s_lshl_b32 s47, s3, 12"); A("s_add_u32 s59, s59, s47"); A(f"s_add_u32 s59, s59, {4*F*16384}")
        A("s_lshl_b32 s56, s56, 2"); A("s_add_u32 s56, s56, s3"); A("s_lshl_b32 s56, s56, 7"); A(f"s_add_u32 s56, s56, {PPOOL}")
    C("addresses of the final merge")
    if tp: A("s_lshl_b32 s47, s3, 15")
    else: A("s_lshl_b32 s47, s3, 11"); A(f"s_add_u32 s47, s47, {SP}")
    A("v_lshlrev_b32 v122, 9, v21"); A("v_lshl_add_u32 v122, v20, 4, v122"); A("v_add_u32 v122, s47, v122")
    A("s_lshl_b32 s47, s3, 5"); A(f"s_add_u32 s47, s47, {SML}")
    A("v_lshl_add_u32 v123, v21, 3, s47")
    A(f"v_lshlrev_b32 v124, 5, v0")
    if not tp: A(f"v_add_u32 v124, {SP}, v124")
    A(f"v_lshlrev_b32 v125, 3, v20"); A(f"v_add_u32 v125, {SML}, v125")
    A("s_lshl_b32 s47, s36, 15"); A("s_lshl_b32 s48, s38, 8"); A("s_add_u32 s47, s47, s48"); A(f"s_add_u32 s47, s47, {PART}")
    A("v_lshlrev_b32 v126, 13, v20"); A("v_lshl_add_u32 v126, v21, 4, v126"); A("v_add_u32 v126, s47, v126")
    A("s_lshl_b32 s47, s36, 12"); A("s_lshl_b32 s48, s38, 7"); A("s_add_u32 s47, s47, s48"); A(f"s_add_u32 s47, s47, {ML}")
    A(f"v_lshl_add_u32 v127, v20, {4 if mlt else 3}, s47")
    A(f"v_mov_b32 v1, {CNT}"); A("v_mov_b32 v119, 1")
    A(f"s_mov_b32 s43, {(NK0 if lst else F if F else S) - 4}")
    if SKW or SKF:
        A("s_mov_b32 s62, 0"); A("s_cmp_lt_u32 s37, 15"); A(f"s_cselect_b32 s62, {SKF}, s62"); A("s_cmp_lt_u32 s37, 8"); A(f"s_cselect_b32 s62, {SKW}, s62")
    A("v_lshlrev_b32 v23, 1, v21"); A("v_and_b32 v23, 15, v23"); A("v_lshrrev_b32 v24, 3, v21"); A("v_or_b32 v23, v23, v24")
    A("v_and_b32 v24, 1, v20"); A("v_lshlrev_b32 v24, 1, v24"); A("v_lshrrev_b32 v25, 1, v20"); A("v_or_b32 v24, v24, v25")
    A("v_xor_b32 v23, v23, v24"); A("v_lshlrev_b32 v23, 4, v23"); A("v_lshl_add_u32 v23, v21, 8, v23")
    A("v_add_u32 v6, s41, v23")
    for s in range(1, 4): A(f"v_xor_b32 v{6+s}, {s << 6}, v6")
    A("v_lshrrev_b32 v25, 2, v0")
    A("v_lshlrev_b32 v26, 1, v25"); A("v_and_b32 v26, 15, v26"); A("v_lshrrev_b32 v27, 3, v25"); A("v_or_b32 v26, v26, v27")
    A("v_bfe_u32 v27, v0, 1, 1"); A("v_xor_b32 v26, v26, v27"); A("v_lshlrev_b32 v26, 4, v26")
    A("v_lshl_add_u32 v26, v25, 8, v26")
    A("v_and_b32 v27, 1, v0"); A("v_lshl_add_u32 v26, v27, 3, v26")
    if tp: A("v_add_u32 v10, s41, v26")
    else: A("s_add_u32 s44, s41, 4096"); A("v_add_u32 v10, s44, v26")
    for t in range(1, 8): A(f"v_xor_b32 v{10+t}, {t << 5}, v10")
    A("v_and_b32 v25, 3, v21"); A("v_lshlrev_b32 v25, 8, v25"); A("v_lshl_add_u32 v25, v24, 4, v25"); A(f"v_add_u32 v108, {QL}, v25")
    if tp:
        A("v_and_b32 v23, 3, v21"); A("v_lshlrev_b32 v23, 5, v23"); A("v_lshl_add_u32 v23, v20, 3, v23")
        A(f"s_mul_i32 s47, s3, {CAP * 256}"); A(f"s_add_u32 s47, s47, {WQL}"); A("v_add_u32 v23, s47, v23")
        A("s_mov_b32 s47, 0")
        if lst:
            A("s_sub_u32 s48, s37, 8"); A("s_cmp_lt_u32 s48, 7"); A(f"s_cselect_b32 s80, {VR}, 0"); A(f"s_cselect_b32 s81, {KS}, 0")
            for k in range(4): A(f"v_writelane_b32 v21, s62, {k}"); A("s_add_u32 s62, s62, 131072")
            A("s_mov_b32 s59, 4"); A("s_movk_i32 s62, 0x1000"); A("s_mov_b32 s36, s80"); A("s_mov_b32 s37, 0"); A("s_mov_b32 s38, 0")
    if wgt: A(f"v_mov_b32 v23, {EL}")
    A("v_mov_b32 v18, 0xff7fffff"); A("v_mov_b32 v19, 0x7f7fffff"); A("v_mov_b32 v109, 0")
    for k in range(32): A(f"v_mov_b32 v{76+k}, 0")
    A(f"s_mov_b32 s45, {L2E}"); A("s_mov_b32 s44, 4"); A("s_mov_b32 s54, 0x2000"); A("s_mov_b32 s55, 4")
    if ts: A("s_mov_b32 s51, 0")
    A(f"v_mov_b32 v116, {QRDY}")
    if fk: A("s_mov_b32 s62, s39")
    A(f"s_mul_i32 s39, s39, {IU}"); A(f"s_mul_i32 s52, s3, {IW}"); A("s_add_u32 s39, s39, s52"); A("s_mov_b32 s52, 0"); A(f"s_mul_i32 s53, s3, {VW}"); A(f"s_add_u32 s53, s53, {VSTART}")
    if noh or nowait: A("s_branch L_qok")
    C("while q is not there yet, keep streaming: park up to NV more tiles in registers")
    for k in range(NV):
        A("ds_read_b32 v117, v116"); A("s_waitcnt lgkmcnt(0)"); A("v_readfirstlane_b32 s48, v117")
        A("s_cmp_lg_u32 s48, 0"); A("s_cbranch_scc1 L_qok")
        for i in range(8):
            A(f"s_waitcnt vmcnt({PACE0})"); A(f"buffer_load_dwordx4 {vr(128+32*k+4*i,4)}, v{2+(i&3)}, s[{28 if i < 4 else 32}:{31 if i < 4 else 35}], s40 offen offset:{(i&3)*1024} {kv_flags}")
        if lst: A(f"v_writelane_b32 v21, s40, {4 + k}"); A("s_add_u32 s59, s59, 1")
        adv(); A("s_add_u32 s52, s52, 1"); A("s_sub_u32 s43, s43, 1")
    LB("L_qwait")
    A("ds_read_b32 v117, v116"); A("s_waitcnt lgkmcnt(0)"); A("v_readfirstlane_b32 s48, v117")
    A("s_cmp_lg_u32 s48, 0"); A("s_cbranch_scc1 L_qok"); A("s_sleep 1"); A("s_branch L_qwait")
    LB("L_qok")
    if tp: A("s_add_u32 s56, s52, 4")
    if ts: A("s_add_u32 s51, s51, s52"); A("s_mov_b32 s77, s52")
    TS(2)
    if mlt: A(f"ds_read_b32 v22, v1 offset:{TAGL - CNT}")
    for s in range(4): A(f"ds_read_b128 {vr(24+4*s,4)}, v108 offset:{64*s}")
    if ilv:
        def kload(i, pace=PACE): A(f"s_waitcnt vmcnt({pace})"); A(f"buffer_load_dwordx4 v{2+i}, s[28:31], s40 offen offset:{i*1024} {kv_flags} lds")
        def kblock(lo, n, lbl):
            if n:
                A("s_bitcmp1_b32 s62, 0"); A(f"s_cbranch_scc0 {lbl}")
                if lo == 0: A("s_mov_b32 m0, s41")
                for i in range(lo, lo + n): kload(i)
                LB(lbl)
        A("s_mov_b32 s55, 3"); A("s_mov_b32 s56, -16")
        LB("L_tile")
        A("s_mov_b32 s62, 0")
        A("s_cmp_gt_u32 s44, 1"); A("s_cbranch_scc1 L_dec")
        C("last tile: start on K while V is still arriving")
        A("s_waitcnt vmcnt(4)")
        TS(3); TC(0)
        for s in range(4): A(f"ds_read_b128 {vr(40+4*s,4)}, v{6+s}")
        for s in range(4):
            A(f"s_waitcnt lgkmcnt({3-s})")
            A(f"v_mfma_f32_16x16x32_bf16 v[72:75], {vr(40+4*s,4)}, {vr(24+4*s,4)}, {'0' if s == 0 else 'v[72:75]'}")
        A("s_branch L_sm")
        LB("L_empty")
        if NV:
            A("s_cmp_eq_u32 s52, 0"); A("s_cbranch_scc1 L_empty2")
            A("s_waitcnt vmcnt(0)"); A("s_mov_b32 s62, 4"); A("s_branch L_go")
            LB("L_empty2")
        if NV:
            A("s_sub_u32 s48, s39, s56"); A("s_cmp_gt_u32 s48, 2"); A("s_cbranch_scc1 L_empty3")
            A("s_waitcnt vmcnt(0)")
            LB("L_empty3")
        A(f"ds_write_b32 v1, v119 offset:{GATE - CNT}"); A("s_mov_b32 s55, 0")
        if ts: A("s_add_u32 s79, s51, 4"); TS(14)
        A("s_branch L_go")
        LB("L_dec")
        C("s62: what refills the free slot while this tile is computed: 1 loads, 3 loads with the second half unthrottled, 4 a parked tile, 0 nothing")
        C("s55: wanted number of tiles in the ring (3 at first, 2 later so that nothing waits unprocessed at the end, 0 when the pool is empty)")
        A("s_waitcnt vmcnt(8) lgkmcnt(0)")
        A("s_add_u32 s39, s39, 1")
        A("s_cmp_gt_u32 s44, s55"); A("s_cbranch_scc1 L_go")
        A("s_mov_b32 s63, 1")
        if NV:
            A("s_cmp_eq_u32 s52, 0"); A("s_cbranch_scc1 L_np")
            A("s_sub_u32 s53, s53, 1"); A("s_cmp_eq_u32 s53, 0"); A("s_cselect_b32 s62, 4, 0"); A("s_cbranch_scc1 L_go")
            A("s_cmp_eq_u32 s53, 1"); A(f"s_cselect_b32 s63, {3 if burst else 1}, 1"); A("s_branch L_src")
            LB("L_np")
        A(f"s_cmp_lt_u32 s39, {I2}"); A("s_cbranch_scc1 L_src")
        A("s_cmp_eq_u32 s55, 3"); A(f"s_cselect_b32 s63, {3 if burst else 1}, 1"); A("s_mov_b32 s55, 2")
        LB("L_src")
        A("s_cmp_eq_u32 s43, 0"); A("s_cbranch_scc1 L_dyn")
        A("s_sub_u32 s43, s43, 1"); A("s_mov_b32 s62, s63"); A("s_branch L_go")
        LB("L_dyn")
        A(f"s_cmp_ge_u32 s58, {D}"); A("s_cbranch_scc1 L_empty")
        A("s_and_b32 s49, s58, 7"); A("s_lshr_b32 s50, s58, 3")
        A("s_lshl_b32 s49, s49, 21"); A("s_lshl_b32 s50, s50, 14"); A("s_add_u32 s40, s46, s49"); A("s_add_u32 s40, s40, s50")
        A(f"s_cmp_ge_u32 s58, {D - XB}"); A("s_cselect_b32 s62, 3, s63")
        C("a wave that got one of the last rows does not ask again (the others still drain the counter)")
        A(f"s_cmp_ge_u32 s58, {D - XS}"); A("s_cselect_b32 s62, 11, s62"); A(f"s_cselect_b32 s58, {D}, s58")
        LB("L_go")
        for s in range(4): A(f"ds_read_b128 {vr(40+4*s,4)}, v{6+s}")
        for t in range(8): A(f"ds_read_b64_tr_b16 {vr(56+2*t,2)}, v{10+t}")
        kblock(0, KP[0], "L_k0")
        for s in range(4):
            A(f"s_waitcnt lgkmcnt({11-s})")
            A(f"v_mfma_f32_16x16x32_bf16 v[72:75], {vr(40+4*s,4)}, {vr(24+4*s,4)}, {'0' if s == 0 else 'v[72:75]'}")
        LB("L_sm")
        for k in range(12): A(f"v_xor_b32 v{6+k}, s54, v{6+k}")
        kblock(KP[0], KP[1], "L_k1")
        A("v_cvt_pk_bf16_f32 v110, v72, v73"); A("v_cvt_pk_bf16_f32 v111, v74, v75")
        unpack(112, 110); unpack(114, 111)
        for k in range(4): A(f"v_mul_f32 v{112+k}, {SCALE:#x}, v{112+k}")
        A("v_cvt_pk_bf16_f32 v110, v112, v113"); A("v_cvt_pk_bf16_f32 v111, v114, v115")
        unpack(112, 110); unpack(114, 111)
        A("v_max3_f32 v116, v112, v113, v114"); A("v_max_f32 v117, v115, v18")
        for k in range(4): A(f"v_fma_f32 v{72+k}, v{112+k}, s45, v19")
        A("v_max_f32 v110, v116, v117"); A("v_max_f32 v111, v116, v117")
        A("v_cmp_gt_f32 vcc, v110, v18")
        A("v_mov_b32 v118, 1.0")
        A("s_cbranch_vccnz L_newmax")
        for k in range(4): A(f"v_exp_f32 v{112+k}, v{72+k}")
        A("s_nop 0")
        LB("L_nors")
        A("v_add_f32 v116, v112, v113"); A("v_add_f32 v117, v114, v115")
        A("v_cvt_pk_bf16_f32 v120, v112, v113"); A("v_cvt_pk_bf16_f32 v121, v114, v115")
        A("v_add_f32 v116, v116, v117"); A("v_fma_f32 v109, v109, v118, v116")
        A("s_cmp_gt_u32 s44, 1"); A("s_cbranch_scc1 L_pv")
        for k in range(8): A(f"v_xor_b32 v{10+k}, s54, v{10+k}")
        TC(1)
        A("s_waitcnt vmcnt(0)")
        TC(2)
        for t in range(8): A(f"ds_read_b64_tr_b16 {vr(56+2*t,2)}, v{10+t}")
        for t in range(8):
            A(f"s_waitcnt lgkmcnt({7-t})"); A(f"v_mfma_f32_16x16x16_bf16 {vr(76+4*t,4)}, {vr(56+2*t,2)}, v[120:121], {vr(76+4*t,4)}")
        A("s_branch L_fin")
        LB("L_pv")
        kblock(KP[0] + KP[1], KP[2], "L_k2")
        A("s_waitcnt lgkmcnt(0)")
        for t in range(8): A(f"v_mfma_f32_16x16x16_bf16 {vr(76+4*t,4)}, {vr(56+2*t,2)}, v[120:121], {vr(76+4*t,4)}")
        A("s_xor_b32 s54, s54, 0x4000")
        A("s_bitcmp1_b32 s62, 0"); A("s_cbranch_scc1 L_rest")
        A("s_cmp_lg_u32 s62, 0"); A("s_cbranch_scc1 L_park")
        A("s_sub_u32 s44, s44, 1"); A("s_branch L_tile")
        LB("L_rest")
        if sum(KP) == 0: A("s_mov_b32 m0, s41")
        for i in range(sum(KP), 4): kload(i)
        A("s_lshr_b32 s48, s62, 3"); A("s_or_b32 s48, s48, s43"); A("s_cbranch_scc1 L_notk")
        A("s_mov_b32 s58, 1"); A("s_atomic_add s58, s[26:27], s57 glc")
        LB("L_notk")
        A("s_add_u32 m0, s41, 4096")
        A("s_bitcmp1_b32 s62, 1"); A("s_cbranch_scc1 L_vb")
        for i in range(4): A(f"s_waitcnt vmcnt({PACE})"); A(f"buffer_load_dwordx4 v{2+i}, s[32:35], s40 offen offset:{i*1024} {kv_flags} lds")
        LB("L_issued")
        adv()
        LB("L_slot")
        A("s_xor_b32 s41, s41, s42"); A("s_xor_b32 s42, s42, 0x4000")
        if prog:
            A("s_bitcmp1_b32 s62, 0"); A("s_addc_u32 s51, s51, 0")
            for k, r in enumerate((4, 8, 12, 16, 20, 24, 28)):
                A(f"s_cmp_eq_u32 s51, {r}"); A(f"s_cbranch_scc0 L_pg{k}"); TS(7 + k); LB(f"L_pg{k}")
        A("s_branch L_tile")
        LB("L_vb")
        for i in range(4): A(f"buffer_load_dwordx4 v{2+i}, s[32:35], s40 offen offset:{i*1024} {kv_flags} lds")
        A("s_branch L_issued")
        LB("L_park")
        C("a parked tile takes the free slot")
        A(f"s_mov_b32 s53, {VSTEP + 1}"); A("s_sub_u32 s52, s52, 1"); A("s_mov_b32 s56, s39")
        A("v_lshl_add_u32 v116, v0, 4, s41")
        for k in range(NV):
            if k < NV - 1: A(f"s_cmp_lg_u32 s52, {k}"); A(f"s_cbranch_scc1 L_pk{k}")
            for i in range(8): A(f"ds_write_b128 v116, {vr(128+32*k+4*i,4)} offset:{1024*i}")
            A("s_branch L_slot")
            if k < NV - 1: LB(f"L_pk{k}")
        if not NV: A("s_branch L_slot")
    else:
        if align: L.append(f".p2align {align}")
        LB("L_tile")
        A("s_waitcnt vmcnt(24)")
        A("s_cmp_gt_u32 s44, 3"); A("s_cbranch_scc1 L_go")
        A("s_waitcnt vmcnt(16)"); A("s_cmp_gt_u32 s44, 2"); A("s_cbranch_scc1 L_go")
        A("s_waitcnt vmcnt(8)"); A("s_cmp_gt_u32 s44, 1"); A("s_cbranch_scc1 L_go")
        if ksplit:
            if tp:
                if lst: A("s_lshl_b32 s48, s62, 1"); A("s_cmp_ge_u32 s47, s48")
                else: A(f"s_cmp_ge_u32 s47, {2*NK}")
                A("s_cbranch_scc1 L_last"); A("s_waitcnt vmcnt(0)"); A("s_branch L_go"); LB("L_last")
            C("last tile: start on K while V is still arriving")
            A("s_waitcnt vmcnt(4)")
            TS(3); TC(0)
            for s in range(4): A(f"ds_read_b128 {vr(40+4*s,4)}, v{6+s}")
            for s in range(4):
                A(f"s_waitcnt lgkmcnt({3-s})")
                A(f"v_mfma_f32_16x16x32_bf16 v[72:75], {vr(40+4*s,4)}, {vr(24+4*s,4)}, {'0' if s == 0 else 'v[72:75]'}")
            A("s_branch L_sm")
        else:
            A("s_waitcnt vmcnt(0)")
            TS(3)
        LB("L_go")
        if tp:
            C("ring entries: two K tiles each (scores kept in LDS), then the matching V tiles, then K+V tiles from the pool")
            A("s_mov_b32 s63, s47"); A("s_add_u32 s47, s47, 1"); A("s_cmp_eq_u32 s47, 4"); A("s_cselect_b32 s47, s56, s47")
            if lst:
                A("s_sub_u32 s48, s63, s62"); A("s_cbranch_scc1 L_kk")
                A("s_cmp_lt_u32 s48, s62"); A("s_cbranch_scc1 L_vv")
            else:
                A(f"s_cmp_lt_u32 s63, {NK}"); A("s_cbranch_scc1 L_kk")
                A(f"s_sub_u32 s48, s63, {NK}"); A(f"s_cmp_lt_u32 s63, {2*NK}"); A("s_cbranch_scc1 L_vv")
        if nocomp: A("s_waitcnt lgkmcnt(0)"); A("s_branch L_skipc")
        for s in range(4): A(f"ds_read_b128 {vr(40+4*s,4)}, v{6+s}")
        for t in range(8): A(f"ds_read_b64_tr_b16 {vr(56+2*t,2)}, v{10+t}{' offset:4096' if tp else ''}")
        for s in range(4):
            A(f"s_waitcnt lgkmcnt({11-s})")
            A(f"v_mfma_f32_16x16x32_bf16 v[72:75], {vr(40+4*s,4)}, {vr(24+4*s,4)}, {'0' if s == 0 else 'v[72:75]'}")
        LB("L_sm")
        for k in range(12): A(f"v_xor_b32 v{6+k}, s54, v{6+k}")
        A("v_cvt_pk_bf16_f32 v110, v72, v73"); A("v_cvt_pk_bf16_f32 v111, v74, v75")
        unpack(112, 110); unpack(114, 111)
        for k in range(4): A(f"v_mul_f32 v{112+k}, {SCALE:#x}, v{112+k}")
        A("v_cvt_pk_bf16_f32 v110, v112, v113"); A("v_cvt_pk_bf16_f32 v111, v114, v115")
        unpack(112, 110); unpack(114, 111)
        if lazy:
            A("v_max3_f32 v116, v112, v113, v114"); A("v_max_f32 v117, v115, v18")
            for k in range(4): A(f"v_fma_f32 v{72+k}, v{112+k}, s45, v19")
            A("v_max_f32 v110, v116, v117"); A("v_max_f32 v111, v116, v117")
            A("v_cmp_gt_f32 vcc, v110, v18")
            A("v_mov_b32 v118, 1.0")
            A("s_cbranch_vccnz L_newmax")
            for k in range(4): A(f"v_exp_f32 v{112+k}, v{72+k}")
            A("s_nop 0")
        else:
            A("v_max3_f32 v116, v112, v113, v114"); A("v_max3_f32 v116, v116, v115, v18")
            swap_red("max_f32", [116], [117], 16); swap_red("max_f32", [116], [117], 32)
            A(f"v_mul_f32 v117, {NL2E:#x}, v116"); A("v_floor_f32 v117, v117")
            A("v_cmp_lt_f32 vcc, v117, v19")
            A("v_sub_f32 v118, v117, v19")
            for k in range(4): A(f"v_fma_f32 v{112+k}, v{112+k}, s45, v117")
            A("v_exp_f32 v118, v118")
            for k in range(4): A(f"v_exp_f32 v{112+k}, v{112+k}")
            A("v_mov_b32 v18, v116"); A("v_mov_b32 v19, v117")
            A("s_cbranch_vccz L_nors")
            for k in range(16): A(f"v_pk_mul_f32 {vr(76+2*k,2)}, {vr(76+2*k,2)}, v[118:119] op_sel_hi:[1,0]")
        LB("L_nors")
        A("v_add_f32 v116, v112, v113"); A("v_add_f32 v117, v114, v115")
        A("v_cvt_pk_bf16_f32 v120, v112, v113"); A("v_cvt_pk_bf16_f32 v121, v114, v115")
        A("v_add_f32 v116, v116, v117"); A("v_fma_f32 v109, v109, v118, v116")
        if ksplit:
            A("s_cmp_gt_u32 s44, 1"); A("s_cbranch_scc1 L_pv")
            for k in range(8): A(f"v_xor_b32 v{10+k}, s54, v{10+k}")
            TC(1)
            A("s_waitcnt vmcnt(0)")
            TC(2)
            for t in range(8): A(f"ds_read_b64_tr_b16 {vr(56+2*t,2)}, v{10+t}{' offset:4096' if tp else ''}")
            for t in range(8):
                A(f"s_waitcnt lgkmcnt({7-t})"); A(f"v_mfma_f32_16x16x16_bf16 {vr(76+4*t,4)}, {vr(56+2*t,2)}, v[120:121], {vr(76+4*t,4)}")
            A("s_branch L_fin")
            LB("L_pv")
        A("s_waitcnt lgkmcnt(0)")
        for t in range(8): A(f"v_mfma_f32_16x16x16_bf16 {vr(76+4*t,4)}, {vr(56+2*t,2)}, v[120:121], {vr(76+4*t,4)}")
        LB("L_skipc")
        if NV:
            A("s_cmp_eq_u32 s52, 0"); A("s_cbranch_scc1 L_nopark")
            if tp: A("s_cmp_ge_u32 s47, s62" if lst else f"s_cmp_ge_u32 s47, {NK}"); A("s_cbranch_scc1 L_park")
            A("s_sub_u32 s53, s53, 1"); A("s_cmp_lg_u32 s53, 0"); A("s_cbranch_scc1 L_nopark")
            LB("L_park")
            C("move a parked tile into the slot that just became free and run it")
            A(f"s_mov_b32 s53, {VSTEP + 1}"); A("s_sub_u32 s52, s52, 1")
            A("v_lshl_add_u32 v116, v0, 4, s41")
            A("s_waitcnt vmcnt(8)")
            for k in range(NV):
                if k < NV - 1: A(f"s_cmp_lg_u32 s52, {k}"); A(f"s_cbranch_scc1 L_pk{k}")
                for i in range(8): A(f"ds_write_b128 v116, {vr(128+32*k+4*i,4)} offset:{1024*i}")
                if k < NV - 1: A("s_branch L_pkd"); LB(f"L_pk{k}")
            LB("L_pkd")
            for k in range(12): A(f"v_xor_b32 v{6+k}, s54, v{6+k}")
            if tp: A("s_add_u32 s63, s52, 4"); A("s_branch L_kk")
            else: A("s_branch L_go")
            LB("L_nopark")
        A("s_xor_b32 s54, s54, 0x4000")
        C("s55: wanted number of tiles in the ring (4 at first, 2 later so that nothing waits unprocessed at the end, 0 when the pool is empty)")
        A("s_add_u32 s39, s39, 1")
        A(f"s_cmp_lt_u32 s39, {I1}"); A("s_cbranch_scc1 L_keep")
        A("s_cmp_lg_u32 s52, 0"); A("s_cbranch_scc1 L_keep")
        A(f"s_cmp_lt_u32 s39, {I2}"); A("s_cselect_b32 s48, 3, 2"); A("s_min_u32 s55, s55, s48")
        A("s_cmp_gt_u32 s44, s55"); A("s_cbranch_scc1 L_drain")
        LB("L_keep")
        if WTRIG:
            A(f"s_cmp_lg_u32 s43, {WTRIG}"); A("s_cbranch_scc1 L_notrig")
            A(f"ds_add_u32 v1, v119 offset:{WQC - CNT}")
            LB("L_notrig")
        if lst:
            C("s37: 0 own K rows, 1 K rows by ticket, 2 the V rows of all of those, 3 K+V rows by ticket; s38: counter to ask next (0: none)")
            A("s_cmp_eq_u32 s37, 3"); A("s_cbranch_scc1 L_dyn")
            A("s_cmp_eq_u32 s37, 2"); A("s_cbranch_scc1 L_vrow")
            A("s_cmp_eq_u32 s37, 1"); A("s_cbranch_scc1 L_krow")
            if KS:
                C("workgroups that also fetch weights fall behind: they jump a few rows to stay level with their neighbours and do those rows last")
                A(f"s_cmp_lg_u32 s59, {KT + 1}"); A("s_cbranch_scc1 L_nsk")
                A("s_mov_b32 s82, s40"); A("s_lshl_b32 s48, s81, 17"); A("s_add_u32 s40, s40, s48")
                LB("L_nsk")
                A("s_cmp_eq_u32 s43, s81"); A("s_cselect_b32 s40, s82, s40")
            A("s_sub_u32 s43, s43, 1"); A("s_cmp_lg_u32 s43, 0"); A("s_cbranch_scc1 L_issue")
            if NA: A("s_add_u32 s38, s57, 128")
            A("s_mov_b32 s37, 1"); A("s_branch L_issue")
            LB("L_krow")
            if NA:
                A(f"s_cmp_ge_u32 s58, {DA}"); A("s_cbranch_scc1 L_kend")
                A("s_and_b32 s49, s58, 7"); A("s_lshl_b32 s49, s49, 21"); A("s_add_u32 s40, s46, s49")
                A("s_lshr_b32 s49, s58, 5"); A("s_lshl_b32 s49, s49, 17"); A("s_add_u32 s40, s40, s49")
                A("s_bfe_u32 s49, s58, 0x20003"); A("s_lshl_b32 s49, s49, 14"); A("s_add_u32 s40, s40, s49"); A(f"s_sub_u32 s40, s40, {8 * NA * 16384}")
                A(f"s_cmp_ge_u32 s58, {DA - 16}"); A("s_cbranch_scc1 L_klast")
                A(f"s_cmp_lt_u32 s59, {CAP - 1}"); A("s_cbranch_scc1 L_issue")
                LB("L_klast")
                A("s_mov_b32 s38, 0"); A(f"s_mov_b32 s58, {DA}"); A("s_branch L_issue")
            LB("L_kend")
            A("s_mov_b32 s62, s59"); A("s_mov_b32 s43, s59"); A("s_mov_b32 s37, 2"); A("s_mov_b32 s38, 0")
            A("s_mov_b32 s28, s8"); A("s_and_b32 s29, s9, 0xffff"); A("s_add_u32 s32, s8, 0x10000"); A("s_addc_u32 s33, s29, 0")
            LB("L_vrow")
            A("v_readlane_b32 s40, v21, s36"); A("s_add_u32 s36, s36, 1")
            A("s_cmp_eq_u32 s36, s62"); A("s_cselect_b32 s36, 0, s36")
            A("s_sub_u32 s43, s43, 1"); A("s_cmp_lg_u32 s43, 0"); A("s_cbranch_scc1 L_issue")
            A("s_mov_b32 s38, s57"); A("s_mov_b32 s37, 3"); A("s_branch L_issue")
        else:
            A("s_cmp_eq_u32 s43, 0"); A("s_cbranch_scc1 L_dyn")
            if SKW or SKF:
                C("workgroups that also fetch weights fall behind: they jump a few rows to stay level with their neighbours and do those rows last")
                A(f"s_cmp_lg_u32 s43, {SKT}"); A("s_cbranch_scc1 L_nsk")
                A("s_mov_b32 s63, s40"); A("s_lshl_b32 s48, s62, 16"); A("s_add_u32 s40, s40, s48")
                LB("L_nsk")
                A("s_cmp_eq_u32 s43, s62"); A("s_cselect_b32 s40, s63, s40")
            if tp:
                A(f"s_cmp_lg_u32 s43, {NK}"); A("s_cbranch_scc1 L_nosw")
                A("s_mov_b32 s28, s8"); A("s_and_b32 s29, s9, 0xffff"); A("s_add_u32 s32, s8, 0x10000"); A("s_addc_u32 s33, s29, 0"); A("s_mov_b32 s40, s62")
                LB("L_nosw")
            A("s_sub_u32 s43, s43, 1"); A("s_branch L_issue")
        LB("L_dyn")
        if tp: A("s_mov_b32 s28, s6"); A("s_and_b32 s29, s7, 0xffff"); A("s_mov_b32 s32, s8"); A("s_and_b32 s33, s9, 0xffff")
        if F:
            C("rows of this page are handed out in order to its four workgroups; each wave's last page ticket is one of the last four")
            A("s_cmp_eq_u32 s56, s57"); A("s_cbranch_scc1 L_head")
            if fk: A("s_mov_b32 s58, s62"); A("s_add_u32 s62, s62, 4")
            A("s_lshl_b32 s50, s58, 14"); A("s_add_u32 s40, s59, s50")
            A(f"s_cmp_ge_u32 s58, {P - 4}"); A("s_cselect_b32 s56, s57, s56")
            A("s_branch L_issue")
            LB("L_head")
        if wgt:
            C("one row of four tiles per ticket: the first wave to need it asks, the others read its answer")
            A("s_cmp_eq_u32 s56, 0"); A("s_cbranch_scc1 L_rdq")
            A("v_mov_b32 v22, s58"); A(f"ds_write_b32 v23, v22 offset:{TQ - EL}"); A("s_branch L_gotq")
            LB("L_rdq")
            A(f"ds_read_b32 v22, v23 offset:{TQ - EL}"); A("s_waitcnt lgkmcnt(0)"); A("v_readfirstlane_b32 s58, v22")
            A("s_cmp_eq_u32 s58, -1"); A("s_cbranch_scc1 L_rdq")
            LB("L_gotq")
        A(f"s_cmp_ge_u32 s58, {D}"); A("s_cbranch_scc1 L_empty")
        if wgt: A("v_add_u32 v23, 4, v23")
        A("s_and_b32 s49, s58, 7"); A("s_lshr_b32 s50, s58, 3")
        A("s_lshl_b32 s49, s49, 21"); A("s_lshl_b32 s50, s50, 14"); A("s_add_u32 s40, s46, s49"); A("s_add_u32 s40, s40, s50")
        if XB:
            A(f"s_cmp_lt_u32 s58, {D - XB}"); A("s_cbranch_scc1 L_issue")
            C("last round of the pool: others have stopped, do not hold these loads back")
            if XS:
                C("a wave that got one of the last XS rows does not ask again (the others still drain the counter)")
                A(f"s_cmp_ge_u32 s58, {D - XS}")
                A("s_cselect_b32 s38, 0, s38" if lst else "s_cselect_b32 s43, 1, 0"); A(f"s_cselect_b32 s58, {D}, s58")
            issue_tile(PACEB, 2)
            if XS: A("s_mov_b32 s43, 0")
            A("s_branch L_issued")
        LB("L_issue")
        issue_tile(PACE, 1)
        LB("L_issued")
        A("s_xor_b32 s41, s41, s42"); A("s_xor_b32 s42, s42, 0x4000")
        if prog:
            A("s_add_u32 s51, s51, 1")
            for k, r in enumerate((4, 8, 12, 16, 20, 24, 28)):
                A(f"s_cmp_eq_u32 s51, {r}"); A(f"s_cbranch_scc0 L_pg{k}"); TS(7 + k); LB(f"L_pg{k}")
        A("s_branch L_tile")
        LB("L_empty")
        if NV:
            A("s_cmp_eq_u32 s52, 0"); A("s_cbranch_scc1 L_empty2")
            A("s_xor_b32 s54, s54, 0x4000"); A("s_branch L_park")
            LB("L_empty2")
        A(f"ds_write_b32 v1, v119 offset:{GATE - CNT}"); A("s_mov_b32 s55, 0")
        if ts: A("s_add_u32 s79, s51, 4"); TS(14)
        LB("L_drain")
        A("s_sub_u32 s44, s44, 1"); A("s_cmp_lg_u32 s44, 0"); A("s_cbranch_scc1 L_tile")
    LB("L_fin")
    TS(4); TC(3)
    C("epilogue: merge the four waves' partial results, publish")
    A("v_mov_b32 v116, v109"); A("v_mov_b32 v108, v19"); A("s_nop 0")
    A("v_permlane16_swap_b32 v109, v116"); A("v_add_f32 v117, v109, v116"); A("v_add_f32 v109, v109, v116")
    A("s_mov_b32 exec_lo, 0x000f000f"); A("s_mov_b32 exec_hi, 0x000f000f")
    for t in range(8): A(f"ds_write_b128 v122, {vr(76+4*t,4)} offset:{64*t}")
    A("s_mov_b64 exec, -1")
    A("v_permlane32_swap_b32 v109, v117"); A("v_add_f32 v109, v109, v117")
    A("s_mov_b64 exec, 15")
    A("ds_write_b64 v123, v[108:109]")
    A("s_mov_b64 exec, 1")
    A("ds_add_rtn_u32 v111, v1, v119")
    A("s_mov_b64 exec, -1")
    A("s_waitcnt lgkmcnt(0)")
    TC(4)
    A("v_readfirstlane_b32 s44, v111")
    if fine: A("s_mov_b32 s79, s44")
    A("s_cmp_eq_u32 s44, 3"); A("s_cbranch_scc0 L_sdone")
    if mlt: A("v_mov_b32 v33, v22"); A("v_mov_b32 v35, v22")
    for w in range(4): A(f"ds_read_b64 {vr(24+2*w,2)}, v125 offset:{32*w}")
    for w in range(4):
        if tp:
            if w == 2: A("v_add_u32 v124, 0x10000, v124")
            A(f"ds_read_b128 {vr(40+8*w,4)}, v124 offset:{32768*(w&1)}"); A(f"ds_read_b128 {vr(44+8*w,4)}, v124 offset:{32768*(w&1)+16}")
        else:
            A(f"ds_read_b128 {vr(40+8*w,4)}, v124 offset:{2048*w}"); A(f"ds_read_b128 {vr(44+8*w,4)}, v124 offset:{2048*w+16}")
    A("s_waitcnt lgkmcnt(8)")
    A("v_min3_f32 v32, v24, v26, v28"); A("v_min_f32 v32, v32, v30")
    for w in range(4): A(f"v_sub_f32 v{24+2*w}, v32, v{24+2*w}")
    for w in range(4): A(f"v_exp_f32 v{24+2*w}, v{24+2*w}")
    A("s_waitcnt lgkmcnt(6)")
    for k in range(4): A(f"v_pk_mul_f32 {vr(40+2*k,2)}, {vr(40+2*k,2)}, v[24:25] op_sel_hi:[1,0]")
    for w in range(1, 4):
        A(f"s_waitcnt lgkmcnt({6 - 2*w})")
        for k in range(4): A(f"v_pk_fma_f32 {vr(40+2*k,2)}, {vr(40+8*w+2*k,2)}, {vr(24+2*w,2)}, {vr(40+2*k,2)} op_sel_hi:[1,0,1]")
    for k in range(4): A(f"v_cvt_pk_bf16_f32 v{40+k}, v{40+2*k}, v{41+2*k}")
    A("global_store_dwordx4 v126, v[40:43], s[26:27] sc1")
    lr = 34 if mlt else 33
    A(f"v_mul_f32 v{lr}, v24, v25")
    for w in range(1, 4): A(f"v_fmac_f32 v{lr}, v{24+2*w}, v{25+2*w}")
    A("s_mov_b32 exec_lo, 0x00010001"); A("s_mov_b32 exec_hi, 0x00010001")
    if mlt: A("global_store_dwordx4 v127, v[32:35], s[26:27] sc1")
    else: A("global_store_dwordx2 v127, v[32:33], s[26:27] sc1")
    A("v_mov_b32 v117, 2"); A(f"ds_write_b32 v1, v117 offset:{GATE - CNT}")
    LB("L_sdone")
    TC(5); TC_fin(6)
    TS(5)
    TS_flush()
    A("s_endpgm")

    if lazy:
        LB("L_newmax")
        C("some row has a new maximum: agree on it across the four key groups, rescale")
        A("v_permlane16_swap_b32 v110, v111"); A("v_max_f32 v116, v110, v111"); A("v_max_f32 v117, v110, v111"); A("s_nop 1")
        A("v_permlane32_swap_b32 v116, v117"); A("v_max_f32 v18, v116, v117")
        A(f"v_mul_f32 v117, {NL2E:#x}, v18"); A("v_floor_f32 v117, v117")
        A("v_cmp_lt_f32 vcc, v117, v19")
        A("v_sub_f32 v118, v117, v19")
        for k in range(4): A(f"v_fma_f32 v{112+k}, v{112+k}, s45, v117")
        A("v_exp_f32 v118, v118")
        for k in range(4): A(f"v_exp_f32 v{112+k}, v{112+k}")
        A("v_mov_b32 v19, v117")
        A("s_cbranch_vccz L_nors")
        for k in range(16): A(f"v_pk_mul_f32 {vr(76+2*k,2)}, {vr(76+2*k,2)}, v[118:119] op_sel_hi:[1,0]")
        A("s_branch L_nors")
    if tp:
        LB("L_kk")
        for h in range(2):
            for q in range(4): A(f"ds_read_b128 {vr(40+16*h+4*q,4)}, v{6+q} offset:{4096*h}")
        A("s_lshl_b32 s48, s63, 8"); A("v_add_u32 v116, s48, v23")
        for q in range(4):
            A(f"s_waitcnt lgkmcnt({7-q})")
            A(f"v_mfma_f32_16x16x32_bf16 v[72:75], {vr(40+4*q,4)}, {vr(24+4*q,4)}, {'0' if q == 0 else 'v[72:75]'}")
        for q in range(4):
            A(f"s_waitcnt lgkmcnt({3-q})")
            A(f"v_mfma_f32_16x16x32_bf16 v[112:115], {vr(56+4*q,4)}, {vr(24+4*q,4)}, {'0' if q == 0 else 'v[112:115]'}")
        for k in range(12): A(f"v_xor_b32 v{6+k}, s54, v{6+k}")
        for h, r in ((0, 72), (1, 112)):
            A(f"v_cvt_pk_bf16_f32 v{40+2*h}, v{r}, v{r+1}"); A(f"v_cvt_pk_bf16_f32 v{41+2*h}, v{r+2}, v{r+3}")
        for k in range(4): unpack(44 + 2 * k, 40 + k)
        for k in range(8): A(f"v_mul_f32 v{44+k}, {SCALE:#x}, v{44+k}")
        for k in range(4): A(f"v_cvt_pk_bf16_f32 v{40+k}, v{44+2*k}, v{45+2*k}")
        A("ds_write_b64 v116, v[40:41]"); A("ds_write_b64 v116, v[42:43] offset:128")
        A("s_branch L_skipc")
        LB("L_vv")
        if lst: A("s_add_u32 s48, s48, s80"); A("s_sub_u32 s49, s48, s62"); A("s_cselect_b32 s48, s48, s49")
        A("s_lshl_b32 s48, s48, 8"); A("v_add_u32 v116, s48, v23")
        A("ds_read_b64 v[72:73], v116"); A("ds_read_b64 v[74:75], v116 offset:128")
        for t in range(8):
            A(f"ds_read_b64_tr_b16 {vr(40+4*t,2)}, v{10+t}"); A(f"ds_read_b64_tr_b16 {vr(42+4*t,2)}, v{10+t} offset:4096")
        A("s_waitcnt lgkmcnt(15)")
        for k in range(4): unpack(128 + 2 * k, 72 + k)
        A("v_max3_f32 v116, v128, v129, v130"); A("v_max3_f32 v117, v131, v132, v133"); A("v_max3_f32 v112, v134, v135, v18")
        for k in range(8): A(f"v_fma_f32 v{136+k}, v{128+k}, s45, v19")
        A("v_max3_f32 v110, v116, v117, v112"); A("v_max3_f32 v111, v116, v117, v112")
        A("v_cmp_gt_f32 vcc, v110, v18")
        A("v_mov_b32 v118, 1.0")
        A("s_cbranch_vccz L_vv2")
        A("v_permlane16_swap_b32 v110, v111"); A("v_max_f32 v116, v110, v111"); A("v_max_f32 v117, v110, v111"); A("s_nop 1")
        A("v_permlane32_swap_b32 v116, v117"); A("v_max_f32 v18, v116, v117")
        A(f"v_mul_f32 v117, {NL2E:#x}, v18"); A("v_floor_f32 v117, v117")
        A("v_sub_f32 v118, v117, v19")
        for k in range(8): A(f"v_fma_f32 v{136+k}, v{128+k}, s45, v117")
        A("v_exp_f32 v118, v118"); A("v_mov_b32 v19, v117")
        for k in range(16): A(f"v_pk_mul_f32 {vr(76+2*k,2)}, {vr(76+2*k,2)}, v[118:119] op_sel_hi:[1,0]")
        LB("L_vv2")
        for k in range(8): A(f"v_exp_f32 v{136+k}, v{136+k}")
        for k in range(12): A(f"v_xor_b32 v{6+k}, s54, v{6+k}")
        for k in range(4): A(f"v_cvt_pk_bf16_f32 v{72+k}, v{136+2*k}, v{137+2*k}")
        for k in range(2): A(f"v_pk_add_f32 {vr(136+2*k,2)}, {vr(136+2*k,2)}, {vr(140+2*k,2)}")
        A("v_pk_add_f32 v[136:137], v[136:137], v[138:139]"); A("v_add_f32 v136, v136, v137"); A("v_fma_f32 v109, v109, v118, v136")
        A("s_waitcnt lgkmcnt(0)")
        for t in range(8): A(f"v_mfma_f32_16x16x32_bf16 {vr(76+4*t,4)}, {vr(40+4*t,4)}, v[72:75], {vr(76+4*t,4)}")
        A("s_branch L_skipc")
    LB("L_helper")
    if noh: A("s_endpgm")
    A("s_mov_b32 s47, s39")
    A("s_mov_b32 s50, s39")
    A("s_cmp_eq_u32 s37, 15"); A("s_cselect_b32 s47, 3, s47")
    A("s_sub_u32 s39, s3, 4")
    A("s_and_b32 s48, s37, 7")
    A("s_mul_i32 s59, s36, 7"); A("s_add_u32 s59, s59, s48")
    A("s_lshl_b32 s49, s48, 3"); A("s_add_u32 s49, s49, s36")
    A("v_lshrrev_b32 v20, 4, v0"); A("v_and_b32 v21, 15, v0")
    A("v_lshrrev_b32 v22, 3, v21"); A("v_and_b32 v23, 7, v21")
    A("s_mov_b32 s44, 0x05040100"); A("s_mov_b32 s45, 0x07060302")
    if dry: A("s_mov_b32 s46, 0")
    A("s_cmp_eq_u32 s39, 0"); A("s_cbranch_scc1 L_w4")
    if noroles: A("s_endpgm")
    A("s_cmp_ge_u32 s47, 2"); A("s_cbranch_scc1 L_end")
    if ts: A("s_mov_b32 s64, s60")
    A(f"v_mov_b32 v1, {QRDY}")
    LB("L_hq")
    A("s_sleep 4"); A("ds_read_b32 v2, v1"); A("s_waitcnt lgkmcnt(0)"); A("v_readfirstlane_b32 s40, v2")
    A("s_cmp_eq_u32 s40, 0"); A("s_cbranch_scc1 L_hq")
    A(f"ds_read_b32 v3, v1 offset:{TAGL - QRDY}"); A("s_waitcnt vmcnt(0) lgkmcnt(0)")
    A("s_branch L_roles")

    LB("L_w4")
    C("first helper wave: reset this workgroup's hand-off slots; 128 rows x 64 columns of LN(x) @ wq; gather q")
    if w4stop == 1: A("s_endpgm")
    A(f"s_setprio {wprio}")
    if ts: A("s_mov_b32 s64, s60")
    for k in range(4): A(f"v_mov_b32 v{72+k}, -1")
    A("s_lshl_b32 s40, s36, 15"); A("s_lshl_b32 s41, s38, 8"); A("s_add_u32 s40, s40, s41"); A(f"s_add_u32 s40, s40, {PART}")
    A("v_lshlrev_b32 v76, 13, v20"); A("v_lshl_add_u32 v76, v21, 4, v76"); A("v_add_u32 v76, s40, v76")
    A("s_lshl_b32 s40, s36, 12"); A("s_lshl_b32 s41, s38, 7"); A("s_add_u32 s41, s40, s41"); A(f"s_add_u32 s41, s41, {ML}")
    A("v_lshl_add_u32 v77, v20, 3, s41")
    A(f"v_add_u32 v10, {HN}, v1")
    A("s_lshl_b32 s40, s50, 8"); A(f"s_add_u32 s40, s40, {HN}"); A("v_lshl_add_u32 v11, v20, 4, s40")
    A("v_bfe_u32 v13, v0, 2, 2"); A("v_lshl_add_u32 v13, v20, 3, v13"); A("v_lshlrev_b32 v13, 7, v13")
    A("v_and_b32 v14, 3, v0"); A("v_lshl_add_u32 v13, v14, 3, v13"); A(f"v_add_u32 v13, {WQL}, v13")
    A(f"v_lshlrev_b32 v14, 2, v0"); A(f"v_add_u32 v18, {QL}, v14")
    A("s_lshl_b32 s40, s36, 14"); A(f"s_add_u32 s40, s40, {QBUF + 4096}")
    A("v_add_u32 v17, s40, v1"); A("v_add_u32 v19, 0x2000, v17")
    A("s_lshl_b32 s41, s50, 12"); A("s_add_u32 s40, s40, s41"); A("s_lshl_b32 s41, s48, 9"); A("s_add_u32 s40, s40, s41"); A("s_sub_u32 s40, s40, 4096")
    A("v_lshl_add_u32 v15, v0, 3, s40")
    A("s_lshl_b32 s40, s2, 2"); A(f"s_add_u32 s40, s40, {ALIVE}"); A("v_mov_b32 v78, s40")
    A("v_cmp_eq_u32 s[52:53], 1, v20"); A("v_cmp_eq_u32 s[54:55], 2, v20"); A("v_cmp_eq_u32 s[56:57], 3, v20")
    A(f"v_mov_b32 v14, {WQC}")
    A("s_waitcnt vmcnt(0)")
    TS(1)
    if not nopois: A("global_store_dwordx4 v76, v[72:75], s[26:27] " + pof)
    if not mlt:
        A("s_mov_b32 exec_lo, 0x00010001"); A("s_mov_b32 exec_hi, 0x00010001")
        A("global_store_dwordx2 v77, v[72:73], s[26:27] " + pof)
        A("s_mov_b64 exec, -1")
    if gok:
        if nopois < 2: A("s_cmp_ge_u32 s47, 2"); A("s_cbranch_scc0 L_w4r")
        LB("L_w4b")
    A(f"v_add_u32 v3, {TAGC:#x}, v3")
    layernorm(4, 24, 32)
    A("ds_write_b128 v10, v[4:7]")
    for k in range(4): A(f"ds_read_b128 {vr(40+4*k,4)}, v11 offset:{64*k}")
    LB("L_wqw")
    A("ds_read_b32 v24, v14"); A("s_waitcnt lgkmcnt(0)"); A("v_readfirstlane_b32 s40, v24")
    A("s_cmp_lt_u32 s40, 4"); A("s_cbranch_scc1 L_wqw")
    TS(2)
    for k in range(4):
        for t in range(4):
            r = 96 + 16 * k + 4 * t
            A(f"ds_read_b64_tr_b16 {vr(r,2)}, v13 offset:{4096*k + 32*t}"); A(f"ds_read_b64_tr_b16 {vr(r+2,2)}, v13 offset:{4096*k + 32*t + 512}")
    for k in range(4):
        for t in range(4):
            n = 4 * k + t
            A(f"s_waitcnt lgkmcnt({min(15, 2*(15-n))})")
            A(f"v_mfma_f32_16x16x32_bf16 {vr(56+4*t,4)}, {vr(40+4*k,4)}, {vr(96+16*k+4*t,4)}, {'0' if k == 0 else vr(56+4*t,4)}")
    A("s_nop 5")
    A("v_cndmask_b32 v2, v56, v60, s[52:53]"); A("s_nop 0"); A("v_cndmask_b32 v2, v2, v64, s[54:55]"); A("v_cndmask_b32 v2, v2, v68, s[56:57]")
    if gok: A("s_waitcnt vmcnt(0)")
    A("global_store_dwordx2 v15, v[2:3], s[26:27] " + qsf)
    if not nohint:
        A("s_mov_b64 exec, 1"); A(f"global_store_dword v78, v3, s[26:27] offset:{QH - ALIVE} sc1"); A("s_mov_b64 exec, -1")
    if not gok:
        A("s_cmp_ge_u32 s47, 2"); A("s_cbranch_scc0 L_w4r")
        LB("L_w4b")
    if w4stop == 2: A("s_endpgm")
    TS(3)
    A(f"s_mov_b32 s51, {SPIN_MAX}")
    def qload(r):
        for i in range(16): A(f"global_load_dwordx4 {vr(r+4*i,4)}, v{17 if i < 8 else 19}, s[26:27] offset:{(i % 8) * 1024 - 4096} sc1")
    def qcheck(r):
        A(f"v_xor_b32 v24, v{r+1}, v3"); A(f"v_xor_b32 v25, v{r+3}, v3")
        ws = [r + 4 * i + k for i in range(1, 16) for k in (1, 3)]
        for n, w in enumerate(ws):
            A(f"v_xor_b32 v26, v{w}, v3"); A(f"v_or_b32 v{24 + (n & 1)}, v{24 + (n & 1)}, v26")
        A("v_or_b32 v24, v24, v25"); A("v_cmp_ne_u32 vcc, 0, v24")
    def qsum(r):
        for k in range(4):
            for h in (0, 2):
                A(f"v_add_f32 v{r+4*k+h}, v{r+4*k+h}, v{r+16+4*k+h}"); A(f"v_add_f32 v{r+32+4*k+h}, v{r+32+4*k+h}, v{r+48+4*k+h}")
        for k in range(4):
            for h in (0, 2): A(f"v_add_f32 v{r+4*k+h}, v{r+4*k+h}, v{r+32+4*k+h}")
        for k in range(4): A(f"v_cvt_pk_bf16_f32 v{24+k}, v{r+4*k}, v{r+4*k+2}")
    if not nohint: C("the group's 32 words announce the partial q stores; the tags inside the data are what is trusted")
    if nohint:
        if nohint > 1: A(f"s_sleep {nohint}")
        A("s_waitcnt vmcnt(0)")
    elif sq:
        A("v_readfirstlane_b32 s58, v3"); A("s_lshl_b32 s41, s36, 7"); A(f"s_add_u32 s41, s41, {QH + 4 * (32 - QW)}")
        scheck("L_qh", 0, QW)
        A(f"s_mov_b32 s51, {SPIN_MAX}")
        A("s_waitcnt vmcnt(0)")
    else:
        A("s_lshl_b32 s40, s36, 7"); A(f"s_add_u32 s40, s40, {QH}"); A("v_and_b32 v12, 31, v0"); A("v_lshl_add_u32 v12, v12, 2, s40")
        A("global_load_dword v28, v12, s[26:27] sc1")
        A(f"s_sleep {qsleep}")
        LB("L_qhint")
        A("global_load_dword v29, v12, s[26:27] sc1")
        A("s_waitcnt vmcnt(1)")
        A("v_cmp_eq_u32 vcc, v28, v3"); A("s_bcnt1_i32_b32 s40, vcc_lo"); A(f"s_cmp_ge_u32 s40, {QTH}"); A("s_cbranch_scc1 L_qgo")
        A("global_load_dword v28, v12, s[26:27] sc1")
        A("s_waitcnt vmcnt(1)")
        A("v_cmp_eq_u32 vcc, v29, v3"); A("s_bcnt1_i32_b32 s40, vcc_lo")
        A("s_sub_u32 s51, s51, 1"); A("s_cbranch_scc1 L_qgo")
        A(f"s_cmp_lt_u32 s40, {QTH}"); A("s_cbranch_scc1 L_qhint")
    LB("L_qgo")
    if not gok: C("the resets have landed: tell the later stages")
    A("s_mov_b64 exec, 1") if not gok else None
    if not gok: A("global_store_dword v78, v3, s[26:27] sc1")
    if sa:
        A("s_cmp_ge_u32 s47, 2"); A("s_cbranch_scc1 L_noar")
        A("s_lshl_b32 s40, s36, 3"); A("s_add_u32 s40, s40, s48"); A("s_add_u32 s41, s49, 64"); A("s_cmp_eq_u32 s47, 0"); A("s_cselect_b32 s40, s40, s41")
        A("s_lshl_b32 s40, s40, 2"); A(f"s_add_u32 s40, s40, {AR}"); A("v_mov_b32 v77, s40")
        A("global_store_dword v77, v3, s[26:27] sc1")
        LB("L_noar")
    if not gok: A("s_mov_b64 exec, -1")
    TS(12)
    if w4stop == 3: A("s_endpgm")
    A(f"s_mov_b32 s55, {qmask}")
    LB("L_qpoll")
    for i in range(16):
        A(f"s_bitcmp1_b32 s55, {i}"); A(f"s_cbranch_scc0 L_qs{i}")
        A(f"global_load_dwordx4 {vr(96+4*i,4)}, v{17 if i < 8 else 19}, s[26:27] offset:{(i % 8) * 1024 - 4096} {qgf}")
        LB(f"L_qs{i}")
    A("s_waitcnt vmcnt(0)")
    for i in range(16):
        A(f"v_cmp_ne_u32 vcc, v{97+4*i}, v3"); A(f"v_cmp_ne_u32 s[40:41], v{99+4*i}, v3"); A("s_or_b64 vcc, vcc, s[40:41]")
        A(f"s_cbranch_scc1 L_qc{i}"); A(f"s_bitset0_b32 s55, {i}"); LB(f"L_qc{i}")
    A("s_sub_u32 s51, s51, 1"); A("s_cbranch_scc1 L_qgot")
    if qretry:
        A("s_cmp_eq_u32 s55, 0"); A("s_cbranch_scc1 L_qgot"); A(f"s_sleep {qretry}"); A("s_branch L_qpoll")
    else: A("s_cmp_lg_u32 s55, 0"); A("s_cbranch_scc1 L_qpoll")
    LB("L_qgot")
    qsum(96)
    if wgt:
        A(f"v_add_u32 v28, {EL}, v1"); A(f"ds_write_b128 v28, v[72:75] offset:{TQ - EL}")
        for k in range(4): A(f"v_mov_b32 v{76+k}, 0")
        A("ds_write_b128 v28, v[76:79]")
    A("ds_write2_b32 v18, v24, v25 offset0:0 offset1:64"); A("ds_write2_b32 v18, v26, v27 offset0:128 offset1:192")
    A(f"v_mov_b32 v18, {QRDY}"); A("v_mov_b32 v19, 1")
    A(f"ds_write_b32 v18, v3 offset:{TAGL - QRDY}"); A("ds_write_b32 v18, v19")
    A("s_waitcnt lgkmcnt(0)")
    A("s_setprio 0")
    if gok:
        C("one member per group tells the later stages that all 32 members' resets have landed")
        A("s_cmp_lg_u32 s37, 16"); A("s_cbranch_scc1 L_nogok")
        A("s_lshl_b32 s40, s36, 2"); A(f"s_add_u32 s40, s40, {ALIVE}"); A("v_mov_b32 v78, s40")
        A("s_mov_b64 exec, 1"); A("global_store_dword v78, v3, s[26:27] sc1"); A("s_mov_b64 exec, -1")
        LB("L_nogok")
    TS(4)
    if touch:
        A("v_lshlrev_b32 v4, 21, v0"); A("s_lshl_b32 s40, s36, 24"); A(f"s_add_u32 s40, s40, {0x200000 - 128}"); A("v_add_u32 v4, s40, v4")
        A("s_mov_b64 exec, 0xff")
        A("global_load_dword v240, v4, s[6:7] nt"); A("global_load_dword v240, v4, s[8:9] nt")
        A("s_mov_b64 exec, -1")
    A("s_waitcnt vmcnt(0)")
    A("s_branch L_roles")
    LB("L_w4r")
    A("s_cmp_eq_u32 s47, 0"); A("s_cbranch_scc0 L_w4f")
    A("s_lshl_b32 s40, s48, 11"); A("s_lshl_b32 s41, s36, 8"); A("s_add_u32 s40, s40, s41"); A(f"s_add_u32 s40, s40, {H2}")
    A("v_lshl_add_u32 v76, v21, 4, s40")
    if rep:
        A("v_lshl_add_u32 v76, v20, 14, v76"); A("v_add_u32 v77, 0x10000, v76")
        A("global_store_dwordx4 v76, v[72:75], s[26:27] " + pof); A("global_store_dwordx4 v77, v[72:75], s[26:27] " + pof)
    else:
        A("s_mov_b64 exec, 0xffff")
        A("global_store_dwordx4 v76, v[72:75], s[26:27] " + pof)
        A("s_mov_b64 exec, -1")
    A("s_branch L_w4b")
    LB("L_w4f")
    A("s_lshl_b32 s41, s49, 7"); A(f"s_add_u32 s41, s41, {H3}")
    A("v_lshrrev_b32 v76, 3, v0"); A("v_mul_u32_u24 v76, 7168, v76"); A("v_and_b32 v77, 7, v0"); A("v_lshl_add_u32 v76, v77, 4, v76"); A("v_add_u32 v76, s41, v76")
    A(f"v_add_u32 v77, {8*7168}, v76")
    A("global_store_dwordx4 v76, v[72:75], s[26:27] " + pof); A("global_store_dwordx4 v77, v[72:75], s[26:27] " + pof)
    A("s_branch L_w4b")
    LB("L_roles")
    if noroles: A("s_branch L_hdone")
    A("s_cmp_eq_u32 s47, 1"); A("s_cbranch_scc1 L_ffn")
    A("s_cmp_eq_u32 s47, 0"); A("s_cbranch_scc0 L_hdone")
    A("s_mov_b32 s40, s36"); A("s_mov_b32 s36, s48"); A("s_mov_b32 s48, s40")

    C("wo role: merge 32 splits of one kv group, multiply by a 512x64 block of wo")
    A("s_lshl_b32 s40, s36, 2"); A("s_add_u32 s40, s40, s39")
    A("s_lshl_b32 s41, s40, 17"); A("s_lshl_b32 s42, s48, 7"); A("s_add_u32 s41, s41, s42"); A("s_add_u32 s41, s41, 4096")
    A("s_add_u32 s52, s12, s41"); A("s_addc_u32 s53, s13, 0")
    A("v_lshlrev_b32 v58, 16, v22"); A("v_lshl_add_u32 v58, v20, 13, v58"); A("v_lshl_add_u32 v58, v23, 4, v58"); A("v_add_u32 v59, 0x8000, v58")
    def wo_weights():
        if jitw: gate_wait("L_w_jit", 1); TS(11)
        for s in range(2):
            for i in range(8): A(f"global_load_dwordx4 {vr(160+32*s+4*i,4)}, v{58+s}, s[52:53] offset:{1024*i-4096} {w_flags}")
            if not jitw: A("s_waitcnt vmcnt(0)")
        for s in range(2):
            A(f"s_waitcnt vmcnt({8 - 8*s})")
            transpose8(96 + 32 * s, 160 + 32 * s)
        TS(5)
    if not jitw: wo_weights()
    alive("w")
    A("s_lshl_b32 s41, s40, 13"); A(f"s_add_u32 s41, s41, {PART}")
    A("v_lshlrev_b32 v14, 4, v21"); A("v_lshl_add_u32 v4, v20, 11, v14"); A("v_add_u32 v4, s41, v4")
    A("s_lshl_b32 s41, s36, 12"); A(f"s_lshl_b32 s42, s39, {4 if mlt else 3}"); A("s_add_u32 s41, s41, s42"); A(f"s_add_u32 s41, s41, {ML}")
    A("v_and_b32 v8, 31, v0"); A("v_lshl_add_u32 v6, v8, 7, s41")
    A("s_lshl_b32 s41, s39, 6"); A(f"s_add_u32 s41, s41, {WB}")
    A("v_lshl_add_u32 v9, v8, 1, s41"); A("v_lshl_add_u32 v10, v20, 4, s41")
    A("s_lshl_b32 s41, s39, 8"); A(f"s_add_u32 s41, s41, {OB}")
    A("v_add_u32 v11, s41, v14")
    A("v_lshlrev_b32 v12, 7, v22"); A("v_lshl_add_u32 v12, v20, 4, v12"); A("v_add_u32 v12, s41, v12")
    A("s_lshl_b32 s41, s39, 9"); A(f"s_add_u32 s41, s41, {RED}")
    A("v_lshlrev_b32 v13, 8, v22"); A("v_lshl_add_u32 v13, v23, 5, v13"); A("v_add_u32 v13, s41, v13")
    A(f"v_add_u32 v15, {RED}, v14")
    A("s_lshl_b32 s41, s36, 11"); A("s_lshl_b32 s42, s48, 8"); A("s_add_u32 s54, s41, s42")
    if jitw: wo_weights()
    if pw:
        if pw == 2: gate_wait("L_wo_pw", 1)
        if 'm' in pws: A(f"global_load_dwordx2 v[80:81], v6, s[26:27] {pwf}")
        for i in range(8 if 'p' in pws else 0): A(f"global_load_dwordx4 {vr(16+4*i,4)}, v4, s[26:27] offset:{256*i} {pwf}")
    if not dry: gate_wait("L_wo_gate0", 2 if g2 else 1); TS(8)
    LB("L_wo_pass")
    A(f"s_mov_b32 s41, {H2}")
    if dry: A("s_cmp_eq_u32 s46, 0"); A(f"s_cmov_b32 s41, {DUMMY}")
    A("s_add_u32 s41, s41, s54")
    A("v_add_u32 v7, s41, v14")
    if rep: A("v_lshrrev_b32 v5, 4, v0"); A("v_lshl_add_u32 v7, v5, 14, v7"); A("v_add_u32 v5, 0x10000, v7")
    A(f"s_mov_b32 s51, {SPIN_MAX}")
    if MLTH >= 0:
        LB("L_wo_ml")
        if mlt:
            A("global_load_dwordx4 v[224:227], v6, s[26:27] sc1")
            A("s_waitcnt vmcnt(0)")
            A("v_cmp_ne_u32 vcc, v227, v3")
        else:
            A("global_load_dwordx2 v[80:81], v6, s[26:27] sc1")
            A("s_waitcnt vmcnt(0)")
            any_poison([80, 81], 84)
        A("s_bcnt1_i32_b32 s57, vcc_lo")
        if dry: A("s_cmp_eq_u32 s46, 0"); A("s_cbranch_scc1 L_wo_go")
        A("s_sub_u32 s51, s51, 1"); A("s_cbranch_scc1 L_wo_go")
        A(f"s_cmp_gt_u32 s57, {32 - MLTH}"); A("s_cbranch_scc1 L_wo_ml")
    LB("L_wo_go")
    TS(9)
    def wload(r, m):
        A(f"global_load_dwordx4 {vr(m,4)}, v6, s[26:27] sc1" if mlt else f"global_load_dwordx2 {vr(m,2)}, v6, s[26:27] sc1")
        for i in range(8): A(f"global_load_dwordx4 {vr(r+4*i,4)}, v4, s[26:27] offset:{256*i} sc1")
    def wcheck(r, m):
        if mlt:
            A(f"v_cmp_ne_u32 s[40:41], v{m+1}, v3"); A(f"v_cmp_ne_u32 s[42:43], v{m+3}, v3")
            any_poison(list(range(r, r + 32)), 84, NCH)
            A("s_or_b64 s[40:41], s[40:41], s[42:43]"); A("s_or_b64 s[40:41], vcc, s[40:41]")
        else: any_poison([m, m+1] + list(range(r, r + 32)), 84)
    MA, MB = (224, 228) if mlt else (80, 82)
    wload(16, MA)
    if stag: A(f"s_sleep {stag}")
    LB("L_wo_poll")
    if ts: A("s_add_u32 s79, s79, 1")
    wload(48, MB)
    A("s_waitcnt vmcnt(9)")
    wcheck(16, MA)
    A("s_cbranch_scc0 L_wo_gotA" if mlt else "s_cbranch_vccz L_wo_gotA")
    wload(16, MA)
    A("s_waitcnt vmcnt(9)")
    wcheck(48, MB)
    if dry: A("s_cmp_eq_u32 s46, 0"); A("s_cbranch_scc1 L_wo_gotB")
    if mlt: A("s_cbranch_scc0 L_wo_gotB"); A("s_sub_u32 s51, s51, 1"); A("s_cbranch_scc0 L_wo_poll")
    else:
        A("s_sub_u32 s51, s51, 1"); A("s_cbranch_scc1 L_wo_gotB")
        A("s_cbranch_vccnz L_wo_poll")
    def wcomb(r, m):
        TS(6); TC(0)
        A(f"v_mov_b32 v84, v{m}")
        P = []
        for e in range(8):
            for j in range(4):
                x = r + 4 * (2 * j) + (e >> 1); y = r + 4 * (2 * j + 1) + (e >> 1)
                P.append(f"v_perm_b32 v{160+4*e+j}, v{y}, v{x}, s{45 if e & 1 else 44}")
        def fill(n):
            for _ in range(n): A(P.pop(0))
        for rot in (8, 4, 2, 1):
            fill(2); A(f"v_min_f32_dpp v84, v84, v84 row_ror:{rot} row_mask:0xf bank_mask:0xf")
        A("v_mov_b32 v85, v84"); fill(2); A("v_permlane16_swap_b32 v84, v85"); A("v_min_f32 v84, v84, v85")
        A(f"v_sub_f32 v84, v84, v{m}"); A("v_exp_f32 v84, v84"); fill(1)
        A("v_cvt_pk_bf16_f32 v86, v84, v84")
        A("ds_write_b16 v9, v86"); A("ds_read_b128 v[88:91], v10")
        A(f"v_mul_f32 v85, v84, v{m + (2 if mlt else 1)}")
        for rot in (8, 4, 2, 1):
            fill(2); A(f"v_add_f32_dpp v85, v85, v85 row_ror:{rot} row_mask:0xf bank_mask:0xf")
        A("v_mov_b32 v86, v85"); fill(2); A("v_permlane16_swap_b32 v85, v86"); A("v_add_f32 v85, v85, v86")
        A("v_rcp_f32 v85, v85")
        fill(len(P))
    LB("L_wo_gotB")
    wcomb(48, MB)
    if dry: A("s_cmp_eq_u32 s46, 0"); A("s_cbranch_scc0 L_wo_got")
    else: A("s_branch L_wo_got")
    LB("L_wo_gotA")
    wcomb(16, MA)
    LB("L_wo_got")
    TC(1)
    A("s_waitcnt lgkmcnt(0)")
    TC(2)
    for e in range(8): A(f"v_mfma_f32_16x16x32_bf16 {vr(192+4*e,4)}, v[88:91], {vr(160+4*e,4)}, 0")
    A("s_nop 0")
    for e in range(8): A(f"v_mul_f32 v{192+4*e}, v{192+4*e}, v85")
    for k in range(4): A(f"v_cvt_pk_bf16_f32 v{88+k}, v{192+8*k}, v{196+8*k}")
    TC(3)
    A("ds_write_b128 v11, v[88:91]")
    A("ds_read_b128 v[160:163], v12"); A("ds_read_b128 v[164:167], v12 offset:64")
    A("s_waitcnt lgkmcnt(1)")
    for e in range(8): A(f"v_mfma_f32_16x16x32_bf16 {vr(192+4*e,4)}, v[160:163], {vr(96+4*e,4)}, 0")
    A("s_waitcnt lgkmcnt(0)")
    for e in range(8): A(f"v_mfma_f32_16x16x32_bf16 {vr(192+4*e,4)}, v[164:167], {vr(128+4*e,4)}, {vr(192+4*e,4)}")
    A("s_mov_b32 exec_lo, 0xff"); A("s_mov_b32 exec_hi, 0xff00")
    A("s_nop 5")
    for e in range(0, 8, 2): A(f"ds_write2_b32 v13, v{192+4*e}, v{196+4*e} offset0:{e} offset1:{e+1}")
    A("s_mov_b64 exec, -1")
    TC(4)
    barrier_real("L_wo_nb")
    TC(5)
    A("s_cmp_lg_u32 s39, 0"); A("s_cbranch_scc1 L_wo_next")
    for p in range(8): A(f"ds_read_b128 {vr(160+4*p,4)}, v15 offset:{256*p}")
    for st, wcnt in ((0, 6), (8, 4), (16, 2), (24, 0)):
        A(f"s_waitcnt lgkmcnt({wcnt})")
        for h in range(2): A(f"v_pk_add_f32 {vr(160+st+2*h,2)}, {vr(160+st+2*h,2)}, {vr(164+st+2*h,2)}")
    for h in range(2): A(f"v_pk_add_f32 {vr(160+2*h,2)}, {vr(160+2*h,2)}, {vr(168+2*h,2)}")
    for h in range(2): A(f"v_pk_add_f32 {vr(176+2*h,2)}, {vr(176+2*h,2)}, {vr(184+2*h,2)}")
    for h in range(2): A(f"v_pk_add_f32 {vr(160+2*h,2)}, {vr(160+2*h,2)}, {vr(176+2*h,2)}")
    if rep:
        C("eight copies, so that the readers of different dies do not queue on one line")
        A("global_store_dwordx4 v7, v[160:163], s[26:27] sc1"); A("global_store_dwordx4 v5, v[160:163], s[26:27] sc1")
    else:
        A("s_mov_b64 exec, 0xffff")
        A("global_store_dwordx4 v7, v[160:163], s[26:27] sc1")
        A("s_mov_b64 exec, -1")
    LB("L_wo_next")
    TC(6); TC_fin(7)
    TS(7)
    if dry:
        A("s_cmp_eq_u32 s46, 1"); A("s_cbranch_scc1 L_hdone")
        A("s_mov_b32 s46, 1")
        gate_wait("L_wo_gate", 2 if g2 else 1)
        TS(8)
        A("s_branch L_wo_pass")
    else: A("s_branch L_hdone") if ts else A("s_endpgm")

    LB("L_ffn")
    C("ffn role: h, LN(h), 32 gate/up columns, 32 rows of w2; first 16 also finish 32 output columns")
    def ffn_weights():
        A("v_lshlrev_b32 v58, 6, v22"); A("v_lshl_add_u32 v58, v20, 3, v58"); A("s_lshl_b32 s40, s39, 7"); A("v_add_u32 v58, s40, v58")
        A("s_movk_i32 s40, 3584"); A("v_mul_u32_u24 v58, s40, v58")
        A("v_and_b32 v59, 3, v21"); A("v_lshl_add_u32 v58, v59, 4, v58"); A("s_lshl_b32 s40, s49, 6"); A("v_add_u32 v58, s40, v58")
        A("v_bfe_u32 v59, v21, 2, 1"); A("v_cmp_eq_u32 vcc, 1, v59")
        A("v_mov_b32 v60, s16"); A("v_mov_b32 v61, s18"); A("v_cndmask_b32 v60, v60, v61, vcc")
        A("v_mov_b32 v61, s17"); A("v_mov_b32 v62, s19"); A("v_cndmask_b32 v61, v61, v62, vcc")
        A("v_mov_b32 v59, 0"); A("v_lshl_add_u64 v[60:61], v[58:59], 0, v[60:61]")
        A("s_lshl_b32 s40, s49, 15"); A("s_lshl_b32 s41, s39, 8"); A("s_add_u32 s40, s40, s41"); A("s_add_u32 s40, s40, 4096")
        A("s_add_u32 s52, s20, s40"); A("s_addc_u32 s53, s21, 0")
        A("v_lshlrev_b32 v58, 13, v20"); A("v_lshl_add_u32 v58, v21, 4, v58")
        if jitf: gate_wait("L_f_jit", 1); TS(11)
        if WTRIG:
            A(f"v_mov_b32 v1, {WQC}")
            LB("L_f_trig")
            A("s_sleep 2"); A("ds_read_b32 v2, v1"); A("s_waitcnt lgkmcnt(0)"); A("v_readfirstlane_b32 s40, v2")
            A("s_cmp_lt_u32 s40, 5"); A("s_cbranch_scc1 L_f_trig")
        A("s_mov_b64 s[40:41], 7168"); A(f"s_mov_b64 s[42:43], {7168 + 24 * 3584}")
        for s in range(2):
            for i in range(8):
                A(f"global_load_dwordx4 {vr(160+32*s+4*i,4)}, v[60:61], off{' offset:3584' if i & 1 else ''} {w_flags if w13f is None else w13f}")
                if i & 1 and not (s == 1 and i == 7): A(f"v_lshl_add_u64 v[60:61], v[60:61], 0, {'s[42:43]' if i == 7 else 's[40:41]'}")
            if not jitf and not wburst: A("s_waitcnt vmcnt(0)")
        for i in range(8): A(f"global_load_dwordx4 {vr(224+4*i,4)}, v58, s[52:53] offset:{1024*i-4096} {w_flags}")
        for s in range(3):
            A(f"s_waitcnt vmcnt({16 - 8*s})")
            transpose8(64 + 32 * s, 160 + 32 * s)
        TS(5)
    if not jitf: ffn_weights()
    A("v_and_b32 v8, 31, v0")
    A("s_lshl_b32 s40, s39, 8"); A("v_lshl_add_u32 v5, v8, 3, s40")
    A("global_load_dwordx2 v[48:49], v5, s[4:5]")
    A("s_waitcnt vmcnt(0)")
    unpack(50, 49)
    A("v_and_b32 v49, 0xffff0000, v48"); A("v_lshlrev_b32 v48, 16, v48")
    alive("f")
    A("v_lshrrev_b32 v9, 5, v0"); A("v_lshlrev_b32 v4, 11, v9"); A("v_lshl_add_u32 v4, v8, 4, v4")
    A("s_lshl_b32 s40, s39, 9"); A(f"s_add_u32 s40, s40, {H2 + 4096}")
    if rep: A("s_lshl_b32 s41, s48, 14"); A("s_add_u32 s40, s40, s41")
    A("v_add_u32 v4, s40, v4"); A("v_add_u32 v6, 0x2000, v4")
    A(f"v_add_u32 v5, {HB}, v5")
    A("s_lshl_b32 s40, s39, 3"); A(f"s_add_u32 s40, s40, {ST}"); A("v_mov_b32 v7, s40"); A(f"v_mov_b32 v9, {ST}")
    A("s_lshl_b32 s40, s39, 8"); A(f"s_add_u32 s40, s40, {HN}"); A("v_lshl_add_u32 v10, v8, 3, s40")
    A("v_lshlrev_b32 v11, 7, v22"); A("v_lshl_add_u32 v11, v20, 4, v11"); A("v_add_u32 v11, s40, v11")
    A("s_lshl_b32 s41, s39, 9"); A(f"s_add_u32 s41, s41, {RED}")
    A("v_lshlrev_b32 v13, 8, v22"); A("v_lshl_add_u32 v13, v23, 5, v13"); A("v_add_u32 v13, s41, v13")
    A("v_lshlrev_b32 v14, 5, v20"); A("v_lshl_add_u32 v14, v23, 2, v14"); A(f"v_add_u32 v14, {RED}, v14")
    A("v_lshrrev_b32 v52, 2, v21"); A("v_mul_u32_u24 v52, 7168, v52"); A("v_and_b32 v53, 3, v21"); A("v_lshl_add_u32 v52, v53, 5, v52"); A("v_lshl_add_u32 v52, v20, 4, v52")
    A("s_lshl_b32 s54, s49, 7"); A(f"s_mul_i32 s41, s39, {4*7168}"); A("s_add_u32 s54, s54, s41")
    A("v_cmp_eq_u32 s[56:57], 1, v20")
    A("s_mul_i32 s41, s59, 7168"); A(f"s_add_u32 s41, s41, {H3 + 3072}"); A("v_lshl_add_u32 v53, v0, 4, s41")
    A("v_and_b32 v54, 7, v0"); A("s_lshl_b32 s41, s59, 6"); A("v_lshl_add_u32 v54, v54, 3, s41"); A(f"v_add_u32 v55, {HB}, v54")
    if jitf: ffn_weights()
    if fuse:
        assert not dry and not WTRIG
        C("LN is applied after the product: gate = (h @ w - mean * colsum(w)) / sd; column sums now, while idle")
        A("s_lshl_b32 s40, s39, 8"); A(f"s_add_u32 s40, s40, {HB}")
        A("v_lshlrev_b32 v11, 7, v22"); A("v_lshl_add_u32 v11, v20, 4, v11"); A("v_add_u32 v11, s40, v11")
        for k in range(4): A(f"v_mov_b32 v{40+k}, 0x3f803f80")
        A("v_mov_b32 v24, -1"); A("v_mov_b32 v25, -1"); A("ds_write_b64 v7, v[24:25]")
        for e in range(8): A(f"v_mfma_f32_16x16x32_bf16 {vr(160+4*e,4)}, v[40:43], {vr(64+4*e,4)}, 0")
        for e in range(8): A(f"v_mfma_f32_16x16x32_bf16 {vr(160+4*e,4)}, v[40:43], {vr(96+4*e,4)}, {vr(160+4*e,4)}")
        A(f"v_add_u32 v15, {REDC - RED}, v13"); A(f"v_mov_b32 v1, {WQC}"); A("v_mov_b32 v2, 1")
        A("s_mov_b32 exec_lo, 0xff"); A("s_mov_b32 exec_hi, 0xff00"); A("s_nop 3")
        for e in range(0, 8, 2): A(f"ds_write2_b32 v15, v{160+4*e}, v{164+4*e} offset0:{e} offset1:{e+1}")
        A("s_mov_b64 exec, 1"); A("ds_add_u32 v1, v2"); A("s_mov_b64 exec, -1")
        LB("L_f_cw")
        A("s_sleep 2"); A("ds_read_b32 v2, v1"); A("s_waitcnt lgkmcnt(0)"); A("v_readfirstlane_b32 s40, v2")
        A("s_cmp_lt_u32 s40, 8"); A("s_cbranch_scc1 L_f_cw")
        A(f"v_add_u32 v15, {REDC - RED}, v14"); A("v_add_u32 v2, 1024, v15")
        for p in range(8): A(f"ds_read2_b32 {vr(24+2*p,2)}, v{15 if p < 4 else 2} offset0:{64*(p&3)} offset1:{64*(p&3)+32}")
        A("s_waitcnt lgkmcnt(0)")
        for k in range(4): A(f"v_pk_add_f32 {vr(24+4*k,2)}, {vr(24+4*k,2)}, {vr(26+4*k,2)}")
        A("v_pk_add_f32 v[24:25], v[24:25], v[28:29]"); A("v_pk_add_f32 v[32:33], v[32:33], v[36:37]"); A("v_pk_add_f32 v[58:59], v[24:25], v[32:33]")
        A("v_add_u32 v15, 1024, v14")
    if pw:
        if pw == 2: gate_wait("L_f_pw", 1)
        for i in range(4 if 'h' in pws else 0): A(f"global_load_dwordx4 {vr(192+4*i,4)}, v{4 if i < 2 else 6}, s[26:27] offset:{(i % 2) * 4096 - 4096} {pwf}")
        A("s_cmp_lg_u32 s39, 0"); A("s_cbranch_scc1 L_f_npw"); A("s_cmp_ge_u32 s59, 16"); A("s_cbranch_scc1 L_f_npw")
        A(f"v_add_u32 v57, {pwoff}, v53")
        for i in range(7 if 'o' in pws else 0): A(f"global_load_dwordx4 {vr(220+4*i,4)}, v57, s[26:27] offset:{1024*i-3072} {pwf}")
        LB("L_f_npw")
    if not dry: gate_wait("L_f_gate0", 2 if g2 else 1)
    LB("L_f_pass")
    A(f"s_mov_b32 s41, {H3}")
    if dry: A("s_cmp_eq_u32 s46, 0"); A(f"s_cmov_b32 s41, {DUMMY}")
    A("s_add_u32 s41, s41, s54")
    A("v_add_u32 v56, s41, v52")
    A(f"s_mov_b32 s51, {SPIN_MAX}")
    def hload(r):
        for i in range(4): A(f"global_load_dwordx4 {vr(r+4*i,4)}, v{4 if i < 2 else 6}, s[26:27] offset:{(i % 2) * 4096 - 4096} sc1")
    def hsum(r):
        TS(6)
        for h in range(2): A(f"v_pk_add_f32 {vr(40+2*h,2)}, {vr(r+2*h,2)}, {vr(r+4+2*h,2)}")
        for h in range(2): A(f"v_pk_add_f32 {vr(44+2*h,2)}, {vr(r+8+2*h,2)}, {vr(r+12+2*h,2)}")
    if hint2:
        LB("L_f_hint")
        if h2sleep: A(f"s_sleep {h2sleep}")
        if hint2 == 1:
            A("global_load_dwordx4 v[192:195], v4, s[26:27] offset:-4096 sc1"); A("s_waitcnt vmcnt(0)")
            any_poison(range(192, 196), 40)
            A("s_sub_u32 s51, s51, 1"); A("s_cbranch_scc1 L_f_go"); A("s_cbranch_vccnz L_f_hint")
        else:
            A("global_load_dword v192, v4, s[26:27] offset:-4096 sc1"); A("s_waitcnt vmcnt(0)")
            A("v_cmp_ne_u32 vcc, -1, v192")
            A("s_sub_u32 s51, s51, 1"); A("s_cbranch_scc1 L_f_go"); A("s_cbranch_vccz L_f_hint")
        LB("L_f_go")
    hload(192)
    if stag: A(f"s_sleep {stag}")
    LB("L_f_poll")
    hload(208)
    A("s_waitcnt vmcnt(4)")
    any_poison(range(192, 208), 40, NCH)
    A("s_cbranch_vccz L_f_gotA")
    hload(192)
    A("s_waitcnt vmcnt(4)")
    any_poison(range(208, 224), 40, NCH)
    if dry: A("s_cmp_eq_u32 s46, 0"); A("s_cbranch_scc1 L_f_gotB")
    A("s_sub_u32 s51, s51, 1"); A("s_cbranch_scc1 L_f_gotB")
    A("s_cbranch_vccnz L_f_poll")
    LB("L_f_gotB")
    hsum(208)
    if dry: A("s_cmp_eq_u32 s46, 0"); A("s_cbranch_scc0 L_f_got")
    else: A("s_branch L_f_got")
    LB("L_f_gotA")
    hsum(192)
    LB("L_f_got")
    TC(0)
    for h in range(2): A(f"v_pk_add_f32 {vr(24+2*h,2)}, {vr(40+2*h,2)}, {vr(44+2*h,2)}")
    swap_red("add_f32", [24, 25, 26, 27], [28, 29, 30, 31], 32)
    A("v_cvt_pk_bf16_f32 v28, v24, v25"); A("v_cvt_pk_bf16_f32 v29, v26, v27")
    unpack(24, 28); unpack(26, 29)
    A("v_pk_add_f32 v[24:25], v[24:25], v[48:49]"); A("v_pk_add_f32 v[26:27], v[26:27], v[50:51]")
    A("v_cvt_pk_bf16_f32 v28, v24, v25"); A("v_cvt_pk_bf16_f32 v29, v26, v27")
    if fuse:
        A("ds_write_b64 v5, v[28:29]")
        A("ds_read_b128 v[40:43], v11"); A("ds_read_b128 v[44:47], v11 offset:64")
        unpack(24, 28); unpack(26, 29)
        C("mean and centred sum of squares of this wave's 128 values, under the matrix work")
        A("v_readfirstlane_b32 s40, v24"); A("s_nop 1")
        for k in range(4): A(f"v_subrev_f32 v{32+k}, s40, v{24+k}")
        A("v_add_f32 v30, v32, v33"); A("v_mul_f32 v31, v32, v32"); A("v_add_f32 v36, v34, v35"); A("v_mul_f32 v37, v33, v33")
        A("v_fmac_f32 v31, v34, v34"); A("v_fmac_f32 v37, v35, v35"); A("v_add_f32 v30, v30, v36"); A("v_add_f32 v31, v31, v37")
        TC(1)
        CH = [f"v_sub_f32 v{k}, v{k}, v30" for k in (32, 34, 36, 38)] + ["v_add_f32 v33, v33, v37", "v_mul_f32 v32, v32, v32", "v_mul_f32 v36, v36, v36", "v_fmac_f32 v32, v34, v34", "v_fmac_f32 v36, v38, v38"]
        M = [f"v_mfma_f32_16x16x32_bf16 {vr(160+4*e,4)}, v[40:43], {vr(64+4*e,4)}, 0" for e in range(8)] + \
            [f"v_mfma_f32_16x16x32_bf16 {vr(160+4*e,4)}, v[44:47], {vr(96+4*e,4)}, {vr(160+4*e,4)}" for e in range(8)]
        A("s_waitcnt lgkmcnt(0)")
        for rot in (8, 4, 2, 1):
            A(M.pop(0))
            for x in (30, 31): A(f"v_add_f32_dpp v{x}, v{x}, v{x} row_ror:{rot} row_mask:0xf bank_mask:0xf")
        A(M.pop(0)); A("v_mov_b32 v32, v30"); A("v_mov_b32 v33, v31"); A(M.pop(0)); A(M.pop(0))
        A("v_permlane16_swap_b32 v30, v32"); A("v_permlane16_swap_b32 v31, v33"); A(M.pop(0))
        A("v_add_f32 v30, v30, v32"); A("v_add_f32 v31, v31, v33"); A(M.pop(0))
        A("v_mul_f32 v32, 0x3c000000, v30"); A(M.pop(0))
        A("v_fma_f32 v31, -v32, v30, v31"); A("v_add_f32 v30, s40, v32"); A(M.pop(0))
        A("v_min_u32 v31, -2, v31"); A(M.pop(0))
        A("ds_write_b64 v7, v[30:31]")
        for m in M: A(m)
        TC(2)
        A("ds_read_b128 v[32:35], v9"); A("ds_read_b128 v[36:39], v9 offset:16")
        A("s_mov_b32 exec_lo, 0xff"); A("s_mov_b32 exec_hi, 0xff00"); A("s_nop 3")
        for e in range(0, 8, 2): A(f"ds_write2_b32 v13, v{160+4*e}, v{164+4*e} offset0:{e} offset1:{e+1}")
        A("s_mov_b64 exec, -1")
        A("s_waitcnt lgkmcnt(4)")
        LB("L_f_ck")
        A("v_max3_u32 v30, v33, v35, v37"); A("v_add_f32 v24, v32, v34"); A("v_max_u32 v30, v30, v39"); A("v_add_f32 v31, v36, v38")
        A("v_cmp_eq_u32 vcc, -1, v30"); A("v_add_f32 v30, v24, v31"); A("s_cbranch_vccz L_f_sok")
        A("ds_read_b128 v[32:35], v9"); A("ds_read_b128 v[36:39], v9 offset:16"); A("s_waitcnt lgkmcnt(0)"); A("s_branch L_f_ck")
        LB("L_f_sok")
        TC(3)
        A("v_add_f32 v33, v33, v35"); A("v_mul_f32 v30, 0x3e800000, v30"); A("v_add_f32 v37, v37, v39")
        for k in range(PRE): A(CH.pop(0))
        TC(4)
        A("s_waitcnt lgkmcnt(0)"); A("s_barrier")
        TC(5)
        TS(7)
        for p in range(8): A(f"ds_read2_b32 {vr(160+2*p,2)}, v{14 if p < 4 else 15} offset0:{64*(p&3)} offset1:{64*(p&3)+32}")
        for c_ in CH: A(c_)
        A("v_add_f32 v32, v32, v36"); A("v_mul_f32 v33, 0x3b000000, v33"); A("v_cvt_pk_bf16_f32 v30, v30, v30"); A("v_fmac_f32 v33, 0x3e800000, v32")
        A("v_and_b32 v30, 0xffff0000, v30")
        bf16r(33)
        A("v_add_f32 v33, 0x3727c5ac, v33")
        bf16r(33)
        A("v_sqrt_f32 v33, v33")
        for k in range(4):
            A(f"s_waitcnt lgkmcnt({6-2*k})"); A(f"v_pk_add_f32 {vr(160+4*k,2)}, {vr(160+4*k,2)}, {vr(162+4*k,2)}")
            if k == 0: A("v_cvt_pk_bf16_f32 v33, v33, v33")
            if k == 1: A("v_and_b32 v33, 0xffff0000, v33")
            if k == 2: A("v_rcp_f32 v32, v33")
        A("v_pk_add_f32 v[160:161], v[160:161], v[164:165]"); A("v_pk_add_f32 v[168:169], v[168:169], v[172:173]")
        A("v_pk_fma_f32 v[160:161], v[58:59], v[30:31], v[160:161] op_sel_hi:[1,0,1] neg_lo:[0,1,0] neg_hi:[0,1,0]")
        A("v_pk_add_f32 v[24:25], v[160:161], v[168:169]")
        A("v_pk_mul_f32 v[24:25], v[24:25], v[32:33] op_sel_hi:[1,0]")
    else:
        unpack(24, 28); unpack(26, 29)
        C("mean and centred sum of squares of this wave's 128 values; merged across waves after the barrier")
        A("v_readfirstlane_b32 s40, v24")
        A("ds_write_b64 v5, v[28:29]"); A("s_nop 0")
        for k in range(4): A(f"v_subrev_f32 v{32+k}, s40, v{24+k}")
        A("v_add_f32 v30, v32, v33"); A("v_mul_f32 v31, v32, v32"); A("v_add_f32 v36, v34, v35"); A("v_mul_f32 v37, v33, v33")
        A("v_fmac_f32 v31, v34, v34"); A("v_fmac_f32 v37, v35, v35"); A("v_add_f32 v30, v30, v36"); A("v_add_f32 v31, v31, v37")
        dpp_red("add_f32", [30, 31]); swap_red("add_f32", [30, 31], [32, 33], 16)
        A("v_mul_f32 v32, 0x3c000000, v30"); A("v_fma_f32 v31, -v32, v30, v31"); A("v_add_f32 v30, s40, v32")
        A("ds_write_b64 v7, v[30:31]")
        TC(1)
        barrier_real("L_f_nb1")
        TC(2)
        A("ds_read_b128 v[32:35], v9"); A("ds_read_b128 v[36:39], v9 offset:16")
        A("s_waitcnt lgkmcnt(0)")
        A("v_add_f32 v30, v32, v34"); A("v_add_f32 v31, v36, v38"); A("v_add_f32 v33, v33, v35"); A("v_add_f32 v30, v30, v31"); A("v_add_f32 v37, v37, v39")
        A("v_mul_f32 v30, 0x3e800000, v30"); A("v_add_f32 v33, v33, v37")
        for k in (32, 34, 36, 38): A(f"v_sub_f32 v{k}, v{k}, v30")
        A("v_mul_f32 v32, v32, v32"); A("v_mul_f32 v36, v36, v36"); A("v_fmac_f32 v32, v34, v34"); A("v_fmac_f32 v36, v38, v38")
        bf16r(30)
        A("v_add_f32 v32, v32, v36"); A("v_mul_f32 v33, 0x3b000000, v33"); A("v_fmac_f32 v33, 0x3e800000, v32")
        for k in range(4): A(f"v_sub_f32 v{24+k}, v{24+k}, v30")
        bf16r(33)
        A("v_add_f32 v33, 0x3727c5ac, v33")
        bf16r(33)
        A("v_sqrt_f32 v33, v33")
        A("v_cvt_pk_bf16_f32 v28, v24, v25"); A("v_cvt_pk_bf16_f32 v29, v26, v27")
        bf16r(33)
        A("v_rcp_f32 v33, v33")
        unpack(24, 28); unpack(26, 29)
        for k in range(4): A(f"v_mul_f32 v{24+k}, v{24+k}, v33")
        A("v_cvt_pk_bf16_f32 v28, v24, v25"); A("v_cvt_pk_bf16_f32 v29, v26, v27")
        A("ds_write_b64 v10, v[28:29]")
        TC(3)
        A("ds_read_b128 v[40:43], v11"); A("ds_read_b128 v[44:47], v11 offset:64")
        A("s_waitcnt lgkmcnt(1)")
        for e in range(8): A(f"v_mfma_f32_16x16x32_bf16 {vr(160+4*e,4)}, v[40:43], {vr(64+4*e,4)}, 0")
        A("s_waitcnt lgkmcnt(0)")
        for e in range(8): A(f"v_mfma_f32_16x16x32_bf16 {vr(160+4*e,4)}, v[44:47], {vr(96+4*e,4)}, {vr(160+4*e,4)}")
        A("s_mov_b32 exec_lo, 0xff"); A("s_mov_b32 exec_hi, 0xff00")
        A("s_nop 5")
        for e in range(0, 8, 2): A(f"ds_write2_b32 v13, v{160+4*e}, v{164+4*e} offset0:{e} offset1:{e+1}")
        A("s_mov_b64 exec, -1")
        TC(4)
        barrier_real("L_f_nb2")
        TC(5)
        TS(7)
        for p in range(8):
            if p == 4: A("v_add_u32 v15, 1024, v14")
            A(f"ds_read2_b32 {vr(24+2*p,2)}, v{14 if p < 4 else 15} offset0:{64*(p&3)} offset1:{64*(p&3)+32}")
        for k in range(4):
            A(f"s_waitcnt lgkmcnt({6-2*k})"); A(f"v_pk_add_f32 {vr(24+4*k,2)}, {vr(24+4*k,2)}, {vr(26+4*k,2)}")
        A("v_pk_add_f32 v[24:25], v[24:25], v[28:29]"); A("v_pk_add_f32 v[32:33], v[32:33], v[36:37]"); A("v_pk_add_f32 v[24:25], v[24:25], v[32:33]")
    A("v_cvt_pk_bf16_f32 v26, v24, v25")
    unpack(24, 26)
    A(f"v_mul_f32 v26, {NL2E:#x}, v24"); A("v_exp_f32 v26, v26"); A("s_nop 0")
    A("v_add_f32 v26, 1.0, v26"); A("v_rcp_f32 v26, v26"); A("s_nop 0")
    A("v_mul_f32 v26, v24, v26")
    bf16r(26)
    A("v_mul_f32 v26, v26, v25"); A("s_nop 1")
    A("v_mov_b32_dpp v27, v26 quad_perm:[1,0,3,2] row_mask:0xf bank_mask:0xf")
    A("v_cvt_pk_bf16_f32 v26, v26, v27"); A("s_nop 1")
    for k in range(4): A(f"v_mov_b32_dpp v{40+k}, v26 row_newbcast:{2*k} row_mask:0xf bank_mask:0xf")
    A("s_nop 1")
    TC(6)
    for e in range(8): A(f"v_mfma_f32_16x16x32_bf16 {vr(160+4*e,4)}, v[40:43], {vr(128+4*e,4)}, 0")
    A("s_nop 4")
    for e in range(4): A(f"v_cndmask_b32 v{24+e}, v{160+4*e}, v{176+4*e}, s[56:57]")
    A("s_mov_b32 exec_hi, 0")
    A("global_store_dwordx4 v56, v[24:27], s[26:27] sc1")
    A("s_mov_b64 exec, -1")
    TC(7); TC_fin(8)
    TS(8)
    A("s_cmp_eq_u32 s39, 0"); A("s_cbranch_scc1 L_f_fin")
    C("every first helper wave has read the old word long ago: give the next launch's hand-offs a different tag")
    A("s_cmp_lg_u32 s39, 1"); A("s_cbranch_scc1 L_f_next"); A("s_cmp_lg_u32 s59, 0"); A("s_cbranch_scc1 L_f_next")
    if dry: A("s_cmp_eq_u32 s46, 0"); A("s_cbranch_scc1 L_f_next")
    A("v_mov_b32 v57, 0"); A("s_mov_b64 exec, 1")
    A("global_store_dword v57, v3, s[26:27] sc1")
    A("s_mov_b64 exec, -1"); A("s_branch L_f_next")
    LB("L_f_fin")
    A("s_cmp_ge_u32 s59, 16"); A("s_cbranch_scc1 L_f_next")
    C("final stage: 32 output columns")
    def oload(r):
        for i in range(7): A(f"global_load_dwordx4 {vr(r+4*i,4)}, v53, s[26:27] offset:{1024*i-3072} sc1")
    def osum(r):
        TS(9)
        for d, x, y in ((160, r, r+4), (164, r+8, r+12), (168, r+16, r+20), (160, 160, r+24)):
            for h in range(2): A(f"v_pk_add_f32 {vr(d+2*h,2)}, {vr(x+2*h,2)}, {vr(y+2*h,2)}")
    A("s_waitcnt vmcnt(1)")
    oload(192)
    if dry:
        A(f"s_add_u32 s42, s26, {DUMMY}"); A("s_addc_u32 s43, s27, 0")
        A("s_cmp_eq_u32 s46, 0"); A("s_cselect_b32 s42, s42, s22"); A("s_cselect_b32 s43, s43, s23")
    else: A("s_mov_b64 s[42:43], s[22:23]")
    A("ds_read_b64 v[44:45], v55")
    A(f"s_mov_b32 s51, {SPIN_MAX}")
    if stag: A(f"s_sleep {stag}")
    LB("L_o_poll")
    oload(220)
    A("s_waitcnt vmcnt(7)")
    any_poison(range(192, 220), 40, NCH)
    A("s_cbranch_vccz L_o_gotA")
    oload(192)
    A("s_waitcnt vmcnt(7)")
    any_poison(range(220, 248), 40, NCH)
    if dry: A("s_cmp_eq_u32 s46, 0"); A("s_cbranch_scc1 L_o_gotB")
    A("s_sub_u32 s51, s51, 1"); A("s_cbranch_scc1 L_o_gotB")
    A("s_cbranch_vccnz L_o_poll")
    LB("L_o_gotB")
    osum(220)
    if dry: A("s_cmp_eq_u32 s46, 0"); A("s_cbranch_scc0 L_o_got")
    else: A("s_branch L_o_got")
    LB("L_o_gotA")
    osum(192)
    LB("L_o_got")
    for d, y in ((164, 168), (160, 164)):
        for h in range(2): A(f"v_pk_add_f32 {vr(d+2*h,2)}, {vr(d+2*h,2)}, {vr(y+2*h,2)}")
    A("s_nop 0")
    for k in range(4): A(f"v_add_f32_dpp v{160+k}, v{160+k}, v{160+k} row_ror:8 row_mask:0xf bank_mask:0xf")
    swap_red("add_f32", [160, 161, 162, 163], [164, 165, 166, 167], 16)
    swap_red("add_f32", [160, 161, 162, 163], [164, 165, 166, 167], 32)
    A("v_cvt_pk_bf16_f32 v164, v160, v161"); A("v_cvt_pk_bf16_f32 v165, v162, v163")
    unpack(160, 164); unpack(162, 165)
    A("s_waitcnt lgkmcnt(0)")
    unpack(164, 44); unpack(166, 45)
    A("v_pk_add_f32 v[160:161], v[160:161], v[164:165]"); A("v_pk_add_f32 v[162:163], v[162:163], v[166:167]")
    A("v_cvt_pk_bf16_f32 v160, v160, v161"); A("v_cvt_pk_bf16_f32 v161, v162, v163")
    A("s_mov_b64 exec, 0xff")
    A("global_store_dwordx2 v54, v[160:161], s[42:43] " + outf)
    A("s_mov_b64 exec, -1")
    LB("L_f_next")
    TS(10)
    if dry:
        A("s_cmp_eq_u32 s46, 1"); A("s_cbranch_scc1 L_hdone")
        A("s_mov_b32 s46, 1")
        gate_wait("L_f_gate", 2 if g2 else 1)
        A("s_branch L_f_pass")
    LB("L_hdone")
    TS_flush("H")
    LB("L_end")
    A("s_endpgm")
    L.append('.section .rodata,"a"'); L.append(".p2align 6"); L.append(f".amdhsa_kernel {NAME}_kernel")
    for s in ("next_free_vgpr 256", "next_free_sgpr 102" if fine else "next_free_sgpr 96", "accum_offset 256", "group_segment_fixed_size 0", "kernarg_size 96",
              "user_sgpr_count 2", "user_sgpr_kernarg_segment_ptr 1", "system_sgpr_workgroup_id_x 1", "float_denorm_mode_32 3"):
        L.append("  .amdhsa_" + s)
    L.append(".end_amdhsa_kernel")
    return "\n".join(L) + "\n"

if __name__ == "__main__":
    kw = eval("dict(" + (sys.argv[2] if len(sys.argv) > 2 else "") + ")")
    open(sys.argv[1], "w").write(gen(**kw))
```

```python
import sys
NAME = "sequential_preLN__gqa_block_cached__glu_gated_swiglu__decode"

WQL = 0x20000; SP = 0x20000
QL = 0x27000; SML = 0x27400; CNT = 0x27480; GATE = 0x27484; QRDY = 0x27488; WQC = 0x2748C; TAGL = 0x27490
WB = 0x25000; OB = 0x25200; RED = 0x25800; HB = 0x26000; HM = 0x26400; ST = 0x26600; HN = 0x26800; EL = 0x24000; TQ = 0x24400; REDC = 0x27800
LDS_BYTES = 163840
EPOCH = 0; ALIVE = 0x400; QH = 0x800; AR = 0xC00; POOL = 0xC000; PPOOL = 0xF8000; QBUF = 0xD0000; ML = 0xF0000; H2 = 0x50000; PART = 0x10000; H3 = 0x90000; DUMMY = 0xB0000; TSB = 0x100000
TAGC = 0x9E3779B9
L2E = 0x3FB8AA3B; NL2E = 0xBFB8AA3B; SCALE = 0x3DB504F3
SPIN_MAX = 1 << 16


HEADER = """
;
"""

def gen(PACE=6, PACE0=5, S=28, NG=8, touch=False, qsleep=8, early=False, hold=False, gsleep=2, jitf=True, jitw=False, wqmap=False, ksplit=True, lazy=True, rot=0, rotm='x', F=0, fk=False, wgt=False, sq=False, QW=8, sa=False, XS=16, rep=True, qmask=0xffff, nopois=False, noalive=False, I1=16, I2=22, IW=1, IU=1, fuse=True, nohint=1, gok=True, NCH=3, mlt=True, qretry=0, nowait=False, w4stop=0, PRE=5, ilv=False, burst=True, KP=(2,1,1), XB=24, hmove=False, pfh=False, fine=False, wburst=False, w13f='', tp=True, NA=0, NK0=13, lst=False, KS=0, VR=0, KT=7, pfw=2, pfo=0, jith=2, jfull=False, jov=True, XW=0, sk7=True, jlvl=2, n2=2, n3=2, stag3=2, late=0, late2=0, latem=7, tw=0, sprio=0, wprio=3, align=0, SKW=0, SKF=3, SKT=17, WTRIG=0, hint2=2, h2sleep=0, outf='sc1', qgf='sc1', pof='sc1', qsf='sc1', xf='', pwoff=0, PACEB=15, pw=0, pws='mpho', pwf='sc1', TPOS=5, g2=True, R1=8, R2=5, barpos=0, pf=True, stag=3, wend=False, rr=True, noswz=False, nocomp=False, noh=False, NV=4, VSTART=2, VSTEP=2, VW=0, QTH=20, MLTH=-1, noroles=False, dbgts=False, prog=False, ts=False, dry=False, wq_flags="nt", w_flags="nt", kv_flags="nt"):
    if tp:
        assert S % 2 == 0 and not ilv and not rot and not F and not wgt and lazy and ksplit
        SKW = SKF = 0
    lst = tp and (lst or NA > 0)
    if lst: S = 2 * (NK0 + NA)
    NK = S // 2; DA = 32 * NA; CAP = 20
    PR = 128 - 4 * S; D = 8 * PR; PRM = -(-(1 << 16) // PR)
    assert all((t * PRM) >> 16 == t // PR for t in range(D))
    P = 4 * (S - F) if F else 0
    L = []
    def A(s): L.append("  " + s)
    def LB(s): L.append(s + ":")
    def C(s): L.append("  ; " + s)
    def vr(a, n): return f"v[{a}:{a+n-1}]"
    def TS(k):
        if ts and not fine:
            A("s_memrealtime s[60:61]"); A("s_waitcnt lgkmcnt(0)"); A(f"s_mov_b32 s{64+k}, s60")
    def TC(k):
        if fine:
            A(f"s_memtime s[{80+2*k}:{81+2*k}]")
    def TC_fin(n):
        if fine:
            A("s_waitcnt lgkmcnt(0)")
            for k in range(n): A(f"s_mov_b32 s{64+k}, s{80+2*k}")
    def TS_flush(kind="S"):
        if ts and dbgts:
            A("s_mov_b64 exec, -1"); A("v_mov_b32 v250, 0")
            if kind == "S":
                A("s_not_b32 s62, s64"); A("v_writelane_b32 v250, s62, 0"); A("s_not_b32 s62, s70"); A("v_writelane_b32 v250, s62, 13")
                for lane, k in ((1, 6), (2, 1), (3, 2), (4, 5)): A(f"v_writelane_b32 v250, s{64+k}, {lane}")
            else:
                for lane, k in ((5, 1), (6, 3), (7, 4)): A(f"v_writelane_b32 v250, s{64+k}, {lane}")
                A("s_not_b32 s62, s68"); A("s_cmp_eq_u32 s68, 0"); A("s_cselect_b32 s62, 0, s62"); A("v_writelane_b32 v250, s62, 14")
                A("s_cmp_eq_u32 s47, 0"); A("s_cbranch_scc0 L_dbgf")
                A("v_writelane_b32 v250, s70, 8"); A("v_writelane_b32 v250, s71, 9"); A("s_branch L_dbge")
                LB("L_dbgf")
                A("v_writelane_b32 v250, s70, 10"); A("v_writelane_b32 v250, s72, 11"); A("v_writelane_b32 v250, s74, 12")
                LB("L_dbge")
            A("v_mbcnt_lo_u32_b32 v251, -1, 0"); A("v_mbcnt_hi_u32_b32 v251, -1, v251"); A("v_lshlrev_b32 v251, 2, v251")
            A("s_mov_b64 exec, 0xffff")
            A("global_atomic_umax v251, v250, s[24:25] sc1")
        elif ts:
            A("s_mov_b64 exec, -1")
            A("v_mov_b32 v250, 0")
            for k in range(16): A(f"v_writelane_b32 v250, s{64+k}, {k}")
            A("v_mbcnt_lo_u32_b32 v251, -1, 0"); A("v_mbcnt_hi_u32_b32 v251, -1, v251")
            A("s_lshl_b32 s62, s2, 3"); A("s_add_u32 s62, s62, s3"); A("s_lshl_b32 s62, s62, 6"); A(f"s_add_u32 s62, s62, {TSB}")
            A("v_lshl_add_u32 v251, v251, 2, s62")
            A("s_mov_b64 exec, 0xffff")
            A("global_store_dword v251, v250, s[26:27]")
    def dpp_red(op, xs):
        for rot in (8, 4, 2, 1):
            if len(xs) < 3: A(f"s_nop {2 - len(xs)}" if len(xs) < 2 else "s_nop 0")
            for x in xs: A(f"v_{op}_dpp v{x}, v{x}, v{x} row_ror:{rot} row_mask:0xf bank_mask:0xf")
    def swap_red(op, xs, ts_, which):
        for x, t in zip(xs, ts_): A(f"v_mov_b32 v{t}, v{x}")
        A("s_nop 1")
        for x, t in zip(xs, ts_): A(f"v_permlane{which}_swap_b32 v{x}, v{t}")
        for x, t in zip(xs, ts_): A(f"v_{op} v{x}, v{x}, v{t}")
    def unpack(dst, src):
        A(f"v_lshlrev_b32 v{dst}, 16, v{src}"); A(f"v_and_b32 v{dst+1}, 0xffff0000, v{src}")
    def bf16r(x):
        A(f"v_cvt_pk_bf16_f32 v{x}, v{x}, v{x}"); A(f"v_and_b32 v{x}, 0xffff0000, v{x}")
    def layernorm(src, f, t):
        for k in range(4): unpack(f + 2 * k, src + k)
        A(f"v_add_f32 v{t}, v{f}, v{f+1}"); A(f"v_add_f32 v{t+1}, v{f+2}, v{f+3}")
        A(f"v_add_f32 v{t+2}, v{f+4}, v{f+5}"); A(f"v_add_f32 v{t+3}, v{f+6}, v{f+7}")
        A(f"v_add_f32 v{t}, v{t}, v{t+1}"); A(f"v_add_f32 v{t+2}, v{t+2}, v{t+3}"); A(f"v_add_f32 v{t}, v{t}, v{t+2}")
        dpp_red("add_f32", [t]); swap_red("add_f32", [t], [t+1], 16); swap_red("add_f32", [t], [t+1], 32)
        A(f"v_mul_f32 v{t}, 0x3b000000, v{t}")
        A(f"v_sub_f32 v{t+2}, v{f}, v{t}"); A(f"v_mul_f32 v{t+1}, v{t+2}, v{t+2}")
        for k in range(1, 8):
            A(f"v_sub_f32 v{t+2}, v{f+k}, v{t}"); A(f"v_fmac_f32 v{t+1}, v{t+2}, v{t+2}")
        bf16r(t)
        dpp_red("add_f32", [t+1]); swap_red("add_f32", [t+1], [t+2], 16); swap_red("add_f32", [t+1], [t+2], 32)
        A(f"v_mul_f32 v{t+1}, 0x3b000000, v{t+1}")
        bf16r(t+1)
        A(f"v_add_f32 v{t+1}, 0x3727c5ac, v{t+1}")
        bf16r(t+1)
        A(f"v_sqrt_f32 v{t+1}, v{t+1}")
        for k in range(8): A(f"v_sub_f32 v{f+k}, v{f+k}, v{t}")
        bf16r(t+1)
        A(f"v_rcp_f32 v{t+1}, v{t+1}")
        for k in range(4): A(f"v_cvt_pk_bf16_f32 v{src+k}, v{f+2*k}, v{f+2*k+1}")
        for k in range(4): unpack(f + 2 * k, src + k)
        for k in range(8): A(f"v_mul_f32 v{f+k}, v{f+k}, v{t+1}")
        for k in range(4): A(f"v_cvt_pk_bf16_f32 v{src+k}, v{f+2*k}, v{f+2*k+1}")
    def transpose8(dst, src):
        for e in range(8):
            for j in range(4):
                a = src + 4 * (2 * j) + (e >> 1); b = src + 4 * (2 * j + 1) + (e >> 1)
                A(f"v_perm_b32 v{dst+4*e+j}, v{b}, v{a}, s{45 if e & 1 else 44}")
    def any_poison(regs, t, nt=1):
        regs = list(regs)
        if nt > 1:
            chains = [regs[k::nt] for k in range(nt)]; started = [False] * nt
            while any(chains):
                for k in range(nt):
                    c = chains[k]
                    if not c: continue
                    if not started[k]:
                        n = min(3, len(c)); x = c[:n]; started[k] = True
                    else:
                        n = min(2, len(c)); x = [t + k] + c[:n]
                    A(f"v_max3_u32 v{t+k}, v{x[0]}, v{x[1]}, v{x[2]}" if len(x) == 3 else f"v_max_u32 v{t+k}, v{x[0]}, v{x[1]}")
                    chains[k] = c[n:]
            regs = list(range(t, t + nt))
        A(f"v_max3_u32 v{t}, v{regs[0]}, v{regs[1]}, v{regs[2]}" if len(regs) >= 3 else f"v_max_u32 v{t}, v{regs[0]}, v{regs[1]}")
        rest = regs[3:] if len(regs) >= 3 else []
        while len(rest) >= 2:
            A(f"v_max3_u32 v{t}, v{t}, v{rest[0]}, v{rest[1]}"); rest = rest[2:]
        if rest: A(f"v_max_u32 v{t}, v{t}, v{rest[0]}")
        A(f"v_cmp_eq_u32 vcc, -1, v{t}")
    def polln(tag, sets, nld, load, check, done, sl):
        n = len(sets)
        for r in sets[:-1]:
            load(r); A(f"s_sleep {sl}")
        LB(f"{tag}_poll")
        for k in range(n):
            load(sets[k - 1]); A(f"s_waitcnt vmcnt({nld * (n - 1)})"); check(sets[k])
            if k < n - 1: A(f"s_cbranch_vccz {tag}_g{k}")
        A("s_sub_u32 s51, s51, 1"); A(f"s_cbranch_scc1 {tag}_g{n-1}"); A(f"s_cbranch_vccnz {tag}_poll")
        for k in range(n - 1, -1, -1):
            LB(f"{tag}_g{k}"); done(sets[k])
            if k: A(f"s_branch {tag}_got")
    def barrier_real(lbl):
        A("s_waitcnt lgkmcnt(0)")
        if dry: A("s_cmp_eq_u32 s46, 0"); A(f"s_cbranch_scc1 {lbl}")
        A("s_barrier"); LB(lbl)
    def scheck(lbl, off, n):
        A(f"s_mov_b32 s51, {SPIN_MAX}")
        for r in range(0, n, 16):
            w = min(16, n - r)
            LB(f"{lbl}_{r}")
            A(f"s_load_dwordx{w} s[80:{79+w}], s[26:27], s41 glc")
            A("s_sub_u32 s51, s51, 1"); A(f"s_cbranch_scc1 {lbl}_x")
            A("s_waitcnt lgkmcnt(0)")
            for k in range(w): A(f"s_xor_b32 s{80+k}, s{80+k}, s58")
            for k in range(1, w): A(f"s_or_b32 s80, s80, s{80+k}")
            A(f"s_cbranch_scc1 {lbl}_{r}")
            if r + 16 < n: A("s_add_u32 s41, s41, 64")
        LB(f"{lbl}_x")
        A("s_waitcnt lgkmcnt(0)")
    def alive(tag):
        if wend: A("s_branch L_hdone")
        if noalive: return
        C("every workgroup reset its hand-off slots before it wrote its word here")
        if gok:
            A(f"v_and_b32 v4, 7, v0"); A("v_lshlrev_b32 v4, 2, v4"); A(f"s_mov_b32 s51, {SPIN_MAX}")
            LB(f"L_alive_{tag}")
            A(f"global_load_dword v24, v4, s[26:27] offset:{ALIVE} sc1")
            A("s_sub_u32 s51, s51, 1"); A(f"s_cbranch_scc1 L_alive_ok_{tag}")
            A("s_waitcnt vmcnt(0)")
            A("v_cmp_ne_u32 vcc, v24, v3"); A(f"s_cbranch_vccnz L_alive_{tag}")
            LB(f"L_alive_ok_{tag}")
            A("s_waitcnt vmcnt(0)")
            return
        if sa:
            A("v_readfirstlane_b32 s58, v3")
            if tag == "w": A("s_lshl_b32 s41, s36, 7"); A(f"s_add_u32 s41, s41, {ALIVE}"); scheck("L_alw", 0, 32)
            else: A(f"s_mov_b32 s41, {AR}"); scheck("L_alf", 0, 120)
            return
        A(f"v_lshlrev_b32 v4, 4, v0"); A(f"v_add_u32 v4, {ALIVE}, v4")
        A(f"s_mov_b32 s51, {SPIN_MAX}")
        LB(f"L_alive_{tag}")
        A("global_load_dwordx4 v[24:27], v4, s[26:27] sc1")
        A("s_sub_u32 s51, s51, 1"); A(f"s_cbranch_scc1 L_alive_ok_{tag}")
        A("s_waitcnt vmcnt(0)")
        for k in range(4): A(f"v_xor_b32 v{24+k}, v{24+k}, v3")
        A("v_or3_b32 v24, v24, v25, v26"); A("v_or_b32 v24, v24, v27")
        A("v_cmp_ne_u32 vcc, 0, v24"); A(f"s_cbranch_vccnz L_alive_{tag}")
        LB(f"L_alive_ok_{tag}")
        A("s_waitcnt vmcnt(0)")
    def gate_wait(lbl, lvl=1):
        A(f"v_mov_b32 v1, {GATE}")
        LB(lbl)
        A(f"s_sleep {gsleep}"); A("ds_read_b32 v2, v1"); A("s_waitcnt lgkmcnt(0)"); A("v_readfirstlane_b32 s40, v2")
        A(f"s_cmp_lt_u32 s40, {lvl}"); A(f"s_cbranch_scc1 {lbl}")

    L.extend(HEADER.strip("\n").split("\n"))
    L.append(f"; @launch grid=(256,1,1) block=(512,1,1) lds={LDS_BYTES}")
    L.append('.amdgcn_target "amdgcn-amd-amdhsa--gfx950"')
    L.append(".text"); L.append(f".globl {NAME}_kernel"); L.append(".p2align 8"); L.append(f".type {NAME}_kernel,@function")
    LB(f"{NAME}_kernel")
    A("s_cmp_ge_u32 s2, 256"); A("s_cbranch_scc1 L_end")
    if late:
        A(f"s_and_b32 s3, s2, {latem}"); A(f"s_cmp_lg_u32 s3, {3 & latem}"); A("s_cbranch_scc1 L_nolate")
        for _ in range(late): A("s_sleep 37")
        LB("L_nolate")
    A("s_load_dwordx16 s[4:19], s[0:1], 0")
    A("s_load_dwordx8 s[20:27], s[0:1], 64")
    if ts:
        for k in range(16): A(f"s_mov_b32 s{64+k}, 0")
        A("s_memrealtime s[60:61]")
    A("v_lshrrev_b32 v1, 6, v0")
    A("v_and_b32 v0, 63, v0")
    A("v_readfirstlane_b32 s3, v1")
    def codepf():
        if pf:
            C("one idle wave pulls this kernel's code towards the L2 while the others start")
            A("s_cmp_lg_u32 s3, 5"); A("s_cbranch_scc1 L_nopf")
            A("s_getpc_b64 s[40:41]"); LB("L_pc")
            A(f"s_sub_u32 s40, s40, L_pc-{NAME}_kernel"); A("s_subb_u32 s41, s41, 0")
            A("v_lshlrev_b32 v8, 7, v0"); A(f"v_min_u32 v9, L_end-{NAME}_kernel-8192, v8")
            A("global_load_dword v10, v8, s[40:41] " + xf); A("s_add_u32 s40, s40, 8192"); A("s_addc_u32 s41, s41, 0"); A("global_load_dword v10, v9, s[40:41] " + xf)
            LB("L_nopf")
    if not pfh: codepf()
    A("s_lshr_b32 s36, s2, 5")
    A("s_and_b32 s37, s2, 31")
    A("s_and_b32 s38, s2, 7"); A("s_lshl_b32 s38, s38, 2"); A("s_lshr_b32 s39, s37, 3"); A("s_add_u32 s38, s38, s39")
    A(f"v_mov_b32 v1, {CNT}")
    for k in range(4): A(f"v_mov_b32 v{4+k}, 0")
    A("ds_write_b128 v1, v[4:7]")
    def hentry():
        if pfh: codepf()
        A("v_mov_b32 v16, 0"); A("v_lshlrev_b32 v1, 4, v0")
        A("s_lshl_b32 s40, s36, 10"); A(f"s_add_u32 s40, s40, {POOL}"); A("v_and_b32 v19, 7, v0"); A("v_lshl_add_u32 v19, v19, 7, s40")
        A("s_waitcnt lgkmcnt(0)")
        A("s_cmp_lg_u32 s3, 4"); A("s_cbranch_scc1 L_hbar")
        if F:
            A("s_cmp_lt_u32 s37, 24"); A("s_cbranch_scc1 L_hx")
            A("s_and_b32 s40, s2, 7"); A("s_lshl_b32 s41, s36, 3"); A("s_add_u32 s40, s40, s41"); A("s_lshl_b32 s40, s40, 9"); A(f"s_add_u32 s40, s40, {PPOOL}")
            A("v_and_b32 v18, 3, v0"); A("v_lshl_add_u32 v18, v18, 7, s40")
            A("global_store_dword v18, v16, s[26:27] sc1")
        A("s_cmp_lg_u32 s37, 31"); A("s_cbranch_scc1 L_hx")
        A("global_store_dword v19, v16, s[26:27] sc1")
        LB("L_hx")
        A("global_load_dwordx4 v[4:7], v1, s[4:5]")
        A("global_load_dword v3, v16, s[26:27] sc1")
        LB("L_hbar")
        A("s_barrier"); A("s_branch L_helper")
    if hmove: A("s_cmp_ge_u32 s3, 4"); A("s_cbranch_scc1 L_hentry")
    else:
        A("s_cmp_lt_u32 s3, 4"); A("s_cbranch_scc1 L_stream"); hentry(); LB("L_stream")

    C("streaming waves: K/V tiles of 16 keys through a 4-slot LDS ring per wave")
    if sprio: A(f"s_setprio {sprio}")
    A("v_lshrrev_b32 v20, 4, v0")
    A("v_and_b32 v21, 15, v0")
    A("v_lshlrev_b32 v22, 1, v20")
    A("v_xor_b32 v22, v22, v21")
    A("v_lshlrev_b32 v22, 4, v22")
    A("v_lshl_add_u32 v2, v20, 8, v22")
    A("v_xor_b32 v3, 0x80, v2"); A("v_xor_b32 v4, 16, v2"); A("v_xor_b32 v5, 0x90, v2")
    if noswz:
        for i in range(4): A(f"v_lshlrev_b32 v{2+i}, 4, v0")
    C("four workgroups share a 2 MiB page of K and V (rows of 4 tiles interleaved); the last rows of all pages form a ticket pool")
    if tw: A(f"s_mul_i32 s40, s36, {tw}"); A("s_add_u32 s40, s40, s2"); A("s_and_b32 s40, s40, 7")
    else: A("s_and_b32 s40, s2, 7")
    A("s_lshl_b32 s41, s36, 3"); A("s_add_u32 s40, s40, s41"); A("s_lshl_b32 s40, s40, 21")
    A("s_lshl_b32 s41, s39, 14"); A("s_add_u32 s40, s40, s41")
    A("s_lshl_b32 s41, s3, 12"); A("s_add_u32 s40, s40, s41")
    if rot:
        A(f"s_and_b32 s59, s40, {~0x1fffff & 0xffffffff:#x}"); A(f"s_add_u32 s59, s59, {4*S*16384}")
        if rotm == 'x': A("s_and_b32 s41, s2, 7")
        elif rotm == 'h': A("s_mov_b32 s41, s36")
        else: A("s_and_b32 s41, s2, 7"); A("s_xor_b32 s41, s41, s36")
        A(f"s_mul_i32 s41, s41, {rot * 65536}"); A("s_add_u32 s40, s40, s41")
    A("s_lshl_b32 s41, s3, 15")
    A("s_mov_b32 s30, 0x8000000"); A("s_mov_b32 s31, 0x20000"); A("s_mov_b32 s34, 0x8000000"); A("s_mov_b32 s35, 0x20000")
    A("s_mov_b32 s42, 0x2000")
    A("s_mov_b32 s44, 4")
    C("first: 32 rows x 64 columns of wq per wave into LDS (used by the first helper wave)")
    A("v_lshrrev_b32 v22, 3, v0"); A("v_and_b32 v23, 7, v0"); A("v_lshlrev_b32 v22, 13, v22"); A("v_lshl_add_u32 v22, v23, 4, v22")
    A("s_lshl_b32 s47, s39, 20"); A("s_lshl_b32 s48, s3, 18"); A("s_add_u32 s47, s47, s48"); A("s_lshl_b32 s48, s36, 10"); A("s_add_u32 s47, s47, s48")
    A("s_and_b32 s48, s2, 7"); A("s_lshl_b32 s48, s48, 7"); A("s_add_u32 s47, s47, s48")
    A("s_lshl_b32 s48, s3, 12"); A(f"s_add_u32 m0, s48, {WQL}")
    A("s_waitcnt lgkmcnt(0)")
    if ts: A("s_mov_b32 s64, s60")
    A("s_add_u32 s48, s10, s47"); A("s_addc_u32 s49, s11, 0")
    for k in range(4):
        if k: A("v_add_u32 v22, 0x10000, v22"); A("s_add_u32 m0, m0, 1024"); A("s_nop 0")
        else: A("s_mov_b32 s28, s6")
        A(f"global_load_lds_dwordx4 v22, s[48:49] {wq_flags}")
    A("s_and_b32 s29, s7, 0xffff")
    if tp: A("s_add_u32 s32, s6, 0x10000"); A("s_addc_u32 s33, s29, 0"); A("s_mov_b32 s62, s40")
    else: A("s_mov_b32 s32, s8"); A("s_and_b32 s33, s9, 0xffff")
    if barpos == 0: A("s_barrier")
    TS(6)
    def pf_ffn():
        if sk7: A("s_and_b32 s48, s2, 7"); A("s_cmp_eq_u32 s48, 7"); A("s_cbranch_scc1 L_nopff")
        A("global_load_dword v144, v[20:21], off"); A("global_load_dword v145, v[20:21], off offset:64")
        if sk7: LB("L_nopff")
    def pf_woh():
        A("s_lshr_b32 s48, s2, 3"); A("s_lshl_b32 s48, s48, 2"); A("s_add_u32 s48, s48, s3")
        A("s_lshr_b32 s49, s48, 4"); A("s_lshl_b32 s49, s49, 16"); A("s_and_b32 s48, s48, 15"); A("s_lshl_b32 s48, s48, 11"); A("s_add_u32 s48, s48, s49")
        A("s_and_b32 s49, s2, 7"); A("s_lshl_b32 s49, s49, 19"); A("s_add_u32 s48, s48, s49"); A("s_add_u32 s48, s48, 0x8000")
        A("v_and_b32 v146, 31, v0"); A("v_lshl_add_u32 v146, v146, 6, s48")
        A("global_load_dword v147, v146, s[12:13]")
    def pf_wo():
        A("s_lshr_b32 s48, s2, 3"); A("s_lshl_b32 s48, s48, 2"); A("s_add_u32 s48, s48, s3"); A("s_lshl_b32 s48, s48, 12")
        A("s_and_b32 s49, s2, 7"); A("s_lshl_b32 s49, s49, 19"); A("s_add_u32 s48, s48, s49"); A("v_lshl_add_u32 v146, v0, 6, s48")
        A("global_load_dword v147, v146, s[12:13]")
    def adv():
        A(f"s_add_u32 s40, s40, {131072 if tp else 65536}")
        if rot: A("s_cmp_ge_u32 s40, s59"); A(f"s_cselect_b32 s48, {4*S*16384}, 0"); A("s_sub_u32 s40, s40, s48")
    def issue_tile(pace, tk=False):
        def ticket(i):
            if tk and i == TPOS:
                if lst: A("s_cmp_eq_u32 s38, 0")
                else: A("s_cmp_lg_u32 s43, 0")
                A(f"s_cbranch_scc1 L_notk{tk}")
                if wgt:
                    A("s_mov_b64 exec, 1"); A("ds_add_rtn_u32 v22, v23, v119"); A("s_mov_b64 exec, -1")
                    A("s_waitcnt lgkmcnt(0)"); A("v_readfirstlane_b32 s48, v22")
                    A("s_cmp_eq_u32 s48, 0"); A("s_cselect_b32 s56, 1, 0"); A(f"s_cbranch_scc0 L_notk{tk}")
                A("s_mov_b32 s58, 1"); A(f"s_atomic_add s58, s[26:27], {'s38' if lst else 's56' if F else 's57'} glc")
                LB(f"L_notk{tk}")
        if lst and tk == 1: A("s_mov_b32 m0, s59"); A("s_add_u32 s59, s59, 1"); A("v_writelane_b32 v21, s40, m0")
        A("s_mov_b32 m0, s41")
        for i in range(4):
            ticket(i); A(f"s_waitcnt vmcnt({pace})"); A(f"buffer_load_dwordx4 v{2+i}, s[28:31], s40 offen offset:{i*1024} {kv_flags} lds")
        A("s_add_u32 m0, s41, 4096")
        for i in range(4):
            ticket(4 + i); A(f"s_waitcnt vmcnt({pace})"); A(f"buffer_load_dwordx4 v{2+i}, s[32:35], s40 offen offset:{i*1024} {kv_flags} lds")
        ticket(8)
        adv()
    LB("L_fill")
    issue_tile(PACE0)
    A("s_xor_b32 s41, s41, s42"); A("s_xor_b32 s42, s42, 0x4000")
    A("s_cmp_lg_u32 s44, 4"); A("s_cbranch_scc1 L_nosig")
    if barpos == 1: A("s_barrier")
    A("s_waitcnt vmcnt(8)"); A("v_mov_b32 v22, 1"); A("s_mov_b64 exec, 1")
    A(f"ds_add_u32 v1, v22 offset:{WQC - CNT}"); A("s_mov_b64 exec, -1")
    LB("L_nosig")
    A("s_sub_u32 s44, s44, 1"); A("s_cmp_lg_u32 s44, 0"); A("s_cbranch_scc1 L_fill")
    if hmove:
        A("s_branch L_filled"); LB("L_hentry"); hentry(); LB("L_filled")
    TS(1)
    A("s_lshl_b32 s46, s36, 24"); A("s_lshl_b32 s47, s3, 12"); A("s_add_u32 s46, s46, s47"); A(f"s_add_u32 s46, s46, {4*S*16384}")
    if wgt:
        assert not F and D + 2 <= 256
        A("s_lshl_b32 s57, s36, 10"); A(f"s_add_u32 s57, s57, {POOL}")
        A("s_mov_b32 s56, 0")
    else:
        A("s_lshl_b32 s57, s36, 2"); A("s_add_u32 s57, s57, s3"); A("s_lshl_b32 s57, s57, 8"); A(f"s_add_u32 s57, s57, {POOL}")
    A("s_mov_b32 s58, 0")
    if XW: A("s_cmp_lt_u32 s37, 8"); A(f"s_cselect_b32 s83, {D - XW}, {D - XS}") if max(D - XW, D - XS) <= 64 else (A(f"s_mov_b32 s83, {D - XS}"), A(f"s_cmov_b32 s83, {D - XW}")); A(f"s_min_u32 s84, s83, {D - XB}")
    if F:
        A("s_and_b32 s56, s2, 7"); A("s_lshl_b32 s47, s36, 3"); A("s_add_u32 s56, s56, s47")
        A("s_lshl_b32 s59, s56, 21"); A("s_lshl_b32 s47, s3, 12"); A("s_add_u32 s59, s59, s47"); A(f"s_add_u32 s59, s59, {4*F*16384}")
        A("s_lshl_b32 s56, s56, 2"); A("s_add_u32 s56, s56, s3"); A("s_lshl_b32 s56, s56, 7"); A(f"s_add_u32 s56, s56, {PPOOL}")
    C("addresses of the final merge")
    if tp: A("s_lshl_b32 s47, s3, 15")
    else: A("s_lshl_b32 s47, s3, 11"); A(f"s_add_u32 s47, s47, {SP}")
    A("v_lshlrev_b32 v122, 9, v21"); A("v_lshl_add_u32 v122, v20, 4, v122"); A("v_add_u32 v122, s47, v122")
    A("s_lshl_b32 s47, s3, 5"); A(f"s_add_u32 s47, s47, {SML}")
    A("v_lshl_add_u32 v123, v21, 3, s47")
    A(f"v_lshlrev_b32 v124, 5, v0")
    if not tp: A(f"v_add_u32 v124, {SP}, v124")
    A(f"v_lshlrev_b32 v125, 3, v20"); A(f"v_add_u32 v125, {SML}, v125")
    A("s_lshl_b32 s47, s36, 15"); A("s_lshl_b32 s48, s38, 8"); A("s_add_u32 s47, s47, s48"); A(f"s_add_u32 s47, s47, {PART}")
    A("v_lshlrev_b32 v126, 13, v20"); A("v_lshl_add_u32 v126, v21, 4, v126"); A("v_add_u32 v126, s47, v126")
    A("s_lshl_b32 s47, s36, 12"); A("s_lshl_b32 s48, s38, 7"); A("s_add_u32 s47, s47, s48"); A(f"s_add_u32 s47, s47, {ML}")
    A(f"v_lshl_add_u32 v127, v20, {4 if mlt else 3}, s47")
    A(f"v_mov_b32 v1, {CNT}"); A("v_mov_b32 v119, 1")
    A(f"s_mov_b32 s43, {(NK0 if lst else F if F else S) - 4}")
    if SKW or SKF:
        A("s_mov_b32 s62, 0"); A("s_cmp_lt_u32 s37, 15"); A(f"s_cselect_b32 s62, {SKF}, s62"); A("s_cmp_lt_u32 s37, 8"); A(f"s_cselect_b32 s62, {SKW}, s62")
    A("v_lshlrev_b32 v23, 1, v21"); A("v_and_b32 v23, 15, v23"); A("v_lshrrev_b32 v24, 3, v21"); A("v_or_b32 v23, v23, v24")
    A("v_and_b32 v24, 1, v20"); A("v_lshlrev_b32 v24, 1, v24"); A("v_lshrrev_b32 v25, 1, v20"); A("v_or_b32 v24, v24, v25")
    A("v_xor_b32 v23, v23, v24"); A("v_lshlrev_b32 v23, 4, v23"); A("v_lshl_add_u32 v23, v21, 8, v23")
    A("v_add_u32 v6, s41, v23")
    for s in range(1, 4): A(f"v_xor_b32 v{6+s}, {s << 6}, v6")
    A("v_lshrrev_b32 v25, 2, v0")
    A("v_lshlrev_b32 v26, 1, v25"); A("v_and_b32 v26, 15, v26"); A("v_lshrrev_b32 v27, 3, v25"); A("v_or_b32 v26, v26, v27")
    A("v_bfe_u32 v27, v0, 1, 1"); A("v_xor_b32 v26, v26, v27"); A("v_lshlrev_b32 v26, 4, v26")
    A("v_lshl_add_u32 v26, v25, 8, v26")
    A("v_and_b32 v27, 1, v0"); A("v_lshl_add_u32 v26, v27, 3, v26")
    if tp: A("v_add_u32 v10, s41, v26")
    else: A("s_add_u32 s44, s41, 4096"); A("v_add_u32 v10, s44, v26")
    for t in range(1, 8): A(f"v_xor_b32 v{10+t}, {t << 5}, v10")
    A("v_and_b32 v25, 3, v21"); A("v_lshlrev_b32 v25, 8, v25"); A("v_lshl_add_u32 v25, v24, 4, v25"); A(f"v_add_u32 v108, {QL}, v25")
    if tp:
        A("v_and_b32 v23, 3, v21"); A("v_lshlrev_b32 v23, 5, v23"); A("v_lshl_add_u32 v23, v20, 3, v23")
        A(f"s_mul_i32 s47, s3, {CAP * 256}"); A(f"s_add_u32 s47, s47, {WQL}"); A("v_add_u32 v23, s47, v23")
        A("s_mov_b32 s47, 0")
        if lst:
            A("s_sub_u32 s48, s37, 8"); A("s_cmp_lt_u32 s48, 7"); A(f"s_cselect_b32 s80, {VR}, 0"); A(f"s_cselect_b32 s81, {KS}, 0")
            for k in range(4): A(f"v_writelane_b32 v21, s62, {k}"); A("s_add_u32 s62, s62, 131072")
            A("s_mov_b32 s59, 4"); A("s_movk_i32 s62, 0x1000"); A("s_mov_b32 s36, s80"); A("s_mov_b32 s37, 0"); A("s_mov_b32 s38, 0")
    if pfw:
        assert not lst
        C("lines of w1 / w3 / w2 that the FFN workgroups of this die will read: 4+4 rows x 512 B and 2 KiB per wave")
        A("s_lshr_b32 s48, s2, 3"); A("s_lshl_b32 s48, s48, 2"); A("s_add_u32 s48, s48, s3"); A("s_and_b32 s49, s2, 7"); A("s_min_u32 s49, s49, 6")
        A("v_bfe_u32 v25, v0, 2, 2"); A("v_mul_u32_u24 v25, 3584, v25"); A("v_and_b32 v26, 3, v0"); A("v_lshl_add_u32 v25, v26, 7, v25")
        A(f"s_mul_i32 s50, s48, {4*3584}"); A("s_lshl_b32 s47, s49, 9"); A("s_add_u32 s50, s50, s47"); A("v_add_u32 v25, s50, v25")
        A("s_lshl_b32 s50, s49, 18"); A("s_lshl_b32 s47, s48, 11"); A("s_add_u32 s50, s50, s47"); A("v_lshl_add_u32 v26, v21, 7, s50")
        A("v_cmp_gt_u32 vcc, 2, v20"); A("v_cmp_eq_u32 s[48:49], 1, v20"); A("v_mov_b32 v27, 0"); A("v_cndmask_b32 v26, v26, v25, vcc")
        A("v_mov_b32 v28, s16"); A("v_mov_b32 v29, s17"); A("v_mov_b32 v30, s18"); A("v_mov_b32 v31, s19")
        A("v_cndmask_b32 v28, v28, v30, s[48:49]"); A("v_cndmask_b32 v29, v29, v31, s[48:49]")
        A("v_mov_b32 v30, s20"); A("v_mov_b32 v31, s21")
        A("v_cndmask_b32 v28, v30, v28, vcc"); A("v_cndmask_b32 v29, v31, v29, vcc")
        A("v_lshl_add_u64 v[20:21], v[26:27], 0, v[28:29]")
        if tp: A("s_mov_b32 s47, 0")
    if wgt: A(f"v_mov_b32 v23, {EL}")
    A("v_mov_b32 v18, 0xff7fffff"); A("v_mov_b32 v19, 0x7f7fffff"); A("v_mov_b32 v109, 0")
    for k in range(32): A(f"v_mov_b32 v{76+k}, 0")
    A(f"s_mov_b32 s45, {L2E}"); A("s_mov_b32 s44, 4"); A("s_mov_b32 s54, 0x2000"); A("s_mov_b32 s55, 4")
    if ts: A("s_mov_b32 s51, 0")
    A(f"v_mov_b32 v116, {QRDY}")
    if fk: A("s_mov_b32 s62, s39")
    A(f"s_mul_i32 s39, s39, {IU}"); A(f"s_mul_i32 s52, s3, {IW}"); A("s_add_u32 s39, s39, s52"); A("s_mov_b32 s52, 0"); A(f"s_mul_i32 s53, s3, {VW}"); A(f"s_add_u32 s53, s53, {VSTART}")
    if noh or nowait: A("s_branch L_qok")
    C("while q is not there yet, keep streaming: park up to NV more tiles in registers")
    for k in range(NV):
        A("ds_read_b32 v117, v116"); A("s_waitcnt lgkmcnt(0)"); A("v_readfirstlane_b32 s48, v117")
        A("s_cmp_lg_u32 s48, 0"); A("s_cbranch_scc1 L_qok")
        for i in range(8):
            A(f"s_waitcnt vmcnt({PACE0})"); A(f"buffer_load_dwordx4 {vr(128+32*k+4*i,4)}, v{2+(i&3)}, s[{28 if i < 4 else 32}:{31 if i < 4 else 35}], s40 offen offset:{(i&3)*1024} {kv_flags}")
        if lst: A(f"v_writelane_b32 v21, s40, {4 + k}"); A("s_add_u32 s59, s59, 1")
        adv(); A("s_add_u32 s52, s52, 1"); A("s_sub_u32 s43, s43, 1")
    LB("L_qwait")
    A("ds_read_b32 v117, v116"); A("s_waitcnt lgkmcnt(0)"); A("v_readfirstlane_b32 s48, v117")
    A("s_cmp_lg_u32 s48, 0"); A("s_cbranch_scc1 L_qok"); A("s_sleep 1"); A("s_branch L_qwait")
    LB("L_qok")
    if late2:
        A("s_and_b32 s48, s2, 7"); A("s_cmp_lg_u32 s48, 5"); A("s_cbranch_scc1 L_nolate2")
        for _ in range(late2): A("s_sleep 37")
        LB("L_nolate2")
    if tp: A("s_add_u32 s56, s52, 4")
    if ts: A("s_add_u32 s51, s51, s52"); A("s_mov_b32 s77, s52")
    TS(2)
    if mlt: A(f"ds_read_b32 v22, v1 offset:{TAGL - CNT}")
    for s in range(4): A(f"ds_read_b128 {vr(24+4*s,4)}, v108 offset:{64*s}")
    if ilv:
        def kload(i, pace=PACE): A(f"s_waitcnt vmcnt({pace})"); A(f"buffer_load_dwordx4 v{2+i}, s[28:31], s40 offen offset:{i*1024} {kv_flags} lds")
        def kblock(lo, n, lbl):
            if n:
                A("s_bitcmp1_b32 s62, 0"); A(f"s_cbranch_scc0 {lbl}")
                if lo == 0: A("s_mov_b32 m0, s41")
                for i in range(lo, lo + n): kload(i)
                LB(lbl)
        A("s_mov_b32 s55, 3"); A("s_mov_b32 s56, -16")
        LB("L_tile")
        A("s_mov_b32 s62, 0")
        A("s_cmp_gt_u32 s44, 1"); A("s_cbranch_scc1 L_dec")
        C("last tile: start on K while V is still arriving")
        A("s_waitcnt vmcnt(4)")
        TS(3); TC(0)
        for s in range(4): A(f"ds_read_b128 {vr(40+4*s,4)}, v{6+s}")
        for s in range(4):
            A(f"s_waitcnt lgkmcnt({3-s})")
            A(f"v_mfma_f32_16x16x32_bf16 v[72:75], {vr(40+4*s,4)}, {vr(24+4*s,4)}, {'0' if s == 0 else 'v[72:75]'}")
        A("s_branch L_sm")
        LB("L_empty")
        if NV:
            A("s_cmp_eq_u32 s52, 0"); A("s_cbranch_scc1 L_empty2")
            A("s_waitcnt vmcnt(0)"); A("s_mov_b32 s62, 4"); A("s_branch L_go")
            LB("L_empty2")
        if NV:
            A("s_sub_u32 s48, s39, s56"); A("s_cmp_gt_u32 s48, 2"); A("s_cbranch_scc1 L_empty3")
            A("s_waitcnt vmcnt(0)")
            LB("L_empty3")
        A(f"ds_write_b32 v1, v119 offset:{GATE - CNT}"); A("s_mov_b32 s55, 0")
        if ts: A("s_add_u32 s79, s51, 4"); TS(14)
        A("s_branch L_go")
        LB("L_dec")
        C("s62: what refills the free slot while this tile is computed: 1 loads, 3 loads with the second half unthrottled, 4 a parked tile, 0 nothing")
        C("s55: wanted number of tiles in the ring (3 at first, 2 later so that nothing waits unprocessed at the end, 0 when the pool is empty)")
        A("s_waitcnt vmcnt(8) lgkmcnt(0)")
        A("s_add_u32 s39, s39, 1")
        A("s_cmp_gt_u32 s44, s55"); A("s_cbranch_scc1 L_go")
        A("s_mov_b32 s63, 1")
        if NV:
            A("s_cmp_eq_u32 s52, 0"); A("s_cbranch_scc1 L_np")
            A("s_sub_u32 s53, s53, 1"); A("s_cmp_eq_u32 s53, 0"); A("s_cselect_b32 s62, 4, 0"); A("s_cbranch_scc1 L_go")
            A("s_cmp_eq_u32 s53, 1"); A(f"s_cselect_b32 s63, {3 if burst else 1}, 1"); A("s_branch L_src")
            LB("L_np")
        A(f"s_cmp_lt_u32 s39, {I2}"); A("s_cbranch_scc1 L_src")
        A("s_cmp_eq_u32 s55, 3"); A(f"s_cselect_b32 s63, {3 if burst else 1}, 1"); A("s_mov_b32 s55, 2")
        LB("L_src")
        A("s_cmp_eq_u32 s43, 0"); A("s_cbranch_scc1 L_dyn")
        A("s_sub_u32 s43, s43, 1"); A("s_mov_b32 s62, s63"); A("s_branch L_go")
        LB("L_dyn")
        A(f"s_cmp_ge_u32 s58, {D}"); A("s_cbranch_scc1 L_empty")
        A("s_and_b32 s49, s58, 7"); A("s_lshr_b32 s50, s58, 3")
        A("s_lshl_b32 s49, s49, 21"); A("s_lshl_b32 s50, s50, 14"); A("s_add_u32 s40, s46, s49"); A("s_add_u32 s40, s40, s50")
        A(f"s_cmp_ge_u32 s58, {D - XB}"); A("s_cselect_b32 s62, 3, s63")
        C("a wave that got one of the last rows does not ask again (the others still drain the counter)")
        A(f"s_cmp_ge_u32 s58, {D - XS}"); A("s_cselect_b32 s62, 11, s62"); A(f"s_cselect_b32 s58, {D}, s58")
        LB("L_go")
        for s in range(4): A(f"ds_read_b128 {vr(40+4*s,4)}, v{6+s}")
        for t in range(8): A(f"ds_read_b64_tr_b16 {vr(56+2*t,2)}, v{10+t}")
        kblock(0, KP[0], "L_k0")
        for s in range(4):
            A(f"s_waitcnt lgkmcnt({11-s})")
            A(f"v_mfma_f32_16x16x32_bf16 v[72:75], {vr(40+4*s,4)}, {vr(24+4*s,4)}, {'0' if s == 0 else 'v[72:75]'}")
        LB("L_sm")
        for k in range(12): A(f"v_xor_b32 v{6+k}, s54, v{6+k}")
        kblock(KP[0], KP[1], "L_k1")
        A("v_cvt_pk_bf16_f32 v110, v72, v73"); A("v_cvt_pk_bf16_f32 v111, v74, v75")
        unpack(112, 110); unpack(114, 111)
        for k in range(4): A(f"v_mul_f32 v{112+k}, {SCALE:#x}, v{112+k}")
        A("v_cvt_pk_bf16_f32 v110, v112, v113"); A("v_cvt_pk_bf16_f32 v111, v114, v115")
        unpack(112, 110); unpack(114, 111)
        A("v_max3_f32 v116, v112, v113, v114"); A("v_max_f32 v117, v115, v18")
        for k in range(4): A(f"v_fma_f32 v{72+k}, v{112+k}, s45, v19")
        A("v_max_f32 v110, v116, v117"); A("v_max_f32 v111, v116, v117")
        A("v_cmp_gt_f32 vcc, v110, v18")
        A("v_mov_b32 v118, 1.0")
        A("s_cbranch_vccnz L_newmax")
        for k in range(4): A(f"v_exp_f32 v{112+k}, v{72+k}")
        A("s_nop 0")
        LB("L_nors")
        A("v_add_f32 v116, v112, v113"); A("v_add_f32 v117, v114, v115")
        A("v_cvt_pk_bf16_f32 v120, v112, v113"); A("v_cvt_pk_bf16_f32 v121, v114, v115")
        A("v_add_f32 v116, v116, v117"); A("v_fma_f32 v109, v109, v118, v116")
        A("s_cmp_gt_u32 s44, 1"); A("s_cbranch_scc1 L_pv")
        for k in range(8): A(f"v_xor_b32 v{10+k}, s54, v{10+k}")
        TC(1)
        A("s_waitcnt vmcnt(0)")
        TC(2)
        for t in range(8): A(f"ds_read_b64_tr_b16 {vr(56+2*t,2)}, v{10+t}")
        for t in range(8):
            A(f"s_waitcnt lgkmcnt({7-t})"); A(f"v_mfma_f32_16x16x16_bf16 {vr(76+4*t,4)}, {vr(56+2*t,2)}, v[120:121], {vr(76+4*t,4)}")
        A("s_branch L_fin")
        LB("L_pv")
        kblock(KP[0] + KP[1], KP[2], "L_k2")
        A("s_waitcnt lgkmcnt(0)")
        for t in range(8): A(f"v_mfma_f32_16x16x16_bf16 {vr(76+4*t,4)}, {vr(56+2*t,2)}, v[120:121], {vr(76+4*t,4)}")
        A("s_xor_b32 s54, s54, 0x4000")
        A("s_bitcmp1_b32 s62, 0"); A("s_cbranch_scc1 L_rest")
        A("s_cmp_lg_u32 s62, 0"); A("s_cbranch_scc1 L_park")
        A("s_sub_u32 s44, s44, 1"); A("s_branch L_tile")
        LB("L_rest")
        if sum(KP) == 0: A("s_mov_b32 m0, s41")
        for i in range(sum(KP), 4): kload(i)
        A("s_lshr_b32 s48, s62, 3"); A("s_or_b32 s48, s48, s43"); A("s_cbranch_scc1 L_notk")
        A("s_mov_b32 s58, 1"); A("s_atomic_add s58, s[26:27], s57 glc")
        LB("L_notk")
        A("s_add_u32 m0, s41, 4096")
        A("s_bitcmp1_b32 s62, 1"); A("s_cbranch_scc1 L_vb")
        for i in range(4): A(f"s_waitcnt vmcnt({PACE})"); A(f"buffer_load_dwordx4 v{2+i}, s[32:35], s40 offen offset:{i*1024} {kv_flags} lds")
        LB("L_issued")
        adv()
        LB("L_slot")
        A("s_xor_b32 s41, s41, s42"); A("s_xor_b32 s42, s42, 0x4000")
        if prog:
            A("s_bitcmp1_b32 s62, 0"); A("s_addc_u32 s51, s51, 0")
            for k, r in enumerate((4, 8, 12, 16, 20, 24, 28)):
                A(f"s_cmp_eq_u32 s51, {r}"); A(f"s_cbranch_scc0 L_pg{k}"); TS(7 + k); LB(f"L_pg{k}")
        A("s_branch L_tile")
        LB("L_vb")
        for i in range(4): A(f"buffer_load_dwordx4 v{2+i}, s[32:35], s40 offen offset:{i*1024} {kv_flags} lds")
        A("s_branch L_issued")
        LB("L_park")
        C("a parked tile takes the free slot")
        A(f"s_mov_b32 s53, {VSTEP + 1}"); A("s_sub_u32 s52, s52, 1"); A("s_mov_b32 s56, s39")
        A("v_lshl_add_u32 v116, v0, 4, s41")
        for k in range(NV):
            if k < NV - 1: A(f"s_cmp_lg_u32 s52, {k}"); A(f"s_cbranch_scc1 L_pk{k}")
            for i in range(8): A(f"ds_write_b128 v116, {vr(128+32*k+4*i,4)} offset:{1024*i}")
            A("s_branch L_slot")
            if k < NV - 1: LB(f"L_pk{k}")
        if not NV: A("s_branch L_slot")
    else:
        if align: L.append(f".p2align {align}")
        LB("L_tile")
        A("s_waitcnt vmcnt(24)")
        A("s_cmp_gt_u32 s44, 3"); A("s_cbranch_scc1 L_go")
        A("s_waitcnt vmcnt(16)"); A("s_cmp_gt_u32 s44, 2"); A("s_cbranch_scc1 L_go")
        A("s_waitcnt vmcnt(8)"); A("s_cmp_gt_u32 s44, 1"); A("s_cbranch_scc1 L_go")
        if ksplit:
            if tp:
                if lst: A("s_lshl_b32 s48, s62, 1"); A("s_cmp_ge_u32 s47, s48")
                else: A(f"s_cmp_ge_u32 s47, {2*NK}")
                A("s_cbranch_scc1 L_last"); A("s_waitcnt vmcnt(0)"); A("s_branch L_go"); LB("L_last")
            C("last tile: start on K while V is still arriving")
            A("s_waitcnt vmcnt(4)")
            TS(3); TC(0)
            for s in range(4): A(f"ds_read_b128 {vr(40+4*s,4)}, v{6+s}")
            for s in range(4):
                A(f"s_waitcnt lgkmcnt({3-s})")
                A(f"v_mfma_f32_16x16x32_bf16 v[72:75], {vr(40+4*s,4)}, {vr(24+4*s,4)}, {'0' if s == 0 else 'v[72:75]'}")
            A("s_branch L_sm")
        else:
            A("s_waitcnt vmcnt(0)")
            TS(3)
        LB("L_go")
        if tp:
            C("ring entries: two K tiles each (scores kept in LDS), then the matching V tiles, then K+V tiles from the pool")
            A("s_mov_b32 s63, s47"); A("s_add_u32 s47, s47, 1"); A("s_cmp_eq_u32 s47, 4"); A("s_cselect_b32 s47, s56, s47")
            if lst:
                A("s_sub_u32 s48, s63, s62"); A("s_cbranch_scc1 L_kk")
                A("s_cmp_lt_u32 s48, s62"); A("s_cbranch_scc1 L_vv")
            else:
                A(f"s_cmp_lt_u32 s63, {NK}"); A("s_cbranch_scc1 L_kk")
                A(f"s_sub_u32 s48, s63, {NK}"); A(f"s_cmp_lt_u32 s63, {2*NK}"); A("s_cbranch_scc1 L_vv")
        if nocomp: A("s_waitcnt lgkmcnt(0)"); A("s_branch L_skipc")
        for s in range(4): A(f"ds_read_b128 {vr(40+4*s,4)}, v{6+s}")
        for t in range(8): A(f"ds_read_b64_tr_b16 {vr(56+2*t,2)}, v{10+t}{' offset:4096' if tp else ''}")
        for s in range(4):
            A(f"s_waitcnt lgkmcnt({11-s})")
            A(f"v_mfma_f32_16x16x32_bf16 v[72:75], {vr(40+4*s,4)}, {vr(24+4*s,4)}, {'0' if s == 0 else 'v[72:75]'}")
        LB("L_sm")
        for k in range(12): A(f"v_xor_b32 v{6+k}, s54, v{6+k}")
        A("v_cvt_pk_bf16_f32 v110, v72, v73"); A("v_cvt_pk_bf16_f32 v111, v74, v75")
        unpack(112, 110); unpack(114, 111)
        for k in range(4): A(f"v_mul_f32 v{112+k}, {SCALE:#x}, v{112+k}")
        A("v_cvt_pk_bf16_f32 v110, v112, v113"); A("v_cvt_pk_bf16_f32 v111, v114, v115")
        unpack(112, 110); unpack(114, 111)
        if lazy:
            A("v_max3_f32 v116, v112, v113, v114"); A("v_max_f32 v117, v115, v18")
            for k in range(4): A(f"v_fma_f32 v{72+k}, v{112+k}, s45, v19")
            A("v_max_f32 v110, v116, v117"); A("v_max_f32 v111, v116, v117")
            A("v_cmp_gt_f32 vcc, v110, v18")
            A("v_mov_b32 v118, 1.0")
            A("s_cbranch_vccnz L_newmax")
            for k in range(4): A(f"v_exp_f32 v{112+k}, v{72+k}")
            A("s_nop 0")
        else:
            A("v_max3_f32 v116, v112, v113, v114"); A("v_max3_f32 v116, v116, v115, v18")
            swap_red("max_f32", [116], [117], 16); swap_red("max_f32", [116], [117], 32)
            A(f"v_mul_f32 v117, {NL2E:#x}, v116"); A("v_floor_f32 v117, v117")
            A("v_cmp_lt_f32 vcc, v117, v19")
            A("v_sub_f32 v118, v117, v19")
            for k in range(4): A(f"v_fma_f32 v{112+k}, v{112+k}, s45, v117")
            A("v_exp_f32 v118, v118")
            for k in range(4): A(f"v_exp_f32 v{112+k}, v{112+k}")
            A("v_mov_b32 v18, v116"); A("v_mov_b32 v19, v117")
            A("s_cbranch_vccz L_nors")
            for k in range(16): A(f"v_pk_mul_f32 {vr(76+2*k,2)}, {vr(76+2*k,2)}, v[118:119] op_sel_hi:[1,0]")
        LB("L_nors")
        A("v_add_f32 v116, v112, v113"); A("v_add_f32 v117, v114, v115")
        A("v_cvt_pk_bf16_f32 v120, v112, v113"); A("v_cvt_pk_bf16_f32 v121, v114, v115")
        A("v_add_f32 v116, v116, v117"); A("v_fma_f32 v109, v109, v118, v116")
        if ksplit:
            A("s_cmp_gt_u32 s44, 1"); A("s_cbranch_scc1 L_pv")
            for k in range(8): A(f"v_xor_b32 v{10+k}, s54, v{10+k}")
            TC(1)
            A("s_waitcnt vmcnt(0)")
            TC(2)
            for t in range(8): A(f"ds_read_b64_tr_b16 {vr(56+2*t,2)}, v{10+t}{' offset:4096' if tp else ''}")
            for t in range(8):
                A(f"s_waitcnt lgkmcnt({7-t})"); A(f"v_mfma_f32_16x16x16_bf16 {vr(76+4*t,4)}, {vr(56+2*t,2)}, v[120:121], {vr(76+4*t,4)}")
            A("s_branch L_fin")
            LB("L_pv")
        A("s_waitcnt lgkmcnt(0)")
        for t in range(8): A(f"v_mfma_f32_16x16x16_bf16 {vr(76+4*t,4)}, {vr(56+2*t,2)}, v[120:121], {vr(76+4*t,4)}")
        LB("L_skipc")
        if NV:
            A("s_cmp_eq_u32 s52, 0"); A("s_cbranch_scc1 L_nopark")
            if tp: A("s_cmp_ge_u32 s47, s62" if lst else f"s_cmp_ge_u32 s47, {NK}"); A("s_cbranch_scc1 L_park")
            A("s_sub_u32 s53, s53, 1"); A("s_cmp_lg_u32 s53, 0"); A("s_cbranch_scc1 L_nopark")
            LB("L_park")
            C("move a parked tile into the slot that just became free and run it")
            A(f"s_mov_b32 s53, {VSTEP + 1}"); A("s_sub_u32 s52, s52, 1")
            A("v_lshl_add_u32 v116, v0, 4, s41")
            A("s_waitcnt vmcnt(8)")
            for k in range(NV):
                if k < NV - 1: A(f"s_cmp_lg_u32 s52, {k}"); A(f"s_cbranch_scc1 L_pk{k}")
                for i in range(8): A(f"ds_write_b128 v116, {vr(128+32*k+4*i,4)} offset:{1024*i}")
                if k < NV - 1: A("s_branch L_pkd"); LB(f"L_pk{k}")
            LB("L_pkd")
            for k in range(12): A(f"v_xor_b32 v{6+k}, s54, v{6+k}")
            if tp: A("s_add_u32 s63, s52, 4"); A("s_branch L_kk")
            else: A("s_branch L_go")
            LB("L_nopark")
        A("s_xor_b32 s54, s54, 0x4000")
        C("s55: wanted number of tiles in the ring (4 at first, 2 later so that nothing waits unprocessed at the end, 0 when the pool is empty)")
        A("s_add_u32 s39, s39, 1")
        A(f"s_cmp_lt_u32 s39, {I1}"); A("s_cbranch_scc1 L_keep")
        A("s_cmp_lg_u32 s52, 0"); A("s_cbranch_scc1 L_keep")
        A(f"s_cmp_lt_u32 s39, {I2}"); A("s_cselect_b32 s48, 3, 2"); A("s_min_u32 s55, s55, s48")
        A("s_cmp_gt_u32 s44, s55"); A("s_cbranch_scc1 L_drain")
        LB("L_keep")
        if WTRIG:
            A(f"s_cmp_lg_u32 s43, {WTRIG}"); A("s_cbranch_scc1 L_notrig")
            A(f"ds_add_u32 v1, v119 offset:{WQC - CNT}")
            LB("L_notrig")
        if lst:
            C("s37: 0 own K rows, 1 K rows by ticket, 2 the V rows of all of those, 3 K+V rows by ticket; s38: counter to ask next (0: none)")
            A("s_cmp_eq_u32 s37, 3"); A("s_cbranch_scc1 L_dyn")
            A("s_cmp_eq_u32 s37, 2"); A("s_cbranch_scc1 L_vrow")
            A("s_cmp_eq_u32 s37, 1"); A("s_cbranch_scc1 L_krow")
            if KS:
                C("workgroups that also fetch weights fall behind: they jump a few rows to stay level with their neighbours and do those rows last")
                A(f"s_cmp_lg_u32 s59, {KT + 1}"); A("s_cbranch_scc1 L_nsk")
                A("s_mov_b32 s82, s40"); A("s_lshl_b32 s48, s81, 17"); A("s_add_u32 s40, s40, s48")
                LB("L_nsk")
                A("s_cmp_eq_u32 s43, s81"); A("s_cselect_b32 s40, s82, s40")
            A("s_sub_u32 s43, s43, 1"); A("s_cmp_lg_u32 s43, 0"); A("s_cbranch_scc1 L_issue")
            if NA: A("s_add_u32 s38, s57, 128")
            A("s_mov_b32 s37, 1"); A("s_branch L_issue")
            LB("L_krow")
            if NA:
                A(f"s_cmp_ge_u32 s58, {DA}"); A("s_cbranch_scc1 L_kend")
                A("s_and_b32 s49, s58, 7"); A("s_lshl_b32 s49, s49, 21"); A("s_add_u32 s40, s46, s49")
                A("s_lshr_b32 s49, s58, 5"); A("s_lshl_b32 s49, s49, 17"); A("s_add_u32 s40, s40, s49")
                A("s_bfe_u32 s49, s58, 0x20003"); A("s_lshl_b32 s49, s49, 14"); A("s_add_u32 s40, s40, s49"); A(f"s_sub_u32 s40, s40, {8 * NA * 16384}")
                A(f"s_cmp_ge_u32 s58, {DA - 16}"); A("s_cbranch_scc1 L_klast")
                A(f"s_cmp_lt_u32 s59, {CAP - 1}"); A("s_cbranch_scc1 L_issue")
                LB("L_klast")
                A("s_mov_b32 s38, 0"); A(f"s_mov_b32 s58, {DA}"); A("s_branch L_issue")
            LB("L_kend")
            A("s_mov_b32 s62, s59"); A("s_mov_b32 s43, s59"); A("s_mov_b32 s37, 2"); A("s_mov_b32 s38, 0")
            A("s_mov_b32 s28, s8"); A("s_and_b32 s29, s9, 0xffff"); A("s_add_u32 s32, s8, 0x10000"); A("s_addc_u32 s33, s29, 0")
            LB("L_vrow")
            A("v_readlane_b32 s40, v21, s36"); A("s_add_u32 s36, s36, 1")
            A("s_cmp_eq_u32 s36, s62"); A("s_cselect_b32 s36, 0, s36")
            A("s_sub_u32 s43, s43, 1"); A("s_cmp_lg_u32 s43, 0"); A("s_cbranch_scc1 L_issue")
            A("s_mov_b32 s38, s57"); A("s_mov_b32 s37, 3"); A("s_branch L_issue")
        else:
            A("s_cmp_eq_u32 s43, 0"); A("s_cbranch_scc1 L_dyn")
            if SKW or SKF:
                C("workgroups that also fetch weights fall behind: they jump a few rows to stay level with their neighbours and do those rows last")
                A(f"s_cmp_lg_u32 s43, {SKT}"); A("s_cbranch_scc1 L_nsk")
                A("s_mov_b32 s63, s40"); A("s_lshl_b32 s48, s62, 16"); A("s_add_u32 s40, s40, s48")
                LB("L_nsk")
                A("s_cmp_eq_u32 s43, s62"); A("s_cselect_b32 s40, s63, s40")
            if tp:
                A(f"s_cmp_lg_u32 s43, {NK}"); A("s_cbranch_scc1 L_nosw")
                A("s_mov_b32 s28, s8"); A("s_and_b32 s29, s9, 0xffff"); A("s_add_u32 s32, s8, 0x10000"); A("s_addc_u32 s33, s29, 0"); A("s_mov_b32 s40, s62")
                LB("L_nosw")
            A("s_sub_u32 s43, s43, 1"); A("s_branch L_issue")
        LB("L_dyn")
        if tp: A("s_mov_b32 s28, s6"); A("s_and_b32 s29, s7, 0xffff"); A("s_mov_b32 s32, s8"); A("s_and_b32 s33, s9, 0xffff")
        if F:
            C("rows of this page are handed out in order to its four workgroups; each wave's last page ticket is one of the last four")
            A("s_cmp_eq_u32 s56, s57"); A("s_cbranch_scc1 L_head")
            if fk: A("s_mov_b32 s58, s62"); A("s_add_u32 s62, s62, 4")
            A("s_lshl_b32 s50, s58, 14"); A("s_add_u32 s40, s59, s50")
            A(f"s_cmp_ge_u32 s58, {P - 4}"); A("s_cselect_b32 s56, s57, s56")
            A("s_branch L_issue")
            LB("L_head")
        if wgt:
            C("one row of four tiles per ticket: the first wave to need it asks, the others read its answer")
            A("s_cmp_eq_u32 s56, 0"); A("s_cbranch_scc1 L_rdq")
            A("v_mov_b32 v22, s58"); A(f"ds_write_b32 v23, v22 offset:{TQ - EL}"); A("s_branch L_gotq")
            LB("L_rdq")
            A(f"ds_read_b32 v22, v23 offset:{TQ - EL}"); A("s_waitcnt lgkmcnt(0)"); A("v_readfirstlane_b32 s58, v22")
            A("s_cmp_eq_u32 s58, -1"); A("s_cbranch_scc1 L_rdq")
            LB("L_gotq")
        A(f"s_cmp_ge_u32 s58, {D}"); A("s_cbranch_scc1 L_empty")
        if wgt: A("v_add_u32 v23, 4, v23")
        A("s_and_b32 s49, s58, 7"); A("s_lshr_b32 s50, s58, 3")
        A("s_lshl_b32 s49, s49, 21"); A("s_lshl_b32 s50, s50, 14"); A("s_add_u32 s40, s46, s49"); A("s_add_u32 s40, s40, s50")
        if XB:
            A("s_cmp_lt_u32 s58, s84" if XW else f"s_cmp_lt_u32 s58, {D - XB}"); A("s_cbranch_scc1 L_issue")
            C("last round of the pool: others have stopped, do not hold these loads back")
            if XS:
                C("a wave that got one of the last XS rows does not ask again (the others still drain the counter)")
                A("s_cmp_ge_u32 s58, s83" if XW else f"s_cmp_ge_u32 s58, {D - XS}")
                A("s_cselect_b32 s38, 0, s38" if lst else "s_cselect_b32 s43, 1, 0"); A(f"s_cselect_b32 s58, {D}, s58")
            issue_tile(PACEB, 2)
            if XS: A("s_mov_b32 s43, 0")
            A("s_branch L_issued")
        LB("L_issue")
        issue_tile(PACE, 1)
        LB("L_issued")
        A("s_xor_b32 s41, s41, s42"); A("s_xor_b32 s42, s42, 0x4000")
        if prog:
            A("s_add_u32 s51, s51, 1")
            for k, r in enumerate((4, 8, 12, 16, 20, 24, 28)):
                A(f"s_cmp_eq_u32 s51, {r}"); A(f"s_cbranch_scc0 L_pg{k}"); TS(7 + k); LB(f"L_pg{k}")
        A("s_branch L_tile")
        LB("L_empty")
        if NV:
            A("s_cmp_eq_u32 s52, 0"); A("s_cbranch_scc1 L_empty2")
            A("s_xor_b32 s54, s54, 0x4000"); A("s_branch L_park")
            LB("L_empty2")
        A(f"ds_write_b32 v1, v119 offset:{GATE - CNT}"); A("s_mov_b32 s55, 0")
        if jith == 1: pf_woh()
        if pfo == 1: pf_wo()
        if pfw == 1: pf_ffn()
        if ts: A("s_add_u32 s79, s51, 4"); TS(14)
        LB("L_drain")
        A("s_sub_u32 s44, s44, 1"); A("s_cmp_lg_u32 s44, 0"); A("s_cbranch_scc1 L_tile")
    LB("L_fin")
    TS(4); TC(3)
    if jith == 2 or pfw == 2: C("the memory system is about to go idle: pull this wave's share of the weights the late stages of this die need")
    if jith == 2: pf_wo() if jfull else pf_woh()
    if pfo == 2: pf_wo()
    if pfw == 2: pf_ffn()
    C("epilogue: merge the four waves' partial results, publish")
    A("v_mov_b32 v116, v109"); A("v_mov_b32 v108, v19"); A("s_nop 0")
    A("v_permlane16_swap_b32 v109, v116"); A("v_add_f32 v117, v109, v116"); A("v_add_f32 v109, v109, v116")
    A("s_mov_b32 exec_lo, 0x000f000f"); A("s_mov_b32 exec_hi, 0x000f000f")
    for t in range(8): A(f"ds_write_b128 v122, {vr(76+4*t,4)} offset:{64*t}")
    A("s_mov_b64 exec, -1")
    A("v_permlane32_swap_b32 v109, v117"); A("v_add_f32 v109, v109, v117")
    A("s_mov_b64 exec, 15")
    A("ds_write_b64 v123, v[108:109]")
    A("s_mov_b64 exec, 1")
    A("ds_add_rtn_u32 v111, v1, v119")
    A("s_mov_b64 exec, -1")
    A("s_waitcnt lgkmcnt(0)")
    TC(4)
    A("v_readfirstlane_b32 s44, v111")
    if fine: A("s_mov_b32 s79, s44")
    A("s_cmp_eq_u32 s44, 3"); A("s_cbranch_scc0 L_sdone")
    if mlt: A("v_mov_b32 v33, v22"); A("v_mov_b32 v35, v22")
    for w in range(4): A(f"ds_read_b64 {vr(24+2*w,2)}, v125 offset:{32*w}")
    for w in range(4):
        if tp:
            if w == 2: A("v_add_u32 v124, 0x10000, v124")
            A(f"ds_read_b128 {vr(40+8*w,4)}, v124 offset:{32768*(w&1)}"); A(f"ds_read_b128 {vr(44+8*w,4)}, v124 offset:{32768*(w&1)+16}")
        else:
            A(f"ds_read_b128 {vr(40+8*w,4)}, v124 offset:{2048*w}"); A(f"ds_read_b128 {vr(44+8*w,4)}, v124 offset:{2048*w+16}")
    A("s_waitcnt lgkmcnt(8)")
    A("v_min3_f32 v32, v24, v26, v28"); A("v_min_f32 v32, v32, v30")
    for w in range(4): A(f"v_sub_f32 v{24+2*w}, v32, v{24+2*w}")
    for w in range(4): A(f"v_exp_f32 v{24+2*w}, v{24+2*w}")
    A("s_waitcnt lgkmcnt(6)")
    for k in range(4): A(f"v_pk_mul_f32 {vr(40+2*k,2)}, {vr(40+2*k,2)}, v[24:25] op_sel_hi:[1,0]")
    for w in range(1, 4):
        A(f"s_waitcnt lgkmcnt({6 - 2*w})")
        for k in range(4): A(f"v_pk_fma_f32 {vr(40+2*k,2)}, {vr(40+8*w+2*k,2)}, {vr(24+2*w,2)}, {vr(40+2*k,2)} op_sel_hi:[1,0,1]")
    for k in range(4): A(f"v_cvt_pk_bf16_f32 v{40+k}, v{40+2*k}, v{41+2*k}")
    A("global_store_dwordx4 v126, v[40:43], s[26:27] sc1")
    lr = 34 if mlt else 33
    A(f"v_mul_f32 v{lr}, v24, v25")
    for w in range(1, 4): A(f"v_fmac_f32 v{lr}, v{24+2*w}, v{25+2*w}")
    A("s_mov_b32 exec_lo, 0x00010001"); A("s_mov_b32 exec_hi, 0x00010001")
    if mlt: A("global_store_dwordx4 v127, v[32:35], s[26:27] sc1")
    else: A("global_store_dwordx2 v127, v[32:33], s[26:27] sc1")
    A("v_mov_b32 v117, 2"); A(f"ds_write_b32 v1, v117 offset:{GATE - CNT}")
    LB("L_sdone")
    TC(5); TC_fin(6)
    TS(5)
    TS_flush()
    A("s_endpgm")

    if lazy:
        LB("L_newmax")
        C("some row has a new maximum: agree on it across the four key groups, rescale")
        A("v_permlane16_swap_b32 v110, v111"); A("v_max_f32 v116, v110, v111"); A("v_max_f32 v117, v110, v111"); A("s_nop 1")
        A("v_permlane32_swap_b32 v116, v117"); A("v_max_f32 v18, v116, v117")
        A(f"v_mul_f32 v117, {NL2E:#x}, v18"); A("v_floor_f32 v117, v117")
        A("v_cmp_lt_f32 vcc, v117, v19")
        A("v_sub_f32 v118, v117, v19")
        for k in range(4): A(f"v_fma_f32 v{112+k}, v{112+k}, s45, v117")
        A("v_exp_f32 v118, v118")
        for k in range(4): A(f"v_exp_f32 v{112+k}, v{112+k}")
        A("v_mov_b32 v19, v117")
        A("s_cbranch_vccz L_nors")
        for k in range(16): A(f"v_pk_mul_f32 {vr(76+2*k,2)}, {vr(76+2*k,2)}, v[118:119] op_sel_hi:[1,0]")
        A("s_branch L_nors")
    if tp:
        LB("L_kk")
        for h in range(2):
            for q in range(4): A(f"ds_read_b128 {vr(40+16*h+4*q,4)}, v{6+q} offset:{4096*h}")
        A("s_lshl_b32 s48, s63, 8"); A("v_add_u32 v116, s48, v23")
        for q in range(4):
            A(f"s_waitcnt lgkmcnt({7-q})")
            A(f"v_mfma_f32_16x16x32_bf16 v[72:75], {vr(40+4*q,4)}, {vr(24+4*q,4)}, {'0' if q == 0 else 'v[72:75]'}")
        for q in range(4):
            A(f"s_waitcnt lgkmcnt({3-q})")
            A(f"v_mfma_f32_16x16x32_bf16 v[112:115], {vr(56+4*q,4)}, {vr(24+4*q,4)}, {'0' if q == 0 else 'v[112:115]'}")
        for k in range(12): A(f"v_xor_b32 v{6+k}, s54, v{6+k}")
        for h, r in ((0, 72), (1, 112)):
            A(f"v_cvt_pk_bf16_f32 v{40+2*h}, v{r}, v{r+1}"); A(f"v_cvt_pk_bf16_f32 v{41+2*h}, v{r+2}, v{r+3}")
        for k in range(4): unpack(44 + 2 * k, 40 + k)
        for k in range(8): A(f"v_mul_f32 v{44+k}, {SCALE:#x}, v{44+k}")
        for k in range(4): A(f"v_cvt_pk_bf16_f32 v{40+k}, v{44+2*k}, v{45+2*k}")
        A("ds_write_b64 v116, v[40:41]"); A("ds_write_b64 v116, v[42:43] offset:128")
        A("s_branch L_skipc")
        LB("L_vv")
        if lst: A("s_add_u32 s48, s48, s80"); A("s_sub_u32 s49, s48, s62"); A("s_cselect_b32 s48, s48, s49")
        A("s_lshl_b32 s48, s48, 8"); A("v_add_u32 v116, s48, v23")
        A("ds_read_b64 v[72:73], v116"); A("ds_read_b64 v[74:75], v116 offset:128")
        for t in range(8):
            A(f"ds_read_b64_tr_b16 {vr(40+4*t,2)}, v{10+t}"); A(f"ds_read_b64_tr_b16 {vr(42+4*t,2)}, v{10+t} offset:4096")
        A("s_waitcnt lgkmcnt(15)")
        for k in range(4): unpack(128 + 2 * k, 72 + k)
        A("v_max3_f32 v116, v128, v129, v130"); A("v_max3_f32 v117, v131, v132, v133"); A("v_max3_f32 v112, v134, v135, v18")
        for k in range(8): A(f"v_fma_f32 v{136+k}, v{128+k}, s45, v19")
        A("v_max3_f32 v110, v116, v117, v112"); A("v_max3_f32 v111, v116, v117, v112")
        A("v_cmp_gt_f32 vcc, v110, v18")
        A("v_mov_b32 v118, 1.0")
        A("s_cbranch_vccz L_vv2")
        A("v_permlane16_swap_b32 v110, v111"); A("v_max_f32 v116, v110, v111"); A("v_max_f32 v117, v110, v111"); A("s_nop 1")
        A("v_permlane32_swap_b32 v116, v117"); A("v_max_f32 v18, v116, v117")
        A(f"v_mul_f32 v117, {NL2E:#x}, v18"); A("v_floor_f32 v117, v117")
        A("v_sub_f32 v118, v117, v19")
        for k in range(8): A(f"v_fma_f32 v{136+k}, v{128+k}, s45, v117")
        A("v_exp_f32 v118, v118"); A("v_mov_b32 v19, v117")
        for k in range(16): A(f"v_pk_mul_f32 {vr(76+2*k,2)}, {vr(76+2*k,2)}, v[118:119] op_sel_hi:[1,0]")
        LB("L_vv2")
        for k in range(8): A(f"v_exp_f32 v{136+k}, v{136+k}")
        for k in range(12): A(f"v_xor_b32 v{6+k}, s54, v{6+k}")
        for k in range(4): A(f"v_cvt_pk_bf16_f32 v{72+k}, v{136+2*k}, v{137+2*k}")
        for k in range(2): A(f"v_pk_add_f32 {vr(136+2*k,2)}, {vr(136+2*k,2)}, {vr(140+2*k,2)}")
        A("v_pk_add_f32 v[136:137], v[136:137], v[138:139]"); A("v_add_f32 v136, v136, v137"); A("v_fma_f32 v109, v109, v118, v136")
        A("s_waitcnt lgkmcnt(0)")
        for t in range(8): A(f"v_mfma_f32_16x16x32_bf16 {vr(76+4*t,4)}, {vr(40+4*t,4)}, v[72:75], {vr(76+4*t,4)}")
        A("s_branch L_skipc")
    LB("L_helper")
    if noh: A("s_endpgm")
    A("s_mov_b32 s47, s39")
    A("s_mov_b32 s50, s39")
    A("s_cmp_eq_u32 s37, 15"); A("s_cselect_b32 s47, 3, s47")
    A("s_sub_u32 s39, s3, 4")
    A("s_and_b32 s48, s37, 7")
    A("s_mul_i32 s59, s36, 7"); A("s_add_u32 s59, s59, s48")
    A("s_lshl_b32 s49, s48, 3"); A("s_add_u32 s49, s49, s36")
    A("v_lshrrev_b32 v20, 4, v0"); A("v_and_b32 v21, 15, v0")
    A("v_lshrrev_b32 v22, 3, v21"); A("v_and_b32 v23, 7, v21")
    A("s_mov_b32 s44, 0x05040100"); A("s_mov_b32 s45, 0x07060302")
    if dry: A("s_mov_b32 s46, 0")
    A("s_cmp_eq_u32 s39, 0"); A("s_cbranch_scc1 L_w4")
    if noroles: A("s_endpgm")
    A("s_cmp_ge_u32 s47, 2"); A("s_cbranch_scc1 L_end")
    if ts: A("s_mov_b32 s64, s60")
    A(f"v_mov_b32 v1, {QRDY}")
    LB("L_hq")
    A("s_sleep 4"); A("ds_read_b32 v2, v1"); A("s_waitcnt lgkmcnt(0)"); A("v_readfirstlane_b32 s40, v2")
    A("s_cmp_eq_u32 s40, 0"); A("s_cbranch_scc1 L_hq")
    A(f"ds_read_b32 v3, v1 offset:{TAGL - QRDY}"); A("s_waitcnt vmcnt(0) lgkmcnt(0)")
    A("s_branch L_roles")

    LB("L_w4")
    C("first helper wave: reset this workgroup's hand-off slots; 128 rows x 64 columns of LN(x) @ wq; gather q")
    if w4stop == 1: A("s_endpgm")
    A(f"s_setprio {wprio}")
    if ts: A("s_mov_b32 s64, s60")
    for k in range(4): A(f"v_mov_b32 v{72+k}, -1")
    A("s_lshl_b32 s40, s36, 15"); A("s_lshl_b32 s41, s38, 8"); A("s_add_u32 s40, s40, s41"); A(f"s_add_u32 s40, s40, {PART}")
    A("v_lshlrev_b32 v76, 13, v20"); A("v_lshl_add_u32 v76, v21, 4, v76"); A("v_add_u32 v76, s40, v76")
    A("s_lshl_b32 s40, s36, 12"); A("s_lshl_b32 s41, s38, 7"); A("s_add_u32 s41, s40, s41"); A(f"s_add_u32 s41, s41, {ML}")
    A("v_lshl_add_u32 v77, v20, 3, s41")
    A(f"v_add_u32 v10, {HN}, v1")
    A("s_lshl_b32 s40, s50, 8"); A(f"s_add_u32 s40, s40, {HN}"); A("v_lshl_add_u32 v11, v20, 4, s40")
    A("v_bfe_u32 v13, v0, 2, 2"); A("v_lshl_add_u32 v13, v20, 3, v13"); A("v_lshlrev_b32 v13, 7, v13")
    A("v_and_b32 v14, 3, v0"); A("v_lshl_add_u32 v13, v14, 3, v13"); A(f"v_add_u32 v13, {WQL}, v13")
    A(f"v_lshlrev_b32 v14, 2, v0"); A(f"v_add_u32 v18, {QL}, v14")
    A("s_lshl_b32 s40, s36, 14"); A(f"s_add_u32 s40, s40, {QBUF + 4096}")
    A("v_add_u32 v17, s40, v1"); A("v_add_u32 v19, 0x2000, v17")
    A("s_lshl_b32 s41, s50, 12"); A("s_add_u32 s40, s40, s41"); A("s_lshl_b32 s41, s48, 9"); A("s_add_u32 s40, s40, s41"); A("s_sub_u32 s40, s40, 4096")
    A("v_lshl_add_u32 v15, v0, 3, s40")
    A("s_lshl_b32 s40, s2, 2"); A(f"s_add_u32 s40, s40, {ALIVE}"); A("v_mov_b32 v78, s40")
    A("v_cmp_eq_u32 s[52:53], 1, v20"); A("v_cmp_eq_u32 s[54:55], 2, v20"); A("v_cmp_eq_u32 s[56:57], 3, v20")
    A(f"v_mov_b32 v14, {WQC}")
    A("s_waitcnt vmcnt(0)")
    TS(1)
    if not nopois: A("global_store_dwordx4 v76, v[72:75], s[26:27] " + pof)
    if not mlt:
        A("s_mov_b32 exec_lo, 0x00010001"); A("s_mov_b32 exec_hi, 0x00010001")
        A("global_store_dwordx2 v77, v[72:73], s[26:27] " + pof)
        A("s_mov_b64 exec, -1")
    if gok:
        if nopois < 2: A("s_cmp_ge_u32 s47, 2"); A("s_cbranch_scc0 L_w4r")
        LB("L_w4b")
    A(f"v_add_u32 v3, {TAGC:#x}, v3")
    layernorm(4, 24, 32)
    A("ds_write_b128 v10, v[4:7]")
    for k in range(4): A(f"ds_read_b128 {vr(40+4*k,4)}, v11 offset:{64*k}")
    LB("L_wqw")
    A("ds_read_b32 v24, v14"); A("s_waitcnt lgkmcnt(0)"); A("v_readfirstlane_b32 s40, v24")
    A("s_cmp_lt_u32 s40, 4"); A("s_cbranch_scc1 L_wqw")
    TS(2)
    for k in range(4):
        for t in range(4):
            r = 96 + 16 * k + 4 * t
            A(f"ds_read_b64_tr_b16 {vr(r,2)}, v13 offset:{4096*k + 32*t}"); A(f"ds_read_b64_tr_b16 {vr(r+2,2)}, v13 offset:{4096*k + 32*t + 512}")
    for k in range(4):
        for t in range(4):
            n = 4 * k + t
            A(f"s_waitcnt lgkmcnt({min(15, 2*(15-n))})")
            A(f"v_mfma_f32_16x16x32_bf16 {vr(56+4*t,4)}, {vr(40+4*k,4)}, {vr(96+16*k+4*t,4)}, {'0' if k == 0 else vr(56+4*t,4)}")
    A("s_nop 5")
    A("v_cndmask_b32 v2, v56, v60, s[52:53]"); A("s_nop 0"); A("v_cndmask_b32 v2, v2, v64, s[54:55]"); A("v_cndmask_b32 v2, v2, v68, s[56:57]")
    if gok: A("s_waitcnt vmcnt(0)")
    A("global_store_dwordx2 v15, v[2:3], s[26:27] " + qsf)
    if not nohint:
        A("s_mov_b64 exec, 1"); A(f"global_store_dword v78, v3, s[26:27] offset:{QH - ALIVE} sc1"); A("s_mov_b64 exec, -1")
    if not gok:
        A("s_cmp_ge_u32 s47, 2"); A("s_cbranch_scc0 L_w4r")
        LB("L_w4b")
    if w4stop == 2: A("s_endpgm")
    TS(3)
    A(f"s_mov_b32 s51, {SPIN_MAX}")
    def qload(r):
        for i in range(16): A(f"global_load_dwordx4 {vr(r+4*i,4)}, v{17 if i < 8 else 19}, s[26:27] offset:{(i % 8) * 1024 - 4096} sc1")
    def qcheck(r):
        A(f"v_xor_b32 v24, v{r+1}, v3"); A(f"v_xor_b32 v25, v{r+3}, v3")
        ws = [r + 4 * i + k for i in range(1, 16) for k in (1, 3)]
        for n, w in enumerate(ws):
            A(f"v_xor_b32 v26, v{w}, v3"); A(f"v_or_b32 v{24 + (n & 1)}, v{24 + (n & 1)}, v26")
        A("v_or_b32 v24, v24, v25"); A("v_cmp_ne_u32 vcc, 0, v24")
    def qsum(r):
        for k in range(4):
            for h in (0, 2):
                A(f"v_add_f32 v{r+4*k+h}, v{r+4*k+h}, v{r+16+4*k+h}"); A(f"v_add_f32 v{r+32+4*k+h}, v{r+32+4*k+h}, v{r+48+4*k+h}")
        for k in range(4):
            for h in (0, 2): A(f"v_add_f32 v{r+4*k+h}, v{r+4*k+h}, v{r+32+4*k+h}")
        for k in range(4): A(f"v_cvt_pk_bf16_f32 v{24+k}, v{r+4*k}, v{r+4*k+2}")
    if not nohint: C("the group's 32 words announce the partial q stores; the tags inside the data are what is trusted")
    if nohint:
        if nohint > 1: A(f"s_sleep {nohint}")
        A("s_waitcnt vmcnt(0)")
    elif sq:
        A("v_readfirstlane_b32 s58, v3"); A("s_lshl_b32 s41, s36, 7"); A(f"s_add_u32 s41, s41, {QH + 4 * (32 - QW)}")
        scheck("L_qh", 0, QW)
        A(f"s_mov_b32 s51, {SPIN_MAX}")
        A("s_waitcnt vmcnt(0)")
    else:
        A("s_lshl_b32 s40, s36, 7"); A(f"s_add_u32 s40, s40, {QH}"); A("v_and_b32 v12, 31, v0"); A("v_lshl_add_u32 v12, v12, 2, s40")
        A("global_load_dword v28, v12, s[26:27] sc1")
        A(f"s_sleep {qsleep}")
        LB("L_qhint")
        A("global_load_dword v29, v12, s[26:27] sc1")
        A("s_waitcnt vmcnt(1)")
        A("v_cmp_eq_u32 vcc, v28, v3"); A("s_bcnt1_i32_b32 s40, vcc_lo"); A(f"s_cmp_ge_u32 s40, {QTH}"); A("s_cbranch_scc1 L_qgo")
        A("global_load_dword v28, v12, s[26:27] sc1")
        A("s_waitcnt vmcnt(1)")
        A("v_cmp_eq_u32 vcc, v29, v3"); A("s_bcnt1_i32_b32 s40, vcc_lo")
        A("s_sub_u32 s51, s51, 1"); A("s_cbranch_scc1 L_qgo")
        A(f"s_cmp_lt_u32 s40, {QTH}"); A("s_cbranch_scc1 L_qhint")
    LB("L_qgo")
    if not gok: C("the resets have landed: tell the later stages")
    A("s_mov_b64 exec, 1") if not gok else None
    if not gok: A("global_store_dword v78, v3, s[26:27] sc1")
    if sa:
        A("s_cmp_ge_u32 s47, 2"); A("s_cbranch_scc1 L_noar")
        A("s_lshl_b32 s40, s36, 3"); A("s_add_u32 s40, s40, s48"); A("s_add_u32 s41, s49, 64"); A("s_cmp_eq_u32 s47, 0"); A("s_cselect_b32 s40, s40, s41")
        A("s_lshl_b32 s40, s40, 2"); A(f"s_add_u32 s40, s40, {AR}"); A("v_mov_b32 v77, s40")
        A("global_store_dword v77, v3, s[26:27] sc1")
        LB("L_noar")
    if not gok: A("s_mov_b64 exec, -1")
    TS(12)
    if w4stop == 3: A("s_endpgm")
    A(f"s_mov_b32 s55, {qmask}")
    LB("L_qpoll")
    for i in range(16):
        A(f"s_bitcmp1_b32 s55, {i}"); A(f"s_cbranch_scc0 L_qs{i}")
        A(f"global_load_dwordx4 {vr(96+4*i,4)}, v{17 if i < 8 else 19}, s[26:27] offset:{(i % 8) * 1024 - 4096} {qgf}")
        LB(f"L_qs{i}")
    A("s_waitcnt vmcnt(0)")
    for i in range(16):
        A(f"v_cmp_ne_u32 vcc, v{97+4*i}, v3"); A(f"v_cmp_ne_u32 s[40:41], v{99+4*i}, v3"); A("s_or_b64 vcc, vcc, s[40:41]")
        A(f"s_cbranch_scc1 L_qc{i}"); A(f"s_bitset0_b32 s55, {i}"); LB(f"L_qc{i}")
    A("s_sub_u32 s51, s51, 1"); A("s_cbranch_scc1 L_qgot")
    if qretry:
        A("s_cmp_eq_u32 s55, 0"); A("s_cbranch_scc1 L_qgot"); A(f"s_sleep {qretry}"); A("s_branch L_qpoll")
    else: A("s_cmp_lg_u32 s55, 0"); A("s_cbranch_scc1 L_qpoll")
    LB("L_qgot")
    qsum(96)
    if wgt:
        A(f"v_add_u32 v28, {EL}, v1"); A(f"ds_write_b128 v28, v[72:75] offset:{TQ - EL}")
        for k in range(4): A(f"v_mov_b32 v{76+k}, 0")
        A("ds_write_b128 v28, v[76:79]")
    A("ds_write2_b32 v18, v24, v25 offset0:0 offset1:64"); A("ds_write2_b32 v18, v26, v27 offset0:128 offset1:192")
    A(f"v_mov_b32 v18, {QRDY}"); A("v_mov_b32 v19, 1")
    A(f"ds_write_b32 v18, v3 offset:{TAGL - QRDY}"); A("ds_write_b32 v18, v19")
    A("s_waitcnt lgkmcnt(0)")
    A("s_setprio 0")
    if gok:
        C("one member per group tells the later stages that all 32 members' resets have landed")
        A("s_cmp_lg_u32 s37, 16"); A("s_cbranch_scc1 L_nogok")
        A("s_lshl_b32 s40, s36, 2"); A(f"s_add_u32 s40, s40, {ALIVE}"); A("v_mov_b32 v78, s40")
        A("s_mov_b64 exec, 1"); A("global_store_dword v78, v3, s[26:27] sc1"); A("s_mov_b64 exec, -1")
        LB("L_nogok")
    TS(4)
    if touch:
        A("v_lshlrev_b32 v4, 21, v0"); A("s_lshl_b32 s40, s36, 24"); A(f"s_add_u32 s40, s40, {0x200000 - 128}"); A("v_add_u32 v4, s40, v4")
        A("s_mov_b64 exec, 0xff")
        A("global_load_dword v240, v4, s[6:7] nt"); A("global_load_dword v240, v4, s[8:9] nt")
        A("s_mov_b64 exec, -1")
    A("s_waitcnt vmcnt(0)")
    A("s_branch L_roles")
    LB("L_w4r")
    A("s_cmp_eq_u32 s47, 0"); A("s_cbranch_scc0 L_w4f")
    A("s_lshl_b32 s40, s48, 11"); A("s_lshl_b32 s41, s36, 8"); A("s_add_u32 s40, s40, s41"); A(f"s_add_u32 s40, s40, {H2}")
    A("v_lshl_add_u32 v76, v21, 4, s40")
    if rep:
        A("v_lshl_add_u32 v76, v20, 14, v76"); A("v_add_u32 v77, 0x10000, v76")
        A("global_store_dwordx4 v76, v[72:75], s[26:27] " + pof); A("global_store_dwordx4 v77, v[72:75], s[26:27] " + pof)
    else:
        A("s_mov_b64 exec, 0xffff")
        A("global_store_dwordx4 v76, v[72:75], s[26:27] " + pof)
        A("s_mov_b64 exec, -1")
    A("s_branch L_w4b")
    LB("L_w4f")
    A("s_lshl_b32 s41, s49, 7"); A(f"s_add_u32 s41, s41, {H3}")
    A("v_lshrrev_b32 v76, 3, v0"); A("v_mul_u32_u24 v76, 7168, v76"); A("v_and_b32 v77, 7, v0"); A("v_lshl_add_u32 v76, v77, 4, v76"); A("v_add_u32 v76, s41, v76")
    A(f"v_add_u32 v77, {8*7168}, v76")
    A("global_store_dwordx4 v76, v[72:75], s[26:27] " + pof); A("global_store_dwordx4 v77, v[72:75], s[26:27] " + pof)
    A("s_branch L_w4b")
    LB("L_roles")
    if noroles: A("s_branch L_hdone")
    A("s_cmp_eq_u32 s47, 1"); A("s_cbranch_scc1 L_ffn")
    A("s_cmp_eq_u32 s47, 0"); A("s_cbranch_scc0 L_hdone")
    A("s_mov_b32 s40, s36"); A("s_mov_b32 s36, s48"); A("s_mov_b32 s48, s40")

    C("wo role: merge 32 splits of one kv group, multiply by a 512x64 block of wo")
    A("s_lshl_b32 s40, s36, 2"); A("s_add_u32 s40, s40, s39")
    A("s_lshl_b32 s41, s40, 17"); A("s_lshl_b32 s42, s48, 7"); A("s_add_u32 s41, s41, s42"); A("s_add_u32 s41, s41, 4096")
    A("s_add_u32 s52, s12, s41"); A("s_addc_u32 s53, s13, 0")
    A("v_lshlrev_b32 v58, 16, v22"); A("v_lshl_add_u32 v58, v20, 13, v58"); A("v_lshl_add_u32 v58, v23, 4, v58"); A("v_add_u32 v59, 0x8000, v58")
    def wo_weights():
        if jitw: gate_wait("L_w_jit", jlvl); TS(11)
        for s in range(0 if jfull else 1 if jith else 2):
            for i in range(8): A(f"global_load_dwordx4 {vr(160+32*s+4*i,4)}, v{58+s}, s[52:53] offset:{1024*i-4096} {'' if pfo else w_flags}")
            if not jitw: A("s_waitcnt vmcnt(0)")
        for s in range(0 if jfull else 1 if jith else 2):
            A(f"s_waitcnt vmcnt({8 - 8*s})")
            transpose8(96 + 32 * s, 160 + 32 * s)
        TS(5)
    if not jitw: wo_weights()
    alive("w")
    A("s_lshl_b32 s41, s40, 13"); A(f"s_add_u32 s41, s41, {PART}")
    A("v_lshlrev_b32 v14, 4, v21"); A("v_lshl_add_u32 v4, v20, 11, v14"); A("v_add_u32 v4, s41, v4")
    A("s_lshl_b32 s41, s36, 12"); A(f"s_lshl_b32 s42, s39, {4 if mlt else 3}"); A("s_add_u32 s41, s41, s42"); A(f"s_add_u32 s41, s41, {ML}")
    A("v_and_b32 v8, 31, v0"); A("v_lshl_add_u32 v6, v8, 7, s41")
    A("s_lshl_b32 s41, s39, 6"); A(f"s_add_u32 s41, s41, {WB}")
    A("v_lshl_add_u32 v9, v8, 1, s41"); A("v_lshl_add_u32 v10, v20, 4, s41")
    A("s_lshl_b32 s41, s39, 8"); A(f"s_add_u32 s41, s41, {OB}")
    A("v_add_u32 v11, s41, v14")
    A("v_lshlrev_b32 v12, 7, v22"); A("v_lshl_add_u32 v12, v20, 4, v12"); A("v_add_u32 v12, s41, v12")
    A("s_lshl_b32 s41, s39, 9"); A(f"s_add_u32 s41, s41, {RED}")
    A("v_lshlrev_b32 v13, 8, v22"); A("v_lshl_add_u32 v13, v23, 5, v13"); A("v_add_u32 v13, s41, v13")
    A(f"v_add_u32 v15, {RED}, v14")
    A("s_lshl_b32 s41, s36, 11"); A("s_lshl_b32 s42, s48, 8"); A("s_add_u32 s54, s41, s42")
    if jitw: wo_weights()
    if pw:
        if pw == 2: gate_wait("L_wo_pw", 1)
        if 'm' in pws: A(f"global_load_dwordx2 v[80:81], v6, s[26:27] {pwf}")
        for i in range(8 if 'p' in pws else 0): A(f"global_load_dwordx4 {vr(16+4*i,4)}, v4, s[26:27] offset:{256*i} {pwf}")
    if not dry: gate_wait("L_wo_gate0", 2 if g2 else 1); TS(8)
    LB("L_wo_pass")
    if jith:
        for i in range(8): A(f"global_load_dwordx4 {vr(192+4*i,4)}, v59, s[52:53] offset:{1024*i-4096}")
        if jfull:
            for i in range(8): A(f"global_load_dwordx4 {vr(160+4*i,4)}, v58, s[52:53] offset:{1024*i-4096}")
        if not jov:
            A("global_load_dwordx4 v[224:227], v6, s[26:27] sc1")
            A("s_waitcnt vmcnt(1)")
            transpose8(128, 192)
    A(f"s_mov_b32 s41, {H2}")
    if dry: A("s_cmp_eq_u32 s46, 0"); A(f"s_cmov_b32 s41, {DUMMY}")
    A("s_add_u32 s41, s41, s54")
    A("v_add_u32 v7, s41, v14")
    if rep: A("v_lshrrev_b32 v5, 4, v0"); A("v_lshl_add_u32 v7, v5, 14, v7"); A("v_add_u32 v5, 0x10000, v7")
    A(f"s_mov_b32 s51, {SPIN_MAX}")
    if MLTH >= 0:
        LB("L_wo_ml")
        if mlt:
            A("global_load_dwordx4 v[224:227], v6, s[26:27] sc1")
            A("s_waitcnt vmcnt(0)")
            A("v_cmp_ne_u32 vcc, v227, v3")
        else:
            A("global_load_dwordx2 v[80:81], v6, s[26:27] sc1")
            A("s_waitcnt vmcnt(0)")
            any_poison([80, 81], 84)
        A("s_bcnt1_i32_b32 s57, vcc_lo")
        if dry: A("s_cmp_eq_u32 s46, 0"); A("s_cbranch_scc1 L_wo_go")
        A("s_sub_u32 s51, s51, 1"); A("s_cbranch_scc1 L_wo_go")
        A(f"s_cmp_gt_u32 s57, {32 - MLTH}"); A("s_cbranch_scc1 L_wo_ml")
    LB("L_wo_go")
    TS(9)
    def wload(r, m):
        A(f"global_load_dwordx4 {vr(m,4)}, v6, s[26:27] sc1" if mlt else f"global_load_dwordx2 {vr(m,2)}, v6, s[26:27] sc1")
        for i in range(8): A(f"global_load_dwordx4 {vr(r+4*i,4)}, v4, s[26:27] offset:{256*i} sc1")
    def wcheck(r, m):
        if mlt:
            A(f"v_cmp_ne_u32 s[40:41], v{m+1}, v3"); A(f"v_cmp_ne_u32 s[42:43], v{m+3}, v3")
            any_poison(list(range(r, r + 32)), 84, NCH)
            A("s_or_b64 s[40:41], s[40:41], s[42:43]"); A("s_or_b64 s[40:41], vcc, s[40:41]")
        else: any_poison([m, m+1] + list(range(r, r + 32)), 84)
    MA, MB = (224, 228) if mlt else (80, 82)
    wload(16, MA)
    if jith and jov:
        assert MLTH < 0
        A(f"s_waitcnt vmcnt({17 if jfull else 9})"); transpose8(128, 192)
        if jfull: A("s_waitcnt vmcnt(9)"); transpose8(96, 160)
    else:
        if stag: A(f"s_sleep {stag}")
    LB("L_wo_poll")
    if ts: A("s_add_u32 s79, s79, 1")
    wload(48, MB)
    A("s_waitcnt vmcnt(9)")
    wcheck(16, MA)
    A("s_cbranch_scc0 L_wo_gotA" if mlt else "s_cbranch_vccz L_wo_gotA")
    wload(16, MA)
    A("s_waitcnt vmcnt(9)")
    wcheck(48, MB)
    if dry: A("s_cmp_eq_u32 s46, 0"); A("s_cbranch_scc1 L_wo_gotB")
    if mlt: A("s_cbranch_scc0 L_wo_gotB"); A("s_sub_u32 s51, s51, 1"); A("s_cbranch_scc0 L_wo_poll")
    else:
        A("s_sub_u32 s51, s51, 1"); A("s_cbranch_scc1 L_wo_gotB")
        A("s_cbranch_vccnz L_wo_poll")
    def wcomb(r, m):
        TS(6); TC(0)
        A(f"v_mov_b32 v84, v{m}")
        P = []
        for e in range(8):
            for j in range(4):
                x = r + 4 * (2 * j) + (e >> 1); y = r + 4 * (2 * j + 1) + (e >> 1)
                P.append(f"v_perm_b32 v{160+4*e+j}, v{y}, v{x}, s{45 if e & 1 else 44}")
        def fill(n):
            for _ in range(n): A(P.pop(0))
        for rot in (8, 4, 2, 1):
            fill(2); A(f"v_min_f32_dpp v84, v84, v84 row_ror:{rot} row_mask:0xf bank_mask:0xf")
        A("v_mov_b32 v85, v84"); fill(2); A("v_permlane16_swap_b32 v84, v85"); A("v_min_f32 v84, v84, v85")
        A(f"v_sub_f32 v84, v84, v{m}"); A("v_exp_f32 v84, v84"); fill(1)
        A("v_cvt_pk_bf16_f32 v86, v84, v84")
        A("ds_write_b16 v9, v86"); A("ds_read_b128 v[88:91], v10")
        A(f"v_mul_f32 v85, v84, v{m + (2 if mlt else 1)}")
        for rot in (8, 4, 2, 1):
            fill(2); A(f"v_add_f32_dpp v85, v85, v85 row_ror:{rot} row_mask:0xf bank_mask:0xf")
        A("v_mov_b32 v86, v85"); fill(2); A("v_permlane16_swap_b32 v85, v86"); A("v_add_f32 v85, v85, v86")
        A("v_rcp_f32 v85, v85")
        fill(len(P))
    LB("L_wo_gotB")
    wcomb(48, MB)
    if dry: A("s_cmp_eq_u32 s46, 0"); A("s_cbranch_scc0 L_wo_got")
    else: A("s_branch L_wo_got")
    LB("L_wo_gotA")
    wcomb(16, MA)
    LB("L_wo_got")
    TC(1)
    A("s_waitcnt lgkmcnt(0)")
    TC(2)
    for e in range(8): A(f"v_mfma_f32_16x16x32_bf16 {vr(192+4*e,4)}, v[88:91], {vr(160+4*e,4)}, 0")
    A("s_nop 0")
    for e in range(8): A(f"v_mul_f32 v{192+4*e}, v{192+4*e}, v85")
    for k in range(4): A(f"v_cvt_pk_bf16_f32 v{88+k}, v{192+8*k}, v{196+8*k}")
    TC(3)
    A("ds_write_b128 v11, v[88:91]")
    A("ds_read_b128 v[160:163], v12"); A("ds_read_b128 v[164:167], v12 offset:64")
    A("s_waitcnt lgkmcnt(1)")
    for e in range(8): A(f"v_mfma_f32_16x16x32_bf16 {vr(192+4*e,4)}, v[160:163], {vr(96+4*e,4)}, 0")
    A("s_waitcnt lgkmcnt(0)")
    for e in range(8): A(f"v_mfma_f32_16x16x32_bf16 {vr(192+4*e,4)}, v[164:167], {vr(128+4*e,4)}, {vr(192+4*e,4)}")
    A("s_mov_b32 exec_lo, 0xff"); A("s_mov_b32 exec_hi, 0xff00")
    A("s_nop 5")
    for e in range(0, 8, 2): A(f"ds_write2_b32 v13, v{192+4*e}, v{196+4*e} offset0:{e} offset1:{e+1}")
    A("s_mov_b64 exec, -1")
    TC(4)
    barrier_real("L_wo_nb")
    TC(5)
    A("s_cmp_lg_u32 s39, 0"); A("s_cbranch_scc1 L_wo_next")
    for p in range(8): A(f"ds_read_b128 {vr(160+4*p,4)}, v15 offset:{256*p}")
    for st, wcnt in ((0, 6), (8, 4), (16, 2), (24, 0)):
        A(f"s_waitcnt lgkmcnt({wcnt})")
        for h in range(2): A(f"v_pk_add_f32 {vr(160+st+2*h,2)}, {vr(160+st+2*h,2)}, {vr(164+st+2*h,2)}")
    for h in range(2): A(f"v_pk_add_f32 {vr(160+2*h,2)}, {vr(160+2*h,2)}, {vr(168+2*h,2)}")
    for h in range(2): A(f"v_pk_add_f32 {vr(176+2*h,2)}, {vr(176+2*h,2)}, {vr(184+2*h,2)}")
    for h in range(2): A(f"v_pk_add_f32 {vr(160+2*h,2)}, {vr(160+2*h,2)}, {vr(176+2*h,2)}")
    if rep:
        C("eight copies, so that the readers of different dies do not queue on one line")
        A("global_store_dwordx4 v7, v[160:163], s[26:27] sc1"); A("global_store_dwordx4 v5, v[160:163], s[26:27] sc1")
    else:
        A("s_mov_b64 exec, 0xffff")
        A("global_store_dwordx4 v7, v[160:163], s[26:27] sc1")
        A("s_mov_b64 exec, -1")
    LB("L_wo_next")
    TC(6); TC_fin(7)
    TS(7)
    if dry:
        A("s_cmp_eq_u32 s46, 1"); A("s_cbranch_scc1 L_hdone")
        A("s_mov_b32 s46, 1")
        gate_wait("L_wo_gate", 2 if g2 else 1)
        TS(8)
        A("s_branch L_wo_pass")
    else: A("s_branch L_hdone") if ts else A("s_endpgm")

    LB("L_ffn")
    C("ffn role: h, LN(h), 32 gate/up columns, 32 rows of w2; first 16 also finish 32 output columns")
    def ffn_weights():
        A("v_lshlrev_b32 v58, 6, v22"); A("v_lshl_add_u32 v58, v20, 3, v58"); A("s_lshl_b32 s40, s39, 7"); A("v_add_u32 v58, s40, v58")
        A("s_movk_i32 s40, 3584"); A("v_mul_u32_u24 v58, s40, v58")
        A("v_and_b32 v59, 3, v21"); A("v_lshl_add_u32 v58, v59, 4, v58"); A("s_lshl_b32 s40, s49, 6"); A("v_add_u32 v58, s40, v58")
        A("v_bfe_u32 v59, v21, 2, 1"); A("v_cmp_eq_u32 vcc, 1, v59")
        A("v_mov_b32 v60, s16"); A("v_mov_b32 v61, s18"); A("v_cndmask_b32 v60, v60, v61, vcc")
        A("v_mov_b32 v61, s17"); A("v_mov_b32 v62, s19"); A("v_cndmask_b32 v61, v61, v62, vcc")
        A("v_mov_b32 v59, 0"); A("v_lshl_add_u64 v[60:61], v[58:59], 0, v[60:61]")
        A("s_lshl_b32 s40, s49, 15"); A("s_lshl_b32 s41, s39, 8"); A("s_add_u32 s40, s40, s41"); A("s_add_u32 s40, s40, 4096")
        A("s_add_u32 s52, s20, s40"); A("s_addc_u32 s53, s21, 0")
        A("v_lshlrev_b32 v58, 13, v20"); A("v_lshl_add_u32 v58, v21, 4, v58")
        if jitf: gate_wait("L_f_jit", jlvl); TS(11)
        if WTRIG:
            A(f"v_mov_b32 v1, {WQC}")
            LB("L_f_trig")
            A("s_sleep 2"); A("ds_read_b32 v2, v1"); A("s_waitcnt lgkmcnt(0)"); A("v_readfirstlane_b32 s40, v2")
            A("s_cmp_lt_u32 s40, 5"); A("s_cbranch_scc1 L_f_trig")
        A("s_mov_b64 s[40:41], 7168"); A(f"s_mov_b64 s[42:43], {7168 + 24 * 3584}")
        for s in range(2):
            for i in range(8):
                A(f"global_load_dwordx4 {vr(160+32*s+4*i,4)}, v[60:61], off{' offset:3584' if i & 1 else ''} {w_flags if w13f is None else w13f}")
                if i & 1 and not (s == 1 and i == 7): A(f"v_lshl_add_u64 v[60:61], v[60:61], 0, {'s[42:43]' if i == 7 else 's[40:41]'}")
            if not jitf and not wburst: A("s_waitcnt vmcnt(0)")
        for i in range(8): A(f"global_load_dwordx4 {vr(224+4*i,4)}, v58, s[52:53] offset:{1024*i-4096} {'' if pfw else w_flags}")
        for s in range(3):
            A(f"s_waitcnt vmcnt({16 - 8*s})")
            transpose8(64 + 32 * s, 160 + 32 * s)
        TS(5)
    if not jitf: ffn_weights()
    A("v_and_b32 v8, 31, v0")
    A("s_lshl_b32 s40, s39, 8"); A("v_lshl_add_u32 v5, v8, 3, s40")
    A("global_load_dwordx2 v[48:49], v5, s[4:5]")
    A("s_waitcnt vmcnt(0)")
    unpack(50, 49)
    A("v_and_b32 v49, 0xffff0000, v48"); A("v_lshlrev_b32 v48, 16, v48")
    alive("f")
    A("v_lshrrev_b32 v9, 5, v0"); A("v_lshlrev_b32 v4, 11, v9"); A("v_lshl_add_u32 v4, v8, 4, v4")
    A("s_lshl_b32 s40, s39, 9"); A(f"s_add_u32 s40, s40, {H2 + 4096}")
    if rep: A("s_lshl_b32 s41, s48, 14"); A("s_add_u32 s40, s40, s41")
    A("v_add_u32 v4, s40, v4"); A("v_add_u32 v6, 0x2000, v4")
    A(f"v_add_u32 v5, {HB}, v5")
    A("s_lshl_b32 s40, s39, 3"); A(f"s_add_u32 s40, s40, {ST}"); A("v_mov_b32 v7, s40"); A(f"v_mov_b32 v9, {ST}")
    A("s_lshl_b32 s40, s39, 8"); A(f"s_add_u32 s40, s40, {HN}"); A("v_lshl_add_u32 v10, v8, 3, s40")
    A("v_lshlrev_b32 v11, 7, v22"); A("v_lshl_add_u32 v11, v20, 4, v11"); A("v_add_u32 v11, s40, v11")
    A("s_lshl_b32 s41, s39, 9"); A(f"s_add_u32 s41, s41, {RED}")
    A("v_lshlrev_b32 v13, 8, v22"); A("v_lshl_add_u32 v13, v23, 5, v13"); A("v_add_u32 v13, s41, v13")
    A("v_lshlrev_b32 v14, 5, v20"); A("v_lshl_add_u32 v14, v23, 2, v14"); A(f"v_add_u32 v14, {RED}, v14")
    A("v_lshrrev_b32 v52, 2, v21"); A("v_mul_u32_u24 v52, 7168, v52"); A("v_and_b32 v53, 3, v21"); A("v_lshl_add_u32 v52, v53, 5, v52"); A("v_lshl_add_u32 v52, v20, 4, v52")
    A("s_lshl_b32 s54, s49, 7"); A(f"s_mul_i32 s41, s39, {4*7168}"); A("s_add_u32 s54, s54, s41")
    A("v_cmp_eq_u32 s[56:57], 1, v20")
    A("s_mul_i32 s41, s59, 7168"); A(f"s_add_u32 s41, s41, {H3 + 3072}"); A("v_lshl_add_u32 v53, v0, 4, s41")
    A("v_and_b32 v54, 7, v0"); A("s_lshl_b32 s41, s59, 6"); A("v_lshl_add_u32 v54, v54, 3, s41"); A(f"v_add_u32 v55, {HB}, v54")
    if jitf: ffn_weights()
    if fuse:
        assert not dry and not WTRIG
        C("LN is applied after the product: gate = (h @ w - mean * colsum(w)) / sd; column sums now, while idle")
        A("s_lshl_b32 s40, s39, 8"); A(f"s_add_u32 s40, s40, {HB}")
        A("v_lshlrev_b32 v11, 7, v22"); A("v_lshl_add_u32 v11, v20, 4, v11"); A("v_add_u32 v11, s40, v11")
        for k in range(4): A(f"v_mov_b32 v{40+k}, 0x3f803f80")
        A("v_mov_b32 v24, -1"); A("v_mov_b32 v25, -1"); A("ds_write_b64 v7, v[24:25]")
        for e in range(8): A(f"v_mfma_f32_16x16x32_bf16 {vr(160+4*e,4)}, v[40:43], {vr(64+4*e,4)}, 0")
        for e in range(8): A(f"v_mfma_f32_16x16x32_bf16 {vr(160+4*e,4)}, v[40:43], {vr(96+4*e,4)}, {vr(160+4*e,4)}")
        A(f"v_add_u32 v15, {REDC - RED}, v13"); A(f"v_mov_b32 v1, {WQC}"); A("v_mov_b32 v2, 1")
        A("s_mov_b32 exec_lo, 0xff"); A("s_mov_b32 exec_hi, 0xff00"); A("s_nop 3")
        for e in range(0, 8, 2): A(f"ds_write2_b32 v15, v{160+4*e}, v{164+4*e} offset0:{e} offset1:{e+1}")
        A("s_mov_b64 exec, 1"); A("ds_add_u32 v1, v2"); A("s_mov_b64 exec, -1")
        LB("L_f_cw")
        A("s_sleep 2"); A("ds_read_b32 v2, v1"); A("s_waitcnt lgkmcnt(0)"); A("v_readfirstlane_b32 s40, v2")
        A("s_cmp_lt_u32 s40, 8"); A("s_cbranch_scc1 L_f_cw")
        A(f"v_add_u32 v15, {REDC - RED}, v14"); A("v_add_u32 v2, 1024, v15")
        for p in range(8): A(f"ds_read2_b32 {vr(24+2*p,2)}, v{15 if p < 4 else 2} offset0:{64*(p&3)} offset1:{64*(p&3)+32}")
        A("s_waitcnt lgkmcnt(0)")
        for k in range(4): A(f"v_pk_add_f32 {vr(24+4*k,2)}, {vr(24+4*k,2)}, {vr(26+4*k,2)}")
        A("v_pk_add_f32 v[24:25], v[24:25], v[28:29]"); A("v_pk_add_f32 v[32:33], v[32:33], v[36:37]"); A("v_pk_add_f32 v[58:59], v[24:25], v[32:33]")
        A("v_add_u32 v15, 1024, v14")
    if pw:
        if pw == 2: gate_wait("L_f_pw", 1)
        for i in range(4 if 'h' in pws else 0): A(f"global_load_dwordx4 {vr(192+4*i,4)}, v{4 if i < 2 else 6}, s[26:27] offset:{(i % 2) * 4096 - 4096} {pwf}")
        A("s_cmp_lg_u32 s39, 0"); A("s_cbranch_scc1 L_f_npw"); A("s_cmp_ge_u32 s59, 16"); A("s_cbranch_scc1 L_f_npw")
        A(f"v_add_u32 v57, {pwoff}, v53")
        for i in range(7 if 'o' in pws else 0): A(f"global_load_dwordx4 {vr(220+4*i,4)}, v57, s[26:27] offset:{1024*i-3072} {pwf}")
        LB("L_f_npw")
    if not dry: gate_wait("L_f_gate0", 2 if g2 else 1)
    LB("L_f_pass")
    A(f"s_mov_b32 s41, {H3}")
    if dry: A("s_cmp_eq_u32 s46, 0"); A(f"s_cmov_b32 s41, {DUMMY}")
    A("s_add_u32 s41, s41, s54")
    A("v_add_u32 v56, s41, v52")
    A(f"s_mov_b32 s51, {SPIN_MAX}")
    def hload(r):
        for i in range(4): A(f"global_load_dwordx4 {vr(r+4*i,4)}, v{4 if i < 2 else 6}, s[26:27] offset:{(i % 2) * 4096 - 4096} sc1")
    def hsum(r):
        TS(6)
        for h in range(2): A(f"v_pk_add_f32 {vr(40+2*h,2)}, {vr(r+2*h,2)}, {vr(r+4+2*h,2)}")
        for h in range(2): A(f"v_pk_add_f32 {vr(44+2*h,2)}, {vr(r+8+2*h,2)}, {vr(r+12+2*h,2)}")
    if hint2:
        LB("L_f_hint")
        if h2sleep: A(f"s_sleep {h2sleep}")
        if hint2 == 1:
            A("global_load_dwordx4 v[192:195], v4, s[26:27] offset:-4096 sc1"); A("s_waitcnt vmcnt(0)")
            any_poison(range(192, 196), 40)
            A("s_sub_u32 s51, s51, 1"); A("s_cbranch_scc1 L_f_go"); A("s_cbranch_vccnz L_f_hint")
        else:
            A("global_load_dword v192, v4, s[26:27] offset:-4096 sc1"); A("s_waitcnt vmcnt(0)")
            A("v_cmp_ne_u32 vcc, -1, v192")
            A("s_sub_u32 s51, s51, 1"); A("s_cbranch_scc1 L_f_go"); A("s_cbranch_vccz L_f_hint")
        LB("L_f_go")
    if n2 > 2: polln("L_f", [192, 208, 224][:n2], 4, hload, lambda r: any_poison(range(r, r + 16), 40, NCH), hsum, stag3)
    else:
        hload(192)
        if stag: A(f"s_sleep {stag}")
        LB("L_f_poll")
        hload(208)
        A("s_waitcnt vmcnt(4)")
        any_poison(range(192, 208), 40, NCH)
        A("s_cbranch_vccz L_f_gotA")
        hload(192)
        A("s_waitcnt vmcnt(4)")
        any_poison(range(208, 224), 40, NCH)
        if dry: A("s_cmp_eq_u32 s46, 0"); A("s_cbranch_scc1 L_f_gotB")
        A("s_sub_u32 s51, s51, 1"); A("s_cbranch_scc1 L_f_gotB")
        A("s_cbranch_vccnz L_f_poll")
        LB("L_f_gotB")
        hsum(208)
        if dry: A("s_cmp_eq_u32 s46, 0"); A("s_cbranch_scc0 L_f_got")
        else: A("s_branch L_f_got")
        LB("L_f_gotA")
        hsum(192)
    LB("L_f_got")
    TC(0)
    for h in range(2): A(f"v_pk_add_f32 {vr(24+2*h,2)}, {vr(40+2*h,2)}, {vr(44+2*h,2)}")
    swap_red("add_f32", [24, 25, 26, 27], [28, 29, 30, 31], 32)
    A("v_cvt_pk_bf16_f32 v28, v24, v25"); A("v_cvt_pk_bf16_f32 v29, v26, v27")
    unpack(24, 28); unpack(26, 29)
    A("v_pk_add_f32 v[24:25], v[24:25], v[48:49]"); A("v_pk_add_f32 v[26:27], v[26:27], v[50:51]")
    A("v_cvt_pk_bf16_f32 v28, v24, v25"); A("v_cvt_pk_bf16_f32 v29, v26, v27")
    if fuse:
        A("ds_write_b64 v5, v[28:29]")
        A("ds_read_b128 v[40:43], v11"); A("ds_read_b128 v[44:47], v11 offset:64")
        unpack(24, 28); unpack(26, 29)
        C("mean and centred sum of squares of this wave's 128 values, under the matrix work")
        A("v_readfirstlane_b32 s40, v24"); A("s_nop 1")
        for k in range(4): A(f"v_subrev_f32 v{32+k}, s40, v{24+k}")
        A("v_add_f32 v30, v32, v33"); A("v_mul_f32 v31, v32, v32"); A("v_add_f32 v36, v34, v35"); A("v_mul_f32 v37, v33, v33")
        A("v_fmac_f32 v31, v34, v34"); A("v_fmac_f32 v37, v35, v35"); A("v_add_f32 v30, v30, v36"); A("v_add_f32 v31, v31, v37")
        TC(1)
        CH = [f"v_sub_f32 v{k}, v{k}, v30" for k in (32, 34, 36, 38)] + ["v_add_f32 v33, v33, v37", "v_mul_f32 v32, v32, v32", "v_mul_f32 v36, v36, v36", "v_fmac_f32 v32, v34, v34", "v_fmac_f32 v36, v38, v38"]
        M = [f"v_mfma_f32_16x16x32_bf16 {vr(160+4*e,4)}, v[40:43], {vr(64+4*e,4)}, 0" for e in range(8)] + \
            [f"v_mfma_f32_16x16x32_bf16 {vr(160+4*e,4)}, v[44:47], {vr(96+4*e,4)}, {vr(160+4*e,4)}" for e in range(8)]
        A("s_waitcnt lgkmcnt(0)")
        for rot in (8, 4, 2, 1):
            A(M.pop(0))
            for x in (30, 31): A(f"v_add_f32_dpp v{x}, v{x}, v{x} row_ror:{rot} row_mask:0xf bank_mask:0xf")
        A(M.pop(0)); A("v_mov_b32 v32, v30"); A("v_mov_b32 v33, v31"); A(M.pop(0)); A(M.pop(0))
        A("v_permlane16_swap_b32 v30, v32"); A("v_permlane16_swap_b32 v31, v33"); A(M.pop(0))
        A("v_add_f32 v30, v30, v32"); A("v_add_f32 v31, v31, v33"); A(M.pop(0))
        A("v_mul_f32 v32, 0x3c000000, v30"); A(M.pop(0))
        A("v_fma_f32 v31, -v32, v30, v31"); A("v_add_f32 v30, s40, v32"); A(M.pop(0))
        A("v_min_u32 v31, -2, v31"); A(M.pop(0))
        A("ds_write_b64 v7, v[30:31]")
        for m in M: A(m)
        TC(2)
        A("ds_read_b128 v[32:35], v9"); A("ds_read_b128 v[36:39], v9 offset:16")
        A("s_mov_b32 exec_lo, 0xff"); A("s_mov_b32 exec_hi, 0xff00"); A("s_nop 3")
        for e in range(0, 8, 2): A(f"ds_write2_b32 v13, v{160+4*e}, v{164+4*e} offset0:{e} offset1:{e+1}")
        A("s_mov_b64 exec, -1")
        A("s_waitcnt lgkmcnt(4)")
        LB("L_f_ck")
        A("v_max3_u32 v30, v33, v35, v37"); A("v_add_f32 v24, v32, v34"); A("v_max_u32 v30, v30, v39"); A("v_add_f32 v31, v36, v38")
        A("v_cmp_eq_u32 vcc, -1, v30"); A("v_add_f32 v30, v24, v31"); A("s_cbranch_vccz L_f_sok")
        A("ds_read_b128 v[32:35], v9"); A("ds_read_b128 v[36:39], v9 offset:16"); A("s_waitcnt lgkmcnt(0)"); A("s_branch L_f_ck")
        LB("L_f_sok")
        TC(3)
        A("v_add_f32 v33, v33, v35"); A("v_mul_f32 v30, 0x3e800000, v30"); A("v_add_f32 v37, v37, v39")
        for k in range(PRE): A(CH.pop(0))
        TC(4)
        A("s_waitcnt lgkmcnt(0)"); A("s_barrier")
        TC(5)
        TS(7)
        for p in range(8): A(f"ds_read2_b32 {vr(160+2*p,2)}, v{14 if p < 4 else 15} offset0:{64*(p&3)} offset1:{64*(p&3)+32}")
        for c_ in CH: A(c_)
        A("v_add_f32 v32, v32, v36"); A("v_mul_f32 v33, 0x3b000000, v33"); A("v_cvt_pk_bf16_f32 v30, v30, v30"); A("v_fmac_f32 v33, 0x3e800000, v32")
        A("v_and_b32 v30, 0xffff0000, v30")
        bf16r(33)
        A("v_add_f32 v33, 0x3727c5ac, v33")
        bf16r(33)
        A("v_sqrt_f32 v33, v33")
        for k in range(4):
            A(f"s_waitcnt lgkmcnt({6-2*k})"); A(f"v_pk_add_f32 {vr(160+4*k,2)}, {vr(160+4*k,2)}, {vr(162+4*k,2)}")
            if k == 0: A("v_cvt_pk_bf16_f32 v33, v33, v33")
            if k == 1: A("v_and_b32 v33, 0xffff0000, v33")
            if k == 2: A("v_rcp_f32 v32, v33")
        A("v_pk_add_f32 v[160:161], v[160:161], v[164:165]"); A("v_pk_add_f32 v[168:169], v[168:169], v[172:173]")
        A("v_pk_fma_f32 v[160:161], v[58:59], v[30:31], v[160:161] op_sel_hi:[1,0,1] neg_lo:[0,1,0] neg_hi:[0,1,0]")
        A("v_pk_add_f32 v[24:25], v[160:161], v[168:169]")
        A("v_pk_mul_f32 v[24:25], v[24:25], v[32:33] op_sel_hi:[1,0]")
    else:
        unpack(24, 28); unpack(26, 29)
        C("mean and centred sum of squares of this wave's 128 values; merged across waves after the barrier")
        A("v_readfirstlane_b32 s40, v24")
        A("ds_write_b64 v5, v[28:29]"); A("s_nop 0")
        for k in range(4): A(f"v_subrev_f32 v{32+k}, s40, v{24+k}")
        A("v_add_f32 v30, v32, v33"); A("v_mul_f32 v31, v32, v32"); A("v_add_f32 v36, v34, v35"); A("v_mul_f32 v37, v33, v33")
        A("v_fmac_f32 v31, v34, v34"); A("v_fmac_f32 v37, v35, v35"); A("v_add_f32 v30, v30, v36"); A("v_add_f32 v31, v31, v37")
        dpp_red("add_f32", [30, 31]); swap_red("add_f32", [30, 31], [32, 33], 16)
        A("v_mul_f32 v32, 0x3c000000, v30"); A("v_fma_f32 v31, -v32, v30, v31"); A("v_add_f32 v30, s40, v32")
        A("ds_write_b64 v7, v[30:31]")
        TC(1)
        barrier_real("L_f_nb1")
        TC(2)
        A("ds_read_b128 v[32:35], v9"); A("ds_read_b128 v[36:39], v9 offset:16")
        A("s_waitcnt lgkmcnt(0)")
        A("v_add_f32 v30, v32, v34"); A("v_add_f32 v31, v36, v38"); A("v_add_f32 v33, v33, v35"); A("v_add_f32 v30, v30, v31"); A("v_add_f32 v37, v37, v39")
        A("v_mul_f32 v30, 0x3e800000, v30"); A("v_add_f32 v33, v33, v37")
        for k in (32, 34, 36, 38): A(f"v_sub_f32 v{k}, v{k}, v30")
        A("v_mul_f32 v32, v32, v32"); A("v_mul_f32 v36, v36, v36"); A("v_fmac_f32 v32, v34, v34"); A("v_fmac_f32 v36, v38, v38")
        bf16r(30)
        A("v_add_f32 v32, v32, v36"); A("v_mul_f32 v33, 0x3b000000, v33"); A("v_fmac_f32 v33, 0x3e800000, v32")
        for k in range(4): A(f"v_sub_f32 v{24+k}, v{24+k}, v30")
        bf16r(33)
        A("v_add_f32 v33, 0x3727c5ac, v33")
        bf16r(33)
        A("v_sqrt_f32 v33, v33")
        A("v_cvt_pk_bf16_f32 v28, v24, v25"); A("v_cvt_pk_bf16_f32 v29, v26, v27")
        bf16r(33)
        A("v_rcp_f32 v33, v33")
        unpack(24, 28); unpack(26, 29)
        for k in range(4): A(f"v_mul_f32 v{24+k}, v{24+k}, v33")
        A("v_cvt_pk_bf16_f32 v28, v24, v25"); A("v_cvt_pk_bf16_f32 v29, v26, v27")
        A("ds_write_b64 v10, v[28:29]")
        TC(3)
        A("ds_read_b128 v[40:43], v11"); A("ds_read_b128 v[44:47], v11 offset:64")
        A("s_waitcnt lgkmcnt(1)")
        for e in range(8): A(f"v_mfma_f32_16x16x32_bf16 {vr(160+4*e,4)}, v[40:43], {vr(64+4*e,4)}, 0")
        A("s_waitcnt lgkmcnt(0)")
        for e in range(8): A(f"v_mfma_f32_16x16x32_bf16 {vr(160+4*e,4)}, v[44:47], {vr(96+4*e,4)}, {vr(160+4*e,4)}")
        A("s_mov_b32 exec_lo, 0xff"); A("s_mov_b32 exec_hi, 0xff00")
        A("s_nop 5")
        for e in range(0, 8, 2): A(f"ds_write2_b32 v13, v{160+4*e}, v{164+4*e} offset0:{e} offset1:{e+1}")
        A("s_mov_b64 exec, -1")
        TC(4)
        barrier_real("L_f_nb2")
        TC(5)
        TS(7)
        for p in range(8):
            if p == 4: A("v_add_u32 v15, 1024, v14")
            A(f"ds_read2_b32 {vr(24+2*p,2)}, v{14 if p < 4 else 15} offset0:{64*(p&3)} offset1:{64*(p&3)+32}")
        for k in range(4):
            A(f"s_waitcnt lgkmcnt({6-2*k})"); A(f"v_pk_add_f32 {vr(24+4*k,2)}, {vr(24+4*k,2)}, {vr(26+4*k,2)}")
        A("v_pk_add_f32 v[24:25], v[24:25], v[28:29]"); A("v_pk_add_f32 v[32:33], v[32:33], v[36:37]"); A("v_pk_add_f32 v[24:25], v[24:25], v[32:33]")
    A("v_cvt_pk_bf16_f32 v26, v24, v25")
    unpack(24, 26)
    A(f"v_mul_f32 v26, {NL2E:#x}, v24"); A("v_exp_f32 v26, v26"); A("s_nop 0")
    A("v_add_f32 v26, 1.0, v26"); A("v_rcp_f32 v26, v26"); A("s_nop 0")
    A("v_mul_f32 v26, v24, v26")
    bf16r(26)
    A("v_mul_f32 v26, v26, v25"); A("s_nop 1")
    A("v_mov_b32_dpp v27, v26 quad_perm:[1,0,3,2] row_mask:0xf bank_mask:0xf")
    A("v_cvt_pk_bf16_f32 v26, v26, v27"); A("s_nop 1")
    for k in range(4): A(f"v_mov_b32_dpp v{40+k}, v26 row_newbcast:{2*k} row_mask:0xf bank_mask:0xf")
    A("s_nop 1")
    TC(6)
    for e in range(8): A(f"v_mfma_f32_16x16x32_bf16 {vr(160+4*e,4)}, v[40:43], {vr(128+4*e,4)}, 0")
    A("s_nop 4")
    for e in range(4): A(f"v_cndmask_b32 v{24+e}, v{160+4*e}, v{176+4*e}, s[56:57]")
    A("s_mov_b32 exec_hi, 0")
    A("global_store_dwordx4 v56, v[24:27], s[26:27] sc1")
    A("s_mov_b64 exec, -1")
    TC(7); TC_fin(8)
    TS(8)
    A("s_cmp_eq_u32 s39, 0"); A("s_cbranch_scc1 L_f_fin")
    C("every first helper wave has read the old word long ago: give the next launch's hand-offs a different tag")
    A("s_cmp_lg_u32 s39, 1"); A("s_cbranch_scc1 L_f_next"); A("s_cmp_lg_u32 s59, 0"); A("s_cbranch_scc1 L_f_next")
    if dry: A("s_cmp_eq_u32 s46, 0"); A("s_cbranch_scc1 L_f_next")
    A("v_mov_b32 v57, 0"); A("s_mov_b64 exec, 1")
    A("global_store_dword v57, v3, s[26:27] sc1")
    A("s_mov_b64 exec, -1"); A("s_branch L_f_next")
    LB("L_f_fin")
    A("s_cmp_ge_u32 s59, 16"); A("s_cbranch_scc1 L_f_next")
    C("final stage: 32 output columns")
    def oload(r):
        for i in range(7): A(f"global_load_dwordx4 {vr(r+4*i,4)}, v53, s[26:27] offset:{1024*i-3072} sc1")
    def osum(r):
        TS(9)
        for d, x, y in ((160, r, r+4), (164, r+8, r+12), (168, r+16, r+20), (160, 160, r+24)):
            for h in range(2): A(f"v_pk_add_f32 {vr(d+2*h,2)}, {vr(x+2*h,2)}, {vr(y+2*h,2)}")
    if n3 > 2:
        A("s_mov_b64 s[42:43], s[22:23]"); A("ds_read_b64 v[44:45], v55"); A(f"s_mov_b32 s51, {SPIN_MAX}")
        polln("L_o", [192, 220, 64][:n3], 7, oload, lambda r: any_poison(range(r, r + 28), 40, NCH), osum, stag3)
    else:
        A("s_waitcnt vmcnt(1)")
        oload(192)
        if dry:
            A(f"s_add_u32 s42, s26, {DUMMY}"); A("s_addc_u32 s43, s27, 0")
            A("s_cmp_eq_u32 s46, 0"); A("s_cselect_b32 s42, s42, s22"); A("s_cselect_b32 s43, s43, s23")
        else: A("s_mov_b64 s[42:43], s[22:23]")
        A("ds_read_b64 v[44:45], v55")
        A(f"s_mov_b32 s51, {SPIN_MAX}")
        if stag: A(f"s_sleep {stag}")
        LB("L_o_poll")
        oload(220)
        A("s_waitcnt vmcnt(7)")
        any_poison(range(192, 220), 40, NCH)
        A("s_cbranch_vccz L_o_gotA")
        oload(192)
        A("s_waitcnt vmcnt(7)")
        any_poison(range(220, 248), 40, NCH)
        if dry: A("s_cmp_eq_u32 s46, 0"); A("s_cbranch_scc1 L_o_gotB")
        A("s_sub_u32 s51, s51, 1"); A("s_cbranch_scc1 L_o_gotB")
        A("s_cbranch_vccnz L_o_poll")
        LB("L_o_gotB")
        osum(220)
        if dry: A("s_cmp_eq_u32 s46, 0"); A("s_cbranch_scc0 L_o_got")
        else: A("s_branch L_o_got")
        LB("L_o_gotA")
        osum(192)
    LB("L_o_got")
    for d, y in ((164, 168), (160, 164)):
        for h in range(2): A(f"v_pk_add_f32 {vr(d+2*h,2)}, {vr(d+2*h,2)}, {vr(y+2*h,2)}")
    A("s_nop 0")
    for k in range(4): A(f"v_add_f32_dpp v{160+k}, v{160+k}, v{160+k} row_ror:8 row_mask:0xf bank_mask:0xf")
    swap_red("add_f32", [160, 161, 162, 163], [164, 165, 166, 167], 16)
    swap_red("add_f32", [160, 161, 162, 163], [164, 165, 166, 167], 32)
    A("v_cvt_pk_bf16_f32 v164, v160, v161"); A("v_cvt_pk_bf16_f32 v165, v162, v163")
    unpack(160, 164); unpack(162, 165)
    A("s_waitcnt lgkmcnt(0)")
    unpack(164, 44); unpack(166, 45)
    A("v_pk_add_f32 v[160:161], v[160:161], v[164:165]"); A("v_pk_add_f32 v[162:163], v[162:163], v[166:167]")
    A("v_cvt_pk_bf16_f32 v160, v160, v161"); A("v_cvt_pk_bf16_f32 v161, v162, v163")
    A("s_mov_b64 exec, 0xff")
    A("global_store_dwordx2 v54, v[160:161], s[42:43] " + outf)
    A("s_mov_b64 exec, -1")
    LB("L_f_next")
    TS(10)
    if dry:
        A("s_cmp_eq_u32 s46, 1"); A("s_cbranch_scc1 L_hdone")
        A("s_mov_b32 s46, 1")
        gate_wait("L_f_gate", 2 if g2 else 1)
        A("s_branch L_f_pass")
    LB("L_hdone")
    TS_flush("H")
    LB("L_end")
    A("s_endpgm")
    L.append('.section .rodata,"a"'); L.append(".p2align 6"); L.append(f".amdhsa_kernel {NAME}_kernel")
    for s in ("next_free_vgpr 256", "next_free_sgpr 102" if fine else "next_free_sgpr 96", "accum_offset 256", "group_segment_fixed_size 0", "kernarg_size 96",
              "user_sgpr_count 2", "user_sgpr_kernarg_segment_ptr 1", "system_sgpr_workgroup_id_x 1", "float_denorm_mode_32 3"):
        L.append("  .amdhsa_" + s)
    L.append(".end_amdhsa_kernel")
    return "\n".join(L) + "\n"

if __name__ == "__main__":
    kw = eval("dict(" + (sys.argv[2] if len(sys.argv) > 2 else "") + ")")
    open(sys.argv[1], "w").write(gen(**kw))
```
